```python
import torch

def _softmax(x, axis=-1):
    return torch.softmax(x, dim=axis)
def _gelu(x):
    return torch.nn.functional.gelu(x, approximate="tanh")
def _silu(x):
    return torch.nn.functional.silu(x)
def _sigmoid(x):
    return torch.sigmoid(x)
def _layernorm(x, axis=-1, eps=1e-5):
    m = x.mean(dim=axis, keepdim=True)
    v = x.var(dim=axis, keepdim=True, unbiased=False)
    return (x - m) / torch.sqrt(v + eps)
def _scatter_add(tgt, idx, src, axis=0):
    return tgt.clone().index_add_(axis, idx, src)
def _segment_sum(src, seg, n):
    out = torch.zeros((n,) + src.shape[1:], dtype=src.dtype)
    return out.index_add_(0, seg, src)
def _pad(x, pw):
    flat = tuple(v for pair in reversed(pw) for v in pair)
    return torch.nn.functional.pad(x, flat)

kernel_name = 'gather_scatter__mpnn_edge_mlp__graph'

def setup_inputs():

    _w = (lambda a: (lambda t: t.to(torch.bfloat16) if t.is_floating_point() else t)(torch.as_tensor(a)))
    N, deg, D, De = 12500, 32, 128, max(16, 1)
    E = N * deg
    return {
        "x": _w((lambda *s: torch.randn(*s, dtype=torch.bfloat16) * 0.05)(N, D)),
        "e_attr": _w((lambda *s: torch.randn(*s, dtype=torch.bfloat16) * 0.4)(E, De)),
        "src": _w((lambda lo, hi, *s: torch.randint(lo, hi, s))(0, N, E).to(torch.int64)),
        "dst": _w((lambda lo, hi, *s: torch.randint(lo, hi, s))(0, N, E).to(torch.int64)),
        "w_msg": _w((lambda *s: torch.randn(*s, dtype=torch.bfloat16) * 0.4)(2 * D + De, D)),
        "w_upd": _w((lambda *s: torch.randn(*s, dtype=torch.bfloat16) * 0.05)(2 * D, D)),
    }

def reference(x, e_attr, src, dst, w_msg, w_upd):
    N, D = x.shape
    m_in = torch.concatenate([x[src], x[dst], e_attr], axis=-1)
    msg = _silu(m_in @ w_msg)
    agg = _segment_sum(msg, dst, N)
    return _silu(torch.concatenate([x, agg], axis=-1) @ w_upd)
```

```python
import re

class Asm:
    def __init__(self):
        self.lines = []
        self.uid = 0
    def e(self, s):
        for ln in s.split("\n"):
            ln = ln.strip()
            if ln:
                self.lines.append(ln)
    def label(self, name):
        self.lines.append(name + ":")
    def c(self, s):
        self.lines.append("; " + s)
    def newlabel(self, p="L"):
        self.uid += 1
        return f"{p}_{self.uid}"
    def text(self):
        out = []
        for ln in self.lines:
            if ln.endswith(":") or ln.startswith(".") :
                out.append(ln)
            else:
                out.append("    " + ln)
        return "\n".join(out) + "\n"

def vr(base, n=1):
    return f"v{base}" if n == 1 else f"v[{base}:{base+n-1}]"
def sr(base, n=1):
    return f"s{base}" if n == 1 else f"s[{base}:{base+n-1}]"

_reg = re.compile(r"\b([vsa])(\d+)\b|\b([vsa])\[(\d+):(\d+)\]|\b(vcc|exec|m0|vcc_lo|vcc_hi|exec_lo|exec_hi)\b")
def regs_of(op):
    out = []
    for m in _reg.finditer(op):
        if m.group(1):
            out.append(m.group(1) + m.group(2))
        elif m.group(3):
            out += [m.group(3) + str(i) for i in range(int(m.group(4)), int(m.group(5)) + 1)]
        else:
            g = m.group(6)
            out.append("vcc" if g.startswith("vcc") else "exec" if g.startswith("exec") else g)
    return out

TRANS = ("v_exp_f32", "v_rcp_f32", "v_log_f32", "v_rsq_f32", "v_sqrt_f32")
def parse(ln):
    ln = ln.split(";")[0].strip()
    if not ln or ln.endswith(":") or ln.startswith("."):
        return None
    parts = ln.split(None, 1)
    op = parts[0]
    rest = parts[1] if len(parts) > 1 else ""
    ops = [o.strip() for o in re.split(r",(?![^\[]*\])", rest)] if rest else []
    d = dict(op=op, dst=[], src=[], kind="other", text=ln)
    allr = lambda lst: [r for o in lst for r in regs_of(o)]
    if op.startswith("v_mfma"):
        d["kind"] = "mfma"; d["dst"] = regs_of(ops[0]); d["A"] = regs_of(ops[1]); d["B"] = regs_of(ops[2]); d["C"] = regs_of(ops[3])
        d["src"] = d["A"] + d["B"] + d["C"]
        d["passes"] = 8 if "32x32" in op else 4
    elif op.startswith("v_cmpx"):
        d["kind"] = "valu"; d["dst"] = regs_of(ops[0]) + ["exec"]; d["src"] = allr(ops[1:])
    elif op.startswith("v_cmp"):
        d["kind"] = "valu"; d["dst"] = regs_of(ops[0]); d["src"] = allr(ops[1:])
    elif op.startswith("v_readfirstlane") or op.startswith("v_readlane"):
        d["kind"] = "valu"; d["dst"] = regs_of(ops[0]); d["src"] = allr(ops[1:]); d["readlane"] = True
    elif op.startswith("v_permlane"):
        d["kind"] = "valu"; d["dst"] = allr(ops[:2]); d["src"] = allr(ops[:2]); d["permlane"] = True
    elif op.startswith("v_"):
        d["kind"] = "valu"; d["dst"] = regs_of(ops[0]); d["src"] = allr(ops[1:])
        if op.startswith(("v_add_co", "v_addc_co", "v_sub_co")):
            d["dst"] += regs_of(ops[1]); d["src"] = allr(ops[2:])
        if op.startswith("v_fmac") or "_dpp" in op:
            d["src"] += d["dst"]
        if "_dpp" in op: d["dpp"] = True
        if op.split("_e")[0] in TRANS or op in TRANS: d["trans"] = True
    elif op.startswith("ds_"):
        d["kind"] = "ds"
        if op.startswith(("ds_read", "ds_bpermute", "ds_permute", "ds_swizzle")) or "_rtn" in op:
            d["dst"] = regs_of(ops[0]); d["src"] = allr(ops[1:])
        else:
            d["src"] = allr(ops)
    elif op.startswith(("buffer_", "global_")):
        d["kind"] = "vmem"
        islds = ln.rstrip().endswith(" lds") or "_lds_" in op
        if "load" in op and not islds:
            d["dst"] = regs_of(ops[0]); d["src"] = allr(ops[1:])
        else:
            d["src"] = allr(ops)
            if islds: d["src"].append("m0"); d["dma"] = True
            if "store" in op and ("x4" in op or "x3" in op):
                d["widestore"] = regs_of(ops[0]) if op.startswith("buffer") else regs_of(ops[1])
    elif op.startswith("s_"):
        d["kind"] = "salu"
        if op.startswith(("s_cmp", "s_bitcmp", "s_cbranch", "s_branch", "s_waitcnt", "s_barrier", "s_nop", "s_endpgm", "s_setprio", "s_sleep")):
            d["src"] = allr(ops)
        else:
            d["dst"] = regs_of(ops[0]) if ops else []; d["src"] = allr(ops[1:])
            if "saveexec" in op: d["dst"].append("exec")
        if op == "s_nop": d["ws"] = int(ops[0], 0) + 1
    return d

def check_seq(seq, name=""):
    probs = []
    n = len(seq)
    for i, c in enumerate(seq):
        dist = 0
        for j in range(i - 1, max(-1, i - 24), -1):
            p = seq[j]
            need = 0; why = ""
            pd = set(p["dst"])
            if p["kind"] == "valu":
                if c["kind"] == "mfma" and pd & set(c["src"]): need, why = 2, "valu->mfma"
                if c["kind"] == "mfma" and "exec" in pd: need, why = 4, "exec->mfma"
                if p.get("trans") and c["kind"] == "valu" and not c.get("trans") and pd & set(c["src"]): need, why = max(need, 1), "trans->valu"
                if c.get("readlane") and pd & set(r for r in c["src"] if r[0] == "v" and r != "vcc"): need, why = max(need, 1), "valu->readlane"
                if c.get("readlane") and "exec" in pd: need, why = 4, "exec->readlane"
                if c.get("dpp") and pd & set(c["src"]): need, why = max(need, 2), "valu->dpp"
                if c.get("dpp") and "exec" in pd: need, why = 5, "exec->dpp"
                if c.get("permlane") and pd & set(c["src"]): need, why = max(need, 2), "valu->permlane"
                sg = set(r for r in pd if r[0] == "s" or r == "vcc")
                if c["kind"] == "vmem" and sg & set(c["src"]): need, why = 5, "valu sgpr->vmem"
                if c["kind"] == "valu" and (sg & set(c["src"])): need, why = max(need, 4 if c.get("readlane") else 2), "valu sgpr->valu"
            if p["kind"] == "mfma":
                big = {8: 12, 4: 8}[p["passes"]]
                if c["kind"] in ("valu", "vmem", "ds") and (pd & (set(c["src"]) | set(c["dst"]))): need, why = big, "mfma D->use"
                if c["kind"] == "mfma":
                    if pd & (set(c["A"]) | set(c["B"])): need, why = big, "mfma D->AB"
                    elif pd & set(c["C"]) and p["dst"] != c["C"]: need, why = big - 2, "mfma D->C overlap"
                if c["kind"] == "valu" and set(p["C"]) & set(c["dst"]): need, why = max(need, {8: 7, 4: 3}[p["passes"]]), "mfma C WAR"
            if p["kind"] == "salu" and "m0" in pd and c.get("dma"): need, why = 1, "m0->dma"
            if p.get("widestore") and set(p["widestore"]) & set(c["dst"]): need, why = 2, "store data WAR"
            if need > dist:
                probs.append(f"{name}: need {need} have {dist} ({why}): [{p['text']}] -> [{c['text']}]")
            dist += p.get("ws", 1)
    return probs

def check_text(text):
    lines = [l.strip() for l in text.split("\n")]
    instrs = []; labels = {}
    for l in lines:
        l0 = l.split(";")[0].strip()
        if l0.endswith(":"):
            labels[l0[:-1]] = len(instrs); continue
        p = parse(l)
        if p: instrs.append(p)
    probs = []
    seg = []
    for p in instrs:
        seg.append(p)
        if p["op"] in ("s_branch", "s_endpgm"):
            probs += check_seq(seg, "fall"); seg = []
    probs += check_seq(seg, "fall")
    def back(i, n):
        out = []
        j = i
        while j >= 0 and len(out) < n:
            if j != i and instrs[j]["op"] in ("s_branch", "s_endpgm"): break
            out.append(instrs[j]); j -= 1
        return out[::-1]
    def fwd(i, n, depth=0):
        out = []
        j = i
        while j < len(instrs) and len(out) < n:
            out.append(instrs[j])
            if instrs[j]["op"] == "s_endpgm": break
            if instrs[j]["op"] == "s_branch":
                t = instrs[j]["text"].split()[1]
                if t in labels and depth < 3: out += fwd(labels[t], n - len(out), depth + 1)
                break
            j += 1
        return out
    for i, p in enumerate(instrs):
        if p["op"].startswith(("s_cbranch", "s_branch")):
            t = p["text"].split()[1]
            if t in labels:
                probs += check_seq(back(i, 24) + fwd(labels[t], 24), "edge " + t)
    return sorted(set(probs))
```

```python
import sys
from asmlib import *

NAME = "gather_scatter__mpnn_edge_mlp__graph"
class Cfg:
    modeA = False
    wsoff = 0
    st_pol = ""
    ld_pol = "nt"
    e_pol = ""
    prefetchP = False
    dbg = False
cfg = Cfg()

NB = 250; NPB = 50; CH = 1600
WS_P = 0; WS_REC = 0x320000; WS_OFFT = 0x4B0000; WS_ECP = 0x500000
LOG2E_NEG = "0xbfb8aa3b"
LN2_NEG = "0xbf317218"

S_X, S_E, S_SRC, S_DST, S_WM, S_WU, S_OUT, S_DBG, S_WS = 4, 6, 8, 10, 12, 14, 16, 18, 20

def load_args(a):
    a.e("s_load_dwordx16 s[4:19], s[0:1], 0")
    a.e("s_load_dwordx2 s[20:21], s[0:1], 64")

def srd(a, d, ptr, off_s=None, off_c=0, size=0):
    if off_s is not None:
        a.e(f"s_add_u32 s{d}, s{ptr}, s{off_s}")
        a.e(f"s_addc_u32 s{d+1}, s{ptr+1}, 0")
        if off_c:
            a.e(f"s_add_u32 s{d}, s{d}, {off_c}")
            a.e(f"s_addc_u32 s{d+1}, s{d+1}, 0")
    elif off_c:
        a.e(f"s_add_u32 s{d}, s{ptr}, {off_c}")
        a.e(f"s_addc_u32 s{d+1}, s{ptr+1}, 0")
    else:
        a.e(f"s_mov_b32 s{d}, s{ptr}")
        a.e(f"s_mov_b32 s{d+1}, s{ptr+1}")
    a.e(f"s_mov_b32 s{d+2}, {size}")
    a.e(f"s_mov_b32 s{d+3}, 0x20000")

def idmap(a, dst, src, t):
    a.e(f"s_and_b32 s{t}, s{src}, 7")
    a.e(f"s_lshr_b32 s{dst}, s{src}, 3")
    a.e(f"s_mul_i32 s{t+1}, s{t}, 31")
    a.e(f"s_add_u32 s{dst}, s{dst}, s{t+1}")
    a.e(f"s_min_u32 s{t}, s{t}, 2")
    a.e(f"s_add_u32 s{dst}, s{dst}, s{t}")

def scan64(a, v):
    for sh in (1, 2, 4, 8):
        a.e("s_nop 1")
        a.e(f"v_add_u32_dpp v{v}, v{v}, v{v} row_shr:{sh} row_mask:0xf bank_mask:0xf bound_ctrl:0")
    a.e("s_nop 1")
    a.e(f"v_add_u32_dpp v{v}, v{v}, v{v} row_bcast:15 row_mask:0xa bank_mask:0xf")
    a.e("s_nop 1")
    a.e(f"v_add_u32_dpp v{v}, v{v}, v{v} row_bcast:31 row_mask:0xc bank_mask:0xf")

def x_dma(a, sX, sW, vL, lds_base, t0, st, pol=""):
    a.e(f"v_lshrrev_b32 v{t0}, 4, v{vL}")
    a.e(f"v_and_b32 v{t0+1}, 15, v{vL}")
    a.e(f"v_xor_b32 v{t0+1}, v{t0+1}, v{t0}")
    a.e(f"v_lshlrev_b32 v{t0+1}, 4, v{t0+1}")
    a.e(f"v_lshl_add_u32 v{t0}, v{t0}, 8, v{t0+1}")
    a.e(f"s_and_b32 s{st}, s{sW}, 1")
    a.e(f"s_lshl_b32 s{st}, s{st}, 7")
    a.e(f"v_xor_b32 v{t0}, s{st}, v{t0}")
    a.e(f"v_xor_b32 v{t0+1}, 64, v{t0}")
    a.e(f"s_lshl_b32 s{st}, s{sW}, 11")
    a.e(f"s_add_u32 m0, s{st}, {lds_base}")
    a.e("s_nop 0")
    a.e(f"buffer_load_dwordx4 v{t0}, s[{sX}:{sX+3}], s{st} offen {pol} lds")
    a.e(f"buffer_load_dwordx4 v{t0+1}, s[{sX}:{sX+3}], s{st} offen offset:1024 {pol} lds")

def w_lane_const(a, vW, vL, t):
    a.e(f"v_lshrrev_b32 v{t}, 4, v{vL}")
    a.e(f"v_and_b32 v{vW}, 15, v{vL}")
    a.e(f"v_lshlrev_b32 v{vW}, 4, v{vW}")
    a.e(f"v_lshlrev_b32 v{t+1}, 6, v{t}")
    a.e(f"v_xor_b32 v{vW}, v{vW}, v{t+1}")
    a.e(f"v_lshl_add_u32 v{vW}, v{t}, 8, v{vW}")

def w_dma(a, sSrd, vW, sW4096, goff, lds_base, st):
    a.e(f"s_add_u32 s{st}, s{sW4096}, {goff}")
    a.e(f"s_add_u32 m0, s{sW4096}, {lds_base}")
    a.e("s_nop 0")
    for i in range(4):
        o = f" offset:{1024*i}" if i else ""
        a.e(f"buffer_load_dwordx4 v{vW}, s[{sSrd}:{sSrd+3}], s{st} offen{o} lds")

def wfrag_const(a, vA, vL, sW, t, st):
    a.e(f"v_lshrrev_b32 v{t}, 5, v{vL}")
    a.e(f"v_bfe_u32 v{t+1}, v{vL}, 2, 2")
    a.e(f"v_lshl_add_u32 v{t}, v{t}, 3, v{t+1}")
    a.e(f"v_lshlrev_b32 v{vA}, 8, v{t}")
    a.e(f"v_and_b32 v{t}, 1, v{vL}")
    a.e(f"v_lshlrev_b32 v{t}, 5, v{t}")
    a.e(f"v_bfe_u32 v{t+2}, v{vL}, 1, 1")
    a.e(f"v_lshl_add_u32 v{t}, v{t+2}, 3, v{t}")
    a.e(f"v_bfe_u32 v{t+2}, v{vL}, 4, 1")
    a.e(f"v_lshl_add_u32 v{t}, v{t+2}, 4, v{t}")
    a.e(f"s_and_b32 s{st}, s{sW}, 3")
    a.e(f"s_lshl_b32 s{st}, s{st}, 6")
    a.e(f"v_add_u32 v{t}, s{st}, v{t}")
    a.e(f"v_lshlrev_b32 v{t+1}, 6, v{t+1}")
    a.e(f"v_xor_b32 v{t}, v{t}, v{t+1}")
    a.e(f"v_add_u32 v{vA}, v{vA}, v{t}")

def wfrag_read(a, dst, vAddr, off=0):
    for s in range(8):
        for u in range(2):
            a.e(f"ds_read_b64_tr_b16 v[{dst+4*s+2*u}:{dst+4*s+2*u+1}], v{vAddr} offset:{off+(16*s+4*u)*256}")

def xfrag_read(a, dst, vL, sW, lds_base, t, st):
    a.e(f"v_and_b32 v{t}, 31, v{vL}")
    a.e(f"v_lshrrev_b32 v{t+1}, 5, v{vL}")
    a.e(f"v_and_b32 v{t+2}, 15, v{vL}")
    a.e(f"v_xor_b32 v{t+1}, v{t+1}, v{t+2}")
    a.e(f"v_lshlrev_b32 v{t+1}, 4, v{t+1}")
    a.e(f"v_lshl_add_u32 v{t}, v{t}, 8, v{t+1}")
    a.e(f"s_lshr_b32 s{st}, s{sW}, 2")
    a.e(f"s_lshl_b32 s{st}, s{st}, 13")
    a.e(f"s_add_u32 s{st}, s{st}, {lds_base}")
    a.e(f"v_add_u32 v{t}, s{st}, v{t}")
    for s in range(8):
        if s == 0:
            a.e(f"ds_read_b128 v[{dst}:{dst+3}], v{t}")
        else:
            r = t + 1 + (s & 1)
            a.e(f"v_xor_b32 v{r}, {32*s}, v{t}")
            a.e(f"ds_read_b128 v[{dst+4*s}:{dst+4*s+3}], v{r}")

def gemm8(a, acc, A, B, zero=True):
    for s in range(8):
        c = "0" if (s == 0 and zero) else f"v[{acc}:{acc+15}]"
        a.e(f"v_mfma_f32_32x32x16_bf16 v[{acc}:{acc+15}], v[{A+4*s}:{A+4*s+3}], v[{B+4*s}:{B+4*s+3}], {c}")

def kernel_head(a, name):
    a.e(".text")
    a.e(f".globl {name}")
    a.e(".p2align 8")
    a.e(f".type {name},@function")
    a.label(name)

def kernel_desc(name, vg, sg):
    acc = (vg + 3) // 4 * 4
    return f""".amdhsa_kernel {name}
  .amdhsa_next_free_vgpr {vg}
  .amdhsa_next_free_sgpr {sg}
  .amdhsa_accum_offset {acc}
  .amdhsa_group_segment_fixed_size 0
  .amdhsa_kernarg_size 72
  .amdhsa_user_sgpr_count 2
  .amdhsa_user_sgpr_kernarg_segment_ptr 1
  .amdhsa_system_sgpr_workgroup_id_x 1
.end_amdhsa_kernel
"""

K1_LDS_A = 16384 + 57344
K1_LDS_B = 49152
def gen_k1(a):
    kernel_head(a, "prep_kernel")
    load_args(a)
    sW, sId, sT = 22, 23, 44
    vL = 1
    a.e(f"v_and_b32 v{vL}, 63, v0")
    a.e(f"v_lshrrev_b32 v2, 6, v0")
    a.e("s_nop 0")
    a.e(f"v_readfirstlane_b32 s{sW}, v2")
    a.e("s_cmp_lt_u32 s2, 250")
    a.e("s_cbranch_scc1 K1_BIN")
    a.e("s_cmp_lt_u32 s2, 256")
    a.e("s_cbranch_scc1 K1_END")
    a.e("s_cmp_ge_u32 s2, 506")
    a.e("s_cbranch_scc1 K1_END")
    a.e("s_sub_u32 s3, s2, 256")
    idmap(a, sId, 3, sT)
    a.e(f"s_mul_i32 s{sT+2}, s{sId}, 12800")
    a.e("s_waitcnt lgkmcnt(0)")
    srd(a, 24, S_X, off_s=sT+2, size=12800)
    srd(a, 28, S_WM, size=272*256)
    srd(a, 32, S_WS, off_s=sT+2, off_c=cfg.wsoff + WS_P, size=12800)
    x_dma(a, 24, sW, vL, 0, 2, sT)
    w_lane_const(a, 4, vL, 5)
    a.e(f"s_lshl_b32 s{sT+3}, s{sW}, 12")
    w_dma(a, 28, 4, sT+3, 0, 16384, sT)
    wfrag_const(a, 8, vL, sW, 9, sT)
    a.e(f"v_and_b32 v12, 31, v{vL}")
    a.e(f"v_lshrrev_b32 v13, 5, v{vL}")
    a.e(f"v_lshlrev_b32 v13, 5, v13")
    a.e(f"v_lshl_add_u32 v12, v12, 8, v13")
    a.e(f"s_lshr_b32 s{sT}, s{sW}, 2")
    a.e(f"s_lshl_b32 s{sT}, s{sT}, 13")
    a.e(f"s_and_b32 s{sT+1}, s{sW}, 3")
    a.e(f"s_lshl_b32 s{sT+1}, s{sT+1}, 6")
    a.e(f"s_add_u32 s{sT}, s{sT}, s{sT+1}")
    a.e(f"v_add_u32 v12, s{sT}, v12")
    a.e("s_waitcnt vmcnt(0)")
    a.e("s_barrier")
    xfrag_read(a, 16, vL, sW, 0, 9, sT)
    wfrag_read(a, 48, 8, 16384)
    a.e("s_waitcnt lgkmcnt(0)")
    gemm8(a, 80, 48, 16)
    a.e(f"s_mov_b32 s{sT}, {LOG2E_NEG}")
    a.e("s_nop 15")
    for i in range(16):
        a.e(f"v_mul_f32 v{80+i}, s{sT}, v{80+i}")
    for i in range(8):
        a.e(f"v_cvt_pk_bf16_f32 v{16+i}, v{80+2*i}, v{81+2*i}")
    a.e(f"buffer_store_dwordx4 v[16:19], v12, s[32:35], 0 offen {cfg.st_pol}")
    a.e(f"buffer_store_dwordx4 v[20:23], v12, s[32:35], 0 offen offset:16 {cfg.st_pol}")
    a.e("s_endpgm")
    CNT, BASE, SORT, EL = 0, 1024, 9216, 16384
    a.label("K1_BIN")
    idmap(a, sId, 2, sT)
    a.e(f"s_mul_i32 s{sT+2}, s{sId}, 6400")
    a.e(f"s_mul_i32 s{sT+3}, s{sId}, 51200")
    a.e(f"s_lshl_b32 s{sT+4}, s{sId}, 2")
    a.e("v_lshlrev_b32 v2, 4, v0")
    a.e("s_waitcnt lgkmcnt(0)")
    srd(a, 24, S_DST, off_s=sT+2, size=6400)
    srd(a, 28, S_SRC, off_s=sT+2, size=6400)
    a.e(f"buffer_load_dwordx4 v[4:7], v2, s[24:27], 0 offen {cfg.ld_pol}")
    a.e(f"buffer_load_dwordx4 v[8:11], v2, s[28:31], 0 offen {cfg.ld_pol}")
    if cfg.modeA:
        srd(a, 52, S_E, off_s=sT+3, size=51200)
        a.e(f"s_lshl_b32 s{sT}, s{sW}, 10")
        a.e(f"s_add_u32 s{sT}, s{sT}, {EL}")
        for r in range(7):
            a.e(f"s_add_u32 m0, s{sT}, {r*8192}")
            a.e(f"s_mov_b32 s{sT+1}, {r*8192}")
            a.e(f"buffer_load_dwordx4 v2, s[52:55], s{sT+1} offen {cfg.ld_pol} lds")
    srd(a, 32, S_WS, off_s=sT+2, off_c=cfg.wsoff + WS_REC, size=6400)
    srd(a, 36, S_WS, off_s=sT+4, off_c=cfg.wsoff + WS_OFFT, size=250*1024 - 1000)
    if cfg.modeA:
        srd(a, 40, S_WS, off_s=sT+3, off_c=cfg.wsoff + WS_ECP, size=51200)
    a.e("v_mov_b32 v12, 0\nv_mov_b32 v13, 0\nv_mov_b32 v14, 0\nv_mov_b32 v15, 0")
    a.e("v_cmp_gt_u32 vcc, 64, v0")
    a.e("s_and_saveexec_b64 s[56:57], vcc")
    a.e(f"ds_write_b128 v2, v[12:15] offset:{CNT}")
    a.e("s_mov_b64 exec, s[56:57]")
    a.e("v_mov_b32 v16, 1")
    a.e("v_lshlrev_b32 v17, 22, v0")
    a.e("s_movk_i32 s58, 5243")
    a.e("s_movk_i32 s59, 400")
    a.e("s_waitcnt lgkmcnt(0)")
    a.e("s_barrier")
    a.e(f"s_waitcnt vmcnt({7 if cfg.modeA else 0})")
    a.e("v_cmp_gt_u32 vcc, s59, v0")
    a.e("s_and_saveexec_b64 s[56:57], vcc")
    for i in range(4):
        a.e(f"v_mul_u32_u24 v{20+i}, s58, v{4+i}")
        a.e(f"v_lshrrev_b32 v{20+i}, 18, v{20+i}")
        a.e(f"v_mul_u32_u24 v18, 50, v{20+i}")
        a.e(f"v_lshlrev_b32 v{20+i}, 2, v{20+i}")
        a.e(f"ds_add_rtn_u32 v{24+i}, v{20+i}, v16 offset:{CNT}")
        a.e(f"v_sub_u32 v{4+i}, v{4+i}, v18")
        a.e(f"v_lshl_or_b32 v{4+i}, v{8+i}, 6, v{4+i}")
        if i: a.e(f"v_add_u32 v17, 0x100000, v17")
        a.e(f"v_or_b32 v{4+i}, v{4+i}, v17")
    a.e("s_mov_b64 exec, s[56:57]")
    a.e(f"v_lshlrev_b32 v3, 4, v{vL}")
    a.e("s_waitcnt lgkmcnt(0)")
    a.e("s_barrier")
    a.e(f"ds_read_b128 v[12:15], v3 offset:{CNT}")
    a.e(f"s_lshl_b32 s{sT}, s{sW}, 10")
    a.e(f"s_add_u32 s{sT}, s{sT}, {BASE}")
    a.e(f"v_add_u32 v3, s{sT}, v3")
    a.e("s_waitcnt lgkmcnt(0)")
    a.e("v_add_u32 v29, v12, v13")
    a.e("v_add_u32 v30, v29, v14")
    a.e("v_add_u32 v31, v30, v15")
    a.e("v_mov_b32 v32, v31")
    scan64(a, 32)
    a.e("v_sub_u32 v32, v32, v31")
    a.e("v_add_u32 v33, v32, v12")
    a.e("v_add_u32 v34, v32, v29")
    a.e("v_add_u32 v35, v32, v30")
    a.e("ds_write_b128 v3, v[32:35]")
    a.e(f"s_cmp_lg_u32 s{sW}, 7")
    a.e("s_cbranch_scc1 K1_NOFFT")
    a.e(f"v_lshlrev_b32 v36, 12, v{vL}")
    for i in range(4):
        a.e(f"v_lshl_or_b32 v{12+i}, v{12+i}, 16, v{32+i}")
        o = f" offset:{1024*i}" if i else ""
        a.e(f"buffer_store_dword v{12+i}, v36, s[36:39], 0 offen{o} {cfg.st_pol}")
    a.label("K1_NOFFT")
    for i in range(4):
        a.e(f"v_add_u32 v{20+i}, s{sT}, v{20+i}")
    a.e("s_waitcnt lgkmcnt(0)")
    a.e("s_mov_b64 exec, vcc")
    for i in range(4):
        a.e(f"ds_read_b32 v{20+i}, v{20+i}")
    a.e("s_waitcnt lgkmcnt(0)")
    for i in range(4):
        a.e(f"v_add_lshl_u32 v{20+i}, v{20+i}, v{24+i}, 2")
        a.e(f"ds_write_b32 v{20+i}, v{4+i} offset:{SORT}")
    a.e("s_mov_b64 exec, -1")
    a.e("s_waitcnt vmcnt(0) lgkmcnt(0)" if cfg.modeA else "s_waitcnt lgkmcnt(0)")
    a.e("s_barrier")
    a.e(f"ds_read_b128 v[4:7], v2 offset:{SORT}")
    if cfg.modeA:
        a.e("v_lshrrev_b32 v3, 1, v0")
        a.e("v_lshlrev_b32 v3, 2, v3")
        for r in range(7):
            a.e(f"ds_read_b32 v{8+r}, v3 offset:{SORT + r*1024}")
        a.e("v_and_b32 v16, 1, v0")
        a.e("v_lshlrev_b32 v16, 4, v16")
    a.e(f"s_waitcnt lgkmcnt({7 if cfg.modeA else 0})")
    a.e(f"buffer_store_dwordx4 v[4:7], v2, s[32:35], 0 offen {cfg.st_pol}")
    if cfg.modeA:
        a.e("s_waitcnt lgkmcnt(0)")
        for r in range(7):
            a.e(f"v_bfe_u32 v{8+r}, v{8+r}, 20, 11")
            a.e(f"v_min_u32 v{8+r}, 1599, v{8+r}") if r == 6 else None
            a.e(f"v_lshl_add_u32 v{8+r}, v{8+r}, 5, v16")
            a.e(f"ds_read_b128 v[{20+4*r}:{23+4*r}], v{8+r} offset:{EL}")
        for r in range(7):
            a.e(f"s_mov_b32 s{sT+1}, {r*8192}")
            a.e(f"s_waitcnt lgkmcnt({6-r})")
            a.e(f"buffer_store_dwordx4 v[{20+4*r}:{23+4*r}], v2, s[40:43], s{sT+1} offen {cfg.st_pol}")
    a.label("K1_END")
    a.e("s_endpgm")

CNT, FLG, LUT, W3L, QL, LIST, AGG, WU2, STG = 0, 256, 512, 2560, 6656, 19968, 37376, 65536, 98304
LISTN = 2176; MAXT = 65
K2_LDS = 163840
vL, vM = 1, 2
vOC, vREM, vROFF, vEB = 3, 4, 5, 6
vAE, vAP, vAQ = 7, 8, 9
vCP, vRP0, vRP1, vCQ, vCL, vCA, vH16 = 10, 11, 12, 13, 14, 15, 16
vPA = 18
vEA, vLA = 20, 21
vQA = 22
vRS = 26
vRN = 28
vRE = 30
vCUR = 32
vCHK = 34
vWC, vWA = 35, 36
vT = 40
Z = 64; PX = 128; PY = 144; QX = 160; QY = 168; EE = 176; AQ = 184; ILO = 188; IHI = 192; W3 = 196
NN = 212; DD = 220; EX = 228; TT = 232; ACX = 236
sP, sE, sX, sO, sR, sWm, sWu, sOT = 24, 28, 32, 36, 40, 44, 48, 52
sW, sBin, sNT, sCnt, sF0, sF1, sF2, sLim, sDone, sSafe, sW4k, sM0, sMask, sMore = 22, 23, 56, 57, 58, 59, 60, 61, 62, 63, 64, 65, 66, 67
sT = 70
sX0 = 80
PSIZE = 12500 * 256
ESIZE = 400000 * 32

def dma_half(a, H, alt=False):
    for tq in range(2):
        for ah in range(2):
            imm = (2 * H + tq) * 64
            if alt:
                a.e(f"s_add_u32 m0, s{sW4k}, {WU2 + tq*2048 + ah*1024 - imm}")
            else:
                a.e(f"s_add_u32 m0, s{sM0}, {H*4096 + tq*2048 + ah*1024 - imm + 256}")
            a.e("s_nop 0")
            o = f" offset:{imm}" if imm else ""
            a.e(f"buffer_load_dwordx4 v{vPA+ah}, s[{sP}:{sP+3}], 0 offen{o} lds")

def dma_ops(H):
    out = []
    for tq in range(2):
        for ah in range(2):
            imm = (2 * H + tq) * 64
            o = f" offset:{imm}" if imm else ""
            out.append([f"s_add_u32 m0, s{sM0}, {H*4096 + tq*2048 + ah*1024 - imm + 256}", "s_nop 0",
                        f"buffer_load_dwordx4 v{vPA+ah}, s[{sP}:{sP+3}], 0 offen{o} lds"])
    return out

def pfrag_reads(dst, H):
    out = []
    for tq in range(2):
        for s in range(2):
            r = dst + 8 * tq + 4 * s
            out.append(f"ds_read_b128 v[{r}:{r+3}], v{vRP0+s} offset:{(2*H+tq)*2048}")
    return out
def qfrag_reads(dst, H, par):
    out = []
    for tq in range(2):
        for u in range(2):
            r = dst + 4 * tq + 2 * u
            out.append(f"ds_read_b64_tr_b16 v[{r}:{r+1}], v{vQA+2*par+u} offset:{(2*H+tq)*64}")
    return out
def list_reads_se():
    return [f"ds_read_b32 v{vRE}, v{vAE}", f"ds_read_u16 v{vRS}, v{vAP}", f"ds_read_u16 v{vRS+1}, v{vAP} offset:64"]
def list_reads_n():
    return [f"ds_read_u16 v{vRN}, v{vAQ}", f"ds_read_u16 v{vRN+1}, v{vAQ} offset:64"]
def addr_se(sF):
    return [f"v_lshl_add_u32 v{vPA}, v{vRS}, 8, v{vCP}", f"v_lshl_add_u32 v{vPA+1}, v{vRS+1}, 8, v{vCP}",
            f"v_and_or_b32 v{vEA}, v{vRE}, s{sMask}, v{vH16}", f"v_and_or_b32 v{vLA}, v{vRE}, 16, v{vCL}",
            f"v_cmp_gt_i32 vcc, 0, v{vRE}"]
def flags_from_vcc(sF):
    return [f"s_lshr_b32 s{sF}, vcc_lo, 4", f"s_or_b32 s{sF}, s{sF}, vcc_lo", f"s_or_b32 s{sF}, s{sF}, s{sSafe}"]
def addr_q(par):
    return [f"v_add_u32 v{vQA+2*par}, v{vRN}, v{vCQ}", f"v_add_u32 v{vQA+2*par+1}, v{vRN+1}, v{vCQ}"]
def e_load(par):
    return f"buffer_load_dwordx4 v[{EE+4*par}:{EE+4*par+3}], v{vEA}, s[{sE}:{sE+3}], 0 offen {cfg.e_pol}"
def mfmas(c0, Pset, Qset, epar):
    out = []
    zz = lambda c: f"v[{Z+16*c}:{Z+16*c+15}]"
    f4 = lambda r: f"v[{r}:{r+3}]"
    M = "v_mfma_f32_32x32x16_bf16"
    for i in range(2): out.append(f"{M} {zz(c0+i)}, {f4(EE+4*epar)}, {f4(W3+4*(c0+i))}, 0")
    for i in range(2): out.append(f"{M} {zz(c0+i)}, {f4(AQ)}, {f4(Qset+4*i)}, {zz(c0+i)}")
    for i in range(2): out.append(f"{M} {zz(c0+i)}, {f4(Pset+8*i)}, {f4(ILO)}, {zz(c0+i)}")
    for i in range(2): out.append(f"{M} {zz(c0+i)}, {f4(Pset+8*i+4)}, {f4(IHI)}, {zz(c0+i)}")
    return out
p2 = lambda r: f"v[{r}:{r+1}]"
def flush_code(a, c0, X):
    t = vT
    for i in range(2):
        c = c0 + i
        a.e(f"v_rcp_f32 v{t+2*i}, v{DD+2*c}")
        a.e(f"v_rcp_f32 v{t+2*i+1}, v{DD+2*c+1}")
    for i in range(2):
        c = c0 + i
        a.e(f"v_max3_f32 v{vCHK}, v{DD+2*c}, v{DD+2*c+1}, v{vCHK}")
    for i in range(2):
        c = c0 + i
        a.e(f"v_mul_f32 v{t+2*i}, v{NN+2*c}, v{t+2*i}")
    for i in range(2):
        c = c0 + i
        a.e(f"v_fmac_f32 v{t+2*i}, v{NN+2*c+1}, v{t+2*i+1}")
    for i in range(2):
        c = c0 + i
        a.e(f"ds_add_f32 v{vCUR+X}, v{t+2*i} offset:{128*c}")

def half_step(a, ool, X, par, extras, tag):
    c0 = 2 * X
    if X == 0: mf = mfmas(2, PX, QX, par)
    else:      mf = mfmas(0, PY, QY, 1 - par)
    for s in extras.get("pre", []): a.e(s)
    for k in range(8):
        a.e(mf[k])
        for i in range(2):
            z = Z + 16 * (c0 + i) + 2 * k
            a.e(f"v_exp_f32 v{EX+2*i}, v{z}")
            a.e(f"v_exp_f32 v{EX+2*i+1}, v{z+1}")
        for s in extras.get(k, []): a.e(s)
        bit = 8 * (k >> 1) + 2 * (k & 1)
        lf, lb = f"F_{tag}_{k}", f"R_{tag}_{k}"
        a.e(f"s_bitcmp1_b32 s{sF0}, {bit}")
        a.e(f"s_cbranch_scc1 {lf}")
        for i in range(2):
            c = c0 + i; z = Z + 16 * c + 2 * k
            a.e(f"v_pk_fma_f32 {p2(TT+2*i)}, {p2(z)}, {p2(DD+2*c)}, {p2(NN+2*c)}")
        for i in range(2):
            c = c0 + i
            a.e(f"v_pk_fma_f32 {p2(DD+2*c)}, {p2(DD+2*c)}, {p2(EX+2*i)}, {p2(DD+2*c)}")
        for i in range(2):
            c = c0 + i
            a.e(f"v_pk_fma_f32 {p2(NN+2*c)}, {p2(NN+2*c)}, {p2(EX+2*i)}, {p2(TT+2*i)}")
        a.label(lb)
        ool.label(lf)
        flush_code(ool, c0, X)
        ool.e(f"v_mov_b32_dpp v{vT+4}, v{vQA+2*par+(k>>2)} row_newbcast:{4*(k&3)} row_mask:0xf bank_mask:0xf")
        for i in range(2):
            c = c0 + i; z = Z + 16 * c + 2 * k
            ool.e(f"v_pk_add_f32 {p2(DD+2*c)}, {p2(EX+2*i)}, 1.0 op_sel_hi:[1,0]")
            ool.e(f"v_pk_mov_b32 {p2(NN+2*c)}, {p2(z)}, {p2(z)} op_sel:[0,1]")
        ool.e(f"v_lshl_add_u32 v{vCUR+X}, v{vT+4}, 1, v{vCA}")
        ool.e(f"s_branch {lb}")

def lds_fill(a, base, nbytes, vdata, vaddr16, ex):
    n = (nbytes + 15) // 16
    r = 0
    while n >= 512:
        a.e(f"ds_write_b128 v{vaddr16}, v[{vdata}:{vdata+3}] offset:{base + r*8192}")
        n -= 512; r += 1
    if n:
        a.e(f"s_movk_i32 s{sT}, {n}")
        a.e(f"v_cmp_gt_u32 vcc, s{sT}, v0")
        a.e(f"s_and_saveexec_b64 s[{ex}:{ex+1}], vcc")
        a.e(f"ds_write_b128 v{vaddr16}, v[{vdata}:{vdata+3}] offset:{base + r*8192}")
        a.e(f"s_mov_b64 exec, s[{ex}:{ex+1}]")

def reset_round(a, zero_agg):
    t = vT
    a.e(f"v_lshlrev_b32 v{t}, 4, v0")
    a.e(f"v_mov_b32 v{t+4}, 0x7ffffff0\nv_mov_b32 v{t+5}, 0xffff\nv_mov_b32 v{t+6}, 0x7ffffff0\nv_mov_b32 v{t+7}, 0xffff")
    a.e(f"v_mov_b32 v{t+8}, 0\nv_mov_b32 v{t+9}, 0\nv_mov_b32 v{t+10}, 0\nv_mov_b32 v{t+11}, 0")
    lds_fill(a, CNT, 512, t+8, t, sX0)
    lds_fill(a, LIST, LISTN * 8, t+4, t, sX0)
    if zero_agg:
        lds_fill(a, AGG, 50 * 528, t+8, t, sX0)

def onehot4(a, dst, vJ, vcond_sgpr, t):
    a.e(f"v_and_b32 v{t}, 1, v{vJ}")
    a.e(f"v_lshlrev_b32 v{t}, 4, v{t}")
    a.e(f"v_mov_b32 v{t+1}, 0x3f80")
    a.e(f"v_lshlrev_b32 v{t}, v{t}, v{t+1}")
    a.e(f"v_cndmask_b32 v{t}, 0, v{t}, s[{vcond_sgpr}:{vcond_sgpr+1}]")
    a.e(f"v_lshrrev_b32 v{t+1}, 1, v{vJ}")
    for i in range(4):
        a.e(f"v_cmp_eq_u32 vcc, {i}, v{t+1}")
        a.e("s_nop 1")
        a.e(f"v_cndmask_b32 v{dst+i}, 0, v{t}, vcc")

def gen_k2(a):
    ool = Asm()
    kernel_head(a, NAME + "_kernel")
    load_args(a)
    a.e("s_cmp_ge_u32 s2, 250")
    a.e("s_cbranch_scc1 K2_END")
    a.e(f"v_and_b32 v{vL}, 63, v0")
    a.e(f"v_lshrrev_b32 v{vT}, 6, v0")
    a.e(f"v_and_b32 v{vM}, 31, v0")
    a.e(f"v_readfirstlane_b32 s{sW}, v{vT}")
    idmap(a, sBin, 2, sT)
    a.e(f"s_lshl_b32 s{sT+2}, s{sBin}, 10")
    a.e(f"s_mul_i32 s{sT+3}, s{sBin}, 12800")
    a.e(f"v_lshrrev_b32 v{vT+1}, 1, v0")
    a.e(f"v_lshlrev_b32 v{vT+2}, 2, v{vT+1}")
    a.e("s_waitcnt lgkmcnt(0)")
    srd(a, sOT, S_WS, off_s=sT+2, off_c=cfg.wsoff + WS_OFFT, size=1000)
    a.e(f"buffer_load_dword v{vOC}, v{vT+2}, s[{sOT}:{sOT+3}], 0 offen")
    srd(a, sX, S_X, off_s=sT+3, size=12800)
    srd(a, sWm, S_WM, size=272*256)
    srd(a, sWu, S_WU, size=256*256)
    a.e(f"v_mul_u32_u24 v{vEB}, 1600, v{vT+1}")
    x_dma(a, sX, sW, vL, WU2, vT+4, sT)
    w_lane_const(a, vWC, vL, vT+4)
    a.e(f"s_lshl_b32 s{sW4k}, s{sW}, 12")
    w_dma(a, sWm, vWC, sW4k, 32768, STG, sT)
    a.e(f"s_lshl_b32 s{sT}, s{sW}, 10")
    a.e(f"s_and_b32 s{sT}, s{sT}, 3072")
    a.e(f"s_add_u32 m0, s{sT}, {W3L}")
    a.e(f"s_add_u32 s{sT}, s{sT}, 65536")
    a.e(f"buffer_load_dwordx4 v{vWC}, s[{sWm}:{sWm+3}], s{sT} offen lds")
    w_dma(a, sWu, vWC, sW4k, 0, STG + 32768, sT)
    NDMA = 11
    srd(a, sO, S_OUT, off_s=sT+3, size=12800)
    srd(a, sR, S_WS, off_c=cfg.wsoff + WS_REC, size=400000*4)
    srd(a, sP, S_WS, off_c=cfg.wsoff + WS_P, size=PSIZE)
    if cfg.modeA: srd(a, sE, S_WS, off_c=cfg.wsoff + WS_ECP, size=ESIZE)
    else:         srd(a, sE, S_E, size=ESIZE)
    a.e(f"s_mov_b32 s{sLim}, 24")
    a.e(f"s_mov_b32 s{sDone}, 0")
    a.e(f"s_mov_b32 s{sSafe}, 0")
    a.e(f"s_mov_b32 s{sMask}, 0x7fffffe0")
    a.e(f"s_lshl_b32 s{sM0}, s{sW}, 13")
    a.e(f"s_add_u32 s{sM0}, s{sM0}, {STG - 256}")
    reset_round(a, True)
    t = vT + 12
    a.e(f"v_lshrrev_b32 v{t}, 5, v{vL}")
    a.e(f"v_bfe_u32 v{t+1}, v{vL}, 2, 1")
    a.e(f"v_cmp_eq_u32 s[{sX0+2}:{sX0+3}], v{t}, v{t+1}")
    a.e(f"v_bfe_u32 v{t+1}, v{vL}, 3, 2")
    a.e(f"v_bfe_u32 v{t+2}, v{vL}, 1, 1")
    a.e(f"v_lshl_add_u32 v{t+1}, v{t+1}, 1, v{t+2}")
    onehot4(a, AQ, t+1, sX0+2, t+2)
    a.e(f"v_lshlrev_b32 v{vCL}, 5, v{vL}")
    a.e(f"v_add_u32 v{vCL}, {LUT}, v{vCL}")
    a.e(f"ds_write_b128 v{vCL}, v[{AQ}:{AQ+3}]")
    a.e(f"ds_write_b128 v{vCL}, v[{vT+8}:{vT+11}] offset:16")
    a.e(f"v_lshrrev_b32 v{t+1}, 3, v{vM}")
    a.e(f"v_cmp_eq_u32 s[{sX0+2}:{sX0+3}], v{t}, v{t+1}")
    a.e(f"v_add_u32 v{t+4}, 2, v{t}")
    a.e(f"v_cmp_eq_u32 s[{sX0+4}:{sX0+5}], v{t+4}, v{t+1}")
    a.e(f"v_and_b32 v{t+1}, 7, v{vL}")
    onehot4(a, ILO, t+1, sX0+2, t+2)
    onehot4(a, IHI, t+1, sX0+4, t+2)
    a.e(f"v_lshlrev_b32 v{vH16}, 4, v{t}")
    a.e(f"v_and_b32 v{t+1}, 3, v{vL}")
    a.e(f"v_lshrrev_b32 v{t+2}, 4, v{vL}")
    a.e(f"v_xor_b32 v{vCP}, v{t+1}, v{t+2}")
    a.e(f"v_lshlrev_b32 v{vCP}, 4, v{vCP}")
    a.e(f"v_and_b32 v{t+2}, 1, v{t+2}")
    a.e(f"v_lshlrev_b32 v{vCQ}, 3, v{t+1}")
    a.e(f"v_lshl_add_u32 v{vCQ}, v{t+2}, 5, v{vCQ}")
    a.e(f"v_add_u32 v{vCQ}, {QL}, v{vCQ}")
    a.e(f"v_lshlrev_b32 v{vCA}, 2, v{vM}")
    a.e(f"v_lshlrev_b32 v{t+2}, 6, v{t+2}")
    a.e(f"v_sub_u32 v{vCA}, v{vCA}, v{t+2}")
    a.e(f"v_add_u32 v{vCA}, {AGG - 2*QL}, v{vCA}")
    a.e(f"v_bfe_u32 v{t+1}, v{vL}, 2, 2")
    a.e(f"v_xor_b32 v{t+1}, v{t+1}, v{t}")
    a.e(f"v_lshlrev_b32 v{t+1}, 4, v{t+1}")
    a.e(f"v_lshl_add_u32 v{vRP0}, v{vM}, 6, v{t+1}")
    a.e(f"s_add_u32 s{sT}, s{sM0}, 256")
    a.e(f"v_add_u32 v{vRP0}, s{sT}, v{vRP0}")
    a.e(f"v_xor_b32 v{vRP1}, 32, v{vRP0}")
    wfrag_const(a, vWA, vL, sW, t, sT)
    a.e(f"v_mov_b32 v{vCHK}, 0")
    RC = PY
    RK = 160
    NA = 172
    def rec_loads():
        a.e(f"v_and_b32 v{vT}, 1, v0")
        a.e(f"v_lshlrev_b32 v{vT}, 2, v{vT}")
        a.e(f"v_add_u32 v{vT}, s{sDone}, v{vT}")
        a.e(f"v_lshrrev_b32 v{vREM}, 16, v{vOC}")
        a.e(f"s_add_u32 s{sT}, s{sDone}, s{sLim}")
        a.e(f"v_cmp_lt_u32 s[{sX0+6}:{sX0+7}], s{sT}, v{vREM}")
        a.e(f"v_min_u32 v{vREM}, s{sT}, v{vREM}")
        a.e(f"v_sub_u32 v{vREM}, v{vREM}, v{vT}")
        a.e(f"v_and_b32 v{vROFF}, 0xffff, v{vOC}")
        a.e(f"v_add3_u32 v{vROFF}, v{vROFF}, v{vEB}, v{vT}")
        a.e(f"v_lshlrev_b32 v{vT+1}, 2, v{vROFF}")
        a.e(f"v_mov_b32 v{vT+2}, 0x7ffffff0")
        for g in range(3):
            a.e(f"v_cmp_lt_i32 vcc, {8*g}, v{vREM}")
            a.e("s_nop 1")
            a.e(f"v_cndmask_b32 v{vT+3+g}, v{vT+2}, v{vT+1}, vcc")
            o = f" offset:{32*g}" if g else ""
            a.e(f"buffer_load_dwordx4 v[{RC+4*g}:{RC+4*g+3}], v{vT+3+g}, s[{sR}:{sR+3}], 0 offen{o}")
    a.e(f"s_waitcnt vmcnt({NDMA})")
    rec_loads()
    a.e("s_waitcnt vmcnt(3) lgkmcnt(0)")
    a.e("s_barrier")
    xfrag_read(a, 64, vL, sW, WU2, vT, sT)
    a.e(f"v_add_u32 v{vT+4}, {STG}, v{vWA}")
    wfrag_read(a, 96, vT+4)
    a.e(f"v_bfe_u32 v{vT+5}, v{vL}, 2, 2")
    a.e(f"v_lshrrev_b32 v{vT+6}, 5, v{vL}")
    a.e(f"v_lshl_add_u32 v{vT+6}, v{vT+6}, 3, v{vT+5}")
    a.e(f"v_lshlrev_b32 v{vT+6}, 8, v{vT+6}")
    a.e(f"v_add_u32 v{vT+6}, v{vT+6}, v{vCQ}")
    a.e(f"v_add_u32 v{vT+6}, {W3L - QL}, v{vT+6}")
    a.e(f"v_lshlrev_b32 v{vT+5}, 6, v{vT+5}")
    a.e("s_waitcnt lgkmcnt(0)")
    gemm8(a, 128, 96, 64)
    wfrag_read(a, 96, vT+4, 32768)
    for c in range(4):
        a.e(f"v_xor_b32 v{vT+7}, {64*c}, v{vT+5}")
        a.e(f"v_add_u32 v{vT+7}, v{vT+7}, v{vT+6}")
        for u in range(2):
            a.e(f"ds_read_b64_tr_b16 v[{W3+4*c+2*u}:{W3+4*c+2*u+1}], v{vT+7} offset:{1024*u}")
    a.e(f"s_mov_b32 s{sT}, {LOG2E_NEG}")
    a.e(f"s_lshr_b32 s{sT+1}, s{sW}, 2")
    a.e(f"s_lshl_b32 s{sT+1}, s{sT+1}, 5")
    a.e(f"v_add_u32 v{vT+8}, s{sT+1}, v{vM}")
    a.e(f"v_cmp_gt_u32 vcc, 50, v{vT+8}")
    a.e(f"v_mul_u32_u24 v{vT+9}, 264, v{vT+8}")
    a.e(f"v_lshl_add_u32 v{vT+9}, v{vH16}, 1, v{vT+9}")
    a.e(f"s_and_b32 s{sT+1}, s{sW}, 3")
    a.e(f"s_lshl_b32 s{sT+1}, s{sT+1}, 6")
    a.e(f"v_add_u32 v{vT+9}, s{sT+1}, v{vT+9}")
    for i in range(16):
        a.e(f"v_mul_f32 v{128+i}, s{sT}, v{128+i}")
    for i in range(8):
        a.e(f"v_cvt_pk_bf16_f32 v{128+i}, v{128+2*i}, v{129+2*i}")
    a.e(f"s_and_saveexec_b64 s[{sX0}:{sX0+1}], vcc")
    for g in range(4):
        a.e(f"ds_write_b64 v{vT+9}, v[{128+2*g}:{129+2*g}] offset:{QL + 8*g}")
    a.e(f"s_mov_b64 exec, s[{sX0}:{sX0+1}]")
    a.e("s_waitcnt lgkmcnt(0)")
    gemm8(a, ACX, 96, 64)
    for i in range(16):
        r = W3 + i
        a.e(f"v_lshlrev_b32 v{vT+10}, 16, v{r}")
        a.e(f"v_and_b32 v{vT+11}, 0xffff0000, v{r}")
        a.e(f"v_mul_f32 v{vT+10}, s{sT}, v{vT+10}")
        a.e(f"v_mul_f32 v{vT+11}, s{sT}, v{vT+11}")
        a.e(f"v_cvt_pk_bf16_f32 v{r}, v{vT+10}, v{vT+11}")
    a.e("s_branch K2_COUNT")
    a.label("K2_ROUND")
    rec_loads()
    a.e("s_waitcnt lgkmcnt(0)")
    a.e("s_barrier")
    a.label("K2_COUNT")
    a.e(f"v_mov_b32 v{vT}, 1")
    a.e(f"v_mov_b32 v{vT+1}, {FLG}")
    a.e(f"s_mov_b64 exec, s[{sX0+6}:{sX0+7}]")
    a.e(f"ds_write_b32 v{vT+1}, v{vT}")
    a.e("s_mov_b64 exec, -1")
    a.e("s_waitcnt vmcnt(0)")
    for i in range(12):
        a.e(f"v_and_b32 v{NA+i}, 63, v{RC+i}")
        a.e(f"v_lshlrev_b32 v{NA+i}, 2, v{NA+i}")
    for i in range(12):
        K = 8 * (i >> 2) + (i & 3)
        a.e(f"v_cmpx_lt_i32 vcc, {K}, v{vREM}")
        if i % 4 == 0 and i: a.e("s_cbranch_execz K2_CDONE")
        a.e(f"ds_add_rtn_u32 v{RK+i}, v{NA+i}, v{vT} offset:{CNT}")
    a.label("K2_CDONE")
    a.e("s_mov_b64 exec, -1")
    for i in range(12):
        K = 8 * (i >> 2) + (i & 3)
        e0, e1 = 64 + 2 * i, 65 + 2 * i
        if cfg.modeA:
            a.e(f"v_add_lshl_u32 v{e0}, v{vROFF}, {K}, 5")
        else:
            a.e(f"v_lshrrev_b32 v{e0}, 20, v{RC+i}")
            a.e(f"v_add_lshl_u32 v{e0}, v{e0}, v{vEB}, 5")
        a.e(f"v_bfe_u32 v{e1}, v{RC+i}, 6, 14")
        a.e(f"v_mul_u32_u24 v{vT+2}, 0x420000, v{NA+i}")
        a.e(f"v_or_b32 v{e1}, v{e1}, v{vT+2}")
    a.e(f"v_lshlrev_b32 v{vT+2}, 2, v{vL}")
    a.e("s_waitcnt lgkmcnt(0)")
    a.e("s_barrier")
    a.e(f"ds_read_b32 v{vT+3}, v{vT+2} offset:{CNT}")
    a.e(f"ds_read_b32 v{vT+5}, v{vT+1}")
    a.e("s_waitcnt lgkmcnt(0)")
    a.e(f"v_add_u32 v{vT+3}, 1, v{vT+3}")
    a.e(f"v_lshrrev_b32 v{vT+3}, 1, v{vT+3}")
    a.e(f"v_mov_b32 v{vT+4}, v{vT+3}")
    a.e(f"v_readfirstlane_b32 s{sMore}, v{vT+5}")
    scan64(a, vT+4)
    a.e("s_nop 0")
    a.e(f"v_readlane_b32 s{sT}, v{vT+4}, 63")
    a.e(f"v_sub_u32 v{vT+4}, v{vT+4}, v{vT+3}")
    a.e(f"v_lshlrev_b32 v{vT+4}, 4, v{vT+4}")
    a.e(f"s_add_u32 s{sT}, s{sT}, 15")
    a.e(f"s_lshr_b32 s{sT}, s{sT}, 4")
    a.e(f"s_cmp_gt_u32 s{sT}, {MAXT}")
    a.e("s_cbranch_scc1 K2_TOOBIG")
    for i in range(12):
        a.e(f"ds_bpermute_b32 v{NA+i}, v{NA+i}, v{vT+4}")
    a.e(f"s_lshr_b32 s{sT+1}, s{sT}, 3")
    a.e(f"s_and_b32 s{sT+2}, s{sT}, 7")
    a.e(f"s_mul_i32 s{sT+3}, s{sT+1}, s{sW}")
    a.e(f"s_min_u32 s{sT+4}, s{sW}, s{sT+2}")
    a.e(f"s_add_u32 s{sT+3}, s{sT+3}, s{sT+4}")
    a.e(f"s_cmp_lt_u32 s{sW}, s{sT+2}")
    a.e(f"s_addc_u32 s{sNT}, s{sT+1}, 0")
    a.e(f"s_lshl_b32 s{sT+3}, s{sT+3}, 8")
    a.e(f"s_add_u32 s{sT+3}, s{sT+3}, {LIST}")
    a.e(f"s_lshl_b32 s{sT+4}, s{sNT}, 7")
    a.e(f"v_bfrev_b32 v{vT+6}, 1")
    for i in range(12):
        a.e(f"v_cmp_eq_u32 vcc, 0, v{RK+i}")
        a.e(f"v_or_b32 v{vT+7}, v{64+2*i}, v{vT+6}")
        a.e("s_nop 0")
        a.e(f"v_cndmask_b32 v{64+2*i}, v{64+2*i}, v{vT+7}, vcc")
    a.e("s_waitcnt lgkmcnt(0)")
    for i in range(12):
        K = 8 * (i >> 2) + (i & 3)
        a.e(f"v_cmpx_lt_i32 vcc, {K}, v{vREM}")
        if i % 4 == 0 and i: a.e("s_cbranch_execz K2_PDONE")
        a.e(f"v_lshl_add_u32 v{NA+i}, v{RK+i}, 3, v{NA+i}")
        a.e(f"ds_write_b64 v{NA+i}, v[{64+2*i}:{65+2*i}] offset:{LIST}")
    a.label("K2_PDONE")
    a.e("s_mov_b64 exec, -1")
    def rowaddr(dst, vm, extra):
        a.e(f"v_bfe_u32 v{vT+8}, v{vm}, 2, 1")
        a.e(f"v_mul_u32_u24 v{dst}, s{sT+4}, v{vT+8}")
        a.e(f"v_lshrrev_b32 v{vT+8}, 3, v{vm}")
        a.e(f"v_lshl_add_u32 v{dst}, v{vT+8}, 5, v{dst}")
        a.e(f"v_and_b32 v{vT+8}, 3, v{vm}")
        a.e(f"v_lshl_add_u32 v{dst}, v{vT+8}, 3, v{dst}")
        a.e(f"v_add3_u32 v{dst}, v{dst}, s{sT+3}, {extra}")
    rowaddr(vAE, vM, 0)
    a.e(f"v_lshrrev_b32 v{vT+9}, 2, v{vL}")
    rowaddr(vAP, vT+9, 4)
    a.e(f"v_lshrrev_b32 v{vT+8}, 5, v{vL}")
    a.e(f"v_mul_u32_u24 v{vAQ}, s{sT+4}, v{vT+8}")
    a.e(f"v_bfe_u32 v{vT+8}, v{vL}, 2, 2")
    a.e(f"v_lshl_add_u32 v{vAQ}, v{vT+8}, 4, v{vAQ}")
    a.e(f"v_add3_u32 v{vAQ}, v{vAQ}, s{sT+3}, 6")
    for c in range(4):
        a.e(f"v_mov_b32 v{NN+2*c}, 0\nv_mov_b32 v{NN+2*c+1}, 0\nv_mov_b32 v{DD+2*c}, 1.0\nv_mov_b32 v{DD+2*c+1}, 1.0")
    a.e(f"v_lshlrev_b32 v{vCUR}, 2, v{vM}")
    a.e(f"v_add_u32 v{vCUR}, {AGG}, v{vCUR}")
    a.e(f"v_mov_b32 v{vCUR+1}, v{vCUR}")
    a.e(f"s_mov_b32 s{sP+2}, {PSIZE}")
    a.e(f"s_mov_b32 s{sE+2}, {ESIZE}")
    a.e("s_waitcnt lgkmcnt(0)")
    a.e("s_barrier")
    a.e(f"s_cmp_eq_u32 s{sNT}, 0")
    a.e("s_cbranch_scc1 K2_NOTILES")
    adv_se = [f"v_add_u32 v{vAE}, 128, v{vAE}", f"v_add_u32 v{vAP}, 128, v{vAP}"]
    adv_n = [f"v_add_u32 v{vAQ}, 128, v{vAQ}"]
    for s in list_reads_se() + list_reads_n() + adv_se + adv_n: a.e(s)
    a.e("s_waitcnt lgkmcnt(0)")
    for s in addr_se(sF0) + addr_q(0): a.e(s)
    for s in list_reads_se(): a.e(s)
    for s in flags_from_vcc(sF0): a.e(s)
    a.e(f"s_or_b32 s{sF0}, s{sF0}, 1")
    dma_half(a, 0, alt=True)
    a.e(e_load(0))
    dma_half(a, 1)
    a.e(f"ds_read_b128 v[{AQ}:{AQ+3}], v{vLA}")
    for s in qfrag_reads(QY, 0, 0) + qfrag_reads(QX, 1, 0): a.e(s)
    for s in adv_se: a.e(s)
    a.e(f"s_cmp_lt_u32 s{sNT}, 2")
    a.e(f"s_cselect_b32 s{sP+2}, 0, s{sP+2}")
    a.e(f"s_cselect_b32 s{sE+2}, 0, s{sE+2}")
    a.e("s_waitcnt lgkmcnt(0)")
    for s in addr_se(sF1): a.e(s)
    for s in list_reads_se() + list_reads_n(): a.e(s)
    for s in flags_from_vcc(sF1): a.e(s)
    dma_half(a, 0)
    a.e(e_load(1))
    for s in adv_se + adv_n: a.e(s)
    a.e(f"s_sub_u32 s{sT}, s{sW4k}, s{sM0}")
    a.e(f"s_add_u32 s{sT}, s{sT}, {WU2 - 256}")
    a.e(f"v_add_u32 v{vT}, s{sT}, v{vRP0}")
    a.e(f"v_add_u32 v{vT+1}, s{sT}, v{vRP1}")
    a.e("s_waitcnt vmcnt(5)")
    for tq in range(2):
        for s in range(2):
            r = PY + 8 * tq + 4 * s
            a.e(f"ds_read_b128 v[{r}:{r+3}], v{vT+s} offset:{tq*2048}")
    for s in pfrag_reads(PX, 1): a.e(s)
    a.e("s_waitcnt lgkmcnt(0)")
    dma_half(a, 1)
    for s in mfmas(0, PY, QY, 0): a.e(s)
    a.e(f"s_mov_b32 s{sCnt}, s{sNT}")
    a.e("s_nop 7")
    def iteration(par):
        exA = {
            "pre": ["s_waitcnt vmcnt(5)"] + pfrag_reads(PY, 0),
            0: addr_q(1 - par) + [f"s_cmp_lt_u32 s{sCnt}, 3", f"s_cselect_b32 s{sP+2}, 0, s{sP+2}", f"s_cselect_b32 s{sE+2}, 0, s{sE+2}"]
               + addr_se(sF2)[:3] + addr_se(sF2)[4:],
            1: qfrag_reads(QY, 0, 1 - par) + flags_from_vcc(sF2) + ["s_waitcnt lgkmcnt(4)"] + sum(dma_ops(0)[:2], []),
            2: sum(dma_ops(0)[2:], []) + [e_load(par)],
            4: [f"ds_read_b128 v[{AQ}:{AQ+3}], v{vLA}", addr_se(sF2)[3],
                f"s_cmp_lg_u32 s{sCnt}, 1", f"s_cbranch_scc0 WU2_{par}", f"WU2R_{par}:"],
            7: ["s_waitcnt lgkmcnt(0)"],
        }
        half_step(a, ool, 0, par, exA, f"A{par}")
        ool.label(f"WU2_{par}")
        w_dma(ool, sWu, vWC, sW4k, 32768, WU2, sT)
        ool.e(f"s_branch WU2R_{par}")
        exB = {
            "pre": ["s_waitcnt vmcnt(5)"] + pfrag_reads(PX, 1),
            0: qfrag_reads(QX, 1, 1 - par),
            1: ["s_waitcnt lgkmcnt(4)"] + sum(dma_ops(1)[:2], []),
            2: sum(dma_ops(1)[2:], []),
            3: list_reads_se() + list_reads_n(),
            4: adv_se + adv_n,
            7: ["s_waitcnt lgkmcnt(0)"],
        }
        half_step(a, ool, 1, par, exB, f"B{par}")
        a.e(f"s_mov_b32 s{sF0}, s{sF1}")
        a.e(f"s_mov_b32 s{sF1}, s{sF2}")
        a.e(f"s_sub_u32 s{sCnt}, s{sCnt}, 1")
        a.e(f"s_cmp_eq_u32 s{sCnt}, 0")
    a.label("K2_LOOP")
    iteration(0)
    a.e("s_cbranch_scc1 K2_LEND")
    iteration(1)
    a.e("s_cbranch_scc0 K2_LOOP")
    a.label("K2_LEND")
    flush_code(a, 0, 0)
    a.e("s_nop 0")
    flush_code(a, 2, 1)
    a.e("s_branch K2_AFTER")
    a.label("K2_NOTILES")
    w_dma(a, sWu, vWC, sW4k, 32768, WU2, sT)
    a.label("K2_AFTER")
    a.e("s_waitcnt vmcnt(0) lgkmcnt(0)")
    a.e("s_barrier")
    a.e(f"s_cmp_lg_u32 s{sMore}, 0")
    a.e("s_cbranch_scc1 K2_MORE")
    a.e(f"s_lshr_b32 s{sT+1}, s{sW}, 2")
    a.e(f"s_lshl_b32 s{sT+1}, s{sT+1}, 5")
    a.e(f"v_add_u32 v{vT+8}, s{sT+1}, v{vM}")
    a.e(f"v_mul_u32_u24 v{vT+9}, 528, v{vT+8}")
    a.e(f"v_lshl_add_u32 v{vT+9}, v{vH16}, 1, v{vT+9}")
    for s in range(8):
        for u in range(2):
            r = 64 + 8 * s + 4 * u
            a.e(f"ds_read_b128 v[{r}:{r+3}], v{vT+9} offset:{AGG + 64*s + 16*u}")
    a.e(f"v_add_u32 v{vT+4}, {WU2}, v{vWA}")
    a.e("s_waitcnt lgkmcnt(8)")
    for i in range(16):
        a.e(f"v_cvt_pk_bf16_f32 v{64+i}, v{64+2*i}, v{65+2*i}")
    a.e("s_waitcnt lgkmcnt(0)")
    wfrag_read(a, 128, vT+4)
    for i in range(16, 32):
        a.e(f"v_cvt_pk_bf16_f32 v{64+i}, v{64+2*i}, v{65+2*i}")
    a.e(f"v_lshlrev_b32 v{vT+10}, 8, v{vT+8}")
    a.e(f"v_lshl_add_u32 v{vT+10}, v{vH16}, 1, v{vT+10}")
    a.e(f"s_and_b32 s{sT+1}, s{sW}, 3")
    a.e(f"s_lshl_b32 s{sT+1}, s{sT+1}, 6")
    a.e(f"v_add_u32 v{vT+10}, s{sT+1}, v{vT+10}")
    a.e("s_waitcnt lgkmcnt(0)")
    gemm8(a, 160, 128, 64)
    a.e(f"s_mov_b32 s{sT}, {LN2_NEG}")
    a.e(f"s_mov_b32 s{sT+1}, {LOG2E_NEG}")
    a.e(f"v_cmp_gt_u32 s[{sX0}:{sX0+1}], 50, v{vT+8}")
    a.e(f"s_mov_b32 s{sT+2}, 0x7b800000")
    a.e(f"v_cmp_le_f32 s[{sX0+2}:{sX0+3}], s{sT+2}, v{vCHK}")
    a.e(f"v_mov_b32 v{vT+11}, 0x207")
    a.e("s_nop 7")
    a.e(f"v_cmp_class_f32 vcc, v160, v{vT+11}")
    for i in range(16):
        a.e(f"v_fma_f32 v{160+i}, v{160+i}, s{sT}, v{ACX+i}")
    a.e(f"s_and_b64 vcc, vcc, s[{sX0}:{sX0+1}]")
    a.e(f"s_or_b64 s[{sX0+2}:{sX0+3}], vcc, s[{sX0+2}:{sX0+3}]")
    for i in range(16):
        a.e(f"v_mul_f32 v{64+i}, s{sT+1}, v{160+i}")
    for i in range(16):
        a.e(f"v_exp_f32 v{64+i}, v{64+i}")
    for i in range(16):
        a.e(f"v_add_f32 v{64+i}, 1.0, v{64+i}")
    for i in range(16):
        a.e(f"v_rcp_f32 v{64+i}, v{64+i}")
    for i in range(16):
        a.e(f"v_mul_f32 v{64+i}, v{160+i}, v{64+i}")
    for i in range(8):
        a.e(f"v_cvt_pk_bf16_f32 v{80+i}, v{64+2*i}, v{65+2*i}")
    a.e(f"buffer_store_dwordx4 v[80:83], v{vT+10}, s[{sO}:{sO+3}], 0 offen")
    a.e(f"buffer_store_dwordx4 v[84:87], v{vT+10}, s[{sO}:{sO+3}], 0 offen offset:16")
    a.e(f"s_cmp_lg_u32 s{sSafe}, 0")
    a.e("s_cbranch_scc1 K2_END")
    a.e(f"v_mov_b32 v{vT}, 1")
    a.e(f"v_mov_b32 v{vT+1}, {FLG+4}")
    a.e(f"s_mov_b64 exec, s[{sX0+2}:{sX0+3}]")
    a.e(f"ds_write_b32 v{vT+1}, v{vT}")
    a.e("s_mov_b64 exec, -1")
    a.e("s_waitcnt lgkmcnt(0)")
    a.e("s_barrier")
    a.e(f"ds_read_b32 v{vT}, v{vT+1}")
    a.e("s_waitcnt lgkmcnt(0)")
    a.e(f"v_readfirstlane_b32 s{sT}, v{vT}")
    a.e("s_nop 3")
    a.e(f"s_cmp_eq_u32 s{sT}, 0")
    a.e("s_cbranch_scc1 K2_END")
    a.e("s_waitcnt vmcnt(0)")
    a.e("s_barrier")
    a.e(f"s_mov_b32 s{sSafe}, -1")
    a.e(f"s_mov_b32 s{sDone}, 0")
    reset_round(a, True)
    a.e("s_branch K2_ROUND")
    a.label("K2_MORE")
    a.e(f"s_add_u32 s{sDone}, s{sDone}, s{sLim}")
    reset_round(a, False)
    a.e("s_branch K2_ROUND")
    a.label("K2_TOOBIG")
    a.e("s_barrier")
    a.e(f"s_mov_b32 s{sLim}, 8")
    reset_round(a, False)
    a.e("s_branch K2_ROUND")
    a.label("K2_END")
    a.e("s_endpgm")
    a.lines += ool.lines

HEADER = open("cdna_kernels/" + NAME + ".s.ref").read().split("; Override launch")[0]
def generate():
    a = Asm()
    gen_k1(a)
    gen_k2(a)
    body = a.text()
    probs = check_text(body)
    for p in probs: print("HAZARD", p, file=sys.stderr)
    k1lds = K1_LDS_A if cfg.modeA else K1_LDS_B
    out = HEADER
    out += f"; @launch kernel=prep_kernel grid=(506,1,1) block=(512,1,1) lds={k1lds}\n"
    out += f"; @launch kernel={NAME}_kernel grid=(250,1,1) block=(512,1,1) lds={K2_LDS}\n"
    out += '.amdgcn_target "amdgcn-amd-amdhsa--gfx950"\n' + body
    out += '.section .rodata,"a"\n.p2align 6\n' + kernel_desc("prep_kernel", 96, 64) + ".p2align 6\n" + kernel_desc(NAME + "_kernel", 252, 96)
    return out

if __name__ == "__main__":
    outp = sys.argv[1]
    for kv in sys.argv[2:]:
        k, v = kv.split("=", 1)
        cur = getattr(cfg, k)
        setattr(cfg, k, (v not in ("0", "False")) if isinstance(cur, bool) else int(v, 0) if isinstance(cur, int) else v)
    open(outp, "w").write(generate())
```

```python
import sys
from asmlib import *

NAME = "gather_scatter__mpnn_edge_mlp__graph"
class Cfg:
    modeA = False
    wsoff = 0
    st_pol = ""
    ld_pol = "nt"
    e_pol = ""
    prefetchP = True
    pf0 = False
    early = True
    o_pol = ""
    x_pol = ""
    dbg = False
    x = ""
cfg = Cfg()

NB = 250; NPB = 50; CH = 1600
WS_P = 0; WS_REC = 0x320000; WS_OFFT = 0x4B0000; WS_W3F = 0x4F0000; WS_ECP = 0x500000
LOG2E_NEG = "0xbfb8aa3b"
LN2_NEG = "0xbf317218"

S_X, S_E, S_SRC, S_DST, S_WM, S_WU, S_OUT, S_DBG, S_WS = 4, 6, 8, 10, 12, 14, 16, 18, 20

def load_args(a):
    a.e("s_load_dwordx16 s[4:19], s[0:1], 0")
    a.e("s_load_dwordx2 s[20:21], s[0:1], 64")

def srd(a, d, ptr, off_s=None, off_c=0, size=0):
    if off_s is not None:
        a.e(f"s_add_u32 s{d}, s{ptr}, s{off_s}")
        a.e(f"s_addc_u32 s{d+1}, s{ptr+1}, 0")
        if off_c:
            a.e(f"s_add_u32 s{d}, s{d}, {off_c}")
            a.e(f"s_addc_u32 s{d+1}, s{d+1}, 0")
    elif off_c:
        a.e(f"s_add_u32 s{d}, s{ptr}, {off_c}")
        a.e(f"s_addc_u32 s{d+1}, s{ptr+1}, 0")
    else:
        a.e(f"s_mov_b32 s{d}, s{ptr}")
        a.e(f"s_mov_b32 s{d+1}, s{ptr+1}")
    a.e(f"s_mov_b32 s{d+2}, {size}")
    a.e(f"s_mov_b32 s{d+3}, 0x20000")

def idmap(a, dst, src, t):
    a.e(f"s_and_b32 s{t}, s{src}, 7")
    a.e(f"s_lshr_b32 s{dst}, s{src}, 3")
    a.e(f"s_mul_i32 s{t+1}, s{t}, 31")
    a.e(f"s_add_u32 s{dst}, s{dst}, s{t+1}")
    a.e(f"s_min_u32 s{t}, s{t}, 2")
    a.e(f"s_add_u32 s{dst}, s{dst}, s{t}")

def scan64(a, v):
    for sh in (1, 2, 4, 8):
        a.e("s_nop 1")
        a.e(f"v_add_u32_dpp v{v}, v{v}, v{v} row_shr:{sh} row_mask:0xf bank_mask:0xf bound_ctrl:0")
    a.e("s_nop 1")
    a.e(f"v_add_u32_dpp v{v}, v{v}, v{v} row_bcast:15 row_mask:0xa bank_mask:0xf")
    a.e("s_nop 1")
    a.e(f"v_add_u32_dpp v{v}, v{v}, v{v} row_bcast:31 row_mask:0xc bank_mask:0xf")

def x_dma(a, sX, sW, vL, lds_base, t0, st, pol=""):
    a.e(f"v_lshrrev_b32 v{t0}, 4, v{vL}")
    a.e(f"v_and_b32 v{t0+1}, 15, v{vL}")
    a.e(f"v_xor_b32 v{t0+1}, v{t0+1}, v{t0}")
    a.e(f"v_lshlrev_b32 v{t0+1}, 4, v{t0+1}")
    a.e(f"v_lshl_add_u32 v{t0}, v{t0}, 8, v{t0+1}")
    a.e(f"s_and_b32 s{st}, s{sW}, 1")
    a.e(f"s_lshl_b32 s{st}, s{st}, 7")
    a.e(f"v_xor_b32 v{t0}, s{st}, v{t0}")
    a.e(f"v_xor_b32 v{t0+1}, 64, v{t0}")
    a.e(f"s_lshl_b32 s{st}, s{sW}, 11")
    a.e(f"s_add_u32 m0, s{st}, {lds_base}")
    a.e("s_nop 0")
    a.e(f"buffer_load_dwordx4 v{t0}, s[{sX}:{sX+3}], s{st} offen {pol} lds")
    a.e(f"buffer_load_dwordx4 v{t0+1}, s[{sX}:{sX+3}], s{st} offen offset:1024 {pol} lds")

def w_lane_const(a, vW, vL, t):
    a.e(f"v_lshrrev_b32 v{t}, 4, v{vL}")
    a.e(f"v_and_b32 v{vW}, 15, v{vL}")
    a.e(f"v_lshlrev_b32 v{vW}, 4, v{vW}")
    a.e(f"v_lshlrev_b32 v{t+1}, 6, v{t}")
    a.e(f"v_xor_b32 v{vW}, v{vW}, v{t+1}")
    a.e(f"v_lshl_add_u32 v{vW}, v{t}, 8, v{vW}")

def w_dma(a, sSrd, vW, sW4096, goff, lds_base, st):
    a.e(f"s_add_u32 s{st}, s{sW4096}, {goff}")
    a.e(f"s_add_u32 m0, s{sW4096}, {lds_base}")
    a.e("s_nop 0")
    for i in range(4):
        o = f" offset:{1024*i}" if i else ""
        a.e(f"buffer_load_dwordx4 v{vW}, s[{sSrd}:{sSrd+3}], s{st} offen{o} lds")

def wfrag_const(a, vA, vL, sW, t, st):
    a.e(f"v_lshrrev_b32 v{t}, 5, v{vL}")
    a.e(f"v_bfe_u32 v{t+1}, v{vL}, 2, 2")
    a.e(f"v_lshl_add_u32 v{t}, v{t}, 3, v{t+1}")
    a.e(f"v_lshlrev_b32 v{vA}, 8, v{t}")
    a.e(f"v_and_b32 v{t}, 1, v{vL}")
    a.e(f"v_lshlrev_b32 v{t}, 5, v{t}")
    a.e(f"v_bfe_u32 v{t+2}, v{vL}, 1, 1")
    a.e(f"v_lshl_add_u32 v{t}, v{t+2}, 3, v{t}")
    a.e(f"v_bfe_u32 v{t+2}, v{vL}, 4, 1")
    a.e(f"v_lshl_add_u32 v{t}, v{t+2}, 4, v{t}")
    a.e(f"s_and_b32 s{st}, s{sW}, 3")
    a.e(f"s_lshl_b32 s{st}, s{st}, 6")
    a.e(f"v_add_u32 v{t}, s{st}, v{t}")
    a.e(f"v_lshlrev_b32 v{t+1}, 6, v{t+1}")
    a.e(f"v_xor_b32 v{t}, v{t}, v{t+1}")
    a.e(f"v_add_u32 v{vA}, v{vA}, v{t}")

def wfrag_read(a, dst, vAddr, off=0):
    for s in range(8):
        for u in range(2):
            a.e(f"ds_read_b64_tr_b16 v[{dst+4*s+2*u}:{dst+4*s+2*u+1}], v{vAddr} offset:{off+(16*s+4*u)*256}")

def xfrag_read(a, dst, vL, sW, lds_base, t, st):
    a.e(f"v_and_b32 v{t}, 31, v{vL}")
    a.e(f"v_lshrrev_b32 v{t+1}, 5, v{vL}")
    a.e(f"v_and_b32 v{t+2}, 15, v{vL}")
    a.e(f"v_xor_b32 v{t+1}, v{t+1}, v{t+2}")
    a.e(f"v_lshlrev_b32 v{t+1}, 4, v{t+1}")
    a.e(f"v_lshl_add_u32 v{t}, v{t}, 8, v{t+1}")
    a.e(f"s_lshr_b32 s{st}, s{sW}, 2")
    a.e(f"s_lshl_b32 s{st}, s{st}, 13")
    a.e(f"s_add_u32 s{st}, s{st}, {lds_base}")
    a.e(f"v_add_u32 v{t}, s{st}, v{t}")
    for s in range(8):
        if s == 0:
            a.e(f"ds_read_b128 v[{dst}:{dst+3}], v{t}")
        else:
            r = t + 1 + (s & 1)
            a.e(f"v_xor_b32 v{r}, {32*s}, v{t}")
            a.e(f"ds_read_b128 v[{dst+4*s}:{dst+4*s+3}], v{r}")

def gemm8(a, acc, A, B, zero=True):
    for s in range(8):
        c = "0" if (s == 0 and zero) else f"v[{acc}:{acc+15}]"
        a.e(f"v_mfma_f32_32x32x16_bf16 v[{acc}:{acc+15}], v[{A+4*s}:{A+4*s+3}], v[{B+4*s}:{B+4*s+3}], {c}")

WS_DBG = 0x2000000
def stamp(a, i, vst):
    if not cfg.dbg: return
    a.e("s_memrealtime s[90:91]")
    a.e("s_waitcnt lgkmcnt(0)")
    a.e(f"v_writelane_b32 v{vst}, s90, {i}")
def stamp_out(a, vst, vt, kidx):
    if not cfg.dbg: return
    srd(a, 92, S_WS, off_c=WS_DBG + kidx * 0x100000, size=0x100000)
    a.e(f"s_lshl_b32 s90, s2, 11")
    a.e(f"v_lshl_add_u32 v{vt}, v0, 2, s90")
    a.e(f"buffer_store_dword v{vst}, v{vt}, s[92:95], 0 offen")

def kernel_head(a, name):
    a.e(".text")
    a.e(f".globl {name}")
    a.e(".p2align 8")
    a.e(f".type {name},@function")
    a.label(name)

def kernel_desc(name, vg, sg):
    acc = (vg + 3) // 4 * 4
    return f""".amdhsa_kernel {name}
  .amdhsa_next_free_vgpr {vg}
  .amdhsa_next_free_sgpr {sg}
  .amdhsa_accum_offset {acc}
  .amdhsa_group_segment_fixed_size 0
  .amdhsa_kernarg_size 72
  .amdhsa_user_sgpr_count 2
  .amdhsa_user_sgpr_kernarg_segment_ptr 1
  .amdhsa_system_sgpr_workgroup_id_x 1
.end_amdhsa_kernel
"""

K1_LDS_A = 16384 + 57344
K1_LDS_B = 49152
def gen_k1(a):
    kernel_head(a, "prep_kernel")
    load_args(a)
    sW, sId, sT = 22, 23, 44
    vL = 1
    a.e(f"v_and_b32 v{vL}, 63, v0")
    a.e(f"v_lshrrev_b32 v2, 6, v0")
    a.e("s_nop 0")
    a.e(f"v_readfirstlane_b32 s{sW}, v2")
    if cfg.dbg: a.e("v_mov_b32 v97, 0")
    stamp(a, 0, 97)
    a.e("s_cmp_lt_u32 s2, 250")
    a.e("s_cbranch_scc1 K1_BIN")
    a.e("s_cmp_eq_u32 s2, 250")
    a.e("s_cbranch_scc1 K1_W3")
    a.e("s_cmp_lt_u32 s2, 256")
    a.e("s_cbranch_scc1 K1_END")
    a.e("s_cmp_ge_u32 s2, 506")
    a.e("s_cbranch_scc1 K1_END")
    a.e("s_sub_u32 s3, s2, 256")
    idmap(a, sId, 3, sT)
    a.e(f"s_mul_i32 s{sT+2}, s{sId}, 12800")
    a.e("s_waitcnt lgkmcnt(0)")
    srd(a, 24, S_X, off_s=sT+2, size=12800)
    srd(a, 28, S_WM, size=272*256)
    srd(a, 32, S_WS, off_s=sT+2, off_c=cfg.wsoff + WS_P, size=12800)
    x_dma(a, 24, sW, vL, 0, 2, sT, cfg.x_pol)
    w_lane_const(a, 4, vL, 5)
    a.e(f"s_lshl_b32 s{sT+3}, s{sW}, 12")
    w_dma(a, 28, 4, sT+3, 0, 16384, sT)
    wfrag_const(a, 8, vL, sW, 9, sT)
    a.e(f"v_and_b32 v12, 31, v{vL}")
    a.e(f"v_lshrrev_b32 v13, 5, v{vL}")
    a.e(f"v_lshlrev_b32 v13, 5, v13")
    a.e(f"v_lshl_add_u32 v12, v12, 8, v13")
    a.e(f"s_lshr_b32 s{sT}, s{sW}, 2")
    a.e(f"s_lshl_b32 s{sT}, s{sT}, 13")
    a.e(f"s_and_b32 s{sT+1}, s{sW}, 3")
    a.e(f"s_lshl_b32 s{sT+1}, s{sT+1}, 6")
    a.e(f"s_add_u32 s{sT}, s{sT}, s{sT+1}")
    a.e(f"v_add_u32 v12, s{sT}, v12")
    a.e("s_waitcnt vmcnt(0)")
    stamp(a, 1, 97)
    a.e("s_barrier")
    xfrag_read(a, 16, vL, sW, 0, 9, sT)
    wfrag_read(a, 48, 8, 16384)
    a.e("s_waitcnt lgkmcnt(0)")
    gemm8(a, 80, 48, 16)
    a.e(f"s_mov_b32 s{sT}, {LOG2E_NEG}")
    a.e("s_nop 15")
    for i in range(16):
        a.e(f"v_mul_f32 v{80+i}, s{sT}, v{80+i}")
    for i in range(8):
        a.e(f"v_cvt_pk_bf16_f32 v{16+i}, v{80+2*i}, v{81+2*i}")
    a.e(f"buffer_store_dwordx4 v[16:19], v12, s[32:35], 0 offen {cfg.st_pol}")
    a.e(f"buffer_store_dwordx4 v[20:23], v12, s[32:35], 0 offen offset:16 {cfg.st_pol}")
    stamp(a, 2, 97)
    if cfg.dbg: a.e("s_waitcnt vmcnt(0)")
    stamp(a, 3, 97)
    stamp_out(a, 97, 98, 0)
    a.e("s_endpgm")
    CNT, BASE, SORT, EL = 0, 1024, 9216, 16384
    a.label("K1_BIN")
    idmap(a, sId, 2, sT)
    a.e(f"s_mul_i32 s{sT+2}, s{sId}, 6400")
    a.e(f"s_mul_i32 s{sT+3}, s{sId}, 51200")
    a.e(f"s_lshl_b32 s{sT+4}, s{sId}, 2")
    a.e("v_lshlrev_b32 v2, 4, v0")
    a.e("s_waitcnt lgkmcnt(0)")
    srd(a, 24, S_DST, off_s=sT+2, size=6400)
    srd(a, 28, S_SRC, off_s=sT+2, size=6400)
    a.e(f"buffer_load_dwordx4 v[4:7], v2, s[24:27], 0 offen {cfg.ld_pol}")
    a.e(f"buffer_load_dwordx4 v[8:11], v2, s[28:31], 0 offen {cfg.ld_pol}")
    if cfg.modeA:
        srd(a, 52, S_E, off_s=sT+3, size=51200)
        a.e(f"s_lshl_b32 s{sT}, s{sW}, 10")
        a.e(f"s_add_u32 s{sT}, s{sT}, {EL}")
        for r in range(7):
            a.e(f"s_add_u32 m0, s{sT}, {r*8192}")
            a.e(f"s_mov_b32 s{sT+1}, {r*8192}")
            a.e(f"buffer_load_dwordx4 v2, s[52:55], s{sT+1} offen {cfg.ld_pol} lds")
    srd(a, 32, S_WS, off_s=sT+2, off_c=cfg.wsoff + WS_REC, size=6400)
    srd(a, 36, S_WS, off_s=sT+4, off_c=cfg.wsoff + WS_OFFT, size=250*1024 - 1000)
    if cfg.modeA:
        srd(a, 40, S_WS, off_s=sT+3, off_c=cfg.wsoff + WS_ECP, size=51200)
    a.e("v_mov_b32 v12, 0\nv_mov_b32 v13, 0\nv_mov_b32 v14, 0\nv_mov_b32 v15, 0")
    a.e("v_cmp_gt_u32 vcc, 64, v0")
    a.e("s_and_saveexec_b64 s[56:57], vcc")
    a.e(f"ds_write_b128 v2, v[12:15] offset:{CNT}")
    a.e("s_mov_b64 exec, s[56:57]")
    a.e("v_mov_b32 v16, 1")
    a.e("v_lshlrev_b32 v17, 22, v0")
    a.e("s_movk_i32 s58, 5243")
    a.e("s_movk_i32 s59, 400")
    a.e("s_waitcnt lgkmcnt(0)")
    a.e("s_barrier")
    a.e(f"s_waitcnt vmcnt({7 if cfg.modeA else 0})")
    stamp(a, 1, 97)
    a.e("v_cmp_gt_u32 vcc, s59, v0")
    a.e("s_and_saveexec_b64 s[56:57], vcc")
    for i in range(4):
        a.e(f"v_mul_u32_u24 v{20+i}, s58, v{4+i}")
        a.e(f"v_lshrrev_b32 v{20+i}, 18, v{20+i}")
        a.e(f"v_mul_u32_u24 v18, 50, v{20+i}")
        a.e(f"v_lshlrev_b32 v{20+i}, 2, v{20+i}")
        a.e(f"ds_add_rtn_u32 v{24+i}, v{20+i}, v16 offset:{CNT}")
        a.e(f"v_sub_u32 v{4+i}, v{4+i}, v18")
        a.e(f"v_lshl_or_b32 v{4+i}, v{8+i}, 6, v{4+i}")
        if i: a.e(f"v_add_u32 v17, 0x100000, v17")
        a.e(f"v_or_b32 v{4+i}, v{4+i}, v17")
    a.e("s_mov_b64 exec, s[56:57]")
    a.e(f"v_lshlrev_b32 v3, 4, v{vL}")
    a.e("s_waitcnt lgkmcnt(0)")
    a.e("s_barrier")
    a.e(f"ds_read_b128 v[12:15], v3 offset:{CNT}")
    a.e(f"s_lshl_b32 s{sT}, s{sW}, 10")
    a.e(f"s_add_u32 s{sT}, s{sT}, {BASE}")
    a.e(f"v_add_u32 v3, s{sT}, v3")
    a.e("s_waitcnt lgkmcnt(0)")
    a.e("v_add_u32 v29, v12, v13")
    a.e("v_add_u32 v30, v29, v14")
    a.e("v_add_u32 v31, v30, v15")
    a.e("v_mov_b32 v32, v31")
    scan64(a, 32)
    a.e("v_sub_u32 v32, v32, v31")
    a.e("v_add_u32 v33, v32, v12")
    a.e("v_add_u32 v34, v32, v29")
    a.e("v_add_u32 v35, v32, v30")
    a.e("ds_write_b128 v3, v[32:35]")
    a.e(f"s_cmp_lg_u32 s{sW}, 7")
    a.e("s_cbranch_scc1 K1_NOFFT")
    a.e(f"v_lshlrev_b32 v36, 12, v{vL}")
    for i in range(4):
        a.e(f"v_lshl_or_b32 v{12+i}, v{12+i}, 16, v{32+i}")
        o = f" offset:{1024*i}" if i else ""
        a.e(f"buffer_store_dword v{12+i}, v36, s[36:39], 0 offen{o} {cfg.st_pol}")
    a.label("K1_NOFFT")
    for i in range(4):
        a.e(f"v_add_u32 v{20+i}, s{sT}, v{20+i}")
    a.e("s_waitcnt lgkmcnt(0)")
    a.e("s_mov_b64 exec, vcc")
    for i in range(4):
        a.e(f"ds_read_b32 v{20+i}, v{20+i}")
    a.e("s_waitcnt lgkmcnt(0)")
    for i in range(4):
        a.e(f"v_add_lshl_u32 v{20+i}, v{20+i}, v{24+i}, 2")
        a.e(f"ds_write_b32 v{20+i}, v{4+i} offset:{SORT}")
    a.e("s_mov_b64 exec, -1")
    a.e("s_waitcnt vmcnt(0) lgkmcnt(0)" if cfg.modeA else "s_waitcnt lgkmcnt(0)")
    a.e("s_barrier")
    a.e(f"ds_read_b128 v[4:7], v2 offset:{SORT}")
    if cfg.modeA:
        a.e("v_lshrrev_b32 v3, 1, v0")
        a.e("v_lshlrev_b32 v3, 2, v3")
        for r in range(7):
            a.e(f"ds_read_b32 v{8+r}, v3 offset:{SORT + r*1024}")
        a.e("v_and_b32 v16, 1, v0")
        a.e("v_lshlrev_b32 v16, 4, v16")
    a.e(f"s_waitcnt lgkmcnt({7 if cfg.modeA else 0})")
    a.e(f"buffer_store_dwordx4 v[4:7], v2, s[32:35], 0 offen {cfg.st_pol}")
    if cfg.modeA:
        a.e("s_waitcnt lgkmcnt(0)")
        for r in range(7):
            a.e(f"v_bfe_u32 v{8+r}, v{8+r}, 20, 11")
            a.e(f"v_min_u32 v{8+r}, 1599, v{8+r}") if r == 6 else None
            a.e(f"v_lshl_add_u32 v{8+r}, v{8+r}, 5, v16")
            a.e(f"ds_read_b128 v[{20+4*r}:{23+4*r}], v{8+r} offset:{EL}")
        for r in range(7):
            a.e(f"s_mov_b32 s{sT+1}, {r*8192}")
            a.e(f"s_waitcnt lgkmcnt({6-r})")
            a.e(f"buffer_store_dwordx4 v[{20+4*r}:{23+4*r}], v2, s[40:43], s{sT+1} offen {cfg.st_pol}")
    stamp(a, 2, 97)
    if cfg.dbg: a.e("s_waitcnt vmcnt(0)")
    stamp(a, 3, 97)
    stamp_out(a, 97, 98, 0)
    a.label("K1_END")
    a.e("s_endpgm")
    a.label("K1_W3")
    a.e("s_waitcnt lgkmcnt(0)")
    srd(a, 24, S_WM, off_c=65536, size=4096)
    srd(a, 28, S_WS, off_c=cfg.wsoff + WS_W3F, size=4096)
    a.e("v_and_b32 v3, 31, v0")
    a.e("v_lshlrev_b32 v3, 1, v3")
    a.e("v_bfe_u32 v4, v0, 5, 1")
    a.e("v_lshl_add_u32 v3, v4, 11, v3")
    a.e("v_bfe_u32 v4, v0, 6, 2")
    a.e("v_lshl_add_u32 v3, v4, 6, v3")
    for j in range(8):
        o = f" offset:{256*j}" if j else ""
        a.e(f"buffer_load_ushort v{8+j}, v3, s[24:27], 0 offen{o}")
    a.e(f"s_mov_b32 s{sT}, {LOG2E_NEG}")
    a.e("v_lshlrev_b32 v4, 4, v0")
    a.e("s_waitcnt vmcnt(0)")
    for j in range(8):
        a.e(f"v_lshlrev_b32 v{8+j}, 16, v{8+j}")
        a.e(f"v_mul_f32 v{8+j}, s{sT}, v{8+j}")
    for j in range(4):
        a.e(f"v_cvt_pk_bf16_f32 v{16+j}, v{8+2*j}, v{9+2*j}")
    a.e(f"buffer_store_dwordx4 v[16:19], v4, s[28:31], 0 offen {cfg.st_pol}")
    a.e("s_endpgm")

CNT, FLG, LUT, QL, LIST, AGG, SIDE, WU2, STG = 0, 256, 288, 576, 13776, 30800, 57200, 65536, 98304
MAXT = 65
K2_LDS = 163840
vL, vM = 1, 2
vOC, vREM, vROFF, vEB = 3, 4, 5, 6
vAE, vAP, vAQ = 7, 8, 9
vCP, vRP0, vRP1, vCQ, vCL, vCA, vH16, vFA = 10, 11, 12, 13, 14, 15, 16, 17
vPA = 18
vEA, vLA = 20, 21
vQA = 22
vRS = 26
vRN = 28
vRE = 30
vSD = 31
vCUR = 32
vCHK = 34
vWC, vWA = 35, 36
vPF = 38
vT = 40
Z = 64; PX = 128; PY = 144; QX = 160; QY = 168; EE = 176; AQ = 184; ILO = 188; IHI = 192; W3 = 196
NN = 212; DD = 220; EX = 228; TT = 232; ACX = 236
sP, sE, sX, sO, sR, sWm, sWu, sOT = 24, 28, 32, 36, 40, 44, 48, 52
sW, sBin, sNT, sCnt, sF0, sF1, sF2, sLim, sDone, sSafe, sW4k, sM0, sMask, sMore, sFirst, sDm = 22, 23, 56, 57, 58, 59, 60, 61, 62, 63, 64, 65, 66, 67, 68, 69
sT = 70
sX0 = 80
sSusp = 88
PSIZE = 12500 * 256
ESIZE = 400000 * 32

def dma_ops(H, alt=False):
    out = []
    for tq in range(2):
        for ah in range(2):
            imm = (2 * H + tq) * 64
            o = f" offset:{imm}" if imm else ""
            m = f"s_add_u32 m0, s{sW4k}, {WU2 + tq*2048 + ah*1024 - imm}" if alt else f"s_add_u32 m0, s{sM0}, {H*4096 + tq*2048 + ah*1024 - imm + 256}"
            out.append([m, "s_nop 0", f"buffer_load_dwordx4 v{vPA+ah}, s[{sP}:{sP+3}], 0 offen{o} lds"])
    return out
def dma_half(a, H, alt=False):
    for s in sum(dma_ops(H, alt), []): a.e(s)
def pfrag_reads(dst, H):
    out = []
    for tq in range(2):
        for s in range(2):
            r = dst + 8 * tq + 4 * s
            out.append(f"ds_read_b128 v[{r}:{r+3}], v{vRP0+s} offset:{(2*H+tq)*2048}")
    return out
def qfrag_reads(dst, H, par):
    out = []
    for tq in range(2):
        for u in range(2):
            r = dst + 4 * tq + 2 * u
            out.append(f"ds_read_b64_tr_b16 v[{r}:{r+1}], v{vQA+2*par+u} offset:{(2*H+tq)*64}")
    return out
def list_reads_se():
    return [f"ds_read_b32 v{vRE}, v{vAE}", f"ds_read_u16 v{vRS}, v{vAP}", f"ds_read_u16 v{vRS+1}, v{vAP} offset:64"]
def list_reads_n():
    return [f"ds_read_u16 v{vRN}, v{vAQ}", f"ds_read_u16 v{vRN+1}, v{vAQ} offset:64"]
def addr_se():
    return [f"v_lshl_add_u32 v{vPA}, v{vRS}, 8, v{vCP}", f"v_lshl_add_u32 v{vPA+1}, v{vRS+1}, 8, v{vCP}",
            f"v_and_or_b32 v{vEA}, v{vRE}, s{sMask}, v{vH16}", f"v_and_or_b32 v{vLA}, v{vRE}, 16, v{vCL}",
            f"v_cmp_gt_i32 vcc, 0, v{vRE}"]
def flags_from_vcc(sF):
    return [f"s_or_b32 s{sF}, vcc_lo, s{sSafe}"]
def addr_q(par):
    return [f"v_add_u32 v{vQA+2*par}, v{vRN}, v{vCQ}", f"v_add_u32 v{vQA+2*par+1}, v{vRN+1}, v{vCQ}"]
def e_load(par):
    return f"buffer_load_dwordx4 v[{EE+4*par}:{EE+4*par+3}], v{vEA}, s[{sE}:{sE+3}], 0 offen {cfg.e_pol}"
def mfmas(c0, Pset, Qset, epar):
    out = []
    zz = lambda c: f"v[{Z+16*c}:{Z+16*c+15}]"
    f4 = lambda r: f"v[{r}:{r+3}]"
    M = "v_mfma_f32_32x32x16_bf16"
    for i in range(2): out.append(f"{M} {zz(c0+i)}, {f4(EE+4*epar)}, {f4(W3+4*(c0+i))}, 0")
    for i in range(2): out.append(f"{M} {zz(c0+i)}, {f4(AQ)}, {f4(Qset+4*i)}, {zz(c0+i)}")
    for i in range(2): out.append(f"{M} {zz(c0+i)}, {f4(Pset+8*i)}, {f4(ILO)}, {zz(c0+i)}")
    for i in range(2): out.append(f"{M} {zz(c0+i)}, {f4(Pset+8*i+4)}, {f4(IHI)}, {zz(c0+i)}")
    return out
p2 = lambda r: f"v[{r}:{r+1}]"
def flush_code(a, c0, X, mid=()):
    t = vT + 8 * X
    for i in range(2):
        a.e(f"ds_read_b32 v{t+4+i}, v{vCUR+X} offset:{128*(c0+i)}")
    for i in range(2):
        c = c0 + i
        a.e(f"v_rcp_f32 v{t+2*i}, v{DD+2*c}")
        a.e(f"v_rcp_f32 v{t+2*i+1}, v{DD+2*c+1}")
    for i in range(2):
        c = c0 + i
        a.e(f"v_max3_f32 v{vCHK}, v{DD+2*c}, v{DD+2*c+1}, v{vCHK}")
    for s in mid: a.e(s)
    a.e("s_waitcnt lgkmcnt(0)")
    for j in range(2):
        for i in range(2):
            c = c0 + i
            a.e(f"v_fmac_f32 v{t+4+i}, v{NN+2*c+j}, v{t+2*i+j}")
    for i in range(2):
        a.e(f"ds_write_b32 v{vCUR+X}, v{t+4+i} offset:{128*(c0+i)}")

def half_step(a, ool, X, par, extras, tag):
    c0 = 2 * X
    if X == 0: mf = mfmas(2, PX, QX, par)
    else:      mf = mfmas(0, PY, QY, 1 - par)
    def keep(s):
        if "nodma" in cfg.x and (" lds" in s or "m0" in s or s == "s_nop 0"): return False
        if "noe" in cfg.x and s.startswith("buffer_load") and " lds" not in s: return False
        if "nods" in cfg.x and s.startswith("ds_read"): return False
        if "nowait" in cfg.x and s.startswith("s_waitcnt"): return False
        return True
    extras = {k: [s for s in v if keep(s)] for k, v in extras.items()}
    for s in extras.get("pre", []): a.e(s)
    for k in range(8):
        if "nomfma" not in cfg.x: a.e(mf[k])
        for i in range(2):
            z = Z + 16 * (c0 + i) + 2 * k
            a.e(f"v_exp_f32 v{EX+2*i}, v{z}")
            a.e(f"v_exp_f32 v{EX+2*i+1}, v{z+1}")
        for s in extras.get(k, []): a.e(s)
        bit = 8 * (k >> 1) + 2 * (k & 1)
        lf, lb = f"F_{tag}_{k}", f"R_{tag}_{k}"
        if "nobr" not in cfg.x:
            a.e(f"s_and_b32 s{sT}, s{sSafe if 'nofl' in cfg.x else sF0}, {hex(0x13 << bit)}")
            a.e(f"s_cbranch_scc1 {lf}")
        for i in range(2):
            c = c0 + i; z = Z + 16 * c + 2 * k
            a.e(f"v_pk_fma_f32 {p2(TT+2*i)}, {p2(z)}, {p2(DD+2*c)}, {p2(NN+2*c)}")
        for i in range(2):
            c = c0 + i
            a.e(f"v_pk_fma_f32 {p2(DD+2*c)}, {p2(DD+2*c)}, {p2(EX+2*i)}, {p2(DD+2*c)}")
        for i in range(2):
            c = c0 + i
            a.e(f"v_pk_fma_f32 {p2(NN+2*c)}, {p2(NN+2*c)}, {p2(EX+2*i)}, {p2(TT+2*i)}")
        a.label(lb)
        ool.label(lf)
        t = vT + 8 * X
        mid = [f"v_mov_b32_dpp v{t+6}, v{vQA+2*par+(k>>2)} row_newbcast:{4*(k&3)} row_mask:0xf bank_mask:0xf"]
        for i in range(2):
            c = c0 + i
            mid.append(f"v_pk_add_f32 {p2(DD+2*c)}, {p2(EX+2*i)}, 1.0 op_sel_hi:[1,0]")
        flush_code(ool, c0, X, mid)
        for i in range(2):
            c = c0 + i; z = Z + 16 * c + 2 * k
            ool.e(f"v_pk_mov_b32 {p2(NN+2*c)}, {p2(z)}, {p2(z)} op_sel:[0,1]")
        ool.e(f"s_bitcmp1_b32 s{sF0}, {bit}")
        ool.e("s_cselect_b32 exec_lo, -1, 0")
        ool.e(f"s_bitcmp1_b32 s{sF0}, {bit+4}")
        ool.e("s_cselect_b32 exec_hi, -1, 0")
        ool.e(f"v_lshl_add_u32 v{vCUR+X}, v{t+6}, 1, v{vCA}")
        ool.e("s_mov_b64 exec, -1")
        ool.e(f"s_branch {lb}")

def lds_fill(a, base, nbytes, vdata, vaddr16, ex):
    n = (nbytes + 15) // 16
    r = 0
    while n >= 512:
        a.e(f"ds_write_b128 v{vaddr16}, v[{vdata}:{vdata+3}] offset:{base + r*8192}")
        n -= 512; r += 1
    if n:
        a.e(f"s_movk_i32 s{sT}, {n}")
        a.e(f"v_cmp_gt_u32 vcc, s{sT}, v0")
        a.e(f"s_and_saveexec_b64 s[{ex}:{ex+1}], vcc")
        a.e(f"ds_write_b128 v{vaddr16}, v[{vdata}:{vdata+3}] offset:{base + r*8192}")
        a.e(f"s_mov_b64 exec, s[{ex}:{ex+1}]")

def reset_round(a, zero_agg):
    t = vT
    a.e(f"v_lshlrev_b32 v{t}, 4, v0")
    a.e(f"v_mov_b32 v{t+8}, 0\nv_mov_b32 v{t+9}, 0\nv_mov_b32 v{t+10}, 0\nv_mov_b32 v{t+11}, 0")
    lds_fill(a, CNT, 272, t+8, t, sX0)
    if zero_agg: lds_fill(a, AGG, 50 * 528 + 8192, t+8, t, sX0)
    else:        lds_fill(a, SIDE, 8192, t+8, t, sX0)

def onehot4(a, dst, vJ, vcond_sgpr, t):
    a.e(f"v_and_b32 v{t}, 1, v{vJ}")
    a.e(f"v_lshlrev_b32 v{t}, 4, v{t}")
    a.e(f"v_mov_b32 v{t+1}, 0x3f80")
    a.e(f"v_lshlrev_b32 v{t}, v{t}, v{t+1}")
    if vcond_sgpr is not None:
        a.e(f"v_cndmask_b32 v{t}, 0, v{t}, s[{vcond_sgpr}:{vcond_sgpr+1}]")
    a.e(f"v_lshrrev_b32 v{t+1}, 1, v{vJ}")
    for i in range(4):
        a.e(f"v_cmp_eq_u32 vcc, {i}, v{t+1}")
        a.e("s_nop 1")
        a.e(f"v_cndmask_b32 v{dst+i}, 0, v{t}, vcc")

def gen_k2(a):
    ool = Asm()
    kernel_head(a, NAME + "_kernel")
    load_args(a)
    a.e("s_cmp_ge_u32 s2, 250")
    a.e("s_cbranch_scc1 K2_END")
    if cfg.dbg: a.e("v_mov_b32 v252, 0")
    stamp(a, 0, 252)
    idmap(a, sBin, 2, sT)
    a.e(f"v_lshrrev_b32 v{vT+1}, 1, v0")
    a.e(f"v_lshlrev_b32 v{vT+2}, 2, v{vT+1}")
    a.e(f"s_lshl_b32 s{sT+2}, s{sBin}, 10")
    a.e(f"s_add_u32 s{sT+2}, s{sT+2}, {cfg.wsoff + WS_OFFT}")
    a.e(f"v_lshrrev_b32 v{vT}, 6, v0")
    a.e(f"v_and_b32 v{vL}, 63, v0")
    a.e(f"v_readfirstlane_b32 s{sW}, v{vT}")
    a.e(f"s_mul_i32 s{sT+3}, s{sBin}, 12800")
    a.e("s_waitcnt lgkmcnt(0)")
    srd(a, sOT, S_WS, off_s=sT+2, size=1000)
    a.e(f"buffer_load_dword v{vOC}, v{vT+2}, s[{sOT}:{sOT+3}], 0 offen")
    srd(a, sP, S_WS, off_c=cfg.wsoff + WS_P, size=PSIZE)
    def prefetch(i):
        a.e(f"buffer_load_dword v{vPF+i}, v{vPF+i}, s[{sP}:{sP+3}], 0 offen")
    if cfg.prefetchP:
        a.e(f"s_lshr_b32 s{sT}, s2, 3")
        a.e(f"s_mul_i32 s{sT}, s{sT}, {807*128}")
        a.e(f"v_lshl_add_u32 v{vPF}, v0, 7, s{sT}")
        a.e(f"v_add_u32 v{vPF+1}, 0x10000, v{vPF}")
        a.e(f"s_movk_i32 s{sT}, 295")
        a.e(f"v_cmp_gt_u32 vcc, s{sT}, v0")
        a.e(f"v_mov_b32 v{vT+3}, 0x7ffffff0")
        a.e("s_nop 0")
        a.e(f"v_cndmask_b32 v{vPF+1}, v{vT+3}, v{vPF+1}, vcc")
        if cfg.pf0: prefetch(1)
    srd(a, sX, S_X, off_s=sT+3, size=12800)
    srd(a, sWm, S_WM, size=272*256)
    srd(a, sWu, S_WU, size=256*256)
    a.e(f"v_mul_u32_u24 v{vEB}, 1600, v{vT+1}")
    a.e(f"v_and_b32 v{vM}, 31, v0")
    x_dma(a, sX, sW, vL, WU2, vT+4, sT)
    w_lane_const(a, vWC, vL, vT+4)
    a.e(f"s_lshl_b32 s{sW4k}, s{sW}, 12")
    w_dma(a, sWm, vWC, sW4k, 32768, STG, sT)
    w_dma(a, sWu, vWC, sW4k, 0, STG + 32768, sT)
    srd(a, sX, S_WS, off_c=cfg.wsoff + WS_W3F, size=4096)
    a.e(f"v_lshlrev_b32 v{vT+4}, 4, v{vL}")
    for c in range(4):
        o = f" offset:{1024*c}" if c else ""
        a.e(f"buffer_load_dwordx4 v[{W3+4*c}:{W3+4*c+3}], v{vT+4}, s[{sX}:{sX+3}], 0 offen{o}")
    NDMA = 14 + (1 if cfg.prefetchP and cfg.pf0 else 0)
    NPF = 0 if not cfg.prefetchP else (1 if cfg.pf0 else 2)
    srd(a, sR, S_WS, off_c=cfg.wsoff + WS_REC, size=400000*4)
    a.e(f"s_mov_b32 s{sLim}, 24")
    a.e(f"s_mov_b32 s{sDone}, 0")
    RC = PY; RK = 160; NA = 172; EN = 212
    def rec_loads():
        a.e(f"v_and_b32 v{vT}, 1, v0")
        a.e(f"v_lshlrev_b32 v{vT}, 2, v{vT}")
        a.e(f"v_add_u32 v{vT}, s{sDone}, v{vT}")
        a.e(f"v_lshrrev_b32 v{vREM}, 16, v{vOC}")
        a.e(f"s_add_u32 s{sT}, s{sDone}, s{sLim}")
        a.e(f"v_cmp_lt_u32 s[{sX0+6}:{sX0+7}], s{sT}, v{vREM}")
        a.e(f"v_min_u32 v{vREM}, s{sT}, v{vREM}")
        a.e(f"v_sub_u32 v{vREM}, v{vREM}, v{vT}")
        a.e(f"v_and_b32 v{vROFF}, 0xffff, v{vOC}")
        a.e(f"v_add3_u32 v{vROFF}, v{vROFF}, v{vEB}, v{vT}")
        a.e(f"v_lshlrev_b32 v{vT+1}, 2, v{vROFF}")
        a.e(f"v_mov_b32 v{vT+2}, 0x7ffffff0")
        for g in range(3):
            a.e(f"v_cmp_lt_i32 vcc, {8*g}, v{vREM}")
            a.e("s_nop 1")
            a.e(f"v_cndmask_b32 v{vT+3+g}, v{vT+2}, v{vT+1}, vcc")
            o = f" offset:{32*g}" if g else ""
            a.e(f"buffer_load_dwordx4 v[{RC+4*g}:{RC+4*g+3}], v{vT+3+g}, s[{sR}:{sR+3}], 0 offen{o}")
    def setup_consts():
        reset_round(a, True)
        srd(a, sO, S_OUT, off_s=sT+3, size=12800)
        if cfg.modeA: srd(a, sE, S_WS, off_c=cfg.wsoff + WS_ECP, size=ESIZE)
        else:         srd(a, sE, S_E, size=ESIZE)
        a.e(f"s_mov_b32 s{sSafe}, 0")
        a.e(f"s_mov_b32 s{sFirst}, 1")
        a.e(f"s_mov_b32 s{sMask}, 0x7fffffe0")
        a.e(f"s_lshl_b32 s{sM0}, s{sW}, 13")
        a.e(f"s_add_u32 s{sM0}, s{sM0}, {STG - 256}")
        t = vT + 12
        a.e(f"v_and_b32 v{t+1}, 7, v{vL}")
        onehot4(a, AQ, t+1, None, t+2)
        a.e(f"v_lshlrev_b32 v{t+2}, 5, v{vL}")
        a.e("s_mov_b64 exec, 0x1ff")
        a.e(f"ds_write_b128 v{t+2}, v[{vT+8}:{vT+11}] offset:{LUT+16}")
        a.e(f"ds_write_b128 v{t+2}, v[{vT+8}:{vT+11}] offset:{LUT}")
        a.e("s_mov_b64 exec, 0xff")
        a.e(f"ds_write_b128 v{t+2}, v[{AQ}:{AQ+3}] offset:{LUT}")
        a.e("s_mov_b64 exec, -1")
        for i in range(4):
            a.e(f"v_mov_b32 v{ILO+i}, 0\nv_mov_b32 v{IHI+i}, 0")
        a.e("s_mov_b32 exec_lo, 0xff\ns_mov_b32 exec_hi, 0xff00")
        for i in range(4): a.e(f"v_mov_b32 v{ILO+i}, v{AQ+i}")
        a.e("s_mov_b32 exec_lo, 0xff0000\ns_mov_b32 exec_hi, 0xff000000")
        for i in range(4): a.e(f"v_mov_b32 v{IHI+i}, v{AQ+i}")
        a.e("s_mov_b64 exec, -1")
        a.e(f"v_mov_b32 v{vCL}, {LUT + 256}")
        a.e(f"v_bfe_u32 v{t+1}, v{vL}, 3, 2")
        a.e(f"v_bfe_u32 v{t+2}, v{vL}, 1, 1")
        a.e(f"v_lshl_add_u32 v{t+1}, v{t+1}, 1, v{t+2}")
        a.e(f"v_lshlrev_b32 v{t+1}, 5, v{t+1}")
        a.e("s_mov_b32 exec_lo, 0x0f0f0f0f\ns_mov_b32 exec_hi, 0xf0f0f0f0")
        a.e(f"v_add_u32 v{vCL}, {LUT}, v{t+1}")
        a.e("s_mov_b64 exec, -1")
        a.e(f"v_lshrrev_b32 v{t}, 5, v{vL}")
        a.e(f"v_lshlrev_b32 v{vH16}, 4, v{t}")
        a.e(f"v_and_b32 v{t+1}, 3, v{vL}")
        a.e(f"v_lshrrev_b32 v{t+2}, 4, v{vL}")
        a.e(f"v_xor_b32 v{vCP}, v{t+1}, v{t+2}")
        a.e(f"v_lshlrev_b32 v{vCP}, 4, v{vCP}")
        a.e(f"v_and_b32 v{t+2}, 1, v{t+2}")
        a.e(f"v_lshlrev_b32 v{vCQ}, 3, v{t+1}")
        a.e(f"v_lshl_add_u32 v{vCQ}, v{t+2}, 5, v{vCQ}")
        a.e(f"v_add_u32 v{vCQ}, {QL}, v{vCQ}")
        a.e(f"v_lshlrev_b32 v{vCA}, 2, v{vM}")
        a.e(f"v_lshl_add_u32 v{vSD}, v{t}, 9, v{vCA}")
        a.e(f"s_lshl_b32 s{sT}, s{sW}, 10")
        a.e(f"s_add_u32 s{sT}, s{sT}, {SIDE}")
        a.e(f"v_add_u32 v{vSD}, s{sT}, v{vSD}")
        a.e(f"v_lshlrev_b32 v{t+2}, 6, v{t+2}")
        a.e(f"v_sub_u32 v{vCA}, v{vCA}, v{t+2}")
        a.e(f"v_add_u32 v{vCA}, {AGG - 2*QL}, v{vCA}")
        a.e(f"v_bfe_u32 v{t+1}, v{vL}, 2, 2")
        a.e(f"v_xor_b32 v{t+1}, v{t+1}, v{t}")
        a.e(f"v_lshlrev_b32 v{t+1}, 4, v{t+1}")
        a.e(f"v_lshl_add_u32 v{vRP0}, v{vM}, 6, v{t+1}")
        a.e(f"s_add_u32 s{sT}, s{sM0}, 256")
        a.e(f"v_add_u32 v{vRP0}, s{sT}, v{vRP0}")
        a.e(f"v_xor_b32 v{vRP1}, 32, v{vRP0}")
        wfrag_const(a, vWA, vL, sW, t, sT)
        a.e(f"v_mov_b32 v{vCHK}, 0")
    if cfg.early: setup_consts()
    stamp(a, 1, 252)
    a.e(f"s_waitcnt vmcnt({NDMA})")
    stamp(a, 2, 252)
    rec_loads()
    if cfg.prefetchP:
        prefetch(0)
        if not cfg.pf0: prefetch(1)
    if not cfg.early: setup_consts()
    a.e(f"s_waitcnt vmcnt({3+NPF}) lgkmcnt(0)")
    stamp(a, 3, 252)
    a.e("s_barrier")
    xfrag_read(a, 64, vL, sW, WU2, vT, sT)
    a.e(f"v_add_u32 v{vT+4}, {STG}, v{vWA}")
    wfrag_read(a, 96, vT+4)
    a.e(f"s_mov_b32 s{sT}, {LOG2E_NEG}")
    a.e(f"s_lshr_b32 s{sT+1}, s{sW}, 2")
    a.e(f"s_lshl_b32 s{sT+1}, s{sT+1}, 5")
    a.e(f"v_add_u32 v{vT+8}, s{sT+1}, v{vM}")
    a.e(f"v_cmp_gt_u32 vcc, 50, v{vT+8}")
    a.e(f"v_mul_u32_u24 v{vT+9}, 264, v{vT+8}")
    a.e(f"v_lshl_add_u32 v{vT+9}, v{vH16}, 1, v{vT+9}")
    a.e(f"s_and_b32 s{sT+1}, s{sW}, 3")
    a.e(f"s_lshl_b32 s{sT+1}, s{sT+1}, 6")
    a.e(f"v_add_u32 v{vT+9}, s{sT+1}, v{vT+9}")
    a.e("s_waitcnt lgkmcnt(0)")
    gemm8(a, 128, 96, 64)
    wfrag_read(a, 96, vT+4, 32768)
    for i in range(16):
        a.e(f"v_mul_f32 v{128+i}, s{sT}, v{128+i}")
    for i in range(8):
        a.e(f"v_cvt_pk_bf16_f32 v{128+i}, v{128+2*i}, v{129+2*i}")
    a.e(f"s_and_saveexec_b64 s[{sX0}:{sX0+1}], vcc")
    for g in range(4):
        a.e(f"ds_write_b64 v{vT+9}, v[{128+2*g}:{129+2*g}] offset:{QL + 8*g}")
    a.e(f"s_mov_b64 exec, s[{sX0}:{sX0+1}]")
    stamp(a, 4, 252)
    a.e(f"s_waitcnt vmcnt({NPF})")
    a.label("K2_COUNT")
    stamp(a, 5, 252)
    a.e(f"v_mov_b32 v{vT}, 1")
    a.e(f"v_mov_b32 v{vT+1}, {FLG}")
    a.e(f"s_mov_b64 exec, s[{sX0+6}:{sX0+7}]")
    a.e(f"ds_write_b32 v{vT+1}, v{vT}")
    a.e("s_mov_b64 exec, -1")
    a.e(f"v_cmp_lt_i32 s[{sX0+4}:{sX0+5}], 16, v{vREM}")
    def groups(fn, lab):
        for i in range(8): fn(i)
        a.e(f"s_cmp_eq_u64 s[{sX0+4}:{sX0+5}], 0")
        a.e(f"s_cbranch_scc1 {lab}")
        for i in range(8, 12): fn(i)
        a.label(lab)
    KK = lambda i: 8 * (i >> 2) + (i & 3)
    def f_cnt(i):
        a.e(f"v_and_b32 v{NA+i}, 63, v{RC+i}")
        a.e(f"v_lshlrev_b32 v{NA+i}, 2, v{NA+i}")
        a.e(f"v_cmp_lt_i32 vcc, {KK(i)}, v{vREM}")
        a.e("s_mov_b64 exec, vcc")
        a.e(f"ds_add_rtn_u32 v{RK+i}, v{NA+i}, v{vT} offset:{CNT}")
        a.e("s_mov_b64 exec, -1")
    groups(f_cnt, "K2_G1")
    def f_ent(i):
        e0, e1 = EN + 2 * i, EN + 1 + 2 * i
        if cfg.modeA:
            a.e(f"v_add_lshl_u32 v{e0}, v{vROFF}, {KK(i)}, 5")
        else:
            a.e(f"v_lshrrev_b32 v{e0}, 20, v{RC+i}")
            a.e(f"v_add_lshl_u32 v{e0}, v{e0}, v{vEB}, 5")
        a.e(f"v_bfe_u32 v{e1}, v{RC+i}, 6, 14")
        a.e(f"v_mad_u32_u24 v{e1}, v{NA+i}, s{sT}, v{e1}")
    a.e(f"s_mov_b32 s{sT}, 0x420000")
    a.e(f"v_lshlrev_b32 v{vT+2}, 2, v{vL}")
    a.e("s_waitcnt lgkmcnt(0)")
    a.e("s_barrier")
    stamp(a, 6, 252)
    a.e(f"ds_read_b32 v{vT+6}, v{vT+2} offset:{CNT}")
    a.e(f"ds_read_b32 v{vT+5}, v{vT+1}")
    groups(f_ent, "K2_G2")
    a.e("s_waitcnt lgkmcnt(0)")
    a.e(f"v_add_u32 v{vT+3}, 1, v{vT+6}")
    a.e(f"v_lshrrev_b32 v{vT+3}, 1, v{vT+3}")
    a.e(f"v_mov_b32 v{vT+4}, v{vT+3}")
    a.e(f"v_readfirstlane_b32 s{sMore}, v{vT+5}")
    scan64(a, vT+4)
    a.e("s_nop 0")
    a.e(f"v_readlane_b32 s{sT+5}, v{vT+4}, 63")
    a.e(f"v_sub_u32 v{vT+4}, v{vT+4}, v{vT+3}")
    a.e(f"v_lshlrev_b32 v{vT+4}, 4, v{vT+4}")
    a.e(f"s_add_u32 s{sT}, s{sT+5}, 15")
    a.e(f"s_lshr_b32 s{sT}, s{sT}, 4")
    a.e(f"s_cmp_gt_u32 s{sT+5}, 1025")
    a.e("s_cbranch_scc1 K2_TOOBIG")
    groups(lambda i: a.e(f"ds_bpermute_b32 v{NA+i}, v{NA+i}, v{vT+4}"), "K2_G3")
    a.e(f"s_lshr_b32 s{sT+1}, s{sT}, 3")
    a.e(f"s_and_b32 s{sT+2}, s{sT}, 7")
    a.e(f"s_mul_i32 s{sT+3}, s{sT+1}, s{sW}")
    a.e(f"s_min_u32 s{sT+4}, s{sW}, s{sT+2}")
    a.e(f"s_add_u32 s{sT+3}, s{sT+3}, s{sT+4}")
    a.e(f"s_cmp_lt_u32 s{sW}, s{sT+2}")
    a.e(f"s_addc_u32 s{sNT}, s{sT+1}, 0")
    a.e(f"s_lshl_b32 s{sT+3}, s{sT+3}, 8")
    a.e(f"s_add_u32 s{sT+3}, s{sT+3}, {LIST}")
    a.e(f"s_lshl_b32 s{sT+4}, s{sNT}, 7")
    a.e(f"s_max_u32 s{sT+1}, s{sT+1}, 1")
    a.e(f"s_lshl_b32 s{sT+1}, s{sT+1}, 3")
    a.e(f"v_cmp_le_u32 s[{sSusp}:{sSusp+1}], s{sT+1}, v{vT+3}")
    a.e(f"s_cmp_lg_u32 s{sW}, 7")
    a.e("s_cbranch_scc1 K2_NODUM")
    a.e(f"v_mov_b32 v{vT+8}, 0x7ffffff0\nv_mov_b32 v{vT+9}, 0xffff\nv_mov_b32 v{vT+10}, 0x7ffffff0\nv_mov_b32 v{vT+11}, 0xffff")
    a.e(f"v_lshl_add_u32 v{vT+7}, v{vT+6}, 3, v{vT+4}")
    a.e(f"v_and_b32 v{vT+6}, 1, v{vT+6}")
    a.e(f"v_cmp_eq_u32 vcc, 1, v{vT+6}")
    a.e("s_mov_b64 exec, vcc")
    a.e(f"ds_write_b64 v{vT+7}, v[{vT+8}:{vT+9}] offset:{LIST}")
    a.e("s_mov_b32 exec_lo, -1\ns_mov_b32 exec_hi, 0x7f")
    a.e(f"v_add_lshl_u32 v{vT+7}, v{vL}, s{sT+5}, 4")
    a.e(f"ds_write_b128 v{vT+7}, v[{vT+8}:{vT+11}] offset:{LIST}")
    a.e("s_mov_b64 exec, -1")
    a.label("K2_NODUM")
    def rowaddr(dst, vm, extra):
        a.e(f"v_bfe_u32 v{vT+8}, v{vm}, 2, 1")
        a.e(f"v_mul_u32_u24 v{dst}, s{sT+4}, v{vT+8}")
        a.e(f"v_lshrrev_b32 v{vT+8}, 3, v{vm}")
        a.e(f"v_lshl_add_u32 v{dst}, v{vT+8}, 5, v{dst}")
        a.e(f"v_and_b32 v{vT+8}, 3, v{vm}")
        a.e(f"v_lshl_add_u32 v{dst}, v{vT+8}, 3, v{dst}")
        a.e(f"v_add3_u32 v{dst}, v{dst}, s{sT+3}, {extra}")
    a.e(f"s_brev_b32 s{sT+6}, 1")
    a.e("s_waitcnt lgkmcnt(0)")
    def f_place(i):
        a.e(f"v_lshl_add_u32 v{NA+i}, v{RK+i}, 3, v{NA+i}")
        a.e(f"v_add_u32 v{RK+i}, -1, v{RK+i}")
        a.e(f"v_and_or_b32 v{EN+2*i}, v{RK+i}, s{sT+6}, v{EN+2*i}")
        a.e(f"v_cmp_lt_i32 vcc, {KK(i)}, v{vREM}")
        a.e("s_mov_b64 exec, vcc")
        a.e(f"ds_write_b64 v{NA+i}, v[{EN+2*i}:{EN+1+2*i}] offset:{LIST}")
        a.e("s_mov_b64 exec, -1")
    groups(f_place, "K2_G4")
    rowaddr(vAE, vM, 0)
    a.e(f"v_lshrrev_b32 v{vT+9}, 2, v{vL}")
    rowaddr(vAP, vT+9, 4)
    a.e(f"v_lshrrev_b32 v{vT+8}, 5, v{vL}")
    a.e(f"v_mul_u32_u24 v{vAQ}, s{sT+4}, v{vT+8}")
    a.e(f"v_bfe_u32 v{vT+8}, v{vL}, 2, 2")
    a.e(f"v_lshl_add_u32 v{vAQ}, v{vT+8}, 4, v{vAQ}")
    a.e(f"v_add3_u32 v{vAQ}, v{vAQ}, s{sT+3}, 6")
    a.e(f"s_mov_b32 s{sP+2}, {PSIZE}")
    a.e(f"s_mov_b32 s{sE+2}, {ESIZE}")
    a.e(f"s_mov_b32 s{sDm}, -1")
    a.e("s_waitcnt lgkmcnt(0)")
    a.e("s_barrier")
    stamp(a, 7, 252)
    a.e(f"s_cmp_eq_u32 s{sNT}, 0")
    a.e("s_cbranch_scc1 K2_NOTILES")
    adv_se = [f"v_add_u32 v{vAE}, 128, v{vAE}", f"v_add_u32 v{vAP}, 128, v{vAP}"]
    adv_n = [f"v_add_u32 v{vAQ}, 128, v{vAQ}"]
    for s in list_reads_se() + list_reads_n() + adv_se + adv_n: a.e(s)
    a.e("s_waitcnt lgkmcnt(0)")
    for s in addr_se() + addr_q(0): a.e(s)
    for s in list_reads_se(): a.e(s)
    for s in flags_from_vcc(sF0): a.e(s)
    dma_half(a, 0, alt=True)
    a.e(e_load(0))
    dma_half(a, 1)
    a.e(f"ds_read_b128 v[{AQ}:{AQ+3}], v{vLA}")
    for s in qfrag_reads(QY, 0, 0) + qfrag_reads(QX, 1, 0): a.e(s)
    a.e(f"v_cmp_ne_u32 vcc, v{vLA}, v{vCL}")
    a.e(f"v_mov_b32_dpp v{vFA}, v{vQA} row_newbcast:0 row_mask:0xf bank_mask:0xf")
    for s in adv_se: a.e(s)
    a.e(f"s_mov_b32 s{sDm}, vcc_lo")
    a.e(f"v_lshl_add_u32 v{vFA}, v{vFA}, 1, v{vCA}")
    a.e(f"s_cmp_lt_u32 s{sNT}, 2")
    a.e(f"s_cselect_b32 s{sP+2}, 0, s{sP+2}")
    a.e(f"s_cselect_b32 s{sE+2}, 0, s{sE+2}")
    a.e("s_waitcnt lgkmcnt(9)")
    for s in addr_se(): a.e(s)
    for s in list_reads_se() + list_reads_n(): a.e(s)
    for s in flags_from_vcc(sF1): a.e(s)
    dma_half(a, 0)
    a.e(e_load(1))
    a.e(f"s_cmp_eq_u32 s{sFirst}, 0")
    a.e("s_cbranch_scc1 K2_NOX")
    gemm8(a, ACX, 96, 64)
    a.label("K2_NOX")
    for s in adv_se + adv_n: a.e(s)
    for c in range(4):
        a.e(f"v_mov_b32 v{NN+2*c}, 0\nv_mov_b32 v{NN+2*c+1}, 0\nv_mov_b32 v{DD+2*c}, 1.0\nv_mov_b32 v{DD+2*c+1}, 1.0")
    a.e(f"v_mov_b32 v{vCUR}, v{vSD}\nv_mov_b32 v{vCUR+1}, v{vSD}")
    a.e(f"s_sub_u32 s{sT}, s{sW4k}, s{sM0}")
    a.e(f"s_add_u32 s{sT}, s{sT}, {WU2 - 256}")
    a.e(f"v_add_u32 v{vT}, s{sT}, v{vRP0}")
    a.e(f"v_add_u32 v{vT+1}, s{sT}, v{vRP1}")
    a.e("s_waitcnt vmcnt(5)")
    for tq in range(2):
        for s in range(2):
            r = PY + 8 * tq + 4 * s
            a.e(f"ds_read_b128 v[{r}:{r+3}], v{vT+s} offset:{tq*2048}")
    for s in pfrag_reads(PX, 1): a.e(s)
    mf = mfmas(0, PY, QY, 0)
    a.e("s_waitcnt lgkmcnt(8)")
    for s in mf[:4]: a.e(s)
    a.e("s_waitcnt lgkmcnt(0)")
    dma_half(a, 1)
    for s in mf[4:]: a.e(s)
    stamp(a, 8, 252)
    if cfg.dbg:
        a.e("s_memtime s[90:91]\ns_waitcnt lgkmcnt(0)\nv_writelane_b32 v252, s90, 14")
    a.e(f"s_mov_b32 s{sCnt}, s{sNT}")
    a.e("s_nop 7")
    def lstamp(x):
        if not cfg.dbg: return
        a.e("s_memrealtime s[90:91]")
        a.e(f"s_lshl_b32 s92, s{sCnt}, 1")
        a.e(f"s_add_u32 s92, s92, {x}")
        a.e("s_mov_b32 m0, s92")
        a.e("s_waitcnt lgkmcnt(0)")
        a.e("v_writelane_b32 v252, s90, m0")
    def iteration(par):
        exA = {
            "pre": ["s_waitcnt vmcnt(5)"] + pfrag_reads(PY, 0),
            0: addr_q(1 - par) + [f"s_cmp_lt_u32 s{sCnt}, 3", f"s_cselect_b32 s{sP+2}, 0, s{sP+2}", f"s_cselect_b32 s{sE+2}, 0, s{sE+2}"]
               + addr_se()[:3] + addr_se()[4:],
            1: qfrag_reads(QY, 0, 1 - par) + flags_from_vcc(sF2),
            2: ["s_waitcnt lgkmcnt(4)"] + sum(dma_ops(0)[:2], []),
            3: sum(dma_ops(0)[2:], []) + [e_load(par)],
            4: [f"ds_read_b128 v[{AQ}:{AQ+3}], v{vLA}", addr_se()[3],
                f"s_cmp_lg_u32 s{sCnt}, 1", f"s_cbranch_scc0 WU2_{par}", f"WU2R_{par}:"],
            7: ["s_waitcnt lgkmcnt(0)"],
        }
        half_step(a, ool, 0, par, exA, f"A{par}")
        ool.label(f"WU2_{par}")
        w_dma(ool, sWu, vWC, sW4k, 32768, WU2, sT)
        ool.e(f"s_branch WU2R_{par}")
        exB = {
            "pre": ["s_waitcnt vmcnt(5)"] + pfrag_reads(PX, 1),
            0: qfrag_reads(QX, 1, 1 - par),
            2: ["s_waitcnt lgkmcnt(4)"] + sum(dma_ops(1)[:2], []),
            3: sum(dma_ops(1)[2:], []),
            4: list_reads_se() + list_reads_n(),
            5: adv_se + adv_n,
            7: ["s_waitcnt lgkmcnt(0)"],
        }
        lstamp(17)
        half_step(a, ool, 1, par, exB, f"B{par}")
        lstamp(16)
        a.e(f"s_mov_b32 s{sF0}, s{sF1}")
        a.e(f"s_mov_b32 s{sF1}, s{sF2}")
        a.e(f"s_sub_u32 s{sCnt}, s{sCnt}, 1")
        a.e(f"s_cmp_eq_u32 s{sCnt}, 0")
    a.label("K2_LOOP")
    iteration(0)
    a.e("s_cbranch_scc1 K2_LEND")
    iteration(1)
    a.e("s_cbranch_scc0 K2_LOOP")
    a.label("K2_LEND")
    stamp(a, 9, 252)
    if cfg.dbg:
        a.e("s_memtime s[90:91]\ns_waitcnt lgkmcnt(0)\nv_writelane_b32 v252, s90, 15")
    flush_code(a, 0, 0)
    flush_code(a, 2, 1)
    for c in range(4):
        a.e(f"ds_read_b32 v{vT+16+c}, v{vSD} offset:{128*c}")
    a.label("K2_AFTER")
    a.e(f"s_mov_b32 s{sFirst}, 0")
    a.e(f"s_bitcmp0_b32 s{sDm}, 0")
    a.e(f"s_cselect_b32 s{sX0}, -1, 0")
    a.e(f"s_bitcmp0_b32 s{sDm}, 4")
    a.e(f"s_cselect_b32 s{sX0+1}, -1, 0")
    a.e("s_waitcnt vmcnt(0) lgkmcnt(0)")
    a.e("s_barrier")
    a.e(f"s_mov_b64 exec, s[{sX0}:{sX0+1}]")
    a.e(f"s_cmp_lg_u64 s[{sSusp}:{sSusp+1}], 0")
    a.e("s_cbranch_scc1 K2_ATOM")
    for c in range(4):
        a.e(f"ds_read_b32 v{vT+20+c}, v{vFA} offset:{128*c}")
    for c in range(4):
        a.e(f"s_waitcnt lgkmcnt({3})")
        a.e(f"v_add_f32 v{vT+20+c}, v{vT+20+c}, v{vT+16+c}")
        a.e(f"ds_write_b32 v{vFA}, v{vT+20+c} offset:{128*c}")
    a.label("K2_MERGED")
    a.e("s_mov_b64 exec, -1")
    a.e(f"v_add_u32 v{vT+4}, {WU2}, v{vWA}")
    wfrag_read(a, 128, vT+4)
    a.e(f"s_lshr_b32 s{sT+1}, s{sW}, 2")
    a.e(f"s_lshl_b32 s{sT+1}, s{sT+1}, 5")
    a.e(f"v_add_u32 v{vT+8}, s{sT+1}, v{vM}")
    a.e(f"v_mul_u32_u24 v{vT+9}, 528, v{vT+8}")
    a.e(f"v_lshl_add_u32 v{vT+9}, v{vH16}, 1, v{vT+9}")
    a.e("s_waitcnt lgkmcnt(0)")
    a.e("s_barrier")
    stamp(a, 10, 252)
    a.e(f"s_cmp_lg_u32 s{sMore}, 0")
    a.e("s_cbranch_scc1 K2_MORE")
    for s in range(8):
        for u in range(2):
            r = 64 + 8 * s + 4 * u
            a.e(f"ds_read_b128 v[{r}:{r+3}], v{vT+9} offset:{AGG + 64*s + 16*u}")
    a.e(f"v_lshlrev_b32 v{vT+10}, 8, v{vT+8}")
    a.e(f"v_lshl_add_u32 v{vT+10}, v{vH16}, 1, v{vT+10}")
    a.e(f"s_and_b32 s{sT+1}, s{sW}, 3")
    a.e(f"s_lshl_b32 s{sT+1}, s{sT+1}, 6")
    a.e(f"v_add_u32 v{vT+10}, s{sT+1}, v{vT+10}")
    for s in range(8):
        a.e(f"s_waitcnt lgkmcnt({14-2*s})")
        for i in range(4):
            a.e(f"v_cvt_pk_bf16_f32 v{64+8*s+i}, v{64+8*s+2*i}, v{65+8*s+2*i}")
        if s:
            c = "0" if s == 1 else "v[160:175]"
            a.e(f"v_mfma_f32_32x32x16_bf16 v[160:175], v[{128+4*(s-1)}:{131+4*(s-1)}], v[{64+8*(s-1)}:{67+8*(s-1)}], {c}")
    a.e(f"s_mov_b32 s{sT}, {LN2_NEG}")
    a.e(f"v_mfma_f32_32x32x16_bf16 v[160:175], v[156:159], v[120:123], v[160:175]")
    a.e(f"s_mov_b32 s{sT+1}, {LOG2E_NEG}")
    a.e(f"v_cmp_gt_u32 s[{sX0}:{sX0+1}], 50, v{vT+8}")
    a.e(f"s_mov_b32 s{sT+2}, 0x7b800000")
    a.e(f"v_cmp_le_f32 s[{sX0+2}:{sX0+3}], s{sT+2}, v{vCHK}")
    a.e(f"v_mov_b32 v{vT+11}, 0x207")
    a.e("s_nop 7")
    a.e(f"v_cmp_class_f32 vcc, v160, v{vT+11}")
    for i in range(16):
        a.e(f"v_fma_f32 v{160+i}, v{160+i}, s{sT}, v{ACX+i}")
    a.e(f"s_and_b64 vcc, vcc, s[{sX0}:{sX0+1}]")
    a.e(f"s_or_b64 s[{sX0+2}:{sX0+3}], vcc, s[{sX0+2}:{sX0+3}]")
    for hf in range(2):
        R = range(8 * hf, 8 * hf + 8)
        for i in R: a.e(f"v_mul_f32 v{64+i}, s{sT+1}, v{160+i}")
        for i in R: a.e(f"v_exp_f32 v{64+i}, v{64+i}")
        for i in R: a.e(f"v_add_f32 v{64+i}, 1.0, v{64+i}")
        for i in R: a.e(f"v_rcp_f32 v{64+i}, v{64+i}")
        for i in R: a.e(f"v_mul_f32 v{64+i}, v{160+i}, v{64+i}")
        for i in range(4 * hf, 4 * hf + 4): a.e(f"v_cvt_pk_bf16_f32 v{80+i}, v{64+2*i}, v{65+2*i}")
        o = " offset:16" if hf else ""
        a.e(f"buffer_store_dwordx4 v[{80+4*hf}:{83+4*hf}], v{vT+10}, s[{sO}:{sO+3}], 0 offen{o} {cfg.o_pol}")
    stamp(a, 11, 252)
    if cfg.dbg:
        a.e("s_waitcnt vmcnt(0)")
        a.e(f"v_writelane_b32 v252, s{sNT}, 13")
    stamp(a, 12, 252)
    stamp_out(a, 252, 253, 1)
    if cfg.x: a.e("s_branch K2_END")
    a.e(f"s_cmp_lg_u32 s{sSafe}, 0")
    a.e("s_cbranch_scc1 K2_END")
    a.e(f"v_mov_b32 v{vT}, 1")
    a.e(f"v_mov_b32 v{vT+1}, {FLG+4}")
    a.e(f"s_mov_b64 exec, s[{sX0+2}:{sX0+3}]")
    a.e(f"ds_write_b32 v{vT+1}, v{vT}")
    a.e("s_mov_b64 exec, -1")
    a.e("s_waitcnt lgkmcnt(0)")
    a.e("s_barrier")
    a.e(f"ds_read_b32 v{vT}, v{vT+1}")
    a.e("s_waitcnt lgkmcnt(0)")
    a.e(f"v_readfirstlane_b32 s{sT}, v{vT}")
    a.e("s_nop 3")
    a.e(f"s_cmp_lg_u32 s{sT}, 0")
    a.e("s_cbranch_scc1 K2_SAFE")
    a.label("K2_END")
    a.e("s_endpgm")
    a.lines += ool.lines
    a.label("K2_NOTILES")
    a.e(f"s_cmp_eq_u32 s{sFirst}, 0")
    a.e("s_cbranch_scc1 K2_NOX2")
    gemm8(a, ACX, 96, 64)
    a.label("K2_NOX2")
    w_dma(a, sWu, vWC, sW4k, 32768, WU2, sT)
    a.e(f"v_mov_b32 v{vFA}, v{vSD}")
    a.e("s_branch K2_AFTER")
    a.label("K2_ATOM")
    for c in range(4):
        a.e(f"ds_add_f32 v{vFA}, v{vT+16+c} offset:{128*c}")
    a.e("s_branch K2_MERGED")
    a.label("K2_SAFE")
    a.e("s_waitcnt vmcnt(0)")
    a.e("s_barrier")
    a.e(f"s_mov_b32 s{sSafe}, 0x0a0a0a0a")
    a.e(f"s_mov_b32 s{sDone}, 0")
    reset_round(a, True)
    a.e("s_branch K2_ROUND")
    a.label("K2_MORE")
    a.e(f"s_add_u32 s{sDone}, s{sDone}, s{sLim}")
    a.e("s_branch K2_RESET")
    a.label("K2_TOOBIG")
    a.e("s_barrier")
    a.e(f"s_mov_b32 s{sLim}, 8")
    a.label("K2_RESET")
    reset_round(a, False)
    a.label("K2_ROUND")
    rec_loads()
    a.e("s_waitcnt vmcnt(0) lgkmcnt(0)")
    a.e("s_barrier")
    a.e("s_branch K2_COUNT")

HEADER = open("cdna_kernels/" + NAME + ".s.ref").read().split("; Override launch")[0]
def generate():
    a = Asm()
    gen_k1(a)
    gen_k2(a)
    body = a.text()
    probs = check_text(body)
    for p in probs: print("HAZARD", p, file=sys.stderr)
    k1lds = K1_LDS_A if cfg.modeA else K1_LDS_B
    out = HEADER
    out += f"; @launch kernel=prep_kernel grid=(506,1,1) block=(512,1,1) lds={k1lds}\n"
    out += f"; @launch kernel={NAME}_kernel grid=(250,1,1) block=(512,1,1) lds={K2_LDS}\n"
    out += '.amdgcn_target "amdgcn-amd-amdhsa--gfx950"\n' + body
    out += '.section .rodata,"a"\n.p2align 6\n' + kernel_desc("prep_kernel", 100 if cfg.dbg else 96, 96 if cfg.dbg else 64) + ".p2align 6\n" + kernel_desc(NAME + "_kernel", 256, 96)
    return out

if __name__ == "__main__":
    outp = sys.argv[1]
    for kv in sys.argv[2:]:
        k, v = kv.split("=", 1)
        cur = getattr(cfg, k)
        setattr(cfg, k, (v not in ("0", "False")) if isinstance(cur, bool) else int(v, 0) if isinstance(cur, int) else v)
    open(outp, "w").write(generate())
```

```python
import sys
from asmlib import *

NAME = "gather_scatter__mpnn_edge_mlp__graph"
class Cfg:
    modeA = False
    wsoff = 0
    st_pol = ""
    ld_pol = "nt"
    e_pol = ""
    prefetchP = True
    pf0 = False
    early = True
    o_pol = ""
    x_pol = ""
    dbg = False
    x = ""
    rep = ""
cfg = Cfg()

NB = 250; NPB = 50; CH = 1600
WS_P = 0; WS_REC = 0x320000; WS_OFFT = 0x4B0000; WS_W3F = 0x4F0000; WS_ECP = 0x500000
LOG2E_NEG = "0xbfb8aa3b"
LN2_NEG = "0xbf317218"

S_X, S_E, S_SRC, S_DST, S_WM, S_WU, S_OUT, S_DBG, S_WS = 4, 6, 8, 10, 12, 14, 16, 18, 20

def load_args(a):
    a.e("s_load_dwordx16 s[4:19], s[0:1], 0")
    a.e("s_load_dwordx2 s[20:21], s[0:1], 64")

def srd(a, d, ptr, off_s=None, off_c=0, size=0):
    if off_s is not None:
        a.e(f"s_add_u32 s{d}, s{ptr}, s{off_s}")
        a.e(f"s_addc_u32 s{d+1}, s{ptr+1}, 0")
        if off_c:
            a.e(f"s_add_u32 s{d}, s{d}, {off_c}")
            a.e(f"s_addc_u32 s{d+1}, s{d+1}, 0")
    elif off_c:
        a.e(f"s_add_u32 s{d}, s{ptr}, {off_c}")
        a.e(f"s_addc_u32 s{d+1}, s{ptr+1}, 0")
    else:
        a.e(f"s_mov_b32 s{d}, s{ptr}")
        a.e(f"s_mov_b32 s{d+1}, s{ptr+1}")
    a.e(f"s_mov_b32 s{d+2}, {size}")
    a.e(f"s_mov_b32 s{d+3}, 0x20000")

def idmap(a, dst, src, t):
    a.e(f"s_and_b32 s{t}, s{src}, 7")
    a.e(f"s_lshr_b32 s{dst}, s{src}, 3")
    a.e(f"s_mul_i32 s{t+1}, s{t}, 31")
    a.e(f"s_add_u32 s{dst}, s{dst}, s{t+1}")
    a.e(f"s_min_u32 s{t}, s{t}, 2")
    a.e(f"s_add_u32 s{dst}, s{dst}, s{t}")

def scan64(a, v):
    for sh in (1, 2, 4, 8):
        a.e("s_nop 1")
        a.e(f"v_add_u32_dpp v{v}, v{v}, v{v} row_shr:{sh} row_mask:0xf bank_mask:0xf bound_ctrl:0")
    a.e("s_nop 1")
    a.e(f"v_add_u32_dpp v{v}, v{v}, v{v} row_bcast:15 row_mask:0xa bank_mask:0xf")
    a.e("s_nop 1")
    a.e(f"v_add_u32_dpp v{v}, v{v}, v{v} row_bcast:31 row_mask:0xc bank_mask:0xf")

def x_dma(a, sX, sW, vL, lds_base, t0, st, pol=""):
    a.e(f"v_lshrrev_b32 v{t0}, 4, v{vL}")
    a.e(f"v_and_b32 v{t0+1}, 15, v{vL}")
    a.e(f"v_xor_b32 v{t0+1}, v{t0+1}, v{t0}")
    a.e(f"v_lshlrev_b32 v{t0+1}, 4, v{t0+1}")
    a.e(f"v_lshl_add_u32 v{t0}, v{t0}, 8, v{t0+1}")
    a.e(f"s_and_b32 s{st}, s{sW}, 1")
    a.e(f"s_lshl_b32 s{st}, s{st}, 7")
    a.e(f"v_xor_b32 v{t0}, s{st}, v{t0}")
    a.e(f"v_xor_b32 v{t0+1}, 64, v{t0}")
    a.e(f"s_lshl_b32 s{st}, s{sW}, 11")
    a.e(f"s_add_u32 m0, s{st}, {lds_base}")
    a.e("s_nop 0")
    a.e(f"buffer_load_dwordx4 v{t0}, s[{sX}:{sX+3}], s{st} offen {pol} lds")
    a.e(f"buffer_load_dwordx4 v{t0+1}, s[{sX}:{sX+3}], s{st} offen offset:1024 {pol} lds")

def w_lane_const(a, vW, vL, t):
    a.e(f"v_lshrrev_b32 v{t}, 4, v{vL}")
    a.e(f"v_and_b32 v{vW}, 15, v{vL}")
    a.e(f"v_lshlrev_b32 v{vW}, 4, v{vW}")
    a.e(f"v_lshlrev_b32 v{t+1}, 6, v{t}")
    a.e(f"v_xor_b32 v{vW}, v{vW}, v{t+1}")
    a.e(f"v_lshl_add_u32 v{vW}, v{t}, 8, v{vW}")

def w_dma(a, sSrd, vW, sW4096, goff, lds_base, st):
    a.e(f"s_add_u32 s{st}, s{sW4096}, {goff}")
    a.e(f"s_add_u32 m0, s{sW4096}, {lds_base}")
    a.e("s_nop 0")
    for i in range(4):
        o = f" offset:{1024*i}" if i else ""
        a.e(f"buffer_load_dwordx4 v{vW}, s[{sSrd}:{sSrd+3}], s{st} offen{o} lds")

def wfrag_const(a, vA, vL, sW, t, st):
    a.e(f"v_lshrrev_b32 v{t}, 5, v{vL}")
    a.e(f"v_bfe_u32 v{t+1}, v{vL}, 2, 2")
    a.e(f"v_lshl_add_u32 v{t}, v{t}, 3, v{t+1}")
    a.e(f"v_lshlrev_b32 v{vA}, 8, v{t}")
    a.e(f"v_and_b32 v{t}, 1, v{vL}")
    a.e(f"v_lshlrev_b32 v{t}, 5, v{t}")
    a.e(f"v_bfe_u32 v{t+2}, v{vL}, 1, 1")
    a.e(f"v_lshl_add_u32 v{t}, v{t+2}, 3, v{t}")
    a.e(f"v_bfe_u32 v{t+2}, v{vL}, 4, 1")
    a.e(f"v_lshl_add_u32 v{t}, v{t+2}, 4, v{t}")
    a.e(f"s_and_b32 s{st}, s{sW}, 3")
    a.e(f"s_lshl_b32 s{st}, s{st}, 6")
    a.e(f"v_add_u32 v{t}, s{st}, v{t}")
    a.e(f"v_lshlrev_b32 v{t+1}, 6, v{t+1}")
    a.e(f"v_xor_b32 v{t}, v{t}, v{t+1}")
    a.e(f"v_add_u32 v{vA}, v{vA}, v{t}")

def wfrag_read(a, dst, vAddr, off=0):
    for s in range(8):
        for u in range(2):
            a.e(f"ds_read_b64_tr_b16 v[{dst+4*s+2*u}:{dst+4*s+2*u+1}], v{vAddr} offset:{off+(16*s+4*u)*256}")

def xfrag_read(a, dst, vL, sW, lds_base, t, st):
    a.e(f"v_and_b32 v{t}, 31, v{vL}")
    a.e(f"v_lshrrev_b32 v{t+1}, 5, v{vL}")
    a.e(f"v_and_b32 v{t+2}, 15, v{vL}")
    a.e(f"v_xor_b32 v{t+1}, v{t+1}, v{t+2}")
    a.e(f"v_lshlrev_b32 v{t+1}, 4, v{t+1}")
    a.e(f"v_lshl_add_u32 v{t}, v{t}, 8, v{t+1}")
    a.e(f"s_lshr_b32 s{st}, s{sW}, 2")
    a.e(f"s_lshl_b32 s{st}, s{st}, 13")
    a.e(f"s_add_u32 s{st}, s{st}, {lds_base}")
    a.e(f"v_add_u32 v{t}, s{st}, v{t}")
    for s in range(8):
        if s == 0:
            a.e(f"ds_read_b128 v[{dst}:{dst+3}], v{t}")
        else:
            r = t + 1 + (s & 1)
            a.e(f"v_xor_b32 v{r}, {32*s}, v{t}")
            a.e(f"ds_read_b128 v[{dst+4*s}:{dst+4*s+3}], v{r}")

def gemm8(a, acc, A, B, zero=True):
    for s in range(8):
        c = "0" if (s == 0 and zero) else f"v[{acc}:{acc+15}]"
        a.e(f"v_mfma_f32_32x32x16_bf16 v[{acc}:{acc+15}], v[{A+4*s}:{A+4*s+3}], v[{B+4*s}:{B+4*s+3}], {c}")

WS_DBG = 0x2000000
def stamp(a, i, vst):
    if not cfg.dbg: return
    a.e("s_memrealtime s[90:91]")
    a.e("s_waitcnt lgkmcnt(0)")
    a.e(f"v_writelane_b32 v{vst}, s90, {i}")
def stamp_out(a, vst, vt, kidx):
    if not cfg.dbg: return
    srd(a, 92, S_WS, off_c=WS_DBG + kidx * 0x100000, size=0x100000)
    a.e(f"s_lshl_b32 s90, s2, 11")
    a.e(f"v_lshl_add_u32 v{vt}, v0, 2, s90")
    a.e(f"buffer_store_dword v{vst}, v{vt}, s[92:95], 0 offen")

def kernel_head(a, name):
    a.e(".text")
    a.e(f".globl {name}")
    a.e(".p2align 8")
    a.e(f".type {name},@function")
    a.label(name)

def kernel_desc(name, vg, sg):
    acc = (vg + 3) // 4 * 4
    return f""".amdhsa_kernel {name}
  .amdhsa_next_free_vgpr {vg}
  .amdhsa_next_free_sgpr {sg}
  .amdhsa_accum_offset {acc}
  .amdhsa_group_segment_fixed_size 0
  .amdhsa_kernarg_size 72
  .amdhsa_user_sgpr_count 2
  .amdhsa_user_sgpr_kernarg_segment_ptr 1
  .amdhsa_system_sgpr_workgroup_id_x 1
.end_amdhsa_kernel
"""

K1_LDS_A = 16384 + 57344
K1_LDS_B = 49152
def gen_k1(a):
    kernel_head(a, "prep_kernel")
    load_args(a)
    sW, sId, sT = 22, 23, 44
    vL = 1
    a.e(f"v_and_b32 v{vL}, 63, v0")
    a.e(f"v_lshrrev_b32 v2, 6, v0")
    a.e("s_nop 0")
    a.e(f"v_readfirstlane_b32 s{sW}, v2")
    if cfg.dbg: a.e("v_mov_b32 v97, 0")
    stamp(a, 0, 97)
    a.e("s_cmp_lt_u32 s2, 250")
    a.e("s_cbranch_scc1 K1_BIN")
    a.e("s_cmp_eq_u32 s2, 250")
    a.e("s_cbranch_scc1 K1_W3")
    a.e("s_cmp_lt_u32 s2, 256")
    a.e("s_cbranch_scc1 K1_END")
    a.e("s_cmp_ge_u32 s2, 506")
    a.e("s_cbranch_scc1 K1_END")
    a.e("s_sub_u32 s3, s2, 256")
    idmap(a, sId, 3, sT)
    a.e(f"s_mul_i32 s{sT+2}, s{sId}, 12800")
    a.e("s_waitcnt lgkmcnt(0)")
    srd(a, 24, S_X, off_s=sT+2, size=12800)
    srd(a, 28, S_WM, size=272*256)
    srd(a, 32, S_WS, off_s=sT+2, off_c=cfg.wsoff + WS_P, size=12800)
    x_dma(a, 24, sW, vL, 0, 2, sT, cfg.x_pol)
    w_lane_const(a, 4, vL, 5)
    a.e(f"s_lshl_b32 s{sT+3}, s{sW}, 12")
    w_dma(a, 28, 4, sT+3, 0, 16384, sT)
    wfrag_const(a, 8, vL, sW, 9, sT)
    a.e(f"v_and_b32 v12, 31, v{vL}")
    a.e(f"v_lshrrev_b32 v13, 5, v{vL}")
    a.e(f"v_lshlrev_b32 v13, 5, v13")
    a.e(f"v_lshl_add_u32 v12, v12, 8, v13")
    a.e(f"s_lshr_b32 s{sT}, s{sW}, 2")
    a.e(f"s_lshl_b32 s{sT}, s{sT}, 13")
    a.e(f"s_and_b32 s{sT+1}, s{sW}, 3")
    a.e(f"s_lshl_b32 s{sT+1}, s{sT+1}, 6")
    a.e(f"s_add_u32 s{sT}, s{sT}, s{sT+1}")
    a.e(f"v_add_u32 v12, s{sT}, v12")
    a.e("s_waitcnt vmcnt(0)")
    stamp(a, 1, 97)
    a.e("s_barrier")
    xfrag_read(a, 16, vL, sW, 0, 9, sT)
    wfrag_read(a, 48, 8, 16384)
    a.e("s_waitcnt lgkmcnt(0)")
    gemm8(a, 80, 48, 16)
    a.e(f"s_mov_b32 s{sT}, {LOG2E_NEG}")
    a.e("s_nop 15")
    for i in range(16):
        a.e(f"v_mul_f32 v{80+i}, s{sT}, v{80+i}")
    for i in range(8):
        a.e(f"v_cvt_pk_bf16_f32 v{16+i}, v{80+2*i}, v{81+2*i}")
    a.e(f"buffer_store_dwordx4 v[16:19], v12, s[32:35], 0 offen {cfg.st_pol}")
    a.e(f"buffer_store_dwordx4 v[20:23], v12, s[32:35], 0 offen offset:16 {cfg.st_pol}")
    stamp(a, 2, 97)
    if cfg.dbg: a.e("s_waitcnt vmcnt(0)")
    stamp(a, 3, 97)
    stamp_out(a, 97, 98, 0)
    a.e("s_endpgm")
    CNT, BASE, SORT, EL = 0, 1024, 9216, 16384
    a.label("K1_BIN")
    idmap(a, sId, 2, sT)
    a.e(f"s_mul_i32 s{sT+2}, s{sId}, 6400")
    a.e(f"s_mul_i32 s{sT+3}, s{sId}, 51200")
    a.e(f"s_lshl_b32 s{sT+4}, s{sId}, 2")
    a.e("v_lshlrev_b32 v2, 4, v0")
    a.e("s_waitcnt lgkmcnt(0)")
    srd(a, 24, S_DST, off_s=sT+2, size=6400)
    srd(a, 28, S_SRC, off_s=sT+2, size=6400)
    a.e(f"buffer_load_dwordx4 v[4:7], v2, s[24:27], 0 offen {cfg.ld_pol}")
    a.e(f"buffer_load_dwordx4 v[8:11], v2, s[28:31], 0 offen {cfg.ld_pol}")
    if cfg.modeA:
        srd(a, 52, S_E, off_s=sT+3, size=51200)
        a.e(f"s_lshl_b32 s{sT}, s{sW}, 10")
        a.e(f"s_add_u32 s{sT}, s{sT}, {EL}")
        for r in range(7):
            a.e(f"s_add_u32 m0, s{sT}, {r*8192}")
            a.e(f"s_mov_b32 s{sT+1}, {r*8192}")
            a.e(f"buffer_load_dwordx4 v2, s[52:55], s{sT+1} offen {cfg.ld_pol} lds")
    srd(a, 32, S_WS, off_s=sT+2, off_c=cfg.wsoff + WS_REC, size=6400)
    srd(a, 36, S_WS, off_s=sT+4, off_c=cfg.wsoff + WS_OFFT, size=250*1024 - 1000)
    if cfg.modeA:
        srd(a, 40, S_WS, off_s=sT+3, off_c=cfg.wsoff + WS_ECP, size=51200)
    a.e("v_mov_b32 v12, 0\nv_mov_b32 v13, 0\nv_mov_b32 v14, 0\nv_mov_b32 v15, 0")
    a.e("v_cmp_gt_u32 vcc, 64, v0")
    a.e("s_and_saveexec_b64 s[56:57], vcc")
    a.e(f"ds_write_b128 v2, v[12:15] offset:{CNT}")
    a.e("s_mov_b64 exec, s[56:57]")
    a.e("v_mov_b32 v16, 1")
    a.e("v_lshlrev_b32 v17, 22, v0")
    a.e("s_movk_i32 s58, 5243")
    a.e("s_movk_i32 s59, 400")
    a.e("s_waitcnt lgkmcnt(0)")
    a.e("s_barrier")
    a.e(f"s_waitcnt vmcnt({7 if cfg.modeA else 0})")
    stamp(a, 1, 97)
    a.e("v_cmp_gt_u32 vcc, s59, v0")
    a.e("s_and_saveexec_b64 s[56:57], vcc")
    for i in range(4):
        a.e(f"v_mul_u32_u24 v{20+i}, s58, v{4+i}")
        a.e(f"v_lshrrev_b32 v{20+i}, 18, v{20+i}")
        a.e(f"v_mul_u32_u24 v18, 50, v{20+i}")
        a.e(f"v_lshlrev_b32 v{20+i}, 2, v{20+i}")
        a.e(f"ds_add_rtn_u32 v{24+i}, v{20+i}, v16 offset:{CNT}")
        a.e(f"v_sub_u32 v{4+i}, v{4+i}, v18")
        a.e(f"v_lshl_or_b32 v{4+i}, v{8+i}, 6, v{4+i}")
        if i: a.e(f"v_add_u32 v17, 0x100000, v17")
        a.e(f"v_or_b32 v{4+i}, v{4+i}, v17")
    a.e("s_mov_b64 exec, s[56:57]")
    a.e(f"v_lshlrev_b32 v3, 4, v{vL}")
    a.e("s_waitcnt lgkmcnt(0)")
    a.e("s_barrier")
    a.e(f"ds_read_b128 v[12:15], v3 offset:{CNT}")
    a.e(f"s_lshl_b32 s{sT}, s{sW}, 10")
    a.e(f"s_add_u32 s{sT}, s{sT}, {BASE}")
    a.e(f"v_add_u32 v3, s{sT}, v3")
    a.e("s_waitcnt lgkmcnt(0)")
    a.e("v_add_u32 v29, v12, v13")
    a.e("v_add_u32 v30, v29, v14")
    a.e("v_add_u32 v31, v30, v15")
    a.e("v_mov_b32 v32, v31")
    scan64(a, 32)
    a.e("v_sub_u32 v32, v32, v31")
    a.e("v_add_u32 v33, v32, v12")
    a.e("v_add_u32 v34, v32, v29")
    a.e("v_add_u32 v35, v32, v30")
    a.e("ds_write_b128 v3, v[32:35]")
    a.e(f"s_cmp_lg_u32 s{sW}, 7")
    a.e("s_cbranch_scc1 K1_NOFFT")
    a.e(f"v_lshlrev_b32 v36, 12, v{vL}")
    for i in range(4):
        a.e(f"v_lshl_or_b32 v{12+i}, v{12+i}, 16, v{32+i}")
        o = f" offset:{1024*i}" if i else ""
        a.e(f"buffer_store_dword v{12+i}, v36, s[36:39], 0 offen{o} {cfg.st_pol}")
    a.label("K1_NOFFT")
    for i in range(4):
        a.e(f"v_add_u32 v{20+i}, s{sT}, v{20+i}")
    a.e("s_waitcnt lgkmcnt(0)")
    a.e("s_mov_b64 exec, vcc")
    for i in range(4):
        a.e(f"ds_read_b32 v{20+i}, v{20+i}")
    a.e("s_waitcnt lgkmcnt(0)")
    for i in range(4):
        a.e(f"v_add_lshl_u32 v{20+i}, v{20+i}, v{24+i}, 2")
        a.e(f"ds_write_b32 v{20+i}, v{4+i} offset:{SORT}")
    a.e("s_mov_b64 exec, -1")
    a.e("s_waitcnt vmcnt(0) lgkmcnt(0)" if cfg.modeA else "s_waitcnt lgkmcnt(0)")
    a.e("s_barrier")
    a.e(f"ds_read_b128 v[4:7], v2 offset:{SORT}")
    if cfg.modeA:
        a.e("v_lshrrev_b32 v3, 1, v0")
        a.e("v_lshlrev_b32 v3, 2, v3")
        for r in range(7):
            a.e(f"ds_read_b32 v{8+r}, v3 offset:{SORT + r*1024}")
        a.e("v_and_b32 v16, 1, v0")
        a.e("v_lshlrev_b32 v16, 4, v16")
    a.e(f"s_waitcnt lgkmcnt({7 if cfg.modeA else 0})")
    a.e(f"buffer_store_dwordx4 v[4:7], v2, s[32:35], 0 offen {cfg.st_pol}")
    if cfg.modeA:
        a.e("s_waitcnt lgkmcnt(0)")
        for r in range(7):
            a.e(f"v_bfe_u32 v{8+r}, v{8+r}, 20, 11")
            a.e(f"v_min_u32 v{8+r}, 1599, v{8+r}") if r == 6 else None
            a.e(f"v_lshl_add_u32 v{8+r}, v{8+r}, 5, v16")
            a.e(f"ds_read_b128 v[{20+4*r}:{23+4*r}], v{8+r} offset:{EL}")
        for r in range(7):
            a.e(f"s_mov_b32 s{sT+1}, {r*8192}")
            a.e(f"s_waitcnt lgkmcnt({6-r})")
            a.e(f"buffer_store_dwordx4 v[{20+4*r}:{23+4*r}], v2, s[40:43], s{sT+1} offen {cfg.st_pol}")
    stamp(a, 2, 97)
    if cfg.dbg: a.e("s_waitcnt vmcnt(0)")
    stamp(a, 3, 97)
    stamp_out(a, 97, 98, 0)
    a.label("K1_END")
    a.e("s_endpgm")
    a.label("K1_W3")
    a.e("s_waitcnt lgkmcnt(0)")
    srd(a, 24, S_WM, off_c=65536, size=4096)
    srd(a, 28, S_WS, off_c=cfg.wsoff + WS_W3F, size=4096)
    a.e("v_and_b32 v3, 31, v0")
    a.e("v_lshlrev_b32 v3, 1, v3")
    a.e("v_bfe_u32 v4, v0, 5, 1")
    a.e("v_lshl_add_u32 v3, v4, 11, v3")
    a.e("v_bfe_u32 v4, v0, 6, 2")
    a.e("v_lshl_add_u32 v3, v4, 6, v3")
    for j in range(8):
        o = f" offset:{256*j}" if j else ""
        a.e(f"buffer_load_ushort v{8+j}, v3, s[24:27], 0 offen{o}")
    a.e(f"s_mov_b32 s{sT}, {LOG2E_NEG}")
    a.e("v_lshlrev_b32 v4, 4, v0")
    a.e("s_waitcnt vmcnt(0)")
    for j in range(8):
        a.e(f"v_lshlrev_b32 v{8+j}, 16, v{8+j}")
        a.e(f"v_mul_f32 v{8+j}, s{sT}, v{8+j}")
    for j in range(4):
        a.e(f"v_cvt_pk_bf16_f32 v{16+j}, v{8+2*j}, v{9+2*j}")
    a.e(f"buffer_store_dwordx4 v[16:19], v4, s[28:31], 0 offen {cfg.st_pol}")
    a.e("s_endpgm")

CNT, FLG, LUT, QL, LIST, AGG, SIDE, WU2, STG = 0, 256, 288, 576, 13776, 30800, 57200, 65536, 98304
MAXT = 65
K2_LDS = 163840
vL, vM = 1, 2
vOC, vREM, vROFF, vEB = 3, 4, 5, 6
vAE, vAP, vAQ = 7, 8, 9
vCP, vRP0, vRP1, vCQ, vCL, vCA, vH16, vFA = 10, 11, 12, 13, 14, 15, 16, 17
vPA = 18
vEA, vLA = 20, 21
vQA = 22
vRS = 26
vRN = 28
vRE = 30
vSD = 31
vCUR = 32
vCHK = 34
vWC, vWA = 35, 36
vPF = 38
vT = 40
Z = 64; PX = 128; PY = 144; QX = 160; QY = 168; EE = 176; AQ = 184; ILO = 188; IHI = 192; W3 = 196
NN = 212; DD = 220; EX = 228; TT = 232; ACX = 236
sP, sE, sX, sO, sR, sWm, sWu, sOT = 24, 28, 32, 36, 40, 44, 48, 52
sW, sBin, sNT, sCnt, sF0, sF1, sF2, sLim, sDone, sSafe, sW4k, sM0, sMask, sMore, sFirst, sDm = 22, 23, 56, 57, 58, 59, 60, 61, 62, 63, 64, 65, 66, 67, 68, 69
sT = 70
sX0 = 80
sSusp = 88
PSIZE = 12500 * 256
ESIZE = 400000 * 32

def dma_ops(H, alt=False):
    out = []
    for tq in range(2):
        for ah in range(2):
            imm = (2 * H + tq) * 64
            o = f" offset:{imm}" if imm else ""
            m = f"s_add_u32 m0, s{sW4k}, {WU2 + tq*2048 + ah*1024 - imm}" if alt else f"s_add_u32 m0, s{sM0}, {H*4096 + tq*2048 + ah*1024 - imm + 256}"
            out.append([m, "s_nop 0", f"buffer_load_dwordx4 v{vPA+ah}, s[{sP}:{sP+3}], 0 offen{o} lds"])
    return out
def dma_half(a, H, alt=False):
    for s in sum(dma_ops(H, alt), []): a.e(s)
def pfrag_reads(dst, H):
    out = []
    for tq in range(2):
        for s in range(2):
            r = dst + 8 * tq + 4 * s
            out.append(f"ds_read_b128 v[{r}:{r+3}], v{vRP0+s} offset:{(2*H+tq)*2048}")
    return out
def qfrag_reads(dst, H, par):
    out = []
    for tq in range(2):
        for u in range(2):
            r = dst + 4 * tq + 2 * u
            out.append(f"ds_read_b64_tr_b16 v[{r}:{r+1}], v{vQA+2*par+u} offset:{(2*H+tq)*64}")
    return out
def list_reads_se():
    return [f"ds_read_b32 v{vRE}, v{vAE}", f"ds_read_u16 v{vRS}, v{vAP}", f"ds_read_u16 v{vRS+1}, v{vAP} offset:64"]
def list_reads_n():
    return [f"ds_read_u16 v{vRN}, v{vAQ}", f"ds_read_u16 v{vRN+1}, v{vAQ} offset:64"]
def addr_se():
    return [f"v_lshl_add_u32 v{vPA}, v{vRS}, 8, v{vCP}", f"v_lshl_add_u32 v{vPA+1}, v{vRS+1}, 8, v{vCP}",
            f"v_and_or_b32 v{vEA}, v{vRE}, s{sMask}, v{vH16}", f"v_and_or_b32 v{vLA}, v{vRE}, 16, v{vCL}",
            f"v_cmp_gt_i32 vcc, 0, v{vRE}"]
def flags_from_vcc(sF):
    return [f"s_or_b32 s{sF}, vcc_lo, s{sSafe}"]
def addr_q(par):
    return [f"v_add_u32 v{vQA+2*par}, v{vRN}, v{vCQ}", f"v_add_u32 v{vQA+2*par+1}, v{vRN+1}, v{vCQ}"]
def e_load(par):
    return f"buffer_load_dwordx4 v[{EE+4*par}:{EE+4*par+3}], v{vEA}, s[{sE}:{sE+3}], 0 offen {cfg.e_pol}"
def mfmas(c0, Pset, Qset, epar):
    out = []
    zz = lambda c: f"v[{Z+16*c}:{Z+16*c+15}]"
    f4 = lambda r: f"v[{r}:{r+3}]"
    M = "v_mfma_f32_32x32x16_bf16"
    for i in range(2): out.append(f"{M} {zz(c0+i)}, {f4(EE+4*epar)}, {f4(W3+4*(c0+i))}, 0")
    for i in range(2): out.append(f"{M} {zz(c0+i)}, {f4(AQ)}, {f4(Qset+4*i)}, {zz(c0+i)}")
    for i in range(2): out.append(f"{M} {zz(c0+i)}, {f4(Pset+8*i)}, {f4(ILO)}, {zz(c0+i)}")
    for i in range(2): out.append(f"{M} {zz(c0+i)}, {f4(Pset+8*i+4)}, {f4(IHI)}, {zz(c0+i)}")
    return out
p2 = lambda r: f"v[{r}:{r+1}]"
def flush_code(a, c0, X, mid=()):
    t = vT + 8 * X
    for i in range(2):
        a.e(f"ds_read_b32 v{t+4+i}, v{vCUR+X} offset:{128*(c0+i)}")
    for i in range(2):
        c = c0 + i
        a.e(f"v_rcp_f32 v{t+2*i}, v{DD+2*c}")
        a.e(f"v_rcp_f32 v{t+2*i+1}, v{DD+2*c+1}")
    for i in range(2):
        c = c0 + i
        a.e(f"v_max3_f32 v{vCHK}, v{DD+2*c}, v{DD+2*c+1}, v{vCHK}")
    for s in mid: a.e(s)
    a.e("s_waitcnt lgkmcnt(0)")
    for j in range(2):
        for i in range(2):
            c = c0 + i
            a.e(f"v_fmac_f32 v{t+4+i}, v{NN+2*c+j}, v{t+2*i+j}")
    for i in range(2):
        a.e(f"ds_write_b32 v{vCUR+X}, v{t+4+i} offset:{128*(c0+i)}")

def half_step(a, ool, X, par, extras, tag):
    c0 = 2 * X
    if X == 0: mf = mfmas(2, PX, QX, par)
    else:      mf = mfmas(0, PY, QY, 1 - par)
    def keep(s):
        if "nodma" in cfg.x and (" lds" in s or "m0" in s or s == "s_nop 0"): return False
        if "noe" in cfg.x and s.startswith("buffer_load") and " lds" not in s: return False
        if "nods" in cfg.x and s.startswith("ds_read"): return False
        if "nowait" in cfg.x and s.startswith("s_waitcnt"): return False
        return True
    extras = {k: [s for s in v if keep(s)] for k, v in extras.items()}
    for s in extras.get("pre", []): a.e(s)
    for k in range(8):
        if "nomfma" not in cfg.x: a.e(mf[k])
        for i in range(2):
            z = Z + 16 * (c0 + i) + 2 * k
            a.e(f"v_exp_f32 v{EX+2*i}, v{z}")
            a.e(f"v_exp_f32 v{EX+2*i+1}, v{z+1}")
        for s in extras.get(k, []): a.e(s)
        bit = 8 * (k >> 1) + 2 * (k & 1)
        lf, lb = f"F_{tag}_{k}", f"R_{tag}_{k}"
        if "nobr" not in cfg.x:
            a.e(f"s_and_b32 s{sT}, s{sSafe if 'nofl' in cfg.x else sF0}, {hex(0x13 << bit)}")
            a.e(f"s_cbranch_scc1 {lf}")
        for i in range(2):
            c = c0 + i; z = Z + 16 * c + 2 * k
            a.e(f"v_pk_fma_f32 {p2(TT+2*i)}, {p2(z)}, {p2(DD+2*c)}, {p2(NN+2*c)}")
        for i in range(2):
            c = c0 + i
            a.e(f"v_pk_fma_f32 {p2(DD+2*c)}, {p2(DD+2*c)}, {p2(EX+2*i)}, {p2(DD+2*c)}")
        for i in range(2):
            c = c0 + i
            a.e(f"v_pk_fma_f32 {p2(NN+2*c)}, {p2(NN+2*c)}, {p2(EX+2*i)}, {p2(TT+2*i)}")
        a.label(lb)
        ool.label(lf)
        t = vT + 8 * X
        mid = [f"v_mov_b32_dpp v{t+6}, v{vQA+2*par+(k>>2)} row_newbcast:{4*(k&3)} row_mask:0xf bank_mask:0xf"]
        for i in range(2):
            c = c0 + i
            mid.append(f"v_pk_add_f32 {p2(DD+2*c)}, {p2(EX+2*i)}, 1.0 op_sel_hi:[1,0]")
        flush_code(ool, c0, X, mid)
        for i in range(2):
            c = c0 + i; z = Z + 16 * c + 2 * k
            ool.e(f"v_pk_mov_b32 {p2(NN+2*c)}, {p2(z)}, {p2(z)} op_sel:[0,1]")
        ool.e(f"s_bitcmp1_b32 s{sF0}, {bit}")
        ool.e("s_cselect_b32 exec_lo, -1, 0")
        ool.e(f"s_bitcmp1_b32 s{sF0}, {bit+4}")
        ool.e("s_cselect_b32 exec_hi, -1, 0")
        ool.e(f"v_lshl_add_u32 v{vCUR+X}, v{t+6}, 1, v{vCA}")
        ool.e("s_mov_b64 exec, -1")
        ool.e(f"s_branch {lb}")

def lds_fill(a, base, nbytes, vdata, vaddr16, ex):
    n = (nbytes + 15) // 16
    r = 0
    while n >= 512:
        a.e(f"ds_write_b128 v{vaddr16}, v[{vdata}:{vdata+3}] offset:{base + r*8192}")
        n -= 512; r += 1
    if n:
        a.e(f"s_movk_i32 s{sT}, {n}")
        a.e(f"v_cmp_gt_u32 vcc, s{sT}, v0")
        a.e(f"s_and_saveexec_b64 s[{ex}:{ex+1}], vcc")
        a.e(f"ds_write_b128 v{vaddr16}, v[{vdata}:{vdata+3}] offset:{base + r*8192}")
        a.e(f"s_mov_b64 exec, s[{ex}:{ex+1}]")

def reset_round(a, zero_agg):
    t = vT
    a.e(f"v_lshlrev_b32 v{t}, 4, v0")
    a.e(f"v_mov_b32 v{t+8}, 0\nv_mov_b32 v{t+9}, 0\nv_mov_b32 v{t+10}, 0\nv_mov_b32 v{t+11}, 0")
    lds_fill(a, CNT, 272, t+8, t, sX0)
    if zero_agg: lds_fill(a, AGG, 50 * 528 + 8192, t+8, t, sX0)
    else:        lds_fill(a, SIDE, 8192, t+8, t, sX0)

def onehot4(a, dst, vJ, vcond_sgpr, t):
    a.e(f"v_and_b32 v{t}, 1, v{vJ}")
    a.e(f"v_lshlrev_b32 v{t}, 4, v{t}")
    a.e(f"v_mov_b32 v{t+1}, 0x3f80")
    a.e(f"v_lshlrev_b32 v{t}, v{t}, v{t+1}")
    if vcond_sgpr is not None:
        a.e(f"v_cndmask_b32 v{t}, 0, v{t}, s[{vcond_sgpr}:{vcond_sgpr+1}]")
    a.e(f"v_lshrrev_b32 v{t+1}, 1, v{vJ}")
    for i in range(4):
        a.e(f"v_cmp_eq_u32 vcc, {i}, v{t+1}")
        a.e("s_nop 1")
        a.e(f"v_cndmask_b32 v{dst+i}, 0, v{t}, vcc")

def gen_k2(a):
    ool = Asm()
    kernel_head(a, NAME + "_kernel")
    load_args(a)
    a.e("s_cmp_ge_u32 s2, 250")
    a.e("s_cbranch_scc1 K2_END")
    if cfg.dbg: a.e("v_mov_b32 v252, 0")
    stamp(a, 0, 252)
    idmap(a, sBin, 2, sT)
    a.e(f"v_lshrrev_b32 v{vT+1}, 1, v0")
    a.e(f"v_lshlrev_b32 v{vT+2}, 2, v{vT+1}")
    a.e(f"s_lshl_b32 s{sT+2}, s{sBin}, 10")
    a.e(f"s_add_u32 s{sT+2}, s{sT+2}, {cfg.wsoff + WS_OFFT}")
    a.e(f"v_lshrrev_b32 v{vT}, 6, v0")
    a.e(f"v_and_b32 v{vL}, 63, v0")
    a.e(f"v_readfirstlane_b32 s{sW}, v{vT}")
    a.e(f"s_mul_i32 s{sT+3}, s{sBin}, 12800")
    a.e("s_waitcnt lgkmcnt(0)")
    srd(a, sOT, S_WS, off_s=sT+2, size=1000)
    a.e(f"buffer_load_dword v{vOC}, v{vT+2}, s[{sOT}:{sOT+3}], 0 offen")
    srd(a, sP, S_WS, off_c=cfg.wsoff + WS_P, size=PSIZE)
    def prefetch(i):
        a.e(f"buffer_load_dword v{vPF+i}, v{vPF+i}, s[{sP}:{sP+3}], 0 offen")
    if cfg.prefetchP:
        a.e(f"s_lshr_b32 s{sT}, s2, 3")
        a.e(f"s_mul_i32 s{sT}, s{sT}, {807*128}")
        a.e(f"v_lshl_add_u32 v{vPF}, v0, 7, s{sT}")
        a.e(f"v_add_u32 v{vPF+1}, 0x10000, v{vPF}")
        a.e(f"s_movk_i32 s{sT}, 295")
        a.e(f"v_cmp_gt_u32 vcc, s{sT}, v0")
        a.e(f"v_mov_b32 v{vT+3}, 0x7ffffff0")
        a.e("s_nop 0")
        a.e(f"v_cndmask_b32 v{vPF+1}, v{vT+3}, v{vPF+1}, vcc")
        if cfg.pf0: prefetch(1)
    srd(a, sX, S_X, off_s=sT+3, size=12800)
    srd(a, sWm, S_WM, size=272*256)
    srd(a, sWu, S_WU, size=256*256)
    a.e(f"v_mul_u32_u24 v{vEB}, 1600, v{vT+1}")
    a.e(f"v_and_b32 v{vM}, 31, v0")
    x_dma(a, sX, sW, vL, WU2, vT+4, sT)
    w_lane_const(a, vWC, vL, vT+4)
    a.e(f"s_lshl_b32 s{sW4k}, s{sW}, 12")
    w_dma(a, sWm, vWC, sW4k, 32768, STG, sT)
    w_dma(a, sWu, vWC, sW4k, 0, STG + 32768, sT)
    srd(a, sX, S_WS, off_c=cfg.wsoff + WS_W3F, size=4096)
    a.e(f"v_lshlrev_b32 v{vT+4}, 4, v{vL}")
    for c in range(4):
        o = f" offset:{1024*c}" if c else ""
        a.e(f"buffer_load_dwordx4 v[{W3+4*c}:{W3+4*c+3}], v{vT+4}, s[{sX}:{sX+3}], 0 offen{o}")
    NDMA = 14 + (1 if cfg.prefetchP and cfg.pf0 else 0)
    NPF = 0 if not cfg.prefetchP else (1 if cfg.pf0 else 2)
    srd(a, sR, S_WS, off_c=cfg.wsoff + WS_REC, size=400000*4)
    a.e(f"s_mov_b32 s{sLim}, 24")
    a.e(f"s_mov_b32 s{sDone}, 0")
    RC = PY; RK = 160; NA = 172; EN = 212
    def rec_loads():
        a.e(f"v_and_b32 v{vT}, 1, v0")
        a.e(f"v_lshlrev_b32 v{vT}, 2, v{vT}")
        a.e(f"v_add_u32 v{vT}, s{sDone}, v{vT}")
        a.e(f"v_lshrrev_b32 v{vREM}, 16, v{vOC}")
        a.e(f"s_add_u32 s{sT}, s{sDone}, s{sLim}")
        a.e(f"v_cmp_lt_u32 s[{sX0+6}:{sX0+7}], s{sT}, v{vREM}")
        a.e(f"v_min_u32 v{vREM}, s{sT}, v{vREM}")
        a.e(f"v_sub_u32 v{vREM}, v{vREM}, v{vT}")
        a.e(f"v_and_b32 v{vROFF}, 0xffff, v{vOC}")
        a.e(f"v_add3_u32 v{vROFF}, v{vROFF}, v{vEB}, v{vT}")
        a.e(f"v_lshlrev_b32 v{vT+1}, 2, v{vROFF}")
        a.e(f"v_mov_b32 v{vT+2}, 0x7ffffff0")
        for g in range(3):
            a.e(f"v_cmp_lt_i32 vcc, {8*g}, v{vREM}")
            a.e("s_nop 1")
            a.e(f"v_cndmask_b32 v{vT+3+g}, v{vT+2}, v{vT+1}, vcc")
            o = f" offset:{32*g}" if g else ""
            a.e(f"buffer_load_dwordx4 v[{RC+4*g}:{RC+4*g+3}], v{vT+3+g}, s[{sR}:{sR+3}], 0 offen{o}")
    def setup_consts():
        reset_round(a, True)
        srd(a, sO, S_OUT, off_s=sT+3, size=12800)
        if cfg.modeA: srd(a, sE, S_WS, off_c=cfg.wsoff + WS_ECP, size=ESIZE)
        else:         srd(a, sE, S_E, size=ESIZE)
        a.e(f"s_mov_b32 s{sSafe}, 0")
        a.e(f"s_mov_b32 s{sFirst}, 1")
        a.e(f"s_mov_b32 s{sMask}, 0x7fffffe0")
        a.e(f"s_lshl_b32 s{sM0}, s{sW}, 13")
        a.e(f"s_add_u32 s{sM0}, s{sM0}, {STG - 256}")
        t = vT + 12
        a.e(f"v_and_b32 v{t+1}, 7, v{vL}")
        onehot4(a, AQ, t+1, None, t+2)
        a.e(f"v_lshlrev_b32 v{t+2}, 5, v{vL}")
        a.e("s_mov_b64 exec, 0x1ff")
        a.e(f"ds_write_b128 v{t+2}, v[{vT+8}:{vT+11}] offset:{LUT+16}")
        a.e(f"ds_write_b128 v{t+2}, v[{vT+8}:{vT+11}] offset:{LUT}")
        a.e("s_mov_b64 exec, 0xff")
        a.e(f"ds_write_b128 v{t+2}, v[{AQ}:{AQ+3}] offset:{LUT}")
        a.e("s_mov_b64 exec, -1")
        for i in range(4):
            a.e(f"v_mov_b32 v{ILO+i}, 0\nv_mov_b32 v{IHI+i}, 0")
        a.e("s_mov_b32 exec_lo, 0xff\ns_mov_b32 exec_hi, 0xff00")
        for i in range(4): a.e(f"v_mov_b32 v{ILO+i}, v{AQ+i}")
        a.e("s_mov_b32 exec_lo, 0xff0000\ns_mov_b32 exec_hi, 0xff000000")
        for i in range(4): a.e(f"v_mov_b32 v{IHI+i}, v{AQ+i}")
        a.e("s_mov_b64 exec, -1")
        a.e(f"v_mov_b32 v{vCL}, {LUT + 256}")
        a.e(f"v_bfe_u32 v{t+1}, v{vL}, 3, 2")
        a.e(f"v_bfe_u32 v{t+2}, v{vL}, 1, 1")
        a.e(f"v_lshl_add_u32 v{t+1}, v{t+1}, 1, v{t+2}")
        a.e(f"v_lshlrev_b32 v{t+1}, 5, v{t+1}")
        a.e("s_mov_b32 exec_lo, 0x0f0f0f0f\ns_mov_b32 exec_hi, 0xf0f0f0f0")
        a.e(f"v_add_u32 v{vCL}, {LUT}, v{t+1}")
        a.e("s_mov_b64 exec, -1")
        a.e(f"v_lshrrev_b32 v{t}, 5, v{vL}")
        a.e(f"v_lshlrev_b32 v{vH16}, 4, v{t}")
        a.e(f"v_and_b32 v{t+1}, 3, v{vL}")
        a.e(f"v_lshrrev_b32 v{t+2}, 4, v{vL}")
        a.e(f"v_xor_b32 v{vCP}, v{t+1}, v{t+2}")
        a.e(f"v_lshlrev_b32 v{vCP}, 4, v{vCP}")
        a.e(f"v_and_b32 v{t+2}, 1, v{t+2}")
        a.e(f"v_lshlrev_b32 v{vCQ}, 3, v{t+1}")
        a.e(f"v_lshl_add_u32 v{vCQ}, v{t+2}, 5, v{vCQ}")
        a.e(f"v_add_u32 v{vCQ}, {QL}, v{vCQ}")
        a.e(f"v_lshlrev_b32 v{vCA}, 2, v{vM}")
        a.e(f"v_lshl_add_u32 v{vSD}, v{t}, 9, v{vCA}")
        a.e(f"s_lshl_b32 s{sT}, s{sW}, 10")
        a.e(f"s_add_u32 s{sT}, s{sT}, {SIDE}")
        a.e(f"v_add_u32 v{vSD}, s{sT}, v{vSD}")
        a.e(f"v_lshlrev_b32 v{t+2}, 6, v{t+2}")
        a.e(f"v_sub_u32 v{vCA}, v{vCA}, v{t+2}")
        a.e(f"v_add_u32 v{vCA}, {AGG - 2*QL}, v{vCA}")
        a.e(f"v_bfe_u32 v{t+1}, v{vL}, 2, 2")
        a.e(f"v_xor_b32 v{t+1}, v{t+1}, v{t}")
        a.e(f"v_lshlrev_b32 v{t+1}, 4, v{t+1}")
        a.e(f"v_lshl_add_u32 v{vRP0}, v{vM}, 6, v{t+1}")
        a.e(f"s_add_u32 s{sT}, s{sM0}, 256")
        a.e(f"v_add_u32 v{vRP0}, s{sT}, v{vRP0}")
        a.e(f"v_xor_b32 v{vRP1}, 32, v{vRP0}")
        wfrag_const(a, vWA, vL, sW, t, sT)
        a.e(f"v_mov_b32 v{vCHK}, 0")
    if cfg.early: setup_consts()
    stamp(a, 1, 252)
    a.e(f"s_waitcnt vmcnt({NDMA})")
    stamp(a, 2, 252)
    rec_loads()
    if cfg.prefetchP:
        prefetch(0)
        if not cfg.pf0: prefetch(1)
    if not cfg.early: setup_consts()
    a.e(f"s_waitcnt vmcnt({3+NPF}) lgkmcnt(0)")
    stamp(a, 3, 252)
    a.e("s_barrier")
    xfrag_read(a, 64, vL, sW, WU2, vT, sT)
    a.e(f"v_add_u32 v{vT+4}, {STG}, v{vWA}")
    wfrag_read(a, 96, vT+4)
    a.e(f"s_mov_b32 s{sT}, {LOG2E_NEG}")
    a.e(f"s_lshr_b32 s{sT+1}, s{sW}, 2")
    a.e(f"s_lshl_b32 s{sT+1}, s{sT+1}, 5")
    a.e(f"v_add_u32 v{vT+8}, s{sT+1}, v{vM}")
    a.e(f"v_cmp_gt_u32 vcc, 50, v{vT+8}")
    a.e(f"v_mul_u32_u24 v{vT+9}, 264, v{vT+8}")
    a.e(f"v_lshl_add_u32 v{vT+9}, v{vH16}, 1, v{vT+9}")
    a.e(f"s_and_b32 s{sT+1}, s{sW}, 3")
    a.e(f"s_lshl_b32 s{sT+1}, s{sT+1}, 6")
    a.e(f"v_add_u32 v{vT+9}, s{sT+1}, v{vT+9}")
    a.e("s_waitcnt lgkmcnt(0)")
    gemm8(a, 128, 96, 64)
    wfrag_read(a, 96, vT+4, 32768)
    for i in range(16):
        a.e(f"v_mul_f32 v{128+i}, s{sT}, v{128+i}")
    for i in range(8):
        a.e(f"v_cvt_pk_bf16_f32 v{128+i}, v{128+2*i}, v{129+2*i}")
    a.e(f"s_and_saveexec_b64 s[{sX0}:{sX0+1}], vcc")
    for g in range(4):
        a.e(f"ds_write_b64 v{vT+9}, v[{128+2*g}:{129+2*g}] offset:{QL + 8*g}")
    a.e(f"s_mov_b64 exec, s[{sX0}:{sX0+1}]")
    stamp(a, 4, 252)
    a.e(f"s_waitcnt vmcnt({NPF})")
    a.label("K2_COUNT")
    stamp(a, 5, 252)
    a.e(f"v_mov_b32 v{vT}, 1")
    a.e(f"v_mov_b32 v{vT+1}, {FLG}")
    a.e(f"s_mov_b64 exec, s[{sX0+6}:{sX0+7}]")
    a.e(f"ds_write_b32 v{vT+1}, v{vT}")
    a.e("s_mov_b64 exec, -1")
    a.e(f"v_cmp_lt_i32 s[{sX0+4}:{sX0+5}], 16, v{vREM}")
    def groups(fn, lab):
        for i in range(8): fn(i)
        a.e(f"s_cmp_eq_u64 s[{sX0+4}:{sX0+5}], 0")
        a.e(f"s_cbranch_scc1 {lab}")
        for i in range(8, 12): fn(i)
        a.label(lab)
    KK = lambda i: 8 * (i >> 2) + (i & 3)
    def f_cnt(i):
        a.e(f"v_and_b32 v{NA+i}, 63, v{RC+i}")
        a.e(f"v_lshlrev_b32 v{NA+i}, 2, v{NA+i}")
        a.e(f"v_cmp_lt_i32 vcc, {KK(i)}, v{vREM}")
        a.e("s_mov_b64 exec, vcc")
        a.e(f"ds_add_rtn_u32 v{RK+i}, v{NA+i}, v{vT} offset:{CNT}")
        a.e("s_mov_b64 exec, -1")
    groups(f_cnt, "K2_G1")
    def f_ent(i):
        e0, e1 = EN + 2 * i, EN + 1 + 2 * i
        if cfg.modeA:
            a.e(f"v_add_lshl_u32 v{e0}, v{vROFF}, {KK(i)}, 5")
        else:
            a.e(f"v_lshrrev_b32 v{e0}, 20, v{RC+i}")
            a.e(f"v_add_lshl_u32 v{e0}, v{e0}, v{vEB}, 5")
        a.e(f"v_bfe_u32 v{e1}, v{RC+i}, 6, 14")
        a.e(f"v_mad_u32_u24 v{e1}, v{NA+i}, s{sT}, v{e1}")
    a.e(f"s_mov_b32 s{sT}, 0x420000")
    a.e(f"v_lshlrev_b32 v{vT+2}, 2, v{vL}")
    a.e("s_waitcnt lgkmcnt(0)")
    a.e("s_barrier")
    stamp(a, 6, 252)
    a.e(f"ds_read_b32 v{vT+6}, v{vT+2} offset:{CNT}")
    a.e(f"ds_read_b32 v{vT+5}, v{vT+1}")
    groups(f_ent, "K2_G2")
    a.e("s_waitcnt lgkmcnt(0)")
    a.e(f"v_add_u32 v{vT+3}, 1, v{vT+6}")
    a.e(f"v_lshrrev_b32 v{vT+3}, 1, v{vT+3}")
    a.e(f"v_mov_b32 v{vT+4}, v{vT+3}")
    a.e(f"v_readfirstlane_b32 s{sMore}, v{vT+5}")
    scan64(a, vT+4)
    a.e("s_nop 0")
    a.e(f"v_readlane_b32 s{sT+5}, v{vT+4}, 63")
    a.e(f"v_sub_u32 v{vT+4}, v{vT+4}, v{vT+3}")
    a.e(f"v_lshlrev_b32 v{vT+4}, 4, v{vT+4}")
    a.e(f"s_add_u32 s{sT}, s{sT+5}, 15")
    a.e(f"s_lshr_b32 s{sT}, s{sT}, 4")
    a.e(f"s_cmp_gt_u32 s{sT+5}, 1025")
    a.e("s_cbranch_scc1 K2_TOOBIG")
    groups(lambda i: a.e(f"ds_bpermute_b32 v{NA+i}, v{NA+i}, v{vT+4}"), "K2_G3")
    a.e(f"s_lshr_b32 s{sT+1}, s{sT}, 3")
    a.e(f"s_and_b32 s{sT+2}, s{sT}, 7")
    a.e(f"s_mul_i32 s{sT+3}, s{sT+1}, s{sW}")
    a.e(f"s_min_u32 s{sT+4}, s{sW}, s{sT+2}")
    a.e(f"s_add_u32 s{sT+3}, s{sT+3}, s{sT+4}")
    a.e(f"s_cmp_lt_u32 s{sW}, s{sT+2}")
    a.e(f"s_addc_u32 s{sNT}, s{sT+1}, 0")
    a.e(f"s_lshl_b32 s{sT+3}, s{sT+3}, 8")
    a.e(f"s_add_u32 s{sT+3}, s{sT+3}, {LIST}")
    a.e(f"s_lshl_b32 s{sT+4}, s{sNT}, 7")
    a.e(f"s_max_u32 s{sT+1}, s{sT+1}, 1")
    a.e(f"s_lshl_b32 s{sT+1}, s{sT+1}, 3")
    a.e(f"v_cmp_le_u32 s[{sSusp}:{sSusp+1}], s{sT+1}, v{vT+3}")
    a.e(f"s_cmp_lg_u32 s{sW}, 7")
    a.e("s_cbranch_scc1 K2_NODUM")
    a.e(f"v_mov_b32 v{vT+8}, 0x7ffffff0\nv_mov_b32 v{vT+9}, 0xffff\nv_mov_b32 v{vT+10}, 0x7ffffff0\nv_mov_b32 v{vT+11}, 0xffff")
    a.e(f"v_lshl_add_u32 v{vT+7}, v{vT+6}, 3, v{vT+4}")
    a.e(f"v_and_b32 v{vT+6}, 1, v{vT+6}")
    a.e(f"v_cmp_eq_u32 vcc, 1, v{vT+6}")
    a.e("s_mov_b64 exec, vcc")
    a.e(f"ds_write_b64 v{vT+7}, v[{vT+8}:{vT+9}] offset:{LIST}")
    a.e("s_mov_b32 exec_lo, -1\ns_mov_b32 exec_hi, 0x7f")
    a.e(f"v_add_lshl_u32 v{vT+7}, v{vL}, s{sT+5}, 4")
    a.e(f"ds_write_b128 v{vT+7}, v[{vT+8}:{vT+11}] offset:{LIST}")
    a.e("s_mov_b64 exec, -1")
    a.label("K2_NODUM")
    def rowaddr(dst, vm, extra):
        a.e(f"v_bfe_u32 v{vT+8}, v{vm}, 2, 1")
        a.e(f"v_mul_u32_u24 v{dst}, s{sT+4}, v{vT+8}")
        a.e(f"v_lshrrev_b32 v{vT+8}, 3, v{vm}")
        a.e(f"v_lshl_add_u32 v{dst}, v{vT+8}, 5, v{dst}")
        a.e(f"v_and_b32 v{vT+8}, 3, v{vm}")
        a.e(f"v_lshl_add_u32 v{dst}, v{vT+8}, 3, v{dst}")
        a.e(f"v_add3_u32 v{dst}, v{dst}, s{sT+3}, {extra}")
    a.e(f"s_brev_b32 s{sT+6}, 1")
    a.e("s_waitcnt lgkmcnt(0)")
    def f_place(i):
        a.e(f"v_lshl_add_u32 v{NA+i}, v{RK+i}, 3, v{NA+i}")
        a.e(f"v_add_u32 v{RK+i}, -1, v{RK+i}")
        a.e(f"v_and_or_b32 v{EN+2*i}, v{RK+i}, s{sT+6}, v{EN+2*i}")
        a.e(f"v_cmp_lt_i32 vcc, {KK(i)}, v{vREM}")
        a.e("s_mov_b64 exec, vcc")
        a.e(f"ds_write_b64 v{NA+i}, v[{EN+2*i}:{EN+1+2*i}] offset:{LIST}")
        a.e("s_mov_b64 exec, -1")
    groups(f_place, "K2_G4")
    rowaddr(vAE, vM, 0)
    a.e(f"v_lshrrev_b32 v{vT+9}, 2, v{vL}")
    rowaddr(vAP, vT+9, 4)
    a.e(f"v_lshrrev_b32 v{vT+8}, 5, v{vL}")
    a.e(f"v_mul_u32_u24 v{vAQ}, s{sT+4}, v{vT+8}")
    a.e(f"v_bfe_u32 v{vT+8}, v{vL}, 2, 2")
    a.e(f"v_lshl_add_u32 v{vAQ}, v{vT+8}, 4, v{vAQ}")
    a.e(f"v_add3_u32 v{vAQ}, v{vAQ}, s{sT+3}, 6")
    a.e(f"s_mov_b32 s{sP+2}, {PSIZE}")
    a.e(f"s_mov_b32 s{sE+2}, {ESIZE}")
    a.e(f"s_mov_b32 s{sDm}, -1")
    a.e("s_waitcnt lgkmcnt(0)")
    a.e("s_barrier")
    stamp(a, 7, 252)
    a.e(f"s_cmp_eq_u32 s{sNT}, 0")
    a.e("s_cbranch_scc1 K2_NOTILES")
    adv_se = [f"v_add_u32 v{vAE}, 128, v{vAE}", f"v_add_u32 v{vAP}, 128, v{vAP}"]
    adv_n = [f"v_add_u32 v{vAQ}, 128, v{vAQ}"]
    for s in list_reads_se() + list_reads_n() + adv_se + adv_n: a.e(s)
    a.e("s_waitcnt lgkmcnt(0)")
    for s in addr_se() + addr_q(0): a.e(s)
    for s in list_reads_se(): a.e(s)
    for s in flags_from_vcc(sF0): a.e(s)
    dma_half(a, 0, alt=True)
    a.e(e_load(0))
    dma_half(a, 1)
    a.e(f"ds_read_b128 v[{AQ}:{AQ+3}], v{vLA}")
    for s in qfrag_reads(QY, 0, 0) + qfrag_reads(QX, 1, 0): a.e(s)
    a.e(f"v_cmp_ne_u32 vcc, v{vLA}, v{vCL}")
    a.e(f"v_mov_b32_dpp v{vFA}, v{vQA} row_newbcast:0 row_mask:0xf bank_mask:0xf")
    for s in adv_se: a.e(s)
    a.e(f"s_mov_b32 s{sDm}, vcc_lo")
    a.e(f"v_lshl_add_u32 v{vFA}, v{vFA}, 1, v{vCA}")
    a.e(f"s_cmp_lt_u32 s{sNT}, 2")
    a.e(f"s_cselect_b32 s{sP+2}, 0, s{sP+2}")
    a.e(f"s_cselect_b32 s{sE+2}, 0, s{sE+2}")
    a.e("s_waitcnt lgkmcnt(9)")
    for s in addr_se(): a.e(s)
    for s in list_reads_se() + list_reads_n(): a.e(s)
    for s in flags_from_vcc(sF1): a.e(s)
    dma_half(a, 0)
    a.e(e_load(1))
    a.e(f"s_cmp_eq_u32 s{sFirst}, 0")
    a.e("s_cbranch_scc1 K2_NOX")
    gemm8(a, ACX, 96, 64)
    a.label("K2_NOX")
    for s in adv_se + adv_n: a.e(s)
    for c in range(4):
        a.e(f"v_mov_b32 v{NN+2*c}, 0\nv_mov_b32 v{NN+2*c+1}, 0\nv_mov_b32 v{DD+2*c}, 1.0\nv_mov_b32 v{DD+2*c+1}, 1.0")
    a.e(f"v_mov_b32 v{vCUR}, v{vSD}\nv_mov_b32 v{vCUR+1}, v{vSD}")
    a.e(f"s_sub_u32 s{sT}, s{sW4k}, s{sM0}")
    a.e(f"s_add_u32 s{sT}, s{sT}, {WU2 - 256}")
    a.e(f"v_add_u32 v{vT}, s{sT}, v{vRP0}")
    a.e(f"v_add_u32 v{vT+1}, s{sT}, v{vRP1}")
    a.e("s_waitcnt vmcnt(5)")
    for tq in range(2):
        for s in range(2):
            r = PY + 8 * tq + 4 * s
            a.e(f"ds_read_b128 v[{r}:{r+3}], v{vT+s} offset:{tq*2048}")
    for s in pfrag_reads(PX, 1): a.e(s)
    mf = mfmas(0, PY, QY, 0)
    a.e("s_waitcnt lgkmcnt(8)")
    for s in mf[:4]: a.e(s)
    a.e("s_waitcnt lgkmcnt(0)")
    dma_half(a, 1)
    for s in mf[4:]: a.e(s)
    stamp(a, 8, 252)
    if cfg.dbg:
        a.e("s_memtime s[90:91]\ns_waitcnt lgkmcnt(0)\nv_writelane_b32 v252, s90, 14")
    a.e(f"s_mov_b32 s{sCnt}, s{sNT}")
    a.e("s_nop 7")
    def lstamp(x):
        if not cfg.dbg: return
        a.e("s_memrealtime s[90:91]")
        a.e(f"s_lshl_b32 s92, s{sCnt}, 1")
        a.e(f"s_add_u32 s92, s92, {x}")
        a.e("s_mov_b32 m0, s92")
        a.e("s_waitcnt lgkmcnt(0)")
        a.e("v_writelane_b32 v252, s90, m0")
    def iteration(par):
        exA = {
            "pre": ["s_waitcnt vmcnt(5)"] + pfrag_reads(PY, 0),
            0: addr_q(1 - par) + [f"s_cmp_lt_u32 s{sCnt}, 3", f"s_cselect_b32 s{sP+2}, 0, s{sP+2}", f"s_cselect_b32 s{sE+2}, 0, s{sE+2}"]
               + addr_se()[:3] + addr_se()[4:],
            1: qfrag_reads(QY, 0, 1 - par) + flags_from_vcc(sF2),
            2: ["s_waitcnt lgkmcnt(4)"] + sum(dma_ops(0)[:2], []),
            3: sum(dma_ops(0)[2:], []) + [e_load(par)],
            4: [f"ds_read_b128 v[{AQ}:{AQ+3}], v{vLA}", addr_se()[3],
                f"s_cmp_lg_u32 s{sCnt}, 1", f"s_cbranch_scc0 WU2_{par}", f"WU2R_{par}:"],
            7: ["s_waitcnt lgkmcnt(0)"],
        }
        half_step(a, ool, 0, par, exA, f"A{par}")
        ool.label(f"WU2_{par}")
        w_dma(ool, sWu, vWC, sW4k, 32768, WU2, sT)
        ool.e(f"s_branch WU2R_{par}")
        exB = {
            "pre": ["s_waitcnt vmcnt(5)"] + pfrag_reads(PX, 1),
            0: qfrag_reads(QX, 1, 1 - par),
            2: ["s_waitcnt lgkmcnt(4)"] + sum(dma_ops(1)[:2], []),
            3: sum(dma_ops(1)[2:], []),
            4: list_reads_se() + list_reads_n(),
            5: adv_se + adv_n,
            7: ["s_waitcnt lgkmcnt(0)"],
        }
        lstamp(17)
        half_step(a, ool, 1, par, exB, f"B{par}")
        lstamp(16)
        a.e(f"s_mov_b32 s{sF0}, s{sF1}")
        a.e(f"s_mov_b32 s{sF1}, s{sF2}")
        a.e(f"s_sub_u32 s{sCnt}, s{sCnt}, 1")
        a.e(f"s_cmp_eq_u32 s{sCnt}, 0")
    a.label("K2_LOOP")
    iteration(0)
    a.e("s_cbranch_scc1 K2_LEND")
    iteration(1)
    a.e("s_cbranch_scc0 K2_LOOP")
    a.label("K2_LEND")
    stamp(a, 9, 252)
    if cfg.dbg:
        a.e("s_memtime s[90:91]\ns_waitcnt lgkmcnt(0)\nv_writelane_b32 v252, s90, 15")
    flush_code(a, 0, 0)
    flush_code(a, 2, 1)
    for c in range(4):
        a.e(f"ds_read_b32 v{vT+16+c}, v{vSD} offset:{128*c}")
    a.label("K2_AFTER")
    a.e(f"s_mov_b32 s{sFirst}, 0")
    a.e(f"s_bitcmp0_b32 s{sDm}, 0")
    a.e(f"s_cselect_b32 s{sX0}, -1, 0")
    a.e(f"s_bitcmp0_b32 s{sDm}, 4")
    a.e(f"s_cselect_b32 s{sX0+1}, -1, 0")
    a.e("s_waitcnt vmcnt(0) lgkmcnt(0)")
    a.e("s_barrier")
    a.e(f"s_mov_b64 exec, s[{sX0}:{sX0+1}]")
    a.e(f"s_cmp_lg_u64 s[{sSusp}:{sSusp+1}], 0")
    a.e("s_cbranch_scc1 K2_ATOM")
    for c in range(4):
        a.e(f"ds_read_b32 v{vT+20+c}, v{vFA} offset:{128*c}")
    for c in range(4):
        a.e(f"s_waitcnt lgkmcnt({3})")
        a.e(f"v_add_f32 v{vT+20+c}, v{vT+20+c}, v{vT+16+c}")
        a.e(f"ds_write_b32 v{vFA}, v{vT+20+c} offset:{128*c}")
    a.label("K2_MERGED")
    a.e("s_mov_b64 exec, -1")
    a.e(f"v_add_u32 v{vT+4}, {WU2}, v{vWA}")
    wfrag_read(a, 128, vT+4)
    a.e(f"s_lshr_b32 s{sT+1}, s{sW}, 2")
    a.e(f"s_lshl_b32 s{sT+1}, s{sT+1}, 5")
    a.e(f"v_add_u32 v{vT+8}, s{sT+1}, v{vM}")
    a.e(f"v_mul_u32_u24 v{vT+9}, 528, v{vT+8}")
    a.e(f"v_lshl_add_u32 v{vT+9}, v{vH16}, 1, v{vT+9}")
    a.e("s_waitcnt lgkmcnt(0)")
    a.e("s_barrier")
    stamp(a, 10, 252)
    a.e(f"s_cmp_lg_u32 s{sMore}, 0")
    a.e("s_cbranch_scc1 K2_MORE")
    for s in range(8):
        for u in range(2):
            r = 64 + 8 * s + 4 * u
            a.e(f"ds_read_b128 v[{r}:{r+3}], v{vT+9} offset:{AGG + 64*s + 16*u}")
    a.e(f"v_lshlrev_b32 v{vT+10}, 8, v{vT+8}")
    a.e(f"v_lshl_add_u32 v{vT+10}, v{vH16}, 1, v{vT+10}")
    a.e(f"s_and_b32 s{sT+1}, s{sW}, 3")
    a.e(f"s_lshl_b32 s{sT+1}, s{sT+1}, 6")
    a.e(f"v_add_u32 v{vT+10}, s{sT+1}, v{vT+10}")
    for s in range(8):
        a.e(f"s_waitcnt lgkmcnt({14-2*s})")
        for i in range(4):
            a.e(f"v_cvt_pk_bf16_f32 v{64+8*s+i}, v{64+8*s+2*i}, v{65+8*s+2*i}")
        if s:
            c = "0" if s == 1 else "v[160:175]"
            a.e(f"v_mfma_f32_32x32x16_bf16 v[160:175], v[{128+4*(s-1)}:{131+4*(s-1)}], v[{64+8*(s-1)}:{67+8*(s-1)}], {c}")
    a.e(f"s_mov_b32 s{sT}, {LN2_NEG}")
    a.e(f"v_mfma_f32_32x32x16_bf16 v[160:175], v[156:159], v[120:123], v[160:175]")
    a.e(f"s_mov_b32 s{sT+1}, {LOG2E_NEG}")
    a.e(f"v_cmp_gt_u32 s[{sX0}:{sX0+1}], 50, v{vT+8}")
    a.e(f"s_mov_b32 s{sT+2}, 0x7b800000")
    a.e(f"v_cmp_le_f32 s[{sX0+2}:{sX0+3}], s{sT+2}, v{vCHK}")
    a.e(f"v_mov_b32 v{vT+11}, 0x207")
    a.e("s_nop 7")
    a.e(f"v_cmp_class_f32 vcc, v160, v{vT+11}")
    for i in range(16):
        a.e(f"v_fma_f32 v{160+i}, v{160+i}, s{sT}, v{ACX+i}")
    a.e(f"s_and_b64 vcc, vcc, s[{sX0}:{sX0+1}]")
    a.e(f"s_or_b64 s[{sX0+2}:{sX0+3}], vcc, s[{sX0+2}:{sX0+3}]")
    for hf in range(2):
        R = range(8 * hf, 8 * hf + 8)
        for i in R: a.e(f"v_mul_f32 v{64+i}, s{sT+1}, v{160+i}")
        for i in R: a.e(f"v_exp_f32 v{64+i}, v{64+i}")
        for i in R: a.e(f"v_add_f32 v{64+i}, 1.0, v{64+i}")
        for i in R: a.e(f"v_rcp_f32 v{64+i}, v{64+i}")
        for i in R: a.e(f"v_mul_f32 v{64+i}, v{160+i}, v{64+i}")
        for i in range(4 * hf, 4 * hf + 4): a.e(f"v_cvt_pk_bf16_f32 v{80+i}, v{64+2*i}, v{65+2*i}")
        o = " offset:16" if hf else ""
        a.e(f"buffer_store_dwordx4 v[{80+4*hf}:{83+4*hf}], v{vT+10}, s[{sO}:{sO+3}], 0 offen{o} {cfg.o_pol}")
    stamp(a, 11, 252)
    if cfg.dbg:
        a.e("s_waitcnt vmcnt(0)")
        a.e(f"v_writelane_b32 v252, s{sNT}, 13")
    stamp(a, 12, 252)
    stamp_out(a, 252, 253, 1)
    if cfg.x: a.e("s_branch K2_END")
    a.e(f"s_cmp_lg_u32 s{sSafe}, 0")
    a.e("s_cbranch_scc1 K2_END")
    a.e(f"v_mov_b32 v{vT}, 1")
    a.e(f"v_mov_b32 v{vT+1}, {FLG+4}")
    a.e(f"s_mov_b64 exec, s[{sX0+2}:{sX0+3}]")
    a.e(f"ds_write_b32 v{vT+1}, v{vT}")
    a.e("s_mov_b64 exec, -1")
    a.e("s_waitcnt lgkmcnt(0)")
    a.e("s_barrier")
    a.e(f"ds_read_b32 v{vT}, v{vT+1}")
    a.e("s_waitcnt lgkmcnt(0)")
    a.e(f"v_readfirstlane_b32 s{sT}, v{vT}")
    a.e("s_nop 3")
    a.e(f"s_cmp_lg_u32 s{sT}, 0")
    a.e("s_cbranch_scc1 K2_SAFE")
    a.label("K2_END")
    a.e("s_endpgm")
    a.lines += ool.lines
    a.label("K2_NOTILES")
    a.e(f"s_cmp_eq_u32 s{sFirst}, 0")
    a.e("s_cbranch_scc1 K2_NOX2")
    gemm8(a, ACX, 96, 64)
    a.label("K2_NOX2")
    w_dma(a, sWu, vWC, sW4k, 32768, WU2, sT)
    a.e(f"v_mov_b32 v{vFA}, v{vSD}")
    a.e("s_branch K2_AFTER")
    a.label("K2_ATOM")
    for c in range(4):
        a.e(f"ds_add_f32 v{vFA}, v{vT+16+c} offset:{128*c}")
    a.e("s_branch K2_MERGED")
    a.label("K2_SAFE")
    a.e("s_waitcnt vmcnt(0)")
    a.e("s_barrier")
    a.e(f"s_mov_b32 s{sSafe}, 0x0a0a0a0a")
    a.e(f"s_mov_b32 s{sDone}, 0")
    reset_round(a, True)
    a.e("s_branch K2_ROUND")
    a.label("K2_MORE")
    a.e(f"s_add_u32 s{sDone}, s{sDone}, s{sLim}")
    a.e("s_branch K2_RESET")
    a.label("K2_TOOBIG")
    a.e("s_barrier")
    a.e(f"s_mov_b32 s{sLim}, 8")
    a.label("K2_RESET")
    reset_round(a, False)
    a.label("K2_ROUND")
    rec_loads()
    a.e("s_waitcnt vmcnt(0) lgkmcnt(0)")
    a.e("s_barrier")
    a.e("s_branch K2_COUNT")

HEADER = open("cdna_kernels/" + NAME + ".s.ref").read().split("; Override launch")[0]
def generate():
    a = Asm()
    gen_k1(a)
    gen_k2(a)
    if cfg.rep:
        k, wg, idx = [int(v) for v in cfg.rep.split(",")]
        kernel_head(a, "rep_kernel")
        a.e("s_load_dwordx2 s[20:21], s[0:1], 64")
        a.e("s_cmp_lg_u32 s2, 0")
        a.e("s_cbranch_scc1 REP_END")
        a.e("s_waitcnt lgkmcnt(0)")
        srd(a, 8, S_WS, off_c=WS_DBG, size=0x200000)
        a.e(f"v_mov_b32 v1, 0")
        a.e(f"v_mov_b32 v2, {k*0x100000 + wg*2048 + idx*4}")
        a.e("buffer_load_dword v3, v1, s[8:11], 0 offen")
        a.e("buffer_load_dword v4, v2, s[8:11], 0 offen")
        a.e("s_waitcnt vmcnt(0)")
        a.e("v_sub_u32 v3, v4, v3")
        a.e("v_min_u32 v3, 8000, v3")
        a.e("v_lshlrev_b32 v3, 2, v3")
        a.e("s_nop 1")
        a.e("v_readfirstlane_b32 s12, v3")
        a.e("s_memrealtime s[14:15]")
        a.e("s_waitcnt lgkmcnt(0)")
        a.label("REP_L")
        a.e("s_memrealtime s[16:17]")
        a.e("s_waitcnt lgkmcnt(0)")
        a.e("s_sub_u32 s13, s16, s14")
        a.e("s_cmp_lt_u32 s13, s12")
        a.e("s_cbranch_scc1 REP_L")
        a.label("REP_END")
        a.e("s_endpgm")
    body = a.text()
    probs = check_text(body)
    for p in probs: print("HAZARD", p, file=sys.stderr)
    k1lds = K1_LDS_A if cfg.modeA else K1_LDS_B
    out = HEADER
    out += f"; @launch kernel=prep_kernel grid=(506,1,1) block=(512,1,1) lds={k1lds}\n"
    out += f"; @launch kernel={NAME}_kernel grid=(250,1,1) block=(512,1,1) lds={K2_LDS}\n"
    if cfg.rep: out += "; @launch kernel=rep_kernel grid=(1,1,1) block=(64,1,1) lds=0\n"
    out += '.amdgcn_target "amdgcn-amd-amdhsa--gfx950"\n' + body
    out += '.section .rodata,"a"\n.p2align 6\n' + kernel_desc("prep_kernel", 100 if cfg.dbg else 96, 96 if cfg.dbg else 64) + ".p2align 6\n" + kernel_desc(NAME + "_kernel", 256, 96)
    if cfg.rep: out += ".p2align 6\n" + kernel_desc("rep_kernel", 8, 32)
    return out

if __name__ == "__main__":
    outp = sys.argv[1]
    for kv in sys.argv[2:]:
        k, v = kv.split("=", 1)
        cur = getattr(cfg, k)
        setattr(cfg, k, (v not in ("0", "False")) if isinstance(cur, bool) else int(v, 0) if isinstance(cur, int) else v)
    open(outp, "w").write(generate())
```

```python
import re

class Asm:
    def __init__(self):
        self.lines = []
        self.uid = 0
    def e(self, s):
        for ln in s.split("\n"):
            ln = ln.strip()
            if ln:
                self.lines.append(ln)
    def label(self, name):
        self.lines.append(name + ":")
    def c(self, s):
        self.lines.append("; " + s)
    def newlabel(self, p="L"):
        self.uid += 1
        return f"{p}_{self.uid}"
    def text(self):
        out = []
        for ln in self.lines:
            if ln.endswith(":") or ln.startswith(".") :
                out.append(ln)
            else:
                out.append("    " + ln)
        return "\n".join(out) + "\n"

def vr(base, n=1):
    return f"v{base}" if n == 1 else f"v[{base}:{base+n-1}]"
def sr(base, n=1):
    return f"s{base}" if n == 1 else f"s[{base}:{base+n-1}]"

_reg = re.compile(r"\b([vsa])(\d+)\b|\b([vsa])\[(\d+):(\d+)\]|\b(vcc|exec|m0|vcc_lo|vcc_hi|exec_lo|exec_hi)\b")
def regs_of(op):
    out = []
    for m in _reg.finditer(op):
        if m.group(1):
            out.append(m.group(1) + m.group(2))
        elif m.group(3):
            out += [m.group(3) + str(i) for i in range(int(m.group(4)), int(m.group(5)) + 1)]
        else:
            g = m.group(6)
            out.append("vcc" if g.startswith("vcc") else "exec" if g.startswith("exec") else g)
    return out

TRANS = ("v_exp_f32", "v_rcp_f32", "v_log_f32", "v_rsq_f32", "v_sqrt_f32")
def parse(ln):
    ln = ln.split(";")[0].strip()
    if not ln or ln.endswith(":") or ln.startswith("."):
        return None
    parts = ln.split(None, 1)
    op = parts[0]
    rest = parts[1] if len(parts) > 1 else ""
    ops = [o.strip() for o in re.split(r",(?![^\[]*\])", rest)] if rest else []
    d = dict(op=op, dst=[], src=[], kind="other", text=ln)
    allr = lambda lst: [r for o in lst for r in regs_of(o)]
    if op.startswith("v_smfmac"):
        d["kind"] = "mfma"; d["dst"] = regs_of(ops[0]); d["A"] = regs_of(ops[1]); d["B"] = regs_of(ops[2]) + regs_of(ops[3]); d["C"] = d["dst"]
        d["src"] = d["A"] + d["B"] + d["C"]
        d["passes"] = 8
    elif op.startswith("v_mfma"):
        d["kind"] = "mfma"; d["dst"] = regs_of(ops[0]); d["A"] = regs_of(ops[1]); d["B"] = regs_of(ops[2]); d["C"] = regs_of(ops[3])
        d["src"] = d["A"] + d["B"] + d["C"]
        d["passes"] = 8 if "32x32" in op else 4
    elif op.startswith("v_cmpx"):
        d["kind"] = "valu"; d["dst"] = regs_of(ops[0]) + ["exec"]; d["src"] = allr(ops[1:])
    elif op.startswith("v_cmp"):
        d["kind"] = "valu"; d["dst"] = regs_of(ops[0]); d["src"] = allr(ops[1:])
    elif op.startswith("v_readfirstlane") or op.startswith("v_readlane"):
        d["kind"] = "valu"; d["dst"] = regs_of(ops[0]); d["src"] = allr(ops[1:]); d["readlane"] = True
    elif op.startswith("v_permlane"):
        d["kind"] = "valu"; d["dst"] = allr(ops[:2]); d["src"] = allr(ops[:2]); d["permlane"] = True
    elif op.startswith("v_"):
        d["kind"] = "valu"; d["dst"] = regs_of(ops[0]); d["src"] = allr(ops[1:])
        if op.startswith(("v_add_co", "v_addc_co", "v_sub_co")):
            d["dst"] += regs_of(ops[1]); d["src"] = allr(ops[2:])
        if op.startswith("v_fmac") or "_dpp" in op:
            d["src"] += d["dst"]
        if "_dpp" in op: d["dpp"] = True
        if op.split("_e")[0] in TRANS or op in TRANS: d["trans"] = True
    elif op.startswith("ds_"):
        d["kind"] = "ds"
        if op.startswith(("ds_read", "ds_bpermute", "ds_permute", "ds_swizzle")) or "_rtn" in op:
            d["dst"] = regs_of(ops[0]); d["src"] = allr(ops[1:])
        else:
            d["src"] = allr(ops)
    elif op.startswith(("buffer_", "global_")):
        d["kind"] = "vmem"
        islds = ln.rstrip().endswith(" lds") or "_lds_" in op
        if "load" in op and not islds:
            d["dst"] = regs_of(ops[0]); d["src"] = allr(ops[1:])
        else:
            d["src"] = allr(ops)
            if islds: d["src"].append("m0"); d["dma"] = True
            if "store" in op and ("x4" in op or "x3" in op):
                d["widestore"] = regs_of(ops[0]) if op.startswith("buffer") else regs_of(ops[1])
    elif op.startswith("s_"):
        d["kind"] = "salu"
        if op.startswith(("s_cmp", "s_bitcmp", "s_cbranch", "s_branch", "s_waitcnt", "s_barrier", "s_nop", "s_endpgm", "s_setprio", "s_sleep")):
            d["src"] = allr(ops)
        else:
            d["dst"] = regs_of(ops[0]) if ops else []; d["src"] = allr(ops[1:])
            if "saveexec" in op: d["dst"].append("exec")
        if op == "s_nop": d["ws"] = int(ops[0], 0) + 1
    return d

def check_seq(seq, name=""):
    probs = []
    n = len(seq)
    for i, c in enumerate(seq):
        dist = 0
        for j in range(i - 1, max(-1, i - 24), -1):
            p = seq[j]
            need = 0; why = ""
            pd = set(p["dst"])
            if p["kind"] == "valu":
                if c["kind"] == "mfma" and pd & set(c["src"]): need, why = 2, "valu->mfma"
                if c["kind"] == "mfma" and "exec" in pd: need, why = 4, "exec->mfma"
                if p.get("trans") and c["kind"] == "valu" and not c.get("trans") and pd & set(c["src"]): need, why = max(need, 1), "trans->valu"
                if c.get("readlane") and pd & set(r for r in c["src"] if r[0] == "v" and r != "vcc"): need, why = max(need, 1), "valu->readlane"
                if c.get("readlane") and "exec" in pd: need, why = 4, "exec->readlane"
                if c.get("dpp") and pd & set(c["src"]): need, why = max(need, 2), "valu->dpp"
                if c.get("dpp") and "exec" in pd: need, why = 5, "exec->dpp"
                if c.get("permlane") and pd & set(c["src"]): need, why = max(need, 2), "valu->permlane"
                sg = set(r for r in pd if r[0] == "s" or r == "vcc")
                if c["kind"] == "vmem" and sg & set(c["src"]): need, why = 5, "valu sgpr->vmem"
                if c["kind"] == "valu" and (sg & set(c["src"])): need, why = max(need, 4 if c.get("readlane") else 2), "valu sgpr->valu"
            if p["kind"] == "mfma":
                big = {8: 12, 4: 8}[p["passes"]]
                if c["kind"] in ("valu", "vmem", "ds") and (pd & (set(c["src"]) | set(c["dst"]))): need, why = big, "mfma D->use"
                if c["kind"] == "mfma":
                    if pd & (set(c["A"]) | set(c["B"])): need, why = big, "mfma D->AB"
                    elif pd & set(c["C"]) and p["dst"] != c["C"]: need, why = big - 2, "mfma D->C overlap"
                if c["kind"] == "valu" and set(p["C"]) & set(c["dst"]): need, why = max(need, {8: 7, 4: 3}[p["passes"]]), "mfma C WAR"
            if p["kind"] == "salu" and "m0" in pd and c.get("dma"): need, why = 1, "m0->dma"
            if p.get("widestore") and set(p["widestore"]) & set(c["dst"]): need, why = 2, "store data WAR"
            if need > dist:
                probs.append(f"{name}: need {need} have {dist} ({why}): [{p['text']}] -> [{c['text']}]")
            dist += p.get("ws", 1)
    return probs

def check_text(text):
    lines = [l.strip() for l in text.split("\n")]
    instrs = []; labels = {}
    for l in lines:
        l0 = l.split(";")[0].strip()
        if l0.endswith(":"):
            labels[l0[:-1]] = len(instrs); continue
        p = parse(l)
        if p: instrs.append(p)
    probs = []
    seg = []
    for p in instrs:
        seg.append(p)
        if p["op"] in ("s_branch", "s_endpgm"):
            probs += check_seq(seg, "fall"); seg = []
    probs += check_seq(seg, "fall")
    def back(i, n):
        out = []
        j = i
        while j >= 0 and len(out) < n:
            if j != i and instrs[j]["op"] in ("s_branch", "s_endpgm"): break
            out.append(instrs[j]); j -= 1
        return out[::-1]
    def fwd(i, n, depth=0):
        out = []
        j = i
        while j < len(instrs) and len(out) < n:
            out.append(instrs[j])
            if instrs[j]["op"] == "s_endpgm": break
            if instrs[j]["op"] == "s_branch":
                t = instrs[j]["text"].split()[1]
                if t in labels and depth < 3: out += fwd(labels[t], n - len(out), depth + 1)
                break
            j += 1
        return out
    for i, p in enumerate(instrs):
        if p["op"].startswith(("s_cbranch", "s_branch")):
            t = p["text"].split()[1]
            if t in labels:
                probs += check_seq(back(i, 24) + fwd(labels[t], 24), "edge " + t)
    return sorted(set(probs))
```

```python
import sys
from asmlib import *

NAME = "gather_scatter__mpnn_edge_mlp__graph"
class Cfg:
    modeA = False
    wsoff = 0
    st_pol = "sc1"
    ld_pol = "nt"
    e_pol = ""
    prefetchP = 1
    pf0 = False
    early = True
    o_pol = "sc1"
    ot_pol = ""
    touch = 3
    t1pos = 1
    pfn = 384
    pfpos = 1
    nw = '4,4,4,4'
    x_pol = ""
    dbg = False
    lst = False
    x = ""
    rep = ""
cfg = Cfg()

NB = 250; NPB = 50; CH = 1600
WS_P = 0; WS_S01 = 0x320000; WS_REC = 0x900000; WS_OFFT = 0xA90000; WS_W3F = 0xAD0000; WS_WF = 0xAE0000
LOG2E_NEG = "0xbfb8aa3b"
LN2_NEG = "0xbf317218"

S_X, S_E, S_SRC, S_DST, S_WM, S_WU, S_OUT, S_DBG, S_WS = 4, 6, 8, 10, 12, 14, 16, 18, 20

def load_args(a):
    a.e("s_load_dwordx16 s[4:19], s[0:1], 0")
    a.e("s_load_dwordx2 s[20:21], s[0:1], 64")

def srd(a, d, ptr, off_s=None, off_c=0, size=0):
    if off_s is not None:
        a.e(f"s_add_u32 s{d}, s{ptr}, s{off_s}")
        a.e(f"s_addc_u32 s{d+1}, s{ptr+1}, 0")
        if off_c:
            a.e(f"s_add_u32 s{d}, s{d}, {off_c}")
            a.e(f"s_addc_u32 s{d+1}, s{d+1}, 0")
    elif off_c:
        a.e(f"s_add_u32 s{d}, s{ptr}, {off_c}")
        a.e(f"s_addc_u32 s{d+1}, s{ptr+1}, 0")
    else:
        a.e(f"s_mov_b32 s{d}, s{ptr}")
        a.e(f"s_mov_b32 s{d+1}, s{ptr+1}")
    a.e(f"s_mov_b32 s{d+2}, {size}")
    a.e(f"s_mov_b32 s{d+3}, 0x20000")

def idmap(a, dst, src, t):
    a.e(f"s_and_b32 s{t}, s{src}, 7")
    a.e(f"s_lshr_b32 s{dst}, s{src}, 3")
    a.e(f"s_mul_i32 s{t+1}, s{t}, 31")
    a.e(f"s_add_u32 s{dst}, s{dst}, s{t+1}")
    a.e(f"s_min_u32 s{t}, s{t}, 2")
    a.e(f"s_add_u32 s{dst}, s{dst}, s{t}")

def scan64(a, v):
    for sh in (1, 2, 4, 8):
        a.e("s_nop 1")
        a.e(f"v_add_u32_dpp v{v}, v{v}, v{v} row_shr:{sh} row_mask:0xf bank_mask:0xf bound_ctrl:0")
    a.e("s_nop 1")
    a.e(f"v_add_u32_dpp v{v}, v{v}, v{v} row_bcast:15 row_mask:0xa bank_mask:0xf")
    a.e("s_nop 1")
    a.e(f"v_add_u32_dpp v{v}, v{v}, v{v} row_bcast:31 row_mask:0xc bank_mask:0xf")

def x_dma(a, sX, sW, vL, lds_base, t0, st, pol="", strided=False):
    a.e(f"v_lshrrev_b32 v{t0}, 4, v{vL}")
    a.e(f"v_and_b32 v{t0+1}, 15, v{vL}")
    a.e(f"v_xor_b32 v{t0+1}, v{t0+1}, v{t0}")
    a.e(f"v_lshlrev_b32 v{t0+1}, 4, v{t0+1}")
    a.e(f"v_lshl_add_u32 v{t0}, v{t0}, 8, v{t0+1}")
    a.e(f"s_and_b32 s{st}, s{sW}, 1")
    a.e(f"s_lshl_b32 s{st}, s{st}, 7")
    a.e(f"v_xor_b32 v{t0}, s{st}, v{t0}")
    a.e(f"v_xor_b32 v{t0+1}, 64, v{t0}")
    if strided:
        a.e(f"s_lshr_b32 s{st+1}, s{sW}, 1")
        a.e(f"s_lshl_b32 s{st+1}, s{st+1}, 12")
        a.e(f"s_lshl_b32 s{st}, s{sW}, 11")
        a.e(f"s_add_u32 s{st+1}, s{st+1}, s{st}")
        a.e(f"s_add_u32 m0, s{st+1}, {lds_base}")
    else:
        a.e(f"s_lshl_b32 s{st}, s{sW}, 11")
        a.e(f"s_add_u32 m0, s{st}, {lds_base}")
    a.e("s_nop 0")
    a.e(f"buffer_load_dwordx4 v{t0}, s[{sX}:{sX+3}], s{st} offen {pol} lds")
    a.e(f"buffer_load_dwordx4 v{t0+1}, s[{sX}:{sX+3}], s{st} offen offset:1024 {pol} lds")

def w_lane_const(a, vW, vL, t):
    a.e(f"v_lshrrev_b32 v{t}, 4, v{vL}")
    a.e(f"v_and_b32 v{vW}, 15, v{vL}")
    a.e(f"v_lshlrev_b32 v{vW}, 4, v{vW}")
    a.e(f"v_lshlrev_b32 v{t+1}, 6, v{t}")
    a.e(f"v_xor_b32 v{vW}, v{vW}, v{t+1}")
    a.e(f"v_lshl_add_u32 v{vW}, v{t}, 8, v{vW}")

def w_dma(a, sSrd, vW, sW4096, goff, lds_base, st):
    a.e(f"s_add_u32 s{st}, s{sW4096}, {goff}")
    a.e(f"s_add_u32 m0, s{sW4096}, {lds_base}")
    a.e("s_nop 0")
    for i in range(4):
        o = f" offset:{1024*i}" if i else ""
        a.e(f"buffer_load_dwordx4 v{vW}, s[{sSrd}:{sSrd+3}], s{st} offen{o} lds")

def wfrag_const(a, vA, vL, sW, t, st):
    a.e(f"v_lshrrev_b32 v{t}, 5, v{vL}")
    a.e(f"v_bfe_u32 v{t+1}, v{vL}, 2, 2")
    a.e(f"v_lshl_add_u32 v{t}, v{t}, 3, v{t+1}")
    a.e(f"v_lshlrev_b32 v{vA}, 8, v{t}")
    a.e(f"v_and_b32 v{t}, 1, v{vL}")
    a.e(f"v_lshlrev_b32 v{t}, 5, v{t}")
    a.e(f"v_bfe_u32 v{t+2}, v{vL}, 1, 1")
    a.e(f"v_lshl_add_u32 v{t}, v{t+2}, 3, v{t}")
    a.e(f"v_bfe_u32 v{t+2}, v{vL}, 4, 1")
    a.e(f"v_lshl_add_u32 v{t}, v{t+2}, 4, v{t}")
    a.e(f"s_and_b32 s{st}, s{sW}, 3")
    a.e(f"s_lshl_b32 s{st}, s{st}, 6")
    a.e(f"v_add_u32 v{t}, s{st}, v{t}")
    a.e(f"v_lshlrev_b32 v{t+1}, 6, v{t+1}")
    a.e(f"v_xor_b32 v{t}, v{t}, v{t+1}")
    a.e(f"v_add_u32 v{vA}, v{vA}, v{t}")

def wfrag_read(a, dst, vAddr, off=0, stride=4096):
    for s in range(8):
        for u in range(2):
            a.e(f"ds_read_b64_tr_b16 v[{dst+4*s+2*u}:{dst+4*s+2*u+1}], v{vAddr} offset:{off+s*stride+u*1024}")

def xfrag_read(a, dst, vL, sW, lds_base, t, st):
    a.e(f"v_and_b32 v{t}, 31, v{vL}")
    a.e(f"v_lshrrev_b32 v{t+1}, 5, v{vL}")
    a.e(f"v_and_b32 v{t+2}, 15, v{vL}")
    a.e(f"v_xor_b32 v{t+1}, v{t+1}, v{t+2}")
    a.e(f"v_lshlrev_b32 v{t+1}, 4, v{t+1}")
    a.e(f"v_lshl_add_u32 v{t}, v{t}, 8, v{t+1}")
    a.e(f"s_lshr_b32 s{st}, s{sW}, 2")
    a.e(f"s_lshl_b32 s{st}, s{st}, 13")
    a.e(f"s_add_u32 s{st}, s{st}, {lds_base}")
    a.e(f"v_add_u32 v{t}, s{st}, v{t}")
    for s in range(8):
        if s == 0:
            a.e(f"ds_read_b128 v[{dst}:{dst+3}], v{t}")
        else:
            r = t + 1 + (s & 1)
            a.e(f"v_xor_b32 v{r}, {32*s}, v{t}")
            a.e(f"ds_read_b128 v[{dst+4*s}:{dst+4*s+3}], v{r}")

def gemm8(a, acc, A, B, zero=True):
    for s in range(8):
        c = "0" if (s == 0 and zero) else f"v[{acc}:{acc+15}]"
        a.e(f"v_mfma_f32_32x32x16_bf16 v[{acc}:{acc+15}], v[{A+4*s}:{A+4*s+3}], v[{B+4*s}:{B+4*s+3}], {c}")

WS_DBG = 0x2000000
def stamp(a, i, vst):
    if not cfg.dbg: return
    a.e("s_memrealtime s[90:91]")
    a.e("s_waitcnt lgkmcnt(0)")
    a.e(f"v_writelane_b32 v{vst}, s90, {i}")
def stamp_out(a, vst, vt, kidx):
    if not cfg.dbg: return
    srd(a, 92, S_WS, off_c=WS_DBG + kidx * 0x100000, size=0x100000)
    a.e(f"s_lshl_b32 s90, s2, 11")
    a.e(f"v_lshl_add_u32 v{vt}, v0, 2, s90")
    a.e(f"buffer_store_dword v{vst}, v{vt}, s[92:95], 0 offen")

def kernel_head(a, name):
    a.e(".text")
    a.e(f".globl {name}")
    a.e(".p2align 8")
    a.e(f".type {name},@function")
    a.label(name)

def kernel_desc(name, vg, sg):
    acc = (vg + 3) // 4 * 4
    return f""".amdhsa_kernel {name}
  .amdhsa_next_free_vgpr {vg}
  .amdhsa_next_free_sgpr {sg}
  .amdhsa_accum_offset {acc}
  .amdhsa_group_segment_fixed_size 0
  .amdhsa_kernarg_size 72
  .amdhsa_user_sgpr_count 2
  .amdhsa_user_sgpr_kernarg_segment_ptr 1
  .amdhsa_system_sgpr_workgroup_id_x 1
.end_amdhsa_kernel
"""

K1_LDS_A = 16384 + 57344
K1_LDS_B = 49152 + 64*272
def gen_k1(a):
    kernel_head(a, "prep_kernel")
    load_args(a)
    sW, sId, sT = 22, 23, 44
    vL = 1
    a.e(f"v_and_b32 v{vL}, 63, v0")
    a.e(f"v_lshrrev_b32 v2, 6, v0")
    a.e("s_nop 0")
    a.e(f"v_readfirstlane_b32 s{sW}, v2")
    if cfg.dbg: a.e("v_mov_b32 v97, 0")
    stamp(a, 0, 97)
    if cfg.dbg:
        a.e("s_getreg_b32 s90, hwreg(HW_REG_XCC_ID)")
        a.e("s_add_u32 s90, s90, 1")
        a.e("v_writelane_b32 v97, s90, 63")
    a.e("s_cmp_lt_u32 s2, 125")
    a.e("s_cbranch_scc1 K1_BIN")
    a.e("s_cmp_eq_u32 s2, 125")
    a.e("s_cbranch_scc1 K1_W3")
    a.e("s_sub_u32 s3, s2, 128")
    a.e("s_cmp_ge_u32 s3, 250")
    a.e("s_cbranch_scc1 K1_END")
    idmap(a, sId, 3, sT)
    a.e(f"s_mul_i32 s{sT+2}, s{sId}, 12800")
    a.e("s_waitcnt lgkmcnt(0)")
    srd(a, 24, S_X, off_s=sT+2, size=12800)
    srd(a, 28, S_WM, size=272*256)
    srd(a, 32, S_WS, off_s=sT+2, off_c=cfg.wsoff + WS_P, size=12800)
    x_dma(a, 24, sW, vL, 0, 2, sT, cfg.x_pol)
    w_lane_const(a, 4, vL, 5)
    a.e(f"s_lshl_b32 s{sT+3}, s{sW}, 12")
    w_dma(a, 28, 4, sT+3, 0, 16384, sT)
    if cfg.touch:
        a.e(f"s_cmp_lg_u32 s{sW}, 7")
        a.e("s_cbranch_scc1 K1_NOTOUCH")
        a.e(f"s_lshr_b32 s{sT}, s3, 3")
        a.e(f"v_lshlrev_b32 v40, 7, v{vL}")
        if cfg.touch & 1:
            srd(a, 60, S_WM, off_c=32768, size=32768)
            srd(a, 64, S_WU, size=65536)
            a.e(f"s_mul_i32 s{sT+1}, s{sT}, {9*128}")
            a.e("s_mov_b64 exec, 0x1ff")
            a.e(f"buffer_load_dword v41, v40, s[60:63], s{sT+1} offen")
            a.e(f"s_mul_i32 s{sT+1}, s{sT}, {17*128}")
            a.e("s_mov_b64 exec, 0x1ffff")
            a.e(f"buffer_load_dword v42, v40, s[64:67], s{sT+1} offen")
        if cfg.touch & 2:
            a.e("s_mov_b64 exec, 0xf")
            a.e("s_getpc_b64 s[68:69]")
            a.label("K1_PC")
            a.e(f"s_add_u32 s68, s68, {NAME}_kernel-K1_PC")
            a.e("s_addc_u32 s69, s69, 0")
            a.e(f"s_lshl_b32 s{sT+1}, s{sT}, 9")
            a.e(f"v_add_u32 v44, s{sT+1}, v40")
            a.e(f"v_min_u32 v44, K2_CODE_END-{NAME}_kernel-4, v44")
            a.e("v_mov_b32 v45, s69")
            a.e("v_add_co_u32 v44, vcc, s68, v44")
            a.e("s_nop 1")
            a.e("v_addc_co_u32 v45, vcc, 0, v45, vcc")
            a.e("global_load_dword v43, v[44:45], off")
        a.e("s_mov_b64 exec, -1")
        a.label("K1_NOTOUCH")
    wfrag_const(a, 8, vL, sW, 9, sT)
    OT = 49152
    a.e(f"v_and_b32 v12, 31, v{vL}")
    a.e(f"v_lshrrev_b32 v13, 5, v{vL}")
    a.e(f"v_lshlrev_b32 v13, 5, v13")
    a.e(f"v_mul_u32_u24 v12, 272, v12")
    a.e(f"s_lshr_b32 s{sT}, s{sW}, 2")
    a.e(f"s_mul_i32 s{sT}, s{sT}, {32*272}")
    a.e(f"s_and_b32 s{sT+1}, s{sW}, 3")
    a.e(f"s_lshl_b32 s{sT+1}, s{sT+1}, 6")
    a.e(f"s_add_u32 s{sT}, s{sT}, s{sT+1}")
    a.e(f"v_add3_u32 v12, s{sT}, v12, v13")
    a.e(f"v_lshrrev_b32 v13, 4, v0")
    a.e(f"v_lshlrev_b32 v14, 4, v0")
    a.e(f"v_lshl_add_u32 v13, v13, 4, v14")
    a.e("s_waitcnt vmcnt(0)")
    stamp(a, 1, 97)
    a.e("s_barrier")
    xfrag_read(a, 16, vL, sW, 0, 9, sT)
    wfrag_read(a, 48, 8, 16384)
    a.e("s_waitcnt lgkmcnt(0)")
    gemm8(a, 80, 48, 16)
    a.e(f"s_mov_b32 s{sT}, {LOG2E_NEG}")
    a.e("s_nop 15")
    for i in range(16):
        a.e(f"v_mul_f32 v{80+i}, s{sT}, v{80+i}")
    for i in range(8):
        a.e(f"v_cvt_pk_bf16_f32 v{16+i}, v{80+2*i}, v{81+2*i}")
    a.e(f"ds_write_b128 v12, v[16:19] offset:{OT}")
    a.e(f"ds_write_b128 v12, v[20:23] offset:{OT+16}")
    a.e("s_movk_i32 s3, 8192")
    a.e("s_waitcnt lgkmcnt(0)")
    a.e("s_barrier")
    a.e(f"ds_read_b128 v[24:27], v13 offset:{OT}")
    a.e(f"ds_read_b128 v[28:31], v13 offset:{OT+32*272}")
    a.e("s_waitcnt lgkmcnt(1)")
    a.e(f"buffer_store_dwordx4 v[24:27], v14, s[32:35], 0 offen {cfg.st_pol}")
    a.e("s_waitcnt lgkmcnt(0)")
    a.e(f"buffer_store_dwordx4 v[28:31], v14, s[32:35], s3 offen {cfg.st_pol}")
    stamp(a, 2, 97)
    if cfg.dbg: a.e("s_waitcnt vmcnt(0)")
    stamp(a, 3, 97)
    stamp_out(a, 97, 98, 0)
    a.e("s_endpgm")
    SL, FLAG, SORT = 0, 36864, 36880
    a.label("K1_BIN")
    sId = 2
    a.e(f"s_mul_i32 s{sT+2}, s{sId}, 12800")
    a.e(f"s_mul_i32 s{sT+3}, s{sId}, 32000")
    a.e("v_lshlrev_b32 v2, 4, v0")
    a.e("s_movk_i32 s3, 6400")
    a.e("s_movk_i32 s59, 400")
    a.e("v_cmp_gt_u32 s[60:61], s59, v0")
    a.e("s_waitcnt lgkmcnt(0)")
    D, S, BA, RK, AD = 4, 12, 20, 28, 36
    srd(a, 24, S_DST, off_s=sT+2, size=12800)
    a.e(f"buffer_load_dwordx4 v[{D}:{D+3}], v2, s[24:27], 0 offen {cfg.ld_pol}")
    a.e(f"buffer_load_dwordx4 v[{D+4}:{D+7}], v2, s[24:27], s3 offen {cfg.ld_pol}")
    srd(a, 28, S_SRC, off_s=sT+2, size=12800)
    a.e(f"buffer_load_dwordx4 v[{S}:{S+3}], v2, s[28:31], 0 offen {cfg.ld_pol}")
    a.e(f"buffer_load_dwordx4 v[{S+4}:{S+7}], v2, s[28:31], s3 offen {cfg.ld_pol}")
    srd(a, 32, S_WS, off_s=sT+3, off_c=cfg.wsoff + WS_S01, size=32000)
    a.e("v_mov_b32 v44, 1")
    a.e("v_min_u32 v3, 256, v0")
    a.e("v_mul_u32_u24 v3, 144, v3")
    a.e(f"ds_write_b32 v3, v44 offset:{SL}")
    a.e("v_lshlrev_b32 v45, 22, v0")
    a.e("s_movk_i32 s58, 5243")
    a.e("s_movk_i32 s57, 144")
    a.e("v_lshrrev_b32 v46, 3, v0")
    a.e("v_lshl_add_u32 v46, v46, 4, v2")
    a.e(f"v_mov_b32 v48, {FLAG}")
    a.e("s_movk_i32 s62, 8192\ns_movk_i32 s63, 16384\ns_movk_i32 s64, 24576")
    a.e("s_waitcnt lgkmcnt(0)")
    a.e("s_barrier")
    a.e("s_mov_b64 exec, s[60:61]")
    for j in range(2):
        a.e(f"s_waitcnt vmcnt({3-j})")
        if j == 0: stamp(a, 1, 97)
        for i in range(4*j, 4*j+4):
            a.e(f"v_mul_u32_u24 v{AD+i}, s58, v{D+i}")
            a.e(f"v_lshrrev_b32 v{AD+i}, 18, v{AD+i}")
            a.e(f"v_mul_u32_u24 v{BA+i}, s57, v{AD+i}")
            a.e(f"ds_add_rtn_u32 v{RK+i}, v{BA+i}, v44 offset:{SL}")
    for i in range(8):
        a.e(f"v_mul_u32_u24 v{AD+i}, 50, v{AD+i}")
        a.e(f"v_sub_u32 v{D+i}, v{D+i}, v{AD+i}")
        if i: a.e(f"v_add_u32 v45, {hex(((1600-3) if i == 4 else 1) << 20)}, v45")
        a.e(f"v_or_b32 v{D+i}, v{D+i}, v45")
    a.e(f"s_waitcnt vmcnt(0)")
    stamp(a, 4, 97)
    for i in range(8):
        a.e(f"s_waitcnt lgkmcnt(7)")
        a.e(f"v_min_u32 v{AD+i}, 32, v{RK+i}")
        a.e(f"v_lshl_or_b32 v{D+i}, v{S+i}, 6, v{D+i}")
        a.e(f"v_lshl_add_u32 v{AD+i}, v{AD+i}, 2, v{BA+i}")
        a.e(f"ds_write_b32 v{AD+i}, v{D+i} offset:{SL}")
    a.e(f"v_max3_u32 v47, v{RK}, v{RK+1}, v{RK+2}")
    a.e(f"v_max3_u32 v47, v47, v{RK+3}, v{RK+4}")
    a.e(f"v_max3_u32 v47, v47, v{RK+5}, v{RK+6}")
    a.e(f"v_max_u32 v47, v47, v{RK+7}")
    a.e("v_cmpx_le_u32 vcc, 32, v47")
    a.e("ds_write_b32 v48, v47")
    a.e("s_mov_b64 exec, -1")
    a.e("s_waitcnt lgkmcnt(0)")
    stamp(a, 5, 97)
    a.e("s_barrier")
    stamp(a, 6, 97)
    for j in range(4):
        a.e(f"ds_read_b128 v[{52+4*j}:{55+4*j}], v46 offset:{SL + j*9216}")
    a.e(f"ds_read_b32 v49, v48")
    for j in range(4):
        a.e(f"s_waitcnt lgkmcnt({4-j})")
        a.e(f"buffer_store_dwordx4 v[{52+4*j}:{55+4*j}], v2, s[32:35], {['0','s62','s63','s64'][j]} offen {cfg.st_pol}")
    a.e("s_waitcnt lgkmcnt(0)")
    a.e("v_readfirstlane_b32 s3, v49")
    a.e("s_cmp_lg_u32 s3, 1")
    a.e("s_cbranch_scc1 K1_FULL")
    stamp(a, 2, 97)
    if cfg.dbg: a.e("s_waitcnt vmcnt(0)")
    stamp(a, 3, 97)
    stamp_out(a, 97, 98, 0)
    a.label("K1_END")
    a.e("s_endpgm")
    a.label("K1_FULL")
    a.e("s_waitcnt vmcnt(0)")
    a.e(f"s_lshl_b32 s{sT+4}, s{sId}, 2")
    srd(a, 32, S_WS, off_s=sT+2, off_c=cfg.wsoff + WS_REC, size=12800)
    srd(a, 36, S_WS, off_s=sT+4, off_c=cfg.wsoff + WS_OFFT, size=250*1024 - 1000)
    a.e(f"v_mul_u32_u24 v3, {4*144}, v{vL}")
    for i in range(4):
        a.e(f"ds_read_b32 v{52+i}, v3 offset:{SL + 144*i}")
    a.e("s_waitcnt lgkmcnt(0)")
    for i in range(4):
        a.e(f"v_add_u32 v{52+i}, -1, v{52+i}")
    a.e("v_add_u32 v56, v52, v53")
    a.e("v_add_u32 v57, v56, v54")
    a.e("v_add_u32 v58, v57, v55")
    a.e("v_mov_b32 v60, v58")
    scan64(a, 60)
    a.e("v_sub_u32 v60, v60, v58")
    a.e("v_add_u32 v61, v60, v52")
    a.e("v_add_u32 v62, v60, v56")
    a.e("v_add_u32 v63, v60, v57")
    for i in range(4):
        a.e(f"ds_write_b32 v3, v{60+i} offset:{SL + 144*i + 132}")
    a.e(f"s_cmp_lg_u32 s{sW}, 7")
    a.e("s_cbranch_scc1 K1_NOFFT")
    a.e(f"v_lshlrev_b32 v59, 12, v{vL}")
    for i in range(4):
        o = f" offset:{1024*i}" if i else ""
        a.e(f"buffer_store_dword v{60+i}, v59, s[36:39], 0 offen{o}")
    a.label("K1_NOFFT")
    a.e("s_mov_b64 exec, s[60:61]")
    a.e("s_waitcnt lgkmcnt(0)")
    for i in range(8):
        a.e(f"ds_read_b32 v{BA+i}, v{BA+i} offset:{SL + 132}")
    a.e("s_waitcnt lgkmcnt(0)")
    for i in range(8):
        a.e(f"v_add_lshl_u32 v{BA+i}, v{BA+i}, v{RK+i}, 2")
        a.e(f"ds_write_b32 v{BA+i}, v{D+i} offset:{SORT - 4}")
    a.e("s_mov_b64 exec, -1")
    a.e("s_waitcnt lgkmcnt(0)")
    a.e("s_barrier")
    a.e(f"ds_read_b128 v[4:7], v2 offset:{SORT}")
    a.e(f"ds_read_b128 v[8:11], v2 offset:{SORT + 8192}")
    a.e(f"s_waitcnt lgkmcnt(0)")
    a.e(f"buffer_store_dwordx4 v[4:7], v2, s[32:35], 0 offen")
    a.e(f"buffer_store_dwordx4 v[8:11], v2, s[32:35], s62 offen")
    a.e("s_endpgm")
    a.label("K1_W3")
    a.e("s_waitcnt lgkmcnt(0)")
    srd(a, 24, S_WM, off_c=65536, size=4096)
    srd(a, 28, S_WS, off_c=cfg.wsoff + WS_W3F, size=4096)
    a.e("v_and_b32 v3, 31, v0")
    a.e("v_lshlrev_b32 v3, 1, v3")
    a.e("v_bfe_u32 v4, v0, 5, 1")
    a.e("v_lshl_add_u32 v3, v4, 11, v3")
    a.e("v_bfe_u32 v4, v0, 6, 2")
    a.e("v_lshl_add_u32 v3, v4, 6, v3")
    for j in range(8):
        o = f" offset:{256*j}" if j else ""
        a.e(f"buffer_load_ushort v{8+j}, v3, s[24:27], 0 offen{o}")
    a.e(f"s_mov_b32 s{sT}, {LOG2E_NEG}")
    a.e("v_lshlrev_b32 v4, 4, v0")
    a.e("s_waitcnt vmcnt(0)")
    for j in range(8):
        a.e(f"v_lshlrev_b32 v{8+j}, 16, v{8+j}")
        a.e(f"v_mul_f32 v{8+j}, s{sT}, v{8+j}")
    for j in range(4):
        a.e(f"v_cvt_pk_bf16_f32 v{16+j}, v{8+2*j}, v{9+2*j}")
    a.e(f"buffer_store_dwordx4 v[16:19], v4, s[28:31], 0 offen {cfg.st_pol}")
    a.e("s_endpgm")

CNT, FLG, LUT, QL, LIST, AGG, SIDE, WU2, STG = 0, 256, 288, 576, 13776, 30800, 57200, 65536, 98304
MAXT = 65
K2_LDS = 163840
vL, vM = 1, 2
vOC, vREM, vROFF, vEB = 3, 4, 5, 6
vAE, vAP, vAQ = 7, 8, 9
vCP, vRP0, vRP1, vCQ, vCL, vCA, vH16, vFA = 10, 11, 12, 13, 14, 15, 16, 17
vPA = 18
vEA, vLA = 20, 21
vQA = 22
vRS = 26
vRN = 28
vRE = 30
vSD = 31
vCUR = 32
vCHK = 34
vWC, vWA = 35, 36
vPF = 38
vT = 40
Z = 64; PX = 128; PY = 144; QX = 160; QY = 168; EE = 176; AQ = 184; AP = 188; IDX = 192; W3 = 196
NN = 212; DD = 220; EX = 228; TT = 232; ACX = 236
sP, sE, sX, sO, sR, sWm, sWu, sOT = 24, 28, 32, 36, 40, 44, 48, 52
sW, sBin, sNT, sCnt, sF0, sF1, sF2, sLim, sDone, sSafe, sW4k, sM0, sMask, sMore, sFirst, sDm = 22, 23, 56, 57, 58, 59, 60, 61, 62, 63, 64, 65, 66, 67, 68, 69
sT = 70
sX0 = 80
sSusp = 88
PSIZE = 12500 * 256
ESIZE = 400000 * 32

def dma_ops(H, dest=None):
    out = []
    if dest is None: dest = H
    for tq in range(2):
        for ah in range(2):
            imm = (2 * H + tq) * 64
            o = f" offset:{imm}" if imm else ""
            m = f"s_add_u32 m0, s{sW4k}, {WU2 + tq*2048 + ah*1024 - imm}" if dest == "alt" else f"s_add_u32 m0, s{sM0}, {dest*4096 + tq*2048 + ah*1024 - imm + 256}"
            out.append([m, "s_nop 0", f"buffer_load_dwordx4 v{vPA+ah}, s[{sP}:{sP+3}], 0 offen{o} lds"])
    return out
def dma_half(a, H, dest=None):
    for s in sum(dma_ops(H, dest), []): a.e(s)
def pfrag_reads(dst, H, va=None, base=None):
    out = []
    va = vRP0 if va is None else va
    for tq in range(2):
        for q in range(4):
            r = dst + 8 * tq + 2 * q
            out.append(f"ds_read_b64_tr_b16 v[{r}:{r+1}], v{va} offset:{(2*H+tq)*2048 + q*256}")
    return out
def qfrag_reads(dst, H, par):
    out = []
    for tq in range(2):
        for u in range(2):
            r = dst + 4 * tq + 2 * u
            out.append(f"ds_read_b64_tr_b16 v[{r}:{r+1}], v{vQA+2*par+u} offset:{(2*H+tq)*64}")
    return out
def list_reads_se():
    return [f"ds_read_b32 v{vRE}, v{vAE}", f"ds_read_u16 v{vRS}, v{vAP}", f"ds_read_u16 v{vRS+1}, v{vAP} offset:64"]
def list_reads_n():
    return [f"ds_read_u16 v{vRN}, v{vAQ}", f"ds_read_u16 v{vRN+1}, v{vAQ} offset:64"]
def addr_se():
    return [f"v_lshl_add_u32 v{vPA}, v{vRS}, 8, v{vCP}", f"v_lshl_add_u32 v{vPA+1}, v{vRS+1}, 8, v{vCP}",
            f"v_and_or_b32 v{vEA}, v{vRE}, s{sMask}, v{vH16}", f"v_and_or_b32 v{vLA}, v{vRE}, 16, v{vCL}",
            f"v_cmp_gt_i32 vcc, 0, v{vRE}"]
def flags_from_vcc(sF):
    return [f"s_or_b32 s{sF}, vcc_lo, s{sSafe}"]
def addr_q(par):
    return [f"v_add_u32 v{vQA+2*par}, v{vRN}, v{vCQ}", f"v_add_u32 v{vQA+2*par+1}, v{vRN+1}, v{vCQ}"]
def e_load(par):
    return f"buffer_load_dwordx4 v[{EE+4*par}:{EE+4*par+3}], v{vEA}, s[{sE}:{sE+3}], 0 offen {cfg.e_pol}"
def mfmas(c0, Pset, Qset, epar):
    out = []
    zz = lambda c: f"v[{Z+16*c}:{Z+16*c+15}]"
    f4 = lambda r: f"v[{r}:{r+3}]"
    M = "v_mfma_f32_32x32x16_bf16"
    for i in range(2): out.append(f"{M} {zz(c0+i)}, {f4(EE+4*epar)}, {f4(W3+4*(c0+i))}, 0")
    for i in range(2): out.append(f"{M} {zz(c0+i)}, {f4(AQ)}, {f4(Qset+4*i)}, {zz(c0+i)}")
    for i in range(2): out.append(f"v_smfmac_f32_32x32x32_bf16 {zz(c0+i)}, {f4(AP)}, v[{Pset+8*i}:{Pset+8*i+7}], v{IDX}")
    return out
p2 = lambda r: f"v[{r}:{r+1}]"
def flush_code(a, c0, X, mid=()):
    t = vT + 8 * X
    for i in range(2):
        a.e(f"ds_read_b32 v{t+4+i}, v{vCUR+X} offset:{128*(c0+i)}")
    for i in range(2):
        c = c0 + i
        a.e(f"v_rcp_f32 v{t+2*i}, v{DD+2*c}")
        a.e(f"v_rcp_f32 v{t+2*i+1}, v{DD+2*c+1}")
    for i in range(2):
        c = c0 + i
        a.e(f"v_max3_f32 v{vCHK}, v{DD+2*c}, v{DD+2*c+1}, v{vCHK}")
    for s in mid: a.e(s)
    a.e("s_waitcnt lgkmcnt(0)")
    for j in range(2):
        for i in range(2):
            c = c0 + i
            a.e(f"v_fmac_f32 v{t+4+i}, v{NN+2*c+j}, v{t+2*i+j}")
    for i in range(2):
        a.e(f"ds_write_b32 v{vCUR+X}, v{t+4+i} offset:{128*(c0+i)}")

def half_step(a, ool, X, par, extras, tag):
    c0 = 2 * X
    if X == 0: mf = mfmas(2, PX, QX, par)
    else:      mf = mfmas(0, PY, QY, 1 - par)
    def keep(s):
        if "nodma" in cfg.x and (" lds" in s or "m0" in s or s == "s_nop 0"): return False
        if "noe" in cfg.x and s.startswith("buffer_load") and " lds" not in s: return False
        if "nods" in cfg.x and s.startswith("ds_read"): return False
        if "nowait" in cfg.x and s.startswith("s_waitcnt"): return False
        return True
    extras = {k: [s for s in v if keep(s)] for k, v in extras.items()}
    for s in extras.get("pre", []): a.e(s)
    for k in range(8):
        if "nomfma" not in cfg.x and k < len(mf): a.e(mf[k])
        for i in range(2):
            z = Z + 16 * (c0 + i) + 2 * k
            a.e(f"v_exp_f32 v{EX+2*i}, v{z}")
            a.e(f"v_exp_f32 v{EX+2*i+1}, v{z+1}")
        for s in extras.get(k, []): a.e(s)
        bit = 8 * (k >> 1) + 2 * (k & 1)
        lf, lb = f"F_{tag}_{k}", f"R_{tag}_{k}"
        if "nobr" not in cfg.x:
            a.e(f"s_and_b32 s{sT}, s{sSafe if 'nofl' in cfg.x else sF0}, {hex(0x13 << bit)}")
            a.e(f"s_cbranch_scc1 {lf}")
        for i in range(2):
            c = c0 + i; z = Z + 16 * c + 2 * k
            a.e(f"v_pk_fma_f32 {p2(TT+2*i)}, {p2(z)}, {p2(DD+2*c)}, {p2(NN+2*c)}")
        for i in range(2):
            c = c0 + i
            a.e(f"v_pk_fma_f32 {p2(DD+2*c)}, {p2(DD+2*c)}, {p2(EX+2*i)}, {p2(DD+2*c)}")
        for i in range(2):
            c = c0 + i
            a.e(f"v_pk_fma_f32 {p2(NN+2*c)}, {p2(NN+2*c)}, {p2(EX+2*i)}, {p2(TT+2*i)}")
        a.label(lb)
        ool.label(lf)
        t = vT + 8 * X
        mid = [f"v_mov_b32_dpp v{t+6}, v{vQA+2*par+(k>>2)} row_newbcast:{4*(k&3)} row_mask:0xf bank_mask:0xf"]
        for i in range(2):
            c = c0 + i
            mid.append(f"v_pk_add_f32 {p2(DD+2*c)}, {p2(EX+2*i)}, 1.0 op_sel_hi:[1,0]")
        flush_code(ool, c0, X, mid)
        for i in range(2):
            c = c0 + i; z = Z + 16 * c + 2 * k
            ool.e(f"v_pk_mov_b32 {p2(NN+2*c)}, {p2(z)}, {p2(z)} op_sel:[0,1]")
        ool.e(f"s_bitcmp1_b32 s{sF0}, {bit}")
        ool.e("s_cselect_b32 exec_lo, -1, 0")
        ool.e(f"s_bitcmp1_b32 s{sF0}, {bit+4}")
        ool.e("s_cselect_b32 exec_hi, -1, 0")
        ool.e(f"v_lshl_add_u32 v{vCUR+X}, v{t+6}, 1, v{vCA}")
        ool.e("s_mov_b64 exec, -1")
        ool.e(f"s_branch {lb}")

def lds_fill(a, base, nbytes, vdata, vaddr16, ex):
    n = (nbytes + 15) // 16
    r = 0
    while n >= 512:
        a.e(f"ds_write_b128 v{vaddr16}, v[{vdata}:{vdata+3}] offset:{base + r*8192}")
        n -= 512; r += 1
    if n:
        a.e(f"s_movk_i32 s{sT}, {n}")
        a.e(f"v_cmp_gt_u32 vcc, s{sT}, v0")
        a.e(f"s_and_saveexec_b64 s[{ex}:{ex+1}], vcc")
        a.e(f"ds_write_b128 v{vaddr16}, v[{vdata}:{vdata+3}] offset:{base + r*8192}")
        a.e(f"s_mov_b64 exec, s[{ex}:{ex+1}]")

def reset_round(a, zero_agg):
    t = vT
    a.e(f"v_lshlrev_b32 v{t}, 4, v0")
    a.e(f"v_mov_b32 v{t+8}, 0\nv_mov_b32 v{t+9}, 0\nv_mov_b32 v{t+10}, 0\nv_mov_b32 v{t+11}, 0")
    lds_fill(a, CNT, 272, t+8, t, sX0)
    if zero_agg: lds_fill(a, AGG, 50 * 528 + 8192, t+8, t, sX0)
    else:        lds_fill(a, SIDE, 8192, t+8, t, sX0)

def onehot4(a, dst, vJ, vcond_sgpr, t):
    a.e(f"v_and_b32 v{t}, 1, v{vJ}")
    a.e(f"v_lshlrev_b32 v{t}, 4, v{t}")
    a.e(f"v_mov_b32 v{t+1}, 0x3f80")
    a.e(f"v_lshlrev_b32 v{t}, v{t}, v{t+1}")
    if vcond_sgpr is not None:
        a.e(f"v_cndmask_b32 v{t}, 0, v{t}, s[{vcond_sgpr}:{vcond_sgpr+1}]")
    a.e(f"v_lshrrev_b32 v{t+1}, 1, v{vJ}")
    for i in range(4):
        a.e(f"v_cmp_eq_u32 vcc, {i}, v{t+1}")
        a.e("s_nop 1")
        a.e(f"v_cndmask_b32 v{dst+i}, 0, v{t}, vcc")

def gen_k2(a):
    ool = Asm()
    rare = Asm()
    RC = 160; RK = 172; NA = 184; EN = 212
    XF, WU1F, W2F, QACC = 64, 96, 128, 212
    vLA0, vXA, vW3A, vW0 = vT + 20, vT + 21, vT + 22, vT + 23
    t = vT + 12
    kernel_head(a, NAME + "_kernel")
    load_args(a)
    a.e(f"v_lshrrev_b32 v{vT+1}, 2, v0")
    a.e(f"v_and_b32 v{vW0}, 3, v0")
    a.e("s_cmp_ge_u32 s2, 250")
    a.e("s_cbranch_scc1 K2_END")
    if cfg.dbg:
        a.e("v_mov_b32 v252, 0")
        a.e("s_memrealtime s[92:93]")
    idmap(a, sBin, 2, sT)
    a.e(f"v_mul_u32_u24 v{vEB}, 3200, v{vT+1}")
    a.e(f"v_lshlrev_b32 v{vT+4}, 4, v{vW0}")
    a.e(f"s_lshl_b32 s{sT+2}, s{sBin}, 7")
    a.e(f"s_add_u32 s{sT+2}, s{sT+2}, {cfg.wsoff + WS_S01}")
    a.e(f"v_mad_u32_u24 v{vT+2}, v{vEB}, 10, v{vT+4}")
    a.e(f"s_mov_b32 s{sOT+2}, {124*32000+128}")
    a.e(f"s_mov_b32 s{sOT+3}, 0x20000")
    a.e(f"v_lshrrev_b32 v{vT}, 6, v0")
    a.e(f"v_and_b32 v{vL}, 63, v0")
    a.e(f"v_readfirstlane_b32 s{sW}, v{vT}")
    a.e(f"s_mul_i32 s{sT+3}, s{sBin}, 12800")
    a.e(f"v_mov_b32 v{vT+8}, 0\nv_mov_b32 v{vT+9}, 0\nv_mov_b32 v{vT+10}, 0\nv_mov_b32 v{vT+11}, 0")
    a.e(f"v_lshlrev_b32 v{vW3A}, 4, v{vL}")
    a.e("s_mov_b64 exec, 0x1ffff")
    a.e(f"ds_write_b128 v{vW3A}, v[{vT+8}:{vT+11}] offset:{CNT}")
    a.e("s_mov_b64 exec, -1")
    WU1L = 32768
    NPF = cfg.prefetchP
    vXD, vW3D = vT + 18, vT + 7
    sM = sX0 + 4
    c = Asm(); x_dma(c, sX, sW, vL, STG, vXD, sM + 2, strided=True)
    for x in c.lines[:-4]: a.e(x)
    a.e(f"s_add_u32 s{sM+3}, s{sM+3}, {STG}")
    xd = c.lines[-2:]
    w_lane_const(a, vWC, vL, t)
    a.e(f"s_lshl_b32 s{sW4k}, s{sW}, 12")
    a.e(f"s_lshl_b32 s{sM0}, s{sW}, 13")
    a.e(f"s_add_u32 s{sM}, s{sM0}, {STG + 4096}")
    a.e(f"s_add_u32 s{sM0}, s{sM0}, {STG - 256}")
    a.e(f"s_add_u32 s{sM+1}, s{sW4k}, {WU1L}")
    a.e(f"v_lshlrev_b32 v{vW3D}, 4, v0")
    a.e(f"s_and_b32 s{sT+1}, s{sW}, 4")
    a.e(f"s_add_u32 s{sT}, s{sW}, s{sT+1}")
    a.e(f"s_lshl_b32 s{sT}, s{sT}, 10")
    a.e(f"s_add_u32 m0, s{sT}, {STG + 32768}")
    a.e(f"s_mov_b32 s{sR+2}, 4096")
    a.e(f"s_mov_b32 s{sR+3}, 0x20000")
    a.e("s_waitcnt lgkmcnt(0)")
    a.e(f"s_add_u32 s{sOT}, s{S_WS}, s{sT+2}")
    a.e(f"s_addc_u32 s{sOT+1}, s{S_WS+1}, 0")
    a.e(f"buffer_load_dwordx4 v[{RC}:{RC+3}], v{vT+2}, s[{sOT}:{sOT+3}], 0 offen")
    a.e(f"buffer_load_dwordx4 v[{RC+4}:{RC+7}], v{vT+2}, s[{sOT}:{sOT+3}], 0 offen offset:64")
    a.e(f"s_add_u32 s{sR}, s{S_WS}, {cfg.wsoff + WS_W3F}")
    a.e(f"s_addc_u32 s{sR+1}, s{S_WS+1}, 0")
    a.e(f"buffer_load_dwordx4 v{vW3D}, s[{sR}:{sR+3}], 0 offen lds")
    if cfg.dbg:
        a.e("v_writelane_b32 v252, s92, 0")
        a.e("s_getreg_b32 s90, hwreg(HW_REG_XCC_ID)")
        a.e("s_add_u32 s90, s90, 1")
        a.e("v_writelane_b32 v252, s90, 39")
    stamp(a, 40, 252)
    srd(a, sX, S_X, off_s=sT+3, size=12800)
    srd(a, sO, S_OUT, off_s=sT+3, size=12800)
    srd(a, sWm, S_WM, off_c=32768, size=32768)
    srd(a, sWu, S_WU, size=256*256)
    a.e("s_barrier")
    stamp(a, 41, 252)
    def mix(lines, extra, first=0):
        out = []; n = len(lines); m = len(extra); k = 0; full = True
        for i, x in enumerate(lines):
            while full and k < m and k * n <= i * m: out += extra[k]; k += 1
            out.append(x)
            if "exec" in x.split(",")[0]: full = x.strip() == "s_mov_b64 exec, -1"
        return out + sum(extra[k:], [])
    dm = [[f"s_mov_b32 m0, s{sM+3}", "s_nop 0", xd[0]], [xd[1]]]
    for j, srdw in enumerate((sWm, sWu)):
        for i in range(4):
            o = f" offset:{1024*i}" if i else ""
            dm.append(([f"s_mov_b32 m0, s{sM+j}", "s_nop 0"] if i == 0 else []) + [f"buffer_load_dwordx4 v{vWC}, s[{srdw}:{srdw+3}], s{sW4k} offen{o} lds"])
    c = Asm(); sav = a.lines; a.lines = c.lines
    a.e(f"v_and_b32 v{t+1}, 7, v{vL}")
    onehot4(a, AQ, t+1, None, t+2)
    a.e(f"v_lshlrev_b32 v{t+2}, 5, v{vL}")
    a.e(f"v_and_b32 v{vM}, 31, v0")
    a.e(f"v_lshlrev_b32 v{vW0}, 2, v{vW0}")
    a.e("s_mov_b64 exec, 0x1ff")
    a.e(f"ds_write_b128 v{t+2}, v[{vT+8}:{vT+11}] offset:{LUT+16}")
    a.e("s_mov_b64 exec, 0x100")
    a.e(f"ds_write_b128 v{t+2}, v[{vT+8}:{vT+11}] offset:{LUT}")
    a.e("s_mov_b64 exec, 0xff")
    a.e(f"ds_write_b128 v{t+2}, v[{AQ}:{AQ+3}] offset:{LUT}")
    a.e("s_mov_b64 exec, -1")
    srd(a, sP, S_WS, off_c=cfg.wsoff + WS_P, size=PSIZE)
    if NPF:
        a.e(f"s_lshr_b32 s{sT}, s2, 3")
        a.e(f"s_mul_i32 s{sT}, s{sT}, {807*128}")
        a.e(f"v_lshl_add_u32 v{vPF}, v{vL}, 3, s{sW}")
        if cfg.pfn < 512:
            a.e(f"s_movk_i32 s{sT+1}, {cfg.pfn}")
            a.e(f"v_cmp_gt_u32 vcc, s{sT+1}, v{vPF}")
        a.e(f"v_lshl_add_u32 v{vPF}, v{vPF}, 7, s{sT}")
        if NPF > 1:
            a.e(f"v_add_u32 v{vPF+1}, 0x10000, v{vPF}")
        if cfg.pfn < 512:
            a.e(f"v_mov_b32 v{vT+3}, 0x7ffffff0")
            a.e(f"v_cndmask_b32 v{vPF+NPF-1}, v{vT+3}, v{vPF+NPF-1}, vcc")
    def pf(pos):
        if cfg.pfpos == pos:
            for i in range(NPF): a.e(f"buffer_load_dword v37, v{vPF+i}, s[{sP}:{sP+3}], 0 offen")
    a.e(f"s_mov_b32 s{sLim}, 32")
    a.e(f"s_mov_b32 s{sDone}, 0")
    wfrag_const(a, vWA, vL, sW, t, sT)
    a.e(f"v_add_u32 v{vW3A}, {STG + 32768}, v{vW3A}")
    a.e(f"v_lshrrev_b32 v{t}, 5, v{vL}")
    a.e(f"v_and_b32 v{t+1}, 15, v{vL}")
    a.e(f"v_xor_b32 v{t+2}, v{t}, v{t+1}")
    a.e(f"v_lshlrev_b32 v{t+2}, 4, v{t+2}")
    a.e(f"v_lshl_add_u32 v{vXA}, v{t+1}, 8, v{t+2}")
    a.e(f"v_bfe_u32 v{t+2}, v{vL}, 4, 1")
    a.e(f"v_lshl_add_u32 v{vXA}, v{t+2}, 13, v{vXA}")
    a.e(f"s_lshr_b32 s{sT}, s{sW}, 2")
    a.e(f"s_lshl_b32 s{sT}, s{sT}, 14")
    a.e(f"s_add_u32 s{sT}, s{sT}, {STG}")
    a.e(f"v_add_u32 v{vXA}, s{sT}, v{vXA}")
    srd(a, sE, S_E, size=ESIZE)
    a.e(f"s_mov_b32 s{sSafe}, 0")
    a.e(f"s_mov_b32 s{sFirst}, 1")
    a.e(f"s_mov_b32 s{sMask}, 0x7fffffe0")
    a.e(f"v_mov_b32 v{vCL}, {LUT + 256}")
    a.e(f"v_bfe_u32 v{t+1}, v{vL}, 3, 2")
    a.e(f"v_bfe_u32 v{t+3}, v{vL}, 1, 1")
    a.e(f"v_lshl_add_u32 v{t+1}, v{t+1}, 1, v{t+3}")
    a.e(f"v_lshlrev_b32 v{t+1}, 5, v{t+1}")
    a.e("s_mov_b32 exec_lo, 0x0f0f0f0f\ns_mov_b32 exec_hi, 0xf0f0f0f0")
    a.e(f"v_add_u32 v{vCL}, {LUT}, v{t+1}")
    a.e("s_mov_b64 exec, -1")
    a.e(f"v_lshlrev_b32 v{vH16}, 4, v{t}")
    a.e(f"v_and_b32 v{t+1}, 3, v{vL}")
    a.e(f"v_lshlrev_b32 v{vCP}, 4, v{t+1}")
    a.e(f"v_lshlrev_b32 v{vCQ}, 3, v{t+1}")
    a.e(f"v_lshl_add_u32 v{vCQ}, v{t+2}, 5, v{vCQ}")
    a.e(f"v_add_u32 v{vCQ}, {QL}, v{vCQ}")
    a.e(f"v_lshlrev_b32 v{vCA}, 2, v{vM}")
    a.e(f"v_lshl_add_u32 v{vSD}, v{t}, 9, v{vCA}")
    a.e(f"s_lshl_b32 s{sT}, s{sW}, 10")
    a.e(f"s_add_u32 s{sT}, s{sT}, {SIDE}")
    a.e(f"v_add_u32 v{vSD}, s{sT}, v{vSD}")
    a.e(f"v_lshlrev_b32 v{t+2}, 6, v{t+2}")
    a.e(f"v_sub_u32 v{vCA}, v{vCA}, v{t+2}")
    a.e(f"v_add_u32 v{vCA}, {AGG - 2*QL}, v{vCA}")
    a.e(f"v_bfe_u32 v{t+1}, v{vL}, 2, 2")
    a.e(f"v_lshl_add_u32 v{vRP0}, v{t+1}, 6, v{vCQ}")
    a.e(f"v_lshl_add_u32 v{vRP0}, v{t}, 10, v{vRP0}")
    a.e(f"s_add_u32 s{sT}, s{sM0}, {256 - QL}")
    a.e(f"v_add_u32 v{vRP0}, s{sT}, v{vRP0}")
    a.e(f"v_mov_b32 v{vCHK}, 0")
    def round_consts(a):
        a.e(f"v_lshrrev_b32 v{t}, 3, v{vM}")
        a.e(f"v_and_b32 v{t+1}, 3, v{vL}")
        a.e(f"v_lshl_add_u32 v{vAE}, v{t}, 2, v{t+1}")
        a.e(f"v_lshlrev_b32 v{vAE}, 3, v{vAE}")
        a.e(f"v_bfe_u32 v{t+1}, v{vL}, 2, 2")
        a.e(f"v_lshlrev_b32 v{vAQ}, 4, v{t+1}")
        a.e(f"v_lshlrev_b32 v{vAP}, 3, v{t+1}")
        a.e(f"v_lshl_add_u32 v{vAP}, v{vH16}, 1, v{vAP}")
        a.e(f"v_mov_b32 v{vT}, 1")
        a.e(f"v_mov_b32 v{vT+1}, {FLG}")
        a.e(f"v_lshlrev_b32 v{vT+2}, 2, v{vL}")
        a.e(f"s_mov_b32 s{sT}, 0x420000")
        a.e(f"s_brev_b32 s{sT+6}, 1")
        a.e(f"s_add_u32 s{sT+7}, s{sDone}, s{sLim}")
        a.e(f"v_cmp_ne_u32 s[{sX0+2}:{sX0+3}], 0, v{vW0}")
    round_consts(a)
    a.lines = sav
    for x in mix(c.lines, dm): a.e(x)
    stamp(a, 1, 252)
    pf(1)
    stamp(a, 4, 252)
    a.e(f"s_waitcnt vmcnt({11 + (NPF if cfg.pfpos <= 1 else 0)})")
    stamp(a, 5, 252)
    a.e(f"v_mov_b32_dpp v{vOC}, v{RC} quad_perm:[0,0,0,0] row_mask:0xf bank_mask:0xf")
    a.label("K2_COUNT")
    def groups(fn, lab, order=range(8), extra=(), pre=()):
        c = Asm(); sav = a.lines; a.lines = c.lines
        for i in order: fn(i)
        a.lines = sav
        for x in mix(c.lines, list(extra)): a.e(x)
    KK = lambda i: 16 * (i >> 2) + (i & 3)
    na = lambda i: f"v_lshlrev_b32_sdwa v{NA+i}, 2, v{RC+i} dst_sel:BYTE_0 dst_unused:UNUSED_PAD src0_sel:DWORD src1_sel:BYTE_0"
    a.e(na(1))
    a.e(f"v_min_u32 v{vREM}, s{sT+7}, v{vOC}")
    a.e(f"v_sub_u32 v{vREM}, v{vREM}, v{vW0}")
    a.e(f"v_cmp_lt_u32 s[{sX0+6}:{sX0+7}], s{sT+7}, v{vOC}")
    a.e(f"v_cmp_lt_i32 s[{sX0}:{sX0+1}], 0, v{vREM}")
    a.e(na(0))
    def f_cnt(i):
        a.e(f"v_cmpx_lt_i32 vcc, {KK(i)}, v{vREM}")
        if i < 7: a.e(na(i + 1))
        a.e(f"ds_add_rtn_u32 v{RK+i}, v{NA+i}, v{vT} offset:{CNT}")
    groups(f_cnt, "K2_G1", order=range(1, 8))
    a.e(f"s_and_b64 s[{sX0}:{sX0+1}], s[{sX0}:{sX0+1}], s[{sX0+2}:{sX0+3}]")
    a.e(f"s_mov_b64 exec, s[{sX0}:{sX0+1}]")
    a.e(f"ds_add_rtn_u32 v{RK}, v{NA}, v{vT} offset:{CNT}")
    a.e(f"s_mov_b64 exec, s[{sX0+6}:{sX0+7}]")
    a.e(f"ds_write_b32 v{vT+1}, v{vT}")
    a.e("s_mov_b64 exec, -1")
    def f_ent(i):
        e0 = EN + 2 * i
        a.e(f"v_lshrrev_b32 v{e0}, 20, v{RC+i}")
        a.e(f"v_add_lshl_u32 v{e0}, v{e0}, v{vEB}, 5")
    groups(f_ent, "K2_G2")
    pf(2)
    a.e("s_waitcnt lgkmcnt(0)")
    a.e("s_barrier")
    stamp(a, 6, 252)
    a.e(f"ds_read_b32 v{vT+6}, v{vT+2} offset:{CNT}")
    a.e(f"ds_read_b32 v{vT+5}, v{vT+1}")
    def f_ent2(i):
        e1 = EN + 1 + 2 * i
        a.e(f"v_bfe_u32 v{e1}, v{RC+i}, 6, 14")
        a.e(f"v_mad_u32_u24 v{e1}, v{NA+i}, s{sT}, v{e1}")
    groups(f_ent2, "K2_G5")
    a.e("s_waitcnt lgkmcnt(0)")
    a.e(f"v_add_u32 v{vT+3}, 1, v{vT+6}")
    a.e(f"v_lshrrev_b32 v{vT+3}, 1, v{vT+3}")
    a.e(f"v_mov_b32 v{vT+4}, v{vT+3}")
    a.e(f"v_readfirstlane_b32 s{sMore}, v{vT+5}")
    fl = []
    for i in range(8):
        fl.append(f"v_add_u32 v{RC+i}, -1, v{RK+i}")
        fl.append(f"v_and_or_b32 v{EN+2*i}, v{RC+i}, s{sT+6}, v{EN+2*i}")
    v = vT + 4
    dpp = [f"v_add_u32_dpp v{v}, v{v}, v{v} row_shr:{sh} row_mask:0xf bank_mask:0xf bound_ctrl:0" for sh in (1, 2, 4, 8)]
    dpp += [f"v_add_u32_dpp v{v}, v{v}, v{v} row_bcast:15 row_mask:0xa bank_mask:0xf", f"v_add_u32_dpp v{v}, v{v}, v{v} row_bcast:31 row_mask:0xc bank_mask:0xf"]
    for j in range(6):
        a.e(fl[2*j]); a.e(fl[2*j+1]); a.e(dpp[j])
    a.e(fl[12])
    a.e(f"v_readlane_b32 s{sT+5}, v{vT+4}, 63")
    a.e(f"v_sub_u32 v{vT+4}, v{vT+4}, v{vT+3}")
    a.e(f"v_lshlrev_b32 v{vT+4}, 4, v{vT+4}")
    def f_perm(i):
        a.e(f"ds_bpermute_b32 v{NA+i}, v{NA+i}, v{vT+4}")
        if i >= 8:
            a.e(f"v_add_u32 v{RC+i}, -1, v{RK+i}")
            a.e(f"v_and_or_b32 v{EN+2*i}, v{RC+i}, s{sT+6}, v{EN+2*i}")
    groups(f_perm, "K2_G3")
    for x in fl[13:]: a.e(x)
    pf(3)
    a.e(f"s_cmp_gt_u32 s{sT+5}, 1025")
    a.e("s_cbranch_scc1 K2_TOOBIG")
    a.e(f"s_add_u32 s{sT}, s{sT+5}, 15")
    a.e(f"s_lshr_b32 s{sT}, s{sT}, 4")
    a.e(f"s_lshr_b32 s{sT+1}, s{sT}, 3")
    a.e(f"s_and_b32 s{sT+2}, s{sT}, 7")
    a.e(f"s_mul_i32 s{sT+3}, s{sT+1}, s{sW}")
    a.e(f"s_min_u32 s{sT+4}, s{sW}, s{sT+2}")
    a.e(f"s_add_u32 s{sT+3}, s{sT+3}, s{sT+4}")
    a.e(f"s_cmp_lt_u32 s{sW}, s{sT+2}")
    a.e(f"s_addc_u32 s{sNT}, s{sT+1}, 0")
    a.e(f"s_lshl_b32 s{sT+3}, s{sT+3}, 8")
    a.e(f"s_add_u32 s{sT+3}, s{sT+3}, {LIST}")
    a.e(f"s_lshl_b32 s{sT+4}, s{sNT}, 7")
    a.e(f"s_cmp_eq_u32 s{sW}, 7")
    a.e("s_cbranch_scc0 K2_NODUM")
    a.e(f"v_mov_b32 v{vT+8}, 0x7ffffff0\nv_mov_b32 v{vT+9}, 0xffff\nv_mov_b32 v{vT+10}, 0x7ffffff0\nv_mov_b32 v{vT+11}, 0xffff")
    a.e(f"v_lshl_add_u32 v{vT+7}, v{vT+6}, 3, v{vT+4}")
    a.e(f"v_and_b32 v{vT+6}, 1, v{vT+6}")
    a.e(f"v_cmp_eq_u32 vcc, 1, v{vT+6}")
    a.e("s_mov_b64 exec, vcc")
    a.e(f"ds_write_b64 v{vT+7}, v[{vT+8}:{vT+9}] offset:{LIST}")
    a.e("s_mov_b32 exec_lo, -1\ns_mov_b32 exec_hi, 0x7f")
    a.e(f"v_add_lshl_u32 v{vT+7}, v{vL}, s{sT+5}, 4")
    a.e(f"ds_write_b128 v{vT+7}, v[{vT+8}:{vT+11}] offset:{LIST}")
    a.e("s_mov_b64 exec, -1")
    a.label("K2_NODUM")
    a.e("s_waitcnt lgkmcnt(0)")
    a.e(f"v_lshl_add_u32 v{NA}, v{RK}, 3, v{NA}")
    def f_place(i):
        a.e(f"v_cmpx_lt_i32 vcc, {KK(i)}, v{vREM}")
        a.e(f"v_lshl_add_u32 v{NA+i}, v{RK+i}, 3, v{NA+i}")
        a.e(f"ds_write_b64 v{NA+i}, v[{EN+2*i}:{EN+1+2*i}] offset:{LIST}")
    groups(f_place, "K2_G4", order=range(1, 8))
    a.e(f"s_mov_b64 exec, s[{sX0}:{sX0+1}]")
    a.e(f"ds_write_b64 v{NA}, v[{EN}:{EN+1}] offset:{LIST}")
    a.e("s_mov_b64 exec, -1")
    a.e(f"v_add_u32 v{vAE}, s{sT+3}, v{vAE}")
    a.e(f"v_add3_u32 v{vAP}, v{vAP}, s{sT+3}, 4")
    a.e(f"v_add3_u32 v{vAQ}, v{vAQ}, s{sT+3}, 6")
    a.e("s_mov_b32 exec_lo, 0xf0f0f0f0\ns_mov_b32 exec_hi, 0xf0f0f0f0")
    a.e(f"v_add_u32 v{vAE}, s{sT+4}, v{vAE}")
    a.e("s_mov_b32 exec_lo, 0xffff0000\ns_mov_b32 exec_hi, 0xffff0000")
    a.e(f"v_add_u32 v{vAP}, s{sT+4}, v{vAP}")
    a.e("s_mov_b32 exec_lo, 0\ns_mov_b32 exec_hi, -1")
    a.e(f"v_add_u32 v{vAQ}, s{sT+4}, v{vAQ}")
    a.e("s_mov_b64 exec, -1")
    a.e(f"s_max_u32 s{sT+1}, s{sT+1}, 1")
    a.e(f"s_lshl_b32 s{sT+1}, s{sT+1}, 3")
    a.e(f"v_cmp_le_u32 s[{sSusp}:{sSusp+1}], s{sT+1}, v{vT+3}")
    a.e(f"s_cmp_eq_u32 s{sNT}, 0")
    a.e(f"s_cselect_b32 s{sP+2}, 0, {PSIZE}")
    a.e(f"s_cselect_b32 s{sE+2}, 0, {ESIZE}")
    a.e(f"s_cmp_eq_u32 s{sFirst}, 0")
    a.e(f"s_waitcnt vmcnt({NPF}) lgkmcnt(0)")
    a.e("s_barrier")
    a.e("s_cbranch_scc1 K2_PRO2")
    stamp(a, 7, 252)
    adv_se = [f"v_add_u32 v{vAE}, 128, v{vAE}", f"v_add_u32 v{vAP}, 128, v{vAP}"]
    adv_n = [f"v_add_u32 v{vAQ}, 128, v{vAQ}"]
    def prologue(a, first):
        for s in list_reads_se() + list_reads_n(): a.e(s)
        if first:
            for st in range(8):
                if st == 0: a.e(f"ds_read_b128 v[{XF}:{XF+3}], v{vXA}")
                else:
                    r = vT + (st & 1)
                    a.e(f"v_xor_b32 v{r}, {32*st}, v{vXA}")
                    a.e(f"ds_read_b128 v[{XF+4*st}:{XF+4*st+3}], v{r}")
        for s in adv_se + adv_n: a.e(s)
        a.e(f"s_waitcnt lgkmcnt({8 if first else 0})")
        for s in addr_se() + addr_q(0): a.e(s)
        for s in list_reads_se(): a.e(s)
        for s in flags_from_vcc(sF0): a.e(s)
        d0 = dma_ops(0, "alt"); d1 = dma_ops(1)
        fr = Asm()
        if first:
            a.e(f"v_add_u32 v{vT+3}, {STG + 4096}, v{vWA}")
            wfrag_read(fr, W2F, vT+3, 0, 8192)
            wfrag_read(fr, WU1F, vWA, WU1L)
            for c in range(4):
                fr.e(f"ds_read_b128 v[{W3+4*c}:{W3+4*c+3}], v{vW3A} offset:{1024*c}")
        n4 = len(fr.lines) // 4
        for s in d0[0] + fr.lines[:n4] + d0[1] + fr.lines[n4:2*n4]: a.e(s)
        a.e(e_load(0))
        for s in fr.lines[2*n4:3*n4]: a.e(s)
        a.e(f"v_cmp_ne_u32 vcc, v{vLA}, v{vCL}")
        a.e(f"v_mov_b32_dpp v{vFA}, v{vQA} row_newbcast:0 row_mask:0xf bank_mask:0xf")
        a.e(f"v_mov_b32 v{vLA0}, v{vLA}")
        for s in d0[2] + fr.lines[3*n4:]: a.e(s)
        for s in adv_se: a.e(s)
        a.e(f"s_cmp_eq_u32 s{sNT}, 0")
        a.e(f"s_cselect_b32 s{sDm}, -1, vcc_lo")
        a.e(f"v_lshl_add_u32 v{vFA}, v{vFA}, 1, v{vCA}")
        for s in d0[3]: a.e(s)
        if first:
            a.e(f"s_lshr_b32 s{sT+1}, s{sW}, 2")
            a.e(f"s_lshl_b32 s{sT+1}, s{sT+1}, 5")
            a.e(f"v_add_u32 v{vT+1}, s{sT+1}, v{vM}")
            a.e(f"v_mul_u32_u24 v{vT+2}, 264, v{vT+1}")
            a.e(f"v_lshl_add_u32 v{vT+2}, v{vH16}, 1, v{vT+2}")
            a.e(f"s_and_b32 s{sT+1}, s{sW}, 3")
            a.e(f"s_lshl_b32 s{sT+1}, s{sT+1}, 6")
            a.e(f"v_add_u32 v{vT+2}, s{sT+1}, v{vT+2}")
            a.e(f"v_cmp_gt_u32 s[{sX0}:{sX0+1}], 50, v{vT+1}")
            a.e(f"v_lshlrev_b32 v{vT}, 4, v0")
            a.e(f"v_mov_b32 v{vT+8}, 0\nv_mov_b32 v{vT+9}, 0\nv_mov_b32 v{vT+10}, 0\nv_mov_b32 v{vT+11}, 0")
            a.e(f"s_movk_i32 s{sT+1}, {(50*528+8192)//16 - 2048}")
            a.e(f"v_cmp_gt_u32 s[{sX0+2}:{sX0+3}], s{sT+1}, v0")
            a.e(f"s_mov_b32 s{sT}, {LOG2E_NEG}")
            a.e(f"s_mov_b32 s{sT+1}, {LOG2E_NEG}")
            stamp(a, 44, 252)
            a.e("s_waitcnt lgkmcnt(0)")
            g = Asm(); gemm8(g, QACC, W2F, XF)
            for x in g.lines: a.e(x)
            g = Asm(); gemm8(g, ACX, WU1F, XF)
            q = [f"v_mul_f32 v{QACC+i}, s{sT}, v{QACC+i}" for i in range(16)] + [f"v_cvt_pk_bf16_f32 v{QACC+i}, v{QACC+2*i}, v{QACC+1+2*i}" for i in range(8)]
            a.e(g.lines[0])
            a.e("s_nop 9")
            for j in range(3):
                a.e(g.lines[1+j])
                for x in q[j*8:j*8+8]: a.e(x)
            a.e(f"s_mov_b64 exec, s[{sX0}:{sX0+1}]")
            for gg in range(4):
                a.e(f"ds_write_b64 v{vT+2}, v[{QACC+2*gg}:{QACC+1+2*gg}] offset:{QL + 8*gg}")
            a.e("s_mov_b64 exec, -1")
            a.e("s_barrier")
            for j in range(4):
                a.e(f"ds_write_b128 v{vT}, v[{vT+8}:{vT+11}] offset:{AGG + j*8192}")
            a.e(g.lines[4])
            a.e(f"s_mov_b64 exec, s[{sX0+2}:{sX0+3}]")
            a.e(f"ds_write_b128 v{vT}, v[{vT+8}:{vT+11}] offset:{AGG + 4*8192}")
            a.e("s_mov_b64 exec, -1")
            for s in d1[0]: a.e(s)
            a.e(g.lines[5])
            a.e("s_waitcnt lgkmcnt(0)")
            a.e("s_barrier")
            stamp(a, 45, 252)
            for j in range(1, 4):
                for s in d1[j]: a.e(s)
                if j < 3: a.e(g.lines[5+j])
        else:
            for s in sum(d1, []): a.e(s)
        a.e(f"s_cmp_lt_u32 s{sNT}, 2")
        a.e(f"s_cselect_b32 s{sP+2}, 0, s{sP+2}")
        a.e(f"s_cselect_b32 s{sE+2}, 0, s{sE+2}")
        if not first: a.e("s_waitcnt lgkmcnt(0)")
        for s in addr_se(): a.e(s)
        for s in list_reads_se() + list_reads_n(): a.e(s)
        for s in flags_from_vcc(sF1): a.e(s)
    prologue(a, True)
    rare.label("K2_PRO2")
    rare.e("s_waitcnt vmcnt(0)")
    prologue(rare, False)
    rare.e("s_branch K2_NOX")
    stamp(a, 42, 252)
    for i in range(8):
        a.e(f"v_pk_mul_f32 {p2(ACX+2*i)}, {p2(ACX+2*i)}, s[{sT}:{sT+1}]")
    a.label("K2_NOX")
    stamp(a, 43, 252)
    a.e(f"s_cmp_eq_u32 s{sNT}, 0")
    a.e("s_cbranch_scc1 K2_NOTILES")
    a.e(f"ds_read_b128 v[{AQ}:{AQ+3}], v{vLA0}")
    for s in qfrag_reads(QY, 0, 0) + qfrag_reads(QX, 1, 0): a.e(s)
    if cfg.t1pos == 1:
        dma_half(a, 0)
        a.e(e_load(1))
    for i in range(4): a.e(f"v_mov_b32 v{AP+i}, 0")
    for i in range(4):
        shf = 16 * (i >> 1) + 4 * (i & 1)
        a.e(f"s_mov_b32 exec_lo, {hex(0xf << shf)}\ns_mov_b32 exec_hi, {hex(0xf << (shf + 8))}")
        a.e(f"v_mov_b32 v{AP+i}, 0x3f80")
    a.e("s_mov_b64 exec, -1")
    a.e(f"v_and_b32 v{IDX}, 3, v{vL}")
    a.e(f"v_mul_u32_u24 v{IDX}, 0x5555, v{IDX}")
    for s in adv_se + adv_n: a.e(s)
    for c in range(4):
        a.e(f"v_mov_b32 v{NN+2*c}, 0\nv_mov_b32 v{NN+2*c+1}, 0\nv_mov_b32 v{DD+2*c}, 1.0\nv_mov_b32 v{DD+2*c+1}, 1.0")
    a.e(f"v_mov_b32 v{vCUR}, v{vSD}\nv_mov_b32 v{vCUR+1}, v{vSD}")
    a.e(f"s_sub_u32 s{sT}, s{sW4k}, s{sM0}")
    a.e(f"s_add_u32 s{sT}, s{sT}, {WU2 - 256}")
    a.e(f"v_add_u32 v{vT}, s{sT}, v{vRP0}")
    a.e("s_waitcnt vmcnt(4)" if cfg.t1pos == 2 else "s_waitcnt vmcnt(9)")
    for s in pfrag_reads(PY, 0, vT): a.e(s)
    mf = mfmas(0, PY, QY, 0)
    a.e("s_waitcnt lgkmcnt(8)")
    for s in mf[:4]: a.e(s)
    a.e("s_waitcnt lgkmcnt(0)")
    for s in mf[4:]: a.e(s)
    if cfg.t1pos == 2:
        dma_half(a, 0)
        a.e(e_load(1))
    stamp(a, 8, 252)
    if cfg.dbg:
        a.e("s_memtime s[90:91]\ns_waitcnt lgkmcnt(0)\nv_writelane_b32 v252, s90, 14")
    a.e(f"s_mov_b32 s{sCnt}, s{sNT}")
    def lstamp(x):
        if not cfg.lst: return
        a.e("s_memrealtime s[90:91]")
        a.e(f"s_lshl_b32 s92, s{sCnt}, 1")
        a.e(f"s_add_u32 s92, s92, {x}")
        a.e("s_mov_b32 m0, s92")
        a.e("s_waitcnt lgkmcnt(0)")
        a.e("v_writelane_b32 v252, s90, m0")
    def iteration(par):
        exA = {
            "pre": ["s_waitcnt vmcnt(5)"] + pfrag_reads(PX, 1),
            0: addr_q(1 - par),
            1: qfrag_reads(QY, 0, 1 - par),
            2: ["s_waitcnt lgkmcnt(4)"] + sum(dma_ops(1)[:2], []),
            3: sum(dma_ops(1)[2:], []),
            4: [f"ds_read_b128 v[{AQ}:{AQ+3}], v{vLA}",
                f"s_cmp_lg_u32 s{sCnt}, 1", f"s_cbranch_scc0 WU2_{par}", f"WU2R_{par}:"],
            7: ["s_waitcnt lgkmcnt(0)"],
        }
        half_step(a, ool, 0, par, exA, f"A{par}")
        ool.label(f"WU2_{par}")
        w_dma(ool, sWu, vWC, sW4k, 32768, WU2, sT)
        ool.e(f"s_branch WU2R_{par}")
        exB = {
            "pre": ["s_waitcnt vmcnt(4)"] + pfrag_reads(PY, 0),
            0: qfrag_reads(QX, 1, 1 - par) + [f"s_cmp_lt_u32 s{sCnt}, 3", f"s_cselect_b32 s{sP+2}, 0, s{sP+2}", f"s_cselect_b32 s{sE+2}, 0, s{sE+2}"],
            1: addr_se(),
            2: flags_from_vcc(sF2) + ["s_waitcnt lgkmcnt(4)"] + sum(dma_ops(0)[:2], []),
            3: sum(dma_ops(0)[2:], []) + [e_load(par)],
            4: list_reads_se() + list_reads_n(),
            5: adv_se + adv_n,
            7: ["s_waitcnt lgkmcnt(0)"],
        }
        lstamp(17)
        half_step(a, ool, 1, par, exB, f"B{par}")
        lstamp(16)
        a.e(f"s_mov_b32 s{sF0}, s{sF1}")
        a.e(f"s_mov_b32 s{sF1}, s{sF2}")
        a.e(f"s_sub_u32 s{sCnt}, s{sCnt}, 1")
        a.e(f"s_cmp_eq_u32 s{sCnt}, 0")
    a.label("K2_LOOP")
    iteration(0)
    a.e("s_cbranch_scc1 K2_LEND")
    iteration(1)
    a.e("s_cbranch_scc0 K2_LOOP")
    a.label("K2_LEND")
    stamp(a, 9, 252)
    if cfg.dbg:
        a.e("s_memtime s[90:91]\ns_waitcnt lgkmcnt(0)\nv_writelane_b32 v252, s90, 15")
    flush_code(a, 0, 0)
    flush_code(a, 2, 1)
    for c in range(4):
        a.e(f"ds_read_b32 v{vT+16+c}, v{vSD} offset:{128*c}")
    a.label("K2_AFTER")
    a.e(f"s_mov_b32 s{sFirst}, 0")
    a.e(f"s_bitcmp0_b32 s{sDm}, 0")
    a.e(f"s_cselect_b32 s{sX0}, -1, 0")
    a.e(f"s_bitcmp0_b32 s{sDm}, 4")
    a.e(f"s_cselect_b32 s{sX0+1}, -1, 0")
    a.e("s_waitcnt vmcnt(0) lgkmcnt(0)")
    a.e("s_barrier")
    a.e(f"s_mov_b64 exec, s[{sX0}:{sX0+1}]")
    a.e(f"s_cmp_lg_u64 s[{sSusp}:{sSusp+1}], 0")
    a.e("s_cbranch_scc1 K2_ATOM")
    for c in range(4):
        a.e(f"ds_read_b32 v{vT+20+c}, v{vFA} offset:{128*c}")
    for c in range(4):
        a.e(f"s_waitcnt lgkmcnt({3})")
        a.e(f"v_add_f32 v{vT+20+c}, v{vT+20+c}, v{vT+16+c}")
        a.e(f"ds_write_b32 v{vFA}, v{vT+20+c} offset:{128*c}")
    a.label("K2_MERGED")
    a.e("s_mov_b64 exec, -1")
    a.e(f"v_add_u32 v{vT+4}, {WU2}, v{vWA}")
    wfrag_read(a, 128, vT+4)
    a.e(f"s_lshr_b32 s{sT+1}, s{sW}, 2")
    a.e(f"s_lshl_b32 s{sT+1}, s{sT+1}, 5")
    a.e(f"v_add_u32 v{vT+8}, s{sT+1}, v{vM}")
    a.e(f"v_mul_u32_u24 v{vT+9}, 528, v{vT+8}")
    a.e(f"v_lshl_add_u32 v{vT+9}, v{vH16}, 1, v{vT+9}")
    a.e(f"v_cmp_gt_u32 s[{sX0}:{sX0+1}], 50, v{vT+8}")
    a.e("s_waitcnt lgkmcnt(0)")
    a.e("s_barrier")
    stamp(a, 10, 252)
    a.e(f"s_cmp_lg_u32 s{sMore}, 0")
    a.e("s_cbranch_scc1 K2_MORE")
    a.e(f"s_mov_b64 exec, s[{sX0}:{sX0+1}]")
    for s in range(8):
        for u in range(2):
            r = 64 + 8 * s + 4 * u
            a.e(f"ds_read_b128 v[{r}:{r+3}], v{vT+9} offset:{AGG + 64*s + 16*u}")
    a.e("s_mov_b64 exec, -1")
    a.e(f"v_mul_u32_u24 v{vT+10}, 272, v{vT+8}")
    a.e(f"v_lshl_add_u32 v{vT+10}, v{vH16}, 1, v{vT+10}")
    a.e(f"s_and_b32 s{sT+1}, s{sW}, 3")
    a.e(f"s_lshl_b32 s{sT+1}, s{sT+1}, 6")
    a.e(f"s_add_u32 s{sT+1}, s{sT+1}, {STG}")
    a.e(f"v_add_u32 v{vT+10}, s{sT+1}, v{vT+10}")
    a.e(f"v_lshrrev_b32 v{vT+12}, 4, v0")
    a.e(f"v_lshlrev_b32 v{vT+13}, 4, v0")
    a.e(f"v_lshl_add_u32 v{vT+12}, v{vT+12}, 4, v{vT+13}")
    a.e(f"v_add_u32 v{vT+12}, {STG}, v{vT+12}")
    for s in range(8):
        a.e(f"s_waitcnt lgkmcnt({14-2*s})")
        for i in range(4):
            a.e(f"v_cvt_pk_bf16_f32 v{64+8*s+i}, v{64+8*s+2*i}, v{65+8*s+2*i}")
        if s:
            c = f"v[{ACX}:{ACX+15}]" if s == 1 else "v[160:175]"
            a.e(f"v_mfma_f32_32x32x16_bf16 v[160:175], v[{128+4*(s-1)}:{131+4*(s-1)}], v[{64+8*(s-1)}:{67+8*(s-1)}], {c}")
    a.e(f"s_mov_b32 s{sT+1}, {LOG2E_NEG}")
    a.e(f"v_mfma_f32_32x32x16_bf16 v[160:175], v[156:159], v[120:123], v[160:175]")
    a.e(f"s_mov_b32 s{sT+2}, 0x7b800000")
    a.e(f"v_cmp_le_f32 s[{sX0+2}:{sX0+3}], s{sT+2}, v{vCHK}")
    a.e(f"v_mov_b32 v{vT+11}, 0x207")
    a.e("s_nop 8")
    a.e(f"v_cmp_class_f32 vcc, v160, v{vT+11}")
    for hf in range(2):
        R = range(8 * hf, 8 * hf + 8)
        for i in R: a.e(f"v_exp_f32 v{64+i}, v{160+i}")
        if hf == 0:
            a.e(f"s_and_b64 vcc, vcc, s[{sX0}:{sX0+1}]")
            a.e(f"s_or_b64 s[{sX0+2}:{sX0+3}], vcc, s[{sX0+2}:{sX0+3}]")
        for i in R: a.e(f"v_fma_f32 v{64+i}, v{64+i}, s{sT+1}, s{sT+1}")
        for i in R: a.e(f"v_rcp_f32 v{64+i}, v{64+i}")
        for i in R: a.e(f"v_mul_f32 v{64+i}, v{160+i}, v{64+i}")
        for i in range(4 * hf, 4 * hf + 4): a.e(f"v_cvt_pk_bf16_f32 v{80+i}, v{64+2*i}, v{65+2*i}")
        o = " offset:16" if hf else ""
        a.e(f"ds_write_b128 v{vT+10}, v[{80+4*hf}:{83+4*hf}]{o}")
    a.e(f"v_mov_b32 v{vT}, 1")
    a.e(f"v_mov_b32 v{vT+1}, {FLG+4}")
    a.e(f"s_mov_b64 exec, s[{sX0+2}:{sX0+3}]")
    a.e(f"ds_write_b32 v{vT+1}, v{vT}")
    a.e("s_mov_b64 exec, -1")
    a.e(f"s_movk_i32 s{sT+1}, 8192")
    a.e("s_waitcnt lgkmcnt(0)")
    a.e("s_barrier")
    a.e(f"ds_read_b128 v[88:91], v{vT+12}")
    a.e(f"ds_read_b128 v[92:95], v{vT+12} offset:{32*272}")
    a.e(f"ds_read_b32 v{vT}, v{vT+1}")
    a.e("s_waitcnt lgkmcnt(2)")
    a.e(f"buffer_store_dwordx4 v[88:91], v{vT+13}, s[{sO}:{sO+3}], 0 offen {cfg.o_pol}")
    a.e("s_waitcnt lgkmcnt(1)")
    a.e(f"buffer_store_dwordx4 v[92:95], v{vT+13}, s[{sO}:{sO+3}], s{sT+1} offen {cfg.o_pol}")
    stamp(a, 11, 252)
    if cfg.dbg:
        a.e("s_waitcnt vmcnt(0)")
        a.e(f"v_writelane_b32 v252, s{sNT}, 13")
    stamp(a, 12, 252)
    stamp_out(a, 252, 253, 1)
    if cfg.x: a.e("s_branch K2_END")
    a.e("s_waitcnt lgkmcnt(0)")
    a.e(f"v_readfirstlane_b32 s{sT}, v{vT}")
    a.e(f"s_cmp_lg_u32 s{sSafe}, 0")
    a.e("s_cbranch_scc1 K2_END")
    a.e(f"s_cmp_lg_u32 s{sT}, 0")
    a.e("s_cbranch_scc1 K2_SAFE")
    a.label("K2_END")
    a.e("s_endpgm")
    a.lines += ool.lines
    a.label("K2_CODE_END")
    a.lines += rare.lines
    a.label("K2_NOTILES")
    a.e("s_waitcnt vmcnt(0)")
    w_dma(a, sWu, vWC, sW4k, 32768, WU2, sT)
    a.e("s_branch K2_AFTER")
    a.label("K2_ATOM")
    for c in range(4):
        a.e(f"ds_add_f32 v{vFA}, v{vT+16+c} offset:{128*c}")
    a.e("s_branch K2_MERGED")
    a.label("K2_SAFE")
    a.e("s_waitcnt vmcnt(0)")
    a.e("s_barrier")
    a.e(f"s_mov_b32 s{sSafe}, 0x0a0a0a0a")
    a.e(f"s_mov_b32 s{sDone}, 0")
    reset_round(a, True)
    a.e("s_branch K2_ROUND")
    a.label("K2_MORE")
    a.e(f"s_add_u32 s{sDone}, s{sDone}, s{sLim}")
    a.e("s_branch K2_RESET")
    a.label("K2_TOOBIG")
    a.e("s_barrier")
    a.e(f"s_mov_b32 s{sLim}, 16")
    a.label("K2_RESET")
    reset_round(a, False)
    a.label("K2_ROUND")
    srd(a, sR, S_WS, off_c=cfg.wsoff + WS_S01, size=WS_OFFT + 256000 - WS_S01)
    a.e(f"v_and_b32 v{t}, 0x1fc, v0")
    a.e(f"s_lshl_b32 s{sT}, s{sBin}, 10")
    a.e(f"s_add_u32 s{sT}, s{sT}, {WS_OFFT - WS_S01}")
    a.e(f"v_mov_b32 v{vROFF}, 0")
    a.e(f"v_cmp_lt_u32 vcc, 32, v{vOC}")
    a.e("s_mov_b64 exec, vcc")
    a.e(f"buffer_load_dword v{vROFF}, v{t}, s[{sR}:{sR+3}], s{sT} offen")
    a.e("s_mov_b64 exec, -1")
    a.e(f"v_and_b32 v{vW0}, 3, v0")
    a.e(f"v_lshlrev_b32 v{vW0}, 2, v{vW0}")
    a.e(f"v_add_u32 v{vW0}, s{sDone}, v{vW0}")
    a.e(f"s_lshl_b32 s{sT}, s{sBin}, 7")
    a.e(f"v_mad_u32_u24 v{t}, v{vEB}, 10, s{sT}")
    a.e(f"s_mov_b32 s{sT}, {WS_REC - WS_S01 - 4}")
    a.e("s_waitcnt vmcnt(0)")
    a.e(f"v_add_u32 v{t+2}, v{vEB}, v{vROFF}")
    a.e(f"v_lshl_add_u32 v{t+2}, v{t+2}, 2, s{sT}")
    for g in range(2):
        a.e(f"v_add_u32 v{t+3}, {16*g}, v{vW0}")
        a.e(f"v_cmp_gt_u32 vcc, 32, v{t+3}")
        a.e("s_nop 1")
        a.e(f"v_cndmask_b32 v{t+4+g}, v{t+2}, v{t}, vcc")
        a.e(f"v_lshl_add_u32 v{t+4+g}, v{t+3}, 2, v{t+4+g}")
        a.e(f"buffer_load_dwordx4 v[{RC+4*g}:{RC+4*g+3}], v{t+4+g}, s[{sR}:{sR+3}], 0 offen")
    round_consts(a)
    a.e("s_waitcnt vmcnt(0) lgkmcnt(0)")
    a.e("s_barrier")
    a.e("s_branch K2_COUNT")

HEADER = open("cdna_kernels/" + NAME + ".s.ref").read().split("; Override launch")[0]
def generate():
    a = Asm()
    gen_k1(a)
    gen_k2(a)
    if cfg.rep:
        k, wg, idx = [int(v) for v in cfg.rep.split(",")]
        kernel_head(a, "rep_kernel")
        a.e("s_load_dwordx2 s[20:21], s[0:1], 64")
        a.e("s_cmp_lg_u32 s2, 0")
        a.e("s_cbranch_scc1 REP_END")
        a.e("s_waitcnt lgkmcnt(0)")
        srd(a, 8, S_WS, off_c=WS_DBG, size=0x200000)
        a.e(f"v_mov_b32 v1, 0")
        a.e(f"v_mov_b32 v2, {k*0x100000 + wg*2048 + idx*4}")
        a.e("buffer_load_dword v3, v1, s[8:11], 0 offen")
        a.e("buffer_load_dword v4, v2, s[8:11], 0 offen")
        a.e("s_waitcnt vmcnt(0)")
        a.e("v_sub_u32 v3, v4, v3")
        a.e("v_min_u32 v3, 8000, v3")
        a.e("v_lshlrev_b32 v3, 2, v3")
        a.e("s_nop 1")
        a.e("v_readfirstlane_b32 s12, v3")
        a.e("s_memrealtime s[14:15]")
        a.e("s_waitcnt lgkmcnt(0)")
        a.label("REP_L")
        a.e("s_memrealtime s[16:17]")
        a.e("s_waitcnt lgkmcnt(0)")
        a.e("s_sub_u32 s13, s16, s14")
        a.e("s_cmp_lt_u32 s13, s12")
        a.e("s_cbranch_scc1 REP_L")
        a.label("REP_END")
        a.e("s_endpgm")
    body = a.text()
    probs = check_text(body)
    for p in probs: print("HAZARD", p, file=sys.stderr)
    k1lds = K1_LDS_B
    out = HEADER
    out += f"; @launch kernel=prep_kernel grid=(378,1,1) block=(512,1,1) lds={k1lds}\n"
    out += f"; @launch kernel={NAME}_kernel grid=(250,1,1) block=(512,1,1) lds={K2_LDS}\n"
    if cfg.rep: out += "; @launch kernel=rep_kernel grid=(1,1,1) block=(64,1,1) lds=0\n"
    out += '.amdgcn_target "amdgcn-amd-amdhsa--gfx950"\n' + body
    out += '.section .rodata,"a"\n.p2align 6\n' + kernel_desc("prep_kernel", 100 if cfg.dbg else 96, 96 if cfg.dbg else 80) + ".p2align 6\n" + kernel_desc(NAME + "_kernel", 256, 96)
    if cfg.rep: out += ".p2align 6\n" + kernel_desc("rep_kernel", 8, 32)
    return out

if __name__ == "__main__":
    outp = sys.argv[1]
    for kv in sys.argv[2:]:
        k, v = kv.split("=", 1)
        cur = getattr(cfg, k)
        setattr(cfg, k, (v not in ("0", "False")) if isinstance(cur, bool) else int(v, 0) if isinstance(cur, int) else v)
    open(outp, "w").write(generate())
```

```python
import re

class Asm:
    def __init__(self):
        self.lines = []
        self.uid = 0
    def e(self, s):
        for ln in s.split("\n"):
            ln = ln.strip()
            if ln:
                self.lines.append(ln)
    def label(self, name):
        self.lines.append(name + ":")
    def c(self, s):
        self.lines.append("; " + s)
    def newlabel(self, p="L"):
        self.uid += 1
        return f"{p}_{self.uid}"
    def text(self):
        out = []
        for ln in self.lines:
            if ln.endswith(":") or ln.startswith(".") :
                out.append(ln)
            else:
                out.append("    " + ln)
        return "\n".join(out) + "\n"

def vr(base, n=1):
    return f"v{base}" if n == 1 else f"v[{base}:{base+n-1}]"
def sr(base, n=1):
    return f"s{base}" if n == 1 else f"s[{base}:{base+n-1}]"

_reg = re.compile(r"\b([vsa])(\d+)\b|\b([vsa])\[(\d+):(\d+)\]|\b(vcc|exec|m0|vcc_lo|vcc_hi|exec_lo|exec_hi)\b")
def regs_of(op):
    out = []
    for m in _reg.finditer(op):
        if m.group(1):
            out.append(m.group(1) + m.group(2))
        elif m.group(3):
            out += [m.group(3) + str(i) for i in range(int(m.group(4)), int(m.group(5)) + 1)]
        else:
            g = m.group(6)
            out.append("vcc" if g.startswith("vcc") else "exec" if g.startswith("exec") else g)
    return out

TRANS = ("v_exp_f32", "v_rcp_f32", "v_log_f32", "v_rsq_f32", "v_sqrt_f32")
def parse(ln):
    ln = ln.split(";")[0].strip()
    if not ln or ln.endswith(":") or ln.startswith("."):
        return None
    parts = ln.split(None, 1)
    op = parts[0]
    rest = parts[1] if len(parts) > 1 else ""
    ops = [o.strip() for o in re.split(r",(?![^\[]*\])", rest)] if rest else []
    d = dict(op=op, dst=[], src=[], kind="other", text=ln)
    allr = lambda lst: [r for o in lst for r in regs_of(o)]
    if op.startswith("v_smfmac"):
        d["kind"] = "mfma"; d["dst"] = regs_of(ops[0]); d["A"] = regs_of(ops[1]); d["B"] = regs_of(ops[2]) + regs_of(ops[3]); d["C"] = d["dst"]
        d["src"] = d["A"] + d["B"] + d["C"]
        d["passes"] = 8
    elif op.startswith("v_mfma"):
        d["kind"] = "mfma"; d["dst"] = regs_of(ops[0]); d["A"] = regs_of(ops[1]); d["B"] = regs_of(ops[2]); d["C"] = regs_of(ops[3])
        d["src"] = d["A"] + d["B"] + d["C"]
        d["passes"] = 8 if "32x32" in op else 4
    elif op.startswith("v_cmpx"):
        d["kind"] = "valu"; d["dst"] = regs_of(ops[0]) + ["exec"]; d["src"] = allr(ops[1:])
    elif op.startswith("v_cmp"):
        d["kind"] = "valu"; d["dst"] = regs_of(ops[0]); d["src"] = allr(ops[1:])
    elif op.startswith("v_readfirstlane") or op.startswith("v_readlane"):
        d["kind"] = "valu"; d["dst"] = regs_of(ops[0]); d["src"] = allr(ops[1:]); d["readlane"] = True
    elif op.startswith("v_permlane"):
        d["kind"] = "valu"; d["dst"] = allr(ops[:2]); d["src"] = allr(ops[:2]); d["permlane"] = True
    elif op.startswith("v_"):
        d["kind"] = "valu"; d["dst"] = regs_of(ops[0]); d["src"] = allr(ops[1:])
        if op.startswith(("v_add_co", "v_addc_co", "v_sub_co")):
            d["dst"] += regs_of(ops[1]); d["src"] = allr(ops[2:])
        if op.startswith("v_fmac") or "_dpp" in op:
            d["src"] += d["dst"]
        if "_dpp" in op: d["dpp"] = True
        if op.split("_e")[0] in TRANS or op in TRANS: d["trans"] = True
    elif op.startswith("ds_"):
        d["kind"] = "ds"
        if op.startswith(("ds_read", "ds_bpermute", "ds_permute", "ds_swizzle")) or "_rtn" in op:
            d["dst"] = regs_of(ops[0]); d["src"] = allr(ops[1:])
        else:
            d["src"] = allr(ops)
    elif op.startswith(("buffer_", "global_")):
        d["kind"] = "vmem"
        islds = ln.rstrip().endswith(" lds") or "_lds_" in op
        if "load" in op and not islds:
            d["dst"] = regs_of(ops[0]); d["src"] = allr(ops[1:])
        else:
            d["src"] = allr(ops)
            if islds: d["src"].append("m0"); d["dma"] = True
            if "store" in op and ("x4" in op or "x3" in op):
                d["widestore"] = regs_of(ops[0]) if op.startswith("buffer") else regs_of(ops[1])
    elif op.startswith("s_"):
        d["kind"] = "salu"
        if op.startswith(("s_cmp", "s_bitcmp", "s_cbranch", "s_branch", "s_waitcnt", "s_barrier", "s_nop", "s_endpgm", "s_setprio", "s_sleep")):
            d["src"] = allr(ops)
        else:
            d["dst"] = regs_of(ops[0]) if ops else []; d["src"] = allr(ops[1:])
            if "saveexec" in op: d["dst"].append("exec")
        if op == "s_nop": d["ws"] = int(ops[0], 0) + 1
    return d

def check_seq(seq, name=""):
    probs = []
    n = len(seq)
    for i, c in enumerate(seq):
        dist = 0
        for j in range(i - 1, max(-1, i - 24), -1):
            p = seq[j]
            need = 0; why = ""
            pd = set(p["dst"])
            if p["kind"] == "valu":
                if c["kind"] == "mfma" and pd & set(c["src"]): need, why = 2, "valu->mfma"
                if c["kind"] == "mfma" and "exec" in pd: need, why = 4, "exec->mfma"
                if p.get("trans") and c["kind"] == "valu" and not c.get("trans") and pd & set(c["src"]): need, why = max(need, 1), "trans->valu"
                if c.get("readlane") and pd & set(r for r in c["src"] if r[0] == "v" and r != "vcc"): need, why = max(need, 1), "valu->readlane"
                if c.get("readlane") and "exec" in pd: need, why = 4, "exec->readlane"
                if c.get("dpp") and pd & set(c["src"]): need, why = max(need, 2), "valu->dpp"
                if c.get("dpp") and "exec" in pd: need, why = 5, "exec->dpp"
                if c.get("permlane") and pd & set(c["src"]): need, why = max(need, 2), "valu->permlane"
                sg = set(r for r in pd if r[0] == "s" or r == "vcc")
                if c["kind"] == "vmem" and sg & set(c["src"]): need, why = 5, "valu sgpr->vmem"
                if c["kind"] == "valu" and (sg & set(c["src"])): need, why = max(need, 4 if c.get("readlane") else 2), "valu sgpr->valu"
            if p["kind"] == "mfma":
                big = {8: 12, 4: 8}[p["passes"]]
                if c["kind"] in ("valu", "vmem", "ds") and (pd & (set(c["src"]) | set(c["dst"]))): need, why = big, "mfma D->use"
                if c["kind"] == "mfma":
                    if pd & (set(c["A"]) | set(c["B"])): need, why = big, "mfma D->AB"
                    elif pd & set(c["C"]) and p["dst"] != c["C"]: need, why = big - 2, "mfma D->C overlap"
                if c["kind"] == "valu" and set(p["C"]) & set(c["dst"]): need, why = max(need, {8: 7, 4: 3}[p["passes"]]), "mfma C WAR"
            if p["kind"] == "salu" and "m0" in pd and c.get("dma"): need, why = 1, "m0->dma"
            if p.get("widestore") and set(p["widestore"]) & set(c["dst"]): need, why = 2, "store data WAR"
            if need > dist:
                probs.append(f"{name}: need {need} have {dist} ({why}): [{p['text']}] -> [{c['text']}]")
            dist += p.get("ws", 1)
    return probs

def check_text(text):
    lines = [l.strip() for l in text.split("\n")]
    instrs = []; labels = {}
    for l in lines:
        l0 = l.split(";")[0].strip()
        if l0.endswith(":"):
            labels[l0[:-1]] = len(instrs); continue
        p = parse(l)
        if p: instrs.append(p)
    probs = []
    seg = []
    for p in instrs:
        seg.append(p)
        if p["op"] in ("s_branch", "s_endpgm"):
            probs += check_seq(seg, "fall"); seg = []
    probs += check_seq(seg, "fall")
    def back(i, n):
        out = []
        j = i
        while j >= 0 and len(out) < n:
            if j != i and instrs[j]["op"] in ("s_branch", "s_endpgm"): break
            out.append(instrs[j]); j -= 1
        return out[::-1]
    def fwd(i, n, depth=0):
        out = []
        j = i
        while j < len(instrs) and len(out) < n:
            out.append(instrs[j])
            if instrs[j]["op"] == "s_endpgm": break
            if instrs[j]["op"] == "s_branch":
                t = instrs[j]["text"].split()[1]
                if t in labels and depth < 3: out += fwd(labels[t], n - len(out), depth + 1)
                break
            j += 1
        return out
    for i, p in enumerate(instrs):
        if p["op"].startswith(("s_cbranch", "s_branch")):
            t = p["text"].split()[1]
            if t in labels:
                probs += check_seq(back(i, 24) + fwd(labels[t], 24), "edge " + t)
    return sorted(set(probs))

import subprocess, tempfile, os
def sizes_of(lines):
    src = '.amdgcn_target "amdgcn-amd-amdhsa--gfx950"\n' + "\n".join(lines) + "\n"
    r = subprocess.run(["llvm-mc", "-triple", "amdgcn-amd-amdhsa", "-mcpu=gfx950", "-show-encoding"], input=src, capture_output=True, text=True)
    assert r.returncode == 0, r.stderr
    enc = [l.split("encoding: [")[1].count(",") + 1 for l in r.stdout.split("\n") if "encoding: [" in l]
    out = []; k = 0
    for l in lines:
        if parse(l) is None: out.append(0)
        else: out.append(enc[k]); k += 1
    assert k == len(enc)
    return out

def promote(l):
    op = l.split()[0]
    if op.startswith("s_bitcmp"):
        a, b = l.rsplit(",", 1)
        return f"{a}, {int(b) + 128}"
    if op.startswith("v_") and not op.startswith(("v_readfirstlane", "v_cmpx", "v_addc", "v_add_co")) and not op.endswith(("_e64", "_dpp", "_sdwa")):
        return l.replace(op, op + "_e64", 1)
    return None

def align_pass(lines, start, end, nop=False):
    sz = sizes_of(lines)
    out = []; off = 0; on = False; run = []
    bad = 0
    for l, n in zip(lines, sz):
        if l.startswith(".p2align"): off = 0
        if l == start + ":": on = True
        if l == "K2_LOOP:" and off % 8:
            out.append("s_nop 0"); off += 4; run = []
        if l == end + ":": on = False
        if n == 0:
            if on and l.endswith(":") and off % 8 and out and out[-1].split()[0] in ("s_branch", "s_endpgm"):
                out.append("s_nop 0"); off += 4; run = []
            out.append(l); continue
        if n == 4:
            run.append((len(out), off % 8 == 0))
        else:
            if on and off % 8:
                c = [i for i, al in run if al and promote(out[i])] or [i for i, al in run if promote(out[i])]
                if c: out[c[-1]] = promote(out[c[-1]]); off += 4
                elif nop: out.append("s_nop 0"); off += 4
                else: bad += 1
            run = []
        out.append(l); off += n
    return out, bad
```

```python
import sys
from asmlib import *

NAME = "gather_scatter__mpnn_edge_mlp__graph"
class Cfg:
    modeA = False
    wsoff = 0
    st_pol = "sc1"
    ld_pol = "nt"
    e_pol = ""
    prefetchP = 1
    pf0 = False
    early = True
    o_pol = "sc1"
    ot_pol = ""
    touch = 3
    etouch = 0
    epos = 1
    align = 1
    prio = 2
    p_pol = 'sc1'
    pfm = 0
    pfmpos = 5
    pfe = 0
    et_pol = ''
    t1pos = 1
    pfn = 320
    pfpos = 1
    nw = '4,4,4,4'
    x_pol = ""
    dbg = False
    lst = False
    x = ""
    rep = ""
cfg = Cfg()

NB = 250; NPB = 50; CH = 1600
WS_P = 4096; WS_S01 = 0x320000; WS_REC = 0x900000; WS_OFFT = 0xA90000; WS_W3F = 0xAD0000; WS_WF = 0xAE0000
LOG2E_NEG = "0xbfb8aa3b"
LN2_NEG = "0xbf317218"

S_X, S_E, S_SRC, S_DST, S_WM, S_WU, S_OUT, S_DBG, S_WS = 4, 6, 8, 10, 12, 14, 16, 18, 20

def load_args(a):
    a.e("s_load_dwordx16 s[4:19], s[0:1], 0")
    a.e("s_load_dwordx2 s[20:21], s[0:1], 64")

def srd(a, d, ptr, off_s=None, off_c=0, size=0):
    if off_s is not None:
        a.e(f"s_add_u32 s{d}, s{ptr}, s{off_s}")
        a.e(f"s_addc_u32 s{d+1}, s{ptr+1}, 0")
        if off_c:
            a.e(f"s_add_u32 s{d}, s{d}, {off_c}")
            a.e(f"s_addc_u32 s{d+1}, s{d+1}, 0")
    elif off_c:
        a.e(f"s_add_u32 s{d}, s{ptr}, {off_c}")
        a.e(f"s_addc_u32 s{d+1}, s{ptr+1}, 0")
    else:
        a.e(f"s_mov_b32 s{d}, s{ptr}")
        a.e(f"s_mov_b32 s{d+1}, s{ptr+1}")
    a.e(f"s_mov_b32 s{d+2}, {size}")
    a.e(f"s_mov_b32 s{d+3}, 0x20000")

def idmap(a, dst, src, t):
    a.e(f"s_and_b32 s{t}, s{src}, 7")
    a.e(f"s_lshr_b32 s{dst}, s{src}, 3")
    a.e(f"s_mul_i32 s{t+1}, s{t}, 31")
    a.e(f"s_add_u32 s{dst}, s{dst}, s{t+1}")
    a.e(f"s_min_u32 s{t}, s{t}, 2")
    a.e(f"s_add_u32 s{dst}, s{dst}, s{t}")

def scan64(a, v):
    for sh in (1, 2, 4, 8):
        a.e("s_nop 1")
        a.e(f"v_add_u32_dpp v{v}, v{v}, v{v} row_shr:{sh} row_mask:0xf bank_mask:0xf bound_ctrl:0")
    a.e("s_nop 1")
    a.e(f"v_add_u32_dpp v{v}, v{v}, v{v} row_bcast:15 row_mask:0xa bank_mask:0xf")
    a.e("s_nop 1")
    a.e(f"v_add_u32_dpp v{v}, v{v}, v{v} row_bcast:31 row_mask:0xc bank_mask:0xf")

def x_dma(a, sX, sW, vL, lds_base, t0, st, pol="", strided=False):
    a.e(f"v_lshrrev_b32 v{t0}, 4, v{vL}")
    a.e(f"v_and_b32 v{t0+1}, 15, v{vL}")
    a.e(f"v_xor_b32 v{t0+1}, v{t0+1}, v{t0}")
    a.e(f"v_lshlrev_b32 v{t0+1}, 4, v{t0+1}")
    a.e(f"v_lshl_add_u32 v{t0}, v{t0}, 8, v{t0+1}")
    a.e(f"s_and_b32 s{st}, s{sW}, 1")
    a.e(f"s_lshl_b32 s{st}, s{st}, 7")
    a.e(f"v_xor_b32 v{t0}, s{st}, v{t0}")
    a.e(f"v_xor_b32 v{t0+1}, 64, v{t0}")
    if strided:
        a.e(f"s_lshr_b32 s{st+1}, s{sW}, 1")
        a.e(f"s_lshl_b32 s{st+1}, s{st+1}, 12")
        a.e(f"s_lshl_b32 s{st}, s{sW}, 11")
        a.e(f"s_add_u32 s{st+1}, s{st+1}, s{st}")
        a.e(f"s_add_u32 m0, s{st+1}, {lds_base}")
    else:
        a.e(f"s_lshl_b32 s{st}, s{sW}, 11")
        a.e(f"s_add_u32 m0, s{st}, {lds_base}")
    a.e("s_nop 0")
    a.e(f"buffer_load_dwordx4 v{t0}, s[{sX}:{sX+3}], s{st} offen {pol} lds")
    a.e(f"buffer_load_dwordx4 v{t0+1}, s[{sX}:{sX+3}], s{st} offen offset:1024 {pol} lds")

def w_lane_const(a, vW, vL, t):
    a.e(f"v_lshrrev_b32 v{t}, 4, v{vL}")
    a.e(f"v_and_b32 v{vW}, 15, v{vL}")
    a.e(f"v_lshlrev_b32 v{vW}, 4, v{vW}")
    a.e(f"v_lshlrev_b32 v{t+1}, 6, v{t}")
    a.e(f"v_xor_b32 v{vW}, v{vW}, v{t+1}")
    a.e(f"v_lshl_add_u32 v{vW}, v{t}, 8, v{vW}")

def w_dma(a, sSrd, vW, sW4096, goff, lds_base, st):
    a.e(f"s_add_u32 s{st}, s{sW4096}, {goff}")
    a.e(f"s_add_u32 m0, s{sW4096}, {lds_base}")
    a.e("s_nop 0")
    for i in range(4):
        o = f" offset:{1024*i}" if i else ""
        a.e(f"buffer_load_dwordx4 v{vW}, s[{sSrd}:{sSrd+3}], s{st} offen{o} lds")

def wfrag_const(a, vA, vL, sW, t, st):
    a.e(f"v_lshrrev_b32 v{t}, 5, v{vL}")
    a.e(f"v_bfe_u32 v{t+1}, v{vL}, 2, 2")
    a.e(f"v_lshl_add_u32 v{t}, v{t}, 3, v{t+1}")
    a.e(f"v_lshlrev_b32 v{vA}, 8, v{t}")
    a.e(f"v_and_b32 v{t}, 1, v{vL}")
    a.e(f"v_lshlrev_b32 v{t}, 5, v{t}")
    a.e(f"v_bfe_u32 v{t+2}, v{vL}, 1, 1")
    a.e(f"v_lshl_add_u32 v{t}, v{t+2}, 3, v{t}")
    a.e(f"v_bfe_u32 v{t+2}, v{vL}, 4, 1")
    a.e(f"v_lshl_add_u32 v{t}, v{t+2}, 4, v{t}")
    a.e(f"s_and_b32 s{st}, s{sW}, 3")
    a.e(f"s_lshl_b32 s{st}, s{st}, 6")
    a.e(f"v_add_u32 v{t}, s{st}, v{t}")
    a.e(f"v_lshlrev_b32 v{t+1}, 6, v{t+1}")
    a.e(f"v_xor_b32 v{t}, v{t}, v{t+1}")
    a.e(f"v_add_u32 v{vA}, v{vA}, v{t}")

def wfrag_read(a, dst, vAddr, off=0, stride=4096):
    for s in range(8):
        for u in range(2):
            r = (dst[s] if isinstance(dst, list) else dst + 4*s) + 2*u
            a.e(f"ds_read_b64_tr_b16 v[{r}:{r+1}], v{vAddr} offset:{off+s*stride+u*1024}")

def xfrag_read(a, dst, vL, sW, lds_base, t, st):
    a.e(f"v_and_b32 v{t}, 31, v{vL}")
    a.e(f"v_lshrrev_b32 v{t+1}, 5, v{vL}")
    a.e(f"v_and_b32 v{t+2}, 15, v{vL}")
    a.e(f"v_xor_b32 v{t+1}, v{t+1}, v{t+2}")
    a.e(f"v_lshlrev_b32 v{t+1}, 4, v{t+1}")
    a.e(f"v_lshl_add_u32 v{t}, v{t}, 8, v{t+1}")
    a.e(f"s_lshr_b32 s{st}, s{sW}, 2")
    a.e(f"s_lshl_b32 s{st}, s{st}, 13")
    a.e(f"s_add_u32 s{st}, s{st}, {lds_base}")
    a.e(f"v_add_u32 v{t}, s{st}, v{t}")
    for s in range(8):
        if s == 0:
            a.e(f"ds_read_b128 v[{dst}:{dst+3}], v{t}")
        else:
            r = t + 1 + (s & 1)
            a.e(f"v_xor_b32 v{r}, {32*s}, v{t}")
            a.e(f"ds_read_b128 v[{dst+4*s}:{dst+4*s+3}], v{r}")

def gemm8(a, acc, A, B, zero=True):
    for s in range(8):
        c = "0" if (s == 0 and zero) else f"v[{acc}:{acc+15}]"
        r = A[s] if isinstance(A, list) else A + 4*s
        a.e(f"v_mfma_f32_32x32x16_bf16 v[{acc}:{acc+15}], v[{r}:{r+3}], v[{B+4*s}:{B+4*s+3}], {c}")

WS_DBG = 0x2000000
def stamp(a, i, vst):
    if not cfg.dbg: return
    a.e("s_memrealtime s[90:91]")
    a.e("s_waitcnt lgkmcnt(0)")
    a.e(f"v_writelane_b32 v{vst}, s90, {i}")
def stamp_out(a, vst, vt, kidx):
    if not cfg.dbg: return
    srd(a, 92, S_WS, off_c=WS_DBG + kidx * 0x100000, size=0x100000)
    a.e(f"s_lshl_b32 s90, s2, 11")
    a.e(f"v_lshl_add_u32 v{vt}, v0, 2, s90")
    a.e(f"buffer_store_dword v{vst}, v{vt}, s[92:95], 0 offen")

def kernel_head(a, name):
    a.e(".text")
    a.e(f".globl {name}")
    a.e(".p2align 8")
    a.e(f".type {name},@function")
    a.label(name)

def kernel_desc(name, vg, sg):
    acc = (vg + 3) // 4 * 4
    return f""".amdhsa_kernel {name}
  .amdhsa_next_free_vgpr {vg}
  .amdhsa_next_free_sgpr {sg}
  .amdhsa_accum_offset {acc}
  .amdhsa_group_segment_fixed_size 0
  .amdhsa_kernarg_size 72
  .amdhsa_user_sgpr_count 2
  .amdhsa_user_sgpr_kernarg_segment_ptr 1
  .amdhsa_system_sgpr_workgroup_id_x 1
.end_amdhsa_kernel
"""

K1_LDS_A = 16384 + 57344
K1_LDS_B = 49152 + 64*272
def gen_k1(a):
    kernel_head(a, "prep_kernel")
    load_args(a)
    sW, sId, sT = 22, 23, 44
    vL = 1
    a.e(f"v_and_b32 v{vL}, 63, v0")
    a.e(f"v_lshrrev_b32 v2, 6, v0")
    a.e("s_nop 0")
    a.e(f"v_readfirstlane_b32 s{sW}, v2")
    if cfg.dbg: a.e("v_mov_b32 v97, 0")
    stamp(a, 0, 97)
    if cfg.dbg:
        a.e("s_getreg_b32 s90, hwreg(HW_REG_XCC_ID)")
        a.e("s_add_u32 s90, s90, 1")
        a.e("v_writelane_b32 v97, s90, 63")
    a.e("s_cmp_lt_u32 s2, 125")
    a.e("s_cbranch_scc1 K1_BIN")
    a.e("s_cmp_eq_u32 s2, 125")
    a.e("s_cbranch_scc1 K1_W3")
    a.e("s_sub_u32 s3, s2, 128")
    a.e("s_cmp_ge_u32 s3, 250")
    a.e("s_cbranch_scc1 K1_END")
    idmap(a, sId, 3, sT)
    a.e(f"s_mul_i32 s{sT+2}, s{sId}, 12800")
    a.e("s_waitcnt lgkmcnt(0)")
    srd(a, 24, S_X, off_s=sT+2, size=12800)
    srd(a, 28, S_WM, size=272*256)
    srd(a, 32, S_WS, off_s=sT+2, off_c=cfg.wsoff + WS_P, size=12800)
    x_dma(a, 24, sW, vL, 0, 2, sT, cfg.x_pol)
    w_lane_const(a, 4, vL, 5)
    a.e(f"s_lshl_b32 s{sT+3}, s{sW}, 12")
    w_dma(a, 28, 4, sT+3, 0, 16384, sT)
    if cfg.touch:
        a.e(f"s_cmp_lg_u32 s{sW}, 7")
        a.e("s_cbranch_scc1 K1_NOTOUCH")
        a.e(f"s_lshr_b32 s{sT}, s3, 3")
        a.e(f"v_lshlrev_b32 v40, 7, v{vL}")
        if cfg.touch & 1:
            srd(a, 60, S_WM, off_c=32768, size=32768)
            srd(a, 64, S_WU, size=65536)
            a.e(f"s_mul_i32 s{sT+1}, s{sT}, {9*128}")
            a.e("s_mov_b64 exec, 0x1ff")
            a.e(f"buffer_load_dword v41, v40, s[60:63], s{sT+1} offen")
            a.e(f"s_mul_i32 s{sT+1}, s{sT}, {17*128}")
            a.e("s_mov_b64 exec, 0x1ffff")
            a.e(f"buffer_load_dword v42, v40, s[64:67], s{sT+1} offen")
        if cfg.touch & 2:
            a.e("s_mov_b64 exec, 0xf")
            a.e("s_getpc_b64 s[68:69]")
            a.label("K1_PC")
            a.e(f"s_add_u32 s68, s68, {NAME}_kernel-K1_PC")
            a.e("s_addc_u32 s69, s69, 0")
            a.e(f"s_lshl_b32 s{sT+1}, s{sT}, 9")
            a.e(f"v_add_u32 v44, s{sT+1}, v40")
            a.e(f"v_min_u32 v44, K2_CODE_END-{NAME}_kernel-4, v44")
            a.e("v_mov_b32 v45, s69")
            a.e("v_add_co_u32 v44, vcc, s68, v44")
            a.e("s_nop 1")
            a.e("v_addc_co_u32 v45, vcc, 0, v45, vcc")
            a.e("global_load_dword v43, v[44:45], off")
        a.e("s_mov_b64 exec, -1")
        a.label("K1_NOTOUCH")
    wfrag_const(a, 8, vL, sW, 9, sT)
    OT = 49152
    a.e(f"v_and_b32 v12, 31, v{vL}")
    a.e(f"v_lshrrev_b32 v13, 5, v{vL}")
    a.e(f"v_lshlrev_b32 v13, 5, v13")
    a.e(f"v_mul_u32_u24 v12, 272, v12")
    a.e(f"s_lshr_b32 s{sT}, s{sW}, 2")
    a.e(f"s_mul_i32 s{sT}, s{sT}, {32*272}")
    a.e(f"s_and_b32 s{sT+1}, s{sW}, 3")
    a.e(f"s_lshl_b32 s{sT+1}, s{sT+1}, 6")
    a.e(f"s_add_u32 s{sT}, s{sT}, s{sT+1}")
    a.e(f"v_add3_u32 v12, s{sT}, v12, v13")
    a.e(f"v_lshrrev_b32 v13, 4, v0")
    a.e(f"v_lshlrev_b32 v14, 4, v0")
    a.e(f"v_lshl_add_u32 v13, v13, 4, v14")
    if cfg.etouch in (1, 3):
        a.e(f"s_lshl_b32 s{sT}, s{sT+2}, 2")
        srd(a, 36, S_E, off_s=sT, size=51200)
        a.e(f"v_lshlrev_b32 v15, 3, v{vL}")
        a.e(f"v_add_lshl_u32 v15, v15, s{sW}, 7")
    if cfg.etouch == 3:
        a.e(f"buffer_load_dword v15, v15, s[36:39], 0 offen {cfg.et_pol}")
        a.e("s_waitcnt vmcnt(1)")
    else:
        a.e("s_waitcnt vmcnt(0)")
    stamp(a, 1, 97)
    a.e("s_barrier")
    if cfg.etouch == 1:
        a.e(f"buffer_load_dword v15, v15, s[36:39], 0 offen {cfg.et_pol}")
    xfrag_read(a, 16, vL, sW, 0, 9, sT)
    wfrag_read(a, 48, 8, 16384)
    a.e("s_waitcnt lgkmcnt(0)")
    gemm8(a, 80, 48, 16)
    a.e(f"s_mov_b32 s{sT}, {LOG2E_NEG}")
    a.e("s_nop 15")
    for i in range(16):
        a.e(f"v_mul_f32 v{80+i}, s{sT}, v{80+i}")
    for i in range(8):
        a.e(f"v_cvt_pk_bf16_f32 v{16+i}, v{80+2*i}, v{81+2*i}")
    a.e(f"ds_write_b128 v12, v[16:19] offset:{OT}")
    a.e(f"ds_write_b128 v12, v[20:23] offset:{OT+16}")
    a.e("s_movk_i32 s3, 8192")
    a.e("s_waitcnt lgkmcnt(0)")
    a.e("s_barrier")
    a.e(f"ds_read_b128 v[24:27], v13 offset:{OT}")
    a.e(f"ds_read_b128 v[28:31], v13 offset:{OT+32*272}")
    a.e("s_waitcnt lgkmcnt(1)")
    a.e(f"buffer_store_dwordx4 v[24:27], v14, s[32:35], 0 offen {cfg.p_pol}")
    a.e("s_waitcnt lgkmcnt(0)")
    a.e(f"buffer_store_dwordx4 v[28:31], v14, s[32:35], s3 offen {cfg.p_pol}")
    stamp(a, 2, 97)
    if cfg.dbg: a.e("s_waitcnt vmcnt(0)")
    stamp(a, 3, 97)
    stamp_out(a, 97, 98, 0)
    a.e("s_endpgm")
    SL, FLAG, SORT = 0, 36864, 36880
    a.label("K1_BIN")
    sId = 2
    a.e(f"s_mul_i32 s{sT+2}, s{sId}, 12800")
    a.e(f"s_mul_i32 s{sT+3}, s{sId}, 32000")
    a.e("v_lshlrev_b32 v2, 4, v0")
    a.e("s_movk_i32 s3, 6400")
    a.e("s_movk_i32 s59, 400")
    a.e("v_cmp_gt_u32 s[60:61], s59, v0")
    a.e("s_waitcnt lgkmcnt(0)")
    D, S, BA, RK, AD = 4, 12, 20, 28, 36
    srd(a, 24, S_DST, off_s=sT+2, size=12800)
    a.e(f"buffer_load_dwordx4 v[{D}:{D+3}], v2, s[24:27], 0 offen {cfg.ld_pol}")
    a.e(f"buffer_load_dwordx4 v[{D+4}:{D+7}], v2, s[24:27], s3 offen {cfg.ld_pol}")
    srd(a, 28, S_SRC, off_s=sT+2, size=12800)
    a.e(f"buffer_load_dwordx4 v[{S}:{S+3}], v2, s[28:31], 0 offen {cfg.ld_pol}")
    a.e(f"buffer_load_dwordx4 v[{S+4}:{S+7}], v2, s[28:31], s3 offen {cfg.ld_pol}")
    srd(a, 32, S_WS, off_s=sT+3, off_c=cfg.wsoff + WS_S01, size=32000)
    a.e("v_mov_b32 v44, 1")
    a.e("v_min_u32 v3, 256, v0")
    a.e("v_mul_u32_u24 v3, 144, v3")
    a.e(f"ds_write_b32 v3, v44 offset:{SL}")
    a.e("v_lshlrev_b32 v45, 22, v0")
    a.e("s_movk_i32 s58, 5243")
    a.e("s_movk_i32 s57, 144")
    a.e("v_lshrrev_b32 v46, 3, v0")
    a.e("v_lshl_add_u32 v46, v46, 4, v2")
    a.e(f"v_mov_b32 v48, {FLAG}")
    a.e("s_movk_i32 s62, 8192\ns_movk_i32 s63, 16384\ns_movk_i32 s64, 24576")
    a.e("s_waitcnt lgkmcnt(0)")
    a.e("s_barrier")
    if cfg.etouch == 2:
        a.e(f"s_cmp_lg_u32 s{sW}, 7")
        a.e("s_cbranch_scc1 K1_NOET")
        a.e(f"s_lshl_b32 s{sT}, s{sT+2}, 3")
        srd(a, 36, S_E, off_s=sT, size=102400)
        a.e(f"v_lshlrev_b32 v50, 7, v{vL}")
        for j in range(13):
            a.e(f"buffer_load_dword v51, v50, s[36:39], 0 offen {cfg.et_pol}")
            if j < 12: a.e("v_add_u32 v50, 0x2000, v50")
        a.e("s_branch K1_B2")
        a.label("K1_NOET")
    a.e("s_mov_b64 exec, s[60:61]")
    for j in range(2):
        a.e(f"s_waitcnt vmcnt({3-j})")
        if j == 0: stamp(a, 1, 97)
        for i in range(4*j, 4*j+4):
            a.e(f"v_mul_u32_u24 v{AD+i}, s58, v{D+i}")
            a.e(f"v_lshrrev_b32 v{AD+i}, 18, v{AD+i}")
            a.e(f"v_mul_u32_u24 v{BA+i}, s57, v{AD+i}")
            a.e(f"ds_add_rtn_u32 v{RK+i}, v{BA+i}, v44 offset:{SL}")
    for i in range(8):
        a.e(f"v_mul_u32_u24 v{AD+i}, 50, v{AD+i}")
        a.e(f"v_sub_u32 v{D+i}, v{D+i}, v{AD+i}")
        if i: a.e(f"v_add_u32 v45, {hex(((1600-3) if i == 4 else 1) << 20)}, v45")
        a.e(f"v_or_b32 v{D+i}, v{D+i}, v45")
    a.e(f"s_waitcnt vmcnt(0)")
    stamp(a, 4, 97)
    for i in range(8):
        a.e(f"s_waitcnt lgkmcnt(7)")
        a.e(f"v_min_u32 v{AD+i}, 32, v{RK+i}")
        a.e(f"v_lshl_or_b32 v{D+i}, v{S+i}, 6, v{D+i}")
        a.e(f"v_lshl_add_u32 v{AD+i}, v{AD+i}, 2, v{BA+i}")
        a.e(f"ds_write_b32 v{AD+i}, v{D+i} offset:{SL}")
    a.e(f"v_max3_u32 v47, v{RK}, v{RK+1}, v{RK+2}")
    a.e(f"v_max3_u32 v47, v47, v{RK+3}, v{RK+4}")
    a.e(f"v_max3_u32 v47, v47, v{RK+5}, v{RK+6}")
    a.e(f"v_max_u32 v47, v47, v{RK+7}")
    a.e("v_cmpx_le_u32 vcc, 32, v47")
    a.e("ds_write_b32 v48, v47")
    a.e("s_mov_b64 exec, -1")
    a.e("s_waitcnt lgkmcnt(0)")
    stamp(a, 5, 97)
    a.label("K1_B2")
    a.e("s_barrier")
    stamp(a, 6, 97)
    for j in range(4):
        a.e(f"ds_read_b128 v[{52+4*j}:{55+4*j}], v46 offset:{SL + j*9216}")
    a.e(f"ds_read_b32 v49, v48")
    for j in range(4):
        a.e(f"s_waitcnt lgkmcnt({4-j})")
        a.e(f"buffer_store_dwordx4 v[{52+4*j}:{55+4*j}], v2, s[32:35], {['0','s62','s63','s64'][j]} offen {cfg.st_pol}")
    a.e("s_waitcnt lgkmcnt(0)")
    a.e("v_readfirstlane_b32 s3, v49")
    a.e("s_cmp_lg_u32 s3, 1")
    a.e("s_cbranch_scc1 K1_FULL")
    stamp(a, 2, 97)
    if cfg.dbg: a.e("s_waitcnt vmcnt(0)")
    stamp(a, 3, 97)
    stamp_out(a, 97, 98, 0)
    a.label("K1_END")
    a.e("s_endpgm")
    a.label("K1_FULL")
    a.e("s_waitcnt vmcnt(0)")
    a.e(f"s_lshl_b32 s{sT+4}, s{sId}, 2")
    srd(a, 32, S_WS, off_s=sT+2, off_c=cfg.wsoff + WS_REC, size=12800)
    srd(a, 36, S_WS, off_s=sT+4, off_c=cfg.wsoff + WS_OFFT, size=250*1024 - 1000)
    a.e(f"v_mul_u32_u24 v3, {4*144}, v{vL}")
    for i in range(4):
        a.e(f"ds_read_b32 v{52+i}, v3 offset:{SL + 144*i}")
    a.e("s_waitcnt lgkmcnt(0)")
    for i in range(4):
        a.e(f"v_add_u32 v{52+i}, -1, v{52+i}")
    a.e("v_add_u32 v56, v52, v53")
    a.e("v_add_u32 v57, v56, v54")
    a.e("v_add_u32 v58, v57, v55")
    a.e("v_mov_b32 v60, v58")
    scan64(a, 60)
    a.e("v_sub_u32 v60, v60, v58")
    a.e("v_add_u32 v61, v60, v52")
    a.e("v_add_u32 v62, v60, v56")
    a.e("v_add_u32 v63, v60, v57")
    for i in range(4):
        a.e(f"ds_write_b32 v3, v{60+i} offset:{SL + 144*i + 132}")
    a.e(f"s_cmp_lg_u32 s{sW}, 7")
    a.e("s_cbranch_scc1 K1_NOFFT")
    a.e(f"v_lshlrev_b32 v59, 12, v{vL}")
    for i in range(4):
        o = f" offset:{1024*i}" if i else ""
        a.e(f"buffer_store_dword v{60+i}, v59, s[36:39], 0 offen{o}")
    a.label("K1_NOFFT")
    a.e("s_mov_b64 exec, s[60:61]")
    a.e("s_waitcnt lgkmcnt(0)")
    for i in range(8):
        a.e(f"ds_read_b32 v{BA+i}, v{BA+i} offset:{SL + 132}")
    a.e("s_waitcnt lgkmcnt(0)")
    for i in range(8):
        a.e(f"v_add_lshl_u32 v{BA+i}, v{BA+i}, v{RK+i}, 2")
        a.e(f"ds_write_b32 v{BA+i}, v{D+i} offset:{SORT - 4}")
    a.e("s_mov_b64 exec, -1")
    a.e("s_waitcnt lgkmcnt(0)")
    a.e("s_barrier")
    a.e(f"ds_read_b128 v[4:7], v2 offset:{SORT}")
    a.e(f"ds_read_b128 v[8:11], v2 offset:{SORT + 8192}")
    a.e(f"s_waitcnt lgkmcnt(0)")
    a.e(f"buffer_store_dwordx4 v[4:7], v2, s[32:35], 0 offen")
    a.e(f"buffer_store_dwordx4 v[8:11], v2, s[32:35], s62 offen")
    a.e("s_endpgm")
    a.label("K1_W3")
    a.e("s_waitcnt lgkmcnt(0)")
    srd(a, 24, S_WM, off_c=65536, size=4096)
    srd(a, 28, S_WS, off_c=cfg.wsoff + WS_W3F, size=4096)
    a.e("v_and_b32 v3, 31, v0")
    a.e("v_lshlrev_b32 v3, 1, v3")
    a.e("v_bfe_u32 v4, v0, 5, 1")
    a.e("v_lshl_add_u32 v3, v4, 11, v3")
    a.e("v_bfe_u32 v4, v0, 6, 2")
    a.e("v_lshl_add_u32 v3, v4, 6, v3")
    for j in range(8):
        o = f" offset:{256*j}" if j else ""
        a.e(f"buffer_load_ushort v{8+j}, v3, s[24:27], 0 offen{o}")
    a.e(f"s_mov_b32 s{sT}, {LOG2E_NEG}")
    a.e("v_lshlrev_b32 v4, 4, v0")
    a.e("s_waitcnt vmcnt(0)")
    for j in range(8):
        a.e(f"v_lshlrev_b32 v{8+j}, 16, v{8+j}")
        a.e(f"v_mul_f32 v{8+j}, s{sT}, v{8+j}")
    for j in range(4):
        a.e(f"v_cvt_pk_bf16_f32 v{16+j}, v{8+2*j}, v{9+2*j}")
    a.e(f"buffer_store_dwordx4 v[16:19], v4, s[28:31], 0 offen {cfg.st_pol}")
    a.e("s_endpgm")

CNT, FLG, LUT, QL, LIST, AGG, SIDE, WU2, STG = 0, 256, 288, 576, 13776, 30800, 57200, 65536, 98304
MAXT = 65
K2_LDS = 163840
vL, vM = 1, 2
vOC, vREM, vROFF, vEB = 3, 4, 5, 6
vAE, vAP, vAQ = 7, 8, 9
vCP, vRP0, vRP1, vCQ, vCL, vCA, vH16, vFA = 10, 11, 12, 13, 14, 15, 16, 17
vPA = 144
vEA, vLA = 20, 21
vQA = 22
vRS = 148
vC4 = 152
ACC = 156
vRN = 28
vRE = 30
vSD = 31
vCUR = 32
vCHK = 34
vWC, vWA = 35, 36
vPF = 38
vT = 40
Z = 64; PX = 128; PY = 128; QX = 160; QY = 168; EE = 176; AQ = 184; AP = 188; IDX = 192; W3 = 196
NN = 212; DD = 220; EX = 228; TT = 232; ACX = 236
sP, sE, sX, sO, sR, sWm, sWu, sOT = 24, 28, 32, 36, 40, 44, 48, 52
sW, sBin, sNT, sCnt, sG0, sG1, sG2, sLim, sDone, sSafe, sW4k, sM0, sMask, sMore, sFirst, sDm = 22, 23, 56, 57, 58, 59, 60, 61, 62, 63, 64, 65, 66, 67, 68, 69
sT = 70
sX0 = 80
sSusp = 88
sF0, sF1 = 32, 34
sMA, sMB = 58, 59
PSIZE = 12500 * 256 + 3072
s256 = 79
ESIZE = 400000 * 32

def dma_m0(H, dest=None):
    if dest is None: dest = H
    return f"s_add_u32 m0, s{sW4k}, {WU2 - 128*H}" if dest == "alt" else f"s_add_u32 m0, s{sM0}, {dest*4096 - 128*H + 256}"
def dma_ld(H):
    out = []
    for j in range(4):
        imm = 1024 * j + 128 * H
        o = f" offset:{imm}" if imm else ""
        out.append(f"buffer_load_dwordx4 v{vPA+j}, s[{sP}:{sP+3}], 0 offen{o} lds")
    return out
def dma_ops(H, dest=None):
    l = dma_ld(H)
    return [[dma_m0(H, dest), "s_nop 0", l[0]], [l[1]], [l[2]], [l[3]]]
def dma_half(a, H, dest=None):
    for s in sum(dma_ops(H, dest), []): a.e(s)
def pfrag_reads(dst, H, va=None):
    out = []
    va = vRP0 if va is None else va
    for tq in range(2):
        for q in range(4):
            r = dst + 8 * tq + 2 * q
            out.append(f"ds_read_b64_tr_b16 v[{r}:{r+1}], v{va+tq} offset:{H*4096 + q*512}")
    return out
def qfrag_reads(dst, H, par):
    out = []
    for tq in range(2):
        for u in range(2):
            r = dst + 4 * tq + 2 * u
            out.append(f"ds_read_b64_tr_b16 v[{r}:{r+1}], v{vQA+2*par+u} offset:{(2*H+tq)*64}")
    return out
def list_reads_se(o=0):
    return [f"ds_read_b32 v{vRE}, v{vAE} offset:{128*o}", f"ds_read2_b32 v[{vRS}:{vRS+1}], v{vAP} offset0:{32*o} offset1:{32*o+8}", f"ds_read2_b32 v[{vRS+2}:{vRS+3}], v{vAP} offset0:{32*o+16} offset1:{32*o+24}"]
def list_reads_n(o=0):
    return [f"ds_read_u16 v{vRN}, v{vAQ} offset:{128*o}", f"ds_read_u16 v{vRN+1}, v{vAQ} offset:{128*o+64}"]
def addr_p():
    return [f"v_mad_u32_u16 v{vPA+j}, v{vRS+j}, s{s256}, v{vC4+j}" for j in range(4)]
def addr_e():
    return [f"v_and_or_b32 v{vEA}, v{vRE}, s{sMask}, v{vH16}"]
def addr_l():
    return [f"v_and_or_b32 v{vLA}, v{vRE}, 16, v{vCL}", f"v_cmp_gt_i32 vcc, 0, v{vRE}"]
def addr_se():
    return addr_p() + addr_e() + addr_l()
def flags_from_vcc(sF):
    return [f"s_lshr_b32 s{sF+1}, vcc_lo, 4", f"s_mov_b32 s{sF}, vcc_lo", f"s_or_b32 s{sF+1}, s{sF+1}, vcc_lo", f"s_or_b32 s{sF+1}, s{sF+1}, s{sSafe}"]
def addr_q(par):
    return [f"v_add_u32 v{vQA+2*par}, v{vRN}, v{vCQ}", f"v_add_u32 v{vQA+2*par+1}, v{vRN+1}, v{vCQ}"]
def e_load(par):
    return f"buffer_load_dwordx4 v[{EE+4*par}:{EE+4*par+3}], v{vEA}, s[{sE}:{sE+3}], 0 offen {cfg.e_pol}"
def mfmas(c0, Pset, Qset, epar):
    out = []
    zz = lambda c: f"v[{Z+16*c}:{Z+16*c+15}]"
    f4 = lambda r: f"v[{r}:{r+3}]"
    M = "v_mfma_f32_32x32x16_bf16"
    for i in range(2): out.append(f"{M} {zz(c0+i)}, {f4(EE+4*epar)}, {f4(W3+4*(c0+i))}, 0")
    for i in range(2): out.append(f"{M} {zz(c0+i)}, {f4(AQ)}, {f4(Qset+4*i)}, {zz(c0+i)}")
    for i in range(2): out.append(f"v_smfmac_f32_32x32x32_bf16 {zz(c0+i)}, {f4(AP)}, v[{Pset+8*i}:{Pset+8*i+7}], v{IDX}")
    return out
p2 = lambda r: f"v[{r}:{r+1}]"
def flush_code(a, c0, X, mid=(), wait=True):
    t = vT + 8 * X
    for i in range(2):
        c = c0 + i
        a.e(f"v_rcp_f32 v{t+2*i}, v{DD+2*c}")
        a.e(f"v_rcp_f32 v{t+2*i+1}, v{DD+2*c+1}")
    for i in range(2):
        c = c0 + i
        a.e(f"v_max3_f32 v{vCHK}, v{DD+2*c}, v{DD+2*c+1}, v{vCHK}")
    for s in mid: a.e(s)
    if wait: a.e("s_waitcnt lgkmcnt(0)")
    for j in range(2):
        for i in range(2):
            c = c0 + i
            a.e(f"v_fmac_f32 v{ACC+c}, v{NN+2*c+j}, v{t+2*i+j}")

def half_step(a, ool, X, par, extras, tag):
    c0 = 2 * X
    sF0 = (32, 34)[par]
    if X == 0: mf = mfmas(2, PX, QX, par)
    else:      mf = mfmas(0, PY, QY, 1 - par)
    def keep(s):
        if "nodma" in cfg.x and (" lds" in s or "m0" in s or s == "s_nop 0"): return False
        if "noe" in cfg.x and s.startswith("buffer_load") and " lds" not in s: return False
        if "nods" in cfg.x and s.startswith("ds_read"): return False
        if "nowait" in cfg.x and s.startswith("s_waitcnt"): return False
        if "novm" in cfg.x and s.startswith("s_waitcnt vmcnt"): return False
        return True
    extras = {k: [s for s in v if keep(s)] for k, v in extras.items()}
    for s in extras.get("pre", []): a.e(s)
    if cfg.prio == 1: a.e(f"s_setprio {1 - X}")
    if cfg.prio == 2 and X == 0: a.e(f"s_setprio {1 - par}")
    for k in range(8):
        if cfg.prio == 3 and k in (0, 4): a.e(f"s_setprio {1 if k == 0 else 0}")
        if cfg.prio == 4: a.e("s_setprio 1")
        if cfg.prio == 5: a.e("s_setprio 0")
        if "nomfma" not in cfg.x and k < len(mf): a.e(mf[k])
        for i in range(2):
            z = Z + 16 * (c0 + i) + 2 * k
            a.e(f"v_exp_f32 v{EX+2*i}, v{z}")
            a.e(f"v_exp_f32 v{EX+2*i+1}, v{z+1}")
        for s in extras.get(k, []): a.e(s)
        if cfg.prio == 4: a.e("s_setprio 0")
        if cfg.prio == 5: a.e("s_setprio 1")
        bit = 8 * (k >> 1) + 2 * (k & 1)
        lf, lb = f"F_{tag}_{k}", f"R_{tag}_{k}"
        if "nobr" not in cfg.x:
            a.e(f"s_bitcmp1_b32 s{sSafe if 'nofl' in cfg.x else sF0+1}, {bit}")
            a.e(f"s_cbranch_scc1 {lf}")
        for i in range(2):
            c = c0 + i; z = Z + 16 * c + 2 * k
            a.e(f"v_pk_fma_f32 {p2(TT+2*i)}, {p2(z)}, {p2(DD+2*c)}, {p2(NN+2*c)}")
        for i in range(2):
            c = c0 + i
            a.e(f"v_pk_fma_f32 {p2(DD+2*c)}, {p2(DD+2*c)}, {p2(EX+2*i)}, {p2(DD+2*c)}")
        for i in range(2):
            c = c0 + i
            a.e(f"v_pk_fma_f32 {p2(NN+2*c)}, {p2(NN+2*c)}, {p2(EX+2*i)}, {p2(TT+2*i)}")
        a.label(lb)
        ool.label(lf)
        t = vT + 8 * X
        mid = [f"v_mov_b32_dpp v{t+6}, v{vQA+2*par+(k>>2)} row_newbcast:{4*(k&3)} row_mask:0xf bank_mask:0xf"]
        for i in range(2):
            c = c0 + i
            mid.append(f"v_pk_add_f32 {p2(DD+2*c)}, {p2(EX+2*i)}, 1.0 op_sel_hi:[1,0]")
        flush_code(ool, c0, X, mid)
        for i in range(2):
            c = c0 + i; z = Z + 16 * c + 2 * k
            ool.e(f"v_pk_mov_b32 {p2(NN+2*c)}, {p2(z)}, {p2(z)} op_sel:[0,1]")
        ool.e(f"s_bitcmp1_b32 s{sF0}, {bit}")
        ool.e("s_cselect_b32 exec_lo, -1, 0")
        ool.e(f"s_bitcmp1_b32 s{sF0}, {bit+4}")
        ool.e("s_cselect_b32 exec_hi, -1, 0")
        ool.e(f"ds_write2_b32 v{vCUR+X}, v{ACC+c0}, v{ACC+c0+1} offset0:{32*c0} offset1:{32*c0+32}")
        ool.e(f"v_lshl_add_u32 v{vCUR+X}, v{t+6}, 1, v{vCA}")
        ool.e(f"ds_read2_b32 v[{ACC+c0}:{ACC+c0+1}], v{vCUR+X} offset0:{32*c0} offset1:{32*c0+32}")
        ool.e("s_mov_b64 exec, -1")
        ool.e(f"s_branch {lb}")

def lds_fill(a, base, nbytes, vdata, vaddr16, ex):
    n = (nbytes + 15) // 16
    r = 0
    while n >= 512:
        a.e(f"ds_write_b128 v{vaddr16}, v[{vdata}:{vdata+3}] offset:{base + r*8192}")
        n -= 512; r += 1
    if n:
        a.e(f"s_movk_i32 s{sT}, {n}")
        a.e(f"v_cmp_gt_u32 vcc, s{sT}, v0")
        a.e(f"s_and_saveexec_b64 s[{ex}:{ex+1}], vcc")
        a.e(f"ds_write_b128 v{vaddr16}, v[{vdata}:{vdata+3}] offset:{base + r*8192}")
        a.e(f"s_mov_b64 exec, s[{ex}:{ex+1}]")

def reset_round(a, zero_agg):
    t = vT
    a.e(f"v_lshlrev_b32 v{t}, 4, v0")
    a.e(f"v_mov_b32 v{t+8}, 0\nv_mov_b32 v{t+9}, 0\nv_mov_b32 v{t+10}, 0\nv_mov_b32 v{t+11}, 0")
    lds_fill(a, CNT, 272, t+8, t, sX0)
    if zero_agg: lds_fill(a, AGG, 50 * 528 + 8192, t+8, t, sX0)
    else:        lds_fill(a, SIDE, 8192, t+8, t, sX0)

def onehot4(a, dst, vJ, vcond_sgpr, t):
    a.e(f"v_and_b32 v{t}, 1, v{vJ}")
    a.e(f"v_lshlrev_b32 v{t}, 4, v{t}")
    a.e(f"v_mov_b32 v{t+1}, 0x3f80")
    a.e(f"v_lshlrev_b32 v{t}, v{t}, v{t+1}")
    if vcond_sgpr is not None:
        a.e(f"v_cndmask_b32 v{t}, 0, v{t}, s[{vcond_sgpr}:{vcond_sgpr+1}]")
    a.e(f"v_lshrrev_b32 v{t+1}, 1, v{vJ}")
    for i in range(4):
        a.e(f"v_cmp_eq_u32 vcc, {i}, v{t+1}")
        a.e("s_nop 1")
        a.e(f"v_cndmask_b32 v{dst+i}, 0, v{t}, vcc")

def gen_k2(a):
    ool = Asm()
    rare = Asm()
    RC = 160; RK = 172; NA = 184; EN = 212
    XF, WU1F, W2F, QACC = 64, 96, [128, 132, 136, 140, 160, 164, 168, 172], 212
    vLA0, vXA, vW3A, vW0 = vT + 20, vT + 21, vT + 22, vT + 23
    t = vT + 12
    kernel_head(a, NAME + "_kernel")
    load_args(a)
    a.e(f"v_lshrrev_b32 v{vT+1}, 2, v0")
    a.e(f"v_and_b32 v{vW0}, 3, v0")
    a.e("s_cmp_ge_u32 s2, 250")
    a.e("s_cbranch_scc1 K2_END")
    if cfg.dbg:
        a.e("v_mov_b32 v252, 0")
        a.e("s_memrealtime s[92:93]")
    idmap(a, sBin, 2, sT)
    a.e(f"v_mul_u32_u24 v{vEB}, 3200, v{vT+1}")
    a.e(f"v_lshlrev_b32 v{vT+4}, 4, v{vW0}")
    a.e(f"s_lshl_b32 s{sT+2}, s{sBin}, 7")
    a.e(f"s_add_u32 s{sT+2}, s{sT+2}, {cfg.wsoff + WS_S01}")
    a.e(f"v_mad_u32_u24 v{vT+2}, v{vEB}, 10, v{vT+4}")
    a.e(f"s_mov_b32 s{sOT+2}, {124*32000+128}")
    a.e(f"s_mov_b32 s{sOT+3}, 0x20000")
    a.e(f"v_lshrrev_b32 v{vT}, 6, v0")
    a.e(f"v_and_b32 v{vL}, 63, v0")
    a.e(f"v_readfirstlane_b32 s{sW}, v{vT}")
    a.e(f"s_mul_i32 s{sT+3}, s{sBin}, 12800")
    a.e(f"v_mov_b32 v{vT+8}, 0\nv_mov_b32 v{vT+9}, 0\nv_mov_b32 v{vT+10}, 0\nv_mov_b32 v{vT+11}, 0")
    a.e(f"v_lshlrev_b32 v{vW3A}, 4, v{vL}")
    a.e("s_mov_b64 exec, 0x1ffff")
    a.e(f"ds_write_b128 v{vW3A}, v[{vT+8}:{vT+11}] offset:{CNT}")
    a.e("s_mov_b64 exec, -1")
    WU1L = 32768
    NPF = cfg.prefetchP
    vXD, vW3D = vT + 18, vT + 7
    sM = sX0 + 4
    c = Asm(); x_dma(c, sX, sW, vL, STG, vXD, sM + 2, strided=True)
    for x in c.lines[:-4]: a.e(x)
    a.e(f"s_add_u32 s{sM+3}, s{sM+3}, {STG}")
    xd = c.lines[-2:]
    w_lane_const(a, vWC, vL, t)
    a.e(f"s_lshl_b32 s{sW4k}, s{sW}, 12")
    a.e(f"s_lshl_b32 s{sM0}, s{sW}, 13")
    a.e(f"s_add_u32 s{sM}, s{sM0}, {STG + 4096}")
    a.e(f"s_add_u32 s{sM0}, s{sM0}, {STG - 256}")
    a.e(f"s_add_u32 s{sM+1}, s{sW4k}, {WU1L}")
    a.e(f"v_lshlrev_b32 v{vW3D}, 4, v0")
    a.e(f"s_and_b32 s{sT+1}, s{sW}, 4")
    a.e(f"s_add_u32 s{sT}, s{sW}, s{sT+1}")
    a.e(f"s_lshl_b32 s{sT}, s{sT}, 10")
    a.e(f"s_add_u32 m0, s{sT}, {STG + 32768}")
    a.e(f"s_mov_b32 s{sR+2}, 4096")
    a.e(f"s_mov_b32 s{sR+3}, 0x20000")
    a.e("s_waitcnt lgkmcnt(0)")
    a.e(f"s_add_u32 s{sOT}, s{S_WS}, s{sT+2}")
    a.e(f"s_addc_u32 s{sOT+1}, s{S_WS+1}, 0")
    a.e(f"buffer_load_dwordx4 v[{RC}:{RC+3}], v{vT+2}, s[{sOT}:{sOT+3}], 0 offen")
    a.e(f"buffer_load_dwordx4 v[{RC+4}:{RC+7}], v{vT+2}, s[{sOT}:{sOT+3}], 0 offen offset:64")
    a.e(f"s_add_u32 s{sR}, s{S_WS}, {cfg.wsoff + WS_W3F}")
    a.e(f"s_addc_u32 s{sR+1}, s{S_WS+1}, 0")
    a.e(f"buffer_load_dwordx4 v{vW3D}, s[{sR}:{sR+3}], 0 offen lds")
    if cfg.dbg:
        a.e("v_writelane_b32 v252, s92, 0")
        a.e("s_getreg_b32 s90, hwreg(HW_REG_XCC_ID)")
        a.e("s_add_u32 s90, s90, 1")
        a.e("v_writelane_b32 v252, s90, 39")
    stamp(a, 40, 252)
    srd(a, sX, S_X, off_s=sT+3, size=12800)
    srd(a, sO, S_OUT, off_s=sT+3, size=12800)
    srd(a, sWm, S_WM, off_c=32768, size=32768)
    srd(a, sWu, S_WU, size=256*256)
    a.e("s_barrier")
    stamp(a, 41, 252)
    def mix(lines, extra, first=0):
        out = []; n = len(lines); m = len(extra); k = 0; full = True
        for i, x in enumerate(lines):
            while full and k < m and k * n <= i * m: out += extra[k]; k += 1
            out.append(x)
            if "exec" in x.split(",")[0]: full = x.strip() == "s_mov_b64 exec, -1"
        return out + sum(extra[k:], [])
    dm = [[f"s_mov_b32 m0, s{sM+3}", "s_nop 0", xd[0]], [xd[1]]]
    for j, srdw in enumerate((sWm, sWu)):
        for i in range(4):
            o = f" offset:{1024*i}" if i else ""
            dm.append(([f"s_mov_b32 m0, s{sM+j}", "s_nop 0"] if i == 0 else []) + [f"buffer_load_dwordx4 v{vWC}, s[{srdw}:{srdw+3}], s{sW4k} offen{o} lds"])
    c = Asm(); sav = a.lines; a.lines = c.lines
    a.e(f"v_and_b32 v{t+1}, 7, v{vL}")
    onehot4(a, AQ, t+1, None, t+2)
    a.e(f"v_lshlrev_b32 v{t+2}, 5, v{vL}")
    a.e(f"v_and_b32 v{vM}, 31, v0")
    a.e(f"v_lshlrev_b32 v{vW0}, 2, v{vW0}")
    a.e("s_mov_b64 exec, 0x1ff")
    a.e(f"ds_write_b128 v{t+2}, v[{vT+8}:{vT+11}] offset:{LUT+16}")
    a.e("s_mov_b64 exec, 0x100")
    a.e(f"ds_write_b128 v{t+2}, v[{vT+8}:{vT+11}] offset:{LUT}")
    a.e("s_mov_b64 exec, 0xff")
    a.e(f"ds_write_b128 v{t+2}, v[{AQ}:{AQ+3}] offset:{LUT}")
    a.e("s_mov_b64 exec, -1")
    srd(a, sP, S_WS, off_c=cfg.wsoff + WS_P - 3072, size=PSIZE)
    if NPF:
        a.e(f"s_lshr_b32 s{sT}, s2, 3")
        a.e(f"s_mul_i32 s{sT}, s{sT}, {807*128}")
        a.e(f"s_add_u32 s{sT}, s{sT}, 3072")
        a.e(f"v_lshl_add_u32 v{vPF}, v{vL}, 3, s{sW}")
        if cfg.pfn < 512:
            a.e(f"s_movk_i32 s{sT+1}, {cfg.pfn}")
            a.e(f"v_cmp_gt_u32 vcc, s{sT+1}, v{vPF}")
        a.e(f"v_lshl_add_u32 v{vPF}, v{vPF}, 7, s{sT}")
        if NPF > 1:
            a.e(f"v_add_u32 v{vPF+1}, 0x10000, v{vPF}")
        if cfg.pfn < 512:
            a.e(f"v_mov_b32 v{vT+3}, 0x7ffffff0")
            a.e(f"v_cndmask_b32 v{vPF+NPF-1}, v{vT+3}, v{vPF+NPF-1}, vcc")
    if cfg.pfe:
        a.e(f"s_mul_i32 s{sT}, s2, 51200")
        a.e(f"v_lshl_add_u32 v{vPF+1}, v{vL}, 3, s{sW}")
        a.e(f"s_movk_i32 s{sT+1}, {cfg.pfe}")
        a.e(f"v_cmp_gt_u32 vcc, s{sT+1}, v{vPF+1}")
        a.e(f"v_lshl_add_u32 v{vPF+1}, v{vPF+1}, 7, s{sT}")
        a.e(f"v_mov_b32 v{vT+3}, 0x7ffffff0")
        a.e(f"v_cndmask_b32 v{vPF+1}, v{vT+3}, v{vPF+1}, vcc")
    NPP = NPF
    if cfg.pfm:
        a.e(f"v_lshl_add_u32 v{vPF+1}, v{vL}, 3, s{sW}")
        a.e(f"s_movk_i32 s{sT+1}, {cfg.pfm}")
        a.e(f"v_cmp_gt_u32 vcc, s{sT+1}, v{vPF+1}")
        a.e(f"s_add_u32 s{sT}, s{sT}, 0x10000")
        a.e(f"v_lshl_add_u32 v{vPF+1}, v{vPF+1}, 7, s{sT}")
        a.e(f"v_cndmask_b32 v{vPF+1}, v{vT+3}, v{vPF+1}, vcc")
        dm[cfg.pfmpos] = dm[cfg.pfmpos] + [f"buffer_load_dword v37, v{vPF+1}, s[{sP}:{sP+3}], 0 offen"]
    def pf(pos):
        if cfg.pfpos == pos:
            if cfg.pfe: a.e(f"buffer_load_dword v37, v{vPF+1}, s[{sE}:{sE+3}], 0 offen {cfg.et_pol}")
            for i in range(NPP): a.e(f"buffer_load_dword v37, v{vPF+i}, s[{sP}:{sP+3}], 0 offen")
    if cfg.pfe: NPF += 1
    a.e(f"s_mov_b32 s{sLim}, 32")
    a.e(f"s_mov_b32 s{sDone}, 0")
    wfrag_const(a, vWA, vL, sW, t, sT)
    a.e(f"v_add_u32 v{vW3A}, {STG + 32768}, v{vW3A}")
    a.e(f"v_lshrrev_b32 v{t}, 5, v{vL}")
    a.e(f"v_and_b32 v{t+1}, 15, v{vL}")
    a.e(f"v_xor_b32 v{t+2}, v{t}, v{t+1}")
    a.e(f"v_lshlrev_b32 v{t+2}, 4, v{t+2}")
    a.e(f"v_lshl_add_u32 v{vXA}, v{t+1}, 8, v{t+2}")
    a.e(f"v_bfe_u32 v{t+2}, v{vL}, 4, 1")
    a.e(f"v_lshl_add_u32 v{vXA}, v{t+2}, 13, v{vXA}")
    a.e(f"s_lshr_b32 s{sT}, s{sW}, 2")
    a.e(f"s_lshl_b32 s{sT}, s{sT}, 14")
    a.e(f"s_add_u32 s{sT}, s{sT}, {STG}")
    a.e(f"v_add_u32 v{vXA}, s{sT}, v{vXA}")
    srd(a, sE, S_E, size=ESIZE)
    a.e(f"s_mov_b32 s{sSafe}, 0")
    a.e(f"s_mov_b32 s{sFirst}, 1")
    a.e(f"s_mov_b32 s{sMask}, 0x7fffffe0")
    a.e(f"v_mov_b32 v{vCL}, {LUT + 256}")
    a.e(f"v_bfe_u32 v{t+1}, v{vL}, 3, 2")
    a.e(f"v_bfe_u32 v{t+3}, v{vL}, 1, 1")
    a.e(f"v_lshl_add_u32 v{t+1}, v{t+1}, 1, v{t+3}")
    a.e(f"v_lshlrev_b32 v{t+1}, 5, v{t+1}")
    a.e("s_mov_b32 exec_lo, 0x0f0f0f0f\ns_mov_b32 exec_hi, 0xf0f0f0f0")
    a.e(f"v_add_u32 v{vCL}, {LUT}, v{t+1}")
    a.e("s_mov_b64 exec, -1")
    a.e(f"v_lshlrev_b32 v{vH16}, 4, v{t}")
    a.e(f"v_and_b32 v{t+1}, 3, v{vL}")
    a.e(f"v_lshlrev_b32 v{vCQ}, 3, v{t+1}")
    a.e(f"v_lshl_add_u32 v{vCQ}, v{t+2}, 5, v{vCQ}")
    a.e(f"v_add_u32 v{vCQ}, {QL}, v{vCQ}")
    a.e(f"v_lshlrev_b32 v{vCA}, 2, v{vM}")
    a.e(f"v_lshl_add_u32 v{vSD}, v{t}, 9, v{vCA}")
    a.e(f"s_lshl_b32 s{sT}, s{sW}, 10")
    a.e(f"s_add_u32 s{sT}, s{sT}, {SIDE}")
    a.e(f"v_add_u32 v{vSD}, s{sT}, v{vSD}")
    a.e(f"v_lshlrev_b32 v{t+2}, 6, v{t+2}")
    a.e(f"v_sub_u32 v{vCA}, v{vCA}, v{t+2}")
    a.e(f"v_add_u32 v{vCA}, {AGG - 2*QL}, v{vCA}")
    a.e(f"v_bfe_u32 v{t+1}, v{vL}, 2, 2")
    a.e(f"v_lshl_add_u32 v{vRP0}, v{t+1}, 7, v{vCQ}")
    a.e(f"v_lshl_add_u32 v{vRP0}, v{t}, 11, v{vRP0}")
    a.e(f"v_and_b32 v{t+1}, 8, v{vL}")
    a.e(f"v_lshl_add_u32 v{vRP0}, v{t+1}, 3, v{vRP0}")
    a.e(f"s_add_u32 s{sT}, s{sM0}, {256 - QL}")
    a.e(f"v_add_u32 v{vRP0}, s{sT}, v{vRP0}")
    a.e(f"v_xor_b32 v{vRP1}, 64, v{vRP0}")
    a.e(f"s_movk_i32 s{s256}, 256")
    a.e(f"v_mov_b32 v{vCHK}, 0")
    def round_consts(a):
        a.e(f"v_lshrrev_b32 v{t}, 3, v{vM}")
        a.e(f"v_and_b32 v{t+1}, 3, v{vL}")
        a.e(f"v_lshl_add_u32 v{vAE}, v{t}, 2, v{t+1}")
        a.e(f"v_lshlrev_b32 v{vAE}, 3, v{vAE}")
        a.e(f"v_bfe_u32 v{t+1}, v{vL}, 2, 2")
        a.e(f"v_lshlrev_b32 v{vAQ}, 4, v{t+1}")
        a.e(f"v_and_b32 v{vAP}, 24, v{vL}")
        a.e(f"v_and_b32 v{t}, 7, v{vL}")
        a.e(f"v_bfe_u32 v{t+1}, v{vL}, 4, 1")
        a.e(f"v_lshlrev_b32 v{t}, 4, v{t}")
        a.e(f"v_lshlrev_b32 v{t+1}, 6, v{t+1}")
        a.e(f"v_xor_b32 v{vC4+3}, v{t}, v{t+1}")
        for j in range(3):
            a.e(f"v_add_u32 v{vC4+j}, {1024*(3-j)}, v{vC4+3}")
        a.e(f"v_mov_b32 v{vT}, 1")
        a.e(f"v_mov_b32 v{vT+1}, {FLG}")
        a.e(f"v_lshlrev_b32 v{vT+2}, 2, v{vL}")
        a.e(f"s_mov_b32 s{sT}, 0x420000")
        a.e(f"s_brev_b32 s{sT+6}, 1")
        a.e(f"s_add_u32 s{sT+7}, s{sDone}, s{sLim}")
        a.e(f"v_cmp_ne_u32 s[{sX0+2}:{sX0+3}], 0, v{vW0}")
    round_consts(a)
    a.lines = sav
    for x in mix(c.lines, dm): a.e(x)
    stamp(a, 1, 252)
    pf(1)
    stamp(a, 4, 252)
    a.e(f"s_waitcnt vmcnt({11 + (1 if cfg.pfm else 0) + (NPF if cfg.pfpos <= 1 else 0)})")
    stamp(a, 5, 252)
    a.e(f"v_mov_b32_dpp v{vOC}, v{RC} quad_perm:[0,0,0,0] row_mask:0xf bank_mask:0xf")
    a.label("K2_COUNT")
    def groups(fn, lab, order=range(8), extra=(), pre=()):
        c = Asm(); sav = a.lines; a.lines = c.lines
        for i in order: fn(i)
        a.lines = sav
        for x in mix(c.lines, list(extra)): a.e(x)
    KK = lambda i: 16 * (i >> 2) + (i & 3)
    na = lambda i: f"v_lshlrev_b32_sdwa v{NA+i}, 2, v{RC+i} dst_sel:BYTE_0 dst_unused:UNUSED_PAD src0_sel:DWORD src1_sel:BYTE_0"
    a.e(na(1))
    a.e(f"v_min_u32 v{vREM}, s{sT+7}, v{vOC}")
    a.e(f"v_sub_u32 v{vREM}, v{vREM}, v{vW0}")
    a.e(f"v_cmp_lt_u32 s[{sX0+6}:{sX0+7}], s{sT+7}, v{vOC}")
    a.e(f"v_cmp_lt_i32 s[{sX0}:{sX0+1}], 0, v{vREM}")
    a.e(na(0))
    def f_cnt(i):
        a.e(f"v_cmpx_lt_i32 vcc, {KK(i)}, v{vREM}")
        if i < 7: a.e(na(i + 1))
        a.e(f"ds_add_rtn_u32 v{RK+i}, v{NA+i}, v{vT} offset:{CNT}")
    groups(f_cnt, "K2_G1", order=range(1, 8))
    a.e(f"s_and_b64 s[{sX0}:{sX0+1}], s[{sX0}:{sX0+1}], s[{sX0+2}:{sX0+3}]")
    a.e(f"s_mov_b64 exec, s[{sX0}:{sX0+1}]")
    a.e(f"ds_add_rtn_u32 v{RK}, v{NA}, v{vT} offset:{CNT}")
    a.e(f"s_mov_b64 exec, s[{sX0+6}:{sX0+7}]")
    a.e(f"ds_write_b32 v{vT+1}, v{vT}")
    a.e("s_mov_b64 exec, -1")
    def f_ent(i):
        e0 = EN + 2 * i
        a.e(f"v_lshrrev_b32 v{e0}, 20, v{RC+i}")
        a.e(f"v_add_lshl_u32 v{e0}, v{e0}, v{vEB}, 5")
    groups(f_ent, "K2_G2")
    pf(2)
    a.e("s_waitcnt lgkmcnt(0)")
    a.e("s_barrier")
    stamp(a, 6, 252)
    a.e(f"ds_read_b32 v{vT+6}, v{vT+2} offset:{CNT}")
    a.e(f"ds_read_b32 v{vT+5}, v{vT+1}")
    def f_ent2(i):
        e1 = EN + 1 + 2 * i
        a.e(f"v_bfe_u32 v{e1}, v{RC+i}, 6, 14")
        a.e(f"v_mad_u32_u24 v{e1}, v{NA+i}, s{sT}, v{e1}")
    groups(f_ent2, "K2_G5")
    a.e("s_waitcnt lgkmcnt(0)")
    a.e(f"v_add_u32 v{vT+3}, 1, v{vT+6}")
    a.e(f"v_lshrrev_b32 v{vT+3}, 1, v{vT+3}")
    a.e(f"v_mov_b32 v{vT+4}, v{vT+3}")
    a.e(f"v_readfirstlane_b32 s{sMore}, v{vT+5}")
    fl = []
    for i in range(8):
        fl.append(f"v_add_u32 v{RC+i}, -1, v{RK+i}")
        fl.append(f"v_and_or_b32 v{EN+2*i}, v{RC+i}, s{sT+6}, v{EN+2*i}")
    v = vT + 4
    dpp = [f"v_add_u32_dpp v{v}, v{v}, v{v} row_shr:{sh} row_mask:0xf bank_mask:0xf bound_ctrl:0" for sh in (1, 2, 4, 8)]
    dpp += [f"v_add_u32_dpp v{v}, v{v}, v{v} row_bcast:15 row_mask:0xa bank_mask:0xf", f"v_add_u32_dpp v{v}, v{v}, v{v} row_bcast:31 row_mask:0xc bank_mask:0xf"]
    for j in range(6):
        a.e(fl[2*j]); a.e(fl[2*j+1]); a.e(dpp[j])
    a.e(fl[12])
    a.e(f"v_readlane_b32 s{sT+5}, v{vT+4}, 63")
    a.e(f"v_sub_u32 v{vT+4}, v{vT+4}, v{vT+3}")
    a.e(f"v_lshlrev_b32 v{vT+4}, 4, v{vT+4}")
    def f_perm(i):
        a.e(f"ds_bpermute_b32 v{NA+i}, v{NA+i}, v{vT+4}")
        if i >= 8:
            a.e(f"v_add_u32 v{RC+i}, -1, v{RK+i}")
            a.e(f"v_and_or_b32 v{EN+2*i}, v{RC+i}, s{sT+6}, v{EN+2*i}")
    groups(f_perm, "K2_G3")
    for x in fl[13:]: a.e(x)
    pf(3)
    a.e(f"s_cmp_gt_u32 s{sT+5}, 1025")
    a.e("s_cbranch_scc1 K2_TOOBIG")
    a.e(f"s_add_u32 s{sT}, s{sT+5}, 15")
    a.e(f"s_lshr_b32 s{sT}, s{sT}, 4")
    a.e(f"s_lshr_b32 s{sT+1}, s{sT}, 3")
    a.e(f"s_and_b32 s{sT+2}, s{sT}, 7")
    a.e(f"s_mul_i32 s{sT+3}, s{sT+1}, s{sW}")
    a.e(f"s_min_u32 s{sT+4}, s{sW}, s{sT+2}")
    a.e(f"s_add_u32 s{sT+3}, s{sT+3}, s{sT+4}")
    a.e(f"s_cmp_lt_u32 s{sW}, s{sT+2}")
    a.e(f"s_addc_u32 s{sNT}, s{sT+1}, 0")
    a.e(f"s_lshl_b32 s{sT+3}, s{sT+3}, 8")
    a.e(f"s_add_u32 s{sT+3}, s{sT+3}, {LIST}")
    a.e(f"s_lshl_b32 s{sT+4}, s{sNT}, 7")
    a.e(f"s_cmp_eq_u32 s{sW}, 7")
    a.e("s_cbranch_scc0 K2_NODUM")
    a.e(f"v_mov_b32 v{vT+8}, 0x7ffffff0\nv_mov_b32 v{vT+9}, 0xffff\nv_mov_b32 v{vT+10}, 0x7ffffff0\nv_mov_b32 v{vT+11}, 0xffff")
    a.e(f"v_lshl_add_u32 v{vT+7}, v{vT+6}, 3, v{vT+4}")
    a.e(f"v_and_b32 v{vT+6}, 1, v{vT+6}")
    a.e(f"v_cmp_eq_u32 vcc, 1, v{vT+6}")
    a.e("s_mov_b64 exec, vcc")
    a.e(f"ds_write_b64 v{vT+7}, v[{vT+8}:{vT+9}] offset:{LIST}")
    a.e("s_mov_b32 exec_lo, -1\ns_mov_b32 exec_hi, 0x7f")
    a.e(f"v_add_lshl_u32 v{vT+7}, v{vL}, s{sT+5}, 4")
    a.e(f"ds_write_b128 v{vT+7}, v[{vT+8}:{vT+11}] offset:{LIST}")
    a.e("s_mov_b64 exec, -1")
    a.label("K2_NODUM")
    a.e("s_waitcnt lgkmcnt(0)")
    a.e(f"v_lshl_add_u32 v{NA}, v{RK}, 3, v{NA}")
    def f_place(i):
        a.e(f"v_cmpx_lt_i32 vcc, {KK(i)}, v{vREM}")
        a.e(f"v_lshl_add_u32 v{NA+i}, v{RK+i}, 3, v{NA+i}")
        a.e(f"ds_write_b64 v{NA+i}, v[{EN+2*i}:{EN+1+2*i}] offset:{LIST}")
    groups(f_place, "K2_G4", order=range(1, 8))
    a.e(f"s_mov_b64 exec, s[{sX0}:{sX0+1}]")
    a.e(f"ds_write_b64 v{NA}, v[{EN}:{EN+1}] offset:{LIST}")
    a.e("s_mov_b64 exec, -1")
    a.e(f"v_add_u32 v{vAE}, s{sT+3}, v{vAE}")
    a.e(f"v_add3_u32 v{vAP}, v{vAP}, s{sT+3}, 4")
    a.e(f"v_add3_u32 v{vAQ}, v{vAQ}, s{sT+3}, 6")
    a.e("s_mov_b32 exec_lo, 0xf0f0f0f0\ns_mov_b32 exec_hi, 0xf0f0f0f0")
    a.e(f"v_add_u32 v{vAE}, s{sT+4}, v{vAE}")
    a.e("s_mov_b32 exec_lo, 0\ns_mov_b32 exec_hi, -1")
    a.e(f"v_add_u32 v{vAP}, s{sT+4}, v{vAP}")
    a.e(f"v_add_u32 v{vAQ}, s{sT+4}, v{vAQ}")
    a.e("s_mov_b64 exec, -1")
    a.e(f"s_max_u32 s{sT+1}, s{sT+1}, 1")
    a.e(f"s_lshl_b32 s{sT+1}, s{sT+1}, 3")
    a.e(f"v_cmp_le_u32 s[{sSusp}:{sSusp+1}], s{sT+1}, v{vT+3}")
    a.e(f"s_cmp_eq_u32 s{sNT}, 0")
    a.e(f"s_cselect_b32 s{sP+2}, 0, {PSIZE}")
    a.e(f"s_cselect_b32 s{sE+2}, 0, {ESIZE}")
    a.e(f"s_cmp_eq_u32 s{sFirst}, 0")
    a.e(f"s_waitcnt vmcnt({NPF}) lgkmcnt(0)")
    a.e("s_barrier")
    a.e("s_cbranch_scc1 K2_PRO2")
    stamp(a, 7, 252)
    adv = [f"v_add_u32 v{r}, s{s256}, v{r}" for r in (vAE, vAP, vAQ)]
    def prologue(a, first):
        for s in list_reads_se() + list_reads_n(): a.e(s)
        if first:
            for st in range(8):
                if st == 0: a.e(f"ds_read_b128 v[{XF}:{XF+3}], v{vXA}")
                else:
                    r = vT + (st & 1)
                    a.e(f"v_xor_b32 v{r}, {32*st}, v{vXA}")
                    a.e(f"ds_read_b128 v[{XF+4*st}:{XF+4*st+3}], v{r}")
        a.e(f"s_waitcnt lgkmcnt({8 if first else 0})")
        for s in addr_se() + addr_q(0): a.e(s)
        for s in list_reads_se(1): a.e(s)
        for s in flags_from_vcc(sF0): a.e(s)
        d0 = dma_ops(0, "alt"); d1 = dma_ops(1)
        fr = Asm()
        if first:
            a.e(f"v_add_u32 v{vT+3}, {STG + 4096}, v{vWA}")
            wfrag_read(fr, W2F, vT+3, 0, 8192)
            wfrag_read(fr, WU1F, vWA, WU1L)
            for c in range(4):
                fr.e(f"ds_read_b128 v[{W3+4*c}:{W3+4*c+3}], v{vW3A} offset:{1024*c}")
        n4 = len(fr.lines) // 4
        for s in d0[0] + fr.lines[:n4] + d0[1] + fr.lines[n4:2*n4]: a.e(s)
        a.e(e_load(0))
        for s in fr.lines[2*n4:3*n4]: a.e(s)
        a.e(f"v_cmp_ne_u32 vcc, v{vLA}, v{vCL}")
        a.e(f"v_mov_b32_dpp v{vFA}, v{vQA} row_newbcast:0 row_mask:0xf bank_mask:0xf")
        a.e(f"v_mov_b32 v{vLA0}, v{vLA}")
        for s in d0[2] + fr.lines[3*n4:]: a.e(s)
        a.e(f"s_cmp_eq_u32 s{sNT}, 0")
        a.e(f"s_cselect_b32 s{sDm}, -1, vcc_lo")
        a.e(f"v_lshl_add_u32 v{vFA}, v{vFA}, 1, v{vCA}")
        for s in d0[3]: a.e(s)
        if first:
            a.e(f"s_lshr_b32 s{sT+1}, s{sW}, 2")
            a.e(f"s_lshl_b32 s{sT+1}, s{sT+1}, 5")
            a.e(f"v_add_u32 v{vT+1}, s{sT+1}, v{vM}")
            a.e(f"v_mul_u32_u24 v{vT+2}, 264, v{vT+1}")
            a.e(f"v_lshl_add_u32 v{vT+2}, v{vH16}, 1, v{vT+2}")
            a.e(f"s_and_b32 s{sT+1}, s{sW}, 3")
            a.e(f"s_lshl_b32 s{sT+1}, s{sT+1}, 6")
            a.e(f"v_add_u32 v{vT+2}, s{sT+1}, v{vT+2}")
            a.e(f"v_cmp_gt_u32 s[{sX0}:{sX0+1}], 50, v{vT+1}")
            a.e(f"v_lshlrev_b32 v{vT}, 4, v0")
            a.e(f"v_mov_b32 v{vT+8}, 0\nv_mov_b32 v{vT+9}, 0\nv_mov_b32 v{vT+10}, 0\nv_mov_b32 v{vT+11}, 0")
            a.e(f"s_movk_i32 s{sT+1}, {(50*528+8192)//16 - 2048}")
            a.e(f"v_cmp_gt_u32 s[{sX0+2}:{sX0+3}], s{sT+1}, v0")
            a.e(f"s_mov_b32 s{sT}, {LOG2E_NEG}")
            a.e(f"s_mov_b32 s{sT+1}, {LOG2E_NEG}")
            stamp(a, 44, 252)
            a.e("s_waitcnt lgkmcnt(0)")
            g = Asm(); gemm8(g, QACC, W2F, XF)
            for x in g.lines: a.e(x)
            g = Asm(); gemm8(g, ACX, WU1F, XF)
            q = [f"v_mul_f32 v{QACC+i}, s{sT}, v{QACC+i}" for i in range(16)] + [f"v_cvt_pk_bf16_f32 v{QACC+i}, v{QACC+2*i}, v{QACC+1+2*i}" for i in range(8)]
            a.e(g.lines[0])
            a.e("s_nop 9")
            for j in range(3):
                a.e(g.lines[1+j])
                for x in q[j*8:j*8+8]: a.e(x)
            a.e(f"s_mov_b64 exec, s[{sX0}:{sX0+1}]")
            for gg in range(4):
                a.e(f"ds_write_b64 v{vT+2}, v[{QACC+2*gg}:{QACC+1+2*gg}] offset:{QL + 8*gg}")
            a.e("s_mov_b64 exec, -1")
            a.e("s_barrier")
            for j in range(4):
                a.e(f"ds_write_b128 v{vT}, v[{vT+8}:{vT+11}] offset:{AGG + j*8192}")
            a.e(g.lines[4])
            a.e(f"s_mov_b64 exec, s[{sX0+2}:{sX0+3}]")
            a.e(f"ds_write_b128 v{vT}, v[{vT+8}:{vT+11}] offset:{AGG + 4*8192}")
            a.e("s_mov_b64 exec, -1")
            for s in d1[0]: a.e(s)
            a.e(g.lines[5])
            a.e("s_waitcnt lgkmcnt(0)")
            a.e("s_barrier")
            stamp(a, 45, 252)
            for j in range(1, 4):
                for s in d1[j]: a.e(s)
                if j < 3: a.e(g.lines[5+j])
        else:
            for s in sum(d1, []): a.e(s)
        a.e(f"s_cmp_lt_u32 s{sNT}, 2")
        a.e(f"s_cselect_b32 s{sP+2}, 0, s{sP+2}")
        a.e(f"s_cselect_b32 s{sE+2}, 0, s{sE+2}")
        if not first: a.e("s_waitcnt lgkmcnt(0)")
        for s in addr_se(): a.e(s)
        for s in list_reads_se(2) + list_reads_n(1): a.e(s)
        for s in flags_from_vcc(sF1): a.e(s)
    prologue(a, True)
    rare.label("K2_PRO2")
    rare.e("s_waitcnt vmcnt(0)")
    prologue(rare, False)
    rare.e("s_branch K2_NOX")
    stamp(a, 42, 252)
    for i in range(8):
        a.e(f"v_pk_mul_f32 {p2(ACX+2*i)}, {p2(ACX+2*i)}, s[{sT}:{sT+1}]")
    a.label("K2_NOX")
    stamp(a, 43, 252)
    a.e(f"s_cmp_eq_u32 s{sNT}, 0")
    a.e("s_cbranch_scc1 K2_NOTILES")
    a.e(f"ds_read_b128 v[{AQ}:{AQ+3}], v{vLA0}")
    for s in qfrag_reads(QY, 0, 0) + qfrag_reads(QX, 1, 0): a.e(s)
    if cfg.t1pos == 1:
        a.e(e_load(1))
        dma_half(a, 0)
    for i in range(4): a.e(f"v_mov_b32 v{AP+i}, 0")
    for i in range(4):
        shf = 16 * (i >> 1) + 4 * (i & 1)
        a.e(f"s_mov_b32 exec_lo, {hex(0xf << shf)}\ns_mov_b32 exec_hi, {hex(0xf << (shf + 8))}")
        a.e(f"v_mov_b32 v{AP+i}, 0x3f80")
    a.e("s_mov_b64 exec, -1")
    a.e(f"v_and_b32 v{IDX}, 3, v{vL}")
    a.e(f"v_mul_u32_u24 v{IDX}, 0x5555, v{IDX}")
    a.e(f"s_add_u32 s{sMA}, s{sM0}, {4096 - 128 + 256}")
    a.e(f"s_add_u32 s{sMB}, s{sM0}, 256")
    for c in range(4):
        a.e(f"v_mov_b32 v{NN+2*c}, 0\nv_mov_b32 v{NN+2*c+1}, 0\nv_mov_b32 v{DD+2*c}, 1.0\nv_mov_b32 v{DD+2*c+1}, 1.0")
    a.e(f"v_mov_b32 v{vCUR}, v{vSD}\nv_mov_b32 v{vCUR+1}, v{vSD}")
    for c in range(4): a.e(f"v_mov_b32 v{ACC+c}, 0")
    a.e(f"s_sub_u32 s{sT}, s{sW4k}, s{sM0}")
    a.e(f"s_add_u32 s{sT}, s{sT}, {WU2 - 256}")
    a.e(f"v_add_u32 v{vT}, s{sT}, v{vRP0}")
    a.e(f"v_add_u32 v{vT+1}, s{sT}, v{vRP1}")
    stamp(a, 46, 252)
    a.e("s_waitcnt vmcnt(4)" if cfg.t1pos == 2 else "s_waitcnt vmcnt(9)")
    stamp(a, 47, 252)
    for s in pfrag_reads(PY, 0, vT): a.e(s)
    mf = mfmas(0, PY, QY, 0)
    a.e("s_waitcnt lgkmcnt(8)")
    for s in mf[:4]: a.e(s)
    a.e("s_waitcnt lgkmcnt(0)")
    for s in mf[4:]: a.e(s)
    if cfg.t1pos == 2:
        a.e(e_load(1))
        dma_half(a, 0)
    stamp(a, 8, 252)
    if cfg.dbg:
        a.e("s_memtime s[90:91]\ns_waitcnt lgkmcnt(0)\nv_writelane_b32 v252, s90, 14")
    a.e(f"s_sub_u32 s{sCnt}, s{sNT}, 1")
    a.e("s_waitcnt vmcnt(5)")
    stamp(a, 48, 252)
    for s in pfrag_reads(PX, 1): a.e(s)
    def lstamp(x):
        if not cfg.lst: return
        a.e("s_memrealtime s[90:91]")
        a.e(f"s_lshl_b32 s92, s{sCnt}, 1")
        a.e(f"s_add_u32 s92, s92, {x+2}")
        a.e("s_mov_b32 m0, s92")
        a.e("s_waitcnt lgkmcnt(0)")
        a.e("v_writelane_b32 v252, s90, m0")
    def iteration(par):
        exA = {
            0: addr_q(1 - par),
            1: qfrag_reads(QY, 0, 1 - par),
            2: [f"s_mov_b32 m0, s{sMA}", "s_waitcnt lgkmcnt(4)"] + dma_ld(1)[:2],
            3: dma_ld(1)[2:],
            4: [f"ds_read_b128 v[{AQ}:{AQ+3}], v{vLA}",
                f"s_cmp_lt_u32 s{sCnt}, 2", f"s_cbranch_scc1 WU2_{par}", f"WU2R_{par}:"],
            7: ["s_waitcnt vmcnt(4) lgkmcnt(0)"] + pfrag_reads(PY, 0),
        }
        half_step(a, ool, 0, par, exA, f"A{par}")
        ool.label(f"WU2_{par}")
        ool.e(f"s_mov_b32 s{sP+2}, 0")
        ool.e(f"s_mov_b32 s{sE+2}, 0")
        ool.e(f"s_cmp_lg_u32 s{sCnt}, 0")
        ool.e(f"s_cbranch_scc1 WU2R_{par}")
        w_dma(ool, sWu, vWC, sW4k, 32768, WU2, sT)
        ool.e(f"s_branch WU2R_{par}")
        exB = {
            0: qfrag_reads(QX, 1, 1 - par),
            1: addr_se(),
            2: [f"s_mov_b32 m0, s{sMB}", "s_waitcnt lgkmcnt(4)"] + dma_ld(0)[:2],
            3: dma_ld(0)[2:] + [e_load(par)],
            4: list_reads_se(3 + par) + list_reads_n(2 + par),
            5: adv if par else [],
            7: ["s_waitcnt vmcnt(5) lgkmcnt(0)"] + pfrag_reads(PX, 1),
        }
        lstamp(17)
        half_step(a, ool, 1, par, exB, f"B{par}")
        lstamp(16)
        for s in flags_from_vcc((sF0, sF1)[par]): a.e(s)
        a.e(f"s_sub_u32 s{sCnt}, s{sCnt}, 1")
    a.label("K2_LOOP")
    iteration(0)
    a.e("s_cbranch_scc1 K2_LEND")
    iteration(1)
    a.e("s_cbranch_scc0 K2_LOOP")
    a.label("K2_LEND")
    stamp(a, 9, 252)
    if cfg.dbg:
        a.e("s_memtime s[90:91]\ns_waitcnt lgkmcnt(0)\nv_writelane_b32 v252, s90, 15")
    flush_code(a, 0, 0, wait=False)
    a.e(f"ds_write2_b32 v{vCUR}, v{ACC}, v{ACC+1} offset1:32")
    flush_code(a, 2, 1)
    a.e(f"ds_write2_b32 v{vCUR+1}, v{ACC+2}, v{ACC+3} offset0:64 offset1:96")
    for c in range(4):
        a.e(f"ds_read_b32 v{vT+16+c}, v{vSD} offset:{128*c}")
    a.label("K2_AFTER")
    a.e(f"s_mov_b32 s{sFirst}, 0")
    a.e(f"s_bitcmp0_b32 s{sDm}, 0")
    a.e(f"s_cselect_b32 s{sX0}, -1, 0")
    a.e(f"s_bitcmp0_b32 s{sDm}, 4")
    a.e(f"s_cselect_b32 s{sX0+1}, -1, 0")
    a.e("s_waitcnt vmcnt(0) lgkmcnt(0)")
    a.e("s_barrier")
    a.e(f"s_mov_b64 exec, s[{sX0}:{sX0+1}]")
    a.e(f"s_cmp_lg_u64 s[{sSusp}:{sSusp+1}], 0")
    a.e("s_cbranch_scc1 K2_ATOM")
    for c in range(4):
        a.e(f"ds_read_b32 v{vT+20+c}, v{vFA} offset:{128*c}")
    for c in range(4):
        a.e(f"s_waitcnt lgkmcnt({3})")
        a.e(f"v_add_f32 v{vT+20+c}, v{vT+20+c}, v{vT+16+c}")
        a.e(f"ds_write_b32 v{vFA}, v{vT+20+c} offset:{128*c}")
    a.label("K2_MERGED")
    a.e("s_mov_b64 exec, -1")
    a.e(f"v_add_u32 v{vT+4}, {WU2}, v{vWA}")
    wfrag_read(a, 128, vT+4)
    a.e(f"s_lshr_b32 s{sT+1}, s{sW}, 2")
    a.e(f"s_lshl_b32 s{sT+1}, s{sT+1}, 5")
    a.e(f"v_add_u32 v{vT+8}, s{sT+1}, v{vM}")
    a.e(f"v_mul_u32_u24 v{vT+9}, 528, v{vT+8}")
    a.e(f"v_lshl_add_u32 v{vT+9}, v{vH16}, 1, v{vT+9}")
    a.e(f"v_cmp_gt_u32 s[{sX0}:{sX0+1}], 50, v{vT+8}")
    a.e("s_waitcnt lgkmcnt(0)")
    a.e("s_barrier")
    stamp(a, 10, 252)
    a.e(f"s_cmp_lg_u32 s{sMore}, 0")
    a.e("s_cbranch_scc1 K2_MORE")
    a.e(f"s_mov_b64 exec, s[{sX0}:{sX0+1}]")
    for s in range(8):
        for u in range(2):
            r = 64 + 8 * s + 4 * u
            a.e(f"ds_read_b128 v[{r}:{r+3}], v{vT+9} offset:{AGG + 64*s + 16*u}")
    a.e("s_mov_b64 exec, -1")
    a.e(f"v_mul_u32_u24 v{vT+10}, 272, v{vT+8}")
    a.e(f"v_lshl_add_u32 v{vT+10}, v{vH16}, 1, v{vT+10}")
    a.e(f"s_and_b32 s{sT+1}, s{sW}, 3")
    a.e(f"s_lshl_b32 s{sT+1}, s{sT+1}, 6")
    a.e(f"s_add_u32 s{sT+1}, s{sT+1}, {STG}")
    a.e(f"v_add_u32 v{vT+10}, s{sT+1}, v{vT+10}")
    a.e(f"v_lshrrev_b32 v{vT+12}, 4, v0")
    a.e(f"v_lshlrev_b32 v{vT+13}, 4, v0")
    a.e(f"v_lshl_add_u32 v{vT+12}, v{vT+12}, 4, v{vT+13}")
    a.e(f"v_add_u32 v{vT+12}, {STG}, v{vT+12}")
    for s in range(8):
        a.e(f"s_waitcnt lgkmcnt({14-2*s})")
        for i in range(4):
            a.e(f"v_cvt_pk_bf16_f32 v{64+8*s+i}, v{64+8*s+2*i}, v{65+8*s+2*i}")
        if s:
            c = f"v[{ACX}:{ACX+15}]" if s == 1 else "v[160:175]"
            a.e(f"v_mfma_f32_32x32x16_bf16 v[160:175], v[{128+4*(s-1)}:{131+4*(s-1)}], v[{64+8*(s-1)}:{67+8*(s-1)}], {c}")
    a.e(f"s_mov_b32 s{sT+1}, {LOG2E_NEG}")
    a.e(f"v_mfma_f32_32x32x16_bf16 v[160:175], v[156:159], v[120:123], v[160:175]")
    a.e(f"s_mov_b32 s{sT+2}, 0x7b800000")
    a.e(f"v_cmp_le_f32 s[{sX0+2}:{sX0+3}], s{sT+2}, v{vCHK}")
    a.e(f"v_mov_b32 v{vT+11}, 0x207")
    a.e("s_nop 8")
    a.e(f"v_cmp_class_f32 vcc, v160, v{vT+11}")
    for hf in range(2):
        R = range(8 * hf, 8 * hf + 8)
        for i in R: a.e(f"v_exp_f32 v{64+i}, v{160+i}")
        if hf == 0:
            a.e(f"s_and_b64 vcc, vcc, s[{sX0}:{sX0+1}]")
            a.e(f"s_or_b64 s[{sX0+2}:{sX0+3}], vcc, s[{sX0+2}:{sX0+3}]")
        for i in R: a.e(f"v_fma_f32 v{64+i}, v{64+i}, s{sT+1}, s{sT+1}")
        for i in R: a.e(f"v_rcp_f32 v{64+i}, v{64+i}")
        for i in R: a.e(f"v_mul_f32 v{64+i}, v{160+i}, v{64+i}")
        for i in range(4 * hf, 4 * hf + 4): a.e(f"v_cvt_pk_bf16_f32 v{80+i}, v{64+2*i}, v{65+2*i}")
        o = " offset:16" if hf else ""
        a.e(f"ds_write_b128 v{vT+10}, v[{80+4*hf}:{83+4*hf}]{o}")
    a.e(f"v_mov_b32 v{vT}, 1")
    a.e(f"v_mov_b32 v{vT+1}, {FLG+4}")
    a.e(f"s_mov_b64 exec, s[{sX0+2}:{sX0+3}]")
    a.e(f"ds_write_b32 v{vT+1}, v{vT}")
    a.e("s_mov_b64 exec, -1")
    a.e(f"s_movk_i32 s{sT+1}, 8192")
    a.e("s_waitcnt lgkmcnt(0)")
    a.e("s_barrier")
    a.e(f"ds_read_b128 v[88:91], v{vT+12}")
    a.e(f"ds_read_b128 v[92:95], v{vT+12} offset:{32*272}")
    a.e(f"ds_read_b32 v{vT}, v{vT+1}")
    a.e("s_waitcnt lgkmcnt(2)")
    a.e(f"buffer_store_dwordx4 v[88:91], v{vT+13}, s[{sO}:{sO+3}], 0 offen {cfg.o_pol}")
    a.e("s_waitcnt lgkmcnt(1)")
    a.e(f"buffer_store_dwordx4 v[92:95], v{vT+13}, s[{sO}:{sO+3}], s{sT+1} offen {cfg.o_pol}")
    stamp(a, 11, 252)
    if cfg.dbg:
        a.e("s_waitcnt vmcnt(0)")
        a.e(f"v_writelane_b32 v252, s{sNT}, 13")
    stamp(a, 12, 252)
    stamp_out(a, 252, 253, 1)
    if cfg.x: a.e("s_branch K2_END")
    a.e("s_waitcnt lgkmcnt(0)")
    a.e(f"v_readfirstlane_b32 s{sT}, v{vT}")
    a.e(f"s_cmp_lg_u32 s{sSafe}, 0")
    a.e("s_cbranch_scc1 K2_END")
    a.e(f"s_cmp_lg_u32 s{sT}, 0")
    a.e("s_cbranch_scc1 K2_SAFE")
    a.label("K2_END")
    a.e("s_endpgm")
    a.lines += ool.lines
    a.label("K2_CODE_END")
    a.lines += rare.lines
    a.label("K2_NOTILES")
    a.e("s_waitcnt vmcnt(0)")
    w_dma(a, sWu, vWC, sW4k, 32768, WU2, sT)
    a.e("s_branch K2_AFTER")
    a.label("K2_ATOM")
    for c in range(4):
        a.e(f"ds_add_f32 v{vFA}, v{vT+16+c} offset:{128*c}")
    a.e("s_branch K2_MERGED")
    a.label("K2_SAFE")
    a.e("s_waitcnt vmcnt(0)")
    a.e("s_barrier")
    a.e(f"s_mov_b32 s{sSafe}, -1")
    a.e(f"s_mov_b32 s{sDone}, 0")
    reset_round(a, True)
    a.e("s_branch K2_ROUND")
    a.label("K2_MORE")
    a.e(f"s_add_u32 s{sDone}, s{sDone}, s{sLim}")
    a.e("s_branch K2_RESET")
    a.label("K2_TOOBIG")
    a.e("s_barrier")
    a.e(f"s_mov_b32 s{sLim}, 16")
    a.label("K2_RESET")
    reset_round(a, False)
    a.label("K2_ROUND")
    srd(a, sR, S_WS, off_c=cfg.wsoff + WS_S01, size=WS_OFFT + 256000 - WS_S01)
    a.e(f"v_and_b32 v{t}, 0x1fc, v0")
    a.e(f"s_lshl_b32 s{sT}, s{sBin}, 10")
    a.e(f"s_add_u32 s{sT}, s{sT}, {WS_OFFT - WS_S01}")
    a.e(f"v_mov_b32 v{vROFF}, 0")
    a.e(f"v_cmp_lt_u32 vcc, 32, v{vOC}")
    a.e("s_mov_b64 exec, vcc")
    a.e(f"buffer_load_dword v{vROFF}, v{t}, s[{sR}:{sR+3}], s{sT} offen")
    a.e("s_mov_b64 exec, -1")
    a.e(f"v_and_b32 v{vW0}, 3, v0")
    a.e(f"v_lshlrev_b32 v{vW0}, 2, v{vW0}")
    a.e(f"v_add_u32 v{vW0}, s{sDone}, v{vW0}")
    a.e(f"s_lshl_b32 s{sT}, s{sBin}, 7")
    a.e(f"v_mad_u32_u24 v{t}, v{vEB}, 10, s{sT}")
    a.e(f"s_mov_b32 s{sT}, {WS_REC - WS_S01 - 4}")
    a.e("s_waitcnt vmcnt(0)")
    a.e(f"v_add_u32 v{t+2}, v{vEB}, v{vROFF}")
    a.e(f"v_lshl_add_u32 v{t+2}, v{t+2}, 2, s{sT}")
    for g in range(2):
        a.e(f"v_add_u32 v{t+3}, {16*g}, v{vW0}")
        a.e(f"v_cmp_gt_u32 vcc, 32, v{t+3}")
        a.e("s_nop 1")
        a.e(f"v_cndmask_b32 v{t+4+g}, v{t+2}, v{t}, vcc")
        a.e(f"v_lshl_add_u32 v{t+4+g}, v{t+3}, 2, v{t+4+g}")
        a.e(f"buffer_load_dwordx4 v[{RC+4*g}:{RC+4*g+3}], v{t+4+g}, s[{sR}:{sR+3}], 0 offen")
    round_consts(a)
    a.e("s_waitcnt vmcnt(0) lgkmcnt(0)")
    a.e("s_barrier")
    a.e("s_branch K2_COUNT")

HEADER = open("cdna_kernels/" + NAME + ".s.ref").read().split("; Override launch")[0]
def generate():
    a = Asm()
    gen_k1(a)
    gen_k2(a)
    if cfg.rep:
        k, wg, idx = [int(v) for v in cfg.rep.split(",")]
        kernel_head(a, "rep_kernel")
        a.e("s_load_dwordx2 s[20:21], s[0:1], 64")
        a.e("s_cmp_lg_u32 s2, 0")
        a.e("s_cbranch_scc1 REP_END")
        a.e("s_waitcnt lgkmcnt(0)")
        srd(a, 8, S_WS, off_c=WS_DBG, size=0x200000)
        a.e(f"v_mov_b32 v1, 0")
        a.e(f"v_mov_b32 v2, {k*0x100000 + wg*2048 + idx*4}")
        a.e("buffer_load_dword v3, v1, s[8:11], 0 offen")
        a.e("buffer_load_dword v4, v2, s[8:11], 0 offen")
        a.e("s_waitcnt vmcnt(0)")
        a.e("v_sub_u32 v3, v4, v3")
        a.e("v_min_u32 v3, 8000, v3")
        a.e("v_lshlrev_b32 v3, 2, v3")
        a.e("s_nop 1")
        a.e("v_readfirstlane_b32 s12, v3")
        a.e("s_memrealtime s[14:15]")
        a.e("s_waitcnt lgkmcnt(0)")
        a.label("REP_L")
        a.e("s_memrealtime s[16:17]")
        a.e("s_waitcnt lgkmcnt(0)")
        a.e("s_sub_u32 s13, s16, s14")
        a.e("s_cmp_lt_u32 s13, s12")
        a.e("s_cbranch_scc1 REP_L")
        a.label("REP_END")
        a.e("s_endpgm")
    if cfg.align:
        a.lines, bad = align_pass(a.lines, "K2_LOOP" if cfg.align < 3 else "prep_kernel", "K2_CODE_END", cfg.align == 2)
        print("misaligned left:", bad, file=sys.stderr)
    body = a.text()
    probs = check_text(body)
    for p in probs: print("HAZARD", p, file=sys.stderr)
    k1lds = K1_LDS_B
    out = HEADER
    out += f"; @launch kernel=prep_kernel grid=(378,1,1) block=(512,1,1) lds={k1lds}\n"
    out += f"; @launch kernel={NAME}_kernel grid=(250,1,1) block=(512,1,1) lds={K2_LDS}\n"
    if cfg.rep: out += "; @launch kernel=rep_kernel grid=(1,1,1) block=(64,1,1) lds=0\n"
    out += '.amdgcn_target "amdgcn-amd-amdhsa--gfx950"\n' + body
    out += '.section .rodata,"a"\n.p2align 6\n' + kernel_desc("prep_kernel", 100 if cfg.dbg else 96, 96 if cfg.dbg else 80) + ".p2align 6\n" + kernel_desc(NAME + "_kernel", 256, 96)
    if cfg.rep: out += ".p2align 6\n" + kernel_desc("rep_kernel", 8, 32)
    return out

if __name__ == "__main__":
    outp = sys.argv[1]
    for kv in sys.argv[2:]:
        k, v = kv.split("=", 1)
        cur = getattr(cfg, k)
        setattr(cfg, k, (v not in ("0", "False")) if isinstance(cur, bool) else int(v, 0) if isinstance(cur, int) else v)
    open(outp, "w").write(generate())
```

```python
import sys
from asmlib import *

NAME = "gather_scatter__mpnn_edge_mlp__graph"
class Cfg:
    modeA = False
    wsoff = 0
    st_pol = "sc1"
    ld_pol = "nt"
    e_pol = ""
    prefetchP = 1
    pf0 = False
    early = True
    o_pol = "sc1"
    ot_pol = ""
    touch = 3
    etouch = 0
    epos = 1
    align = 1
    prio = 2
    bias = 14
    ratio = 0
    k1o = 0
    p_pol = 'sc1'
    pfm = 0
    pfmpos = 5
    pfe = 0
    et_pol = ''
    t1pos = 1
    pfn = 320
    pfpos = 1
    nw = '4,4,4,4'
    x_pol = ""
    dbg = False
    lst = False
    x = ""
    rep = ""
cfg = Cfg()

NB = 250; NPB = 50; CH = 1600
WS_P = 4096; WS_S01 = 0x320000; WS_REC = 0x900000; WS_OFFT = 0xA90000; WS_W3F = 0xAD0000; WS_WF = 0xAE0000
LOG2E_NEG = "0xbfb8aa3b"
LN2_NEG = "0xbf317218"

S_X, S_E, S_SRC, S_DST, S_WM, S_WU, S_OUT, S_DBG, S_WS = 4, 6, 8, 10, 12, 14, 16, 18, 20

def load_args(a):
    a.e("s_load_dwordx16 s[4:19], s[0:1], 0")
    a.e("s_load_dwordx2 s[20:21], s[0:1], 64")

def srd(a, d, ptr, off_s=None, off_c=0, size=0):
    if off_s is not None:
        a.e(f"s_add_u32 s{d}, s{ptr}, s{off_s}")
        a.e(f"s_addc_u32 s{d+1}, s{ptr+1}, 0")
        if off_c:
            a.e(f"s_add_u32 s{d}, s{d}, {off_c}")
            a.e(f"s_addc_u32 s{d+1}, s{d+1}, 0")
    elif off_c:
        a.e(f"s_add_u32 s{d}, s{ptr}, {off_c}")
        a.e(f"s_addc_u32 s{d+1}, s{ptr+1}, 0")
    else:
        a.e(f"s_mov_b32 s{d}, s{ptr}")
        a.e(f"s_mov_b32 s{d+1}, s{ptr+1}")
    a.e(f"s_mov_b32 s{d+2}, {size}")
    a.e(f"s_mov_b32 s{d+3}, 0x20000")

def idmap(a, dst, src, t, sh=5):
    a.e(f"s_and_b32 s{t}, s{src}, 7")
    a.e(f"s_lshr_b32 s{dst}, s{src}, 3")
    a.e(f"s_lshl_b32 s{t}, s{t}, {sh}")
    a.e(f"s_add_u32 s{dst}, s{dst}, s{t}")

def scan64(a, v):
    for sh in (1, 2, 4, 8):
        a.e("s_nop 1")
        a.e(f"v_add_u32_dpp v{v}, v{v}, v{v} row_shr:{sh} row_mask:0xf bank_mask:0xf bound_ctrl:0")
    a.e("s_nop 1")
    a.e(f"v_add_u32_dpp v{v}, v{v}, v{v} row_bcast:15 row_mask:0xa bank_mask:0xf")
    a.e("s_nop 1")
    a.e(f"v_add_u32_dpp v{v}, v{v}, v{v} row_bcast:31 row_mask:0xc bank_mask:0xf")

def x_dma(a, sX, sW, vL, lds_base, t0, st, pol="", strided=False):
    a.e(f"v_lshrrev_b32 v{t0}, 4, v{vL}")
    a.e(f"v_and_b32 v{t0+1}, 15, v{vL}")
    a.e(f"v_xor_b32 v{t0+1}, v{t0+1}, v{t0}")
    a.e(f"v_lshlrev_b32 v{t0+1}, 4, v{t0+1}")
    a.e(f"v_lshl_add_u32 v{t0}, v{t0}, 8, v{t0+1}")
    a.e(f"s_and_b32 s{st}, s{sW}, 1")
    a.e(f"s_lshl_b32 s{st}, s{st}, 7")
    a.e(f"v_xor_b32 v{t0}, s{st}, v{t0}")
    a.e(f"v_xor_b32 v{t0+1}, 64, v{t0}")
    if strided:
        a.e(f"s_lshr_b32 s{st+1}, s{sW}, 1")
        a.e(f"s_lshl_b32 s{st+1}, s{st+1}, 12")
        a.e(f"s_lshl_b32 s{st}, s{sW}, 11")
        a.e(f"s_add_u32 s{st+1}, s{st+1}, s{st}")
        a.e(f"s_add_u32 m0, s{st+1}, {lds_base}")
    else:
        a.e(f"s_lshl_b32 s{st}, s{sW}, 11")
        a.e(f"s_add_u32 m0, s{st}, {lds_base}")
    a.e("s_nop 0")
    a.e(f"buffer_load_dwordx4 v{t0}, s[{sX}:{sX+3}], s{st} offen {pol} lds")
    a.e(f"buffer_load_dwordx4 v{t0+1}, s[{sX}:{sX+3}], s{st} offen offset:1024 {pol} lds")

def w_lane_const(a, vW, vL, t):
    a.e(f"v_lshrrev_b32 v{t}, 4, v{vL}")
    a.e(f"v_and_b32 v{vW}, 15, v{vL}")
    a.e(f"v_lshlrev_b32 v{vW}, 4, v{vW}")
    a.e(f"v_lshlrev_b32 v{t+1}, 6, v{t}")
    a.e(f"v_xor_b32 v{vW}, v{vW}, v{t+1}")
    a.e(f"v_lshl_add_u32 v{vW}, v{t}, 8, v{vW}")

def w_dma(a, sSrd, vW, sW4096, goff, lds_base, st):
    a.e(f"s_add_u32 s{st}, s{sW4096}, {goff}")
    a.e(f"s_add_u32 m0, s{sW4096}, {lds_base}")
    a.e("s_nop 0")
    for i in range(4):
        o = f" offset:{1024*i}" if i else ""
        a.e(f"buffer_load_dwordx4 v{vW}, s[{sSrd}:{sSrd+3}], s{st} offen{o} lds")

def wfrag_const(a, vA, vL, sW, t, st):
    a.e(f"v_lshrrev_b32 v{t}, 5, v{vL}")
    a.e(f"v_bfe_u32 v{t+1}, v{vL}, 2, 2")
    a.e(f"v_lshl_add_u32 v{t}, v{t}, 3, v{t+1}")
    a.e(f"v_lshlrev_b32 v{vA}, 8, v{t}")
    a.e(f"v_and_b32 v{t}, 1, v{vL}")
    a.e(f"v_lshlrev_b32 v{t}, 5, v{t}")
    a.e(f"v_bfe_u32 v{t+2}, v{vL}, 1, 1")
    a.e(f"v_lshl_add_u32 v{t}, v{t+2}, 3, v{t}")
    a.e(f"v_bfe_u32 v{t+2}, v{vL}, 4, 1")
    a.e(f"v_lshl_add_u32 v{t}, v{t+2}, 4, v{t}")
    a.e(f"s_and_b32 s{st}, s{sW}, 3")
    a.e(f"s_lshl_b32 s{st}, s{st}, 6")
    a.e(f"v_add_u32 v{t}, s{st}, v{t}")
    a.e(f"v_lshlrev_b32 v{t+1}, 6, v{t+1}")
    a.e(f"v_xor_b32 v{t}, v{t}, v{t+1}")
    a.e(f"v_add_u32 v{vA}, v{vA}, v{t}")

def wfrag_read(a, dst, vAddr, off=0, stride=4096):
    for s in range(8):
        for u in range(2):
            r = (dst[s] if isinstance(dst, list) else dst + 4*s) + 2*u
            a.e(f"ds_read_b64_tr_b16 v[{r}:{r+1}], v{vAddr} offset:{off+s*stride+u*1024}")

def xfrag_read(a, dst, vL, sW, lds_base, t, st):
    a.e(f"v_and_b32 v{t}, 31, v{vL}")
    a.e(f"v_lshrrev_b32 v{t+1}, 5, v{vL}")
    a.e(f"v_and_b32 v{t+2}, 15, v{vL}")
    a.e(f"v_xor_b32 v{t+1}, v{t+1}, v{t+2}")
    a.e(f"v_lshlrev_b32 v{t+1}, 4, v{t+1}")
    a.e(f"v_lshl_add_u32 v{t}, v{t}, 8, v{t+1}")
    a.e(f"s_lshr_b32 s{st}, s{sW}, 2")
    a.e(f"s_lshl_b32 s{st}, s{st}, 13")
    a.e(f"s_add_u32 s{st}, s{st}, {lds_base}")
    a.e(f"v_add_u32 v{t}, s{st}, v{t}")
    for s in range(8):
        if s == 0:
            a.e(f"ds_read_b128 v[{dst}:{dst+3}], v{t}")
        else:
            r = t + 1 + (s & 1)
            a.e(f"v_xor_b32 v{r}, {32*s}, v{t}")
            a.e(f"ds_read_b128 v[{dst+4*s}:{dst+4*s+3}], v{r}")

def gemm8(a, acc, A, B, zero=True):
    for s in range(8):
        c = "0" if (s == 0 and zero) else f"v[{acc}:{acc+15}]"
        r = A[s] if isinstance(A, list) else A + 4*s
        a.e(f"v_mfma_f32_32x32x16_bf16 v[{acc}:{acc+15}], v[{r}:{r+3}], v[{B+4*s}:{B+4*s+3}], {c}")

WS_DBG = 0x2000000
def stamp(a, i, vst):
    if not cfg.dbg: return
    a.e("s_memrealtime s[90:91]")
    a.e("s_waitcnt lgkmcnt(0)")
    a.e(f"v_writelane_b32 v{vst}, s90, {i}")
def stamp_out(a, vst, vt, kidx):
    if not cfg.dbg: return
    srd(a, 92, S_WS, off_c=WS_DBG + kidx * 0x100000, size=0x100000)
    a.e(f"s_lshl_b32 s90, s2, 11")
    a.e(f"v_lshl_add_u32 v{vt}, v0, 2, s90")
    a.e(f"buffer_store_dword v{vst}, v{vt}, s[92:95], 0 offen")

def kernel_head(a, name):
    a.e(".text")
    a.e(f".globl {name}")
    a.e(".p2align 8")
    a.e(f".type {name},@function")
    a.label(name)

def kernel_desc(name, vg, sg):
    acc = (vg + 3) // 4 * 4
    return f""".amdhsa_kernel {name}
  .amdhsa_next_free_vgpr {vg}
  .amdhsa_next_free_sgpr {sg}
  .amdhsa_accum_offset {acc}
  .amdhsa_group_segment_fixed_size 0
  .amdhsa_kernarg_size 72
  .amdhsa_user_sgpr_count 2
  .amdhsa_user_sgpr_kernarg_segment_ptr 1
  .amdhsa_system_sgpr_workgroup_id_x 1
.end_amdhsa_kernel
"""

K1_LDS_A = 16384 + 57344
K1_LDS_B = 65536 + 96*272
def gen_k1(a):
    kernel_head(a, "prep_kernel")
    load_args(a)
    sW, sId, sT = 22, 23, 44
    vL = 1
    a.e(f"v_and_b32 v{vL}, 63, v0")
    a.e(f"v_lshrrev_b32 v2, 6, v0")
    a.e("s_nop 0")
    a.e(f"v_readfirstlane_b32 s{sW}, v2")
    if cfg.dbg: a.e("v_mov_b32 v197, 0")
    stamp(a, 0, 197)
    if cfg.dbg:
        a.e("s_getreg_b32 s90, hwreg(HW_REG_XCC_ID)")
        a.e("s_add_u32 s90, s90, 1")
        a.e("v_writelane_b32 v197, s90, 63")
    a.e(f"s_mov_b32 s{sId}, s2")
    a.e("s_cmp_lt_u32 s2, 120")
    a.e("s_cbranch_scc1 K1_BIN")
    a.e(f"s_sub_u32 s{sId}, s2, 3")
    a.e("s_sub_u32 s3, s2, 123")
    a.e("s_cmp_lt_u32 s3, 5")
    a.e("s_cbranch_scc1 K1_BIN")
    a.e("s_cmp_ge_u32 s2, 256")
    a.e("s_cbranch_scc1 K1_END")
    a.e(f"s_and_b32 s{sT}, s2, 7")
    a.e(f"s_lshr_b32 s{sId}, s2, 3")
    a.e(f"s_lshl4_add_u32 s{sId}, s{sT}, s{sId}")
    a.e(f"s_min_u32 s{sT}, s{sT}, 2")
    a.e(f"s_add_u32 s{sId}, s{sId}, s{sT}")
    a.e(f"s_sub_u32 s{sId}, s{sId}, 15")
    a.e(f"s_mul_i32 s{sT+2}, s{sId}, 24576")
    a.e(f"s_sub_u32 s{sT+4}, 3200000, s{sT+2}")
    a.e(f"s_min_u32 s{sT+4}, s{sT+4}, 24576")
    a.e(f"v_lshrrev_b32 v2, 4, v{vL}")
    a.e(f"v_and_b32 v3, 15, v{vL}")
    a.e(f"v_xor_b32 v3, v3, v2")
    a.e(f"v_lshlrev_b32 v3, 4, v3")
    a.e(f"v_lshl_add_u32 v16, v2, 8, v3")
    for i in range(1, 4): a.e(f"v_xor_b32 v{16+i}, {64*i}, v16")
    w_lane_const(a, 4, vL, 5)
    a.e(f"s_lshl_b32 s{sT+3}, s{sW}, 12")
    a.e("s_waitcnt lgkmcnt(0)")
    def xl():
        a.e(f"s_mov_b32 m0, s{sT+3}")
        srd(a, 24, S_X, off_s=sT+2, size=f"s{sT+4}")
        for i in range(4):
            o = f" offset:{1024*i}" if i else ""
            a.e(f"buffer_load_dwordx4 v{16+i}, s[24:27], s{sT+3} offen{o} {cfg.x_pol} lds")
    def wl():
        srd(a, 28, S_WM, size=32768)
        w_dma(a, 28, 4, sT+3, 0, 32768, sT)
    xl(); wl()
    srd(a, 32, S_WS, off_s=sT+2, off_c=cfg.wsoff + WS_P, size=f"s{sT+4}")
    wfrag_const(a, 8, vL, sW, 9, sT)
    OT = 65536
    a.e(f"v_and_b32 v12, 31, v{vL}")
    a.e(f"v_lshrrev_b32 v13, 5, v{vL}")
    a.e(f"v_and_b32 v15, 15, v{vL}")
    a.e(f"v_xor_b32 v15, v15, v13")
    a.e(f"v_lshlrev_b32 v15, 4, v15")
    a.e(f"v_lshl_add_u32 v15, v12, 8, v15")
    a.e(f"s_lshr_b32 s{sT}, s{sW}, 2")
    a.e(f"s_lshl_b32 s{sT+1}, s{sT}, 14")
    a.e(f"v_add_u32 v20, s{sT+1}, v15")
    for st in range(1, 8): a.e(f"v_xor_b32 v{20+st}, {32*st}, v20")
    a.e(f"v_lshlrev_b32 v13, 5, v13")
    a.e(f"v_mul_u32_u24 v12, 272, v12")
    a.e(f"s_mul_i32 s{sT}, s{sT}, {64*272}")
    a.e(f"s_and_b32 s{sT+1}, s{sW}, 3")
    a.e(f"s_lshl_b32 s{sT+1}, s{sT+1}, 6")
    a.e(f"s_add_u32 s{sT}, s{sT}, s{sT+1}")
    a.e(f"s_add_u32 s{sT}, s{sT}, {OT}")
    a.e(f"v_add3_u32 v12, s{sT}, v12, v13")
    a.e(f"v_lshrrev_b32 v13, 4, v0")
    a.e(f"v_lshlrev_b32 v14, 4, v0")
    a.e(f"v_lshl_add_u32 v13, v13, 4, v14")
    a.e(f"v_add_u32 v13, {OT}, v13")
    a.e(f"s_mov_b32 s{sT}, {LOG2E_NEG}")
    a.e(f"s_mov_b32 s{sT+1}, {LOG2E_NEG}")
    a.e("s_movk_i32 s62, 8192\ns_movk_i32 s63, 16384\ns_movk_i32 s64, 24576")
    WF, X0, X1, A0, A1 = 32, 64, 96, 128, 144
    def rw(st):
        for u in range(2):
            a.e(f"ds_read_b64_tr_b16 v[{WF+4*st+2*u}:{WF+4*st+2*u+1}], v8 offset:{32768+st*4096+u*1024}")
    def rx0(st): a.e(f"ds_read_b128 v[{X0+4*st}:{X0+4*st+3}], v{20+st}")
    def mm(A, X, st):
        c = "0" if st == 0 else f"v[{A}:{A+15}]"
        a.e(f"v_mfma_f32_32x32x16_bf16 v[{A}:{A+15}], v[{WF+4*st}:{WF+4*st+3}], v[{X+4*st}:{X+4*st+3}], {c}")
    def fin(b, A):
        for i in range(8):
            a.e(f"v_pk_mul_f32 v[{A+2*i}:{A+2*i+1}], v[{A+2*i}:{A+2*i+1}], s[{sT}:{sT+1}]")
        for i in range(8):
            a.e(f"v_cvt_pk_bf16_f32 v{A+i}, v{A+2*i}, v{A+1+2*i}")
        a.e(f"ds_write_b128 v12, v[{A}:{A+3}] offset:{b*32*272}")
        a.e(f"ds_write_b128 v12, v[{A+4}:{A+7}] offset:{b*32*272+16}")
    a.e(f"s_cmp_ge_u32 s{sW}, 4")
    a.e("s_waitcnt vmcnt(4)")
    a.e("s_barrier")
    for st in range(8): rx0(st)
    a.e("s_cbranch_scc1 K1_NX1")
    for st in range(8):
        a.e(f"ds_read_b128 v[{X1+4*st}:{X1+4*st+3}], v{20+st} offset:8192")
    a.label("K1_NX1")
    a.e("s_waitcnt vmcnt(0)")
    stamp(a, 1, 197)
    a.e("s_barrier")
    for st in range(8): rw(st)
    for st in range(8):
        a.e(f"s_waitcnt lgkmcnt({14-2*st})")
        mm(A0, X0, st)
    a.e("s_cbranch_scc1 K1_NX2")
    for st in range(8): mm(A1, X1, st)
    a.e("s_nop 2")
    fin(0, A0)
    fin(1, A1)
    a.e("s_branch K1_NX3")
    a.label("K1_NX2")
    a.e("s_nop 10")
    fin(0, A0)
    a.label("K1_NX3")
    a.e("s_waitcnt lgkmcnt(0)")
    a.e("s_barrier")
    for j in range(3):
        a.e(f"ds_read_b128 v[{48+4*j}:{51+4*j}], v13 offset:{j*32*272}")
    for j in range(3):
        a.e(f"s_waitcnt lgkmcnt({2-j})")
        a.e(f"buffer_store_dwordx4 v[{48+4*j}:{51+4*j}], v14, s[32:35], {['0','s62','s63'][j]} offen {cfg.p_pol}")
    stamp(a, 2, 197)
    if cfg.dbg: a.e("s_waitcnt vmcnt(0)")
    stamp(a, 3, 197)
    stamp_out(a, 197, 198, 0)
    a.e("s_endpgm")
    SL, FLAG, SORT = 0, 36864, 36880
    a.label("K1_BIN")
    a.e(f"s_mul_i32 s{sT+2}, s{sId}, 12800")
    a.e(f"s_lshl_b32 s{sT+3}, s{sId}, 15")
    a.e("v_lshlrev_b32 v2, 4, v0")
    a.e("s_movk_i32 s3, 6400")
    a.e("s_movk_i32 s59, 400")
    a.e("v_cmp_gt_u32 s[60:61], s59, v0")
    a.e("s_waitcnt lgkmcnt(0)")
    D, S, BA, RK, AD = 4, 12, 20, 28, 36
    srd(a, 24, S_DST, off_s=sT+2, size=12800)
    a.e(f"buffer_load_dwordx4 v[{D}:{D+3}], v2, s[24:27], 0 offen {cfg.ld_pol}")
    a.e(f"buffer_load_dwordx4 v[{D+4}:{D+7}], v2, s[24:27], s3 offen {cfg.ld_pol}")
    srd(a, 28, S_SRC, off_s=sT+2, size=12800)
    a.e(f"buffer_load_dwordx4 v[{S}:{S+3}], v2, s[28:31], 0 offen {cfg.ld_pol}")
    a.e(f"buffer_load_dwordx4 v[{S+4}:{S+7}], v2, s[28:31], s3 offen {cfg.ld_pol}")
    srd(a, 32, S_WS, off_s=sT+3, off_c=cfg.wsoff + WS_S01, size=32768)
    a.e("v_mov_b32 v44, 1")
    a.e("v_min_u32 v3, 256, v0")
    a.e("v_mul_u32_u24 v3, 144, v3")
    a.e(f"ds_write_b32 v3, v44 offset:{SL}")
    a.e("v_lshlrev_b32 v45, 22, v0")
    a.e("s_movk_i32 s58, 10700")
    a.e("s_movk_i32 s57, 144")
    a.e("v_lshrrev_b32 v46, 3, v0")
    a.e("v_lshl_add_u32 v46, v46, 4, v2")
    a.e(f"v_mov_b32 v48, {FLAG}")
    a.e("s_movk_i32 s62, 8192\ns_movk_i32 s63, 16384\ns_movk_i32 s64, 24576")
    a.e("s_waitcnt lgkmcnt(0)")
    a.e("s_barrier")
    if True:
        a.e(f"s_cmp_lg_u32 s{sW}, 7")
        a.e("s_cbranch_scc1 K1_NOTOUCH")
        a.e("s_cmp_ge_u32 s2, 124")
        a.e("s_cbranch_scc1 K1_W3")
        a.e(f"s_lshr_b32 s{sT}, s2, 3")
        a.e(f"v_lshlrev_b32 v70, 7, v{vL}")
        if cfg.touch & 1:
            srd(a, 72, S_WM, off_c=32768, size=32768)
            srd(a, 76, S_WU, size=65536)
            a.e(f"s_mul_i32 s{sT+1}, s{sT}, {18*128}")
            a.e("s_mov_b64 exec, 0x3ffff")
            a.e(f"buffer_load_dword v71, v70, s[72:75], s{sT+1} offen")
            a.e(f"s_mul_i32 s{sT+1}, s{sT}, {35*128}")
            a.e("s_mov_b32 exec_lo, -1\ns_mov_b32 exec_hi, 7")
            a.e(f"buffer_load_dword v72, v70, s[76:79], s{sT+1} offen")
        if cfg.touch & 2:
            a.e("s_mov_b64 exec, 0x1ff")
            a.e("s_getpc_b64 s[68:69]")
            a.label("K1_PC")
            a.e(f"s_add_u32 s68, s68, {NAME}_kernel-K1_PC")
            a.e("s_addc_u32 s69, s69, 0")
            a.e(f"s_mul_i32 s{sT+1}, s{sT}, {9*128}")
            a.e(f"v_add_u32 v74, s{sT+1}, v70")
            a.e(f"v_min_u32 v74, K2_CODE_END-{NAME}_kernel-4, v74")
            a.e("v_mov_b32 v75, s69")
            a.e("v_add_co_u32 v74, vcc, s68, v74")
            a.e("s_nop 1")
            a.e("v_addc_co_u32 v75, vcc, 0, v75, vcc")
            a.e("global_load_dword v73, v[74:75], off")
        a.e("s_mov_b64 exec, -1")
        a.e("s_branch K1_B2")
        a.label("K1_NOTOUCH")
    a.e("s_mov_b64 exec, s[60:61]")
    for j in range(2):
        a.e(f"s_waitcnt vmcnt({3-j})")
        if j == 0: stamp(a, 1, 197)
        for i in range(4*j, 4*j+4):
            a.e(f"v_mul_u32_u24 v{AD+i}, s58, v{D+i}")
            a.e(f"v_lshrrev_b32 v{AD+i}, 19, v{AD+i}")
            a.e(f"v_mul_u32_u24 v{BA+i}, s57, v{AD+i}")
            a.e(f"ds_add_rtn_u32 v{RK+i}, v{BA+i}, v44 offset:{SL}")
    for i in range(8):
        a.e(f"v_mul_u32_u24 v{AD+i}, 49, v{AD+i}")
        a.e(f"v_sub_u32 v{D+i}, v{D+i}, v{AD+i}")
        if i: a.e(f"v_add_u32 v45, {hex(((1600-3) if i == 4 else 1) << 20)}, v45")
        a.e(f"v_or_b32 v{D+i}, v{D+i}, v45")
    a.e(f"s_waitcnt vmcnt(0)")
    stamp(a, 4, 197)
    for i in range(8):
        a.e(f"s_waitcnt lgkmcnt(7)")
        a.e(f"v_min_u32 v{AD+i}, 32, v{RK+i}")
        a.e(f"v_lshl_or_b32 v{D+i}, v{S+i}, 6, v{D+i}")
        a.e(f"v_lshl_add_u32 v{AD+i}, v{AD+i}, 2, v{BA+i}")
        a.e(f"ds_write_b32 v{AD+i}, v{D+i} offset:{SL}")
    a.e(f"v_max3_u32 v47, v{RK}, v{RK+1}, v{RK+2}")
    a.e(f"v_max3_u32 v47, v47, v{RK+3}, v{RK+4}")
    a.e(f"v_max3_u32 v47, v47, v{RK+5}, v{RK+6}")
    a.e(f"v_max_u32 v47, v47, v{RK+7}")
    a.e("v_cmpx_le_u32 vcc, 32, v47")
    a.e("ds_write_b32 v48, v47")
    a.e("s_mov_b64 exec, -1")
    a.e("s_waitcnt lgkmcnt(0)")
    stamp(a, 5, 197)
    a.label("K1_B2")
    a.e("s_barrier")
    stamp(a, 6, 197)
    for j in range(4):
        a.e(f"ds_read_b128 v[{52+4*j}:{55+4*j}], v46 offset:{SL + j*9216}")
    a.e(f"ds_read_b32 v49, v48")
    for j in range(4):
        a.e(f"s_waitcnt lgkmcnt({4-j})")
        a.e(f"buffer_store_dwordx4 v[{52+4*j}:{55+4*j}], v2, s[32:35], {['0','s62','s63','s64'][j]} offen {cfg.st_pol}")
    a.e("s_waitcnt lgkmcnt(0)")
    a.e("v_readfirstlane_b32 s3, v49")
    a.e("s_cmp_lg_u32 s3, 1")
    a.e("s_cbranch_scc1 K1_FULL")
    stamp(a, 2, 197)
    if cfg.dbg: a.e("s_waitcnt vmcnt(0)")
    stamp(a, 3, 197)
    stamp_out(a, 197, 198, 0)
    a.label("K1_END")
    a.e("s_endpgm")
    a.label("K1_FULL")
    a.e("s_waitcnt vmcnt(0)")
    a.e(f"s_lshl_b32 s{sT+4}, s{sId}, 2")
    srd(a, 32, S_WS, off_s=sT+2, off_c=cfg.wsoff + WS_REC, size=12800)
    srd(a, 36, S_WS, off_s=sT+4, off_c=cfg.wsoff + WS_OFFT, size=255*1024 + 4)
    a.e(f"v_mul_u32_u24 v3, {4*144}, v{vL}")
    for i in range(4):
        a.e(f"ds_read_b32 v{52+i}, v3 offset:{SL + 144*i}")
    a.e("s_waitcnt lgkmcnt(0)")
    for i in range(4):
        a.e(f"v_add_u32 v{52+i}, -1, v{52+i}")
    a.e("v_add_u32 v56, v52, v53")
    a.e("v_add_u32 v57, v56, v54")
    a.e("v_add_u32 v58, v57, v55")
    a.e("v_mov_b32 v60, v58")
    scan64(a, 60)
    a.e("v_sub_u32 v60, v60, v58")
    a.e("v_add_u32 v61, v60, v52")
    a.e("v_add_u32 v62, v60, v56")
    a.e("v_add_u32 v63, v60, v57")
    for i in range(4):
        a.e(f"ds_write_b32 v3, v{60+i} offset:{SL + 144*i + 132}")
    a.e(f"s_cmp_lg_u32 s{sW}, 7")
    a.e("s_cbranch_scc1 K1_NOFFT")
    a.e(f"v_lshlrev_b32 v59, 12, v{vL}")
    for i in range(4):
        o = f" offset:{1024*i}" if i else ""
        a.e(f"buffer_store_dword v{60+i}, v59, s[36:39], 0 offen{o}")
    a.label("K1_NOFFT")
    a.e("s_mov_b64 exec, s[60:61]")
    a.e("s_waitcnt lgkmcnt(0)")
    for i in range(8):
        a.e(f"ds_read_b32 v{BA+i}, v{BA+i} offset:{SL + 132}")
    a.e("s_waitcnt lgkmcnt(0)")
    for i in range(8):
        a.e(f"v_add_lshl_u32 v{BA+i}, v{BA+i}, v{RK+i}, 2")
        a.e(f"ds_write_b32 v{BA+i}, v{D+i} offset:{SORT - 4}")
    a.e("s_mov_b64 exec, -1")
    a.e("s_waitcnt lgkmcnt(0)")
    a.e("s_barrier")
    a.e(f"ds_read_b128 v[4:7], v2 offset:{SORT}")
    a.e(f"ds_read_b128 v[8:11], v2 offset:{SORT + 8192}")
    a.e(f"s_waitcnt lgkmcnt(0)")
    a.e(f"buffer_store_dwordx4 v[4:7], v2, s[32:35], 0 offen")
    a.e(f"buffer_store_dwordx4 v[8:11], v2, s[32:35], s62 offen")
    a.e("s_endpgm")
    a.label("K1_W3")
    a.e(f"s_sub_u32 s{sT}, s2, 124")
    srd(a, 72, S_WM, off_c=65536, size=4096)
    srd(a, 76, S_WS, off_c=cfg.wsoff + WS_W3F, size=4096)
    a.e(f"v_and_b32 v70, 31, v{vL}")
    a.e("v_lshlrev_b32 v70, 1, v70")
    a.e(f"v_lshrrev_b32 v71, 5, v{vL}")
    a.e("v_lshl_add_u32 v70, v71, 11, v70")
    a.e(f"s_lshl_b32 s{sT+1}, s{sT}, 6")
    for j in range(8):
        o = f" offset:{256*j}" if j else ""
        a.e(f"buffer_load_ushort v{72+j}, v70, s[72:75], s{sT+1} offen{o}")
    a.e(f"s_lshl_b32 s{sT+1}, s{sT}, 10")
    a.e(f"s_mov_b32 s{sT}, {LOG2E_NEG}")
    a.e(f"v_lshlrev_b32 v71, 4, v{vL}")
    a.e("s_waitcnt vmcnt(0)")
    for j in range(8):
        a.e(f"v_lshlrev_b32 v{72+j}, 16, v{72+j}")
        a.e(f"v_mul_f32 v{72+j}, s{sT}, v{72+j}")
    for j in range(4):
        a.e(f"v_cvt_pk_bf16_f32 v{80+j}, v{72+2*j}, v{73+2*j}")
    a.e(f"buffer_store_dwordx4 v[80:83], v71, s[76:79], s{sT+1} offen {cfg.st_pol}")
    a.e("s_branch K1_B2")

CNT, FLG, LUT, QL, LIST, AGG, SIDE, WU2, STG = 0, 256, 288, 576, 13776, 30800, 57200, 65536, 98304
MAXT = 65
K2_LDS = 163840
vL, vM = 1, 2
vOC, vREM, vROFF, vEB = 3, 4, 5, 6
vAE, vAP, vAQ = 7, 8, 9
vCP, vRP0, vRP1, vCQ, vCL, vCA, vH16, vFA = 10, 11, 12, 13, 14, 15, 16, 17
vPA = 144
vEA, vLA = 20, 21
vQA = 22
vRS = 148
vC4 = 152
ACC = 156
vRN = 28
vRE = 30
vSD = 31
vCUR = 32
vCHK = 34
vWC, vWA = 35, 36
vPF = 38
vT = 40
Z = 64; PX = 128; PY = 128; QX = 160; QY = 168; EE = 176; AQ = 184; AP = 188; IDX = 192; W3 = 196
NN = 212; DD = 220; EX = 228; TT = 232; ACX = 236
sP, sE, sX, sO, sR, sWm, sWu, sOT = 24, 28, 32, 36, 40, 44, 48, 52
sW, sBin, sNT, sCnt, sG0, sG1, sG2, sLim, sDone, sSafe, sW4k, sM0, sMask, sMore, sFirst, sDm = 22, 23, 56, 57, 58, 59, 60, 61, 62, 63, 64, 65, 66, 67, 68, 69
sT = 70
sX0 = 80
sSusp = 88
sF0, sF1 = 32, 34
sMA, sMB, sL, sEX = 58, 59, 60, 52
PSIZE = 12500 * 256 + 3072
s256 = 79
ESIZE = 400000 * 32

def dma_m0(H, dest=None):
    if dest is None: dest = H
    return f"s_add_u32 m0, s{sW4k}, {WU2 - 128*H}" if dest == "alt" else f"s_add_u32 m0, s{sM0}, {dest*4096 - 128*H + 256}"
def dma_ld(H):
    out = []
    for j in range(4):
        imm = 1024 * j + 128 * H
        o = f" offset:{imm}" if imm else ""
        out.append(f"buffer_load_dwordx4 v{vPA+j}, s[{sP}:{sP+3}], 0 offen{o} lds")
    return out
def dma_ops(H, dest=None):
    l = dma_ld(H)
    return [[dma_m0(H, dest), "s_nop 0", l[0]], [l[1]], [l[2]], [l[3]]]
def dma_half(a, H, dest=None):
    for s in sum(dma_ops(H, dest), []): a.e(s)
def pfrag_reads(dst, H, va=None):
    out = []
    va = vRP0 if va is None else va
    for tq in range(2):
        for q in range(4):
            r = dst + 8 * tq + 2 * q
            out.append(f"ds_read_b64_tr_b16 v[{r}:{r+1}], v{va+tq} offset:{H*4096 + q*512}")
    return out
def qfrag_reads(dst, H, par):
    out = []
    for tq in range(2):
        for u in range(2):
            r = dst + 4 * tq + 2 * u
            out.append(f"ds_read_b64_tr_b16 v[{r}:{r+1}], v{vQA+2*par+u} offset:{(2*H+tq)*64}")
    return out
def list_reads_se(o=0):
    return [f"ds_read_b32 v{vRE}, v{vAE} offset:{128*o}", f"ds_read2_b32 v[{vRS}:{vRS+1}], v{vAP} offset0:{32*o} offset1:{32*o+8}", f"ds_read2_b32 v[{vRS+2}:{vRS+3}], v{vAP} offset0:{32*o+16} offset1:{32*o+24}"]
def list_reads_n(o=0):
    return [f"ds_read_u16 v{vRN}, v{vAQ} offset:{128*o}", f"ds_read_u16 v{vRN+1}, v{vAQ} offset:{128*o+64}"]
def addr_p():
    return [f"v_mad_u32_u16 v{vPA+j}, v{vRS+j}, s{s256}, v{vC4+j}" for j in range(4)]
def addr_e():
    return [f"v_and_or_b32 v{vEA}, v{vRE}, s{sMask}, v{vH16}"]
def addr_l():
    return [f"v_and_or_b32 v{vLA}, v{vRE}, 16, v{vCL}", f"v_cmp_gt_i32 vcc, 0, v{vRE}"]
def addr_se():
    return addr_p() + addr_e() + addr_l()
def flags_from_vcc(sF):
    if "nf2" in cfg.x: return [f"s_mov_b32 s{sF}, 0", f"s_mov_b32 s{sF+1}, 0"]
    return [f"s_lshr_b32 s{sF+1}, vcc_lo, 4", f"s_mov_b32 s{sF}, vcc_lo", f"s_or_b32 s{sF+1}, s{sF+1}, vcc_lo", f"s_or_b32 s{sF+1}, s{sF+1}, s{sSafe}"]
def addr_q(par):
    return [f"v_add_u32 v{vQA+2*par}, v{vRN}, v{vCQ}", f"v_add_u32 v{vQA+2*par+1}, v{vRN+1}, v{vCQ}"]
def e_load(par):
    return f"buffer_load_dwordx4 v[{EE+4*par}:{EE+4*par+3}], v{vEA}, s[{sE}:{sE+3}], 0 offen {cfg.e_pol}"
def mfmas(c0, Pset, Qset, epar):
    out = []
    zz = lambda c: f"v[{Z+16*c}:{Z+16*c+15}]"
    f4 = lambda r: f"v[{r}:{r+3}]"
    M = "v_mfma_f32_32x32x16_bf16"
    for i in range(2): out.append(f"{M} {zz(c0+i)}, {f4(EE+4*epar)}, {f4(W3+4*(c0+i))}, 0")
    for i in range(2): out.append(f"{M} {zz(c0+i)}, {f4(AQ)}, {f4(Qset+4*i)}, {zz(c0+i)}")
    for i in range(2): out.append(f"v_smfmac_f32_32x32x32_bf16 {zz(c0+i)}, {f4(AP)}, v[{Pset+8*i}:{Pset+8*i+7}], v{IDX}")
    return out
p2 = lambda r: f"v[{r}:{r+1}]"
def flush_code(a, c0, X, mid=(), wait=True, chk=()):
    t = vT + 8 * X
    for i in range(2):
        c = c0 + i
        a.e(f"v_rcp_f32 v{t+2*i}, v{DD+2*c}")
        a.e(f"v_rcp_f32 v{t+2*i+1}, v{DD+2*c+1}")
    for s in chk: a.e(s)
    for i in range(2):
        c = c0 + i
        a.e(f"v_max3_f32 v{vCHK}, v{DD+2*c}, v{DD+2*c+1}, v{vCHK}")
    for s in mid: a.e(s)
    if wait: a.e("s_waitcnt lgkmcnt(0)")
    for j in range(2):
        for i in range(2):
            c = c0 + i
            a.e(f"v_fmac_f32 v{ACC+c}, v{NN+2*c+j}, v{t+2*i+j}")

def half_step(a, ool, X, par, extras, tag):
    c0 = 2 * X
    sF0 = (32, 34)[par]
    if X == 0: mf = mfmas(2, PX, QX, par)
    else:      mf = mfmas(0, PY, QY, 1 - par)
    def keep(s):
        if "nodma" in cfg.x and (" lds" in s or "m0" in s or s == "s_nop 0"): return False
        if "noe" in cfg.x and s.startswith("buffer_load") and " lds" not in s: return False
        if "nods" in cfg.x and s.startswith("ds_read"): return False
        if "nowait" in cfg.x and s.startswith("s_waitcnt"): return False
        if "novm" in cfg.x and s.startswith("s_waitcnt vmcnt"): return False
        return True
    extras = {k: [s for s in v if keep(s)] for k, v in extras.items()}
    for s in extras.get("pre", []): a.e(s)
    if cfg.prio == 1: a.e(f"s_setprio {1 - X}")
    if cfg.prio == 2 and X == 0: a.e(f"s_setprio {1 - par}")
    for k in range(8):
        if cfg.prio == 3 and k in (0, 4): a.e(f"s_setprio {1 if k == 0 else 0}")
        if cfg.prio == 4: a.e("s_setprio 1")
        if cfg.prio == 5: a.e("s_setprio 0")
        if "nomfma" not in cfg.x and k < len(mf): a.e(mf[k])
        for i in range(2):
            z = Z + 16 * (c0 + i) + 2 * k
            a.e(f"v_exp_f32 v{EX+2*i}, v{z}")
            a.e(f"v_exp_f32 v{EX+2*i+1}, v{z+1}")
        for s in extras.get(k, []): a.e(s)
        if cfg.prio == 4: a.e("s_setprio 0")
        if cfg.prio == 5: a.e("s_setprio 1")
        bit = 8 * (k >> 1) + 2 * (k & 1)
        lf, lb = f"F_{tag}_{k}", f"R_{tag}_{k}"
        if "nobr" not in cfg.x:
            a.e(f"s_bitcmp1_b32 s{sSafe if 'nofl' in cfg.x else sF0+1}, {bit}")
            a.e(f"s_cbranch_scc1 {lf}")
        for i in range(2):
            c = c0 + i; z = Z + 16 * c + 2 * k
            a.e(f"v_pk_fma_f32 {p2(TT+2*i)}, {p2(z)}, {p2(DD+2*c)}, {p2(NN+2*c)}")
        for i in range(2):
            c = c0 + i
            a.e(f"v_pk_fma_f32 {p2(DD+2*c)}, {p2(DD+2*c)}, {p2(EX+2*i)}, {p2(DD+2*c)}")
        for i in range(2):
            c = c0 + i
            a.e(f"v_pk_fma_f32 {p2(NN+2*c)}, {p2(NN+2*c)}, {p2(EX+2*i)}, {p2(TT+2*i)}")
        a.label(lb)
        ool.label(lf)
        t = vT + 8 * X
        ex = "K2_LEND" if X else (f"EXA{par}_{k}" if k < 6 else f"R_{tag}_7")
        sal = ([f"s_bitcmp1_b32 s{sF0}, {bit+1}", f"s_cbranch_scc1 {ex}"] if k else []) + \
              [f"s_bitcmp1_b32 s{sF0}, {bit}", f"s_cselect_b32 s{sT}, -1, 0", f"s_bitcmp1_b32 s{sF0}, {bit+4}", f"s_cselect_b32 s{sT+1}, -1, 0"]
        rc = [f"v_rcp_f32 v{t+j}, v{DD+2*c0+j}" for j in range(4)]
        n = len(sal)
        for j in range(4):
            ool.e(rc[j])
            for x in sal[:(n + 3 - j) // 4 if False else 0]: pass
            cnt = (n // 4) + (1 if j < n % 4 else 0)
            for _ in range(cnt): ool.e(sal.pop(0))
        for i in range(2):
            c = c0 + i
            ool.e(f"v_max3_f32 v{vCHK}, v{DD+2*c}, v{DD+2*c+1}, v{vCHK}")
        ool.e(f"v_mov_b32_dpp v{t+6}, v{vQA+2*par+(k>>2)} row_newbcast:{4*(k&3)} row_mask:0xf bank_mask:0xf")
        ool.e("s_waitcnt lgkmcnt(0)")
        for j in range(2):
            for i in range(2):
                c = c0 + i
                ool.e(f"v_fmac_f32 v{ACC+c}, v{NN+2*c+j}, v{t+2*i+j}")
        ool.e(f"s_mov_b64 exec, s[{sT}:{sT+1}]")
        ool.e(f"ds_write2_b32 v{vCUR+X}, v{ACC+c0}, v{ACC+c0+1} offset0:{32*c0} offset1:{32*c0+32}")
        ool.e(f"v_lshl_add_u32 v{vCUR+X}, v{t+6}, 1, v{vCA}")
        ool.e(f"ds_read2_b32 v[{ACC+c0}:{ACC+c0+1}], v{vCUR+X} offset0:{32*c0} offset1:{32*c0+32}")
        ool.e("s_mov_b64 exec, -1")
        for i in range(2):
            c = c0 + i
            ool.e(f"v_pk_add_f32 {p2(DD+2*c)}, {p2(EX+2*i)}, 1.0 op_sel_hi:[1,0]")
        for i in range(2):
            c = c0 + i; z = Z + 16 * c + 2 * k
            ool.e(f"v_pk_mov_b32 {p2(NN+2*c)}, {p2(z)}, {p2(z)} op_sel:[0,1]")
        ool.e(f"s_branch {lb}")

def lds_fill(a, base, nbytes, vdata, vaddr16, ex):
    n = (nbytes + 15) // 16
    r = 0
    while n >= 512:
        a.e(f"ds_write_b128 v{vaddr16}, v[{vdata}:{vdata+3}] offset:{base + r*8192}")
        n -= 512; r += 1
    if n:
        a.e(f"s_movk_i32 s{sT}, {n}")
        a.e(f"v_cmp_gt_u32 vcc, s{sT}, v0")
        a.e(f"s_and_saveexec_b64 s[{ex}:{ex+1}], vcc")
        a.e(f"ds_write_b128 v{vaddr16}, v[{vdata}:{vdata+3}] offset:{base + r*8192}")
        a.e(f"s_mov_b64 exec, s[{ex}:{ex+1}]")

def reset_round(a, zero_agg):
    t = vT
    a.e(f"v_lshlrev_b32 v{t}, 4, v0")
    a.e(f"v_mov_b32 v{t+8}, 0\nv_mov_b32 v{t+9}, 0\nv_mov_b32 v{t+10}, 0\nv_mov_b32 v{t+11}, 0")
    lds_fill(a, CNT, 272, t+8, t, sX0)
    if zero_agg: lds_fill(a, AGG, 50 * 528 + 8192, t+8, t, sX0)
    else:        lds_fill(a, SIDE, 8192, t+8, t, sX0)

def onehot4(a, dst, vJ, vcond_sgpr, t):
    a.e(f"v_and_b32 v{t}, 1, v{vJ}")
    a.e(f"v_lshlrev_b32 v{t}, 4, v{t}")
    a.e(f"v_mov_b32 v{t+1}, 0x3f80")
    a.e(f"v_lshlrev_b32 v{t}, v{t}, v{t+1}")
    if vcond_sgpr is not None:
        a.e(f"v_cndmask_b32 v{t}, 0, v{t}, s[{vcond_sgpr}:{vcond_sgpr+1}]")
    a.e(f"v_lshrrev_b32 v{t+1}, 1, v{vJ}")
    for i in range(4):
        a.e(f"v_cmp_eq_u32 vcc, {i}, v{t+1}")
        a.e("s_nop 1")
        a.e(f"v_cndmask_b32 v{dst+i}, 0, v{t}, vcc")

def gen_k2(a):
    ool = Asm()
    rare = Asm()
    RC = 160; RK = 172; NA = 184; EN = 212
    XF, WU1F, W2F, QACC = 64, 96, [128, 132, 136, 140, 160, 164, 168, 172], 212
    vLA0, vXA, vW3A, vW0 = vT + 20, vT + 21, vT + 22, vT + 23
    t = vT + 12
    kernel_head(a, NAME + "_kernel")
    load_args(a)
    a.e(f"v_lshrrev_b32 v{vT+1}, 2, v0")
    a.e(f"v_and_b32 v{vW0}, 3, v0")
    a.e("s_cmp_ge_u32 s2, 256")
    a.e("s_cbranch_scc1 K2_END")
    if cfg.dbg:
        a.e("v_mov_b32 v252, 0")
        a.e("s_memrealtime s[92:93]")
    idmap(a, sBin, 2, sT)
    a.e(f"v_mul_u32_u24 v{vEB}, 3200, v{vT+1}")
    a.e(f"v_lshlrev_b32 v{vT+4}, 4, v{vW0}")
    a.e(f"s_lshl_b32 s{sT+2}, s{sBin}, 7")
    a.e(f"s_add_u32 s{sT+2}, s{sT+2}, {cfg.wsoff + WS_S01}")
    a.e(f"v_lshl_add_u32 v{vT+2}, v{vT+1}, 15, v{vT+4}")
    a.e(f"s_mov_b32 s{sOT+2}, {124*32768+128}")
    a.e(f"s_mov_b32 s{sOT+3}, 0x20000")
    a.e(f"v_lshrrev_b32 v{vT}, 6, v0")
    a.e(f"v_and_b32 v{vL}, 63, v0")
    a.e(f"v_readfirstlane_b32 s{sW}, v{vT}")
    a.e(f"s_mul_i32 s{sT+3}, s{sBin}, 12544")
    a.e(f"s_sub_u32 s{sT+4}, 3200000, s{sT+3}")
    a.e(f"s_min_u32 s{sT+4}, s{sT+4}, 12544")
    a.e(f"v_mov_b32 v{vT+8}, 0\nv_mov_b32 v{vT+9}, 0\nv_mov_b32 v{vT+10}, 0\nv_mov_b32 v{vT+11}, 0")
    a.e(f"v_lshlrev_b32 v{vW3A}, 4, v{vL}")
    a.e("s_mov_b64 exec, 0x1ffff")
    a.e(f"ds_write_b128 v{vW3A}, v[{vT+8}:{vT+11}] offset:{CNT}")
    a.e("s_mov_b64 exec, -1")
    WU1L = 32768
    NPF = cfg.prefetchP
    vXD, vW3D = vT + 18, vT + 7
    sM = sX0 + 4
    c = Asm(); x_dma(c, sX, sW, vL, STG, vXD, sM + 2, strided=True)
    for x in c.lines[:-4]: a.e(x)
    a.e(f"s_add_u32 s{sM+3}, s{sM+3}, {STG}")
    xd = c.lines[-2:]
    w_lane_const(a, vWC, vL, t)
    a.e(f"s_lshl_b32 s{sW4k}, s{sW}, 12")
    a.e(f"s_lshl_b32 s{sM0}, s{sW}, 13")
    a.e(f"s_add_u32 s{sM}, s{sM0}, {STG + 4096}")
    a.e(f"s_add_u32 s{sM0}, s{sM0}, {STG - 256}")
    a.e(f"s_add_u32 s{sM+1}, s{sW4k}, {WU1L}")
    a.e(f"v_lshlrev_b32 v{vW3D}, 4, v0")
    a.e(f"s_and_b32 s{sT+1}, s{sW}, 4")
    a.e(f"s_add_u32 s{sT}, s{sW}, s{sT+1}")
    a.e(f"s_lshl_b32 s{sT}, s{sT}, 10")
    a.e(f"s_add_u32 m0, s{sT}, {STG + 32768}")
    a.e(f"s_mov_b32 s{sR+2}, 4096")
    a.e(f"s_mov_b32 s{sR+3}, 0x20000")
    a.e("s_waitcnt lgkmcnt(0)")
    a.e(f"s_add_u32 s{sOT}, s{S_WS}, s{sT+2}")
    a.e(f"s_addc_u32 s{sOT+1}, s{S_WS+1}, 0")
    a.e(f"buffer_load_dwordx4 v[{RC}:{RC+3}], v{vT+2}, s[{sOT}:{sOT+3}], 0 offen")
    a.e(f"buffer_load_dwordx4 v[{RC+4}:{RC+7}], v{vT+2}, s[{sOT}:{sOT+3}], 0 offen offset:64")
    a.e(f"s_add_u32 s{sR}, s{S_WS}, {cfg.wsoff + WS_W3F}")
    a.e(f"s_addc_u32 s{sR+1}, s{S_WS+1}, 0")
    a.e(f"buffer_load_dwordx4 v{vW3D}, s[{sR}:{sR+3}], 0 offen lds")
    if cfg.dbg:
        a.e("v_writelane_b32 v252, s92, 0")
        a.e("s_getreg_b32 s90, hwreg(HW_REG_XCC_ID)")
        a.e("s_add_u32 s90, s90, 1")
        a.e("v_writelane_b32 v252, s90, 39")
    stamp(a, 40, 252)
    srd(a, sX, S_X, off_s=sT+3, size=f"s{sT+4}")
    srd(a, sO, S_OUT, off_s=sT+3, size=f"s{sT+4}")
    srd(a, sWm, S_WM, off_c=32768, size=32768)
    srd(a, sWu, S_WU, size=256*256)
    a.e("s_barrier")
    stamp(a, 41, 252)
    def mix(lines, extra, first=0):
        out = []; n = len(lines); m = len(extra); k = 0; full = True
        for i, x in enumerate(lines):
            while full and k < m and k * n <= i * m: out += extra[k]; k += 1
            out.append(x)
            if "exec" in x.split(",")[0]: full = x.strip() == "s_mov_b64 exec, -1"
        return out + sum(extra[k:], [])
    dm = [[f"s_mov_b32 m0, s{sM+3}", "s_nop 0", xd[0]], [xd[1]]]
    for j, srdw in enumerate((sWm, sWu)):
        for i in range(4):
            o = f" offset:{1024*i}" if i else ""
            dm.append(([f"s_mov_b32 m0, s{sM+j}", "s_nop 0"] if i == 0 else []) + [f"buffer_load_dwordx4 v{vWC}, s[{srdw}:{srdw+3}], s{sW4k} offen{o} lds"])
    c = Asm(); sav = a.lines; a.lines = c.lines
    a.e(f"v_and_b32 v{t+1}, 7, v{vL}")
    onehot4(a, AQ, t+1, None, t+2)
    a.e(f"v_lshlrev_b32 v{t+2}, 5, v{vL}")
    a.e(f"v_and_b32 v{vM}, 31, v0")
    a.e(f"v_lshlrev_b32 v{vW0}, 2, v{vW0}")
    a.e("s_mov_b64 exec, 0x1ff")
    a.e(f"ds_write_b128 v{t+2}, v[{vT+8}:{vT+11}] offset:{LUT+16}")
    a.e("s_mov_b64 exec, 0x100")
    a.e(f"ds_write_b128 v{t+2}, v[{vT+8}:{vT+11}] offset:{LUT}")
    a.e("s_mov_b64 exec, 0xff")
    a.e(f"ds_write_b128 v{t+2}, v[{AQ}:{AQ+3}] offset:{LUT}")
    a.e("s_mov_b64 exec, -1")
    srd(a, sP, S_WS, off_c=cfg.wsoff + WS_P - 3072, size=PSIZE)
    if NPF:
        a.e(f"s_lshr_b32 s{sT}, s2, 3")
        a.e(f"s_mul_i32 s{sT}, s{sT}, {782*128}")
        a.e(f"s_add_u32 s{sT}, s{sT}, 3072")
        a.e(f"v_lshl_add_u32 v{vPF}, v{vL}, 3, s{sW}")
        if cfg.pfn < 512:
            a.e(f"s_movk_i32 s{sT+1}, {cfg.pfn}")
            a.e(f"v_cmp_gt_u32 vcc, s{sT+1}, v{vPF}")
        a.e(f"v_lshl_add_u32 v{vPF}, v{vPF}, 7, s{sT}")
        if NPF > 1:
            a.e(f"v_add_u32 v{vPF+1}, 0x10000, v{vPF}")
        if cfg.pfn < 512:
            a.e(f"v_mov_b32 v{vT+3}, 0x7ffffff0")
            a.e(f"v_cndmask_b32 v{vPF+NPF-1}, v{vT+3}, v{vPF+NPF-1}, vcc")
    if cfg.pfe:
        a.e(f"s_mul_i32 s{sT}, s2, 51200")
        a.e(f"v_lshl_add_u32 v{vPF+1}, v{vL}, 3, s{sW}")
        a.e(f"s_movk_i32 s{sT+1}, {cfg.pfe}")
        a.e(f"v_cmp_gt_u32 vcc, s{sT+1}, v{vPF+1}")
        a.e(f"v_lshl_add_u32 v{vPF+1}, v{vPF+1}, 7, s{sT}")
        a.e(f"v_mov_b32 v{vT+3}, 0x7ffffff0")
        a.e(f"v_cndmask_b32 v{vPF+1}, v{vT+3}, v{vPF+1}, vcc")
    NPP = NPF
    if cfg.pfm:
        a.e(f"v_lshl_add_u32 v{vPF+1}, v{vL}, 3, s{sW}")
        a.e(f"s_movk_i32 s{sT+1}, {cfg.pfm}")
        a.e(f"v_cmp_gt_u32 vcc, s{sT+1}, v{vPF+1}")
        a.e(f"s_add_u32 s{sT}, s{sT}, 0x10000")
        a.e(f"v_lshl_add_u32 v{vPF+1}, v{vPF+1}, 7, s{sT}")
        a.e(f"v_cndmask_b32 v{vPF+1}, v{vT+3}, v{vPF+1}, vcc")
        dm[cfg.pfmpos] = dm[cfg.pfmpos] + [f"buffer_load_dword v37, v{vPF+1}, s[{sP}:{sP+3}], 0 offen"]
    def pf(pos):
        if cfg.pfpos == pos:
            if cfg.pfe: a.e(f"buffer_load_dword v37, v{vPF+1}, s[{sE}:{sE+3}], 0 offen {cfg.et_pol}")
            for i in range(NPP): a.e(f"buffer_load_dword v37, v{vPF+i}, s[{sP}:{sP+3}], 0 offen")
    if cfg.pfe: NPF += 1
    a.e(f"s_mov_b32 s{sLim}, 32")
    a.e(f"s_mov_b32 s{sDone}, 0")
    wfrag_const(a, vWA, vL, sW, t, sT)
    a.e(f"v_add_u32 v{vW3A}, {STG + 32768}, v{vW3A}")
    a.e(f"v_lshrrev_b32 v{t}, 5, v{vL}")
    a.e(f"v_and_b32 v{t+1}, 15, v{vL}")
    a.e(f"v_xor_b32 v{t+2}, v{t}, v{t+1}")
    a.e(f"v_lshlrev_b32 v{t+2}, 4, v{t+2}")
    a.e(f"v_lshl_add_u32 v{vXA}, v{t+1}, 8, v{t+2}")
    a.e(f"v_bfe_u32 v{t+2}, v{vL}, 4, 1")
    a.e(f"v_lshl_add_u32 v{vXA}, v{t+2}, 13, v{vXA}")
    a.e(f"s_lshr_b32 s{sT}, s{sW}, 2")
    a.e(f"s_lshl_b32 s{sT}, s{sT}, 14")
    a.e(f"s_add_u32 s{sT}, s{sT}, {STG}")
    a.e(f"v_add_u32 v{vXA}, s{sT}, v{vXA}")
    srd(a, sE, S_E, size=ESIZE)
    a.e(f"s_mov_b32 s{sSafe}, 0")
    a.e(f"s_mov_b32 s{sFirst}, 1")
    a.e(f"s_mov_b32 s{sMask}, {'0x4003ffe0' if 'esm' in cfg.x else '0x7fffffe0'}")
    a.e(f"v_mov_b32 v{vCL}, {LUT + 256}")
    a.e(f"v_bfe_u32 v{t+1}, v{vL}, 3, 2")
    a.e(f"v_bfe_u32 v{t+3}, v{vL}, 1, 1")
    a.e(f"v_lshl_add_u32 v{t+1}, v{t+1}, 1, v{t+3}")
    a.e(f"v_lshlrev_b32 v{t+1}, 5, v{t+1}")
    a.e("s_mov_b32 exec_lo, 0x0f0f0f0f\ns_mov_b32 exec_hi, 0xf0f0f0f0")
    a.e(f"v_add_u32 v{vCL}, {LUT}, v{t+1}")
    a.e("s_mov_b64 exec, -1")
    a.e(f"v_lshlrev_b32 v{vH16}, 4, v{t}")
    a.e(f"v_and_b32 v{t+1}, 3, v{vL}")
    a.e(f"v_lshlrev_b32 v{vCQ}, 3, v{t+1}")
    a.e(f"v_lshl_add_u32 v{vCQ}, v{t+2}, 5, v{vCQ}")
    a.e(f"v_add_u32 v{vCQ}, {QL}, v{vCQ}")
    a.e(f"v_lshlrev_b32 v{vCA}, 2, v{vM}")
    a.e(f"v_lshl_add_u32 v{vSD}, v{t}, 9, v{vCA}")
    a.e(f"s_lshl_b32 s{sT}, s{sW}, 10")
    a.e(f"s_add_u32 s{sT}, s{sT}, {SIDE}")
    a.e(f"v_add_u32 v{vSD}, s{sT}, v{vSD}")
    a.e(f"v_lshlrev_b32 v{t+2}, 6, v{t+2}")
    a.e(f"v_sub_u32 v{vCA}, v{vCA}, v{t+2}")
    a.e(f"v_add_u32 v{vCA}, {AGG - 2*QL}, v{vCA}")
    a.e(f"v_bfe_u32 v{t+1}, v{vL}, 2, 2")
    a.e(f"v_lshl_add_u32 v{vRP0}, v{t+1}, 7, v{vCQ}")
    a.e(f"v_lshl_add_u32 v{vRP0}, v{t}, 11, v{vRP0}")
    a.e(f"v_and_b32 v{t+1}, 8, v{vL}")
    a.e(f"v_lshl_add_u32 v{vRP0}, v{t+1}, 3, v{vRP0}")
    a.e(f"s_add_u32 s{sT}, s{sM0}, {256 - QL}")
    a.e(f"v_add_u32 v{vRP0}, s{sT}, v{vRP0}")
    a.e(f"v_xor_b32 v{vRP1}, 64, v{vRP0}")
    a.e(f"s_movk_i32 s{s256}, 256")
    a.e(f"v_mov_b32 v{vCHK}, 0")
    def round_consts(a):
        a.e(f"v_lshrrev_b32 v{t}, 3, v{vM}")
        a.e(f"v_and_b32 v{t+1}, 3, v{vL}")
        a.e(f"v_lshl_add_u32 v{vAE}, v{t}, 2, v{t+1}")
        a.e(f"v_lshlrev_b32 v{vAE}, 3, v{vAE}")
        a.e(f"v_bfe_u32 v{t+1}, v{vL}, 2, 2")
        a.e(f"v_lshlrev_b32 v{vAQ}, 4, v{t+1}")
        a.e(f"v_and_b32 v{vAP}, 24, v{vL}")
        a.e(f"v_and_b32 v{t}, 7, v{vL}")
        a.e(f"v_bfe_u32 v{t+1}, v{vL}, 4, 1")
        a.e(f"v_lshlrev_b32 v{t}, 4, v{t}")
        a.e(f"v_lshlrev_b32 v{t+1}, 6, v{t+1}")
        a.e(f"v_xor_b32 v{vC4+3}, v{t}, v{t+1}")
        for j in range(3):
            a.e(f"v_add_u32 v{vC4+j}, {1024*(3-j)}, v{vC4+3}")
        a.e(f"v_mov_b32 v{vT}, 1")
        a.e(f"v_mov_b32 v{vT+1}, {FLG}")
        a.e(f"v_lshlrev_b32 v{vT+2}, 2, v{vL}")
        a.e(f"s_mov_b32 s{sT}, 0x420000")
        a.e(f"s_brev_b32 s{sT+6}, 1")
        a.e(f"s_add_u32 s{sT+7}, s{sDone}, s{sLim}")
        a.e(f"v_cmp_ne_u32 s[{sX0+2}:{sX0+3}], 0, v{vW0}")
    round_consts(a)
    a.lines = sav
    for x in mix(c.lines, dm): a.e(x)
    stamp(a, 1, 252)
    pf(1)
    stamp(a, 4, 252)
    a.e(f"s_waitcnt vmcnt({11 + (1 if cfg.pfm else 0) + (NPF if cfg.pfpos <= 1 else 0)})")
    stamp(a, 5, 252)
    a.e(f"v_mov_b32_dpp v{vOC}, v{RC} quad_perm:[0,0,0,0] row_mask:0xf bank_mask:0xf")
    a.label("K2_COUNT")
    def groups(fn, lab, order=range(8), extra=(), pre=()):
        c = Asm(); sav = a.lines; a.lines = c.lines
        for i in order: fn(i)
        a.lines = sav
        for x in mix(c.lines, list(extra)): a.e(x)
    KK = lambda i: 16 * (i >> 2) + (i & 3)
    na = lambda i: f"v_lshlrev_b32_sdwa v{NA+i}, 2, v{RC+i} dst_sel:BYTE_0 dst_unused:UNUSED_PAD src0_sel:DWORD src1_sel:BYTE_0"
    a.e(na(1))
    a.e(f"v_min_u32 v{vREM}, s{sT+7}, v{vOC}")
    a.e(f"v_sub_u32 v{vREM}, v{vREM}, v{vW0}")
    a.e(f"v_cmp_lt_u32 s[{sX0+6}:{sX0+7}], s{sT+7}, v{vOC}")
    a.e(f"v_cmp_lt_i32 s[{sX0}:{sX0+1}], 0, v{vREM}")
    a.e(na(0))
    def f_cnt(i):
        a.e(f"v_cmpx_lt_i32 vcc, {KK(i)}, v{vREM}")
        if i < 7: a.e(na(i + 1))
        a.e(f"ds_add_rtn_u32 v{RK+i}, v{NA+i}, v{vT} offset:{CNT}")
    groups(f_cnt, "K2_G1", order=range(1, 8))
    a.e(f"s_and_b64 s[{sX0}:{sX0+1}], s[{sX0}:{sX0+1}], s[{sX0+2}:{sX0+3}]")
    a.e(f"s_mov_b64 exec, s[{sX0}:{sX0+1}]")
    a.e(f"ds_add_rtn_u32 v{RK}, v{NA}, v{vT} offset:{CNT}")
    a.e(f"s_mov_b64 exec, s[{sX0+6}:{sX0+7}]")
    a.e(f"ds_write_b32 v{vT+1}, v{vT}")
    a.e("s_mov_b64 exec, -1")
    def f_ent(i):
        e0 = EN + 2 * i
        a.e(f"v_lshrrev_b32 v{e0}, 20, v{RC+i}")
        a.e(f"v_add_lshl_u32 v{e0}, v{e0}, v{vEB}, 5")
    groups(f_ent, "K2_G2")
    pf(2)
    a.e("s_waitcnt lgkmcnt(0)")
    a.e("s_barrier")
    stamp(a, 6, 252)
    a.e(f"ds_read_b32 v{vT+6}, v{vT+2} offset:{CNT}")
    a.e(f"ds_read_b32 v{vT+5}, v{vT+1}")
    def f_ent2(i):
        e1 = EN + 1 + 2 * i
        a.e(f"v_bfe_u32 v{e1}, v{RC+i}, 6, 14")
        a.e(f"v_mad_u32_u24 v{e1}, v{NA+i}, s{sT}, v{e1}")
    groups(f_ent2, "K2_G5")
    a.e("s_waitcnt lgkmcnt(0)")
    a.e(f"v_add_u32 v{vT+3}, 1, v{vT+6}")
    a.e(f"v_lshrrev_b32 v{vT+3}, 1, v{vT+3}")
    a.e(f"v_mov_b32 v{vT+4}, v{vT+3}")
    a.e(f"v_readfirstlane_b32 s{sMore}, v{vT+5}")
    fl = []
    for i in range(8):
        fl.append(f"v_add_u32 v{RC+i}, -1, v{RK+i}")
        fl.append(f"v_and_or_b32 v{EN+2*i}, v{RC+i}, s{sT+6}, v{EN+2*i}")
    v = vT + 4
    dpp = [f"v_add_u32_dpp v{v}, v{v}, v{v} row_shr:{sh} row_mask:0xf bank_mask:0xf bound_ctrl:0" for sh in (1, 2, 4, 8)]
    dpp += [f"v_add_u32_dpp v{v}, v{v}, v{v} row_bcast:15 row_mask:0xa bank_mask:0xf", f"v_add_u32_dpp v{v}, v{v}, v{v} row_bcast:31 row_mask:0xc bank_mask:0xf"]
    for j in range(6):
        a.e(fl[2*j]); a.e(fl[2*j+1]); a.e(dpp[j])
    a.e(fl[12])
    a.e(f"v_readlane_b32 s{sT+5}, v{vT+4}, 63")
    a.e(f"v_sub_u32 v{vT+4}, v{vT+4}, v{vT+3}")
    a.e(f"v_lshlrev_b32 v{vT+4}, 4, v{vT+4}")
    def f_perm(i):
        a.e(f"ds_bpermute_b32 v{NA+i}, v{NA+i}, v{vT+4}")
        if i >= 8:
            a.e(f"v_add_u32 v{RC+i}, -1, v{RK+i}")
            a.e(f"v_and_or_b32 v{EN+2*i}, v{RC+i}, s{sT+6}, v{EN+2*i}")
    groups(f_perm, "K2_G3")
    for x in fl[13:]: a.e(x)
    pf(3)
    a.e(f"s_cmp_gt_u32 s{sT+5}, 1025")
    a.e("s_cbranch_scc1 K2_TOOBIG")
    a.e(f"s_add_u32 s{sT}, s{sT+5}, 7")
    a.e(f"s_lshr_b32 s{sT}, s{sT}, 3")
    if cfg.ratio:
        a.e(f"s_mul_i32 s{sT+1}, s{sT}, {cfg.ratio}")
        a.e(f"s_add_u32 s{sT+1}, s{sT+1}, 63")
        a.e(f"s_lshr_b32 s{sT+1}, s{sT+1}, 6")
    else:
        a.e(f"s_add_u32 s{sT+1}, s{sT}, {cfg.bias}")
        a.e(f"s_lshr_b32 s{sT+1}, s{sT+1}, 4")
        a.e(f"s_lshl_b32 s{sT+1}, s{sT+1}, 3")
    a.e(f"s_min_u32 s{sT+1}, s{sT+1}, s{sT}")
    a.e(f"s_sub_u32 s{sT+2}, s{sT}, s{sT+1}")
    a.e(f"s_and_b32 s{sT+3}, s{sW}, 3")
    a.e(f"s_mul_i32 s{sT+3}, s{sT+3}, s{sT}")
    a.e(f"s_cmp_lt_u32 s{sW}, 4")
    a.e(f"s_cselect_b32 s{sL}, s{sT+1}, s{sT+2}")
    a.e(f"s_cselect_b32 s{sT+4}, 0, s{sT+1}")
    a.e(f"s_add_u32 s{sT+3}, s{sT+3}, s{sT+4}")
    a.e(f"s_lshl_b32 s{sT+3}, s{sT+3}, 5")
    a.e(f"s_add_u32 s{sT+3}, s{sT+3}, {LIST}")
    a.e(f"s_lshl_b32 s{sT+4}, s{sL}, 4")
    a.e(f"s_add_u32 s{sNT}, s{sL}, 7")
    a.e(f"s_lshr_b32 s{sNT}, s{sNT}, 3")
    a.e(f"s_cmp_eq_u32 s{sW}, 7")
    a.e("s_cbranch_scc0 K2_NODUM")
    a.e(f"v_mov_b32 v{vT+8}, 0x7ffffff0\nv_mov_b32 v{vT+9}, 0xffff\nv_mov_b32 v{vT+10}, 0x7ffffff0\nv_mov_b32 v{vT+11}, 0xffff")
    a.e(f"v_lshl_add_u32 v{vT+7}, v{vT+6}, 3, v{vT+4}")
    a.e(f"v_and_b32 v{vT+6}, 1, v{vT+6}")
    a.e(f"v_cmp_eq_u32 vcc, 1, v{vT+6}")
    a.e("s_mov_b64 exec, vcc")
    a.e(f"ds_write_b64 v{vT+7}, v[{vT+8}:{vT+9}] offset:{LIST}")
    a.e("s_mov_b32 exec_lo, -1\ns_mov_b32 exec_hi, 0x7f")
    a.e(f"v_add_lshl_u32 v{vT+7}, v{vL}, s{sT+5}, 4")
    a.e(f"ds_write_b128 v{vT+7}, v[{vT+8}:{vT+11}] offset:{LIST}")
    a.e("s_mov_b64 exec, -1")
    a.label("K2_NODUM")
    a.e("s_waitcnt lgkmcnt(0)")
    a.e(f"v_lshl_add_u32 v{NA}, v{RK}, 3, v{NA}")
    def f_place(i):
        a.e(f"v_cmpx_lt_i32 vcc, {KK(i)}, v{vREM}")
        a.e(f"v_lshl_add_u32 v{NA+i}, v{RK+i}, 3, v{NA+i}")
        a.e(f"ds_write_b64 v{NA+i}, v[{EN+2*i}:{EN+1+2*i}] offset:{LIST}")
    groups(f_place, "K2_G4", order=range(1, 8))
    a.e(f"s_mov_b64 exec, s[{sX0}:{sX0+1}]")
    a.e(f"ds_write_b64 v{NA}, v[{EN}:{EN+1}] offset:{LIST}")
    a.e("s_mov_b64 exec, -1")
    a.e(f"v_add_u32 v{vAE}, s{sT+3}, v{vAE}")
    a.e(f"v_add3_u32 v{vAP}, v{vAP}, s{sT+3}, 4")
    a.e(f"v_add3_u32 v{vAQ}, v{vAQ}, s{sT+3}, 6")
    a.e("s_mov_b32 exec_lo, 0xf0f0f0f0\ns_mov_b32 exec_hi, 0xf0f0f0f0")
    a.e(f"v_add_u32 v{vAE}, s{sT+4}, v{vAE}")
    a.e("s_mov_b32 exec_lo, 0\ns_mov_b32 exec_hi, -1")
    a.e(f"v_add_u32 v{vAP}, s{sT+4}, v{vAP}")
    a.e(f"v_add_u32 v{vAQ}, s{sT+4}, v{vAQ}")
    a.e("s_mov_b64 exec, -1")
    a.e(f"s_sub_u32 s{sT+1}, s{sT+1}, 1")
    a.e(f"s_sub_u32 s{sT+2}, s{sT+2}, 1")
    a.e(f"s_min_u32 s{sT+1}, s{sT+1}, s{sT+2}")
    a.e(f"v_cmp_lt_u32 s[{sSusp}:{sSusp+1}], s{sT+1}, v{vT+3}")
    a.e(f"s_cmp_eq_u32 s{sNT}, 0")
    a.e(f"s_cselect_b32 s{sP+2}, 0, {PSIZE}")
    a.e(f"s_cselect_b32 s{sE+2}, 0, {ESIZE}")
    a.e(f"s_cmp_eq_u32 s{sFirst}, 0")
    a.e(f"s_waitcnt vmcnt({NPF}) lgkmcnt(0)")
    a.e("s_barrier")
    a.e("s_cbranch_scc1 K2_PRO2")
    stamp(a, 7, 252)
    adv = [f"v_add_u32 v{r}, s{s256}, v{r}" for r in (vAE, vAP, vAQ)]
    def prologue(a, first):
        for s in list_reads_se() + list_reads_n(): a.e(s)
        if first:
            for st in range(8):
                if st == 0: a.e(f"ds_read_b128 v[{XF}:{XF+3}], v{vXA}")
                else:
                    r = vT + (st & 1)
                    a.e(f"v_xor_b32 v{r}, {32*st}, v{vXA}")
                    a.e(f"ds_read_b128 v[{XF+4*st}:{XF+4*st+3}], v{r}")
        a.e(f"s_waitcnt lgkmcnt({8 if first else 0})")
        for s in addr_se() + addr_q(0): a.e(s)
        for s in list_reads_se(1): a.e(s)
        for s in flags_from_vcc(sF0): a.e(s)
        d0 = dma_ops(0, "alt"); d1 = dma_ops(1)
        fr = Asm()
        if first:
            a.e(f"v_add_u32 v{vT+3}, {STG + 4096}, v{vWA}")
            wfrag_read(fr, W2F, vT+3, 0, 8192)
            wfrag_read(fr, WU1F, vWA, WU1L)
            for c in range(4):
                fr.e(f"ds_read_b128 v[{W3+4*c}:{W3+4*c+3}], v{vW3A} offset:{1024*c}")
        n4 = len(fr.lines) // 4
        for s in d0[0] + fr.lines[:n4] + d0[1] + fr.lines[n4:2*n4]: a.e(s)
        a.e(e_load(0))
        for s in fr.lines[2*n4:3*n4]: a.e(s)
        a.e(f"v_cmp_ne_u32 vcc, v{vLA}, v{vCL}")
        a.e(f"v_mov_b32_dpp v{vFA}, v{vQA} row_newbcast:0 row_mask:0xf bank_mask:0xf")
        a.e(f"v_mov_b32 v{vLA0}, v{vLA}")
        for s in d0[2] + fr.lines[3*n4:]: a.e(s)
        a.e(f"s_cmp_eq_u32 s{sNT}, 0")
        a.e(f"s_cselect_b32 s{sDm}, -1, vcc_lo")
        a.e(f"v_lshl_add_u32 v{vFA}, v{vFA}, 1, v{vCA}")
        for s in d0[3]: a.e(s)
        if first:
            a.e(f"s_lshr_b32 s{sT+1}, s{sW}, 2")
            a.e(f"s_lshl_b32 s{sT+1}, s{sT+1}, 5")
            a.e(f"v_add_u32 v{vT+1}, s{sT+1}, v{vM}")
            a.e(f"v_mul_u32_u24 v{vT+2}, 264, v{vT+1}")
            a.e(f"v_lshl_add_u32 v{vT+2}, v{vH16}, 1, v{vT+2}")
            a.e(f"s_and_b32 s{sT+1}, s{sW}, 3")
            a.e(f"s_lshl_b32 s{sT+1}, s{sT+1}, 6")
            a.e(f"v_add_u32 v{vT+2}, s{sT+1}, v{vT+2}")
            a.e(f"v_cmp_gt_u32 s[{sX0}:{sX0+1}], 49, v{vT+1}")
            a.e(f"v_lshlrev_b32 v{vT}, 4, v0")
            a.e(f"v_mov_b32 v{vT+8}, 0\nv_mov_b32 v{vT+9}, 0\nv_mov_b32 v{vT+10}, 0\nv_mov_b32 v{vT+11}, 0")
            a.e(f"s_movk_i32 s{sT+1}, {49*528//16 - 1536}")
            a.e(f"v_cmp_gt_u32 s[{sX0+2}:{sX0+3}], s{sT+1}, v0")
            a.e(f"s_mov_b32 s{sT}, {LOG2E_NEG}")
            a.e(f"s_mov_b32 s{sT+1}, {LOG2E_NEG}")
            stamp(a, 44, 252)
            a.e("s_waitcnt lgkmcnt(0)")
            g = Asm(); gemm8(g, QACC, W2F, XF)
            for x in g.lines: a.e(x)
            g = Asm(); gemm8(g, ACX, WU1F, XF)
            q = [f"v_mul_f32 v{QACC+i}, s{sT}, v{QACC+i}" for i in range(16)] + [f"v_cvt_pk_bf16_f32 v{QACC+i}, v{QACC+2*i}, v{QACC+1+2*i}" for i in range(8)]
            a.e(g.lines[0])
            a.e("s_nop 9")
            for j in range(3):
                a.e(g.lines[1+j])
                for x in q[j*8:j*8+8]: a.e(x)
            a.e(f"s_mov_b64 exec, s[{sX0}:{sX0+1}]")
            for gg in range(4):
                a.e(f"ds_write_b64 v{vT+2}, v[{QACC+2*gg}:{QACC+1+2*gg}] offset:{QL + 8*gg}")
            a.e("s_mov_b64 exec, -1")
            a.e("s_barrier")
            for j in range(3):
                a.e(f"ds_write_b128 v{vT}, v[{vT+8}:{vT+11}] offset:{AGG + j*8192}")
            a.e(g.lines[4])
            a.e(f"s_mov_b64 exec, s[{sX0+2}:{sX0+3}]")
            a.e(f"ds_write_b128 v{vT}, v[{vT+8}:{vT+11}] offset:{AGG + 3*8192}")
            a.e("s_mov_b64 exec, -1")
            for s in d1[0]: a.e(s)
            a.e(g.lines[5])
            a.e("s_waitcnt lgkmcnt(0)")
            a.e("s_barrier")
            stamp(a, 45, 252)
            for j in range(1, 4):
                for s in d1[j]: a.e(s)
                if j < 3: a.e(g.lines[5+j])
        else:
            for s in sum(d1, []): a.e(s)
        a.e(f"s_cmp_lt_u32 s{sNT}, 2")
        a.e(f"s_cselect_b32 s{sP+2}, 0, s{sP+2}")
        a.e(f"s_cselect_b32 s{sE+2}, 0, s{sE+2}")
        if not first: a.e("s_waitcnt lgkmcnt(0)")
        for s in addr_se(): a.e(s)
        for s in list_reads_se(2) + list_reads_n(1): a.e(s)
        for s in flags_from_vcc(sF1): a.e(s)
    prologue(a, True)
    rare.label("K2_PRO2")
    rare.e("s_waitcnt vmcnt(0)")
    prologue(rare, False)
    rare.e("s_branch K2_NOX")
    stamp(a, 42, 252)
    for i in range(8):
        a.e(f"v_pk_mul_f32 {p2(ACX+2*i)}, {p2(ACX+2*i)}, s[{sT}:{sT+1}]")
    a.label("K2_NOX")
    stamp(a, 43, 252)
    a.e(f"s_cmp_eq_u32 s{sNT}, 0")
    a.e("s_cbranch_scc1 K2_NOTILES")
    a.e(f"ds_read_b128 v[{AQ}:{AQ+3}], v{vLA0}")
    for s in qfrag_reads(QY, 0, 0) + qfrag_reads(QX, 1, 0): a.e(s)
    if cfg.t1pos == 1:
        a.e(e_load(1))
        dma_half(a, 0)
    for i in range(4): a.e(f"v_mov_b32 v{AP+i}, 0")
    for i in range(4):
        shf = 16 * (i >> 1) + 4 * (i & 1)
        a.e(f"s_mov_b32 exec_lo, {hex(0xf << shf)}\ns_mov_b32 exec_hi, {hex(0xf << (shf + 8))}")
        a.e(f"v_mov_b32 v{AP+i}, 0x3f80")
    a.e("s_mov_b64 exec, -1")
    a.e(f"v_and_b32 v{IDX}, 3, v{vL}")
    a.e(f"v_mul_u32_u24 v{IDX}, 0x5555, v{IDX}")
    a.e(f"s_add_u32 s{sMA}, s{sM0}, {4096 - 128 + 256}")
    a.e(f"s_add_u32 s{sMB}, s{sM0}, 256")
    a.e(f"s_and_b32 s{sT}, s{sL}, 6")
    a.e(f"s_and_b32 s{sT+1}, s{sL}, 1")
    a.e(f"s_lshl1_add_u32 s{sT}, s{sT}, s{sT+1}")
    a.e(f"s_lshl_b32 s{sT}, s{sT}, 1")
    a.e(f"s_cselect_b32 s{sT+1}, 1, 0")
    a.e(f"s_lshl_b32 s{sEX+1}, s{sT+1}, s{sT}")
    a.e(f"s_lshl_b32 s{sEX}, s{sEX+1}, 1")
    a.e(f"s_cmp_eq_u32 s{sNT}, 1")
    a.e(f"s_cselect_b64 s[{sT}:{sT+1}], s[{sEX}:{sEX+1}], 0")
    a.e(f"s_or_b64 s[{sF0}:{sF0+1}], s[{sF0}:{sF0+1}], s[{sT}:{sT+1}]")
    for c in range(4):
        a.e(f"v_mov_b32 v{NN+2*c}, 0\nv_mov_b32 v{NN+2*c+1}, 0\nv_mov_b32 v{DD+2*c}, 1.0\nv_mov_b32 v{DD+2*c+1}, 1.0")
    a.e(f"v_mov_b32 v{vCUR}, v{vSD}\nv_mov_b32 v{vCUR+1}, v{vSD}")
    for c in range(4): a.e(f"v_mov_b32 v{ACC+c}, 0")
    a.e(f"s_sub_u32 s{sT}, s{sW4k}, s{sM0}")
    a.e(f"s_add_u32 s{sT}, s{sT}, {WU2 - 256}")
    a.e(f"v_add_u32 v{vT}, s{sT}, v{vRP0}")
    a.e(f"v_add_u32 v{vT+1}, s{sT}, v{vRP1}")
    stamp(a, 46, 252)
    a.e("s_waitcnt vmcnt(4)" if cfg.t1pos == 2 else "s_waitcnt vmcnt(9)")
    stamp(a, 47, 252)
    for s in pfrag_reads(PY, 0, vT): a.e(s)
    mf = mfmas(0, PY, QY, 0)
    a.e("s_waitcnt lgkmcnt(8)")
    for s in mf[:4]: a.e(s)
    a.e("s_waitcnt lgkmcnt(0)")
    for s in mf[4:]: a.e(s)
    if cfg.t1pos == 2:
        a.e(e_load(1))
        dma_half(a, 0)
    stamp(a, 8, 252)
    if cfg.dbg:
        a.e("s_memtime s[90:91]\ns_waitcnt lgkmcnt(0)\nv_writelane_b32 v252, s90, 14")
    a.e(f"s_sub_u32 s{sCnt}, s{sNT}, 1")
    a.e("s_waitcnt vmcnt(5)")
    stamp(a, 48, 252)
    for s in pfrag_reads(PX, 1): a.e(s)
    def lstamp(x):
        if not cfg.lst: return
        a.e("s_memrealtime s[90:91]")
        a.e(f"s_lshl_b32 s92, s{sCnt}, 1")
        a.e(f"s_add_u32 s92, s92, {x+2}")
        a.e("s_mov_b32 m0, s92")
        a.e("s_waitcnt lgkmcnt(0)")
        a.e("v_writelane_b32 v252, s90, m0")
    def iteration(par):
        exA = {
            0: addr_q(1 - par),
            1: qfrag_reads(QY, 0, 1 - par),
            2: [f"s_mov_b32 m0, s{sMA}", "s_waitcnt lgkmcnt(4)"] + dma_ld(1)[:2],
            3: dma_ld(1)[2:],
            4: [f"ds_read_b128 v[{AQ}:{AQ+3}], v{vLA}",
                f"s_cmp_lt_u32 s{sCnt}, 2", f"s_cbranch_scc1 WU2_{par}", f"WU2R_{par}:"],
            7: ["s_waitcnt vmcnt(4) lgkmcnt(0)"] + pfrag_reads(PY, 0),
        }
        half_step(a, ool, 0, par, exA, f"A{par}")
        ool.label(f"WU2_{par}")
        ool.e(f"s_mov_b32 s{sP+2}, 0")
        ool.e(f"s_mov_b32 s{sE+2}, 0")
        sFn = (sF1, sF0)[par]
        ool.e(f"s_or_b64 s[{sFn}:{sFn+1}], s[{sFn}:{sFn+1}], s[{sEX}:{sEX+1}]")
        ool.e(f"s_cmp_lg_u32 s{sCnt}, 0")
        ool.e(f"s_cbranch_scc1 WU2R_{par}")
        w_dma(ool, sWu, vWC, sW4k, 32768, WU2, sT)
        ool.e(f"s_branch WU2R_{par}")
        mf = mfmas(2, PX, QX, par)
        ool.label(f"EXA{par}_1")
        ool.e("s_waitcnt lgkmcnt(0)")
        ool.e(mf[2])
        ool.label(f"EXA{par}_2")
        ool.e(mf[3])
        ool.label(f"EXA{par}_3")
        ool.e(mf[4])
        w_dma(ool, sWu, vWC, sW4k, 32768, WU2, sT)
        ool.label(f"EXA{par}_4")
        ool.e(mf[5])
        ool.e("s_nop 7")
        ool.label(f"EXA{par}_5")
        ool.e(f"s_branch R_A{par}_7")
        exB = {
            0: qfrag_reads(QX, 1, 1 - par),
            1: addr_se(),
            2: [f"s_mov_b32 m0, s{sMB}", "s_waitcnt lgkmcnt(4)"] + dma_ld(0)[:2],
            3: dma_ld(0)[2:] + [e_load(par)],
            4: list_reads_se(3 + par) + list_reads_n(2 + par),
            5: adv if par else [],
            7: ["s_waitcnt vmcnt(5) lgkmcnt(0)"] + pfrag_reads(PX, 1),
        }
        lstamp(17)
        half_step(a, ool, 1, par, exB, f"B{par}")
        lstamp(16)
        for s in flags_from_vcc((sF0, sF1)[par]): a.e(s)
        a.e(f"s_sub_u32 s{sCnt}, s{sCnt}, 1")
    a.label("K2_LOOP")
    iteration(0)
    a.e("s_cbranch_scc1 K2_LEND")
    iteration(1)
    a.e("s_cbranch_scc0 K2_LOOP")
    a.label("K2_LEND")
    stamp(a, 9, 252)
    if cfg.dbg:
        a.e("s_memtime s[90:91]\ns_waitcnt lgkmcnt(0)\nv_writelane_b32 v252, s90, 15")
    flush_code(a, 0, 0)
    a.e(f"ds_write2_b32 v{vCUR}, v{ACC}, v{ACC+1} offset1:32")
    flush_code(a, 2, 1, wait=False)
    a.e(f"ds_write2_b32 v{vCUR+1}, v{ACC+2}, v{ACC+3} offset0:64 offset1:96")
    for c in range(4):
        a.e(f"ds_read_b32 v{vT+16+c}, v{vSD} offset:{128*c}")
    a.label("K2_AFTER")
    a.e(f"s_mov_b32 s{sFirst}, 0")
    a.e(f"s_bitcmp0_b32 s{sDm}, 0")
    a.e(f"s_cselect_b32 s{sX0}, -1, 0")
    a.e(f"s_bitcmp0_b32 s{sDm}, 4")
    a.e(f"s_cselect_b32 s{sX0+1}, -1, 0")
    a.e("s_waitcnt vmcnt(0) lgkmcnt(0)")
    a.e("s_barrier")
    stamp(a, 49, 252)
    a.e(f"s_mov_b64 exec, s[{sX0}:{sX0+1}]")
    a.e(f"s_cmp_lg_u64 s[{sSusp}:{sSusp+1}], 0")
    a.e("s_cbranch_scc1 K2_ATOM")
    for c in range(4):
        a.e(f"ds_read_b32 v{vT+20+c}, v{vFA} offset:{128*c}")
    for c in range(4):
        a.e(f"s_waitcnt lgkmcnt({3})")
        a.e(f"v_add_f32 v{vT+20+c}, v{vT+20+c}, v{vT+16+c}")
        a.e(f"ds_write_b32 v{vFA}, v{vT+20+c} offset:{128*c}")
    a.label("K2_MERGED")
    a.e("s_mov_b64 exec, -1")
    a.e(f"v_add_u32 v{vT+4}, {WU2}, v{vWA}")
    wfrag_read(a, 128, vT+4)
    a.e(f"s_lshr_b32 s{sT+1}, s{sW}, 2")
    a.e(f"s_lshl_b32 s{sT+1}, s{sT+1}, 5")
    a.e(f"v_add_u32 v{vT+8}, s{sT+1}, v{vM}")
    a.e(f"v_mul_u32_u24 v{vT+9}, 528, v{vT+8}")
    a.e(f"v_lshl_add_u32 v{vT+9}, v{vH16}, 1, v{vT+9}")
    a.e(f"v_cmp_gt_u32 s[{sX0}:{sX0+1}], 49, v{vT+8}")
    a.e("s_waitcnt lgkmcnt(0)")
    a.e("s_barrier")
    stamp(a, 10, 252)
    a.e(f"s_cmp_lg_u32 s{sMore}, 0")
    a.e("s_cbranch_scc1 K2_MORE")
    a.e(f"s_mov_b64 exec, s[{sX0}:{sX0+1}]")
    for s in range(8):
        for u in range(2):
            r = 64 + 8 * s + 4 * u
            a.e(f"ds_read_b128 v[{r}:{r+3}], v{vT+9} offset:{AGG + 64*s + 16*u}")
    a.e("s_mov_b64 exec, -1")
    a.e(f"v_mul_u32_u24 v{vT+10}, 272, v{vT+8}")
    a.e(f"v_lshl_add_u32 v{vT+10}, v{vH16}, 1, v{vT+10}")
    a.e(f"s_and_b32 s{sT+1}, s{sW}, 3")
    a.e(f"s_lshl_b32 s{sT+1}, s{sT+1}, 6")
    a.e(f"s_add_u32 s{sT+1}, s{sT+1}, {STG}")
    a.e(f"v_add_u32 v{vT+10}, s{sT+1}, v{vT+10}")
    a.e(f"v_lshrrev_b32 v{vT+12}, 4, v0")
    a.e(f"v_lshlrev_b32 v{vT+13}, 4, v0")
    a.e(f"v_lshl_add_u32 v{vT+12}, v{vT+12}, 4, v{vT+13}")
    a.e(f"v_add_u32 v{vT+12}, {STG}, v{vT+12}")
    for s in range(8):
        a.e(f"s_waitcnt lgkmcnt({14-2*s})")
        for i in range(4):
            a.e(f"v_cvt_pk_bf16_f32 v{64+8*s+i}, v{64+8*s+2*i}, v{65+8*s+2*i}")
        if s:
            c = f"v[{ACX}:{ACX+15}]" if s == 1 else "v[160:175]"
            a.e(f"v_mfma_f32_32x32x16_bf16 v[160:175], v[{128+4*(s-1)}:{131+4*(s-1)}], v[{64+8*(s-1)}:{67+8*(s-1)}], {c}")
    a.e(f"s_mov_b32 s{sT+1}, {LOG2E_NEG}")
    a.e(f"v_mfma_f32_32x32x16_bf16 v[160:175], v[156:159], v[120:123], v[160:175]")
    a.e(f"s_mov_b32 s{sT}, {LOG2E_NEG}")
    stamp(a, 50, 252)
    a.e(f"s_mov_b32 s{sT+2}, 0x7b800000")
    a.e(f"v_cmp_le_f32 s[{sX0+2}:{sX0+3}], s{sT+2}, v{vCHK}")
    a.e(f"v_mov_b32 v{vT+11}, 0x207")
    a.e("s_nop 8")
    a.e(f"v_cmp_class_f32 vcc, v160, v{vT+11}")
    for hf in range(2):
        R = range(8 * hf, 8 * hf + 8)
        for i in R: a.e(f"v_exp_f32 v{64+i}, v{160+i}")
        if hf == 0:
            a.e(f"s_and_b64 vcc, vcc, s[{sX0}:{sX0+1}]")
            a.e(f"s_or_b64 s[{sX0+2}:{sX0+3}], vcc, s[{sX0+2}:{sX0+3}]")
        if hf: a.e("s_nop 0")
        for i in R[::2]: a.e(f"v_pk_fma_f32 {p2(64+i)}, {p2(64+i)}, s[{sT}:{sT+1}], s[{sT}:{sT+1}]")
        for i in R: a.e(f"v_rcp_f32 v{64+i}, v{64+i}")
        for i in R[::2]: a.e(f"v_pk_mul_f32 {p2(64+i)}, {p2(160+i)}, {p2(64+i)}")
        for i in range(4 * hf, 4 * hf + 4): a.e(f"v_cvt_pk_bf16_f32 v{80+i}, v{64+2*i}, v{65+2*i}")
        o = " offset:16" if hf else ""
        a.e(f"ds_write_b128 v{vT+10}, v[{80+4*hf}:{83+4*hf}]{o}")
    a.e(f"v_mov_b32 v{vT}, 1")
    a.e(f"v_mov_b32 v{vT+1}, {FLG+4}")
    a.e(f"s_mov_b64 exec, s[{sX0+2}:{sX0+3}]")
    a.e(f"ds_write_b32 v{vT+1}, v{vT}")
    a.e("s_mov_b64 exec, -1")
    a.e(f"s_movk_i32 s{sT+1}, 8192")
    a.e("s_waitcnt lgkmcnt(0)")
    stamp(a, 51, 252)
    a.e("s_barrier")
    stamp(a, 52, 252)
    a.e(f"ds_read_b128 v[88:91], v{vT+12}")
    a.e(f"ds_read_b128 v[92:95], v{vT+12} offset:{32*272}")
    a.e(f"ds_read_b32 v{vT}, v{vT+1}")
    a.e("s_waitcnt lgkmcnt(2)")
    a.e(f"buffer_store_dwordx4 v[88:91], v{vT+13}, s[{sO}:{sO+3}], 0 offen {cfg.o_pol}")
    a.e("s_waitcnt lgkmcnt(1)")
    a.e(f"buffer_store_dwordx4 v[92:95], v{vT+13}, s[{sO}:{sO+3}], s{sT+1} offen {cfg.o_pol}")
    stamp(a, 11, 252)
    if cfg.dbg:
        a.e("s_waitcnt vmcnt(0)")
        a.e(f"v_writelane_b32 v252, s{sNT}, 13")
    stamp(a, 12, 252)
    stamp_out(a, 252, 253, 1)
    if cfg.x: a.e("s_branch K2_END")
    a.e("s_waitcnt lgkmcnt(0)")
    a.e(f"v_readfirstlane_b32 s{sT}, v{vT}")
    a.e(f"s_cmp_lg_u32 s{sSafe}, 0")
    a.e("s_cbranch_scc1 K2_END")
    a.e(f"s_cmp_lg_u32 s{sT}, 0")
    a.e("s_cbranch_scc1 K2_SAFE")
    a.label("K2_END")
    a.e("s_endpgm")
    a.lines += ool.lines
    a.label("K2_CODE_END")
    a.lines += rare.lines
    a.label("K2_NOTILES")
    a.e("s_waitcnt vmcnt(0)")
    w_dma(a, sWu, vWC, sW4k, 32768, WU2, sT)
    a.e("s_branch K2_AFTER")
    a.label("K2_ATOM")
    for c in range(4):
        a.e(f"ds_add_f32 v{vFA}, v{vT+16+c} offset:{128*c}")
    a.e("s_branch K2_MERGED")
    a.label("K2_SAFE")
    a.e("s_waitcnt vmcnt(0)")
    a.e("s_barrier")
    a.e(f"s_mov_b32 s{sSafe}, -1")
    a.e(f"s_mov_b32 s{sDone}, 0")
    reset_round(a, True)
    a.e("s_branch K2_ROUND")
    a.label("K2_MORE")
    a.e(f"s_add_u32 s{sDone}, s{sDone}, s{sLim}")
    a.e("s_branch K2_RESET")
    a.label("K2_TOOBIG")
    a.e("s_barrier")
    a.e(f"s_mov_b32 s{sLim}, 16")
    a.label("K2_RESET")
    reset_round(a, False)
    a.label("K2_ROUND")
    srd(a, sR, S_WS, off_c=cfg.wsoff + WS_S01, size=WS_OFFT + 262144 - WS_S01)
    a.e(f"v_and_b32 v{t}, 0x1fc, v0")
    a.e(f"s_lshl_b32 s{sT}, s{sBin}, 10")
    a.e(f"s_add_u32 s{sT}, s{sT}, {WS_OFFT - WS_S01}")
    a.e(f"v_mov_b32 v{vROFF}, 0")
    a.e(f"v_cmp_lt_u32 vcc, 32, v{vOC}")
    a.e("s_mov_b64 exec, vcc")
    a.e(f"buffer_load_dword v{vROFF}, v{t}, s[{sR}:{sR+3}], s{sT} offen")
    a.e("s_mov_b64 exec, -1")
    a.e(f"v_and_b32 v{vW0}, 3, v0")
    a.e(f"v_lshlrev_b32 v{vW0}, 2, v{vW0}")
    a.e(f"v_add_u32 v{vW0}, s{sDone}, v{vW0}")
    a.e(f"s_lshl_b32 s{sT}, s{sBin}, 7")
    a.e(f"v_lshl_add_u32 v{t}, v{t}, 13, s{sT}")
    a.e(f"s_mov_b32 s{sT}, {WS_REC - WS_S01 - 4}")
    a.e("s_waitcnt vmcnt(0)")
    a.e(f"v_add_u32 v{t+2}, v{vEB}, v{vROFF}")
    a.e(f"v_lshl_add_u32 v{t+2}, v{t+2}, 2, s{sT}")
    for g in range(2):
        a.e(f"v_add_u32 v{t+3}, {16*g}, v{vW0}")
        a.e(f"v_cmp_gt_u32 vcc, 32, v{t+3}")
        a.e("s_nop 1")
        a.e(f"v_cndmask_b32 v{t+4+g}, v{t+2}, v{t}, vcc")
        a.e(f"v_lshl_add_u32 v{t+4+g}, v{t+3}, 2, v{t+4+g}")
        a.e(f"buffer_load_dwordx4 v[{RC+4*g}:{RC+4*g+3}], v{t+4+g}, s[{sR}:{sR+3}], 0 offen")
    round_consts(a)
    a.e("s_waitcnt vmcnt(0) lgkmcnt(0)")
    a.e("s_barrier")
    a.e("s_branch K2_COUNT")

HEADER = open("cdna_kernels/" + NAME + ".s.ref").read().split("; Override launch")[0]
def generate():
    a = Asm()
    gen_k1(a)
    gen_k2(a)
    if cfg.rep:
        k, wg, idx = [int(v) for v in cfg.rep.split(",")]
        kernel_head(a, "rep_kernel")
        a.e("s_load_dwordx2 s[20:21], s[0:1], 64")
        a.e("s_cmp_lg_u32 s2, 0")
        a.e("s_cbranch_scc1 REP_END")
        a.e("s_waitcnt lgkmcnt(0)")
        srd(a, 8, S_WS, off_c=WS_DBG, size=0x200000)
        a.e(f"v_mov_b32 v1, 0")
        a.e(f"v_mov_b32 v2, {k*0x100000 + wg*2048 + idx*4}")
        a.e("buffer_load_dword v3, v1, s[8:11], 0 offen")
        a.e("buffer_load_dword v4, v2, s[8:11], 0 offen")
        a.e("s_waitcnt vmcnt(0)")
        a.e("v_sub_u32 v3, v4, v3")
        a.e("v_min_u32 v3, 8000, v3")
        a.e("v_lshlrev_b32 v3, 2, v3")
        a.e("s_nop 1")
        a.e("v_readfirstlane_b32 s12, v3")
        a.e("s_memrealtime s[14:15]")
        a.e("s_waitcnt lgkmcnt(0)")
        a.label("REP_L")
        a.e("s_memrealtime s[16:17]")
        a.e("s_waitcnt lgkmcnt(0)")
        a.e("s_sub_u32 s13, s16, s14")
        a.e("s_cmp_lt_u32 s13, s12")
        a.e("s_cbranch_scc1 REP_L")
        a.label("REP_END")
        a.e("s_endpgm")
    if cfg.align:
        a.lines, bad = align_pass(a.lines, "K2_LOOP" if cfg.align < 3 else "prep_kernel", "K2_CODE_END", cfg.align == 2)
        print("misaligned left:", bad, file=sys.stderr)
    body = a.text()
    probs = check_text(body)
    for p in probs: print("HAZARD", p, file=sys.stderr)
    k1lds = K1_LDS_B
    out = HEADER
    out += f"; @launch kernel=prep_kernel grid=(256,1,1) block=(512,1,1) lds={k1lds}\n"
    out += f"; @launch kernel={NAME}_kernel grid=(256,1,1) block=(512,1,1) lds={K2_LDS}\n"
    if cfg.rep: out += "; @launch kernel=rep_kernel grid=(1,1,1) block=(64,1,1) lds=0\n"
    out += '.amdgcn_target "amdgcn-amd-amdhsa--gfx950"\n' + body
    out += '.section .rodata,"a"\n.p2align 6\n' + kernel_desc("prep_kernel", 200 if cfg.dbg else 160, 96 if cfg.dbg else 80) + ".p2align 6\n" + kernel_desc(NAME + "_kernel", 256, 96)
    if cfg.rep: out += ".p2align 6\n" + kernel_desc("rep_kernel", 8, 32)
    return out

if __name__ == "__main__":
    outp = sys.argv[1]
    for kv in sys.argv[2:]:
        k, v = kv.split("=", 1)
        cur = getattr(cfg, k)
        setattr(cfg, k, (v not in ("0", "False")) if isinstance(cur, bool) else int(v, 0) if isinstance(cur, int) else v)
    open(outp, "w").write(generate())
```

```python
import sys
from asmlib import *

NAME = "gather_scatter__mpnn_edge_mlp__graph"
class Cfg:
    modeA = False
    wsoff = 0
    st_pol = "sc1"
    ld_pol = "nt"
    e_pol = ""
    prefetchP = 1
    pf0 = False
    early = True
    o_pol = "sc1"
    ot_pol = ""
    touch = 1
    etouch = 0
    epos = 1
    align = 1
    prio = 2
    bias = 14
    cw = 0
    g_pol = ''
    s_pol = ''
    owt = 1
    k1w = 0
    e1e = 0
    e0f = 0
    few = False
    spf = 0
    ratio = 0
    k1o = 0
    p_pol = 'sc1'
    pfm = 0
    pfmpos = 5
    pfe = 0
    et_pol = ''
    t1pos = 1
    pfn = 320
    pfpos = 1
    nw = '4,4,4,4'
    x_pol = ""
    dbg = False
    lst = False
    x = ""
    rep = ""
cfg = Cfg()

NB = 250; NPB = 50; CH = 1600
WS_P = 4096; WS_S01 = 0x320000; WS_REC = 0x900000; WS_OFFT = 0xA90000; WS_W3F = 0xAD0000; WS_WF = 0xAE0000
LOG2E_NEG = "0xbfb8aa3b"
LN2_NEG = "0xbf317218"

S_X, S_E, S_SRC, S_DST, S_WM, S_WU, S_OUT, S_DBG, S_WS = 4, 6, 8, 10, 12, 14, 16, 18, 20

def load_args(a):
    a.e("s_load_dwordx16 s[4:19], s[0:1], 0")
    a.e("s_load_dwordx2 s[20:21], s[0:1], 64")

def srd(a, d, ptr, off_s=None, off_c=0, size=0):
    if off_s is not None:
        a.e(f"s_add_u32 s{d}, s{ptr}, s{off_s}")
        a.e(f"s_addc_u32 s{d+1}, s{ptr+1}, 0")
        if off_c:
            a.e(f"s_add_u32 s{d}, s{d}, {off_c}")
            a.e(f"s_addc_u32 s{d+1}, s{d+1}, 0")
    elif off_c:
        a.e(f"s_add_u32 s{d}, s{ptr}, {off_c}")
        a.e(f"s_addc_u32 s{d+1}, s{ptr+1}, 0")
    else:
        a.e(f"s_mov_b32 s{d}, s{ptr}")
        a.e(f"s_mov_b32 s{d+1}, s{ptr+1}")
    a.e(f"s_mov_b32 s{d+2}, {size}")
    a.e(f"s_mov_b32 s{d+3}, 0x20000")

def idmap(a, dst, src, t, sh=5):
    a.e(f"s_and_b32 s{t}, s{src}, 7")
    a.e(f"s_lshr_b32 s{dst}, s{src}, 3")
    a.e(f"s_lshl_b32 s{t}, s{t}, {sh}")
    a.e(f"s_add_u32 s{dst}, s{dst}, s{t}")

def scan64(a, v):
    for sh in (1, 2, 4, 8):
        a.e("s_nop 1")
        a.e(f"v_add_u32_dpp v{v}, v{v}, v{v} row_shr:{sh} row_mask:0xf bank_mask:0xf bound_ctrl:0")
    a.e("s_nop 1")
    a.e(f"v_add_u32_dpp v{v}, v{v}, v{v} row_bcast:15 row_mask:0xa bank_mask:0xf")
    a.e("s_nop 1")
    a.e(f"v_add_u32_dpp v{v}, v{v}, v{v} row_bcast:31 row_mask:0xc bank_mask:0xf")

def x_dma(a, sX, sW, vL, lds_base, t0, st, pol="", strided=False):
    a.e(f"v_lshrrev_b32 v{t0}, 4, v{vL}")
    a.e(f"v_and_b32 v{t0+1}, 15, v{vL}")
    a.e(f"v_xor_b32 v{t0+1}, v{t0+1}, v{t0}")
    a.e(f"v_lshlrev_b32 v{t0+1}, 4, v{t0+1}")
    a.e(f"v_lshl_add_u32 v{t0}, v{t0}, 8, v{t0+1}")
    a.e(f"s_and_b32 s{st}, s{sW}, 1")
    a.e(f"s_lshl_b32 s{st}, s{st}, 7")
    a.e(f"v_xor_b32 v{t0}, s{st}, v{t0}")
    a.e(f"v_xor_b32 v{t0+1}, 64, v{t0}")
    if strided:
        a.e(f"s_lshr_b32 s{st+1}, s{sW}, 1")
        a.e(f"s_lshl_b32 s{st+1}, s{st+1}, 12")
        a.e(f"s_lshl_b32 s{st}, s{sW}, 11")
        a.e(f"s_add_u32 s{st+1}, s{st+1}, s{st}")
        a.e(f"s_add_u32 m0, s{st+1}, {lds_base}")
    else:
        a.e(f"s_lshl_b32 s{st}, s{sW}, 11")
        a.e(f"s_add_u32 m0, s{st}, {lds_base}")
    a.e("s_nop 0")
    a.e(f"buffer_load_dwordx4 v{t0}, s[{sX}:{sX+3}], s{st} offen {pol} lds")
    a.e(f"buffer_load_dwordx4 v{t0+1}, s[{sX}:{sX+3}], s{st} offen offset:1024 {pol} lds")

def w_lane_const(a, vW, vL, t):
    a.e(f"v_lshrrev_b32 v{t}, 4, v{vL}")
    a.e(f"v_and_b32 v{vW}, 15, v{vL}")
    a.e(f"v_lshlrev_b32 v{vW}, 4, v{vW}")
    a.e(f"v_lshlrev_b32 v{t+1}, 6, v{t}")
    a.e(f"v_xor_b32 v{vW}, v{vW}, v{t+1}")
    a.e(f"v_lshl_add_u32 v{vW}, v{t}, 8, v{vW}")

def w_dma(a, sSrd, vW, sW4096, goff, lds_base, st):
    a.e(f"s_add_u32 s{st}, s{sW4096}, {goff}")
    a.e(f"s_add_u32 m0, s{sW4096}, {lds_base}")
    a.e("s_nop 0")
    for i in range(4):
        o = f" offset:{1024*i}" if i else ""
        a.e(f"buffer_load_dwordx4 v{vW}, s[{sSrd}:{sSrd+3}], s{st} offen{o} lds")

def wfrag_const(a, vA, vL, sW, t, st):
    a.e(f"v_lshrrev_b32 v{t}, 5, v{vL}")
    a.e(f"v_bfe_u32 v{t+1}, v{vL}, 2, 2")
    a.e(f"v_lshl_add_u32 v{t}, v{t}, 3, v{t+1}")
    a.e(f"v_lshlrev_b32 v{vA}, 8, v{t}")
    a.e(f"v_and_b32 v{t}, 1, v{vL}")
    a.e(f"v_lshlrev_b32 v{t}, 5, v{t}")
    a.e(f"v_bfe_u32 v{t+2}, v{vL}, 1, 1")
    a.e(f"v_lshl_add_u32 v{t}, v{t+2}, 3, v{t}")
    a.e(f"v_bfe_u32 v{t+2}, v{vL}, 4, 1")
    a.e(f"v_lshl_add_u32 v{t}, v{t+2}, 4, v{t}")
    a.e(f"s_and_b32 s{st}, s{sW}, 3")
    a.e(f"s_lshl_b32 s{st}, s{st}, 6")
    a.e(f"v_add_u32 v{t}, s{st}, v{t}")
    a.e(f"v_lshlrev_b32 v{t+1}, 6, v{t+1}")
    a.e(f"v_xor_b32 v{t}, v{t}, v{t+1}")
    a.e(f"v_add_u32 v{vA}, v{vA}, v{t}")

def wfrag_read(a, dst, vAddr, off=0, stride=4096):
    for s in range(8):
        for u in range(2):
            r = (dst[s] if isinstance(dst, list) else dst + 4*s) + 2*u
            a.e(f"ds_read_b64_tr_b16 v[{r}:{r+1}], v{vAddr} offset:{off+s*stride+u*1024}")

def xfrag_read(a, dst, vL, sW, lds_base, t, st):
    a.e(f"v_and_b32 v{t}, 31, v{vL}")
    a.e(f"v_lshrrev_b32 v{t+1}, 5, v{vL}")
    a.e(f"v_and_b32 v{t+2}, 15, v{vL}")
    a.e(f"v_xor_b32 v{t+1}, v{t+1}, v{t+2}")
    a.e(f"v_lshlrev_b32 v{t+1}, 4, v{t+1}")
    a.e(f"v_lshl_add_u32 v{t}, v{t}, 8, v{t+1}")
    a.e(f"s_lshr_b32 s{st}, s{sW}, 2")
    a.e(f"s_lshl_b32 s{st}, s{st}, 13")
    a.e(f"s_add_u32 s{st}, s{st}, {lds_base}")
    a.e(f"v_add_u32 v{t}, s{st}, v{t}")
    for s in range(8):
        if s == 0:
            a.e(f"ds_read_b128 v[{dst}:{dst+3}], v{t}")
        else:
            r = t + 1 + (s & 1)
            a.e(f"v_xor_b32 v{r}, {32*s}, v{t}")
            a.e(f"ds_read_b128 v[{dst+4*s}:{dst+4*s+3}], v{r}")

def gemm8(a, acc, A, B, zero=True):
    for s in range(8):
        c = "0" if (s == 0 and zero) else f"v[{acc}:{acc+15}]"
        r = A[s] if isinstance(A, list) else A + 4*s
        a.e(f"v_mfma_f32_32x32x16_bf16 v[{acc}:{acc+15}], v[{r}:{r+3}], v[{B+4*s}:{B+4*s+3}], {c}")

WS_DBG = 0x2000000
def stamp(a, i, vst):
    if not cfg.dbg: return
    if cfg.few and not (i in (0, 3) if vst == 197 else i in (7, 8, 9, 12)): return
    a.e("s_memrealtime s[90:91]")
    a.e("s_waitcnt lgkmcnt(0)")
    a.e(f"v_writelane_b32 v{vst}, s90, {i}")
def stamp_out(a, vst, vt, kidx):
    if not cfg.dbg: return
    srd(a, 92, S_WS, off_c=WS_DBG + kidx * 0x100000, size=0x100000)
    a.e(f"s_lshl_b32 s90, s2, 11")
    a.e(f"v_lshl_add_u32 v{vt}, v0, 2, s90")
    a.e(f"buffer_store_dword v{vst}, v{vt}, s[92:95], 0 offen")

def kernel_head(a, name):
    a.e(".text")
    a.e(f".globl {name}")
    a.e(".p2align 8")
    a.e(f".type {name},@function")
    a.label(name)

def kernel_desc(name, vg, sg):
    acc = (vg + 3) // 4 * 4
    return f""".amdhsa_kernel {name}
  .amdhsa_next_free_vgpr {vg}
  .amdhsa_next_free_sgpr {sg}
  .amdhsa_accum_offset {acc}
  .amdhsa_group_segment_fixed_size 0
  .amdhsa_kernarg_size 72
  .amdhsa_user_sgpr_count 2
  .amdhsa_user_sgpr_kernarg_segment_ptr 1
  .amdhsa_system_sgpr_workgroup_id_x 1
.end_amdhsa_kernel
"""

K1_LDS_A = 16384 + 57344
K1_LDS_B = 65536 + 96*272
def gen_k1(a):
    kernel_head(a, "prep_kernel")
    load_args(a)
    sW, sId, sT = 22, 23, 44
    vL = 1
    a.e(f"v_and_b32 v{vL}, 63, v0")
    a.e(f"v_lshrrev_b32 v2, 6, v0")
    a.e("s_nop 0")
    a.e(f"v_readfirstlane_b32 s{sW}, v2")
    if cfg.dbg: a.e("v_mov_b32 v197, 0")
    stamp(a, 0, 197)
    if cfg.dbg:
        a.e("s_getreg_b32 s90, hwreg(HW_REG_XCC_ID)")
        a.e("s_add_u32 s90, s90, 1")
        a.e("v_writelane_b32 v197, s90, 63")
    a.e(f"s_mov_b32 s{sId}, s2")
    a.e("s_cmp_lt_u32 s2, 120")
    a.e("s_cbranch_scc1 K1_BIN")
    a.e(f"s_sub_u32 s{sId}, s2, 3")
    a.e("s_sub_u32 s3, s2, 123")
    a.e("s_cmp_lt_u32 s3, 5")
    a.e("s_cbranch_scc1 K1_BIN")
    a.e("s_cmp_ge_u32 s2, 256")
    a.e("s_cbranch_scc1 K1_END")
    a.e(f"s_and_b32 s{sT}, s2, 7")
    a.e(f"s_lshr_b32 s{sId}, s2, 3")
    a.e(f"s_lshl4_add_u32 s{sId}, s{sT}, s{sId}")
    a.e(f"s_min_u32 s{sT}, s{sT}, 2")
    a.e(f"s_add_u32 s{sId}, s{sId}, s{sT}")
    a.e(f"s_sub_u32 s{sId}, s{sId}, 15")
    a.e(f"s_mul_i32 s{sT+2}, s{sId}, 24576")
    a.e(f"s_sub_u32 s{sT+4}, 3200000, s{sT+2}")
    a.e(f"s_min_u32 s{sT+4}, s{sT+4}, 24576")
    a.e(f"v_lshrrev_b32 v2, 4, v{vL}")
    a.e(f"v_and_b32 v3, 15, v{vL}")
    a.e(f"v_xor_b32 v3, v3, v2")
    a.e(f"v_lshlrev_b32 v3, 4, v3")
    a.e(f"v_lshl_add_u32 v16, v2, 8, v3")
    for i in range(1, 4): a.e(f"v_xor_b32 v{16+i}, {64*i}, v16")
    w_lane_const(a, 4, vL, 5)
    a.e(f"s_lshl_b32 s{sT+3}, s{sW}, 12")
    a.e("s_waitcnt lgkmcnt(0)")
    def xl():
        a.e(f"s_mov_b32 m0, s{sT+3}")
        srd(a, 24, S_X, off_s=sT+2, size=f"s{sT+4}")
        for i in range(4):
            o = f" offset:{1024*i}" if i else ""
            a.e(f"buffer_load_dwordx4 v{16+i}, s[24:27], s{sT+3} offen{o} {cfg.x_pol} lds")
    def wl():
        srd(a, 28, S_WM, size=32768)
        w_dma(a, 28, 4, sT+3, 0, 32768, sT)
    xl(); wl()
    srd(a, 32, S_WS, off_s=sT+2, off_c=cfg.wsoff + WS_P, size=f"s{sT+4}")
    wfrag_const(a, 8, vL, sW, 9, sT)
    OT = 65536
    a.e(f"v_and_b32 v12, 31, v{vL}")
    a.e(f"v_lshrrev_b32 v13, 5, v{vL}")
    a.e(f"v_and_b32 v15, 15, v{vL}")
    a.e(f"v_xor_b32 v15, v15, v13")
    a.e(f"v_lshlrev_b32 v15, 4, v15")
    a.e(f"v_lshl_add_u32 v15, v12, 8, v15")
    a.e(f"s_lshr_b32 s{sT}, s{sW}, 2")
    a.e(f"s_lshl_b32 s{sT+1}, s{sT}, 14")
    a.e(f"v_add_u32 v20, s{sT+1}, v15")
    for st in range(1, 8): a.e(f"v_xor_b32 v{20+st}, {32*st}, v20")
    if cfg.k1w:
        a.e(f"v_lshlrev_b32 v13, 5, v13")
        a.e(f"v_mul_u32_u24 v12, 80, v12")
        a.e(f"s_mul_i32 s{sT+5}, s{sW}, {32*80}")
        a.e(f"s_add_u32 s{sT+5}, s{sT+5}, {OT}")
        a.e(f"v_add3_u32 v12, s{sT+5}, v12, v13")
        a.e(f"v_lshrrev_b32 v13, 2, v{vL}")
        a.e(f"v_and_b32 v15, 3, v{vL}")
        a.e(f"v_lshlrev_b32 v15, 4, v15")
        a.e(f"v_lshl_add_u32 v14, v13, 8, v15")
        a.e(f"v_mul_u32_u24 v13, 80, v13")
        a.e(f"v_add3_u32 v13, v13, v15, s{sT+5}")
        a.e(f"s_lshl_b32 s{sT}, s{sT}, 14")
        a.e(f"s_and_b32 s{sT+1}, s{sW}, 3")
        a.e(f"s_lshl_b32 s{sT+1}, s{sT+1}, 6")
        a.e(f"v_add_u32 v14, s{sT}, v14")
        a.e(f"v_add_u32 v14, s{sT+1}, v14")
        a.e("s_movk_i32 s65, 4096\ns_movk_i32 s66, 12288")
    else:
        a.e(f"v_lshlrev_b32 v13, 5, v13")
        a.e(f"v_mul_u32_u24 v12, 272, v12")
        a.e(f"s_mul_i32 s{sT}, s{sT}, {64*272}")
        a.e(f"s_and_b32 s{sT+1}, s{sW}, 3")
        a.e(f"s_lshl_b32 s{sT+1}, s{sT+1}, 6")
        a.e(f"s_add_u32 s{sT}, s{sT}, s{sT+1}")
        a.e(f"s_add_u32 s{sT}, s{sT}, {OT}")
        a.e(f"v_add3_u32 v12, s{sT}, v12, v13")
        a.e(f"v_lshrrev_b32 v13, 4, v0")
        a.e(f"v_lshlrev_b32 v14, 4, v0")
        a.e(f"v_lshl_add_u32 v13, v13, 4, v14")
        a.e(f"v_add_u32 v13, {OT}, v13")
    a.e(f"s_mov_b32 s{sT}, {LOG2E_NEG}")
    a.e(f"s_mov_b32 s{sT+1}, {LOG2E_NEG}")
    a.e("s_movk_i32 s62, 8192\ns_movk_i32 s63, 16384\ns_movk_i32 s64, 24576")
    WF, X0, X1, A0, A1 = 32, 64, 96, 128, 144
    def rw(st):
        for u in range(2):
            a.e(f"ds_read_b64_tr_b16 v[{WF+4*st+2*u}:{WF+4*st+2*u+1}], v8 offset:{32768+st*4096+u*1024}")
    def rx0(st): a.e(f"ds_read_b128 v[{X0+4*st}:{X0+4*st+3}], v{20+st}")
    def mm(A, X, st):
        c = "0" if st == 0 else f"v[{A}:{A+15}]"
        a.e(f"v_mfma_f32_32x32x16_bf16 v[{A}:{A+15}], v[{WF+4*st}:{WF+4*st+3}], v[{X+4*st}:{X+4*st+3}], {c}")
    def fin(b, A):
        for i in range(8):
            a.e(f"v_pk_mul_f32 v[{A+2*i}:{A+2*i+1}], v[{A+2*i}:{A+2*i+1}], s[{sT}:{sT+1}]")
        for i in range(8):
            a.e(f"v_cvt_pk_bf16_f32 v{A+i}, v{A+2*i}, v{A+1+2*i}")
        if cfg.k1w and b:
            a.e("s_waitcnt lgkmcnt(0)")
            st2(0)
            a.e("v_add_u32 v14, s62, v14")
            b = 0
        if cfg.k1w:
            a.e(f"ds_write_b128 v12, v[{A}:{A+3}]")
            a.e(f"ds_write_b128 v12, v[{A+4}:{A+7}] offset:16")
            a.e(f"ds_read_b128 v[{48+8*b}:{51+8*b}], v13")
            a.e(f"ds_read_b128 v[{52+8*b}:{55+8*b}], v13 offset:{16*80}")
        else:
            a.e(f"ds_write_b128 v12, v[{A}:{A+3}] offset:{b*32*272}")
            a.e(f"ds_write_b128 v12, v[{A+4}:{A+7}] offset:{b*32*272+16}")
    def st2(b):
        for j in range(2):
            a.e(f"buffer_store_dwordx4 v[{48+8*b+4*j}:{51+8*b+4*j}], v14, s[32:35], {['0','s65','s62','s66'][2*b+j]} offen {cfg.p_pol}")
    a.e(f"s_cmp_ge_u32 s{sW}, 4")
    a.e("s_waitcnt vmcnt(4)")
    a.e("s_barrier")
    for st in range(8): rx0(st)
    a.e("s_cbranch_scc1 K1_NX1")
    for st in range(8):
        a.e(f"ds_read_b128 v[{X1+4*st}:{X1+4*st+3}], v{20+st} offset:8192")
    a.label("K1_NX1")
    a.e("s_waitcnt vmcnt(0)")
    stamp(a, 1, 197)
    a.e("s_barrier")
    for st in range(8): rw(st)
    for st in range(8):
        a.e(f"s_waitcnt lgkmcnt({14-2*st})")
        mm(A0, X0, st)
    a.e("s_cbranch_scc1 K1_NX2")
    for st in range(8): mm(A1, X1, st)
    a.e("s_nop 2")
    fin(0, A0)
    fin(1, A1)
    a.e("s_branch K1_NX3")
    a.label("K1_NX2")
    a.e("s_nop 10")
    fin(0, A0)
    a.label("K1_NX3")
    a.e("s_waitcnt lgkmcnt(0)")
    if cfg.k1w:
        st2(0)
    else:
        a.e("s_barrier")
        for j in range(3):
            a.e(f"ds_read_b128 v[{48+4*j}:{51+4*j}], v13 offset:{j*32*272}")
        for j in range(3):
            a.e(f"s_waitcnt lgkmcnt({2-j})")
            a.e(f"buffer_store_dwordx4 v[{48+4*j}:{51+4*j}], v14, s[32:35], {['0','s62','s63'][j]} offen {cfg.p_pol}")
    stamp(a, 2, 197)
    if cfg.dbg: a.e("s_waitcnt vmcnt(0)")
    stamp(a, 3, 197)
    stamp_out(a, 197, 198, 0)
    a.e("s_endpgm")
    SL, FLAG, SORT = 0, 36864, 36880
    a.label("K1_BIN")
    a.e(f"s_mul_i32 s{sT+2}, s{sId}, 12800")
    a.e(f"s_lshl_b32 s{sT+3}, s{sId}, 15")
    a.e("v_lshlrev_b32 v2, 4, v0")
    a.e("s_movk_i32 s3, 6400")
    a.e("s_movk_i32 s59, 400")
    a.e("v_cmp_gt_u32 s[60:61], s59, v0")
    a.e("s_waitcnt lgkmcnt(0)")
    D, S, BA, RK, AD = 4, 12, 20, 28, 36
    srd(a, 24, S_DST, off_s=sT+2, size=12800)
    a.e(f"buffer_load_dwordx4 v[{D}:{D+3}], v2, s[24:27], 0 offen {cfg.ld_pol}")
    a.e(f"buffer_load_dwordx4 v[{D+4}:{D+7}], v2, s[24:27], s3 offen {cfg.ld_pol}")
    srd(a, 28, S_SRC, off_s=sT+2, size=12800)
    a.e(f"buffer_load_dwordx4 v[{S}:{S+3}], v2, s[28:31], 0 offen {cfg.ld_pol}")
    a.e(f"buffer_load_dwordx4 v[{S+4}:{S+7}], v2, s[28:31], s3 offen {cfg.ld_pol}")
    srd(a, 32, S_WS, off_s=sT+3, off_c=cfg.wsoff + WS_S01, size=32768)
    a.e("v_mov_b32 v44, 1")
    a.e("v_min_u32 v3, 256, v0")
    a.e("v_mul_u32_u24 v3, 144, v3")
    a.e(f"ds_write_b32 v3, v44 offset:{SL}")
    a.e("v_lshlrev_b32 v45, 22, v0")
    a.e("s_movk_i32 s58, 10700")
    a.e("s_movk_i32 s57, 144")
    a.e("v_lshrrev_b32 v46, 3, v0")
    a.e("v_lshl_add_u32 v46, v46, 4, v2")
    a.e(f"v_mov_b32 v48, {FLAG}")
    a.e("s_movk_i32 s62, 8192\ns_movk_i32 s63, 16384\ns_movk_i32 s64, 24576")
    a.e("s_waitcnt lgkmcnt(0)")
    a.e("s_barrier")
    if True:
        a.e(f"s_cmp_lg_u32 s{sW}, 7")
        a.e("s_cbranch_scc1 K1_NOTOUCH")
        a.e("s_cmp_ge_u32 s2, 124")
        a.e("s_cbranch_scc1 K1_W3")
        a.e(f"s_lshr_b32 s{sT}, s2, 3")
        a.e(f"v_lshlrev_b32 v70, 7, v{vL}")
        if cfg.touch & 1:
            srd(a, 72, S_WM, off_c=32768, size=32768)
            srd(a, 76, S_WU, size=65536)
            a.e(f"s_mul_i32 s{sT+1}, s{sT}, {18*128}")
            a.e("s_mov_b64 exec, 0x3ffff")
            a.e(f"buffer_load_dword v71, v70, s[72:75], s{sT+1} offen")
            a.e(f"s_mul_i32 s{sT+1}, s{sT}, {35*128}")
            a.e("s_mov_b32 exec_lo, -1\ns_mov_b32 exec_hi, 7")
            a.e(f"buffer_load_dword v72, v70, s[76:79], s{sT+1} offen")
        if cfg.touch & 2:
            a.e("s_mov_b64 exec, 0x1ff")
            a.e("s_getpc_b64 s[68:69]")
            a.label("K1_PC")
            a.e(f"s_add_u32 s68, s68, {NAME}_kernel-K1_PC")
            a.e("s_addc_u32 s69, s69, 0")
            a.e(f"s_mul_i32 s{sT+1}, s{sT}, {9*128}")
            a.e(f"v_add_u32 v74, s{sT+1}, v70")
            a.e(f"v_min_u32 v74, K2_CODE_END-{NAME}_kernel-4, v74")
            a.e("v_mov_b32 v75, s69")
            a.e("v_add_co_u32 v74, vcc, s68, v74")
            a.e("s_nop 1")
            a.e("v_addc_co_u32 v75, vcc, 0, v75, vcc")
            a.e("global_load_dword v73, v[74:75], off")
        a.e("s_mov_b64 exec, -1")
        a.e("s_branch K1_B2")
        a.label("K1_NOTOUCH")
    a.e("s_mov_b64 exec, s[60:61]")
    for j in range(2):
        a.e(f"s_waitcnt vmcnt({3-j})")
        if j == 0: stamp(a, 1, 197)
        for i in range(4*j, 4*j+4):
            a.e(f"v_mul_u32_u24 v{AD+i}, s58, v{D+i}")
            a.e(f"v_lshrrev_b32 v{AD+i}, 19, v{AD+i}")
            a.e(f"v_mul_u32_u24 v{BA+i}, s57, v{AD+i}")
            a.e(f"ds_add_rtn_u32 v{RK+i}, v{BA+i}, v44 offset:{SL}")
    for i in range(8):
        a.e(f"v_mul_u32_u24 v{AD+i}, 49, v{AD+i}")
        a.e(f"v_sub_u32 v{D+i}, v{D+i}, v{AD+i}")
        if i: a.e(f"v_add_u32 v45, {hex(((1600-3) if i == 4 else 1) << 20)}, v45")
        a.e(f"v_or_b32 v{D+i}, v{D+i}, v45")
    a.e(f"s_waitcnt vmcnt(0)")
    stamp(a, 4, 197)
    for i in range(8):
        a.e(f"s_waitcnt lgkmcnt(7)")
        a.e(f"v_min_u32 v{AD+i}, 32, v{RK+i}")
        a.e(f"v_lshl_or_b32 v{D+i}, v{S+i}, 6, v{D+i}")
        a.e(f"v_lshl_add_u32 v{AD+i}, v{AD+i}, 2, v{BA+i}")
        a.e(f"ds_write_b32 v{AD+i}, v{D+i} offset:{SL}")
    a.e(f"v_max3_u32 v47, v{RK}, v{RK+1}, v{RK+2}")
    a.e(f"v_max3_u32 v47, v47, v{RK+3}, v{RK+4}")
    a.e(f"v_max3_u32 v47, v47, v{RK+5}, v{RK+6}")
    a.e(f"v_max_u32 v47, v47, v{RK+7}")
    a.e("v_cmpx_le_u32 vcc, 32, v47")
    a.e("ds_write_b32 v48, v47")
    a.e("s_mov_b64 exec, -1")
    a.e("s_waitcnt lgkmcnt(0)")
    stamp(a, 5, 197)
    a.label("K1_B2")
    a.e("s_barrier")
    stamp(a, 6, 197)
    for j in range(4):
        a.e(f"ds_read_b128 v[{52+4*j}:{55+4*j}], v46 offset:{SL + j*9216}")
    a.e(f"ds_read_b32 v49, v48")
    for j in range(4):
        a.e(f"s_waitcnt lgkmcnt({4-j})")
        a.e(f"buffer_store_dwordx4 v[{52+4*j}:{55+4*j}], v2, s[32:35], {['0','s62','s63','s64'][j]} offen {cfg.st_pol}")
    a.e("s_waitcnt lgkmcnt(0)")
    a.e("v_readfirstlane_b32 s3, v49")
    a.e("s_cmp_lg_u32 s3, 1")
    a.e("s_cbranch_scc1 K1_FULL")
    stamp(a, 2, 197)
    if cfg.dbg: a.e("s_waitcnt vmcnt(0)")
    stamp(a, 3, 197)
    stamp_out(a, 197, 198, 0)
    a.label("K1_END")
    a.e("s_endpgm")
    a.label("K1_FULL")
    a.e("s_waitcnt vmcnt(0)")
    a.e(f"s_lshl_b32 s{sT+4}, s{sId}, 2")
    srd(a, 32, S_WS, off_s=sT+2, off_c=cfg.wsoff + WS_REC, size=12800)
    srd(a, 36, S_WS, off_s=sT+4, off_c=cfg.wsoff + WS_OFFT, size=255*1024 + 4)
    a.e(f"v_mul_u32_u24 v3, {4*144}, v{vL}")
    for i in range(4):
        a.e(f"ds_read_b32 v{52+i}, v3 offset:{SL + 144*i}")
    a.e("s_waitcnt lgkmcnt(0)")
    for i in range(4):
        a.e(f"v_add_u32 v{52+i}, -1, v{52+i}")
    a.e("v_add_u32 v56, v52, v53")
    a.e("v_add_u32 v57, v56, v54")
    a.e("v_add_u32 v58, v57, v55")
    a.e("v_mov_b32 v60, v58")
    scan64(a, 60)
    a.e("v_sub_u32 v60, v60, v58")
    a.e("v_add_u32 v61, v60, v52")
    a.e("v_add_u32 v62, v60, v56")
    a.e("v_add_u32 v63, v60, v57")
    for i in range(4):
        a.e(f"ds_write_b32 v3, v{60+i} offset:{SL + 144*i + 132}")
    a.e(f"s_cmp_lg_u32 s{sW}, 7")
    a.e("s_cbranch_scc1 K1_NOFFT")
    a.e(f"v_lshlrev_b32 v59, 12, v{vL}")
    for i in range(4):
        o = f" offset:{1024*i}" if i else ""
        a.e(f"buffer_store_dword v{60+i}, v59, s[36:39], 0 offen{o}")
    a.label("K1_NOFFT")
    a.e("s_mov_b64 exec, s[60:61]")
    a.e("s_waitcnt lgkmcnt(0)")
    for i in range(8):
        a.e(f"ds_read_b32 v{BA+i}, v{BA+i} offset:{SL + 132}")
    a.e("s_waitcnt lgkmcnt(0)")
    for i in range(8):
        a.e(f"v_add_lshl_u32 v{BA+i}, v{BA+i}, v{RK+i}, 2")
        a.e(f"ds_write_b32 v{BA+i}, v{D+i} offset:{SORT - 4}")
    a.e("s_mov_b64 exec, -1")
    a.e("s_waitcnt lgkmcnt(0)")
    a.e("s_barrier")
    a.e(f"ds_read_b128 v[4:7], v2 offset:{SORT}")
    a.e(f"ds_read_b128 v[8:11], v2 offset:{SORT + 8192}")
    a.e(f"s_waitcnt lgkmcnt(0)")
    a.e(f"buffer_store_dwordx4 v[4:7], v2, s[32:35], 0 offen")
    a.e(f"buffer_store_dwordx4 v[8:11], v2, s[32:35], s62 offen")
    a.e("s_endpgm")
    a.label("K1_W3")
    a.e(f"s_sub_u32 s{sT}, s2, 124")
    srd(a, 72, S_WM, off_c=65536, size=4096)
    srd(a, 76, S_WS, off_c=cfg.wsoff + WS_W3F, size=4096)
    a.e(f"v_and_b32 v70, 31, v{vL}")
    a.e("v_lshlrev_b32 v70, 1, v70")
    a.e(f"v_lshrrev_b32 v71, 5, v{vL}")
    a.e("v_lshl_add_u32 v70, v71, 11, v70")
    a.e(f"s_lshl_b32 s{sT+1}, s{sT}, 6")
    for j in range(8):
        o = f" offset:{256*j}" if j else ""
        a.e(f"buffer_load_ushort v{72+j}, v70, s[72:75], s{sT+1} offen{o}")
    a.e(f"s_lshl_b32 s{sT+1}, s{sT}, 10")
    a.e(f"s_mov_b32 s{sT}, {LOG2E_NEG}")
    a.e(f"v_lshlrev_b32 v71, 4, v{vL}")
    a.e("s_waitcnt vmcnt(0)")
    for j in range(8):
        a.e(f"v_lshlrev_b32 v{72+j}, 16, v{72+j}")
        a.e(f"v_mul_f32 v{72+j}, s{sT}, v{72+j}")
    for j in range(4):
        a.e(f"v_cvt_pk_bf16_f32 v{80+j}, v{72+2*j}, v{73+2*j}")
    a.e(f"buffer_store_dwordx4 v[80:83], v71, s[76:79], s{sT+1} offen {cfg.st_pol}")
    a.e("s_branch K1_B2")

CNT, FLG, LUT, QL, LIST, AGG, SIDE, WU2, STG = 0, 256, 288, 576, 13776, 30800, 56672, 65536, 98304
MAXT = 65
K2_LDS = 163840
vL, vM = 1, 2
vOC, vREM, vROFF, vEB = 3, 4, 5, 6
vAE, vAP, vAQ = 7, 8, 9
vCP, vRP0, vRP1, vCQ, vCL, vCA, vH16, vFA = 10, 11, 12, 13, 14, 15, 16, 17
vPA = 144
vEA, vLA = 20, 21
vQA = 22
vRS = 148
vC4 = 152
ACC = 156
vRN = 28
vRE = 30
vSD = 31
vCUR = 32
vCHK = 34
vWC, vWA = 35, 36
vPF = 38
vT = 40
Z = 64; PX = 128; PY = 128; QX = 160; QY = 168; EE = 176; AQ = 184; AP = 188; IDX = 192; W3 = 196
NN = 212; DD = 220; EX = 228; TT = 232; ACX = 236
sP, sE, sX, sO, sR, sWm, sWu, sOT = 24, 28, 32, 36, 40, 44, 48, 52
sW, sBin, sNT, sCnt, sG0, sG1, sG2, sLim, sDone, sSafe, sW4k, sM0, sMask, sMore, sFirst, sDm = 22, 23, 56, 57, 58, 59, 60, 61, 62, 63, 64, 65, 66, 67, 68, 69
sT = 70
sX0 = 80
sSusp = 88
sF0, sF1 = 32, 34
sMA, sMB, sL, sEX = 58, 59, 60, 52
PSIZE = 12500 * 256 + 3072
s256 = 79
ESIZE = 400000 * 32

def dma_m0(H, dest=None):
    if dest is None: dest = H
    return f"s_add_u32 m0, s{sW4k}, {WU2 - 128*H}" if dest == "alt" else f"s_add_u32 m0, s{sM0}, {dest*4096 - 128*H + 256}"
def dma_ld(H):
    out = []
    for j in range(4):
        imm = 1024 * j + 128 * H
        o = f" offset:{imm}" if imm else ""
        out.append(f"buffer_load_dwordx4 v{vPA+j}, s[{sP}:{sP+3}], 0 offen{o} {cfg.g_pol} lds")
    return out
def dma_ops(H, dest=None):
    l = dma_ld(H)
    return [[dma_m0(H, dest), "s_nop 0", l[0]], [l[1]], [l[2]], [l[3]]]
def dma_half(a, H, dest=None):
    for s in sum(dma_ops(H, dest), []): a.e(s)
def pfrag_reads(dst, H, va=None):
    out = []
    va = vRP0 if va is None else va
    for tq in range(2):
        for q in range(4):
            r = dst + 8 * tq + 2 * q
            out.append(f"ds_read_b64_tr_b16 v[{r}:{r+1}], v{va+tq} offset:{H*4096 + q*512}")
    return out
def qfrag_reads(dst, H, par):
    out = []
    for tq in range(2):
        for u in range(2):
            r = dst + 4 * tq + 2 * u
            out.append(f"ds_read_b64_tr_b16 v[{r}:{r+1}], v{vQA+2*par+u} offset:{(2*H+tq)*64}")
    return out
def list_reads_se(o=0):
    return [f"ds_read_b32 v{vRE}, v{vAE} offset:{128*o}", f"ds_read2_b32 v[{vRS}:{vRS+1}], v{vAP} offset0:{32*o} offset1:{32*o+8}", f"ds_read2_b32 v[{vRS+2}:{vRS+3}], v{vAP} offset0:{32*o+16} offset1:{32*o+24}"]
def list_reads_n(o=0):
    return [f"ds_read_u16 v{vRN}, v{vAQ} offset:{128*o}", f"ds_read_u16 v{vRN+1}, v{vAQ} offset:{128*o+64}"]
def addr_p():
    return [f"v_mad_u32_u16 v{vPA+j}, v{vRS+j}, s{s256}, v{vC4+j}" for j in range(4)]
def addr_e():
    return [f"v_and_or_b32 v{vEA}, v{vRE}, s{sMask}, v{18 if 'ehalf' in cfg.x else vH16}"]
def addr_l():
    return [f"v_and_or_b32 v{vLA}, v{vRE}, 16, v{vCL}", f"v_cmp_gt_i32 vcc, 0, v{vRE}"]
def addr_se():
    return addr_p() + addr_e() + addr_l()
def flags_from_vcc(sF):
    if "nf2" in cfg.x: return [f"s_mov_b32 s{sF}, 0", f"s_mov_b32 s{sF+1}, 0"]
    return [f"s_lshr_b32 s{sF+1}, vcc_lo, 4", f"s_mov_b32 s{sF}, vcc_lo", f"s_or_b32 s{sF+1}, s{sF+1}, vcc_lo", f"s_or_b32 s{sF+1}, s{sF+1}, s{sSafe}"]
def addr_q(par):
    return [f"v_add_u32 v{vQA+2*par}, v{vRN}, v{vCQ}", f"v_add_u32 v{vQA+2*par+1}, v{vRN+1}, v{vCQ}"]
def e_load(par):
    return f"buffer_load_dwordx4 v[{EE+4*par}:{EE+4*par+3}], v{vEA}, s[{sE}:{sE+3}], 0 offen {cfg.e_pol}"
def mfmas(c0, Pset, Qset, epar):
    out = []
    zz = lambda c: f"v[{Z+16*c}:{Z+16*c+15}]"
    f4 = lambda r: f"v[{r}:{r+3}]"
    M = "v_mfma_f32_32x32x16_bf16"
    for i in range(2): out.append(f"{M} {zz(c0+i)}, {f4(EE+4*epar)}, {f4(W3+4*(c0+i))}, 0")
    for i in range(2): out.append(f"{M} {zz(c0+i)}, {f4(AQ)}, {f4(Qset+4*i)}, {zz(c0+i)}")
    for i in range(2): out.append(f"v_smfmac_f32_32x32x32_bf16 {zz(c0+i)}, {f4(AP)}, v[{Pset+8*i}:{Pset+8*i+7}], v{IDX}")
    return out
p2 = lambda r: f"v[{r}:{r+1}]"
def flush_code(a, c0, X, mid=(), wait=True, chk=()):
    t = vT + 8 * X
    for i in range(2):
        c = c0 + i
        a.e(f"v_rcp_f32 v{t+2*i}, v{DD+2*c}")
        a.e(f"v_rcp_f32 v{t+2*i+1}, v{DD+2*c+1}")
    for s in chk: a.e(s)
    for i in range(2):
        c = c0 + i
        a.e(f"v_max3_f32 v{vCHK}, v{DD+2*c}, v{DD+2*c+1}, v{vCHK}")
    for s in mid: a.e(s)
    if wait: a.e("s_waitcnt lgkmcnt(0)")
    for j in range(2):
        for i in range(2):
            c = c0 + i
            a.e(f"v_fmac_f32 v{ACC+c}, v{NN+2*c+j}, v{t+2*i+j}")

def half_step(a, ool, X, par, extras, tag):
    c0 = 2 * X
    sF0 = (32, 34)[par]
    if X == 0: mf = mfmas(2, PX, QX, par)
    else:      mf = mfmas(0, PY, QY, 1 - par)
    def keep(s):
        if "nodma" in cfg.x and (" lds" in s or "m0" in s or s == "s_nop 0"): return False
        if "noe" in cfg.x and s.startswith("buffer_load") and " lds" not in s: return False
        if "nods" in cfg.x and s.startswith("ds_read"): return False
        if "nowait" in cfg.x and s.startswith("s_waitcnt"): return False
        if "novm" in cfg.x and s.startswith("s_waitcnt vmcnt"): return False
        return True
    extras = {k: [s for s in v if keep(s)] for k, v in extras.items()}
    for s in extras.get("pre", []): a.e(s)
    if cfg.prio == 1: a.e(f"s_setprio {1 - X}")
    if cfg.prio == 2 and X == 0: a.e(f"s_setprio {1 - par}")
    for k in range(8):
        if cfg.prio == 3 and k in (0, 4): a.e(f"s_setprio {1 if k == 0 else 0}")
        if cfg.prio == 4: a.e("s_setprio 1")
        if cfg.prio == 5: a.e("s_setprio 0")
        if "nomfma" not in cfg.x and k < len(mf): a.e(mf[k])
        for i in range(2):
            z = Z + 16 * (c0 + i) + 2 * k
            a.e(f"v_exp_f32 v{EX+2*i}, v{z}")
            a.e(f"v_exp_f32 v{EX+2*i+1}, v{z+1}")
        for s in extras.get(k, []): a.e(s)
        if cfg.prio == 4: a.e("s_setprio 0")
        if cfg.prio == 5: a.e("s_setprio 1")
        bit = 8 * (k >> 1) + 2 * (k & 1)
        lf, lb = f"F_{tag}_{k}", f"R_{tag}_{k}"
        if "nobr" not in cfg.x:
            a.e(f"s_bitcmp1_b32 s{sSafe if 'nofl' in cfg.x else sF0+1}, {bit}")
            a.e(f"s_cbranch_scc1 {lf}")
        for i in range(2):
            c = c0 + i; z = Z + 16 * c + 2 * k
            a.e(f"v_pk_fma_f32 {p2(TT+2*i)}, {p2(z)}, {p2(DD+2*c)}, {p2(NN+2*c)}")
        for i in range(2):
            c = c0 + i
            a.e(f"v_pk_fma_f32 {p2(DD+2*c)}, {p2(DD+2*c)}, {p2(EX+2*i)}, {p2(DD+2*c)}")
        for i in range(2):
            c = c0 + i
            a.e(f"v_pk_fma_f32 {p2(NN+2*c)}, {p2(NN+2*c)}, {p2(EX+2*i)}, {p2(TT+2*i)}")
        a.label(lb)
        ool.label(lf)
        t = vT + 8 * X
        ex = "K2_LEND" if X else (f"EXA{par}_{k}" if k < 6 else f"R_{tag}_7")
        sal = ([f"s_bitcmp1_b32 s{sF0}, {bit+1}", f"s_cbranch_scc1 {ex}"] if k else []) + \
              [f"s_bitcmp1_b32 s{sF0}, {bit}", f"s_cselect_b32 s{sT}, -1, 0", f"s_bitcmp1_b32 s{sF0}, {bit+4}", f"s_cselect_b32 s{sT+1}, -1, 0"]
        rc = [f"v_rcp_f32 v{t+j}, v{DD+2*c0+j}" for j in range(4)]
        n = len(sal)
        for j in range(4):
            ool.e(rc[j])
            for x in sal[:(n + 3 - j) // 4 if False else 0]: pass
            cnt = (n // 4) + (1 if j < n % 4 else 0)
            for _ in range(cnt): ool.e(sal.pop(0))
        for i in range(2):
            c = c0 + i
            ool.e(f"v_max3_f32 v{vCHK}, v{DD+2*c}, v{DD+2*c+1}, v{vCHK}")
        ool.e(f"v_mov_b32_dpp v{t+6}, v{vQA+2*par+(k>>2)} row_newbcast:{4*(k&3)} row_mask:0xf bank_mask:0xf")
        nk = sum(1 for x in extras.get(k, []) if x.startswith("ds_")) if cfg.cw else 0
        if k == 0 and cfg.cw: pass
        elif k == 7 and cfg.cw: pass
        else: ool.e(f"s_waitcnt lgkmcnt({nk})")
        for j in range(2):
            for i in range(2):
                c = c0 + i
                ool.e(f"v_fmac_f32 v{ACC+c}, v{NN+2*c+j}, v{t+2*i+j}")
        ool.e(f"s_mov_b64 exec, s[{sT}:{sT+1}]")
        ool.e(f"ds_write2_b32 v{vCUR+X}, v{ACC+c0}, v{ACC+c0+1} offset0:{32*c0} offset1:{32*c0+32}")
        ool.e(f"v_lshl_add_u32 v{vCUR+X}, v{t+6}, 1, v{vCA}")
        ool.e(f"ds_read2_b32 v[{ACC+c0}:{ACC+c0+1}], v{vCUR+X} offset0:{32*c0} offset1:{32*c0+32}")
        ool.e("s_mov_b64 exec, -1")
        for i in range(2):
            c = c0 + i
            ool.e(f"v_pk_add_f32 {p2(DD+2*c)}, {p2(EX+2*i)}, 1.0 op_sel_hi:[1,0]")
        for i in range(2):
            c = c0 + i; z = Z + 16 * c + 2 * k
            ool.e(f"v_pk_mov_b32 {p2(NN+2*c)}, {p2(z)}, {p2(z)} op_sel:[0,1]")
        ool.e(f"s_branch {lb}")

def lds_fill(a, base, nbytes, vdata, vaddr16, ex):
    n = (nbytes + 15) // 16
    r = 0
    while n >= 512:
        a.e(f"ds_write_b128 v{vaddr16}, v[{vdata}:{vdata+3}] offset:{base + r*8192}")
        n -= 512; r += 1
    if n:
        a.e(f"s_movk_i32 s{sT}, {n}")
        a.e(f"v_cmp_gt_u32 vcc, s{sT}, v0")
        a.e(f"s_and_saveexec_b64 s[{ex}:{ex+1}], vcc")
        a.e(f"ds_write_b128 v{vaddr16}, v[{vdata}:{vdata+3}] offset:{base + r*8192}")
        a.e(f"s_mov_b64 exec, s[{ex}:{ex+1}]")

def reset_round(a, zero_agg):
    t = vT
    a.e(f"v_lshlrev_b32 v{t}, 4, v0")
    a.e(f"v_mov_b32 v{t+8}, 0\nv_mov_b32 v{t+9}, 0\nv_mov_b32 v{t+10}, 0\nv_mov_b32 v{t+11}, 0")
    lds_fill(a, CNT, 272, t+8, t, sX0)
    if zero_agg: lds_fill(a, AGG, 49 * 528, t+8, t, sX0)

def onehot4(a, dst, vJ, vcond_sgpr, t):
    a.e(f"v_and_b32 v{t}, 1, v{vJ}")
    a.e(f"v_lshlrev_b32 v{t}, 4, v{t}")
    a.e(f"v_mov_b32 v{t+1}, 0x3f80")
    a.e(f"v_lshlrev_b32 v{t}, v{t}, v{t+1}")
    if vcond_sgpr is not None:
        a.e(f"v_cndmask_b32 v{t}, 0, v{t}, s[{vcond_sgpr}:{vcond_sgpr+1}]")
    a.e(f"v_lshrrev_b32 v{t+1}, 1, v{vJ}")
    for i in range(4):
        a.e(f"v_cmp_eq_u32 vcc, {i}, v{t+1}")
        a.e("s_nop 1")
        a.e(f"v_cndmask_b32 v{dst+i}, 0, v{t}, vcc")

def gen_k2(a):
    ool = Asm()
    rare = Asm()
    RC = 160; RK = 172; NA = 184; EN = 212
    XF, WU1F, W2F, QACC = 64, 96, [128, 132, 136, 140, 160, 164, 168, 172], 212
    vLA0, vXA, vW3A, vW0 = vT + 20, vT + 21, vT + 22, vT + 23
    t = vT + 12
    kernel_head(a, NAME + "_kernel")
    load_args(a)
    a.e(f"v_lshrrev_b32 v{vT+1}, 2, v0")
    a.e(f"v_and_b32 v{vW0}, 3, v0")
    a.e("s_cmp_ge_u32 s2, 256")
    a.e("s_cbranch_scc1 K2_END")
    if cfg.dbg:
        a.e("v_mov_b32 v252, 0")
        a.e("s_memrealtime s[92:93]")
    idmap(a, sBin, 2, sT)
    a.e(f"v_mul_u32_u24 v{vEB}, 3200, v{vT+1}")
    a.e(f"v_lshlrev_b32 v{vT+4}, 4, v{vW0}")
    a.e(f"s_lshl_b32 s{sT+2}, s{sBin}, 7")
    a.e(f"s_add_u32 s{sT+2}, s{sT+2}, {cfg.wsoff + WS_S01}")
    a.e(f"v_lshl_add_u32 v{vT+2}, v{vT+1}, 15, v{vT+4}")
    a.e(f"s_mov_b32 s{sOT+2}, {124*32768+128}")
    a.e(f"s_mov_b32 s{sOT+3}, 0x20000")
    a.e(f"v_lshrrev_b32 v{vT}, 6, v0")
    a.e(f"v_and_b32 v{vL}, 63, v0")
    a.e(f"v_readfirstlane_b32 s{sW}, v{vT}")
    a.e(f"s_mul_i32 s{sT+3}, s{sBin}, 12544")
    a.e(f"s_sub_u32 s{sT+4}, 3200000, s{sT+3}")
    a.e(f"s_min_u32 s{sT+4}, s{sT+4}, 12544")
    a.e(f"v_mov_b32 v{vT+8}, 0\nv_mov_b32 v{vT+9}, 0\nv_mov_b32 v{vT+10}, 0\nv_mov_b32 v{vT+11}, 0")
    a.e(f"v_lshlrev_b32 v{vW3A}, 4, v{vL}")
    a.e("s_mov_b64 exec, 0x1ffff")
    a.e(f"ds_write_b128 v{vW3A}, v[{vT+8}:{vT+11}] offset:{CNT}")
    a.e("s_mov_b64 exec, -1")
    WU1L = 32768
    NPF = cfg.prefetchP
    vXD, vW3D = vT + 18, vT + 7
    sM = sX0 + 4
    c = Asm(); x_dma(c, sX, sW, vL, STG, vXD, sM + 2, strided=True)
    for x in c.lines[:-4]: a.e(x)
    a.e(f"s_add_u32 s{sM+3}, s{sM+3}, {STG}")
    xd = c.lines[-2:]
    w_lane_const(a, vWC, vL, t)
    a.e(f"s_lshl_b32 s{sW4k}, s{sW}, 12")
    a.e(f"s_lshl_b32 s{sM0}, s{sW}, 13")
    a.e(f"s_add_u32 s{sM}, s{sM0}, {STG + 4096}")
    a.e(f"s_add_u32 s{sM0}, s{sM0}, {STG - 256}")
    a.e(f"s_add_u32 s{sM+1}, s{sW4k}, {WU1L}")
    a.e(f"v_lshlrev_b32 v{vW3D}, 4, v0")
    a.e(f"s_and_b32 s{sT+1}, s{sW}, 4")
    a.e(f"s_add_u32 s{sT}, s{sW}, s{sT+1}")
    a.e(f"s_lshl_b32 s{sT}, s{sT}, 10")
    a.e(f"s_add_u32 m0, s{sT}, {STG + 32768}")
    a.e(f"s_mov_b32 s{sR+2}, 4096")
    a.e(f"s_mov_b32 s{sR+3}, 0x20000")
    a.e("s_waitcnt lgkmcnt(0)")
    a.e(f"s_add_u32 s{sOT}, s{S_WS}, s{sT+2}")
    a.e(f"s_addc_u32 s{sOT+1}, s{S_WS+1}, 0")
    a.e(f"buffer_load_dwordx4 v[{RC}:{RC+3}], v{vT+2}, s[{sOT}:{sOT+3}], 0 offen {cfg.s_pol}")
    a.e(f"buffer_load_dwordx4 v[{RC+4}:{RC+7}], v{vT+2}, s[{sOT}:{sOT+3}], 0 offen offset:64 {cfg.s_pol}")
    a.e(f"s_add_u32 s{sR}, s{S_WS}, {cfg.wsoff + WS_W3F}")
    a.e(f"s_addc_u32 s{sR+1}, s{S_WS+1}, 0")
    a.e(f"buffer_load_dwordx4 v{vW3D}, s[{sR}:{sR+3}], 0 offen lds")
    if cfg.dbg:
        a.e("v_writelane_b32 v252, s92, 0")
        a.e("s_getreg_b32 s90, hwreg(HW_REG_XCC_ID)")
        a.e("s_add_u32 s90, s90, 1")
        a.e("v_writelane_b32 v252, s90, 39")
    stamp(a, 40, 252)
    srd(a, sX, S_X, off_s=sT+3, size=f"s{sT+4}")
    srd(a, sO, S_OUT, off_s=sT+3, size=f"s{sT+4}")
    srd(a, sWm, S_WM, off_c=32768, size=32768)
    srd(a, sWu, S_WU, size=256*256)
    if cfg.spf:
        a.e(f"s_lshr_b32 s{sT}, s2, 3")
        a.e(f"s_mul_i32 s{sT}, s{sT}, {781*128}")
        a.e(f"s_mul_i32 s{sT+1}, s{sW}, {cfg.spf*128}")
        a.e(f"s_add_u32 s{sT}, s{sT}, s{sT+1}")
        a.e(f"s_add_u32 s{sT}, s{sT}, {cfg.wsoff + WS_P + (781 - 8*cfg.spf)*128}")
        a.e(f"s_add_u32 s{sT}, s{S_WS}, s{sT}")
        a.e(f"s_addc_u32 s{sT+1}, s{S_WS+1}, 0")
    a.e("s_barrier")
    for j in range(cfg.spf):
        a.e(f"s_load_dword s78, s[{sT}:{sT+1}], {hex(128*j)}")
    stamp(a, 41, 252)
    def mix(lines, extra, first=0):
        out = []; n = len(lines); m = len(extra); k = 0; full = True
        for i, x in enumerate(lines):
            while full and k < m and k * n <= i * m: out += extra[k]; k += 1
            out.append(x)
            if "exec" in x.split(",")[0]: full = x.strip() == "s_mov_b64 exec, -1"
        return out + sum(extra[k:], [])
    dm = [[f"s_mov_b32 m0, s{sM+3}", "s_nop 0", xd[0]], [xd[1]]]
    for j, srdw in enumerate((sWm, sWu)):
        for i in range(4):
            o = f" offset:{1024*i}" if i else ""
            dm.append(([f"s_mov_b32 m0, s{sM+j}", "s_nop 0"] if i == 0 else []) + [f"buffer_load_dwordx4 v{vWC}, s[{srdw}:{srdw+3}], s{sW4k} offen{o} lds"])
    c = Asm(); sav = a.lines; a.lines = c.lines
    a.e(f"v_and_b32 v{t+1}, 7, v{vL}")
    onehot4(a, AQ, t+1, None, t+2)
    a.e(f"v_lshlrev_b32 v{t+2}, 5, v{vL}")
    a.e(f"v_and_b32 v{vM}, 31, v0")
    a.e(f"v_lshlrev_b32 v{vW0}, 2, v{vW0}")
    a.e("s_mov_b64 exec, 0x1ff")
    a.e(f"ds_write_b128 v{t+2}, v[{vT+8}:{vT+11}] offset:{LUT+16}")
    a.e("s_mov_b64 exec, 0x100")
    a.e(f"ds_write_b128 v{t+2}, v[{vT+8}:{vT+11}] offset:{LUT}")
    a.e("s_mov_b64 exec, 0xff")
    a.e(f"ds_write_b128 v{t+2}, v[{AQ}:{AQ+3}] offset:{LUT}")
    a.e("s_mov_b64 exec, -1")
    srd(a, sP, S_WS, off_c=cfg.wsoff + WS_P - 3072, size=PSIZE)
    if NPF:
        a.e(f"s_lshr_b32 s{sT}, s2, 3")
        a.e(f"s_mul_i32 s{sT}, s{sT}, {781*128}")
        a.e(f"s_add_u32 s{sT}, s{sT}, 3072")
        a.e(f"v_lshl_add_u32 v{vPF}, v{vL}, 3, s{sW}")
        if cfg.pfn < 512:
            a.e(f"s_movk_i32 s{sT+1}, {cfg.pfn}")
            a.e(f"v_cmp_gt_u32 vcc, s{sT+1}, v{vPF}")
        a.e(f"v_lshl_add_u32 v{vPF}, v{vPF}, 7, s{sT}")
        if NPF > 1:
            a.e(f"v_add_u32 v{vPF+1}, 0x10000, v{vPF}")
        if cfg.pfn < 512:
            a.e(f"v_mov_b32 v{vT+3}, 0x7ffffff0")
            a.e(f"v_cndmask_b32 v{vPF+NPF-1}, v{vT+3}, v{vPF+NPF-1}, vcc")
    if cfg.pfe:
        a.e(f"s_mul_i32 s{sT}, s2, 51200")
        a.e(f"v_lshl_add_u32 v{vPF+1}, v{vL}, 3, s{sW}")
        a.e(f"s_movk_i32 s{sT+1}, {cfg.pfe}")
        a.e(f"v_cmp_gt_u32 vcc, s{sT+1}, v{vPF+1}")
        a.e(f"v_lshl_add_u32 v{vPF+1}, v{vPF+1}, 7, s{sT}")
        a.e(f"v_mov_b32 v{vT+3}, 0x7ffffff0")
        a.e(f"v_cndmask_b32 v{vPF+1}, v{vT+3}, v{vPF+1}, vcc")
    NPP = NPF
    if cfg.pfm:
        a.e(f"v_lshl_add_u32 v{vPF+1}, v{vL}, 3, s{sW}")
        a.e(f"s_movk_i32 s{sT+1}, {cfg.pfm}")
        a.e(f"v_cmp_gt_u32 vcc, s{sT+1}, v{vPF+1}")
        a.e(f"s_add_u32 s{sT}, s{sT}, 0x10000")
        a.e(f"v_lshl_add_u32 v{vPF+1}, v{vPF+1}, 7, s{sT}")
        a.e(f"v_cndmask_b32 v{vPF+1}, v{vT+3}, v{vPF+1}, vcc")
        dm[cfg.pfmpos] = dm[cfg.pfmpos] + [f"buffer_load_dword v37, v{vPF+1}, s[{sP}:{sP+3}], 0 offen"]
    def pf(pos):
        if cfg.pfpos == pos:
            if cfg.pfe: a.e(f"buffer_load_dword v37, v{vPF+1}, s[{sE}:{sE+3}], 0 offen {cfg.et_pol}")
            for i in range(NPP): a.e(f"buffer_load_dword v37, v{vPF+i}, s[{sP}:{sP+3}], 0 offen")
    if cfg.pfe: NPF += 1
    a.e(f"s_mov_b32 s{sLim}, 32")
    a.e(f"s_mov_b32 s{sDone}, 0")
    wfrag_const(a, vWA, vL, sW, t, sT)
    a.e(f"v_add_u32 v{vW3A}, {STG + 32768}, v{vW3A}")
    a.e(f"v_lshrrev_b32 v{t}, 5, v{vL}")
    a.e(f"v_and_b32 v{t+1}, 15, v{vL}")
    a.e(f"v_xor_b32 v{t+2}, v{t}, v{t+1}")
    a.e(f"v_lshlrev_b32 v{t+2}, 4, v{t+2}")
    a.e(f"v_lshl_add_u32 v{vXA}, v{t+1}, 8, v{t+2}")
    a.e(f"v_bfe_u32 v{t+2}, v{vL}, 4, 1")
    a.e(f"v_lshl_add_u32 v{vXA}, v{t+2}, 13, v{vXA}")
    a.e(f"s_lshr_b32 s{sT}, s{sW}, 2")
    a.e(f"s_lshl_b32 s{sT}, s{sT}, 14")
    a.e(f"s_add_u32 s{sT}, s{sT}, {STG}")
    a.e(f"v_add_u32 v{vXA}, s{sT}, v{vXA}")
    srd(a, sE, S_E, size=ESIZE)
    a.e(f"s_mov_b32 s{sSafe}, 0")
    a.e(f"s_mov_b32 s{sFirst}, 1")
    a.e(f"s_mov_b32 s{sMask}, {'0x4003ffe0' if 'esm' in cfg.x else '0x7fffffe0'}")
    a.e(f"v_mov_b32 v{vCL}, {LUT + 256}")
    a.e(f"v_bfe_u32 v{t+1}, v{vL}, 3, 2")
    a.e(f"v_bfe_u32 v{t+3}, v{vL}, 1, 1")
    a.e(f"v_lshl_add_u32 v{t+1}, v{t+1}, 1, v{t+3}")
    a.e(f"v_lshlrev_b32 v{t+1}, 5, v{t+1}")
    a.e("s_mov_b32 exec_lo, 0x0f0f0f0f\ns_mov_b32 exec_hi, 0xf0f0f0f0")
    a.e(f"v_add_u32 v{vCL}, {LUT}, v{t+1}")
    a.e("s_mov_b64 exec, -1")
    a.e(f"v_lshlrev_b32 v{vH16}, 4, v{t}")
    if 'ehalf' in cfg.x: a.e(f"v_lshlrev_b32 v18, 30, v{t}")
    a.e(f"v_and_b32 v{t+1}, 3, v{vL}")
    a.e(f"v_lshlrev_b32 v{vCQ}, 3, v{t+1}")
    a.e(f"v_lshl_add_u32 v{vCQ}, v{t+2}, 5, v{vCQ}")
    a.e(f"v_add_u32 v{vCQ}, {QL}, v{vCQ}")
    a.e(f"v_lshlrev_b32 v{vCA}, 2, v{vM}")
    a.e(f"v_mad_u32_u24 v{vSD}, v{vH16}, 33, v{vCA}")
    a.e(f"s_mul_i32 s{sT}, s{sW}, 1056")
    a.e(f"s_add_u32 s{sT}, s{sT}, {SIDE}")
    a.e(f"v_add_u32 v{vSD}, s{sT}, v{vSD}")
    a.e(f"v_lshlrev_b32 v{t+2}, 6, v{t+2}")
    a.e(f"v_sub_u32 v{vCA}, v{vCA}, v{t+2}")
    a.e(f"v_add_u32 v{vCA}, {AGG - 2*QL}, v{vCA}")
    a.e(f"v_bfe_u32 v{t+1}, v{vL}, 2, 2")
    a.e(f"v_lshl_add_u32 v{vRP0}, v{t+1}, 7, v{vCQ}")
    a.e(f"v_lshl_add_u32 v{vRP0}, v{t}, 11, v{vRP0}")
    a.e(f"v_and_b32 v{t+1}, 8, v{vL}")
    a.e(f"v_lshl_add_u32 v{vRP0}, v{t+1}, 3, v{vRP0}")
    a.e(f"s_add_u32 s{sT}, s{sM0}, {256 - QL}")
    a.e(f"v_add_u32 v{vRP0}, s{sT}, v{vRP0}")
    a.e(f"v_xor_b32 v{vRP1}, 64, v{vRP0}")
    a.e(f"s_movk_i32 s{s256}, 256")
    a.e(f"v_mov_b32 v{vCHK}, 0")
    def round_consts(a):
        a.e(f"v_lshrrev_b32 v{t}, 3, v{vM}")
        a.e(f"v_and_b32 v{t+1}, 3, v{vL}")
        a.e(f"v_lshl_add_u32 v{vAE}, v{t}, 2, v{t+1}")
        a.e(f"v_lshlrev_b32 v{vAE}, 3, v{vAE}")
        a.e(f"v_bfe_u32 v{t+1}, v{vL}, 2, 2")
        a.e(f"v_lshlrev_b32 v{vAQ}, 4, v{t+1}")
        a.e(f"v_and_b32 v{vAP}, 24, v{vL}")
        a.e(f"v_and_b32 v{t}, 7, v{vL}")
        a.e(f"v_bfe_u32 v{t+1}, v{vL}, 4, 1")
        a.e(f"v_lshlrev_b32 v{t}, 4, v{t}")
        a.e(f"v_lshlrev_b32 v{t+1}, 6, v{t+1}")
        a.e(f"v_xor_b32 v{vC4+3}, v{t}, v{t+1}")
        for j in range(3):
            a.e(f"v_add_u32 v{vC4+j}, {1024*(3-j)}, v{vC4+3}")
        a.e(f"v_mov_b32 v{vT}, 1")
        a.e(f"v_mov_b32 v{vT+1}, {FLG}")
        a.e(f"v_lshlrev_b32 v{vT+2}, 2, v{vL}")
        a.e(f"s_mov_b32 s{sT}, 0x420000")
        a.e(f"s_brev_b32 s{sT+6}, 1")
        a.e(f"s_add_u32 s{sT+7}, s{sDone}, s{sLim}")
        a.e(f"v_cmp_ne_u32 s[{sX0+2}:{sX0+3}], 0, v{vW0}")
    round_consts(a)
    a.lines = sav
    for x in mix(c.lines, dm): a.e(x)
    stamp(a, 1, 252)
    pf(1)
    stamp(a, 4, 252)
    a.e(f"s_waitcnt vmcnt({11 + (1 if cfg.pfm else 0) + (NPF if cfg.pfpos <= 1 else 0)})")
    stamp(a, 5, 252)
    a.e(f"v_mov_b32_dpp v{vOC}, v{RC} quad_perm:[0,0,0,0] row_mask:0xf bank_mask:0xf")
    a.label("K2_COUNT")
    def groups(fn, lab, order=range(8), extra=(), pre=()):
        c = Asm(); sav = a.lines; a.lines = c.lines
        for i in order: fn(i)
        a.lines = sav
        for x in mix(c.lines, list(extra)): a.e(x)
    KK = lambda i: 16 * (i >> 2) + (i & 3)
    na = lambda i: f"v_lshlrev_b32_sdwa v{NA+i}, 2, v{RC+i} dst_sel:BYTE_0 dst_unused:UNUSED_PAD src0_sel:DWORD src1_sel:BYTE_0"
    a.e(na(1))
    a.e(f"v_min_u32 v{vREM}, s{sT+7}, v{vOC}")
    a.e(f"v_sub_u32 v{vREM}, v{vREM}, v{vW0}")
    a.e(f"v_cmp_lt_u32 s[{sX0+6}:{sX0+7}], s{sT+7}, v{vOC}")
    a.e(f"v_cmp_lt_i32 s[{sX0}:{sX0+1}], 0, v{vREM}")
    a.e(na(0))
    def f_cnt(i):
        a.e(f"v_cmpx_lt_i32 vcc, {KK(i)}, v{vREM}")
        if i < 7: a.e(na(i + 1))
        a.e(f"ds_add_rtn_u32 v{RK+i}, v{NA+i}, v{vT} offset:{CNT}")
    groups(f_cnt, "K2_G1", order=range(1, 8))
    a.e(f"s_and_b64 s[{sX0}:{sX0+1}], s[{sX0}:{sX0+1}], s[{sX0+2}:{sX0+3}]")
    a.e(f"s_mov_b64 exec, s[{sX0}:{sX0+1}]")
    a.e(f"ds_add_rtn_u32 v{RK}, v{NA}, v{vT} offset:{CNT}")
    a.e(f"s_mov_b64 exec, s[{sX0+6}:{sX0+7}]")
    a.e(f"ds_write_b32 v{vT+1}, v{vT}")
    a.e("s_mov_b64 exec, -1")
    def f_ent(i):
        e0 = EN + 2 * i
        a.e(f"v_lshrrev_b32 v{e0}, 20, v{RC+i}")
        a.e(f"v_add_lshl_u32 v{e0}, v{e0}, v{vEB}, 5")
    groups(f_ent, "K2_G2")
    pf(2)
    a.e("s_waitcnt lgkmcnt(0)")
    a.e("s_barrier")
    stamp(a, 6, 252)
    a.e(f"ds_read_b32 v{vT+6}, v{vT+2} offset:{CNT}")
    a.e(f"ds_read_b32 v{vT+5}, v{vT+1}")
    def f_ent2(i):
        e1 = EN + 1 + 2 * i
        a.e(f"v_bfe_u32 v{e1}, v{RC+i}, 6, 14")
        a.e(f"v_mad_u32_u24 v{e1}, v{NA+i}, s{sT}, v{e1}")
    groups(f_ent2, "K2_G5")
    a.e("s_waitcnt lgkmcnt(0)")
    a.e(f"v_add_u32 v{vT+3}, 1, v{vT+6}")
    a.e(f"v_lshrrev_b32 v{vT+3}, 1, v{vT+3}")
    a.e(f"v_mov_b32 v{vT+4}, v{vT+3}")
    a.e(f"v_readfirstlane_b32 s{sMore}, v{vT+5}")
    fl = []
    for i in range(8):
        fl.append(f"v_add_u32 v{RC+i}, -1, v{RK+i}")
        fl.append(f"v_and_or_b32 v{EN+2*i}, v{RC+i}, s{sT+6}, v{EN+2*i}")
    v = vT + 4
    dpp = [f"v_add_u32_dpp v{v}, v{v}, v{v} row_shr:{sh} row_mask:0xf bank_mask:0xf bound_ctrl:0" for sh in (1, 2, 4, 8)]
    dpp += [f"v_add_u32_dpp v{v}, v{v}, v{v} row_bcast:15 row_mask:0xa bank_mask:0xf", f"v_add_u32_dpp v{v}, v{v}, v{v} row_bcast:31 row_mask:0xc bank_mask:0xf"]
    for j in range(6):
        a.e(fl[2*j]); a.e(fl[2*j+1]); a.e(dpp[j])
    a.e(fl[12])
    a.e(f"v_readlane_b32 s{sT+5}, v{vT+4}, 63")
    a.e(f"v_sub_u32 v{vT+4}, v{vT+4}, v{vT+3}")
    a.e(f"v_lshlrev_b32 v{vT+4}, 4, v{vT+4}")
    def f_perm(i):
        a.e(f"ds_bpermute_b32 v{NA+i}, v{NA+i}, v{vT+4}")
        if i >= 8:
            a.e(f"v_add_u32 v{RC+i}, -1, v{RK+i}")
            a.e(f"v_and_or_b32 v{EN+2*i}, v{RC+i}, s{sT+6}, v{EN+2*i}")
    groups(f_perm, "K2_G3")
    for x in fl[13:]: a.e(x)
    pf(3)
    a.e(f"s_cmp_gt_u32 s{sT+5}, 1025")
    a.e("s_cbranch_scc1 K2_TOOBIG")
    a.e(f"s_add_u32 s{sT}, s{sT+5}, 7")
    a.e(f"s_lshr_b32 s{sT}, s{sT}, 3")
    if cfg.ratio:
        a.e(f"s_mul_i32 s{sT+1}, s{sT}, {cfg.ratio}")
        a.e(f"s_add_u32 s{sT+1}, s{sT+1}, 63")
        a.e(f"s_lshr_b32 s{sT+1}, s{sT+1}, 6")
    else:
        a.e(f"s_add_u32 s{sT+1}, s{sT}, {cfg.bias}")
        a.e(f"s_lshr_b32 s{sT+1}, s{sT+1}, 4")
        a.e(f"s_lshl_b32 s{sT+1}, s{sT+1}, 3")
    a.e(f"s_min_u32 s{sT+1}, s{sT+1}, s{sT}")
    a.e(f"s_sub_u32 s{sT+2}, s{sT}, s{sT+1}")
    a.e(f"s_and_b32 s{sT+3}, s{sW}, 3")
    a.e(f"s_mul_i32 s{sT+3}, s{sT+3}, s{sT}")
    a.e(f"s_cmp_lt_u32 s{sW}, 4")
    a.e(f"s_cselect_b32 s{sL}, s{sT+1}, s{sT+2}")
    a.e(f"s_cselect_b32 s{sT+4}, 0, s{sT+1}")
    a.e(f"s_add_u32 s{sT+3}, s{sT+3}, s{sT+4}")
    a.e(f"s_lshl_b32 s{sT+3}, s{sT+3}, 5")
    a.e(f"s_add_u32 s{sT+3}, s{sT+3}, {LIST}")
    a.e(f"s_lshl_b32 s{sT+4}, s{sL}, 4")
    a.e(f"s_add_u32 s{sNT}, s{sL}, 7")
    a.e(f"s_lshr_b32 s{sNT}, s{sNT}, 3")
    a.e(f"s_cmp_eq_u32 s{sW}, 7")
    a.e("s_cbranch_scc0 K2_NODUM")
    a.e(f"v_mov_b32 v{vT+8}, 0x7ffffff0\nv_mov_b32 v{vT+9}, 0xffff\nv_mov_b32 v{vT+10}, 0x7ffffff0\nv_mov_b32 v{vT+11}, 0xffff")
    a.e(f"v_lshl_add_u32 v{vT+7}, v{vT+6}, 3, v{vT+4}")
    a.e(f"v_and_b32 v{vT+6}, 1, v{vT+6}")
    a.e(f"v_cmp_eq_u32 vcc, 1, v{vT+6}")
    a.e("s_mov_b64 exec, vcc")
    a.e(f"ds_write_b64 v{vT+7}, v[{vT+8}:{vT+9}] offset:{LIST}")
    a.e("s_mov_b32 exec_lo, -1\ns_mov_b32 exec_hi, 0x7f")
    a.e(f"v_add_lshl_u32 v{vT+7}, v{vL}, s{sT+5}, 4")
    a.e(f"ds_write_b128 v{vT+7}, v[{vT+8}:{vT+11}] offset:{LIST}")
    a.e("s_mov_b64 exec, -1")
    a.label("K2_NODUM")
    a.e("s_waitcnt lgkmcnt(0)")
    a.e(f"v_lshl_add_u32 v{NA}, v{RK}, 3, v{NA}")
    def f_place(i):
        a.e(f"v_cmpx_lt_i32 vcc, {KK(i)}, v{vREM}")
        a.e(f"v_lshl_add_u32 v{NA+i}, v{RK+i}, 3, v{NA+i}")
        a.e(f"ds_write_b64 v{NA+i}, v[{EN+2*i}:{EN+1+2*i}] offset:{LIST}")
    groups(f_place, "K2_G4", order=range(1, 8))
    a.e(f"s_mov_b64 exec, s[{sX0}:{sX0+1}]")
    a.e(f"ds_write_b64 v{NA}, v[{EN}:{EN+1}] offset:{LIST}")
    a.e("s_mov_b64 exec, -1")
    a.e(f"v_add_u32 v{vAE}, s{sT+3}, v{vAE}")
    a.e(f"v_add3_u32 v{vAP}, v{vAP}, s{sT+3}, 4")
    a.e(f"v_add3_u32 v{vAQ}, v{vAQ}, s{sT+3}, 6")
    a.e("s_mov_b32 exec_lo, 0xf0f0f0f0\ns_mov_b32 exec_hi, 0xf0f0f0f0")
    a.e(f"v_add_u32 v{vAE}, s{sT+4}, v{vAE}")
    a.e("s_mov_b32 exec_lo, 0\ns_mov_b32 exec_hi, -1")
    a.e(f"v_add_u32 v{vAP}, s{sT+4}, v{vAP}")
    a.e(f"v_add_u32 v{vAQ}, s{sT+4}, v{vAQ}")
    a.e("s_mov_b64 exec, -1")
    a.e(f"s_sub_u32 s{sT+1}, s{sT+1}, 1")
    a.e(f"s_sub_u32 s{sT+2}, s{sT+2}, 1")
    a.e(f"s_min_u32 s{sT+1}, s{sT+1}, s{sT+2}")
    a.e(f"v_cmp_lt_u32 s[{sSusp}:{sSusp+1}], s{sT+1}, v{vT+3}")
    a.e(f"s_cmp_eq_u32 s{sNT}, 0")
    a.e(f"s_cselect_b32 s{sP+2}, 0, {PSIZE}")
    a.e(f"s_cselect_b32 s{sE+2}, 0, {ESIZE}")
    a.e(f"s_cmp_eq_u32 s{sFirst}, 0")
    a.e(f"s_waitcnt vmcnt({NPF}) lgkmcnt(0)")
    a.e("s_barrier")
    a.e("s_cbranch_scc1 K2_PRO2")
    stamp(a, 7, 252)
    adv = [f"v_add_u32 v{r}, s{s256}, v{r}" for r in (vAE, vAP, vAQ)]
    def early_e1():
        return addr_e() + [f"s_cmp_lt_u32 s{sNT}, 2", f"s_cselect_b32 s{sE+2}, 0, s{sE+2}", e_load(1)]
    def prologue(a, first):
        for s in list_reads_se() + list_reads_n(): a.e(s)
        if first:
            for st in range(8):
                if st == 0: a.e(f"ds_read_b128 v[{XF}:{XF+3}], v{vXA}")
                else:
                    r = vT + (st & 1)
                    a.e(f"v_xor_b32 v{r}, {32*st}, v{vXA}")
                    a.e(f"ds_read_b128 v[{XF+4*st}:{XF+4*st+3}], v{r}")
        a.e(f"s_waitcnt lgkmcnt({8 if first else 0})")
        for s in addr_se() + addr_q(0): a.e(s)
        for s in list_reads_se(1): a.e(s)
        for s in flags_from_vcc(sF0): a.e(s)
        d0 = dma_ops(0, "alt"); d1 = dma_ops(1)
        fr = Asm()
        if first:
            a.e(f"v_add_u32 v{vT+3}, {STG + 4096}, v{vWA}")
            wfrag_read(fr, W2F, vT+3, 0, 8192)
            wfrag_read(fr, WU1F, vWA, WU1L)
            for c in range(4):
                fr.e(f"ds_read_b128 v[{W3+4*c}:{W3+4*c+3}], v{vW3A} offset:{1024*c}")
        n4 = len(fr.lines) // 4
        if cfg.e0f: a.e(e_load(0))
        for s in d0[0] + fr.lines[:n4] + d0[1] + fr.lines[n4:2*n4]: a.e(s)
        if not cfg.e0f: a.e(e_load(0))
        for s in fr.lines[2*n4:3*n4]: a.e(s)
        a.e(f"v_cmp_ne_u32 vcc, v{vLA}, v{vCL}")
        a.e(f"v_mov_b32_dpp v{vFA}, v{vQA} row_newbcast:0 row_mask:0xf bank_mask:0xf")
        a.e(f"v_mov_b32 v{vLA0}, v{vLA}")
        for s in d0[2] + fr.lines[3*n4:]: a.e(s)
        a.e(f"s_cmp_eq_u32 s{sNT}, 0")
        a.e(f"s_cselect_b32 s{sDm}, -1, vcc_lo")
        a.e(f"v_lshl_add_u32 v{vFA}, v{vFA}, 1, v{vCA}")
        for s in d0[3]: a.e(s)
        if first:
            a.e(f"s_lshr_b32 s{sT+1}, s{sW}, 2")
            a.e(f"s_lshl_b32 s{sT+1}, s{sT+1}, 5")
            a.e(f"v_add_u32 v{vT+1}, s{sT+1}, v{vM}")
            a.e(f"v_mul_u32_u24 v{vT+2}, 264, v{vT+1}")
            a.e(f"v_lshl_add_u32 v{vT+2}, v{vH16}, 1, v{vT+2}")
            a.e(f"s_and_b32 s{sT+1}, s{sW}, 3")
            a.e(f"s_lshl_b32 s{sT+1}, s{sT+1}, 6")
            a.e(f"v_add_u32 v{vT+2}, s{sT+1}, v{vT+2}")
            a.e(f"v_cmp_gt_u32 s[{sX0}:{sX0+1}], 49, v{vT+1}")
            a.e(f"v_lshlrev_b32 v{vT}, 4, v0")
            a.e(f"v_mov_b32 v{vT+8}, 0\nv_mov_b32 v{vT+9}, 0\nv_mov_b32 v{vT+10}, 0\nv_mov_b32 v{vT+11}, 0")
            a.e(f"s_movk_i32 s{sT+1}, {49*528//16 - 1536}")
            a.e(f"v_cmp_gt_u32 s[{sX0+2}:{sX0+3}], s{sT+1}, v0")
            a.e(f"s_mov_b32 s{sT}, {LOG2E_NEG}")
            a.e(f"s_mov_b32 s{sT+1}, {LOG2E_NEG}")
            stamp(a, 44, 252)
            a.e("s_waitcnt lgkmcnt(0)")
            g = Asm(); gemm8(g, QACC, W2F, XF)
            for x in g.lines: a.e(x)
            g = Asm(); gemm8(g, ACX, WU1F, XF)
            q = [f"v_mul_f32 v{QACC+i}, s{sT}, v{QACC+i}" for i in range(16)] + [f"v_cvt_pk_bf16_f32 v{QACC+i}, v{QACC+2*i}, v{QACC+1+2*i}" for i in range(8)]
            a.e(g.lines[0])
            if cfg.e1e:
                for x in early_e1(): a.e(x)
                a.e("s_nop 5")
            else:
                a.e("s_nop 9")
            for j in range(3):
                a.e(g.lines[1+j])
                for x in q[j*8:j*8+8]: a.e(x)
            a.e(f"s_mov_b64 exec, s[{sX0}:{sX0+1}]")
            for gg in range(4):
                a.e(f"ds_write_b64 v{vT+2}, v[{QACC+2*gg}:{QACC+1+2*gg}] offset:{QL + 8*gg}")
            a.e("s_mov_b64 exec, -1")
            a.e("s_barrier")
            for j in range(3):
                a.e(f"ds_write_b128 v{vT}, v[{vT+8}:{vT+11}] offset:{AGG + j*8192}")
            a.e(g.lines[4])
            a.e(f"s_mov_b64 exec, s[{sX0+2}:{sX0+3}]")
            a.e(f"ds_write_b128 v{vT}, v[{vT+8}:{vT+11}] offset:{AGG + 3*8192}")
            a.e("s_mov_b64 exec, -1")
            for s in d1[0]: a.e(s)
            a.e(g.lines[5])
            a.e("s_waitcnt lgkmcnt(0)")
            a.e("s_barrier")
            stamp(a, 45, 252)
            for j in range(1, 4):
                for s in d1[j]: a.e(s)
                if j < 3: a.e(g.lines[5+j])
        else:
            if cfg.e1e:
                a.e("s_waitcnt lgkmcnt(0)")
                for x in early_e1(): a.e(x)
            for s in sum(d1, []): a.e(s)
        a.e(f"s_cmp_lt_u32 s{sNT}, 2")
        a.e(f"s_cselect_b32 s{sP+2}, 0, s{sP+2}")
        a.e(f"s_cselect_b32 s{sE+2}, 0, s{sE+2}")
        if not first: a.e("s_waitcnt lgkmcnt(0)")
        for s in addr_se(): a.e(s)
        for s in list_reads_se(2) + list_reads_n(1): a.e(s)
        for s in flags_from_vcc(sF1): a.e(s)
    prologue(a, True)
    rare.label("K2_PRO2")
    rare.e("s_waitcnt vmcnt(0)")
    prologue(rare, False)
    rare.e("s_branch K2_NOX")
    stamp(a, 42, 252)
    for i in range(8):
        a.e(f"v_pk_mul_f32 {p2(ACX+2*i)}, {p2(ACX+2*i)}, s[{sT}:{sT+1}]")
    a.label("K2_NOX")
    stamp(a, 43, 252)
    a.e(f"s_cmp_eq_u32 s{sNT}, 0")
    a.e("s_cbranch_scc1 K2_NOTILES")
    a.e(f"ds_read_b128 v[{AQ}:{AQ+3}], v{vLA0}")
    for s in qfrag_reads(QY, 0, 0) + qfrag_reads(QX, 1, 0): a.e(s)
    if cfg.t1pos == 1:
        if not cfg.e1e: a.e(e_load(1))
        dma_half(a, 0)
    for i in range(4): a.e(f"v_mov_b32 v{AP+i}, 0")
    for i in range(4):
        shf = 16 * (i >> 1) + 4 * (i & 1)
        a.e(f"s_mov_b32 exec_lo, {hex(0xf << shf)}\ns_mov_b32 exec_hi, {hex(0xf << (shf + 8))}")
        a.e(f"v_mov_b32 v{AP+i}, 0x3f80")
    a.e("s_mov_b64 exec, -1")
    a.e(f"v_and_b32 v{IDX}, 3, v{vL}")
    a.e(f"v_mul_u32_u24 v{IDX}, 0x5555, v{IDX}")
    a.e(f"s_add_u32 s{sMA}, s{sM0}, {4096 - 128 + 256}")
    a.e(f"s_add_u32 s{sMB}, s{sM0}, 256")
    a.e(f"s_and_b32 s{sT}, s{sL}, 6")
    a.e(f"s_and_b32 s{sT+1}, s{sL}, 1")
    a.e(f"s_lshl1_add_u32 s{sT}, s{sT}, s{sT+1}")
    a.e(f"s_lshl_b32 s{sT}, s{sT}, 1")
    a.e(f"s_cselect_b32 s{sT+1}, 1, 0")
    a.e(f"s_lshl_b32 s{sEX+1}, s{sT+1}, s{sT}")
    a.e(f"s_lshl_b32 s{sEX}, s{sEX+1}, 1")
    a.e(f"s_cmp_eq_u32 s{sNT}, 1")
    a.e(f"s_cselect_b64 s[{sT}:{sT+1}], s[{sEX}:{sEX+1}], 0")
    a.e(f"s_or_b64 s[{sF0}:{sF0+1}], s[{sF0}:{sF0+1}], s[{sT}:{sT+1}]")
    for c in range(4):
        a.e(f"v_mov_b32 v{NN+2*c}, 0\nv_mov_b32 v{NN+2*c+1}, 0\nv_mov_b32 v{DD+2*c}, 1.0\nv_mov_b32 v{DD+2*c+1}, 1.0")
    a.e(f"v_mov_b32 v{vCUR}, v{vSD}\nv_mov_b32 v{vCUR+1}, v{vSD}")
    for c in range(4): a.e(f"v_mov_b32 v{ACC+c}, 0")
    a.e(f"s_sub_u32 s{sT}, s{sW4k}, s{sM0}")
    a.e(f"s_add_u32 s{sT}, s{sT}, {WU2 - 256}")
    a.e(f"v_add_u32 v{vT}, s{sT}, v{vRP0}")
    a.e(f"v_add_u32 v{vT+1}, s{sT}, v{vRP1}")
    stamp(a, 46, 252)
    a.e(f"s_waitcnt vmcnt({4 + cfg.e1e})" if cfg.t1pos == 2 else "s_waitcnt vmcnt(9)")
    stamp(a, 47, 252)
    for s in pfrag_reads(PY, 0, vT): a.e(s)
    mf = mfmas(0, PY, QY, 0)
    a.e("s_waitcnt lgkmcnt(8)")
    for s in mf[:4]: a.e(s)
    a.e("s_waitcnt lgkmcnt(0)")
    for s in mf[4:]: a.e(s)
    if cfg.t1pos == 2:
        if not cfg.e1e: a.e(e_load(1))
        dma_half(a, 0)
    stamp(a, 8, 252)
    if cfg.dbg:
        a.e("s_memtime s[90:91]\ns_waitcnt lgkmcnt(0)\nv_writelane_b32 v252, s90, 14")
    a.e(f"s_sub_u32 s{sCnt}, s{sNT}, 1")
    a.e(f"s_waitcnt vmcnt({5 - cfg.e1e})")
    stamp(a, 48, 252)
    for s in pfrag_reads(PX, 1): a.e(s)
    def lstamp(x):
        if not cfg.lst: return
        a.e("s_memrealtime s[90:91]")
        a.e(f"s_lshl_b32 s92, s{sCnt}, 1")
        a.e(f"s_add_u32 s92, s92, {x+2}")
        a.e("s_mov_b32 m0, s92")
        a.e("s_waitcnt lgkmcnt(0)")
        a.e("v_writelane_b32 v252, s90, m0")
    def iteration(par):
        exA = {
            0: addr_q(1 - par),
            1: qfrag_reads(QY, 0, 1 - par),
            2: [f"s_mov_b32 m0, s{sMA}", "s_waitcnt lgkmcnt(4)"] + dma_ld(1)[:2],
            3: dma_ld(1)[2:],
            4: [f"ds_read_b128 v[{AQ}:{AQ+3}], v{vLA}",
                f"s_cmp_lt_u32 s{sCnt}, 2", f"s_cbranch_scc1 WU2_{par}", f"WU2R_{par}:"],
            7: ["s_waitcnt vmcnt(4) lgkmcnt(0)"] + pfrag_reads(PY, 0),
        }
        half_step(a, ool, 0, par, exA, f"A{par}")
        ool.label(f"WU2_{par}")
        ool.e(f"s_mov_b32 s{sP+2}, 0")
        ool.e(f"s_mov_b32 s{sE+2}, 0")
        sFn = (sF1, sF0)[par]
        ool.e(f"s_or_b64 s[{sFn}:{sFn+1}], s[{sFn}:{sFn+1}], s[{sEX}:{sEX+1}]")
        ool.e(f"s_cmp_lg_u32 s{sCnt}, 0")
        ool.e(f"s_cbranch_scc1 WU2R_{par}")
        w_dma(ool, sWu, vWC, sW4k, 32768, WU2, sT)
        ool.e(f"s_branch WU2R_{par}")
        mf = mfmas(2, PX, QX, par)
        ool.label(f"EXA{par}_1")
        ool.e("s_waitcnt lgkmcnt(0)")
        ool.e(mf[2])
        ool.label(f"EXA{par}_2")
        ool.e(mf[3])
        ool.label(f"EXA{par}_3")
        ool.e(mf[4])
        w_dma(ool, sWu, vWC, sW4k, 32768, WU2, sT)
        ool.label(f"EXA{par}_4")
        ool.e(mf[5])
        ool.e("s_nop 7")
        ool.label(f"EXA{par}_5")
        ool.e(f"s_branch R_A{par}_7")
        exB = {
            0: qfrag_reads(QX, 1, 1 - par),
            1: addr_se(),
            2: [f"s_mov_b32 m0, s{sMB}", "s_waitcnt lgkmcnt(4)"] + dma_ld(0)[:2],
            3: dma_ld(0)[2:] + [e_load(par)],
            4: list_reads_se(3 + par) + list_reads_n(2 + par),
            5: adv if par else [],
            7: ["s_waitcnt vmcnt(5) lgkmcnt(0)"] + pfrag_reads(PX, 1),
        }
        lstamp(17)
        half_step(a, ool, 1, par, exB, f"B{par}")
        lstamp(16)
        for s in flags_from_vcc((sF0, sF1)[par]): a.e(s)
        a.e(f"s_sub_u32 s{sCnt}, s{sCnt}, 1")
    a.label("K2_LOOP")
    iteration(0)
    a.e("s_cbranch_scc1 K2_LEND")
    iteration(1)
    a.e("s_cbranch_scc0 K2_LOOP")
    a.label("K2_LEND")
    stamp(a, 9, 252)
    if cfg.dbg:
        a.e("s_memtime s[90:91]\ns_waitcnt lgkmcnt(0)\nv_writelane_b32 v252, s90, 15")
    flush_code(a, 0, 0)
    a.e(f"ds_write2_b32 v{vCUR}, v{ACC}, v{ACC+1} offset1:32")
    flush_code(a, 2, 1, wait=False)
    a.e(f"ds_write2_b32 v{vCUR+1}, v{ACC+2}, v{ACC+3} offset0:64 offset1:96")
    a.label("K2_AFTER")
    a.e(f"s_mov_b32 s{sFirst}, 0")
    a.e(f"s_bitcmp0_b32 s{sDm}, 0")
    a.e(f"s_cselect_b32 s{sX0+2}, -1, 0")
    a.e(f"s_bitcmp0_b32 s{sDm}, 4")
    a.e(f"s_cselect_b32 s{sX0+3}, -1, 0")
    a.e(f"s_lshr_b32 s{sT+1}, s{sW}, 2")
    a.e(f"s_lshl_b32 s{sT+2}, s{sT+1}, 5")
    a.e(f"v_add_u32 v{vT+8}, s{sT+2}, v{vM}")
    a.e(f"v_mul_u32_u24 v{vT+9}, 528, v{vT+8}")
    a.e(f"v_cmp_gt_u32 s[{sX0}:{sX0+1}], 49, v{vT+8}")
    a.e(f"s_and_b32 s{sT+2}, s{sW}, 3")
    a.e(f"s_lshl_b32 s{sT+2}, s{sT+2}, 7")
    a.e(f"v_lshl_add_u32 v{vT+5}, v{vH16}, 1, s{sT+2}")
    a.e(f"v_add_u32 v{vT+6}, v{vT+9}, v{vT+5}")
    a.e(f"v_add_u32 v{vT+4}, {WU2}, v{vWA}")
    a.e(f"s_add_u32 s{sT+2}, s{sM0}, {256 + 4096}")
    a.e(f"v_lshl_add_u32 v{vT+2}, v{vL}, 4, s{sT+2}")
    a.e(f"s_lshl_b32 s{sT+1}, s{sT+1}, 15")
    a.e(f"s_add_u32 s{sT+1}, s{sT+1}, {STG + 4096}")
    a.e(f"v_lshl_add_u32 v{vT+3}, v{vL}, 4, s{sT+1}")
    a.e(f"s_or_b32 s{sT}, s{sSusp}, s{sSusp+1}")
    a.e(f"s_or_b32 s{sT}, s{sT}, s{sMore}")
    a.e("s_cbranch_scc1 K2_SLOWM")
    a.e(f"s_and_b32 exec_lo, s{sX0+2}, 1")
    a.e(f"s_and_b32 exec_hi, s{sX0+3}, 1")
    a.e(f"ds_write_b32 v{vFA}, v{vSD} offset:512")
    a.label("K2_MERGED")
    a.e(f"s_mov_b64 exec, s[{sX0}:{sX0+1}]")
    a.e("s_waitcnt vmcnt(0) lgkmcnt(0)")
    a.e("s_barrier")
    stamp(a, 49, 252)
    a.e(f"s_cmp_lg_u32 s{sMore}, 0")
    a.e("s_cbranch_scc1 K2_MORE")
    wf = Asm(); wfrag_read(wf, 128, vT+4)
    a.e(f"ds_read_b32 v{vT+7}, v{vT+9} offset:{AGG + 512}")
    for j, o in enumerate((0, 16, 64, 80)):
        a.e(f"ds_read_b128 v[{64+4*j}:{67+4*j}], v{vT+6} offset:{AGG + o}")
    a.e("s_waitcnt lgkmcnt(4)")
    a.e(f"v_cmpx_ne_u32 vcc, 0, v{vT+7}")
    a.e(f"v_add_u32 v{vT+7}, v{vT+7}, v{vT+5}")
    for j, o in enumerate((0, 16, 64, 80)):
        a.e(f"ds_read_b128 v[{80+4*j}:{83+4*j}], v{vT+7} offset:{o}")
    a.e("s_mov_b64 exec, -1")
    for x in wf.lines[:8]: a.e(x)
    a.e("s_mov_b64 exec, vcc")
    for j in range(4):
        a.e(f"s_waitcnt lgkmcnt({11-j})")
        for i in range(2):
            r = 64 + 4*j + 2*i
            a.e(f"v_pk_add_f32 {p2(r)}, {p2(r)}, {p2(r+16)}")
    a.e("s_mov_b64 exec, -1")
    for j in range(2):
        for i in range(4):
            a.e(f"v_cvt_pk_bf16_f32 v{96+4*j+i}, v{64+8*j+2*i}, v{65+8*j+2*i}")
        a.e(f"ds_write_b128 v{vT+2}, v[{96+4*j}:{99+4*j}] offset:{1024*j}")
    for x in wf.lines[8:]: a.e(x)
    a.e("s_waitcnt lgkmcnt(8)")
    a.e("s_barrier")
    stamp(a, 10, 252)
    for st in range(8):
        a.e(f"ds_read_b128 v[{64+4*st}:{67+4*st}], v{vT+3} offset:{(st>>1)*8192 + (st&1)*1024}")
    if cfg.owt:
        a.e(f"v_mul_u32_u24 v{vT+10}, 80, v{vM}")
        a.e(f"v_lshl_add_u32 v{vT+10}, v{vH16}, 1, v{vT+10}")
        a.e(f"s_add_u32 s{sT+1}, s{sM0}, 256")
        a.e(f"v_add_u32 v{vT+10}, s{sT+1}, v{vT+10}")
        a.e(f"v_lshrrev_b32 v{vT+12}, 2, v{vL}")
        a.e(f"v_and_b32 v{vT+14}, 3, v{vL}")
        a.e(f"v_lshlrev_b32 v{vT+14}, 4, v{vT+14}")
        a.e(f"v_lshl_add_u32 v{vT+13}, v{vT+12}, 8, v{vT+14}")
        a.e(f"v_mul_u32_u24 v{vT+12}, 80, v{vT+12}")
        a.e(f"v_add3_u32 v{vT+12}, v{vT+12}, v{vT+14}, s{sT+1}")
        a.e(f"s_lshr_b32 s{sT+3}, s{sW}, 2")
        a.e(f"s_lshl_b32 s{sT+3}, s{sT+3}, 13")
        a.e(f"s_and_b32 s{sT+4}, s{sW}, 3")
        a.e(f"s_lshl_b32 s{sT+4}, s{sT+4}, 6")
        a.e(f"s_add_u32 s{sT+3}, s{sT+3}, s{sT+4}")
        a.e(f"v_add_u32 v{vT+13}, s{sT+3}, v{vT+13}")
    else:
        a.e(f"v_mul_u32_u24 v{vT+10}, 272, v{vT+8}")
        a.e(f"v_lshl_add_u32 v{vT+10}, v{vH16}, 1, v{vT+10}")
        a.e(f"s_and_b32 s{sT+1}, s{sW}, 3")
        a.e(f"s_lshl_b32 s{sT+1}, s{sT+1}, 6")
        a.e(f"s_add_u32 s{sT+1}, s{sT+1}, {STG}")
        a.e(f"v_add_u32 v{vT+10}, s{sT+1}, v{vT+10}")
        a.e(f"v_lshrrev_b32 v{vT+12}, 4, v0")
        a.e(f"v_lshlrev_b32 v{vT+13}, 4, v0")
        a.e(f"v_lshl_add_u32 v{vT+12}, v{vT+12}, 4, v{vT+13}")
        a.e(f"v_add_u32 v{vT+12}, {STG}, v{vT+12}")
    for st in range(8):
        a.e(f"s_waitcnt lgkmcnt({7-st})")
        c = f"v[{ACX}:{ACX+15}]" if st == 0 else "v[160:175]"
        a.e(f"v_mfma_f32_32x32x16_bf16 v[160:175], v[{128+4*st}:{131+4*st}], v[{64+4*st}:{67+4*st}], {c}")
    a.e(f"s_mov_b32 s{sT+1}, {LOG2E_NEG}")
    a.e(f"s_mov_b32 s{sT}, {LOG2E_NEG}")
    stamp(a, 50, 252)
    a.e(f"s_mov_b32 s{sT+2}, 0x7b800000")
    a.e(f"v_cmp_le_f32 s[{sX0+2}:{sX0+3}], s{sT+2}, v{vCHK}")
    a.e(f"v_mov_b32 v{vT+11}, 0x207")
    a.e("s_nop 6")
    a.e(f"v_cmp_class_f32 vcc, v160, v{vT+11}")
    for hf in range(2):
        R = range(8 * hf, 8 * hf + 8)
        for i in R: a.e(f"v_exp_f32 v{64+i}, v{160+i}")
        if hf == 0:
            a.e(f"s_and_b64 vcc, vcc, s[{sX0}:{sX0+1}]")
            a.e(f"s_or_b64 s[{sX0+2}:{sX0+3}], vcc, s[{sX0+2}:{sX0+3}]")
        if hf: a.e("s_nop 0")
        for i in R[::2]: a.e(f"v_pk_fma_f32 {p2(64+i)}, {p2(64+i)}, s[{sT}:{sT+1}], s[{sT}:{sT+1}]")
        for i in R: a.e(f"v_rcp_f32 v{64+i}, v{64+i}")
        for i in R[::2]: a.e(f"v_pk_mul_f32 {p2(64+i)}, {p2(160+i)}, {p2(64+i)}")
        for i in range(4 * hf, 4 * hf + 4): a.e(f"v_cvt_pk_bf16_f32 v{80+i}, v{64+2*i}, v{65+2*i}")
        o = " offset:16" if hf else ""
        a.e(f"ds_write_b128 v{vT+10}, v[{80+4*hf}:{83+4*hf}]{o}")
    if cfg.owt:
        a.e(f"ds_read_b128 v[88:91], v{vT+12}")
        a.e(f"ds_read_b128 v[92:95], v{vT+12} offset:{16*80}")
        a.e(f"v_mov_b32 v{vT}, 1")
        a.e(f"v_mov_b32 v{vT+1}, {FLG+4}")
        a.e(f"s_movk_i32 s{sT+1}, 4096")
        a.e("s_waitcnt lgkmcnt(1)")
        a.e(f"buffer_store_dwordx4 v[88:91], v{vT+13}, s[{sO}:{sO+3}], 0 offen {cfg.o_pol}")
        a.e("s_waitcnt lgkmcnt(0)")
        a.e(f"buffer_store_dwordx4 v[92:95], v{vT+13}, s[{sO}:{sO+3}], s{sT+1} offen {cfg.o_pol}")
        a.e(f"s_mov_b64 exec, s[{sX0+2}:{sX0+3}]")
        a.e(f"ds_write_b32 v{vT+1}, v{vT}")
        a.e("s_mov_b64 exec, -1")
        a.e("s_waitcnt lgkmcnt(0)")
        a.e("s_barrier")
        a.e(f"ds_read_b32 v{vT}, v{vT+1}")
    else:
        a.e(f"v_mov_b32 v{vT}, 1")
        a.e(f"v_mov_b32 v{vT+1}, {FLG+4}")
        a.e(f"s_mov_b64 exec, s[{sX0+2}:{sX0+3}]")
        a.e(f"ds_write_b32 v{vT+1}, v{vT}")
        a.e("s_mov_b64 exec, -1")
        a.e(f"s_movk_i32 s{sT+1}, 8192")
        a.e("s_waitcnt lgkmcnt(0)")
        stamp(a, 51, 252)
        a.e("s_barrier")
        stamp(a, 52, 252)
        a.e(f"ds_read_b128 v[88:91], v{vT+12}")
        a.e(f"ds_read_b128 v[92:95], v{vT+12} offset:{32*272}")
        a.e(f"ds_read_b32 v{vT}, v{vT+1}")
        a.e("s_waitcnt lgkmcnt(2)")
        a.e(f"buffer_store_dwordx4 v[88:91], v{vT+13}, s[{sO}:{sO+3}], 0 offen {cfg.o_pol}")
        a.e("s_waitcnt lgkmcnt(1)")
        a.e(f"buffer_store_dwordx4 v[92:95], v{vT+13}, s[{sO}:{sO+3}], s{sT+1} offen {cfg.o_pol}")
    stamp(a, 11, 252)
    if cfg.dbg:
        a.e("s_waitcnt vmcnt(0)")
        a.e(f"v_writelane_b32 v252, s{sNT}, 13")
    stamp(a, 12, 252)
    stamp_out(a, 252, 253, 1)
    if cfg.x: a.e("s_branch K2_END")
    a.e("s_waitcnt lgkmcnt(0)")
    a.e(f"v_readfirstlane_b32 s{sT}, v{vT}")
    a.e(f"s_cmp_lg_u32 s{sSafe}, 0")
    a.e("s_cbranch_scc1 K2_END")
    a.e(f"s_cmp_lg_u32 s{sT}, 0")
    a.e("s_cbranch_scc1 K2_SAFE")
    a.label("K2_END")
    a.e("s_endpgm")
    a.lines += ool.lines
    a.label("K2_CODE_END")
    a.lines += rare.lines
    a.label("K2_NOTILES")
    a.e("s_waitcnt vmcnt(0)")
    w_dma(a, sWu, vWC, sW4k, 32768, WU2, sT)
    a.e("s_branch K2_AFTER")
    a.label("K2_SLOWM")
    for c in range(4):
        a.e(f"ds_read_b32 v{vT+16+c}, v{vSD} offset:{128*c}")
    a.e("s_waitcnt vmcnt(0) lgkmcnt(0)")
    a.e("s_barrier")
    a.e(f"s_mov_b64 exec, s[{sX0+2}:{sX0+3}]")
    for c in range(4):
        a.e(f"ds_add_f32 v{vFA}, v{vT+16+c} offset:{128*c}")
    a.e("s_branch K2_MERGED")
    a.label("K2_SAFE")
    a.e("s_waitcnt vmcnt(0)")
    a.e("s_barrier")
    a.e(f"s_mov_b32 s{sSafe}, -1")
    a.e(f"s_mov_b32 s{sDone}, 0")
    reset_round(a, True)
    a.e("s_branch K2_ROUND")
    a.label("K2_MORE")
    a.e("s_mov_b64 exec, -1")
    a.e(f"s_add_u32 s{sDone}, s{sDone}, s{sLim}")
    a.e("s_branch K2_RESET")
    a.label("K2_TOOBIG")
    a.e("s_barrier")
    a.e(f"s_mov_b32 s{sLim}, 16")
    a.label("K2_RESET")
    reset_round(a, False)
    a.label("K2_ROUND")
    srd(a, sR, S_WS, off_c=cfg.wsoff + WS_S01, size=WS_OFFT + 262144 - WS_S01)
    a.e(f"v_and_b32 v{t}, 0x1fc, v0")
    a.e(f"s_lshl_b32 s{sT}, s{sBin}, 10")
    a.e(f"s_add_u32 s{sT}, s{sT}, {WS_OFFT - WS_S01}")
    a.e(f"v_mov_b32 v{vROFF}, 0")
    a.e(f"v_cmp_lt_u32 vcc, 32, v{vOC}")
    a.e("s_mov_b64 exec, vcc")
    a.e(f"buffer_load_dword v{vROFF}, v{t}, s[{sR}:{sR+3}], s{sT} offen")
    a.e("s_mov_b64 exec, -1")
    a.e(f"v_and_b32 v{vW0}, 3, v0")
    a.e(f"v_lshlrev_b32 v{vW0}, 2, v{vW0}")
    a.e(f"v_add_u32 v{vW0}, s{sDone}, v{vW0}")
    a.e(f"s_lshl_b32 s{sT}, s{sBin}, 7")
    a.e(f"v_lshl_add_u32 v{t}, v{t}, 13, s{sT}")
    a.e(f"s_mov_b32 s{sT}, {WS_REC - WS_S01 - 4}")
    a.e("s_waitcnt vmcnt(0)")
    a.e(f"v_add_u32 v{t+2}, v{vEB}, v{vROFF}")
    a.e(f"v_lshl_add_u32 v{t+2}, v{t+2}, 2, s{sT}")
    for g in range(2):
        a.e(f"v_add_u32 v{t+3}, {16*g}, v{vW0}")
        a.e(f"v_cmp_gt_u32 vcc, 32, v{t+3}")
        a.e("s_nop 1")
        a.e(f"v_cndmask_b32 v{t+4+g}, v{t+2}, v{t}, vcc")
        a.e(f"v_lshl_add_u32 v{t+4+g}, v{t+3}, 2, v{t+4+g}")
        a.e(f"buffer_load_dwordx4 v[{RC+4*g}:{RC+4*g+3}], v{t+4+g}, s[{sR}:{sR+3}], 0 offen")
    round_consts(a)
    a.e("s_waitcnt vmcnt(0) lgkmcnt(0)")
    a.e("s_barrier")
    a.e("s_branch K2_COUNT")

HEADER = open("cdna_kernels/" + NAME + ".s.ref").read().split("; Override launch")[0]
def generate():
    a = Asm()
    gen_k1(a)
    gen_k2(a)
    if cfg.rep:
        k, wg, idx = [int(v) for v in cfg.rep.split(",")]
        kernel_head(a, "rep_kernel")
        a.e("s_load_dwordx2 s[20:21], s[0:1], 64")
        a.e("s_cmp_lg_u32 s2, 0")
        a.e("s_cbranch_scc1 REP_END")
        a.e("s_waitcnt lgkmcnt(0)")
        srd(a, 8, S_WS, off_c=WS_DBG, size=0x200000)
        a.e(f"v_mov_b32 v1, 0")
        a.e(f"v_mov_b32 v2, {k*0x100000 + wg*2048 + idx*4}")
        a.e("buffer_load_dword v3, v1, s[8:11], 0 offen")
        a.e("buffer_load_dword v4, v2, s[8:11], 0 offen")
        a.e("s_waitcnt vmcnt(0)")
        a.e("v_sub_u32 v3, v4, v3")
        a.e("v_min_u32 v3, 8000, v3")
        a.e("v_lshlrev_b32 v3, 2, v3")
        a.e("s_nop 1")
        a.e("v_readfirstlane_b32 s12, v3")
        a.e("s_memrealtime s[14:15]")
        a.e("s_waitcnt lgkmcnt(0)")
        a.label("REP_L")
        a.e("s_memrealtime s[16:17]")
        a.e("s_waitcnt lgkmcnt(0)")
        a.e("s_sub_u32 s13, s16, s14")
        a.e("s_cmp_lt_u32 s13, s12")
        a.e("s_cbranch_scc1 REP_L")
        a.label("REP_END")
        a.e("s_endpgm")
    if cfg.align:
        a.lines, bad = align_pass(a.lines, "K2_LOOP" if cfg.align < 3 else "prep_kernel", "K2_CODE_END", cfg.align == 2)
        print("misaligned left:", bad, file=sys.stderr)
    body = a.text()
    probs = check_text(body)
    for p in probs: print("HAZARD", p, file=sys.stderr)
    k1lds = K1_LDS_B
    out = HEADER
    out += f"; @launch kernel=prep_kernel grid=(256,1,1) block=(512,1,1) lds={k1lds}\n"
    out += f"; @launch kernel={NAME}_kernel grid=(256,1,1) block=(512,1,1) lds={K2_LDS}\n"
    if cfg.rep: out += "; @launch kernel=rep_kernel grid=(1,1,1) block=(64,1,1) lds=0\n"
    out += '.amdgcn_target "amdgcn-amd-amdhsa--gfx950"\n' + body
    out += '.section .rodata,"a"\n.p2align 6\n' + kernel_desc("prep_kernel", 200 if cfg.dbg else 160, 96 if cfg.dbg else 80) + ".p2align 6\n" + kernel_desc(NAME + "_kernel", 256, 96)
    if cfg.rep: out += ".p2align 6\n" + kernel_desc("rep_kernel", 8, 32)
    return out

if __name__ == "__main__":
    outp = sys.argv[1]
    for kv in sys.argv[2:]:
        k, v = kv.split("=", 1)
        cur = getattr(cfg, k)
        setattr(cfg, k, (v not in ("0", "False")) if isinstance(cur, bool) else int(v, 0) if isinstance(cur, int) else v)
    open(outp, "w").write(generate())
```

```python
import sys
from asmlib import *

NAME = "gather_scatter__mpnn_edge_mlp__graph"
class Cfg:
    modeA = False
    wsoff = 0
    st_pol = "sc1"
    ld_pol = "nt"
    e_pol = ""
    prefetchP = 1
    pf0 = False
    early = True
    o_pol = "sc1"
    ot_pol = ""
    touch = 1
    etouch = 0
    epos = 1
    align = 1
    prio = 2
    bias = 14
    k1d = 0
    tlb = 0
    cw = 0
    g_pol = ''
    s_pol = ''
    owt = 1
    k1w = 0
    e1e = 0
    e0f = 0
    few = False
    spf = 0
    ratio = 0
    k1o = 0
    p_pol = 'sc1'
    pfm = 0
    pfmpos = 5
    pfe = 0
    et_pol = ''
    t1pos = 1
    pfn = 320
    pfpos = 1
    nw = '4,4,4,4'
    x_pol = ""
    dbg = False
    lst = False
    x = ""
    rep = ""
cfg = Cfg()

NB = 250; NPB = 50; CH = 1600
WS_P = 4096; WS_S01 = 0x320000; WS_REC = 0x900000; WS_OFFT = 0xA90000; WS_W3F = 0xAD0000; WS_WF = 0xAE0000
LOG2E_NEG = "0xbfb8aa3b"
LN2_NEG = "0xbf317218"

S_X, S_E, S_SRC, S_DST, S_WM, S_WU, S_OUT, S_DBG, S_WS = 4, 6, 8, 10, 12, 14, 16, 18, 20

def load_args(a):
    a.e("s_load_dwordx16 s[4:19], s[0:1], 0")
    a.e("s_load_dwordx2 s[20:21], s[0:1], 64")

def srd(a, d, ptr, off_s=None, off_c=0, size=0):
    if off_s is not None:
        a.e(f"s_add_u32 s{d}, s{ptr}, s{off_s}")
        a.e(f"s_addc_u32 s{d+1}, s{ptr+1}, 0")
        if off_c:
            a.e(f"s_add_u32 s{d}, s{d}, {off_c}")
            a.e(f"s_addc_u32 s{d+1}, s{d+1}, 0")
    elif off_c:
        a.e(f"s_add_u32 s{d}, s{ptr}, {off_c}")
        a.e(f"s_addc_u32 s{d+1}, s{ptr+1}, 0")
    else:
        a.e(f"s_mov_b32 s{d}, s{ptr}")
        a.e(f"s_mov_b32 s{d+1}, s{ptr+1}")
    a.e(f"s_mov_b32 s{d+2}, {size}")
    a.e(f"s_mov_b32 s{d+3}, 0x20000")

def idmap(a, dst, src, t, sh=5):
    a.e(f"s_and_b32 s{t}, s{src}, 7")
    a.e(f"s_lshr_b32 s{dst}, s{src}, 3")
    a.e(f"s_lshl_b32 s{t}, s{t}, {sh}")
    a.e(f"s_add_u32 s{dst}, s{dst}, s{t}")

def scan64(a, v):
    for sh in (1, 2, 4, 8):
        a.e("s_nop 1")
        a.e(f"v_add_u32_dpp v{v}, v{v}, v{v} row_shr:{sh} row_mask:0xf bank_mask:0xf bound_ctrl:0")
    a.e("s_nop 1")
    a.e(f"v_add_u32_dpp v{v}, v{v}, v{v} row_bcast:15 row_mask:0xa bank_mask:0xf")
    a.e("s_nop 1")
    a.e(f"v_add_u32_dpp v{v}, v{v}, v{v} row_bcast:31 row_mask:0xc bank_mask:0xf")

def x_dma(a, sX, sW, vL, lds_base, t0, st, pol="", strided=False):
    a.e(f"v_lshrrev_b32 v{t0}, 4, v{vL}")
    a.e(f"v_and_b32 v{t0+1}, 15, v{vL}")
    a.e(f"v_xor_b32 v{t0+1}, v{t0+1}, v{t0}")
    a.e(f"v_lshlrev_b32 v{t0+1}, 4, v{t0+1}")
    a.e(f"v_lshl_add_u32 v{t0}, v{t0}, 8, v{t0+1}")
    a.e(f"s_and_b32 s{st}, s{sW}, 1")
    a.e(f"s_lshl_b32 s{st}, s{st}, 7")
    a.e(f"v_xor_b32 v{t0}, s{st}, v{t0}")
    a.e(f"v_xor_b32 v{t0+1}, 64, v{t0}")
    if strided:
        a.e(f"s_lshr_b32 s{st+1}, s{sW}, 1")
        a.e(f"s_lshl_b32 s{st+1}, s{st+1}, 12")
        a.e(f"s_lshl_b32 s{st}, s{sW}, 11")
        a.e(f"s_add_u32 s{st+1}, s{st+1}, s{st}")
        a.e(f"s_add_u32 m0, s{st+1}, {lds_base}")
    else:
        a.e(f"s_lshl_b32 s{st}, s{sW}, 11")
        a.e(f"s_add_u32 m0, s{st}, {lds_base}")
    a.e("s_nop 0")
    a.e(f"buffer_load_dwordx4 v{t0}, s[{sX}:{sX+3}], s{st} offen {pol} lds")
    a.e(f"buffer_load_dwordx4 v{t0+1}, s[{sX}:{sX+3}], s{st} offen offset:1024 {pol} lds")

def w_lane_const(a, vW, vL, t):
    a.e(f"v_lshrrev_b32 v{t}, 4, v{vL}")
    a.e(f"v_and_b32 v{vW}, 15, v{vL}")
    a.e(f"v_lshlrev_b32 v{vW}, 4, v{vW}")
    a.e(f"v_lshlrev_b32 v{t+1}, 6, v{t}")
    a.e(f"v_xor_b32 v{vW}, v{vW}, v{t+1}")
    a.e(f"v_lshl_add_u32 v{vW}, v{t}, 8, v{vW}")

def w_dma(a, sSrd, vW, sW4096, goff, lds_base, st):
    a.e(f"s_add_u32 s{st}, s{sW4096}, {goff}")
    a.e(f"s_add_u32 m0, s{sW4096}, {lds_base}")
    a.e("s_nop 0")
    for i in range(4):
        o = f" offset:{1024*i}" if i else ""
        a.e(f"buffer_load_dwordx4 v{vW}, s[{sSrd}:{sSrd+3}], s{st} offen{o} lds")

def wfrag_const(a, vA, vL, sW, t, st):
    a.e(f"v_lshrrev_b32 v{t}, 5, v{vL}")
    a.e(f"v_bfe_u32 v{t+1}, v{vL}, 2, 2")
    a.e(f"v_lshl_add_u32 v{t}, v{t}, 3, v{t+1}")
    a.e(f"v_lshlrev_b32 v{vA}, 8, v{t}")
    a.e(f"v_and_b32 v{t}, 1, v{vL}")
    a.e(f"v_lshlrev_b32 v{t}, 5, v{t}")
    a.e(f"v_bfe_u32 v{t+2}, v{vL}, 1, 1")
    a.e(f"v_lshl_add_u32 v{t}, v{t+2}, 3, v{t}")
    a.e(f"v_bfe_u32 v{t+2}, v{vL}, 4, 1")
    a.e(f"v_lshl_add_u32 v{t}, v{t+2}, 4, v{t}")
    a.e(f"s_and_b32 s{st}, s{sW}, 3")
    a.e(f"s_lshl_b32 s{st}, s{st}, 6")
    a.e(f"v_add_u32 v{t}, s{st}, v{t}")
    a.e(f"v_lshlrev_b32 v{t+1}, 6, v{t+1}")
    a.e(f"v_xor_b32 v{t}, v{t}, v{t+1}")
    a.e(f"v_add_u32 v{vA}, v{vA}, v{t}")

def wfrag_read(a, dst, vAddr, off=0, stride=4096):
    for s in range(8):
        for u in range(2):
            r = (dst[s] if isinstance(dst, list) else dst + 4*s) + 2*u
            a.e(f"ds_read_b64_tr_b16 v[{r}:{r+1}], v{vAddr} offset:{off+s*stride+u*1024}")

def xfrag_read(a, dst, vL, sW, lds_base, t, st):
    a.e(f"v_and_b32 v{t}, 31, v{vL}")
    a.e(f"v_lshrrev_b32 v{t+1}, 5, v{vL}")
    a.e(f"v_and_b32 v{t+2}, 15, v{vL}")
    a.e(f"v_xor_b32 v{t+1}, v{t+1}, v{t+2}")
    a.e(f"v_lshlrev_b32 v{t+1}, 4, v{t+1}")
    a.e(f"v_lshl_add_u32 v{t}, v{t}, 8, v{t+1}")
    a.e(f"s_lshr_b32 s{st}, s{sW}, 2")
    a.e(f"s_lshl_b32 s{st}, s{st}, 13")
    a.e(f"s_add_u32 s{st}, s{st}, {lds_base}")
    a.e(f"v_add_u32 v{t}, s{st}, v{t}")
    for s in range(8):
        if s == 0:
            a.e(f"ds_read_b128 v[{dst}:{dst+3}], v{t}")
        else:
            r = t + 1 + (s & 1)
            a.e(f"v_xor_b32 v{r}, {32*s}, v{t}")
            a.e(f"ds_read_b128 v[{dst+4*s}:{dst+4*s+3}], v{r}")

def gemm8(a, acc, A, B, zero=True):
    for s in range(8):
        c = "0" if (s == 0 and zero) else f"v[{acc}:{acc+15}]"
        r = A[s] if isinstance(A, list) else A + 4*s
        a.e(f"v_mfma_f32_32x32x16_bf16 v[{acc}:{acc+15}], v[{r}:{r+3}], v[{B+4*s}:{B+4*s+3}], {c}")

WS_DBG = 0x2000000
def stamp(a, i, vst):
    if not cfg.dbg: return
    if cfg.few and not (i in (0, 3) if vst == 197 else i in (7, 8, 9, 12)): return
    a.e("s_memrealtime s[90:91]")
    a.e("s_waitcnt lgkmcnt(0)")
    a.e(f"v_writelane_b32 v{vst}, s90, {i}")
def stamp_out(a, vst, vt, kidx):
    if not cfg.dbg: return
    srd(a, 92, S_WS, off_c=WS_DBG + kidx * 0x100000, size=0x100000)
    a.e(f"s_lshl_b32 s90, s2, 11")
    a.e(f"v_lshl_add_u32 v{vt}, v0, 2, s90")
    a.e(f"buffer_store_dword v{vst}, v{vt}, s[92:95], 0 offen")

def kernel_head(a, name):
    a.e(".text")
    a.e(f".globl {name}")
    a.e(".p2align 8")
    a.e(f".type {name},@function")
    a.label(name)

def kernel_desc(name, vg, sg):
    acc = (vg + 3) // 4 * 4
    return f""".amdhsa_kernel {name}
  .amdhsa_next_free_vgpr {vg}
  .amdhsa_next_free_sgpr {sg}
  .amdhsa_accum_offset {acc}
  .amdhsa_group_segment_fixed_size 0
  .amdhsa_kernarg_size 72
  .amdhsa_user_sgpr_count 2
  .amdhsa_user_sgpr_kernarg_segment_ptr 1
  .amdhsa_system_sgpr_workgroup_id_x 1
.end_amdhsa_kernel
"""

K1_LDS_A = 16384 + 57344
K1_LDS_B = 65536 + 96*272
def gen_k1(a):
    kernel_head(a, "prep_kernel")
    load_args(a)
    sW, sId, sT = 22, 23, 44
    vL = 1
    a.e(f"v_and_b32 v{vL}, 63, v0")
    a.e(f"v_lshrrev_b32 v2, 6, v0")
    a.e("s_nop 0")
    a.e(f"v_readfirstlane_b32 s{sW}, v2")
    if cfg.dbg: a.e("v_mov_b32 v197, 0")
    stamp(a, 0, 197)
    if cfg.dbg:
        a.e("s_getreg_b32 s90, hwreg(HW_REG_XCC_ID)")
        a.e("s_add_u32 s90, s90, 1")
        a.e("v_writelane_b32 v197, s90, 63")
    if cfg.k1d: a.e(f"s_sleep {cfg.k1d}")
    a.e(f"s_mov_b32 s{sId}, s2")
    a.e("s_cmp_lt_u32 s2, 120")
    a.e("s_cbranch_scc1 K1_BIN")
    a.e(f"s_sub_u32 s{sId}, s2, 3")
    a.e("s_sub_u32 s3, s2, 123")
    a.e("s_cmp_lt_u32 s3, 5")
    a.e("s_cbranch_scc1 K1_BIN")
    a.e("s_cmp_ge_u32 s2, 256")
    a.e("s_cbranch_scc1 K1_END")
    a.e(f"s_and_b32 s{sT}, s2, 7")
    a.e(f"s_lshr_b32 s{sId}, s2, 3")
    a.e(f"s_lshl4_add_u32 s{sId}, s{sT}, s{sId}")
    a.e(f"s_min_u32 s{sT}, s{sT}, 2")
    a.e(f"s_add_u32 s{sId}, s{sId}, s{sT}")
    a.e(f"s_sub_u32 s{sId}, s{sId}, 15")
    a.e(f"s_mul_i32 s{sT+2}, s{sId}, 24576")
    a.e(f"s_sub_u32 s{sT+4}, 3200000, s{sT+2}")
    a.e(f"s_min_u32 s{sT+4}, s{sT+4}, 24576")
    a.e(f"v_lshrrev_b32 v2, 4, v{vL}")
    a.e(f"v_and_b32 v3, 15, v{vL}")
    a.e(f"v_xor_b32 v3, v3, v2")
    a.e(f"v_lshlrev_b32 v3, 4, v3")
    a.e(f"v_lshl_add_u32 v16, v2, 8, v3")
    for i in range(1, 4): a.e(f"v_xor_b32 v{16+i}, {64*i}, v16")
    w_lane_const(a, 4, vL, 5)
    a.e(f"s_lshl_b32 s{sT+3}, s{sW}, 12")
    a.e("s_waitcnt lgkmcnt(0)")
    def xl():
        a.e(f"s_mov_b32 m0, s{sT+3}")
        srd(a, 24, S_X, off_s=sT+2, size=f"s{sT+4}")
        for i in range(4):
            o = f" offset:{1024*i}" if i else ""
            a.e(f"buffer_load_dwordx4 v{16+i}, s[24:27], s{sT+3} offen{o} {cfg.x_pol} lds")
    def wl():
        srd(a, 28, S_WM, size=32768)
        w_dma(a, 28, 4, sT+3, 0, 32768, sT)
    xl(); wl()
    srd(a, 32, S_WS, off_s=sT+2, off_c=cfg.wsoff + WS_P, size=f"s{sT+4}")
    wfrag_const(a, 8, vL, sW, 9, sT)
    OT = 65536
    a.e(f"v_and_b32 v12, 31, v{vL}")
    a.e(f"v_lshrrev_b32 v13, 5, v{vL}")
    a.e(f"v_and_b32 v15, 15, v{vL}")
    a.e(f"v_xor_b32 v15, v15, v13")
    a.e(f"v_lshlrev_b32 v15, 4, v15")
    a.e(f"v_lshl_add_u32 v15, v12, 8, v15")
    a.e(f"s_lshr_b32 s{sT}, s{sW}, 2")
    a.e(f"s_lshl_b32 s{sT+1}, s{sT}, 14")
    a.e(f"v_add_u32 v20, s{sT+1}, v15")
    for st in range(1, 8): a.e(f"v_xor_b32 v{20+st}, {32*st}, v20")
    if cfg.k1w:
        a.e(f"v_lshlrev_b32 v13, 5, v13")
        a.e(f"v_mul_u32_u24 v12, 80, v12")
        a.e(f"s_mul_i32 s{sT+5}, s{sW}, {32*80}")
        a.e(f"s_add_u32 s{sT+5}, s{sT+5}, {OT}")
        a.e(f"v_add3_u32 v12, s{sT+5}, v12, v13")
        a.e(f"v_lshrrev_b32 v13, 2, v{vL}")
        a.e(f"v_and_b32 v15, 3, v{vL}")
        a.e(f"v_lshlrev_b32 v15, 4, v15")
        a.e(f"v_lshl_add_u32 v14, v13, 8, v15")
        a.e(f"v_mul_u32_u24 v13, 80, v13")
        a.e(f"v_add3_u32 v13, v13, v15, s{sT+5}")
        a.e(f"s_lshl_b32 s{sT}, s{sT}, 14")
        a.e(f"s_and_b32 s{sT+1}, s{sW}, 3")
        a.e(f"s_lshl_b32 s{sT+1}, s{sT+1}, 6")
        a.e(f"v_add_u32 v14, s{sT}, v14")
        a.e(f"v_add_u32 v14, s{sT+1}, v14")
        a.e("s_movk_i32 s65, 4096\ns_movk_i32 s66, 12288")
    else:
        a.e(f"v_lshlrev_b32 v13, 5, v13")
        a.e(f"v_mul_u32_u24 v12, 272, v12")
        a.e(f"s_mul_i32 s{sT}, s{sT}, {64*272}")
        a.e(f"s_and_b32 s{sT+1}, s{sW}, 3")
        a.e(f"s_lshl_b32 s{sT+1}, s{sT+1}, 6")
        a.e(f"s_add_u32 s{sT}, s{sT}, s{sT+1}")
        a.e(f"s_add_u32 s{sT}, s{sT}, {OT}")
        a.e(f"v_add3_u32 v12, s{sT}, v12, v13")
        a.e(f"v_lshrrev_b32 v13, 4, v0")
        a.e(f"v_lshlrev_b32 v14, 4, v0")
        a.e(f"v_lshl_add_u32 v13, v13, 4, v14")
        a.e(f"v_add_u32 v13, {OT}, v13")
    a.e(f"s_mov_b32 s{sT}, {LOG2E_NEG}")
    a.e(f"s_mov_b32 s{sT+1}, {LOG2E_NEG}")
    a.e("s_movk_i32 s62, 8192\ns_movk_i32 s63, 16384\ns_movk_i32 s64, 24576")
    WF, X0, X1, A0, A1 = 32, 64, 96, 128, 144
    def rw(st):
        for u in range(2):
            a.e(f"ds_read_b64_tr_b16 v[{WF+4*st+2*u}:{WF+4*st+2*u+1}], v8 offset:{32768+st*4096+u*1024}")
    def rx0(st): a.e(f"ds_read_b128 v[{X0+4*st}:{X0+4*st+3}], v{20+st}")
    def mm(A, X, st):
        c = "0" if st == 0 else f"v[{A}:{A+15}]"
        a.e(f"v_mfma_f32_32x32x16_bf16 v[{A}:{A+15}], v[{WF+4*st}:{WF+4*st+3}], v[{X+4*st}:{X+4*st+3}], {c}")
    def fin(b, A):
        for i in range(8):
            a.e(f"v_pk_mul_f32 v[{A+2*i}:{A+2*i+1}], v[{A+2*i}:{A+2*i+1}], s[{sT}:{sT+1}]")
        for i in range(8):
            a.e(f"v_cvt_pk_bf16_f32 v{A+i}, v{A+2*i}, v{A+1+2*i}")
        if cfg.k1w and b:
            a.e("s_waitcnt lgkmcnt(0)")
            st2(0)
            a.e("v_add_u32 v14, s62, v14")
            b = 0
        if cfg.k1w:
            a.e(f"ds_write_b128 v12, v[{A}:{A+3}]")
            a.e(f"ds_write_b128 v12, v[{A+4}:{A+7}] offset:16")
            a.e(f"ds_read_b128 v[{48+8*b}:{51+8*b}], v13")
            a.e(f"ds_read_b128 v[{52+8*b}:{55+8*b}], v13 offset:{16*80}")
        else:
            a.e(f"ds_write_b128 v12, v[{A}:{A+3}] offset:{b*32*272}")
            a.e(f"ds_write_b128 v12, v[{A+4}:{A+7}] offset:{b*32*272+16}")
    def st2(b):
        for j in range(2):
            a.e(f"buffer_store_dwordx4 v[{48+8*b+4*j}:{51+8*b+4*j}], v14, s[32:35], {['0','s65','s62','s66'][2*b+j]} offen {cfg.p_pol}")
    a.e(f"s_cmp_ge_u32 s{sW}, 4")
    a.e("s_waitcnt vmcnt(4)")
    a.e("s_barrier")
    for st in range(8): rx0(st)
    a.e("s_cbranch_scc1 K1_NX1")
    for st in range(8):
        a.e(f"ds_read_b128 v[{X1+4*st}:{X1+4*st+3}], v{20+st} offset:8192")
    a.label("K1_NX1")
    a.e("s_waitcnt vmcnt(0)")
    stamp(a, 1, 197)
    a.e("s_barrier")
    for st in range(8): rw(st)
    for st in range(8):
        a.e(f"s_waitcnt lgkmcnt({14-2*st})")
        mm(A0, X0, st)
    a.e("s_cbranch_scc1 K1_NX2")
    for st in range(8): mm(A1, X1, st)
    a.e("s_nop 2")
    fin(0, A0)
    fin(1, A1)
    a.e("s_branch K1_NX3")
    a.label("K1_NX2")
    a.e("s_nop 10")
    fin(0, A0)
    a.label("K1_NX3")
    a.e("s_waitcnt lgkmcnt(0)")
    if cfg.k1w:
        st2(0)
    else:
        a.e("s_barrier")
        for j in range(3):
            a.e(f"ds_read_b128 v[{48+4*j}:{51+4*j}], v13 offset:{j*32*272}")
        for j in range(3):
            a.e(f"s_waitcnt lgkmcnt({2-j})")
            a.e(f"buffer_store_dwordx4 v[{48+4*j}:{51+4*j}], v14, s[32:35], {['0','s62','s63'][j]} offen {cfg.p_pol}")
    stamp(a, 2, 197)
    if cfg.dbg: a.e("s_waitcnt vmcnt(0)")
    stamp(a, 3, 197)
    stamp_out(a, 197, 198, 0)
    a.e("s_endpgm")
    SL, FLAG, SORT = 0, 36864, 36880
    a.label("K1_BIN")
    a.e(f"s_mul_i32 s{sT+2}, s{sId}, 12800")
    a.e(f"s_lshl_b32 s{sT+3}, s{sId}, 15")
    a.e("v_lshlrev_b32 v2, 4, v0")
    a.e("s_movk_i32 s3, 6400")
    a.e("s_movk_i32 s59, 400")
    a.e("v_cmp_gt_u32 s[60:61], s59, v0")
    a.e("s_waitcnt lgkmcnt(0)")
    D, S, BA, RK, AD = 4, 12, 20, 28, 36
    srd(a, 24, S_DST, off_s=sT+2, size=12800)
    a.e(f"buffer_load_dwordx4 v[{D}:{D+3}], v2, s[24:27], 0 offen {cfg.ld_pol}")
    a.e(f"buffer_load_dwordx4 v[{D+4}:{D+7}], v2, s[24:27], s3 offen {cfg.ld_pol}")
    srd(a, 28, S_SRC, off_s=sT+2, size=12800)
    a.e(f"buffer_load_dwordx4 v[{S}:{S+3}], v2, s[28:31], 0 offen {cfg.ld_pol}")
    a.e(f"buffer_load_dwordx4 v[{S+4}:{S+7}], v2, s[28:31], s3 offen {cfg.ld_pol}")
    srd(a, 32, S_WS, off_s=sT+3, off_c=cfg.wsoff + WS_S01, size=32768)
    a.e("v_mov_b32 v44, 1")
    a.e("v_min_u32 v3, 256, v0")
    a.e("v_mul_u32_u24 v3, 144, v3")
    a.e(f"ds_write_b32 v3, v44 offset:{SL}")
    a.e("v_lshlrev_b32 v45, 22, v0")
    a.e("s_movk_i32 s58, 10700")
    a.e("s_movk_i32 s57, 144")
    a.e("v_lshrrev_b32 v46, 3, v0")
    a.e("v_lshl_add_u32 v46, v46, 4, v2")
    a.e(f"v_mov_b32 v48, {FLAG}")
    a.e("s_movk_i32 s62, 8192\ns_movk_i32 s63, 16384\ns_movk_i32 s64, 24576")
    a.e("s_waitcnt lgkmcnt(0)")
    a.e("s_barrier")
    if True:
        a.e(f"s_cmp_lg_u32 s{sW}, 7")
        a.e("s_cbranch_scc1 K1_NOTOUCH")
        a.e("s_cmp_ge_u32 s2, 124")
        a.e("s_cbranch_scc1 K1_W3")
        a.e(f"s_lshr_b32 s{sT}, s2, 3")
        a.e(f"v_lshlrev_b32 v70, 7, v{vL}")
        if cfg.touch & 1:
            srd(a, 72, S_WM, off_c=32768, size=32768)
            srd(a, 76, S_WU, size=65536)
            a.e(f"s_mul_i32 s{sT+1}, s{sT}, {18*128}")
            a.e("s_mov_b64 exec, 0x3ffff")
            a.e(f"buffer_load_dword v71, v70, s[72:75], s{sT+1} offen")
            a.e(f"s_mul_i32 s{sT+1}, s{sT}, {35*128}")
            a.e("s_mov_b32 exec_lo, -1\ns_mov_b32 exec_hi, 7")
            a.e(f"buffer_load_dword v72, v70, s[76:79], s{sT+1} offen")
        if cfg.touch & 2:
            a.e("s_mov_b64 exec, 0x1ff")
            a.e("s_getpc_b64 s[68:69]")
            a.label("K1_PC")
            a.e(f"s_add_u32 s68, s68, {NAME}_kernel-K1_PC")
            a.e("s_addc_u32 s69, s69, 0")
            a.e(f"s_mul_i32 s{sT+1}, s{sT}, {9*128}")
            a.e(f"v_add_u32 v74, s{sT+1}, v70")
            a.e(f"v_min_u32 v74, K2_CODE_END-{NAME}_kernel-4, v74")
            a.e("v_mov_b32 v75, s69")
            a.e("v_add_co_u32 v74, vcc, s68, v74")
            a.e("s_nop 1")
            a.e("v_addc_co_u32 v75, vcc, 0, v75, vcc")
            a.e("global_load_dword v73, v[74:75], off")
        a.e("s_mov_b64 exec, -1")
        a.e("s_branch K1_B2")
        a.label("K1_NOTOUCH")
    a.e("s_mov_b64 exec, s[60:61]")
    for j in range(2):
        a.e(f"s_waitcnt vmcnt({3-j})")
        if j == 0: stamp(a, 1, 197)
        for i in range(4*j, 4*j+4):
            a.e(f"v_mul_u32_u24 v{AD+i}, s58, v{D+i}")
            a.e(f"v_lshrrev_b32 v{AD+i}, 19, v{AD+i}")
            a.e(f"v_mul_u32_u24 v{BA+i}, s57, v{AD+i}")
            a.e(f"ds_add_rtn_u32 v{RK+i}, v{BA+i}, v44 offset:{SL}")
    for i in range(8):
        a.e(f"v_mul_u32_u24 v{AD+i}, 49, v{AD+i}")
        a.e(f"v_sub_u32 v{D+i}, v{D+i}, v{AD+i}")
        if i: a.e(f"v_add_u32 v45, {hex(((1600-3) if i == 4 else 1) << 20)}, v45")
        a.e(f"v_or_b32 v{D+i}, v{D+i}, v45")
    a.e(f"s_waitcnt vmcnt(0)")
    stamp(a, 4, 197)
    for i in range(8):
        a.e(f"s_waitcnt lgkmcnt(7)")
        a.e(f"v_min_u32 v{AD+i}, 32, v{RK+i}")
        a.e(f"v_lshl_or_b32 v{D+i}, v{S+i}, 6, v{D+i}")
        a.e(f"v_lshl_add_u32 v{AD+i}, v{AD+i}, 2, v{BA+i}")
        a.e(f"ds_write_b32 v{AD+i}, v{D+i} offset:{SL}")
    a.e(f"v_max3_u32 v47, v{RK}, v{RK+1}, v{RK+2}")
    a.e(f"v_max3_u32 v47, v47, v{RK+3}, v{RK+4}")
    a.e(f"v_max3_u32 v47, v47, v{RK+5}, v{RK+6}")
    a.e(f"v_max_u32 v47, v47, v{RK+7}")
    a.e("v_cmpx_le_u32 vcc, 32, v47")
    a.e("ds_write_b32 v48, v47")
    a.e("s_mov_b64 exec, -1")
    a.e("s_waitcnt lgkmcnt(0)")
    stamp(a, 5, 197)
    a.label("K1_B2")
    a.e("s_barrier")
    stamp(a, 6, 197)
    for j in range(4):
        a.e(f"ds_read_b128 v[{52+4*j}:{55+4*j}], v46 offset:{SL + j*9216}")
    a.e(f"ds_read_b32 v49, v48")
    for j in range(4):
        a.e(f"s_waitcnt lgkmcnt({4-j})")
        a.e(f"buffer_store_dwordx4 v[{52+4*j}:{55+4*j}], v2, s[32:35], {['0','s62','s63','s64'][j]} offen {cfg.st_pol}")
    a.e("s_waitcnt lgkmcnt(0)")
    a.e("v_readfirstlane_b32 s3, v49")
    a.e("s_cmp_lg_u32 s3, 1")
    a.e("s_cbranch_scc1 K1_FULL")
    stamp(a, 2, 197)
    if cfg.dbg: a.e("s_waitcnt vmcnt(0)")
    stamp(a, 3, 197)
    stamp_out(a, 197, 198, 0)
    a.label("K1_END")
    a.e("s_endpgm")
    a.label("K1_FULL")
    a.e("s_waitcnt vmcnt(0)")
    a.e(f"s_lshl_b32 s{sT+4}, s{sId}, 2")
    srd(a, 32, S_WS, off_s=sT+2, off_c=cfg.wsoff + WS_REC, size=12800)
    srd(a, 36, S_WS, off_s=sT+4, off_c=cfg.wsoff + WS_OFFT, size=255*1024 + 4)
    a.e(f"v_mul_u32_u24 v3, {4*144}, v{vL}")
    for i in range(4):
        a.e(f"ds_read_b32 v{52+i}, v3 offset:{SL + 144*i}")
    a.e("s_waitcnt lgkmcnt(0)")
    for i in range(4):
        a.e(f"v_add_u32 v{52+i}, -1, v{52+i}")
    a.e("v_add_u32 v56, v52, v53")
    a.e("v_add_u32 v57, v56, v54")
    a.e("v_add_u32 v58, v57, v55")
    a.e("v_mov_b32 v60, v58")
    scan64(a, 60)
    a.e("v_sub_u32 v60, v60, v58")
    a.e("v_add_u32 v61, v60, v52")
    a.e("v_add_u32 v62, v60, v56")
    a.e("v_add_u32 v63, v60, v57")
    for i in range(4):
        a.e(f"ds_write_b32 v3, v{60+i} offset:{SL + 144*i + 132}")
    a.e(f"s_cmp_lg_u32 s{sW}, 7")
    a.e("s_cbranch_scc1 K1_NOFFT")
    a.e(f"v_lshlrev_b32 v59, 12, v{vL}")
    for i in range(4):
        o = f" offset:{1024*i}" if i else ""
        a.e(f"buffer_store_dword v{60+i}, v59, s[36:39], 0 offen{o}")
    a.label("K1_NOFFT")
    a.e("s_mov_b64 exec, s[60:61]")
    a.e("s_waitcnt lgkmcnt(0)")
    for i in range(8):
        a.e(f"ds_read_b32 v{BA+i}, v{BA+i} offset:{SL + 132}")
    a.e("s_waitcnt lgkmcnt(0)")
    for i in range(8):
        a.e(f"v_add_lshl_u32 v{BA+i}, v{BA+i}, v{RK+i}, 2")
        a.e(f"ds_write_b32 v{BA+i}, v{D+i} offset:{SORT - 4}")
    a.e("s_mov_b64 exec, -1")
    a.e("s_waitcnt lgkmcnt(0)")
    a.e("s_barrier")
    a.e(f"ds_read_b128 v[4:7], v2 offset:{SORT}")
    a.e(f"ds_read_b128 v[8:11], v2 offset:{SORT + 8192}")
    a.e(f"s_waitcnt lgkmcnt(0)")
    a.e(f"buffer_store_dwordx4 v[4:7], v2, s[32:35], 0 offen")
    a.e(f"buffer_store_dwordx4 v[8:11], v2, s[32:35], s62 offen")
    a.e("s_endpgm")
    a.label("K1_W3")
    a.e(f"s_sub_u32 s{sT}, s2, 124")
    srd(a, 72, S_WM, off_c=65536, size=4096)
    srd(a, 76, S_WS, off_c=cfg.wsoff + WS_W3F, size=4096)
    a.e(f"v_and_b32 v70, 31, v{vL}")
    a.e("v_lshlrev_b32 v70, 1, v70")
    a.e(f"v_lshrrev_b32 v71, 5, v{vL}")
    a.e("v_lshl_add_u32 v70, v71, 11, v70")
    a.e(f"s_lshl_b32 s{sT+1}, s{sT}, 6")
    for j in range(8):
        o = f" offset:{256*j}" if j else ""
        a.e(f"buffer_load_ushort v{72+j}, v70, s[72:75], s{sT+1} offen{o}")
    a.e(f"s_lshl_b32 s{sT+1}, s{sT}, 10")
    a.e(f"s_mov_b32 s{sT}, {LOG2E_NEG}")
    a.e(f"v_lshlrev_b32 v71, 4, v{vL}")
    a.e("s_waitcnt vmcnt(0)")
    for j in range(8):
        a.e(f"v_lshlrev_b32 v{72+j}, 16, v{72+j}")
        a.e(f"v_mul_f32 v{72+j}, s{sT}, v{72+j}")
    for j in range(4):
        a.e(f"v_cvt_pk_bf16_f32 v{80+j}, v{72+2*j}, v{73+2*j}")
    a.e(f"buffer_store_dwordx4 v[80:83], v71, s[76:79], s{sT+1} offen {cfg.st_pol}")
    a.e("s_branch K1_B2")

CNT, FLG, LUT, QL, LIST, AGG, SIDE, WU2, STG = 0, 256, 288, 576, 13776, 30800, 56672, 65536, 98304
MAXT = 65
K2_LDS = 163840
vL, vM = 1, 2
vOC, vREM, vROFF, vEB = 3, 4, 5, 6
vAE, vAP, vAQ = 7, 8, 9
vCP, vRP0, vRP1, vCQ, vCL, vCA, vH16, vFA = 10, 11, 12, 13, 14, 15, 16, 17
vPA = 144
vEA, vLA = 20, 21
vQA = 22
vRS = 148
vC4 = 152
ACC = 156
vRN = 28
vRE = 30
vSD = 31
vCUR = 32
vCHK = 34
vWC, vWA = 35, 36
vPF = 38
vT = 40
Z = 64; PX = 128; PY = 128; QX = 160; QY = 168; EE = 176; AQ = 184; AP = 188; IDX = 192; W3 = 196
NN = 212; DD = 220; EX = 228; TT = 232; ACX = 236
sP, sE, sX, sO, sR, sWm, sWu, sOT = 24, 28, 32, 36, 40, 44, 48, 52
sW, sBin, sNT, sCnt, sG0, sG1, sG2, sLim, sDone, sSafe, sW4k, sM0, sMask, sMore, sFirst, sDm = 22, 23, 56, 57, 58, 59, 60, 61, 62, 63, 64, 65, 66, 67, 68, 69
sT = 70
sX0 = 80
sSusp = 88
sF0, sF1 = 32, 34
sMA, sMB, sL, sEX = 58, 59, 60, 52
PSIZE = 12500 * 256 + 3072
s256 = 79
ESIZE = 400000 * 32

def dma_m0(H, dest=None):
    if dest is None: dest = H
    return f"s_add_u32 m0, s{sW4k}, {WU2 - 128*H}" if dest == "alt" else f"s_add_u32 m0, s{sM0}, {dest*4096 - 128*H + 256}"
def dma_ld(H):
    out = []
    for j in range(4):
        imm = 1024 * j + 128 * H
        o = f" offset:{imm}" if imm else ""
        out.append(f"buffer_load_dwordx4 v{vPA+j}, s[{sP}:{sP+3}], 0 offen{o} {cfg.g_pol} lds")
    return out
def dma_ops(H, dest=None):
    l = dma_ld(H)
    return [[dma_m0(H, dest), "s_nop 0", l[0]], [l[1]], [l[2]], [l[3]]]
def dma_half(a, H, dest=None):
    for s in sum(dma_ops(H, dest), []): a.e(s)
def pfrag_reads(dst, H, va=None):
    out = []
    va = vRP0 if va is None else va
    for tq in range(2):
        for q in range(4):
            r = dst + 8 * tq + 2 * q
            out.append(f"ds_read_b64_tr_b16 v[{r}:{r+1}], v{va+tq} offset:{H*4096 + q*512}")
    return out
def qfrag_reads(dst, H, par):
    out = []
    for tq in range(2):
        for u in range(2):
            r = dst + 4 * tq + 2 * u
            out.append(f"ds_read_b64_tr_b16 v[{r}:{r+1}], v{vQA+2*par+u} offset:{(2*H+tq)*64}")
    return out
def list_reads_se(o=0):
    return [f"ds_read_b32 v{vRE}, v{vAE} offset:{128*o}", f"ds_read2_b32 v[{vRS}:{vRS+1}], v{vAP} offset0:{32*o} offset1:{32*o+8}", f"ds_read2_b32 v[{vRS+2}:{vRS+3}], v{vAP} offset0:{32*o+16} offset1:{32*o+24}"]
def list_reads_n(o=0):
    return [f"ds_read_u16 v{vRN}, v{vAQ} offset:{128*o}", f"ds_read_u16 v{vRN+1}, v{vAQ} offset:{128*o+64}"]
def addr_p():
    return [f"v_mad_u32_u16 v{vPA+j}, v{vRS+j}, s{s256}, v{vC4+j}" for j in range(4)]
def addr_e():
    return [f"v_and_or_b32 v{vEA}, v{vRE}, s{sMask}, v{18 if 'ehalf' in cfg.x else vH16}"]
def addr_l():
    return [f"v_and_or_b32 v{vLA}, v{vRE}, 16, v{vCL}", f"v_cmp_gt_i32 vcc, 0, v{vRE}"]
def addr_se():
    return addr_p() + addr_e() + addr_l()
def flags_from_vcc(sF):
    if "nf2" in cfg.x: return [f"s_mov_b32 s{sF}, 0", f"s_mov_b32 s{sF+1}, 0"]
    return [f"s_lshr_b32 s{sF+1}, vcc_lo, 4", f"s_mov_b32 s{sF}, vcc_lo", f"s_or_b32 s{sF+1}, s{sF+1}, vcc_lo", f"s_or_b32 s{sF+1}, s{sF+1}, s{sSafe}"]
def addr_q(par):
    return [f"v_add_u32 v{vQA+2*par}, v{vRN}, v{vCQ}", f"v_add_u32 v{vQA+2*par+1}, v{vRN+1}, v{vCQ}"]
def e_load(par):
    return f"buffer_load_dwordx4 v[{EE+4*par}:{EE+4*par+3}], v{vEA}, s[{sE}:{sE+3}], 0 offen {cfg.e_pol}"
def mfmas(c0, Pset, Qset, epar):
    out = []
    zz = lambda c: f"v[{Z+16*c}:{Z+16*c+15}]"
    f4 = lambda r: f"v[{r}:{r+3}]"
    M = "v_mfma_f32_32x32x16_bf16"
    for i in range(2): out.append(f"{M} {zz(c0+i)}, {f4(EE+4*epar)}, {f4(W3+4*(c0+i))}, 0")
    for i in range(2): out.append(f"{M} {zz(c0+i)}, {f4(AQ)}, {f4(Qset+4*i)}, {zz(c0+i)}")
    for i in range(2): out.append(f"v_smfmac_f32_32x32x32_bf16 {zz(c0+i)}, {f4(AP)}, v[{Pset+8*i}:{Pset+8*i+7}], v{IDX}")
    return out
p2 = lambda r: f"v[{r}:{r+1}]"
def flush_code(a, c0, X, mid=(), wait=True, chk=()):
    t = vT + 8 * X
    for i in range(2):
        c = c0 + i
        a.e(f"v_rcp_f32 v{t+2*i}, v{DD+2*c}")
        a.e(f"v_rcp_f32 v{t+2*i+1}, v{DD+2*c+1}")
    for s in chk: a.e(s)
    for i in range(2):
        c = c0 + i
        a.e(f"v_max3_f32 v{vCHK}, v{DD+2*c}, v{DD+2*c+1}, v{vCHK}")
    for s in mid: a.e(s)
    if wait: a.e("s_waitcnt lgkmcnt(0)")
    for j in range(2):
        for i in range(2):
            c = c0 + i
            a.e(f"v_fmac_f32 v{ACC+c}, v{NN+2*c+j}, v{t+2*i+j}")

def half_step(a, ool, X, par, extras, tag):
    c0 = 2 * X
    sF0 = (32, 34)[par]
    if X == 0: mf = mfmas(2, PX, QX, par)
    else:      mf = mfmas(0, PY, QY, 1 - par)
    def keep(s):
        if "nodma" in cfg.x and (" lds" in s or "m0" in s or s == "s_nop 0"): return False
        if "noe" in cfg.x and s.startswith("buffer_load") and " lds" not in s: return False
        if "nods" in cfg.x and s.startswith("ds_read"): return False
        if "nowait" in cfg.x and s.startswith("s_waitcnt"): return False
        if "novm" in cfg.x and s.startswith("s_waitcnt vmcnt"): return False
        return True
    extras = {k: [s for s in v if keep(s)] for k, v in extras.items()}
    for s in extras.get("pre", []): a.e(s)
    if cfg.prio == 1: a.e(f"s_setprio {1 - X}")
    if cfg.prio == 2 and X == 0: a.e(f"s_setprio {1 - par}")
    for k in range(8):
        if cfg.prio == 3 and k in (0, 4): a.e(f"s_setprio {1 if k == 0 else 0}")
        if cfg.prio == 4: a.e("s_setprio 1")
        if cfg.prio == 5: a.e("s_setprio 0")
        if "nomfma" not in cfg.x and k < len(mf): a.e(mf[k])
        for i in range(2):
            z = Z + 16 * (c0 + i) + 2 * k
            a.e(f"v_exp_f32 v{EX+2*i}, v{z}")
            a.e(f"v_exp_f32 v{EX+2*i+1}, v{z+1}")
        for s in extras.get(k, []): a.e(s)
        if cfg.prio == 4: a.e("s_setprio 0")
        if cfg.prio == 5: a.e("s_setprio 1")
        bit = 8 * (k >> 1) + 2 * (k & 1)
        lf, lb = f"F_{tag}_{k}", f"R_{tag}_{k}"
        if "nobr" not in cfg.x:
            a.e(f"s_bitcmp1_b32 s{sSafe if 'nofl' in cfg.x else sF0+1}, {bit}")
            a.e(f"s_cbranch_scc1 {lf}")
        for i in range(2):
            c = c0 + i; z = Z + 16 * c + 2 * k
            a.e(f"v_pk_fma_f32 {p2(TT+2*i)}, {p2(z)}, {p2(DD+2*c)}, {p2(NN+2*c)}")
        for i in range(2):
            c = c0 + i
            a.e(f"v_pk_fma_f32 {p2(DD+2*c)}, {p2(DD+2*c)}, {p2(EX+2*i)}, {p2(DD+2*c)}")
        for i in range(2):
            c = c0 + i
            a.e(f"v_pk_fma_f32 {p2(NN+2*c)}, {p2(NN+2*c)}, {p2(EX+2*i)}, {p2(TT+2*i)}")
        a.label(lb)
        ool.label(lf)
        t = vT + 8 * X
        ex = "K2_LEND" if X else (f"EXA{par}_{k}" if k < 6 else f"R_{tag}_7")
        sal = ([f"s_bitcmp1_b32 s{sF0}, {bit+1}", f"s_cbranch_scc1 {ex}"] if k else []) + \
              [f"s_bitcmp1_b32 s{sF0}, {bit}", f"s_cselect_b32 s{sT}, -1, 0", f"s_bitcmp1_b32 s{sF0}, {bit+4}", f"s_cselect_b32 s{sT+1}, -1, 0"]
        rc = [f"v_rcp_f32 v{t+j}, v{DD+2*c0+j}" for j in range(4)]
        n = len(sal)
        for j in range(4):
            ool.e(rc[j])
            for x in sal[:(n + 3 - j) // 4 if False else 0]: pass
            cnt = (n // 4) + (1 if j < n % 4 else 0)
            for _ in range(cnt): ool.e(sal.pop(0))
        for i in range(2):
            c = c0 + i
            ool.e(f"v_max3_f32 v{vCHK}, v{DD+2*c}, v{DD+2*c+1}, v{vCHK}")
        ool.e(f"v_mov_b32_dpp v{t+6}, v{vQA+2*par+(k>>2)} row_newbcast:{4*(k&3)} row_mask:0xf bank_mask:0xf")
        nk = sum(1 for x in extras.get(k, []) if x.startswith("ds_")) if cfg.cw else 0
        if k == 0 and cfg.cw: pass
        elif k == 7 and cfg.cw: pass
        else: ool.e(f"s_waitcnt lgkmcnt({nk})")
        for j in range(2):
            for i in range(2):
                c = c0 + i
                ool.e(f"v_fmac_f32 v{ACC+c}, v{NN+2*c+j}, v{t+2*i+j}")
        ool.e(f"s_mov_b64 exec, s[{sT}:{sT+1}]")
        ool.e(f"ds_write2_b32 v{vCUR+X}, v{ACC+c0}, v{ACC+c0+1} offset0:{32*c0} offset1:{32*c0+32}")
        ool.e(f"v_lshl_add_u32 v{vCUR+X}, v{t+6}, 1, v{vCA}")
        ool.e(f"ds_read2_b32 v[{ACC+c0}:{ACC+c0+1}], v{vCUR+X} offset0:{32*c0} offset1:{32*c0+32}")
        ool.e("s_mov_b64 exec, -1")
        for i in range(2):
            c = c0 + i
            ool.e(f"v_pk_add_f32 {p2(DD+2*c)}, {p2(EX+2*i)}, 1.0 op_sel_hi:[1,0]")
        for i in range(2):
            c = c0 + i; z = Z + 16 * c + 2 * k
            ool.e(f"v_pk_mov_b32 {p2(NN+2*c)}, {p2(z)}, {p2(z)} op_sel:[0,1]")
        ool.e(f"s_branch {lb}")

def lds_fill(a, base, nbytes, vdata, vaddr16, ex):
    n = (nbytes + 15) // 16
    r = 0
    while n >= 512:
        a.e(f"ds_write_b128 v{vaddr16}, v[{vdata}:{vdata+3}] offset:{base + r*8192}")
        n -= 512; r += 1
    if n:
        a.e(f"s_movk_i32 s{sT}, {n}")
        a.e(f"v_cmp_gt_u32 vcc, s{sT}, v0")
        a.e(f"s_and_saveexec_b64 s[{ex}:{ex+1}], vcc")
        a.e(f"ds_write_b128 v{vaddr16}, v[{vdata}:{vdata+3}] offset:{base + r*8192}")
        a.e(f"s_mov_b64 exec, s[{ex}:{ex+1}]")

def reset_round(a, zero_agg):
    t = vT
    a.e(f"v_lshlrev_b32 v{t}, 4, v0")
    a.e(f"v_mov_b32 v{t+8}, 0\nv_mov_b32 v{t+9}, 0\nv_mov_b32 v{t+10}, 0\nv_mov_b32 v{t+11}, 0")
    lds_fill(a, CNT, 272, t+8, t, sX0)
    if zero_agg: lds_fill(a, AGG, 49 * 528, t+8, t, sX0)

def onehot4(a, dst, vJ, vcond_sgpr, t):
    a.e(f"v_and_b32 v{t}, 1, v{vJ}")
    a.e(f"v_lshlrev_b32 v{t}, 4, v{t}")
    a.e(f"v_mov_b32 v{t+1}, 0x3f80")
    a.e(f"v_lshlrev_b32 v{t}, v{t}, v{t+1}")
    if vcond_sgpr is not None:
        a.e(f"v_cndmask_b32 v{t}, 0, v{t}, s[{vcond_sgpr}:{vcond_sgpr+1}]")
    a.e(f"v_lshrrev_b32 v{t+1}, 1, v{vJ}")
    for i in range(4):
        a.e(f"v_cmp_eq_u32 vcc, {i}, v{t+1}")
        a.e("s_nop 1")
        a.e(f"v_cndmask_b32 v{dst+i}, 0, v{t}, vcc")

def gen_k2(a):
    ool = Asm()
    rare = Asm()
    RC = 160; RK = 172; NA = 184; EN = 212
    XF, WU1F, W2F, QACC = 64, 96, [128, 132, 136, 140, 160, 164, 168, 172], 212
    vLA0, vXA, vW3A, vW0 = vT + 20, vT + 21, vT + 22, vT + 23
    t = vT + 12
    kernel_head(a, NAME + "_kernel")
    load_args(a)
    a.e(f"v_lshrrev_b32 v{vT+1}, 2, v0")
    a.e(f"v_and_b32 v{vW0}, 3, v0")
    a.e("s_cmp_ge_u32 s2, 256")
    a.e("s_cbranch_scc1 K2_END")
    if cfg.dbg:
        a.e("v_mov_b32 v252, 0")
        a.e("s_memrealtime s[92:93]")
    idmap(a, sBin, 2, sT)
    a.e(f"v_mul_u32_u24 v{vEB}, 3200, v{vT+1}")
    a.e(f"v_lshlrev_b32 v{vT+4}, 4, v{vW0}")
    a.e(f"s_lshl_b32 s{sT+2}, s{sBin}, 7")
    a.e(f"s_add_u32 s{sT+2}, s{sT+2}, {cfg.wsoff + WS_S01}")
    a.e(f"v_lshl_add_u32 v{vT+2}, v{vT+1}, 15, v{vT+4}")
    a.e(f"s_mov_b32 s{sOT+2}, {124*32768+128}")
    a.e(f"s_mov_b32 s{sOT+3}, 0x20000")
    a.e(f"v_lshrrev_b32 v{vT}, 6, v0")
    a.e(f"v_and_b32 v{vL}, 63, v0")
    a.e(f"v_readfirstlane_b32 s{sW}, v{vT}")
    a.e(f"s_mul_i32 s{sT+3}, s{sBin}, 12544")
    a.e(f"s_sub_u32 s{sT+4}, 3200000, s{sT+3}")
    a.e(f"s_min_u32 s{sT+4}, s{sT+4}, 12544")
    a.e(f"v_mov_b32 v{vT+8}, 0\nv_mov_b32 v{vT+9}, 0\nv_mov_b32 v{vT+10}, 0\nv_mov_b32 v{vT+11}, 0")
    a.e(f"v_lshlrev_b32 v{vW3A}, 4, v{vL}")
    a.e("s_mov_b64 exec, 0x1ffff")
    a.e(f"ds_write_b128 v{vW3A}, v[{vT+8}:{vT+11}] offset:{CNT}")
    a.e("s_mov_b64 exec, -1")
    WU1L = 32768
    NPF = cfg.prefetchP
    vXD, vW3D = vT + 18, vT + 7
    sM = sX0 + 4
    c = Asm(); x_dma(c, sX, sW, vL, STG, vXD, sM + 2, strided=True)
    for x in c.lines[:-4]: a.e(x)
    a.e(f"s_add_u32 s{sM+3}, s{sM+3}, {STG}")
    xd = c.lines[-2:]
    w_lane_const(a, vWC, vL, t)
    a.e(f"s_lshl_b32 s{sW4k}, s{sW}, 12")
    a.e(f"s_lshl_b32 s{sM0}, s{sW}, 13")
    a.e(f"s_add_u32 s{sM}, s{sM0}, {STG + 4096}")
    a.e(f"s_add_u32 s{sM0}, s{sM0}, {STG - 256}")
    a.e(f"s_add_u32 s{sM+1}, s{sW4k}, {WU1L}")
    a.e(f"v_lshlrev_b32 v{vW3D}, 4, v0")
    a.e(f"s_and_b32 s{sT+1}, s{sW}, 4")
    a.e(f"s_add_u32 s{sT}, s{sW}, s{sT+1}")
    a.e(f"s_lshl_b32 s{sT}, s{sT}, 10")
    a.e(f"s_add_u32 m0, s{sT}, {STG + 32768}")
    a.e(f"s_mov_b32 s{sR+2}, 4096")
    a.e(f"s_mov_b32 s{sR+3}, 0x20000")
    a.e("s_waitcnt lgkmcnt(0)")
    a.e(f"s_add_u32 s{sOT}, s{S_WS}, s{sT+2}")
    a.e(f"s_addc_u32 s{sOT+1}, s{S_WS+1}, 0")
    a.e(f"buffer_load_dwordx4 v[{RC}:{RC+3}], v{vT+2}, s[{sOT}:{sOT+3}], 0 offen {cfg.s_pol}")
    a.e(f"buffer_load_dwordx4 v[{RC+4}:{RC+7}], v{vT+2}, s[{sOT}:{sOT+3}], 0 offen offset:64 {cfg.s_pol}")
    a.e(f"s_add_u32 s{sR}, s{S_WS}, {cfg.wsoff + WS_W3F}")
    a.e(f"s_addc_u32 s{sR+1}, s{S_WS+1}, 0")
    a.e(f"buffer_load_dwordx4 v{vW3D}, s[{sR}:{sR+3}], 0 offen lds")
    if cfg.dbg:
        a.e("v_writelane_b32 v252, s92, 0")
        a.e("s_getreg_b32 s90, hwreg(HW_REG_XCC_ID)")
        a.e("s_add_u32 s90, s90, 1")
        a.e("v_writelane_b32 v252, s90, 39")
    stamp(a, 40, 252)
    srd(a, sX, S_X, off_s=sT+3, size=f"s{sT+4}")
    srd(a, sO, S_OUT, off_s=sT+3, size=f"s{sT+4}")
    srd(a, sWm, S_WM, off_c=32768, size=32768)
    srd(a, sWu, S_WU, size=256*256)
    if cfg.spf:
        a.e(f"s_lshr_b32 s{sT}, s2, 3")
        a.e(f"s_mul_i32 s{sT}, s{sT}, {781*128}")
        a.e(f"s_mul_i32 s{sT+1}, s{sW}, {cfg.spf*128}")
        a.e(f"s_add_u32 s{sT}, s{sT}, s{sT+1}")
        a.e(f"s_add_u32 s{sT}, s{sT}, {cfg.wsoff + WS_P + (781 - 8*cfg.spf)*128}")
        a.e(f"s_add_u32 s{sT}, s{S_WS}, s{sT}")
        a.e(f"s_addc_u32 s{sT+1}, s{S_WS+1}, 0")
    a.e("s_barrier")
    for j in range(cfg.spf):
        a.e(f"s_load_dword s78, s[{sT}:{sT+1}], {hex(128*j)}")
    stamp(a, 41, 252)
    def mix(lines, extra, first=0):
        out = []; n = len(lines); m = len(extra); k = 0; full = True
        for i, x in enumerate(lines):
            while full and k < m and k * n <= i * m: out += extra[k]; k += 1
            out.append(x)
            if "exec" in x.split(",")[0]: full = x.strip() == "s_mov_b64 exec, -1"
        return out + sum(extra[k:], [])
    dm = [[f"s_mov_b32 m0, s{sM+3}", "s_nop 0", xd[0]], [xd[1]]]
    for j, srdw in enumerate((sWm, sWu)):
        for i in range(4):
            o = f" offset:{1024*i}" if i else ""
            dm.append(([f"s_mov_b32 m0, s{sM+j}", "s_nop 0"] if i == 0 else []) + [f"buffer_load_dwordx4 v{vWC}, s[{srdw}:{srdw+3}], s{sW4k} offen{o} lds"])
    c = Asm(); sav = a.lines; a.lines = c.lines
    a.e(f"v_and_b32 v{t+1}, 7, v{vL}")
    onehot4(a, AQ, t+1, None, t+2)
    a.e(f"v_lshlrev_b32 v{t+2}, 5, v{vL}")
    a.e(f"v_and_b32 v{vM}, 31, v0")
    a.e(f"v_lshlrev_b32 v{vW0}, 2, v{vW0}")
    a.e("s_mov_b64 exec, 0x1ff")
    a.e(f"ds_write_b128 v{t+2}, v[{vT+8}:{vT+11}] offset:{LUT+16}")
    a.e("s_mov_b64 exec, 0x100")
    a.e(f"ds_write_b128 v{t+2}, v[{vT+8}:{vT+11}] offset:{LUT}")
    a.e("s_mov_b64 exec, 0xff")
    a.e(f"ds_write_b128 v{t+2}, v[{AQ}:{AQ+3}] offset:{LUT}")
    a.e("s_mov_b64 exec, -1")
    srd(a, sP, S_WS, off_c=cfg.wsoff + WS_P - 3072, size=PSIZE)
    if NPF:
        a.e(f"s_lshr_b32 s{sT}, s2, 3")
        a.e(f"s_mul_i32 s{sT}, s{sT}, {781*128}")
        a.e(f"s_add_u32 s{sT}, s{sT}, 3072")
        a.e(f"v_lshl_add_u32 v{vPF}, v{vL}, 3, s{sW}")
        if cfg.pfn < 512:
            a.e(f"s_movk_i32 s{sT+1}, {cfg.pfn}")
            a.e(f"v_cmp_gt_u32 vcc, s{sT+1}, v{vPF}")
        a.e(f"v_lshl_add_u32 v{vPF}, v{vPF}, 7, s{sT}")
        if NPF > 1:
            a.e(f"v_add_u32 v{vPF+1}, 0x10000, v{vPF}")
        if cfg.pfn < 512:
            a.e(f"v_mov_b32 v{vT+3}, 0x7ffffff0")
            a.e(f"v_cndmask_b32 v{vPF+NPF-1}, v{vT+3}, v{vPF+NPF-1}, vcc")
    if cfg.pfe:
        a.e(f"s_mul_i32 s{sT}, s2, 51200")
        a.e(f"v_lshl_add_u32 v{vPF+1}, v{vL}, 3, s{sW}")
        a.e(f"s_movk_i32 s{sT+1}, {cfg.pfe}")
        a.e(f"v_cmp_gt_u32 vcc, s{sT+1}, v{vPF+1}")
        a.e(f"v_lshl_add_u32 v{vPF+1}, v{vPF+1}, 7, s{sT}")
        a.e(f"v_mov_b32 v{vT+3}, 0x7ffffff0")
        a.e(f"v_cndmask_b32 v{vPF+1}, v{vT+3}, v{vPF+1}, vcc")
    NPP = NPF
    if cfg.pfm:
        a.e(f"v_lshl_add_u32 v{vPF+1}, v{vL}, 3, s{sW}")
        a.e(f"s_movk_i32 s{sT+1}, {cfg.pfm}")
        a.e(f"v_cmp_gt_u32 vcc, s{sT+1}, v{vPF+1}")
        a.e(f"s_add_u32 s{sT}, s{sT}, 0x10000")
        a.e(f"v_lshl_add_u32 v{vPF+1}, v{vPF+1}, 7, s{sT}")
        a.e(f"v_cndmask_b32 v{vPF+1}, v{vT+3}, v{vPF+1}, vcc")
        dm[cfg.pfmpos] = dm[cfg.pfmpos] + [f"buffer_load_dword v37, v{vPF+1}, s[{sP}:{sP+3}], 0 offen"]
    if cfg.tlb:
        a.e(f"v_lshlrev_b32 v{vPF+1}, 20, v{vL}")
    def pf(pos):
        if cfg.pfpos == pos:
            if cfg.tlb & 1: a.e(f"buffer_load_dword v37, v{vPF+1}, s[{sE}:{sE+3}], 0 offen")
            if cfg.tlb & 2: a.e(f"buffer_load_dword v37, v{vPF+1}, s[{sO}:{sO+3}], 0 offen")
            if cfg.pfe: a.e(f"buffer_load_dword v37, v{vPF+1}, s[{sE}:{sE+3}], 0 offen {cfg.et_pol}")
            for i in range(NPP): a.e(f"buffer_load_dword v37, v{vPF+i}, s[{sP}:{sP+3}], 0 offen")
    if cfg.pfe: NPF += 1
    NPF += (cfg.tlb & 1) + (cfg.tlb >> 1 & 1)
    a.e(f"s_mov_b32 s{sLim}, 32")
    a.e(f"s_mov_b32 s{sDone}, 0")
    wfrag_const(a, vWA, vL, sW, t, sT)
    a.e(f"v_add_u32 v{vW3A}, {STG + 32768}, v{vW3A}")
    a.e(f"v_lshrrev_b32 v{t}, 5, v{vL}")
    a.e(f"v_and_b32 v{t+1}, 15, v{vL}")
    a.e(f"v_xor_b32 v{t+2}, v{t}, v{t+1}")
    a.e(f"v_lshlrev_b32 v{t+2}, 4, v{t+2}")
    a.e(f"v_lshl_add_u32 v{vXA}, v{t+1}, 8, v{t+2}")
    a.e(f"v_bfe_u32 v{t+2}, v{vL}, 4, 1")
    a.e(f"v_lshl_add_u32 v{vXA}, v{t+2}, 13, v{vXA}")
    a.e(f"s_lshr_b32 s{sT}, s{sW}, 2")
    a.e(f"s_lshl_b32 s{sT}, s{sT}, 14")
    a.e(f"s_add_u32 s{sT}, s{sT}, {STG}")
    a.e(f"v_add_u32 v{vXA}, s{sT}, v{vXA}")
    srd(a, sE, S_E, size=ESIZE)
    a.e(f"s_mov_b32 s{sSafe}, 0")
    a.e(f"s_mov_b32 s{sFirst}, 1")
    a.e(f"s_mov_b32 s{sMask}, {'0x4003ffe0' if 'esm' in cfg.x else '0x7fffffe0'}")
    a.e(f"v_mov_b32 v{vCL}, {LUT + 256}")
    a.e(f"v_bfe_u32 v{t+1}, v{vL}, 3, 2")
    a.e(f"v_bfe_u32 v{t+3}, v{vL}, 1, 1")
    a.e(f"v_lshl_add_u32 v{t+1}, v{t+1}, 1, v{t+3}")
    a.e(f"v_lshlrev_b32 v{t+1}, 5, v{t+1}")
    a.e("s_mov_b32 exec_lo, 0x0f0f0f0f\ns_mov_b32 exec_hi, 0xf0f0f0f0")
    a.e(f"v_add_u32 v{vCL}, {LUT}, v{t+1}")
    a.e("s_mov_b64 exec, -1")
    a.e(f"v_lshlrev_b32 v{vH16}, 4, v{t}")
    if 'ehalf' in cfg.x: a.e(f"v_lshlrev_b32 v18, 30, v{t}")
    a.e(f"v_and_b32 v{t+1}, 3, v{vL}")
    a.e(f"v_lshlrev_b32 v{vCQ}, 3, v{t+1}")
    a.e(f"v_lshl_add_u32 v{vCQ}, v{t+2}, 5, v{vCQ}")
    a.e(f"v_add_u32 v{vCQ}, {QL}, v{vCQ}")
    a.e(f"v_lshlrev_b32 v{vCA}, 2, v{vM}")
    a.e(f"v_mad_u32_u24 v{vSD}, v{vH16}, 33, v{vCA}")
    a.e(f"s_mul_i32 s{sT}, s{sW}, 1056")
    a.e(f"s_add_u32 s{sT}, s{sT}, {SIDE}")
    a.e(f"v_add_u32 v{vSD}, s{sT}, v{vSD}")
    a.e(f"v_lshlrev_b32 v{t+2}, 6, v{t+2}")
    a.e(f"v_sub_u32 v{vCA}, v{vCA}, v{t+2}")
    a.e(f"v_add_u32 v{vCA}, {AGG - 2*QL}, v{vCA}")
    a.e(f"v_bfe_u32 v{t+1}, v{vL}, 2, 2")
    a.e(f"v_lshl_add_u32 v{vRP0}, v{t+1}, 7, v{vCQ}")
    a.e(f"v_lshl_add_u32 v{vRP0}, v{t}, 11, v{vRP0}")
    a.e(f"v_and_b32 v{t+1}, 8, v{vL}")
    a.e(f"v_lshl_add_u32 v{vRP0}, v{t+1}, 3, v{vRP0}")
    a.e(f"s_add_u32 s{sT}, s{sM0}, {256 - QL}")
    a.e(f"v_add_u32 v{vRP0}, s{sT}, v{vRP0}")
    a.e(f"v_xor_b32 v{vRP1}, 64, v{vRP0}")
    a.e(f"s_movk_i32 s{s256}, 256")
    a.e(f"v_mov_b32 v{vCHK}, 0")
    def round_consts(a):
        a.e(f"v_lshrrev_b32 v{t}, 3, v{vM}")
        a.e(f"v_and_b32 v{t+1}, 3, v{vL}")
        a.e(f"v_lshl_add_u32 v{vAE}, v{t}, 2, v{t+1}")
        a.e(f"v_lshlrev_b32 v{vAE}, 3, v{vAE}")
        a.e(f"v_bfe_u32 v{t+1}, v{vL}, 2, 2")
        a.e(f"v_lshlrev_b32 v{vAQ}, 4, v{t+1}")
        a.e(f"v_and_b32 v{vAP}, 24, v{vL}")
        a.e(f"v_and_b32 v{t}, 7, v{vL}")
        a.e(f"v_bfe_u32 v{t+1}, v{vL}, 4, 1")
        a.e(f"v_lshlrev_b32 v{t}, 4, v{t}")
        a.e(f"v_lshlrev_b32 v{t+1}, 6, v{t+1}")
        a.e(f"v_xor_b32 v{vC4+3}, v{t}, v{t+1}")
        for j in range(3):
            a.e(f"v_add_u32 v{vC4+j}, {1024*(3-j)}, v{vC4+3}")
        a.e(f"v_mov_b32 v{vT}, 1")
        a.e(f"v_mov_b32 v{vT+1}, {FLG}")
        a.e(f"v_lshlrev_b32 v{vT+2}, 2, v{vL}")
        a.e(f"s_mov_b32 s{sT}, 0x420000")
        a.e(f"s_brev_b32 s{sT+6}, 1")
        a.e(f"s_add_u32 s{sT+7}, s{sDone}, s{sLim}")
        a.e(f"v_cmp_ne_u32 s[{sX0+2}:{sX0+3}], 0, v{vW0}")
    round_consts(a)
    a.lines = sav
    for x in mix(c.lines, dm): a.e(x)
    stamp(a, 1, 252)
    pf(1)
    stamp(a, 4, 252)
    a.e(f"s_waitcnt vmcnt({11 + (1 if cfg.pfm else 0) + (NPF if cfg.pfpos <= 1 else 0)})")
    stamp(a, 5, 252)
    a.e(f"v_mov_b32_dpp v{vOC}, v{RC} quad_perm:[0,0,0,0] row_mask:0xf bank_mask:0xf")
    a.label("K2_COUNT")
    def groups(fn, lab, order=range(8), extra=(), pre=()):
        c = Asm(); sav = a.lines; a.lines = c.lines
        for i in order: fn(i)
        a.lines = sav
        for x in mix(c.lines, list(extra)): a.e(x)
    KK = lambda i: 16 * (i >> 2) + (i & 3)
    na = lambda i: f"v_lshlrev_b32_sdwa v{NA+i}, 2, v{RC+i} dst_sel:BYTE_0 dst_unused:UNUSED_PAD src0_sel:DWORD src1_sel:BYTE_0"
    a.e(na(1))
    a.e(f"v_min_u32 v{vREM}, s{sT+7}, v{vOC}")
    a.e(f"v_sub_u32 v{vREM}, v{vREM}, v{vW0}")
    a.e(f"v_cmp_lt_u32 s[{sX0+6}:{sX0+7}], s{sT+7}, v{vOC}")
    a.e(f"v_cmp_lt_i32 s[{sX0}:{sX0+1}], 0, v{vREM}")
    a.e(na(0))
    def f_cnt(i):
        a.e(f"v_cmpx_lt_i32 vcc, {KK(i)}, v{vREM}")
        if i < 7: a.e(na(i + 1))
        a.e(f"ds_add_rtn_u32 v{RK+i}, v{NA+i}, v{vT} offset:{CNT}")
    groups(f_cnt, "K2_G1", order=range(1, 8))
    a.e(f"s_and_b64 s[{sX0}:{sX0+1}], s[{sX0}:{sX0+1}], s[{sX0+2}:{sX0+3}]")
    a.e(f"s_mov_b64 exec, s[{sX0}:{sX0+1}]")
    a.e(f"ds_add_rtn_u32 v{RK}, v{NA}, v{vT} offset:{CNT}")
    a.e(f"s_mov_b64 exec, s[{sX0+6}:{sX0+7}]")
    a.e(f"ds_write_b32 v{vT+1}, v{vT}")
    a.e("s_mov_b64 exec, -1")
    def f_ent(i):
        e0 = EN + 2 * i
        a.e(f"v_lshrrev_b32 v{e0}, 20, v{RC+i}")
        a.e(f"v_add_lshl_u32 v{e0}, v{e0}, v{vEB}, 5")
    groups(f_ent, "K2_G2")
    pf(2)
    a.e("s_waitcnt lgkmcnt(0)")
    a.e("s_barrier")
    stamp(a, 6, 252)
    a.e(f"ds_read_b32 v{vT+6}, v{vT+2} offset:{CNT}")
    a.e(f"ds_read_b32 v{vT+5}, v{vT+1}")
    def f_ent2(i):
        e1 = EN + 1 + 2 * i
        a.e(f"v_bfe_u32 v{e1}, v{RC+i}, 6, 14")
        a.e(f"v_mad_u32_u24 v{e1}, v{NA+i}, s{sT}, v{e1}")
    groups(f_ent2, "K2_G5")
    a.e("s_waitcnt lgkmcnt(0)")
    a.e(f"v_add_u32 v{vT+3}, 1, v{vT+6}")
    a.e(f"v_lshrrev_b32 v{vT+3}, 1, v{vT+3}")
    a.e(f"v_mov_b32 v{vT+4}, v{vT+3}")
    a.e(f"v_readfirstlane_b32 s{sMore}, v{vT+5}")
    fl = []
    for i in range(8):
        fl.append(f"v_add_u32 v{RC+i}, -1, v{RK+i}")
        fl.append(f"v_and_or_b32 v{EN+2*i}, v{RC+i}, s{sT+6}, v{EN+2*i}")
    v = vT + 4
    dpp = [f"v_add_u32_dpp v{v}, v{v}, v{v} row_shr:{sh} row_mask:0xf bank_mask:0xf bound_ctrl:0" for sh in (1, 2, 4, 8)]
    dpp += [f"v_add_u32_dpp v{v}, v{v}, v{v} row_bcast:15 row_mask:0xa bank_mask:0xf", f"v_add_u32_dpp v{v}, v{v}, v{v} row_bcast:31 row_mask:0xc bank_mask:0xf"]
    for j in range(6):
        a.e(fl[2*j]); a.e(fl[2*j+1]); a.e(dpp[j])
    a.e(fl[12])
    a.e(f"v_readlane_b32 s{sT+5}, v{vT+4}, 63")
    a.e(f"v_sub_u32 v{vT+4}, v{vT+4}, v{vT+3}")
    a.e(f"v_lshlrev_b32 v{vT+4}, 4, v{vT+4}")
    def f_perm(i):
        a.e(f"ds_bpermute_b32 v{NA+i}, v{NA+i}, v{vT+4}")
        if i >= 8:
            a.e(f"v_add_u32 v{RC+i}, -1, v{RK+i}")
            a.e(f"v_and_or_b32 v{EN+2*i}, v{RC+i}, s{sT+6}, v{EN+2*i}")
    groups(f_perm, "K2_G3")
    for x in fl[13:]: a.e(x)
    pf(3)
    a.e(f"s_cmp_gt_u32 s{sT+5}, 1025")
    a.e("s_cbranch_scc1 K2_TOOBIG")
    a.e(f"s_add_u32 s{sT}, s{sT+5}, 7")
    a.e(f"s_lshr_b32 s{sT}, s{sT}, 3")
    if cfg.ratio:
        a.e(f"s_mul_i32 s{sT+1}, s{sT}, {cfg.ratio}")
        a.e(f"s_add_u32 s{sT+1}, s{sT+1}, 63")
        a.e(f"s_lshr_b32 s{sT+1}, s{sT+1}, 6")
    else:
        a.e(f"s_add_u32 s{sT+1}, s{sT}, {cfg.bias}")
        a.e(f"s_lshr_b32 s{sT+1}, s{sT+1}, 4")
        a.e(f"s_lshl_b32 s{sT+1}, s{sT+1}, 3")
    a.e(f"s_min_u32 s{sT+1}, s{sT+1}, s{sT}")
    a.e(f"s_sub_u32 s{sT+2}, s{sT}, s{sT+1}")
    a.e(f"s_and_b32 s{sT+3}, s{sW}, 3")
    a.e(f"s_mul_i32 s{sT+3}, s{sT+3}, s{sT}")
    a.e(f"s_cmp_lt_u32 s{sW}, 4")
    a.e(f"s_cselect_b32 s{sL}, s{sT+1}, s{sT+2}")
    a.e(f"s_cselect_b32 s{sT+4}, 0, s{sT+1}")
    a.e(f"s_add_u32 s{sT+3}, s{sT+3}, s{sT+4}")
    a.e(f"s_lshl_b32 s{sT+3}, s{sT+3}, 5")
    a.e(f"s_add_u32 s{sT+3}, s{sT+3}, {LIST}")
    a.e(f"s_lshl_b32 s{sT+4}, s{sL}, 4")
    a.e(f"s_add_u32 s{sNT}, s{sL}, 7")
    a.e(f"s_lshr_b32 s{sNT}, s{sNT}, 3")
    a.e(f"s_cmp_eq_u32 s{sW}, 7")
    a.e("s_cbranch_scc0 K2_NODUM")
    a.e(f"v_mov_b32 v{vT+8}, 0x7ffffff0\nv_mov_b32 v{vT+9}, 0xffff\nv_mov_b32 v{vT+10}, 0x7ffffff0\nv_mov_b32 v{vT+11}, 0xffff")
    a.e(f"v_lshl_add_u32 v{vT+7}, v{vT+6}, 3, v{vT+4}")
    a.e(f"v_and_b32 v{vT+6}, 1, v{vT+6}")
    a.e(f"v_cmp_eq_u32 vcc, 1, v{vT+6}")
    a.e("s_mov_b64 exec, vcc")
    a.e(f"ds_write_b64 v{vT+7}, v[{vT+8}:{vT+9}] offset:{LIST}")
    a.e("s_mov_b32 exec_lo, -1\ns_mov_b32 exec_hi, 0x7f")
    a.e(f"v_add_lshl_u32 v{vT+7}, v{vL}, s{sT+5}, 4")
    a.e(f"ds_write_b128 v{vT+7}, v[{vT+8}:{vT+11}] offset:{LIST}")
    a.e("s_mov_b64 exec, -1")
    a.label("K2_NODUM")
    a.e("s_waitcnt lgkmcnt(0)")
    a.e(f"v_lshl_add_u32 v{NA}, v{RK}, 3, v{NA}")
    def f_place(i):
        a.e(f"v_cmpx_lt_i32 vcc, {KK(i)}, v{vREM}")
        a.e(f"v_lshl_add_u32 v{NA+i}, v{RK+i}, 3, v{NA+i}")
        a.e(f"ds_write_b64 v{NA+i}, v[{EN+2*i}:{EN+1+2*i}] offset:{LIST}")
    groups(f_place, "K2_G4", order=range(1, 8))
    a.e(f"s_mov_b64 exec, s[{sX0}:{sX0+1}]")
    a.e(f"ds_write_b64 v{NA}, v[{EN}:{EN+1}] offset:{LIST}")
    a.e("s_mov_b64 exec, -1")
    a.e(f"v_add_u32 v{vAE}, s{sT+3}, v{vAE}")
    a.e(f"v_add3_u32 v{vAP}, v{vAP}, s{sT+3}, 4")
    a.e(f"v_add3_u32 v{vAQ}, v{vAQ}, s{sT+3}, 6")
    a.e("s_mov_b32 exec_lo, 0xf0f0f0f0\ns_mov_b32 exec_hi, 0xf0f0f0f0")
    a.e(f"v_add_u32 v{vAE}, s{sT+4}, v{vAE}")
    a.e("s_mov_b32 exec_lo, 0\ns_mov_b32 exec_hi, -1")
    a.e(f"v_add_u32 v{vAP}, s{sT+4}, v{vAP}")
    a.e(f"v_add_u32 v{vAQ}, s{sT+4}, v{vAQ}")
    a.e("s_mov_b64 exec, -1")
    a.e(f"s_sub_u32 s{sT+1}, s{sT+1}, 1")
    a.e(f"s_sub_u32 s{sT+2}, s{sT+2}, 1")
    a.e(f"s_min_u32 s{sT+1}, s{sT+1}, s{sT+2}")
    a.e(f"v_cmp_lt_u32 s[{sSusp}:{sSusp+1}], s{sT+1}, v{vT+3}")
    a.e(f"s_cmp_eq_u32 s{sNT}, 0")
    a.e(f"s_cselect_b32 s{sP+2}, 0, {PSIZE}")
    a.e(f"s_cselect_b32 s{sE+2}, 0, {ESIZE}")
    a.e(f"s_cmp_eq_u32 s{sFirst}, 0")
    a.e(f"s_waitcnt vmcnt({NPF}) lgkmcnt(0)")
    a.e("s_barrier")
    a.e("s_cbranch_scc1 K2_PRO2")
    stamp(a, 7, 252)
    adv = [f"v_add_u32 v{r}, s{s256}, v{r}" for r in (vAE, vAP, vAQ)]
    def early_e1():
        return addr_e() + [f"s_cmp_lt_u32 s{sNT}, 2", f"s_cselect_b32 s{sE+2}, 0, s{sE+2}", e_load(1)]
    def prologue(a, first):
        for s in list_reads_se() + list_reads_n(): a.e(s)
        if first:
            for st in range(8):
                if st == 0: a.e(f"ds_read_b128 v[{XF}:{XF+3}], v{vXA}")
                else:
                    r = vT + (st & 1)
                    a.e(f"v_xor_b32 v{r}, {32*st}, v{vXA}")
                    a.e(f"ds_read_b128 v[{XF+4*st}:{XF+4*st+3}], v{r}")
        a.e(f"s_waitcnt lgkmcnt({8 if first else 0})")
        for s in addr_se() + addr_q(0): a.e(s)
        for s in list_reads_se(1): a.e(s)
        for s in flags_from_vcc(sF0): a.e(s)
        d0 = dma_ops(0, "alt"); d1 = dma_ops(1)
        fr = Asm()
        if first:
            a.e(f"v_add_u32 v{vT+3}, {STG + 4096}, v{vWA}")
            wfrag_read(fr, W2F, vT+3, 0, 8192)
            wfrag_read(fr, WU1F, vWA, WU1L)
            for c in range(4):
                fr.e(f"ds_read_b128 v[{W3+4*c}:{W3+4*c+3}], v{vW3A} offset:{1024*c}")
        n4 = len(fr.lines) // 4
        if cfg.e0f: a.e(e_load(0))
        for s in d0[0] + fr.lines[:n4] + d0[1] + fr.lines[n4:2*n4]: a.e(s)
        if not cfg.e0f: a.e(e_load(0))
        for s in fr.lines[2*n4:3*n4]: a.e(s)
        a.e(f"v_cmp_ne_u32 vcc, v{vLA}, v{vCL}")
        a.e(f"v_mov_b32_dpp v{vFA}, v{vQA} row_newbcast:0 row_mask:0xf bank_mask:0xf")
        a.e(f"v_mov_b32 v{vLA0}, v{vLA}")
        for s in d0[2] + fr.lines[3*n4:]: a.e(s)
        a.e(f"s_cmp_eq_u32 s{sNT}, 0")
        a.e(f"s_cselect_b32 s{sDm}, -1, vcc_lo")
        a.e(f"v_lshl_add_u32 v{vFA}, v{vFA}, 1, v{vCA}")
        for s in d0[3]: a.e(s)
        if first:
            a.e(f"s_lshr_b32 s{sT+1}, s{sW}, 2")
            a.e(f"s_lshl_b32 s{sT+1}, s{sT+1}, 5")
            a.e(f"v_add_u32 v{vT+1}, s{sT+1}, v{vM}")
            a.e(f"v_mul_u32_u24 v{vT+2}, 264, v{vT+1}")
            a.e(f"v_lshl_add_u32 v{vT+2}, v{vH16}, 1, v{vT+2}")
            a.e(f"s_and_b32 s{sT+1}, s{sW}, 3")
            a.e(f"s_lshl_b32 s{sT+1}, s{sT+1}, 6")
            a.e(f"v_add_u32 v{vT+2}, s{sT+1}, v{vT+2}")
            a.e(f"v_cmp_gt_u32 s[{sX0}:{sX0+1}], 49, v{vT+1}")
            a.e(f"v_lshlrev_b32 v{vT}, 4, v0")
            a.e(f"v_mov_b32 v{vT+8}, 0\nv_mov_b32 v{vT+9}, 0\nv_mov_b32 v{vT+10}, 0\nv_mov_b32 v{vT+11}, 0")
            a.e(f"s_movk_i32 s{sT+1}, {49*528//16 - 1536}")
            a.e(f"v_cmp_gt_u32 s[{sX0+2}:{sX0+3}], s{sT+1}, v0")
            a.e(f"s_mov_b32 s{sT}, {LOG2E_NEG}")
            a.e(f"s_mov_b32 s{sT+1}, {LOG2E_NEG}")
            stamp(a, 44, 252)
            a.e("s_waitcnt lgkmcnt(0)")
            g = Asm(); gemm8(g, QACC, W2F, XF)
            for x in g.lines: a.e(x)
            g = Asm(); gemm8(g, ACX, WU1F, XF)
            q = [f"v_mul_f32 v{QACC+i}, s{sT}, v{QACC+i}" for i in range(16)] + [f"v_cvt_pk_bf16_f32 v{QACC+i}, v{QACC+2*i}, v{QACC+1+2*i}" for i in range(8)]
            a.e(g.lines[0])
            if cfg.e1e:
                for x in early_e1(): a.e(x)
                a.e("s_nop 5")
            else:
                a.e("s_nop 9")
            for j in range(3):
                a.e(g.lines[1+j])
                for x in q[j*8:j*8+8]: a.e(x)
            a.e(f"s_mov_b64 exec, s[{sX0}:{sX0+1}]")
            for gg in range(4):
                a.e(f"ds_write_b64 v{vT+2}, v[{QACC+2*gg}:{QACC+1+2*gg}] offset:{QL + 8*gg}")
            a.e("s_mov_b64 exec, -1")
            a.e("s_barrier")
            for j in range(3):
                a.e(f"ds_write_b128 v{vT}, v[{vT+8}:{vT+11}] offset:{AGG + j*8192}")
            a.e(g.lines[4])
            a.e(f"s_mov_b64 exec, s[{sX0+2}:{sX0+3}]")
            a.e(f"ds_write_b128 v{vT}, v[{vT+8}:{vT+11}] offset:{AGG + 3*8192}")
            a.e("s_mov_b64 exec, -1")
            for s in d1[0]: a.e(s)
            a.e(g.lines[5])
            a.e("s_waitcnt lgkmcnt(0)")
            a.e("s_barrier")
            stamp(a, 45, 252)
            for j in range(1, 4):
                for s in d1[j]: a.e(s)
                if j < 3: a.e(g.lines[5+j])
        else:
            if cfg.e1e:
                a.e("s_waitcnt lgkmcnt(0)")
                for x in early_e1(): a.e(x)
            for s in sum(d1, []): a.e(s)
        a.e(f"s_cmp_lt_u32 s{sNT}, 2")
        a.e(f"s_cselect_b32 s{sP+2}, 0, s{sP+2}")
        a.e(f"s_cselect_b32 s{sE+2}, 0, s{sE+2}")
        if not first: a.e("s_waitcnt lgkmcnt(0)")
        for s in addr_se(): a.e(s)
        for s in list_reads_se(2) + list_reads_n(1): a.e(s)
        for s in flags_from_vcc(sF1): a.e(s)
    prologue(a, True)
    rare.label("K2_PRO2")
    rare.e("s_waitcnt vmcnt(0)")
    prologue(rare, False)
    rare.e("s_branch K2_NOX")
    stamp(a, 42, 252)
    for i in range(8):
        a.e(f"v_pk_mul_f32 {p2(ACX+2*i)}, {p2(ACX+2*i)}, s[{sT}:{sT+1}]")
    a.label("K2_NOX")
    stamp(a, 43, 252)
    a.e(f"s_cmp_eq_u32 s{sNT}, 0")
    a.e("s_cbranch_scc1 K2_NOTILES")
    a.e(f"ds_read_b128 v[{AQ}:{AQ+3}], v{vLA0}")
    for s in qfrag_reads(QY, 0, 0) + qfrag_reads(QX, 1, 0): a.e(s)
    if cfg.t1pos == 1:
        if not cfg.e1e: a.e(e_load(1))
        dma_half(a, 0)
    for i in range(4): a.e(f"v_mov_b32 v{AP+i}, 0")
    for i in range(4):
        shf = 16 * (i >> 1) + 4 * (i & 1)
        a.e(f"s_mov_b32 exec_lo, {hex(0xf << shf)}\ns_mov_b32 exec_hi, {hex(0xf << (shf + 8))}")
        a.e(f"v_mov_b32 v{AP+i}, 0x3f80")
    a.e("s_mov_b64 exec, -1")
    a.e(f"v_and_b32 v{IDX}, 3, v{vL}")
    a.e(f"v_mul_u32_u24 v{IDX}, 0x5555, v{IDX}")
    a.e(f"s_add_u32 s{sMA}, s{sM0}, {4096 - 128 + 256}")
    a.e(f"s_add_u32 s{sMB}, s{sM0}, 256")
    a.e(f"s_and_b32 s{sT}, s{sL}, 6")
    a.e(f"s_and_b32 s{sT+1}, s{sL}, 1")
    a.e(f"s_lshl1_add_u32 s{sT}, s{sT}, s{sT+1}")
    a.e(f"s_lshl_b32 s{sT}, s{sT}, 1")
    a.e(f"s_cselect_b32 s{sT+1}, 1, 0")
    a.e(f"s_lshl_b32 s{sEX+1}, s{sT+1}, s{sT}")
    a.e(f"s_lshl_b32 s{sEX}, s{sEX+1}, 1")
    a.e(f"s_cmp_eq_u32 s{sNT}, 1")
    a.e(f"s_cselect_b64 s[{sT}:{sT+1}], s[{sEX}:{sEX+1}], 0")
    a.e(f"s_or_b64 s[{sF0}:{sF0+1}], s[{sF0}:{sF0+1}], s[{sT}:{sT+1}]")
    for c in range(4):
        a.e(f"v_mov_b32 v{NN+2*c}, 0\nv_mov_b32 v{NN+2*c+1}, 0\nv_mov_b32 v{DD+2*c}, 1.0\nv_mov_b32 v{DD+2*c+1}, 1.0")
    a.e(f"v_mov_b32 v{vCUR}, v{vSD}\nv_mov_b32 v{vCUR+1}, v{vSD}")
    for c in range(4): a.e(f"v_mov_b32 v{ACC+c}, 0")
    a.e(f"s_sub_u32 s{sT}, s{sW4k}, s{sM0}")
    a.e(f"s_add_u32 s{sT}, s{sT}, {WU2 - 256}")
    a.e(f"v_add_u32 v{vT}, s{sT}, v{vRP0}")
    a.e(f"v_add_u32 v{vT+1}, s{sT}, v{vRP1}")
    stamp(a, 46, 252)
    a.e(f"s_waitcnt vmcnt({4 + cfg.e1e})" if cfg.t1pos == 2 else "s_waitcnt vmcnt(9)")
    stamp(a, 47, 252)
    for s in pfrag_reads(PY, 0, vT): a.e(s)
    mf = mfmas(0, PY, QY, 0)
    a.e("s_waitcnt lgkmcnt(8)")
    for s in mf[:4]: a.e(s)
    a.e("s_waitcnt lgkmcnt(0)")
    for s in mf[4:]: a.e(s)
    if cfg.t1pos == 2:
        if not cfg.e1e: a.e(e_load(1))
        dma_half(a, 0)
    stamp(a, 8, 252)
    if cfg.dbg:
        a.e("s_memtime s[90:91]\ns_waitcnt lgkmcnt(0)\nv_writelane_b32 v252, s90, 14")
    a.e(f"s_sub_u32 s{sCnt}, s{sNT}, 1")
    a.e(f"s_waitcnt vmcnt({5 - cfg.e1e})")
    stamp(a, 48, 252)
    for s in pfrag_reads(PX, 1): a.e(s)
    def lstamp(x):
        if not cfg.lst: return
        a.e("s_memrealtime s[90:91]")
        a.e(f"s_lshl_b32 s92, s{sCnt}, 1")
        a.e(f"s_add_u32 s92, s92, {x+2}")
        a.e("s_mov_b32 m0, s92")
        a.e("s_waitcnt lgkmcnt(0)")
        a.e("v_writelane_b32 v252, s90, m0")
    def iteration(par):
        exA = {
            0: addr_q(1 - par),
            1: qfrag_reads(QY, 0, 1 - par),
            2: [f"s_mov_b32 m0, s{sMA}", "s_waitcnt lgkmcnt(4)"] + dma_ld(1)[:2],
            3: dma_ld(1)[2:],
            4: [f"ds_read_b128 v[{AQ}:{AQ+3}], v{vLA}",
                f"s_cmp_lt_u32 s{sCnt}, 2", f"s_cbranch_scc1 WU2_{par}", f"WU2R_{par}:"],
            7: ["s_waitcnt vmcnt(4) lgkmcnt(0)"] + pfrag_reads(PY, 0),
        }
        half_step(a, ool, 0, par, exA, f"A{par}")
        ool.label(f"WU2_{par}")
        ool.e(f"s_mov_b32 s{sP+2}, 0")
        ool.e(f"s_mov_b32 s{sE+2}, 0")
        sFn = (sF1, sF0)[par]
        ool.e(f"s_or_b64 s[{sFn}:{sFn+1}], s[{sFn}:{sFn+1}], s[{sEX}:{sEX+1}]")
        ool.e(f"s_cmp_lg_u32 s{sCnt}, 0")
        ool.e(f"s_cbranch_scc1 WU2R_{par}")
        w_dma(ool, sWu, vWC, sW4k, 32768, WU2, sT)
        ool.e(f"s_branch WU2R_{par}")
        mf = mfmas(2, PX, QX, par)
        ool.label(f"EXA{par}_1")
        ool.e("s_waitcnt lgkmcnt(0)")
        ool.e(mf[2])
        ool.label(f"EXA{par}_2")
        ool.e(mf[3])
        ool.label(f"EXA{par}_3")
        ool.e(mf[4])
        w_dma(ool, sWu, vWC, sW4k, 32768, WU2, sT)
        ool.label(f"EXA{par}_4")
        ool.e(mf[5])
        ool.e("s_nop 7")
        ool.label(f"EXA{par}_5")
        ool.e(f"s_branch R_A{par}_7")
        exB = {
            0: qfrag_reads(QX, 1, 1 - par),
            1: addr_se(),
            2: [f"s_mov_b32 m0, s{sMB}", "s_waitcnt lgkmcnt(4)"] + dma_ld(0)[:2],
            3: dma_ld(0)[2:] + [e_load(par)],
            4: list_reads_se(3 + par) + list_reads_n(2 + par),
            5: adv if par else [],
            7: ["s_waitcnt vmcnt(5) lgkmcnt(0)"] + pfrag_reads(PX, 1),
        }
        lstamp(17)
        half_step(a, ool, 1, par, exB, f"B{par}")
        lstamp(16)
        for s in flags_from_vcc((sF0, sF1)[par]): a.e(s)
        a.e(f"s_sub_u32 s{sCnt}, s{sCnt}, 1")
    a.label("K2_LOOP")
    iteration(0)
    a.e("s_cbranch_scc1 K2_LEND")
    iteration(1)
    a.e("s_cbranch_scc0 K2_LOOP")
    a.label("K2_LEND")
    stamp(a, 9, 252)
    if cfg.dbg:
        a.e("s_memtime s[90:91]\ns_waitcnt lgkmcnt(0)\nv_writelane_b32 v252, s90, 15")
    flush_code(a, 0, 0)
    a.e(f"ds_write2_b32 v{vCUR}, v{ACC}, v{ACC+1} offset1:32")
    flush_code(a, 2, 1, wait=False)
    a.e(f"ds_write2_b32 v{vCUR+1}, v{ACC+2}, v{ACC+3} offset0:64 offset1:96")
    a.label("K2_AFTER")
    a.e(f"s_mov_b32 s{sFirst}, 0")
    a.e(f"s_bitcmp0_b32 s{sDm}, 0")
    a.e(f"s_cselect_b32 s{sX0+2}, -1, 0")
    a.e(f"s_bitcmp0_b32 s{sDm}, 4")
    a.e(f"s_cselect_b32 s{sX0+3}, -1, 0")
    a.e(f"s_lshr_b32 s{sT+1}, s{sW}, 2")
    a.e(f"s_lshl_b32 s{sT+2}, s{sT+1}, 5")
    a.e(f"v_add_u32 v{vT+8}, s{sT+2}, v{vM}")
    a.e(f"v_mul_u32_u24 v{vT+9}, 528, v{vT+8}")
    a.e(f"v_cmp_gt_u32 s[{sX0}:{sX0+1}], 49, v{vT+8}")
    a.e(f"s_and_b32 s{sT+2}, s{sW}, 3")
    a.e(f"s_lshl_b32 s{sT+2}, s{sT+2}, 7")
    a.e(f"v_lshl_add_u32 v{vT+5}, v{vH16}, 1, s{sT+2}")
    a.e(f"v_add_u32 v{vT+6}, v{vT+9}, v{vT+5}")
    a.e(f"v_add_u32 v{vT+4}, {WU2}, v{vWA}")
    a.e(f"s_add_u32 s{sT+2}, s{sM0}, {256 + 4096}")
    a.e(f"v_lshl_add_u32 v{vT+2}, v{vL}, 4, s{sT+2}")
    a.e(f"s_lshl_b32 s{sT+1}, s{sT+1}, 15")
    a.e(f"s_add_u32 s{sT+1}, s{sT+1}, {STG + 4096}")
    a.e(f"v_lshl_add_u32 v{vT+3}, v{vL}, 4, s{sT+1}")
    a.e(f"s_or_b32 s{sT}, s{sSusp}, s{sSusp+1}")
    a.e(f"s_or_b32 s{sT}, s{sT}, s{sMore}")
    a.e("s_cbranch_scc1 K2_SLOWM")
    a.e(f"s_and_b32 exec_lo, s{sX0+2}, 1")
    a.e(f"s_and_b32 exec_hi, s{sX0+3}, 1")
    a.e(f"ds_write_b32 v{vFA}, v{vSD} offset:512")
    a.label("K2_MERGED")
    a.e(f"s_mov_b64 exec, s[{sX0}:{sX0+1}]")
    a.e("s_waitcnt vmcnt(0) lgkmcnt(0)")
    a.e("s_barrier")
    stamp(a, 49, 252)
    a.e(f"s_cmp_lg_u32 s{sMore}, 0")
    a.e("s_cbranch_scc1 K2_MORE")
    wf = Asm(); wfrag_read(wf, 128, vT+4)
    a.e(f"ds_read_b32 v{vT+7}, v{vT+9} offset:{AGG + 512}")
    for j, o in enumerate((0, 16, 64, 80)):
        a.e(f"ds_read_b128 v[{64+4*j}:{67+4*j}], v{vT+6} offset:{AGG + o}")
    a.e("s_waitcnt lgkmcnt(4)")
    a.e(f"v_cmpx_ne_u32 vcc, 0, v{vT+7}")
    a.e(f"v_add_u32 v{vT+7}, v{vT+7}, v{vT+5}")
    for j, o in enumerate((0, 16, 64, 80)):
        a.e(f"ds_read_b128 v[{80+4*j}:{83+4*j}], v{vT+7} offset:{o}")
    a.e("s_mov_b64 exec, -1")
    for x in wf.lines[:8]: a.e(x)
    a.e("s_mov_b64 exec, vcc")
    for j in range(4):
        a.e(f"s_waitcnt lgkmcnt({11-j})")
        for i in range(2):
            r = 64 + 4*j + 2*i
            a.e(f"v_pk_add_f32 {p2(r)}, {p2(r)}, {p2(r+16)}")
    a.e("s_mov_b64 exec, -1")
    for j in range(2):
        for i in range(4):
            a.e(f"v_cvt_pk_bf16_f32 v{96+4*j+i}, v{64+8*j+2*i}, v{65+8*j+2*i}")
        a.e(f"ds_write_b128 v{vT+2}, v[{96+4*j}:{99+4*j}] offset:{1024*j}")
    for x in wf.lines[8:]: a.e(x)
    a.e("s_waitcnt lgkmcnt(8)")
    a.e("s_barrier")
    stamp(a, 10, 252)
    for st in range(8):
        a.e(f"ds_read_b128 v[{64+4*st}:{67+4*st}], v{vT+3} offset:{(st>>1)*8192 + (st&1)*1024}")
    if cfg.owt:
        a.e(f"v_mul_u32_u24 v{vT+10}, 80, v{vM}")
        a.e(f"v_lshl_add_u32 v{vT+10}, v{vH16}, 1, v{vT+10}")
        a.e(f"s_add_u32 s{sT+1}, s{sM0}, 256")
        a.e(f"v_add_u32 v{vT+10}, s{sT+1}, v{vT+10}")
        a.e(f"v_lshrrev_b32 v{vT+12}, 2, v{vL}")
        a.e(f"v_and_b32 v{vT+14}, 3, v{vL}")
        a.e(f"v_lshlrev_b32 v{vT+14}, 4, v{vT+14}")
        a.e(f"v_lshl_add_u32 v{vT+13}, v{vT+12}, 8, v{vT+14}")
        a.e(f"v_mul_u32_u24 v{vT+12}, 80, v{vT+12}")
        a.e(f"v_add3_u32 v{vT+12}, v{vT+12}, v{vT+14}, s{sT+1}")
        a.e(f"s_lshr_b32 s{sT+3}, s{sW}, 2")
        a.e(f"s_lshl_b32 s{sT+3}, s{sT+3}, 13")
        a.e(f"s_and_b32 s{sT+4}, s{sW}, 3")
        a.e(f"s_lshl_b32 s{sT+4}, s{sT+4}, 6")
        a.e(f"s_add_u32 s{sT+3}, s{sT+3}, s{sT+4}")
        a.e(f"v_add_u32 v{vT+13}, s{sT+3}, v{vT+13}")
    else:
        a.e(f"v_mul_u32_u24 v{vT+10}, 272, v{vT+8}")
        a.e(f"v_lshl_add_u32 v{vT+10}, v{vH16}, 1, v{vT+10}")
        a.e(f"s_and_b32 s{sT+1}, s{sW}, 3")
        a.e(f"s_lshl_b32 s{sT+1}, s{sT+1}, 6")
        a.e(f"s_add_u32 s{sT+1}, s{sT+1}, {STG}")
        a.e(f"v_add_u32 v{vT+10}, s{sT+1}, v{vT+10}")
        a.e(f"v_lshrrev_b32 v{vT+12}, 4, v0")
        a.e(f"v_lshlrev_b32 v{vT+13}, 4, v0")
        a.e(f"v_lshl_add_u32 v{vT+12}, v{vT+12}, 4, v{vT+13}")
        a.e(f"v_add_u32 v{vT+12}, {STG}, v{vT+12}")
    for st in range(8):
        a.e(f"s_waitcnt lgkmcnt({7-st})")
        c = f"v[{ACX}:{ACX+15}]" if st == 0 else "v[160:175]"
        a.e(f"v_mfma_f32_32x32x16_bf16 v[160:175], v[{128+4*st}:{131+4*st}], v[{64+4*st}:{67+4*st}], {c}")
    a.e(f"s_mov_b32 s{sT+1}, {LOG2E_NEG}")
    a.e(f"s_mov_b32 s{sT}, {LOG2E_NEG}")
    stamp(a, 50, 252)
    a.e(f"s_mov_b32 s{sT+2}, 0x7b800000")
    a.e(f"v_cmp_le_f32 s[{sX0+2}:{sX0+3}], s{sT+2}, v{vCHK}")
    a.e(f"v_mov_b32 v{vT+11}, 0x207")
    a.e("s_nop 6")
    a.e(f"v_cmp_class_f32 vcc, v160, v{vT+11}")
    for hf in range(2):
        R = range(8 * hf, 8 * hf + 8)
        for i in R: a.e(f"v_exp_f32 v{64+i}, v{160+i}")
        if hf == 0:
            a.e(f"s_and_b64 vcc, vcc, s[{sX0}:{sX0+1}]")
            a.e(f"s_or_b64 s[{sX0+2}:{sX0+3}], vcc, s[{sX0+2}:{sX0+3}]")
        if hf: a.e("s_nop 0")
        for i in R[::2]: a.e(f"v_pk_fma_f32 {p2(64+i)}, {p2(64+i)}, s[{sT}:{sT+1}], s[{sT}:{sT+1}]")
        for i in R: a.e(f"v_rcp_f32 v{64+i}, v{64+i}")
        for i in R[::2]: a.e(f"v_pk_mul_f32 {p2(64+i)}, {p2(160+i)}, {p2(64+i)}")
        for i in range(4 * hf, 4 * hf + 4): a.e(f"v_cvt_pk_bf16_f32 v{80+i}, v{64+2*i}, v{65+2*i}")
        o = " offset:16" if hf else ""
        a.e(f"ds_write_b128 v{vT+10}, v[{80+4*hf}:{83+4*hf}]{o}")
    if cfg.owt:
        a.e(f"ds_read_b128 v[88:91], v{vT+12}")
        a.e(f"ds_read_b128 v[92:95], v{vT+12} offset:{16*80}")
        a.e(f"v_mov_b32 v{vT}, 1")
        a.e(f"v_mov_b32 v{vT+1}, {FLG+4}")
        a.e(f"s_movk_i32 s{sT+1}, 4096")
        a.e("s_waitcnt lgkmcnt(1)")
        a.e(f"buffer_store_dwordx4 v[88:91], v{vT+13}, s[{sO}:{sO+3}], 0 offen {cfg.o_pol}")
        a.e("s_waitcnt lgkmcnt(0)")
        a.e(f"buffer_store_dwordx4 v[92:95], v{vT+13}, s[{sO}:{sO+3}], s{sT+1} offen {cfg.o_pol}")
        a.e(f"s_mov_b64 exec, s[{sX0+2}:{sX0+3}]")
        a.e(f"ds_write_b32 v{vT+1}, v{vT}")
        a.e("s_mov_b64 exec, -1")
        a.e("s_waitcnt lgkmcnt(0)")
        a.e("s_barrier")
        a.e(f"ds_read_b32 v{vT}, v{vT+1}")
    else:
        a.e(f"v_mov_b32 v{vT}, 1")
        a.e(f"v_mov_b32 v{vT+1}, {FLG+4}")
        a.e(f"s_mov_b64 exec, s[{sX0+2}:{sX0+3}]")
        a.e(f"ds_write_b32 v{vT+1}, v{vT}")
        a.e("s_mov_b64 exec, -1")
        a.e(f"s_movk_i32 s{sT+1}, 8192")
        a.e("s_waitcnt lgkmcnt(0)")
        stamp(a, 51, 252)
        a.e("s_barrier")
        stamp(a, 52, 252)
        a.e(f"ds_read_b128 v[88:91], v{vT+12}")
        a.e(f"ds_read_b128 v[92:95], v{vT+12} offset:{32*272}")
        a.e(f"ds_read_b32 v{vT}, v{vT+1}")
        a.e("s_waitcnt lgkmcnt(2)")
        a.e(f"buffer_store_dwordx4 v[88:91], v{vT+13}, s[{sO}:{sO+3}], 0 offen {cfg.o_pol}")
        a.e("s_waitcnt lgkmcnt(1)")
        a.e(f"buffer_store_dwordx4 v[92:95], v{vT+13}, s[{sO}:{sO+3}], s{sT+1} offen {cfg.o_pol}")
    stamp(a, 11, 252)
    if cfg.dbg:
        a.e("s_waitcnt vmcnt(0)")
        a.e(f"v_writelane_b32 v252, s{sNT}, 13")
    stamp(a, 12, 252)
    stamp_out(a, 252, 253, 1)
    if cfg.x: a.e("s_branch K2_END")
    a.e("s_waitcnt lgkmcnt(0)")
    a.e(f"v_readfirstlane_b32 s{sT}, v{vT}")
    a.e(f"s_cmp_lg_u32 s{sSafe}, 0")
    a.e("s_cbranch_scc1 K2_END")
    a.e(f"s_cmp_lg_u32 s{sT}, 0")
    a.e("s_cbranch_scc1 K2_SAFE")
    a.label("K2_END")
    a.e("s_endpgm")
    a.lines += ool.lines
    a.label("K2_CODE_END")
    a.lines += rare.lines
    a.label("K2_NOTILES")
    a.e("s_waitcnt vmcnt(0)")
    w_dma(a, sWu, vWC, sW4k, 32768, WU2, sT)
    a.e("s_branch K2_AFTER")
    a.label("K2_SLOWM")
    for c in range(4):
        a.e(f"ds_read_b32 v{vT+16+c}, v{vSD} offset:{128*c}")
    a.e("s_waitcnt vmcnt(0) lgkmcnt(0)")
    a.e("s_barrier")
    a.e(f"s_mov_b64 exec, s[{sX0+2}:{sX0+3}]")
    for c in range(4):
        a.e(f"ds_add_f32 v{vFA}, v{vT+16+c} offset:{128*c}")
    a.e("s_branch K2_MERGED")
    a.label("K2_SAFE")
    a.e("s_waitcnt vmcnt(0)")
    a.e("s_barrier")
    a.e(f"s_mov_b32 s{sSafe}, -1")
    a.e(f"s_mov_b32 s{sDone}, 0")
    reset_round(a, True)
    a.e("s_branch K2_ROUND")
    a.label("K2_MORE")
    a.e("s_mov_b64 exec, -1")
    a.e(f"s_add_u32 s{sDone}, s{sDone}, s{sLim}")
    a.e("s_branch K2_RESET")
    a.label("K2_TOOBIG")
    a.e("s_barrier")
    a.e(f"s_mov_b32 s{sLim}, 16")
    a.label("K2_RESET")
    reset_round(a, False)
    a.label("K2_ROUND")
    srd(a, sR, S_WS, off_c=cfg.wsoff + WS_S01, size=WS_OFFT + 262144 - WS_S01)
    a.e(f"v_and_b32 v{t}, 0x1fc, v0")
    a.e(f"s_lshl_b32 s{sT}, s{sBin}, 10")
    a.e(f"s_add_u32 s{sT}, s{sT}, {WS_OFFT - WS_S01}")
    a.e(f"v_mov_b32 v{vROFF}, 0")
    a.e(f"v_cmp_lt_u32 vcc, 32, v{vOC}")
    a.e("s_mov_b64 exec, vcc")
    a.e(f"buffer_load_dword v{vROFF}, v{t}, s[{sR}:{sR+3}], s{sT} offen")
    a.e("s_mov_b64 exec, -1")
    a.e(f"v_and_b32 v{vW0}, 3, v0")
    a.e(f"v_lshlrev_b32 v{vW0}, 2, v{vW0}")
    a.e(f"v_add_u32 v{vW0}, s{sDone}, v{vW0}")
    a.e(f"s_lshl_b32 s{sT}, s{sBin}, 7")
    a.e(f"v_lshl_add_u32 v{t}, v{t}, 13, s{sT}")
    a.e(f"s_mov_b32 s{sT}, {WS_REC - WS_S01 - 4}")
    a.e("s_waitcnt vmcnt(0)")
    a.e(f"v_add_u32 v{t+2}, v{vEB}, v{vROFF}")
    a.e(f"v_lshl_add_u32 v{t+2}, v{t+2}, 2, s{sT}")
    for g in range(2):
        a.e(f"v_add_u32 v{t+3}, {16*g}, v{vW0}")
        a.e(f"v_cmp_gt_u32 vcc, 32, v{t+3}")
        a.e("s_nop 1")
        a.e(f"v_cndmask_b32 v{t+4+g}, v{t+2}, v{t}, vcc")
        a.e(f"v_lshl_add_u32 v{t+4+g}, v{t+3}, 2, v{t+4+g}")
        a.e(f"buffer_load_dwordx4 v[{RC+4*g}:{RC+4*g+3}], v{t+4+g}, s[{sR}:{sR+3}], 0 offen")
    round_consts(a)
    a.e("s_waitcnt vmcnt(0) lgkmcnt(0)")
    a.e("s_barrier")
    a.e("s_branch K2_COUNT")

HEADER = open("cdna_kernels/" + NAME + ".s.ref").read().split("; Override launch")[0]
def generate():
    a = Asm()
    gen_k1(a)
    gen_k2(a)
    if cfg.rep:
        k, wg, idx = [int(v) for v in cfg.rep.split(",")]
        kernel_head(a, "rep_kernel")
        a.e("s_load_dwordx2 s[20:21], s[0:1], 64")
        a.e("s_cmp_lg_u32 s2, 0")
        a.e("s_cbranch_scc1 REP_END")
        a.e("s_waitcnt lgkmcnt(0)")
        srd(a, 8, S_WS, off_c=WS_DBG, size=0x200000)
        a.e(f"v_mov_b32 v1, 0")
        a.e(f"v_mov_b32 v2, {k*0x100000 + wg*2048 + idx*4}")
        a.e("buffer_load_dword v3, v1, s[8:11], 0 offen")
        a.e("buffer_load_dword v4, v2, s[8:11], 0 offen")
        a.e("s_waitcnt vmcnt(0)")
        a.e("v_sub_u32 v3, v4, v3")
        a.e("v_min_u32 v3, 8000, v3")
        a.e("v_lshlrev_b32 v3, 2, v3")
        a.e("s_nop 1")
        a.e("v_readfirstlane_b32 s12, v3")
        a.e("s_memrealtime s[14:15]")
        a.e("s_waitcnt lgkmcnt(0)")
        a.label("REP_L")
        a.e("s_memrealtime s[16:17]")
        a.e("s_waitcnt lgkmcnt(0)")
        a.e("s_sub_u32 s13, s16, s14")
        a.e("s_cmp_lt_u32 s13, s12")
        a.e("s_cbranch_scc1 REP_L")
        a.label("REP_END")
        a.e("s_endpgm")
    if cfg.align:
        a.lines, bad = align_pass(a.lines, "K2_LOOP" if cfg.align < 3 else "prep_kernel", "K2_CODE_END", cfg.align == 2)
        print("misaligned left:", bad, file=sys.stderr)
    body = a.text()
    probs = check_text(body)
    for p in probs: print("HAZARD", p, file=sys.stderr)
    k1lds = K1_LDS_B
    out = HEADER
    out += f"; @launch kernel=prep_kernel grid=(256,1,1) block=(512,1,1) lds={k1lds}\n"
    out += f"; @launch kernel={NAME}_kernel grid=(256,1,1) block=(512,1,1) lds={K2_LDS}\n"
    if cfg.rep: out += "; @launch kernel=rep_kernel grid=(1,1,1) block=(64,1,1) lds=0\n"
    out += '.amdgcn_target "amdgcn-amd-amdhsa--gfx950"\n' + body
    out += '.section .rodata,"a"\n.p2align 6\n' + kernel_desc("prep_kernel", 200 if cfg.dbg else 160, 96 if cfg.dbg else 80) + ".p2align 6\n" + kernel_desc(NAME + "_kernel", 256, 96)
    if cfg.rep: out += ".p2align 6\n" + kernel_desc("rep_kernel", 8, 32)
    return out

if __name__ == "__main__":
    outp = sys.argv[1]
    for kv in sys.argv[2:]:
        k, v = kv.split("=", 1)
        cur = getattr(cfg, k)
        setattr(cfg, k, (v not in ("0", "False")) if isinstance(cur, bool) else int(v, 0) if isinstance(cur, int) else v)
    open(outp, "w").write(generate())
```

```python
import sys
from asmlib import *

NAME = "gather_scatter__mpnn_edge_mlp__graph"
class Cfg:
    modeA = False
    wsoff = 0
    st_pol = "sc1"
    ld_pol = "nt"
    e_pol = ""
    prefetchP = 1
    pf0 = False
    early = True
    o_pol = "sc1"
    ot_pol = ""
    touch = 1
    etouch = 0
    epos = 1
    align = 1
    prio = 2
    bias = 14
    k1d = 0
    tlb = 0
    cw = 0
    g_pol = ''
    s_pol = ''
    owt = 1
    k1w = 0
    e1e = 0
    e0f = 0
    few = False
    spf = 0
    ratio = 0
    k1o = 0
    p_pol = 'sc1'
    pfm = 0
    pfmpos = 5
    pfe = 0
    et_pol = ''
    t1pos = 1
    pfn = 320
    pfpos = 1
    nw = '4,4,4,4'
    x_pol = ""
    dbg = False
    lst = False
    x = ""
    rep = ""
cfg = Cfg()

NB = 250; NPB = 50; CH = 1600
WS_P = 4096; WS_S01 = 0x320000; WS_REC = 0x900000; WS_OFFT = 0xA90000; WS_W3F = 0xAD0000; WS_WF = 0xAE0000
LOG2E_NEG = "0xbfb8aa3b"
LN2_NEG = "0xbf317218"

S_X, S_E, S_SRC, S_DST, S_WM, S_WU, S_OUT, S_DBG, S_WS = 4, 6, 8, 10, 12, 14, 16, 18, 20

def load_args(a):
    a.e("s_load_dwordx16 s[4:19], s[0:1], 0")
    a.e("s_load_dwordx2 s[20:21], s[0:1], 64")

def srd(a, d, ptr, off_s=None, off_c=0, size=0):
    if off_s is not None:
        a.e(f"s_add_u32 s{d}, s{ptr}, s{off_s}")
        a.e(f"s_addc_u32 s{d+1}, s{ptr+1}, 0")
        if off_c:
            a.e(f"s_add_u32 s{d}, s{d}, {off_c}")
            a.e(f"s_addc_u32 s{d+1}, s{d+1}, 0")
    elif off_c:
        a.e(f"s_add_u32 s{d}, s{ptr}, {off_c}")
        a.e(f"s_addc_u32 s{d+1}, s{ptr+1}, 0")
    else:
        a.e(f"s_mov_b32 s{d}, s{ptr}")
        a.e(f"s_mov_b32 s{d+1}, s{ptr+1}")
    a.e(f"s_mov_b32 s{d+2}, {size}")
    a.e(f"s_mov_b32 s{d+3}, 0x20000")

def idmap(a, dst, src, t, sh=5):
    a.e(f"s_and_b32 s{t}, s{src}, 7")
    a.e(f"s_lshr_b32 s{dst}, s{src}, 3")
    a.e(f"s_lshl_b32 s{t}, s{t}, {sh}")
    a.e(f"s_add_u32 s{dst}, s{dst}, s{t}")

def scan64(a, v):
    for sh in (1, 2, 4, 8):
        a.e("s_nop 1")
        a.e(f"v_add_u32_dpp v{v}, v{v}, v{v} row_shr:{sh} row_mask:0xf bank_mask:0xf bound_ctrl:0")
    a.e("s_nop 1")
    a.e(f"v_add_u32_dpp v{v}, v{v}, v{v} row_bcast:15 row_mask:0xa bank_mask:0xf")
    a.e("s_nop 1")
    a.e(f"v_add_u32_dpp v{v}, v{v}, v{v} row_bcast:31 row_mask:0xc bank_mask:0xf")

def x_dma(a, sX, sW, vL, lds_base, t0, st, pol="", strided=False):
    a.e(f"v_lshrrev_b32 v{t0}, 4, v{vL}")
    a.e(f"v_and_b32 v{t0+1}, 15, v{vL}")
    a.e(f"v_xor_b32 v{t0+1}, v{t0+1}, v{t0}")
    a.e(f"v_lshlrev_b32 v{t0+1}, 4, v{t0+1}")
    a.e(f"v_lshl_add_u32 v{t0}, v{t0}, 8, v{t0+1}")
    a.e(f"s_and_b32 s{st}, s{sW}, 1")
    a.e(f"s_lshl_b32 s{st}, s{st}, 7")
    a.e(f"v_xor_b32 v{t0}, s{st}, v{t0}")
    a.e(f"v_xor_b32 v{t0+1}, 64, v{t0}")
    if strided:
        a.e(f"s_lshr_b32 s{st+1}, s{sW}, 1")
        a.e(f"s_lshl_b32 s{st+1}, s{st+1}, 12")
        a.e(f"s_lshl_b32 s{st}, s{sW}, 11")
        a.e(f"s_add_u32 s{st+1}, s{st+1}, s{st}")
        a.e(f"s_add_u32 m0, s{st+1}, {lds_base}")
    else:
        a.e(f"s_lshl_b32 s{st}, s{sW}, 11")
        a.e(f"s_add_u32 m0, s{st}, {lds_base}")
    a.e("s_nop 0")
    a.e(f"buffer_load_dwordx4 v{t0}, s[{sX}:{sX+3}], s{st} offen {pol} lds")
    a.e(f"buffer_load_dwordx4 v{t0+1}, s[{sX}:{sX+3}], s{st} offen offset:1024 {pol} lds")

def w_lane_const(a, vW, vL, t):
    a.e(f"v_lshrrev_b32 v{t}, 4, v{vL}")
    a.e(f"v_and_b32 v{vW}, 15, v{vL}")
    a.e(f"v_lshlrev_b32 v{vW}, 4, v{vW}")
    a.e(f"v_lshlrev_b32 v{t+1}, 6, v{t}")
    a.e(f"v_xor_b32 v{vW}, v{vW}, v{t+1}")
    a.e(f"v_lshl_add_u32 v{vW}, v{t}, 8, v{vW}")

def w_dma(a, sSrd, vW, sW4096, goff, lds_base, st):
    a.e(f"s_add_u32 s{st}, s{sW4096}, {goff}")
    a.e(f"s_add_u32 m0, s{sW4096}, {lds_base}")
    a.e("s_nop 0")
    for i in range(4):
        o = f" offset:{1024*i}" if i else ""
        a.e(f"buffer_load_dwordx4 v{vW}, s[{sSrd}:{sSrd+3}], s{st} offen{o} lds")

def wfrag_const(a, vA, vL, sW, t, st):
    a.e(f"v_lshrrev_b32 v{t}, 5, v{vL}")
    a.e(f"v_bfe_u32 v{t+1}, v{vL}, 2, 2")
    a.e(f"v_lshl_add_u32 v{t}, v{t}, 3, v{t+1}")
    a.e(f"v_lshlrev_b32 v{vA}, 8, v{t}")
    a.e(f"v_and_b32 v{t}, 1, v{vL}")
    a.e(f"v_lshlrev_b32 v{t}, 5, v{t}")
    a.e(f"v_bfe_u32 v{t+2}, v{vL}, 1, 1")
    a.e(f"v_lshl_add_u32 v{t}, v{t+2}, 3, v{t}")
    a.e(f"v_bfe_u32 v{t+2}, v{vL}, 4, 1")
    a.e(f"v_lshl_add_u32 v{t}, v{t+2}, 4, v{t}")
    a.e(f"s_and_b32 s{st}, s{sW}, 3")
    a.e(f"s_lshl_b32 s{st}, s{st}, 6")
    a.e(f"v_add_u32 v{t}, s{st}, v{t}")
    a.e(f"v_lshlrev_b32 v{t+1}, 6, v{t+1}")
    a.e(f"v_xor_b32 v{t}, v{t}, v{t+1}")
    a.e(f"v_add_u32 v{vA}, v{vA}, v{t}")

def wfrag_read(a, dst, vAddr, off=0, stride=4096):
    for s in range(8):
        for u in range(2):
            r = (dst[s] if isinstance(dst, list) else dst + 4*s) + 2*u
            a.e(f"ds_read_b64_tr_b16 v[{r}:{r+1}], v{vAddr} offset:{off+s*stride+u*1024}")

def xfrag_read(a, dst, vL, sW, lds_base, t, st):
    a.e(f"v_and_b32 v{t}, 31, v{vL}")
    a.e(f"v_lshrrev_b32 v{t+1}, 5, v{vL}")
    a.e(f"v_and_b32 v{t+2}, 15, v{vL}")
    a.e(f"v_xor_b32 v{t+1}, v{t+1}, v{t+2}")
    a.e(f"v_lshlrev_b32 v{t+1}, 4, v{t+1}")
    a.e(f"v_lshl_add_u32 v{t}, v{t}, 8, v{t+1}")
    a.e(f"s_lshr_b32 s{st}, s{sW}, 2")
    a.e(f"s_lshl_b32 s{st}, s{st}, 13")
    a.e(f"s_add_u32 s{st}, s{st}, {lds_base}")
    a.e(f"v_add_u32 v{t}, s{st}, v{t}")
    for s in range(8):
        if s == 0:
            a.e(f"ds_read_b128 v[{dst}:{dst+3}], v{t}")
        else:
            r = t + 1 + (s & 1)
            a.e(f"v_xor_b32 v{r}, {32*s}, v{t}")
            a.e(f"ds_read_b128 v[{dst+4*s}:{dst+4*s+3}], v{r}")

def gemm8(a, acc, A, B, zero=True):
    for s in range(8):
        c = "0" if (s == 0 and zero) else f"v[{acc}:{acc+15}]"
        r = A[s] if isinstance(A, list) else A + 4*s
        a.e(f"v_mfma_f32_32x32x16_bf16 v[{acc}:{acc+15}], v[{r}:{r+3}], v[{B+4*s}:{B+4*s+3}], {c}")

WS_DBG = 0x2000000
def stamp(a, i, vst):
    if not cfg.dbg: return
    if cfg.few and not (i in (0, 3) if vst == 197 else i in (7, 8, 9, 12)): return
    a.e("s_memrealtime s[90:91]")
    a.e("s_waitcnt lgkmcnt(0)")
    a.e(f"v_writelane_b32 v{vst}, s90, {i}")
def stamp_out(a, vst, vt, kidx):
    if not cfg.dbg: return
    srd(a, 92, S_WS, off_c=WS_DBG + kidx * 0x100000, size=0x100000)
    a.e(f"s_lshl_b32 s90, s2, 11")
    a.e(f"v_lshl_add_u32 v{vt}, v0, 2, s90")
    a.e(f"buffer_store_dword v{vst}, v{vt}, s[92:95], 0 offen")

def kernel_head(a, name):
    a.e(".text")
    a.e(f".globl {name}")
    a.e(".p2align 8")
    a.e(f".type {name},@function")
    a.label(name)

def kernel_desc(name, vg, sg):
    acc = (vg + 3) // 4 * 4
    return f""".amdhsa_kernel {name}
  .amdhsa_next_free_vgpr {vg}
  .amdhsa_next_free_sgpr {sg}
  .amdhsa_accum_offset {acc}
  .amdhsa_group_segment_fixed_size 0
  .amdhsa_kernarg_size 72
  .amdhsa_user_sgpr_count 2
  .amdhsa_user_sgpr_kernarg_segment_ptr 1
  .amdhsa_system_sgpr_workgroup_id_x 1
.end_amdhsa_kernel
"""

K1_LDS_A = 16384 + 57344
K1_LDS_B = 65536 + 96*272
def gen_k1(a):
    kernel_head(a, "prep_kernel")
    load_args(a)
    sW, sId, sT = 22, 23, 44
    vL = 1
    a.e(f"v_and_b32 v{vL}, 63, v0")
    a.e(f"v_lshrrev_b32 v2, 6, v0")
    a.e("s_nop 0")
    a.e(f"v_readfirstlane_b32 s{sW}, v2")
    if cfg.dbg: a.e("v_mov_b32 v197, 0")
    stamp(a, 0, 197)
    if cfg.dbg:
        a.e("s_getreg_b32 s90, hwreg(HW_REG_XCC_ID)")
        a.e("s_add_u32 s90, s90, 1")
        a.e("v_writelane_b32 v197, s90, 63")
    if cfg.k1d: a.e(f"s_sleep {cfg.k1d}")
    a.e(f"s_mov_b32 s{sId}, s2")
    a.e("s_cmp_lt_u32 s2, 120")
    a.e("s_cbranch_scc1 K1_BIN")
    a.e(f"s_sub_u32 s{sId}, s2, 3")
    a.e("s_sub_u32 s3, s2, 123")
    a.e("s_cmp_lt_u32 s3, 5")
    a.e("s_cbranch_scc1 K1_BIN")
    a.e("s_cmp_ge_u32 s2, 256")
    a.e("s_cbranch_scc1 K1_END")
    a.e(f"s_and_b32 s{sT}, s2, 7")
    a.e(f"s_lshr_b32 s{sId}, s2, 3")
    a.e(f"s_lshl4_add_u32 s{sId}, s{sT}, s{sId}")
    a.e(f"s_min_u32 s{sT}, s{sT}, 2")
    a.e(f"s_add_u32 s{sId}, s{sId}, s{sT}")
    a.e(f"s_sub_u32 s{sId}, s{sId}, 15")
    a.e(f"s_mul_i32 s{sT+2}, s{sId}, 24576")
    a.e(f"s_sub_u32 s{sT+4}, 3200000, s{sT+2}")
    a.e(f"s_min_u32 s{sT+4}, s{sT+4}, 24576")
    a.e(f"v_lshrrev_b32 v2, 4, v{vL}")
    a.e(f"v_and_b32 v3, 15, v{vL}")
    a.e(f"v_xor_b32 v3, v3, v2")
    a.e(f"v_lshlrev_b32 v3, 4, v3")
    a.e(f"v_lshl_add_u32 v16, v2, 8, v3")
    for i in range(1, 4): a.e(f"v_xor_b32 v{16+i}, {64*i}, v16")
    w_lane_const(a, 4, vL, 5)
    a.e(f"s_lshl_b32 s{sT+3}, s{sW}, 12")
    a.e("s_waitcnt lgkmcnt(0)")
    def xl():
        a.e(f"s_mov_b32 m0, s{sT+3}")
        srd(a, 24, S_X, off_s=sT+2, size=f"s{sT+4}")
        for i in range(4):
            o = f" offset:{1024*i}" if i else ""
            a.e(f"buffer_load_dwordx4 v{16+i}, s[24:27], s{sT+3} offen{o} {cfg.x_pol} lds")
    def wl():
        srd(a, 28, S_WM, size=32768)
        w_dma(a, 28, 4, sT+3, 0, 32768, sT)
    xl(); wl()
    srd(a, 32, S_WS, off_s=sT+2, off_c=cfg.wsoff + WS_P, size=f"s{sT+4}")
    wfrag_const(a, 8, vL, sW, 9, sT)
    OT = 65536
    a.e(f"v_and_b32 v12, 31, v{vL}")
    a.e(f"v_lshrrev_b32 v13, 5, v{vL}")
    a.e(f"v_and_b32 v15, 15, v{vL}")
    a.e(f"v_xor_b32 v15, v15, v13")
    a.e(f"v_lshlrev_b32 v15, 4, v15")
    a.e(f"v_lshl_add_u32 v15, v12, 8, v15")
    a.e(f"s_lshr_b32 s{sT}, s{sW}, 2")
    a.e(f"s_lshl_b32 s{sT+1}, s{sT}, 14")
    a.e(f"v_add_u32 v20, s{sT+1}, v15")
    for st in range(1, 8): a.e(f"v_xor_b32 v{20+st}, {32*st}, v20")
    if cfg.k1w:
        a.e(f"v_lshlrev_b32 v13, 5, v13")
        a.e(f"v_mul_u32_u24 v12, 80, v12")
        a.e(f"s_mul_i32 s{sT+5}, s{sW}, {32*80}")
        a.e(f"s_add_u32 s{sT+5}, s{sT+5}, {OT}")
        a.e(f"v_add3_u32 v12, s{sT+5}, v12, v13")
        a.e(f"v_lshrrev_b32 v13, 2, v{vL}")
        a.e(f"v_and_b32 v15, 3, v{vL}")
        a.e(f"v_lshlrev_b32 v15, 4, v15")
        a.e(f"v_lshl_add_u32 v14, v13, 8, v15")
        a.e(f"v_mul_u32_u24 v13, 80, v13")
        a.e(f"v_add3_u32 v13, v13, v15, s{sT+5}")
        a.e(f"s_lshl_b32 s{sT}, s{sT}, 14")
        a.e(f"s_and_b32 s{sT+1}, s{sW}, 3")
        a.e(f"s_lshl_b32 s{sT+1}, s{sT+1}, 6")
        a.e(f"v_add_u32 v14, s{sT}, v14")
        a.e(f"v_add_u32 v14, s{sT+1}, v14")
        a.e("s_movk_i32 s65, 4096\ns_movk_i32 s66, 12288")
    else:
        a.e(f"v_lshlrev_b32 v13, 5, v13")
        a.e(f"v_mul_u32_u24 v12, 272, v12")
        a.e(f"s_mul_i32 s{sT}, s{sT}, {64*272}")
        a.e(f"s_and_b32 s{sT+1}, s{sW}, 3")
        a.e(f"s_lshl_b32 s{sT+1}, s{sT+1}, 6")
        a.e(f"s_add_u32 s{sT}, s{sT}, s{sT+1}")
        a.e(f"s_add_u32 s{sT}, s{sT}, {OT}")
        a.e(f"v_add3_u32 v12, s{sT}, v12, v13")
        a.e(f"v_lshrrev_b32 v13, 4, v0")
        a.e(f"v_lshlrev_b32 v14, 4, v0")
        a.e(f"v_lshl_add_u32 v13, v13, 4, v14")
        a.e(f"v_add_u32 v13, {OT}, v13")
    a.e(f"s_mov_b32 s{sT}, {LOG2E_NEG}")
    a.e(f"s_mov_b32 s{sT+1}, {LOG2E_NEG}")
    a.e("s_movk_i32 s62, 8192\ns_movk_i32 s63, 16384\ns_movk_i32 s64, 24576")
    WF, X0, X1, A0, A1 = 32, 64, 96, 128, 144
    def rw(st):
        for u in range(2):
            a.e(f"ds_read_b64_tr_b16 v[{WF+4*st+2*u}:{WF+4*st+2*u+1}], v8 offset:{32768+st*4096+u*1024}")
    def rx0(st): a.e(f"ds_read_b128 v[{X0+4*st}:{X0+4*st+3}], v{20+st}")
    def mm(A, X, st):
        c = "0" if st == 0 else f"v[{A}:{A+15}]"
        a.e(f"v_mfma_f32_32x32x16_bf16 v[{A}:{A+15}], v[{WF+4*st}:{WF+4*st+3}], v[{X+4*st}:{X+4*st+3}], {c}")
    def fin(b, A):
        for i in range(8):
            a.e(f"v_pk_mul_f32 v[{A+2*i}:{A+2*i+1}], v[{A+2*i}:{A+2*i+1}], s[{sT}:{sT+1}]")
        for i in range(8):
            a.e(f"v_cvt_pk_bf16_f32 v{A+i}, v{A+2*i}, v{A+1+2*i}")
        if cfg.k1w and b:
            a.e("s_waitcnt lgkmcnt(0)")
            st2(0)
            a.e("v_add_u32 v14, s62, v14")
            b = 0
        if cfg.k1w:
            a.e(f"ds_write_b128 v12, v[{A}:{A+3}]")
            a.e(f"ds_write_b128 v12, v[{A+4}:{A+7}] offset:16")
            a.e(f"ds_read_b128 v[{48+8*b}:{51+8*b}], v13")
            a.e(f"ds_read_b128 v[{52+8*b}:{55+8*b}], v13 offset:{16*80}")
        else:
            a.e(f"ds_write_b128 v12, v[{A}:{A+3}] offset:{b*32*272}")
            a.e(f"ds_write_b128 v12, v[{A+4}:{A+7}] offset:{b*32*272+16}")
    def st2(b):
        for j in range(2):
            a.e(f"buffer_store_dwordx4 v[{48+8*b+4*j}:{51+8*b+4*j}], v14, s[32:35], {['0','s65','s62','s66'][2*b+j]} offen {cfg.p_pol}")
    a.e(f"s_cmp_ge_u32 s{sW}, 4")
    a.e("s_waitcnt vmcnt(4)")
    a.e("s_barrier")
    for st in range(8): rx0(st)
    a.e("s_cbranch_scc1 K1_NX1")
    for st in range(8):
        a.e(f"ds_read_b128 v[{X1+4*st}:{X1+4*st+3}], v{20+st} offset:8192")
    a.label("K1_NX1")
    a.e("s_waitcnt vmcnt(0)")
    stamp(a, 1, 197)
    a.e("s_barrier")
    for st in range(8): rw(st)
    for st in range(8):
        a.e(f"s_waitcnt lgkmcnt({14-2*st})")
        mm(A0, X0, st)
    a.e("s_cbranch_scc1 K1_NX2")
    for st in range(8): mm(A1, X1, st)
    a.e("s_nop 2")
    fin(0, A0)
    fin(1, A1)
    a.e("s_branch K1_NX3")
    a.label("K1_NX2")
    a.e("s_nop 10")
    fin(0, A0)
    a.label("K1_NX3")
    a.e("s_waitcnt lgkmcnt(0)")
    if cfg.k1w:
        st2(0)
    else:
        a.e("s_barrier")
        for j in range(3):
            a.e(f"ds_read_b128 v[{48+4*j}:{51+4*j}], v13 offset:{j*32*272}")
        for j in range(3):
            a.e(f"s_waitcnt lgkmcnt({2-j})")
            a.e(f"buffer_store_dwordx4 v[{48+4*j}:{51+4*j}], v14, s[32:35], {['0','s62','s63'][j]} offen {cfg.p_pol}")
    stamp(a, 2, 197)
    if cfg.dbg: a.e("s_waitcnt vmcnt(0)")
    stamp(a, 3, 197)
    stamp_out(a, 197, 198, 0)
    a.e("s_endpgm")
    SL, FLAG, SORT = 0, 36864, 36880
    a.label("K1_BIN")
    a.e(f"s_mul_i32 s{sT+2}, s{sId}, 12800")
    a.e(f"s_lshl_b32 s{sT+3}, s{sId}, 15")
    a.e("v_lshlrev_b32 v2, 4, v0")
    a.e("s_movk_i32 s3, 6400")
    a.e("s_movk_i32 s59, 400")
    a.e("v_cmp_gt_u32 s[60:61], s59, v0")
    a.e("s_waitcnt lgkmcnt(0)")
    D, S, BA, RK, AD = 4, 12, 20, 28, 36
    srd(a, 24, S_DST, off_s=sT+2, size=12800)
    a.e(f"buffer_load_dwordx4 v[{D}:{D+3}], v2, s[24:27], 0 offen {cfg.ld_pol}")
    a.e(f"buffer_load_dwordx4 v[{D+4}:{D+7}], v2, s[24:27], s3 offen {cfg.ld_pol}")
    srd(a, 28, S_SRC, off_s=sT+2, size=12800)
    a.e(f"buffer_load_dwordx4 v[{S}:{S+3}], v2, s[28:31], 0 offen {cfg.ld_pol}")
    a.e(f"buffer_load_dwordx4 v[{S+4}:{S+7}], v2, s[28:31], s3 offen {cfg.ld_pol}")
    srd(a, 32, S_WS, off_s=sT+3, off_c=cfg.wsoff + WS_S01, size=32768)
    a.e("v_mov_b32 v44, 1")
    a.e("v_min_u32 v3, 256, v0")
    a.e("v_mul_u32_u24 v3, 144, v3")
    a.e(f"ds_write_b32 v3, v44 offset:{SL}")
    a.e("v_lshlrev_b32 v45, 22, v0")
    a.e("s_movk_i32 s58, 10700")
    a.e("s_movk_i32 s57, 144")
    a.e("v_lshrrev_b32 v46, 3, v0")
    a.e("v_lshl_add_u32 v46, v46, 4, v2")
    a.e(f"v_mov_b32 v48, {FLAG}")
    a.e("s_movk_i32 s62, 8192\ns_movk_i32 s63, 16384\ns_movk_i32 s64, 24576")
    a.e("s_waitcnt lgkmcnt(0)")
    a.e("s_barrier")
    if True:
        a.e(f"s_cmp_lg_u32 s{sW}, 7")
        a.e("s_cbranch_scc1 K1_NOTOUCH")
        a.e("s_cmp_ge_u32 s2, 124")
        a.e("s_cbranch_scc1 K1_W3")
        a.e(f"s_lshr_b32 s{sT}, s2, 3")
        a.e(f"v_lshlrev_b32 v70, 7, v{vL}")
        if cfg.touch & 1:
            srd(a, 72, S_WM, off_c=32768, size=32768)
            srd(a, 76, S_WU, size=65536)
            a.e(f"s_mul_i32 s{sT+1}, s{sT}, {18*128}")
            a.e("s_mov_b64 exec, 0x3ffff")
            a.e(f"buffer_load_dword v71, v70, s[72:75], s{sT+1} offen")
            a.e(f"s_mul_i32 s{sT+1}, s{sT}, {35*128}")
            a.e("s_mov_b32 exec_lo, -1\ns_mov_b32 exec_hi, 7")
            a.e(f"buffer_load_dword v72, v70, s[76:79], s{sT+1} offen")
        if cfg.touch & 2:
            a.e("s_mov_b64 exec, 0x1ff")
            a.e("s_getpc_b64 s[68:69]")
            a.label("K1_PC")
            a.e(f"s_add_u32 s68, s68, {NAME}_kernel-K1_PC")
            a.e("s_addc_u32 s69, s69, 0")
            a.e(f"s_mul_i32 s{sT+1}, s{sT}, {9*128}")
            a.e(f"v_add_u32 v74, s{sT+1}, v70")
            a.e(f"v_min_u32 v74, K2_CODE_END-{NAME}_kernel-4, v74")
            a.e("v_mov_b32 v75, s69")
            a.e("v_add_co_u32 v74, vcc, s68, v74")
            a.e("s_nop 1")
            a.e("v_addc_co_u32 v75, vcc, 0, v75, vcc")
            a.e("global_load_dword v73, v[74:75], off")
        a.e("s_mov_b64 exec, -1")
        a.e("s_branch K1_B2")
        a.label("K1_NOTOUCH")
    a.e("s_mov_b64 exec, s[60:61]")
    for j in range(2):
        a.e(f"s_waitcnt vmcnt({3-j})")
        if j == 0: stamp(a, 1, 197)
        for i in range(4*j, 4*j+4):
            a.e(f"v_mul_u32_u24 v{AD+i}, s58, v{D+i}")
            a.e(f"v_lshrrev_b32 v{AD+i}, 19, v{AD+i}")
            a.e(f"v_mul_u32_u24 v{BA+i}, s57, v{AD+i}")
            a.e(f"ds_add_rtn_u32 v{RK+i}, v{BA+i}, v44 offset:{SL}")
    for i in range(8):
        a.e(f"v_mul_u32_u24 v{AD+i}, 49, v{AD+i}")
        a.e(f"v_sub_u32 v{D+i}, v{D+i}, v{AD+i}")
        if i: a.e(f"v_add_u32 v45, {hex(((1600-3) if i == 4 else 1) << 20)}, v45")
        a.e(f"v_or_b32 v{D+i}, v{D+i}, v45")
    a.e(f"s_waitcnt vmcnt(0)")
    stamp(a, 4, 197)
    for i in range(8):
        a.e(f"s_waitcnt lgkmcnt(7)")
        a.e(f"v_min_u32 v{AD+i}, 32, v{RK+i}")
        a.e(f"v_lshl_or_b32 v{D+i}, v{S+i}, 6, v{D+i}")
        a.e(f"v_lshl_add_u32 v{AD+i}, v{AD+i}, 2, v{BA+i}")
        a.e(f"ds_write_b32 v{AD+i}, v{D+i} offset:{SL}")
    a.e(f"v_max3_u32 v47, v{RK}, v{RK+1}, v{RK+2}")
    a.e(f"v_max3_u32 v47, v47, v{RK+3}, v{RK+4}")
    a.e(f"v_max3_u32 v47, v47, v{RK+5}, v{RK+6}")
    a.e(f"v_max_u32 v47, v47, v{RK+7}")
    a.e("v_cmpx_le_u32 vcc, 32, v47")
    a.e("ds_write_b32 v48, v47")
    a.e("s_mov_b64 exec, -1")
    a.e("s_waitcnt lgkmcnt(0)")
    stamp(a, 5, 197)
    a.label("K1_B2")
    a.e("s_barrier")
    stamp(a, 6, 197)
    for j in range(4):
        a.e(f"ds_read_b128 v[{52+4*j}:{55+4*j}], v46 offset:{SL + j*9216}")
    a.e(f"ds_read_b32 v49, v48")
    for j in range(4):
        a.e(f"s_waitcnt lgkmcnt({4-j})")
        a.e(f"buffer_store_dwordx4 v[{52+4*j}:{55+4*j}], v2, s[32:35], {['0','s62','s63','s64'][j]} offen {cfg.st_pol}")
    a.e("s_waitcnt lgkmcnt(0)")
    a.e("v_readfirstlane_b32 s3, v49")
    a.e("s_cmp_lg_u32 s3, 1")
    a.e("s_cbranch_scc1 K1_FULL")
    stamp(a, 2, 197)
    if cfg.dbg: a.e("s_waitcnt vmcnt(0)")
    stamp(a, 3, 197)
    stamp_out(a, 197, 198, 0)
    a.label("K1_END")
    a.e("s_endpgm")
    a.label("K1_FULL")
    a.e("s_waitcnt vmcnt(0)")
    a.e(f"s_lshl_b32 s{sT+4}, s{sId}, 2")
    srd(a, 32, S_WS, off_s=sT+2, off_c=cfg.wsoff + WS_REC, size=12800)
    srd(a, 36, S_WS, off_s=sT+4, off_c=cfg.wsoff + WS_OFFT, size=255*1024 + 4)
    a.e(f"v_mul_u32_u24 v3, {4*144}, v{vL}")
    for i in range(4):
        a.e(f"ds_read_b32 v{52+i}, v3 offset:{SL + 144*i}")
    a.e("s_waitcnt lgkmcnt(0)")
    for i in range(4):
        a.e(f"v_add_u32 v{52+i}, -1, v{52+i}")
    a.e("v_add_u32 v56, v52, v53")
    a.e("v_add_u32 v57, v56, v54")
    a.e("v_add_u32 v58, v57, v55")
    a.e("v_mov_b32 v60, v58")
    scan64(a, 60)
    a.e("v_sub_u32 v60, v60, v58")
    a.e("v_add_u32 v61, v60, v52")
    a.e("v_add_u32 v62, v60, v56")
    a.e("v_add_u32 v63, v60, v57")
    for i in range(4):
        a.e(f"ds_write_b32 v3, v{60+i} offset:{SL + 144*i + 132}")
    a.e(f"s_cmp_lg_u32 s{sW}, 7")
    a.e("s_cbranch_scc1 K1_NOFFT")
    a.e(f"v_lshlrev_b32 v59, 12, v{vL}")
    for i in range(4):
        o = f" offset:{1024*i}" if i else ""
        a.e(f"buffer_store_dword v{60+i}, v59, s[36:39], 0 offen{o}")
    a.label("K1_NOFFT")
    a.e("s_mov_b64 exec, s[60:61]")
    a.e("s_waitcnt lgkmcnt(0)")
    for i in range(8):
        a.e(f"ds_read_b32 v{BA+i}, v{BA+i} offset:{SL + 132}")
    a.e("s_waitcnt lgkmcnt(0)")
    for i in range(8):
        a.e(f"v_add_lshl_u32 v{BA+i}, v{BA+i}, v{RK+i}, 2")
        a.e(f"ds_write_b32 v{BA+i}, v{D+i} offset:{SORT - 4}")
    a.e("s_mov_b64 exec, -1")
    a.e("s_waitcnt lgkmcnt(0)")
    a.e("s_barrier")
    a.e(f"ds_read_b128 v[4:7], v2 offset:{SORT}")
    a.e(f"ds_read_b128 v[8:11], v2 offset:{SORT + 8192}")
    a.e(f"s_waitcnt lgkmcnt(0)")
    a.e(f"buffer_store_dwordx4 v[4:7], v2, s[32:35], 0 offen")
    a.e(f"buffer_store_dwordx4 v[8:11], v2, s[32:35], s62 offen")
    a.e("s_endpgm")
    a.label("K1_W3")
    a.e(f"s_sub_u32 s{sT}, s2, 124")
    srd(a, 72, S_WM, off_c=65536, size=4096)
    srd(a, 76, S_WS, off_c=cfg.wsoff + WS_W3F, size=4096)
    a.e(f"v_and_b32 v70, 31, v{vL}")
    a.e("v_lshlrev_b32 v70, 1, v70")
    a.e(f"v_lshrrev_b32 v71, 5, v{vL}")
    a.e("v_lshl_add_u32 v70, v71, 11, v70")
    a.e(f"s_lshl_b32 s{sT+1}, s{sT}, 6")
    for j in range(8):
        o = f" offset:{256*j}" if j else ""
        a.e(f"buffer_load_ushort v{72+j}, v70, s[72:75], s{sT+1} offen{o}")
    a.e(f"s_lshl_b32 s{sT+1}, s{sT}, 10")
    a.e(f"s_mov_b32 s{sT}, {LOG2E_NEG}")
    a.e(f"v_lshlrev_b32 v71, 4, v{vL}")
    a.e("s_waitcnt vmcnt(0)")
    for j in range(8):
        a.e(f"v_lshlrev_b32 v{72+j}, 16, v{72+j}")
        a.e(f"v_mul_f32 v{72+j}, s{sT}, v{72+j}")
    for j in range(4):
        a.e(f"v_cvt_pk_bf16_f32 v{80+j}, v{72+2*j}, v{73+2*j}")
    a.e(f"buffer_store_dwordx4 v[80:83], v71, s[76:79], s{sT+1} offen {cfg.st_pol}")
    a.e("s_branch K1_B2")

CNT, FLG, LUT, QL, LIST, AGG, SIDE, WU2, STG = 0, 256, 288, 576, 13776, 30800, 56672, 65536, 98304
MAXT = 65
K2_LDS = 163840
vL, vM = 1, 2
vOC, vREM, vROFF, vEB = 3, 4, 5, 6
vAE, vAP, vAQ = 7, 8, 9
vCP, vRP0, vRP1, vCQ, vCL, vCA, vH16, vFA = 10, 11, 12, 13, 14, 15, 16, 17
vPA = 144
vEA, vLA = 20, 21
vQA = 22
vRS = 148
vC4 = 152
ACC = 156
vRN = 28
vRE = 30
vSD = 31
vCUR = 32
vCHK = 34
vWC, vWA = 35, 36
vPF = 38
vT = 40
Z = 64; PX = 128; PY = 128; QX = 160; QY = 168; EE = 176; AQ = 184; AP = 188; IDX = 192; W3 = 196
NN = 212; DD = 220; EX = 228; TT = 232; ACX = 236
sP, sE, sX, sO, sR, sWm, sWu, sOT = 24, 28, 32, 36, 40, 44, 48, 52
sW, sBin, sNT, sCnt, sG0, sG1, sG2, sLim, sDone, sSafe, sW4k, sM0, sMask, sMore, sFirst, sDm = 22, 23, 56, 57, 58, 59, 60, 61, 62, 63, 64, 65, 66, 67, 68, 69
sT = 70
sX0 = 80
sSusp = 88
sF0, sF1 = 32, 34
sMA, sMB, sL, sEX = 58, 59, 60, 52
PSIZE = 12500 * 256 + 3072
s256 = 79
ESIZE = 400000 * 32

def dma_m0(H, dest=None):
    if dest is None: dest = H
    return f"s_add_u32 m0, s{sW4k}, {WU2 - 128*H}" if dest == "alt" else f"s_add_u32 m0, s{sM0}, {dest*4096 - 128*H + 256}"
def dma_ld(H):
    out = []
    for j in range(4):
        imm = 1024 * j + 128 * H
        o = f" offset:{imm}" if imm else ""
        out.append(f"buffer_load_dwordx4 v{vPA+j}, s[{sP}:{sP+3}], 0 offen{o} {cfg.g_pol} lds")
    return out
def dma_ops(H, dest=None):
    l = dma_ld(H)
    return [[dma_m0(H, dest), "s_nop 0", l[0]], [l[1]], [l[2]], [l[3]]]
def dma_half(a, H, dest=None):
    for s in sum(dma_ops(H, dest), []): a.e(s)
def pfrag_reads(dst, H, va=None):
    out = []
    va = vRP0 if va is None else va
    for tq in range(2):
        for q in range(4):
            r = dst + 8 * tq + 2 * q
            out.append(f"ds_read_b64_tr_b16 v[{r}:{r+1}], v{va+tq} offset:{H*4096 + q*512}")
    return out
def qfrag_reads(dst, H, par):
    out = []
    for tq in range(2):
        for u in range(2):
            r = dst + 4 * tq + 2 * u
            out.append(f"ds_read_b64_tr_b16 v[{r}:{r+1}], v{vQA+2*par+u} offset:{(2*H+tq)*64}")
    return out
def list_reads_se(o=0):
    return [f"ds_read_b32 v{vRE}, v{vAE} offset:{128*o}", f"ds_read2_b32 v[{vRS}:{vRS+1}], v{vAP} offset0:{32*o} offset1:{32*o+8}", f"ds_read2_b32 v[{vRS+2}:{vRS+3}], v{vAP} offset0:{32*o+16} offset1:{32*o+24}"]
def list_reads_n(o=0):
    return [f"ds_read_u16 v{vRN}, v{vAQ} offset:{128*o}", f"ds_read_u16 v{vRN+1}, v{vAQ} offset:{128*o+64}"]
def addr_p():
    return [f"v_mad_u32_u16 v{vPA+j}, v{vRS+j}, s{s256}, v{vC4+j}" for j in range(4)]
def addr_e():
    return [f"v_and_or_b32 v{vEA}, v{vRE}, s{sMask}, v{18 if 'ehalf' in cfg.x else vH16}"]
def addr_l():
    return [f"v_and_or_b32 v{vLA}, v{vRE}, 16, v{vCL}", f"v_cmp_gt_i32 vcc, 0, v{vRE}"]
def addr_se():
    return addr_p() + addr_e() + addr_l()
def flags_from_vcc(sF):
    if "nf2" in cfg.x: return [f"s_mov_b32 s{sF}, 0", f"s_mov_b32 s{sF+1}, 0"]
    return [f"s_lshr_b32 s{sF+1}, vcc_lo, 4", f"s_mov_b32 s{sF}, vcc_lo", f"s_or_b32 s{sF+1}, s{sF+1}, vcc_lo", f"s_or_b32 s{sF+1}, s{sF+1}, s{sSafe}"]
def addr_q(par):
    return [f"v_add_u32 v{vQA+2*par}, v{vRN}, v{vCQ}", f"v_add_u32 v{vQA+2*par+1}, v{vRN+1}, v{vCQ}"]
def e_load(par):
    return f"buffer_load_dwordx4 v[{EE+4*par}:{EE+4*par+3}], v{vEA}, s[{sE}:{sE+3}], 0 offen {cfg.e_pol}"
def mfmas(c0, Pset, Qset, epar):
    out = []
    zz = lambda c: f"v[{Z+16*c}:{Z+16*c+15}]"
    f4 = lambda r: f"v[{r}:{r+3}]"
    M = "v_mfma_f32_32x32x16_bf16"
    for i in range(2): out.append(f"{M} {zz(c0+i)}, {f4(EE+4*epar)}, {f4(W3+4*(c0+i))}, 0")
    for i in range(2): out.append(f"{M} {zz(c0+i)}, {f4(AQ)}, {f4(Qset+4*i)}, {zz(c0+i)}")
    for i in range(2): out.append(f"v_smfmac_f32_32x32x32_bf16 {zz(c0+i)}, {f4(AP)}, v[{Pset+8*i}:{Pset+8*i+7}], v{IDX}")
    return out
p2 = lambda r: f"v[{r}:{r+1}]"
def flush_code(a, c0, X, mid=(), wait=True, chk=()):
    t = vT + 8 * X
    for i in range(2):
        c = c0 + i
        a.e(f"v_rcp_f32 v{t+2*i}, v{DD+2*c}")
        a.e(f"v_rcp_f32 v{t+2*i+1}, v{DD+2*c+1}")
    for s in chk: a.e(s)
    for i in range(2):
        c = c0 + i
        a.e(f"v_max3_f32 v{vCHK}, v{DD+2*c}, v{DD+2*c+1}, v{vCHK}")
    for s in mid: a.e(s)
    if wait: a.e("s_waitcnt lgkmcnt(0)")
    for j in range(2):
        for i in range(2):
            c = c0 + i
            a.e(f"v_fmac_f32 v{ACC+c}, v{NN+2*c+j}, v{t+2*i+j}")

def half_step(a, ool, X, par, extras, tag):
    c0 = 2 * X
    sF0 = (32, 34)[par]
    if X == 0: mf = mfmas(2, PX, QX, par)
    else:      mf = mfmas(0, PY, QY, 1 - par)
    def keep(s):
        if "nodma" in cfg.x and (" lds" in s or "m0" in s or s == "s_nop 0"): return False
        if "noe" in cfg.x and s.startswith("buffer_load") and " lds" not in s: return False
        if "nods" in cfg.x and s.startswith("ds_read"): return False
        if "nowait" in cfg.x and s.startswith("s_waitcnt"): return False
        if "novm" in cfg.x and s.startswith("s_waitcnt vmcnt"): return False
        return True
    extras = {k: [s for s in v if keep(s)] for k, v in extras.items()}
    for s in extras.get("pre", []): a.e(s)
    if cfg.prio == 1: a.e(f"s_setprio {1 - X}")
    if cfg.prio == 2 and X == 0: a.e(f"s_setprio {1 - par}")
    for k in range(8):
        if cfg.prio == 3 and k in (0, 4): a.e(f"s_setprio {1 if k == 0 else 0}")
        if cfg.prio == 4: a.e("s_setprio 1")
        if cfg.prio == 5: a.e("s_setprio 0")
        if "nomfma" not in cfg.x and k < len(mf): a.e(mf[k])
        for i in range(2):
            z = Z + 16 * (c0 + i) + 2 * k
            a.e(f"v_exp_f32 v{EX+2*i}, v{z}")
            a.e(f"v_exp_f32 v{EX+2*i+1}, v{z+1}")
        for s in extras.get(k, []): a.e(s)
        if cfg.prio == 4: a.e("s_setprio 0")
        if cfg.prio == 5: a.e("s_setprio 1")
        bit = 8 * (k >> 1) + 2 * (k & 1)
        lf, lb = f"F_{tag}_{k}", f"R_{tag}_{k}"
        if "nobr" not in cfg.x:
            a.e(f"s_bitcmp1_b32 s{sSafe if 'nofl' in cfg.x else sF0+1}, {bit}")
            a.e(f"s_cbranch_scc1 {lf}")
        for i in range(2):
            c = c0 + i; z = Z + 16 * c + 2 * k
            a.e(f"v_pk_fma_f32 {p2(TT+2*i)}, {p2(z)}, {p2(DD+2*c)}, {p2(NN+2*c)}")
        for i in range(2):
            c = c0 + i
            a.e(f"v_pk_fma_f32 {p2(DD+2*c)}, {p2(DD+2*c)}, {p2(EX+2*i)}, {p2(DD+2*c)}")
        for i in range(2):
            c = c0 + i
            a.e(f"v_pk_fma_f32 {p2(NN+2*c)}, {p2(NN+2*c)}, {p2(EX+2*i)}, {p2(TT+2*i)}")
        a.label(lb)
        ool.label(lf)
        t = vT + 8 * X
        ex = "K2_LEND" if X else (f"EXA{par}_{k}" if k < 6 else f"R_{tag}_7")
        sal = ([f"s_bitcmp1_b32 s{sF0}, {bit+1}", f"s_cbranch_scc1 {ex}"] if k else []) + \
              [f"s_bitcmp1_b32 s{sF0}, {bit}", f"s_cselect_b32 s{sT}, -1, 0", f"s_bitcmp1_b32 s{sF0}, {bit+4}", f"s_cselect_b32 s{sT+1}, -1, 0"]
        rc = [f"v_rcp_f32 v{t+j}, v{DD+2*c0+j}" for j in range(4)]
        n = len(sal)
        for j in range(4):
            ool.e(rc[j])
            for x in sal[:(n + 3 - j) // 4 if False else 0]: pass
            cnt = (n // 4) + (1 if j < n % 4 else 0)
            for _ in range(cnt): ool.e(sal.pop(0))
        for i in range(2):
            c = c0 + i
            ool.e(f"v_max3_f32 v{vCHK}, v{DD+2*c}, v{DD+2*c+1}, v{vCHK}")
        ool.e(f"v_mov_b32_dpp v{t+6}, v{vQA+2*par+(k>>2)} row_newbcast:{4*(k&3)} row_mask:0xf bank_mask:0xf")
        nk = sum(1 for x in extras.get(k, []) if x.startswith("ds_")) if cfg.cw else 0
        if k == 0 and cfg.cw: pass
        elif k == 7 and cfg.cw: pass
        else: ool.e(f"s_waitcnt lgkmcnt({nk})")
        for j in range(2):
            for i in range(2):
                c = c0 + i
                ool.e(f"v_fmac_f32 v{ACC+c}, v{NN+2*c+j}, v{t+2*i+j}")
        ool.e(f"s_mov_b64 exec, s[{sT}:{sT+1}]")
        ool.e(f"ds_write2_b32 v{vCUR+X}, v{ACC+c0}, v{ACC+c0+1} offset0:{32*c0} offset1:{32*c0+32}")
        ool.e(f"v_lshl_add_u32 v{vCUR+X}, v{t+6}, 1, v{vCA}")
        ool.e(f"ds_read2_b32 v[{ACC+c0}:{ACC+c0+1}], v{vCUR+X} offset0:{32*c0} offset1:{32*c0+32}")
        ool.e("s_mov_b64 exec, -1")
        for i in range(2):
            c = c0 + i
            ool.e(f"v_pk_add_f32 {p2(DD+2*c)}, {p2(EX+2*i)}, 1.0 op_sel_hi:[1,0]")
        for i in range(2):
            c = c0 + i; z = Z + 16 * c + 2 * k
            ool.e(f"v_pk_mov_b32 {p2(NN+2*c)}, {p2(z)}, {p2(z)} op_sel:[0,1]")
        ool.e(f"s_branch {lb}")

def lds_fill(a, base, nbytes, vdata, vaddr16, ex):
    n = (nbytes + 15) // 16
    r = 0
    while n >= 512:
        a.e(f"ds_write_b128 v{vaddr16}, v[{vdata}:{vdata+3}] offset:{base + r*8192}")
        n -= 512; r += 1
    if n:
        a.e(f"s_movk_i32 s{sT}, {n}")
        a.e(f"v_cmp_gt_u32 vcc, s{sT}, v0")
        a.e(f"s_and_saveexec_b64 s[{ex}:{ex+1}], vcc")
        a.e(f"ds_write_b128 v{vaddr16}, v[{vdata}:{vdata+3}] offset:{base + r*8192}")
        a.e(f"s_mov_b64 exec, s[{ex}:{ex+1}]")

def reset_round(a, zero_agg):
    t = vT
    a.e(f"v_lshlrev_b32 v{t}, 4, v0")
    a.e(f"v_mov_b32 v{t+8}, 0\nv_mov_b32 v{t+9}, 0\nv_mov_b32 v{t+10}, 0\nv_mov_b32 v{t+11}, 0")
    lds_fill(a, CNT, 272, t+8, t, sX0)
    if zero_agg: lds_fill(a, AGG, 49 * 528, t+8, t, sX0)

def onehot4(a, dst, vJ, vcond_sgpr, t):
    a.e(f"v_and_b32 v{t}, 1, v{vJ}")
    a.e(f"v_lshlrev_b32 v{t}, 4, v{t}")
    a.e(f"v_mov_b32 v{t+1}, 0x3f80")
    a.e(f"v_lshlrev_b32 v{t}, v{t}, v{t+1}")
    if vcond_sgpr is not None:
        a.e(f"v_cndmask_b32 v{t}, 0, v{t}, s[{vcond_sgpr}:{vcond_sgpr+1}]")
    a.e(f"v_lshrrev_b32 v{t+1}, 1, v{vJ}")
    for i in range(4):
        a.e(f"v_cmp_eq_u32 vcc, {i}, v{t+1}")
        a.e("s_nop 1")
        a.e(f"v_cndmask_b32 v{dst+i}, 0, v{t}, vcc")

def gen_k2(a):
    ool = Asm()
    rare = Asm()
    RC = 160; RK = 172; NA = 184; EN = 212
    XF, WU1F, W2F, QACC = 64, 96, [128, 132, 136, 140, 160, 164, 168, 172], 212
    vLA0, vXA, vW3A, vW0 = vT + 20, vT + 21, vT + 22, vT + 23
    t = vT + 12
    kernel_head(a, NAME + "_kernel")
    load_args(a)
    a.e(f"v_lshrrev_b32 v{vT+1}, 2, v0")
    a.e(f"v_and_b32 v{vW0}, 3, v0")
    a.e("s_cmp_ge_u32 s2, 256")
    a.e("s_cbranch_scc1 K2_END")
    if cfg.dbg:
        a.e("v_mov_b32 v252, 0")
        a.e("s_memrealtime s[92:93]")
    idmap(a, sBin, 2, sT)
    a.e(f"v_mul_u32_u24 v{vEB}, 3200, v{vT+1}")
    a.e(f"v_lshlrev_b32 v{vT+4}, 4, v{vW0}")
    a.e(f"s_lshl_b32 s{sT+2}, s{sBin}, 7")
    a.e(f"s_add_u32 s{sT+2}, s{sT+2}, {cfg.wsoff + WS_S01}")
    a.e(f"v_lshl_add_u32 v{vT+2}, v{vT+1}, 15, v{vT+4}")
    a.e(f"s_mov_b32 s{sOT+2}, {124*32768+128}")
    a.e(f"s_mov_b32 s{sOT+3}, 0x20000")
    a.e(f"v_lshrrev_b32 v{vT}, 6, v0")
    a.e(f"v_and_b32 v{vL}, 63, v0")
    a.e(f"v_readfirstlane_b32 s{sW}, v{vT}")
    a.e(f"s_mul_i32 s{sT+3}, s{sBin}, 12544")
    a.e(f"s_sub_u32 s{sT+4}, 3200000, s{sT+3}")
    a.e(f"s_min_u32 s{sT+4}, s{sT+4}, 12544")
    a.e(f"v_mov_b32 v{vT+8}, 0\nv_mov_b32 v{vT+9}, 0\nv_mov_b32 v{vT+10}, 0\nv_mov_b32 v{vT+11}, 0")
    a.e(f"v_lshlrev_b32 v{vW3A}, 4, v{vL}")
    a.e("s_mov_b64 exec, 0x1ffff")
    a.e(f"ds_write_b128 v{vW3A}, v[{vT+8}:{vT+11}] offset:{CNT}")
    a.e("s_mov_b64 exec, -1")
    WU1L = 32768
    NPF = cfg.prefetchP
    vXD, vW3D = vT + 18, vT + 7
    sM = sX0 + 4
    c = Asm(); x_dma(c, sX, sW, vL, STG, vXD, sM + 2, strided=True)
    for x in c.lines[:-4]: a.e(x)
    a.e(f"s_add_u32 s{sM+3}, s{sM+3}, {STG}")
    xd = c.lines[-2:]
    w_lane_const(a, vWC, vL, t)
    a.e(f"s_lshl_b32 s{sW4k}, s{sW}, 12")
    a.e(f"s_lshl_b32 s{sM0}, s{sW}, 13")
    a.e(f"s_add_u32 s{sM}, s{sM0}, {STG + 4096}")
    a.e(f"s_add_u32 s{sM0}, s{sM0}, {STG - 256}")
    a.e(f"s_add_u32 s{sM+1}, s{sW4k}, {WU1L}")
    a.e(f"v_lshlrev_b32 v{vW3D}, 4, v0")
    a.e(f"s_and_b32 s{sT+1}, s{sW}, 4")
    a.e(f"s_add_u32 s{sT}, s{sW}, s{sT+1}")
    a.e(f"s_lshl_b32 s{sT}, s{sT}, 10")
    a.e(f"s_add_u32 m0, s{sT}, {STG + 32768}")
    a.e(f"s_mov_b32 s{sR+2}, 4096")
    a.e(f"s_mov_b32 s{sR+3}, 0x20000")
    a.e("s_waitcnt lgkmcnt(0)")
    a.e(f"s_add_u32 s{sOT}, s{S_WS}, s{sT+2}")
    a.e(f"s_addc_u32 s{sOT+1}, s{S_WS+1}, 0")
    a.e(f"buffer_load_dwordx4 v[{RC}:{RC+3}], v{vT+2}, s[{sOT}:{sOT+3}], 0 offen {cfg.s_pol}")
    a.e(f"buffer_load_dwordx4 v[{RC+4}:{RC+7}], v{vT+2}, s[{sOT}:{sOT+3}], 0 offen offset:64 {cfg.s_pol}")
    a.e(f"s_add_u32 s{sR}, s{S_WS}, {cfg.wsoff + WS_W3F}")
    a.e(f"s_addc_u32 s{sR+1}, s{S_WS+1}, 0")
    a.e(f"buffer_load_dwordx4 v{vW3D}, s[{sR}:{sR+3}], 0 offen lds")
    if cfg.dbg:
        a.e("v_writelane_b32 v252, s92, 0")
        a.e("s_getreg_b32 s90, hwreg(HW_REG_XCC_ID)")
        a.e("s_add_u32 s90, s90, 1")
        a.e("v_writelane_b32 v252, s90, 39")
    stamp(a, 40, 252)
    srd(a, sX, S_X, off_s=sT+3, size=f"s{sT+4}")
    srd(a, sO, S_OUT, off_s=sT+3, size=f"s{sT+4}")
    srd(a, sWm, S_WM, off_c=32768, size=32768)
    srd(a, sWu, S_WU, size=256*256)
    if cfg.spf:
        a.e(f"s_lshr_b32 s{sT}, s2, 3")
        a.e(f"s_mul_i32 s{sT}, s{sT}, {781*128}")
        a.e(f"s_mul_i32 s{sT+1}, s{sW}, {cfg.spf*128}")
        a.e(f"s_add_u32 s{sT}, s{sT}, s{sT+1}")
        a.e(f"s_add_u32 s{sT}, s{sT}, {cfg.wsoff + WS_P + (781 - 8*cfg.spf)*128}")
        a.e(f"s_add_u32 s{sT}, s{S_WS}, s{sT}")
        a.e(f"s_addc_u32 s{sT+1}, s{S_WS+1}, 0")
    a.e("s_barrier")
    for j in range(cfg.spf):
        a.e(f"s_load_dword s78, s[{sT}:{sT+1}], {hex(128*j)}")
    stamp(a, 41, 252)
    def mix(lines, extra, first=0):
        out = []; n = len(lines); m = len(extra); k = 0; full = True
        for i, x in enumerate(lines):
            while full and k < m and k * n <= i * m: out += extra[k]; k += 1
            out.append(x)
            if "exec" in x.split(",")[0]: full = x.strip() == "s_mov_b64 exec, -1"
        return out + sum(extra[k:], [])
    dm = [[f"s_mov_b32 m0, s{sM+3}", "s_nop 0", xd[0]], [xd[1]]]
    for j, srdw in enumerate((sWm, sWu)):
        for i in range(4):
            o = f" offset:{1024*i}" if i else ""
            dm.append(([f"s_mov_b32 m0, s{sM+j}", "s_nop 0"] if i == 0 else []) + [f"buffer_load_dwordx4 v{vWC}, s[{srdw}:{srdw+3}], s{sW4k} offen{o} lds"])
    c = Asm(); sav = a.lines; a.lines = c.lines
    a.e(f"v_and_b32 v{t+1}, 7, v{vL}")
    onehot4(a, AQ, t+1, None, t+2)
    a.e(f"v_lshlrev_b32 v{t+2}, 5, v{vL}")
    a.e(f"v_and_b32 v{vM}, 31, v0")
    a.e(f"v_lshlrev_b32 v{vW0}, 2, v{vW0}")
    a.e("s_mov_b64 exec, 0x1ff")
    a.e(f"ds_write_b128 v{t+2}, v[{vT+8}:{vT+11}] offset:{LUT+16}")
    a.e("s_mov_b64 exec, 0x100")
    a.e(f"ds_write_b128 v{t+2}, v[{vT+8}:{vT+11}] offset:{LUT}")
    a.e("s_mov_b64 exec, 0xff")
    a.e(f"ds_write_b128 v{t+2}, v[{AQ}:{AQ+3}] offset:{LUT}")
    a.e("s_mov_b64 exec, -1")
    srd(a, sP, S_WS, off_c=cfg.wsoff + WS_P - 3072, size=PSIZE)
    if NPF:
        a.e(f"s_lshr_b32 s{sT}, s2, 3")
        a.e(f"s_mul_i32 s{sT}, s{sT}, {781*128}")
        a.e(f"s_add_u32 s{sT}, s{sT}, 3072")
        a.e(f"v_lshl_add_u32 v{vPF}, v{vL}, 3, s{sW}")
        if cfg.pfn < 512:
            a.e(f"s_movk_i32 s{sT+1}, {cfg.pfn}")
            a.e(f"v_cmp_gt_u32 vcc, s{sT+1}, v{vPF}")
        a.e(f"v_lshl_add_u32 v{vPF}, v{vPF}, 7, s{sT}")
        if NPF > 1:
            a.e(f"v_add_u32 v{vPF+1}, 0x10000, v{vPF}")
        if cfg.pfn < 512:
            a.e(f"v_mov_b32 v{vT+3}, 0x7ffffff0")
            a.e(f"v_cndmask_b32 v{vPF+NPF-1}, v{vT+3}, v{vPF+NPF-1}, vcc")
    if cfg.pfe:
        a.e(f"s_mul_i32 s{sT}, s2, 51200")
        a.e(f"v_lshl_add_u32 v{vPF+1}, v{vL}, 3, s{sW}")
        a.e(f"s_movk_i32 s{sT+1}, {cfg.pfe}")
        a.e(f"v_cmp_gt_u32 vcc, s{sT+1}, v{vPF+1}")
        a.e(f"v_lshl_add_u32 v{vPF+1}, v{vPF+1}, 7, s{sT}")
        a.e(f"v_mov_b32 v{vT+3}, 0x7ffffff0")
        a.e(f"v_cndmask_b32 v{vPF+1}, v{vT+3}, v{vPF+1}, vcc")
    NPP = NPF
    if cfg.pfm:
        a.e(f"v_lshl_add_u32 v{vPF+1}, v{vL}, 3, s{sW}")
        a.e(f"s_movk_i32 s{sT+1}, {cfg.pfm}")
        a.e(f"v_cmp_gt_u32 vcc, s{sT+1}, v{vPF+1}")
        a.e(f"s_add_u32 s{sT}, s{sT}, 0x10000")
        a.e(f"v_lshl_add_u32 v{vPF+1}, v{vPF+1}, 7, s{sT}")
        a.e(f"v_cndmask_b32 v{vPF+1}, v{vT+3}, v{vPF+1}, vcc")
        dm[cfg.pfmpos] = dm[cfg.pfmpos] + [f"buffer_load_dword v37, v{vPF+1}, s[{sP}:{sP+3}], 0 offen"]
    if cfg.tlb:
        a.e(f"v_lshlrev_b32 v{vPF+1}, 20, v{vL}")
    def pf(pos):
        if cfg.pfpos == pos:
            if cfg.tlb & 1: a.e(f"buffer_load_dword v37, v{vPF+1}, s[{sE}:{sE+3}], 0 offen")
            if cfg.tlb & 2: a.e(f"buffer_load_dword v37, v{vPF+1}, s[{sO}:{sO+3}], 0 offen")
            if cfg.pfe: a.e(f"buffer_load_dword v37, v{vPF+1}, s[{sE}:{sE+3}], 0 offen {cfg.et_pol}")
            for i in range(NPP): a.e(f"buffer_load_dword v37, v{vPF+i}, s[{sP}:{sP+3}], 0 offen")
    if cfg.pfe: NPF += 1
    NPF += (cfg.tlb & 1) + (cfg.tlb >> 1 & 1)
    a.e(f"s_mov_b32 s{sLim}, 32")
    a.e(f"s_mov_b32 s{sDone}, 0")
    wfrag_const(a, vWA, vL, sW, t, sT)
    a.e(f"v_add_u32 v{vW3A}, {STG + 32768}, v{vW3A}")
    a.e(f"v_lshrrev_b32 v{t}, 5, v{vL}")
    a.e(f"v_and_b32 v{t+1}, 15, v{vL}")
    a.e(f"v_xor_b32 v{t+2}, v{t}, v{t+1}")
    a.e(f"v_lshlrev_b32 v{t+2}, 4, v{t+2}")
    a.e(f"v_lshl_add_u32 v{vXA}, v{t+1}, 8, v{t+2}")
    a.e(f"v_bfe_u32 v{t+2}, v{vL}, 4, 1")
    a.e(f"v_lshl_add_u32 v{vXA}, v{t+2}, 13, v{vXA}")
    a.e(f"s_lshr_b32 s{sT}, s{sW}, 2")
    a.e(f"s_lshl_b32 s{sT}, s{sT}, 14")
    a.e(f"s_add_u32 s{sT}, s{sT}, {STG}")
    a.e(f"v_add_u32 v{vXA}, s{sT}, v{vXA}")
    srd(a, sE, S_E, size=ESIZE)
    a.e(f"s_mov_b32 s{sSafe}, 0")
    a.e(f"s_mov_b32 s{sFirst}, 1")
    a.e(f"s_mov_b32 s{sMask}, {'0x4003ffe0' if 'esm' in cfg.x else '0x7fffffe0'}")
    a.e(f"v_mov_b32 v{vCL}, {LUT + 256}")
    a.e(f"v_bfe_u32 v{t+1}, v{vL}, 3, 2")
    a.e(f"v_bfe_u32 v{t+3}, v{vL}, 1, 1")
    a.e(f"v_lshl_add_u32 v{t+1}, v{t+1}, 1, v{t+3}")
    a.e(f"v_lshlrev_b32 v{t+1}, 5, v{t+1}")
    a.e("s_mov_b32 exec_lo, 0x0f0f0f0f\ns_mov_b32 exec_hi, 0xf0f0f0f0")
    a.e(f"v_add_u32 v{vCL}, {LUT}, v{t+1}")
    a.e("s_mov_b64 exec, -1")
    a.e(f"v_lshlrev_b32 v{vH16}, 4, v{t}")
    if 'ehalf' in cfg.x: a.e(f"v_lshlrev_b32 v18, 30, v{t}")
    a.e(f"v_and_b32 v{t+1}, 3, v{vL}")
    a.e(f"v_lshlrev_b32 v{vCQ}, 3, v{t+1}")
    a.e(f"v_lshl_add_u32 v{vCQ}, v{t+2}, 5, v{vCQ}")
    a.e(f"v_add_u32 v{vCQ}, {QL}, v{vCQ}")
    a.e(f"v_lshlrev_b32 v{vCA}, 2, v{vM}")
    a.e(f"v_mad_u32_u24 v{vSD}, v{vH16}, 33, v{vCA}")
    a.e(f"s_mul_i32 s{sT}, s{sW}, 1056")
    a.e(f"s_add_u32 s{sT}, s{sT}, {SIDE}")
    a.e(f"v_add_u32 v{vSD}, s{sT}, v{vSD}")
    a.e(f"v_lshlrev_b32 v{t+2}, 6, v{t+2}")
    a.e(f"v_sub_u32 v{vCA}, v{vCA}, v{t+2}")
    a.e(f"v_add_u32 v{vCA}, {AGG - 2*QL}, v{vCA}")
    a.e(f"v_bfe_u32 v{t+1}, v{vL}, 2, 2")
    a.e(f"v_lshl_add_u32 v{vRP0}, v{t+1}, 7, v{vCQ}")
    a.e(f"v_lshl_add_u32 v{vRP0}, v{t}, 11, v{vRP0}")
    a.e(f"v_and_b32 v{t+1}, 8, v{vL}")
    a.e(f"v_lshl_add_u32 v{vRP0}, v{t+1}, 3, v{vRP0}")
    a.e(f"s_add_u32 s{sT}, s{sM0}, {256 - QL}")
    a.e(f"v_add_u32 v{vRP0}, s{sT}, v{vRP0}")
    a.e(f"v_xor_b32 v{vRP1}, 64, v{vRP0}")
    a.e(f"s_movk_i32 s{s256}, 256")
    a.e(f"v_mov_b32 v{vCHK}, 0")
    def round_consts(a):
        a.e(f"v_lshrrev_b32 v{t}, 3, v{vM}")
        a.e(f"v_and_b32 v{t+1}, 3, v{vL}")
        a.e(f"v_lshl_add_u32 v{vAE}, v{t}, 2, v{t+1}")
        a.e(f"v_lshlrev_b32 v{vAE}, 3, v{vAE}")
        a.e(f"v_bfe_u32 v{t+1}, v{vL}, 2, 2")
        a.e(f"v_lshlrev_b32 v{vAQ}, 4, v{t+1}")
        a.e(f"v_and_b32 v{vAP}, 24, v{vL}")
        a.e(f"v_and_b32 v{t}, 7, v{vL}")
        a.e(f"v_bfe_u32 v{t+1}, v{vL}, 4, 1")
        a.e(f"v_lshlrev_b32 v{t}, 4, v{t}")
        a.e(f"v_lshlrev_b32 v{t+1}, 6, v{t+1}")
        a.e(f"v_xor_b32 v{vC4+3}, v{t}, v{t+1}")
        for j in range(3):
            a.e(f"v_add_u32 v{vC4+j}, {1024*(3-j)}, v{vC4+3}")
        a.e(f"v_mov_b32 v{vT}, 1")
        a.e(f"v_mov_b32 v{vT+1}, {FLG}")
        a.e(f"v_lshlrev_b32 v{vT+2}, 2, v{vL}")
        a.e(f"s_mov_b32 s{sT}, 0x420000")
        a.e(f"s_brev_b32 s{sT+6}, 1")
        a.e(f"s_add_u32 s{sT+7}, s{sDone}, s{sLim}")
        a.e(f"v_cmp_ne_u32 s[{sX0+2}:{sX0+3}], 0, v{vW0}")
    round_consts(a)
    a.lines = sav
    for x in mix(c.lines, dm): a.e(x)
    stamp(a, 1, 252)
    pf(1)
    stamp(a, 4, 252)
    a.e(f"s_waitcnt vmcnt({11 + (1 if cfg.pfm else 0) + (NPF if cfg.pfpos <= 1 else 0)})")
    stamp(a, 5, 252)
    a.e(f"v_mov_b32_dpp v{vOC}, v{RC} quad_perm:[0,0,0,0] row_mask:0xf bank_mask:0xf")
    a.label("K2_COUNT")
    def groups(fn, lab, order=range(8), extra=(), pre=()):
        c = Asm(); sav = a.lines; a.lines = c.lines
        for i in order: fn(i)
        a.lines = sav
        for x in mix(c.lines, list(extra)): a.e(x)
    KK = lambda i: 16 * (i >> 2) + (i & 3)
    na = lambda i: f"v_lshlrev_b32_sdwa v{NA+i}, 2, v{RC+i} dst_sel:BYTE_0 dst_unused:UNUSED_PAD src0_sel:DWORD src1_sel:BYTE_0"
    a.e(na(1))
    a.e(f"v_min_u32 v{vREM}, s{sT+7}, v{vOC}")
    a.e(f"v_sub_u32 v{vREM}, v{vREM}, v{vW0}")
    a.e(f"v_cmp_lt_u32 s[{sX0+6}:{sX0+7}], s{sT+7}, v{vOC}")
    a.e(f"v_cmp_lt_i32 s[{sX0}:{sX0+1}], 0, v{vREM}")
    a.e(na(0))
    def f_cnt(i):
        a.e(f"v_cmpx_lt_i32 vcc, {KK(i)}, v{vREM}")
        if i < 7: a.e(na(i + 1))
        a.e(f"ds_add_rtn_u32 v{RK+i}, v{NA+i}, v{vT} offset:{CNT}")
    groups(f_cnt, "K2_G1", order=range(1, 8))
    a.e(f"s_and_b64 s[{sX0}:{sX0+1}], s[{sX0}:{sX0+1}], s[{sX0+2}:{sX0+3}]")
    a.e(f"s_mov_b64 exec, s[{sX0}:{sX0+1}]")
    a.e(f"ds_add_rtn_u32 v{RK}, v{NA}, v{vT} offset:{CNT}")
    a.e(f"s_mov_b64 exec, s[{sX0+6}:{sX0+7}]")
    a.e(f"ds_write_b32 v{vT+1}, v{vT}")
    a.e("s_mov_b64 exec, -1")
    def f_ent(i):
        e0 = EN + 2 * i
        a.e(f"v_lshrrev_b32 v{e0}, 20, v{RC+i}")
        a.e(f"v_add_lshl_u32 v{e0}, v{e0}, v{vEB}, 5")
    groups(f_ent, "K2_G2")
    pf(2)
    a.e("s_waitcnt lgkmcnt(0)")
    a.e("s_barrier")
    stamp(a, 6, 252)
    a.e(f"ds_read_b32 v{vT+6}, v{vT+2} offset:{CNT}")
    a.e(f"ds_read_b32 v{vT+5}, v{vT+1}")
    def f_ent2(i):
        e1 = EN + 1 + 2 * i
        a.e(f"v_bfe_u32 v{e1}, v{RC+i}, 6, 14")
        a.e(f"v_mad_u32_u24 v{e1}, v{NA+i}, s{sT}, v{e1}")
    groups(f_ent2, "K2_G5")
    a.e("s_waitcnt lgkmcnt(0)")
    a.e(f"v_add_u32 v{vT+3}, 1, v{vT+6}")
    a.e(f"v_lshrrev_b32 v{vT+3}, 1, v{vT+3}")
    a.e(f"v_mov_b32 v{vT+4}, v{vT+3}")
    a.e(f"v_readfirstlane_b32 s{sMore}, v{vT+5}")
    fl = []
    for i in range(8):
        fl.append(f"v_add_u32 v{RC+i}, -1, v{RK+i}")
        fl.append(f"v_and_or_b32 v{EN+2*i}, v{RC+i}, s{sT+6}, v{EN+2*i}")
    v = vT + 4
    dpp = [f"v_add_u32_dpp v{v}, v{v}, v{v} row_shr:{sh} row_mask:0xf bank_mask:0xf bound_ctrl:0" for sh in (1, 2, 4, 8)]
    dpp += [f"v_add_u32_dpp v{v}, v{v}, v{v} row_bcast:15 row_mask:0xa bank_mask:0xf", f"v_add_u32_dpp v{v}, v{v}, v{v} row_bcast:31 row_mask:0xc bank_mask:0xf"]
    for j in range(6):
        a.e(fl[2*j]); a.e(fl[2*j+1]); a.e(dpp[j])
    a.e(fl[12])
    a.e(f"v_readlane_b32 s{sT+5}, v{vT+4}, 63")
    a.e(f"v_sub_u32 v{vT+4}, v{vT+4}, v{vT+3}")
    a.e(f"v_lshlrev_b32 v{vT+4}, 4, v{vT+4}")
    def f_perm(i):
        a.e(f"ds_bpermute_b32 v{NA+i}, v{NA+i}, v{vT+4}")
        if i >= 8:
            a.e(f"v_add_u32 v{RC+i}, -1, v{RK+i}")
            a.e(f"v_and_or_b32 v{EN+2*i}, v{RC+i}, s{sT+6}, v{EN+2*i}")
    groups(f_perm, "K2_G3")
    for x in fl[13:]: a.e(x)
    pf(3)
    a.e(f"s_cmp_gt_u32 s{sT+5}, 1025")
    a.e("s_cbranch_scc1 K2_TOOBIG")
    a.e(f"s_add_u32 s{sT}, s{sT+5}, 7")
    a.e(f"s_lshr_b32 s{sT}, s{sT}, 3")
    if cfg.ratio:
        a.e(f"s_mul_i32 s{sT+1}, s{sT}, {cfg.ratio}")
        a.e(f"s_add_u32 s{sT+1}, s{sT+1}, 63")
        a.e(f"s_lshr_b32 s{sT+1}, s{sT+1}, 6")
    else:
        a.e(f"s_add_u32 s{sT+1}, s{sT}, {cfg.bias}")
        a.e(f"s_lshr_b32 s{sT+1}, s{sT+1}, 4")
        a.e(f"s_lshl_b32 s{sT+1}, s{sT+1}, 3")
    a.e(f"s_min_u32 s{sT+1}, s{sT+1}, s{sT}")
    a.e(f"s_sub_u32 s{sT+2}, s{sT}, s{sT+1}")
    a.e(f"s_and_b32 s{sT+3}, s{sW}, 3")
    a.e(f"s_mul_i32 s{sT+3}, s{sT+3}, s{sT}")
    a.e(f"s_cmp_lt_u32 s{sW}, 4")
    a.e(f"s_cselect_b32 s{sL}, s{sT+1}, s{sT+2}")
    a.e(f"s_cselect_b32 s{sT+4}, 0, s{sT+1}")
    a.e(f"s_add_u32 s{sT+3}, s{sT+3}, s{sT+4}")
    a.e(f"s_lshl_b32 s{sT+3}, s{sT+3}, 5")
    a.e(f"s_add_u32 s{sT+3}, s{sT+3}, {LIST}")
    a.e(f"s_lshl_b32 s{sT+4}, s{sL}, 4")
    a.e(f"s_add_u32 s{sNT}, s{sL}, 7")
    a.e(f"s_lshr_b32 s{sNT}, s{sNT}, 3")
    a.e(f"s_cmp_eq_u32 s{sW}, 7")
    a.e("s_cbranch_scc0 K2_NODUM")
    a.e(f"v_mov_b32 v{vT+8}, 0x7ffffff0\nv_mov_b32 v{vT+9}, 0xffff\nv_mov_b32 v{vT+10}, 0x7ffffff0\nv_mov_b32 v{vT+11}, 0xffff")
    a.e(f"v_lshl_add_u32 v{vT+7}, v{vT+6}, 3, v{vT+4}")
    a.e(f"v_and_b32 v{vT+6}, 1, v{vT+6}")
    a.e(f"v_cmp_eq_u32 vcc, 1, v{vT+6}")
    a.e("s_mov_b64 exec, vcc")
    a.e(f"ds_write_b64 v{vT+7}, v[{vT+8}:{vT+9}] offset:{LIST}")
    a.e("s_mov_b32 exec_lo, -1\ns_mov_b32 exec_hi, 0x7f")
    a.e(f"v_add_lshl_u32 v{vT+7}, v{vL}, s{sT+5}, 4")
    a.e(f"ds_write_b128 v{vT+7}, v[{vT+8}:{vT+11}] offset:{LIST}")
    a.e("s_mov_b64 exec, -1")
    a.label("K2_NODUM")
    a.e("s_waitcnt lgkmcnt(0)")
    a.e(f"v_lshl_add_u32 v{NA}, v{RK}, 3, v{NA}")
    def f_place(i):
        a.e(f"v_cmpx_lt_i32 vcc, {KK(i)}, v{vREM}")
        a.e(f"v_lshl_add_u32 v{NA+i}, v{RK+i}, 3, v{NA+i}")
        a.e(f"ds_write_b64 v{NA+i}, v[{EN+2*i}:{EN+1+2*i}] offset:{LIST}")
    groups(f_place, "K2_G4", order=range(1, 8))
    a.e(f"s_mov_b64 exec, s[{sX0}:{sX0+1}]")
    a.e(f"ds_write_b64 v{NA}, v[{EN}:{EN+1}] offset:{LIST}")
    a.e("s_mov_b64 exec, -1")
    a.e(f"v_add_u32 v{vAE}, s{sT+3}, v{vAE}")
    a.e(f"v_add3_u32 v{vAP}, v{vAP}, s{sT+3}, 4")
    a.e(f"v_add3_u32 v{vAQ}, v{vAQ}, s{sT+3}, 6")
    a.e("s_mov_b32 exec_lo, 0xf0f0f0f0\ns_mov_b32 exec_hi, 0xf0f0f0f0")
    a.e(f"v_add_u32 v{vAE}, s{sT+4}, v{vAE}")
    a.e("s_mov_b32 exec_lo, 0\ns_mov_b32 exec_hi, -1")
    a.e(f"v_add_u32 v{vAP}, s{sT+4}, v{vAP}")
    a.e(f"v_add_u32 v{vAQ}, s{sT+4}, v{vAQ}")
    a.e("s_mov_b64 exec, -1")
    a.e(f"s_sub_u32 s{sT+1}, s{sT+1}, 1")
    a.e(f"s_sub_u32 s{sT+2}, s{sT+2}, 1")
    a.e(f"s_min_u32 s{sT+1}, s{sT+1}, s{sT+2}")
    a.e(f"v_cmp_lt_u32 s[{sSusp}:{sSusp+1}], s{sT+1}, v{vT+3}")
    a.e(f"s_cmp_eq_u32 s{sNT}, 0")
    a.e(f"s_cselect_b32 s{sP+2}, 0, {PSIZE}")
    a.e(f"s_cselect_b32 s{sE+2}, 0, {ESIZE}")
    a.e(f"s_cmp_eq_u32 s{sFirst}, 0")
    a.e(f"s_waitcnt vmcnt({NPF}) lgkmcnt(0)")
    a.e("s_barrier")
    a.e("s_cbranch_scc1 K2_PRO2")
    stamp(a, 7, 252)
    adv = [f"v_add_u32 v{r}, s{s256}, v{r}" for r in (vAE, vAP, vAQ)]
    def early_e1():
        return addr_e() + [f"s_cmp_lt_u32 s{sNT}, 2", f"s_cselect_b32 s{sE+2}, 0, s{sE+2}", e_load(1)]
    def prologue(a, first):
        for s in list_reads_se() + list_reads_n(): a.e(s)
        if first:
            for st in range(8):
                if st == 0: a.e(f"ds_read_b128 v[{XF}:{XF+3}], v{vXA}")
                else:
                    r = vT + (st & 1)
                    a.e(f"v_xor_b32 v{r}, {32*st}, v{vXA}")
                    a.e(f"ds_read_b128 v[{XF+4*st}:{XF+4*st+3}], v{r}")
        a.e(f"s_waitcnt lgkmcnt({8 if first else 0})")
        for s in addr_se() + addr_q(0): a.e(s)
        for s in list_reads_se(1): a.e(s)
        for s in flags_from_vcc(sF0): a.e(s)
        d0 = dma_ops(0, "alt"); d1 = dma_ops(1)
        fr = Asm()
        if first:
            a.e(f"v_add_u32 v{vT+3}, {STG + 4096}, v{vWA}")
            wfrag_read(fr, W2F, vT+3, 0, 8192)
            wfrag_read(fr, WU1F, vWA, WU1L)
            for c in range(4):
                fr.e(f"ds_read_b128 v[{W3+4*c}:{W3+4*c+3}], v{vW3A} offset:{1024*c}")
        n4 = len(fr.lines) // 4
        if cfg.e0f: a.e(e_load(0))
        for s in d0[0] + fr.lines[:n4] + d0[1] + fr.lines[n4:2*n4]: a.e(s)
        if not cfg.e0f: a.e(e_load(0))
        for s in fr.lines[2*n4:3*n4]: a.e(s)
        a.e(f"v_cmp_ne_u32 vcc, v{vLA}, v{vCL}")
        a.e(f"v_mov_b32_dpp v{vFA}, v{vQA} row_newbcast:0 row_mask:0xf bank_mask:0xf")
        a.e(f"v_mov_b32 v{vLA0}, v{vLA}")
        for s in d0[2] + fr.lines[3*n4:]: a.e(s)
        a.e(f"s_cmp_eq_u32 s{sNT}, 0")
        a.e(f"s_cselect_b32 s{sDm}, -1, vcc_lo")
        a.e(f"v_lshl_add_u32 v{vFA}, v{vFA}, 1, v{vCA}")
        for s in d0[3]: a.e(s)
        if first:
            a.e(f"s_lshr_b32 s{sT+1}, s{sW}, 2")
            a.e(f"s_lshl_b32 s{sT+1}, s{sT+1}, 5")
            a.e(f"v_add_u32 v{vT+1}, s{sT+1}, v{vM}")
            a.e(f"v_mul_u32_u24 v{vT+2}, 264, v{vT+1}")
            a.e(f"v_lshl_add_u32 v{vT+2}, v{vH16}, 1, v{vT+2}")
            a.e(f"s_and_b32 s{sT+1}, s{sW}, 3")
            a.e(f"s_lshl_b32 s{sT+1}, s{sT+1}, 6")
            a.e(f"v_add_u32 v{vT+2}, s{sT+1}, v{vT+2}")
            a.e(f"v_cmp_gt_u32 s[{sX0}:{sX0+1}], 49, v{vT+1}")
            a.e(f"v_lshlrev_b32 v{vT}, 4, v0")
            a.e(f"v_mov_b32 v{vT+8}, 0\nv_mov_b32 v{vT+9}, 0\nv_mov_b32 v{vT+10}, 0\nv_mov_b32 v{vT+11}, 0")
            a.e(f"s_movk_i32 s{sT+1}, {49*528//16 - 1536}")
            a.e(f"v_cmp_gt_u32 s[{sX0+2}:{sX0+3}], s{sT+1}, v0")
            a.e(f"s_mov_b32 s{sT}, {LOG2E_NEG}")
            a.e(f"s_mov_b32 s{sT+1}, {LOG2E_NEG}")
            stamp(a, 44, 252)
            a.e("s_waitcnt lgkmcnt(0)")
            g = Asm(); gemm8(g, QACC, W2F, XF)
            for x in g.lines: a.e(x)
            g = Asm(); gemm8(g, ACX, WU1F, XF)
            q = [f"v_mul_f32 v{QACC+i}, s{sT}, v{QACC+i}" for i in range(16)] + [f"v_cvt_pk_bf16_f32 v{QACC+i}, v{QACC+2*i}, v{QACC+1+2*i}" for i in range(8)]
            a.e(g.lines[0])
            if cfg.e1e:
                for x in early_e1(): a.e(x)
                a.e("s_nop 5")
            else:
                a.e("s_nop 9")
            for j in range(3):
                a.e(g.lines[1+j])
                for x in q[j*8:j*8+8]: a.e(x)
            a.e(f"s_mov_b64 exec, s[{sX0}:{sX0+1}]")
            for gg in range(4):
                a.e(f"ds_write_b64 v{vT+2}, v[{QACC+2*gg}:{QACC+1+2*gg}] offset:{QL + 8*gg}")
            a.e("s_mov_b64 exec, -1")
            a.e("s_barrier")
            for j in range(3):
                a.e(f"ds_write_b128 v{vT}, v[{vT+8}:{vT+11}] offset:{AGG + j*8192}")
            a.e(g.lines[4])
            a.e(f"s_mov_b64 exec, s[{sX0+2}:{sX0+3}]")
            a.e(f"ds_write_b128 v{vT}, v[{vT+8}:{vT+11}] offset:{AGG + 3*8192}")
            a.e("s_mov_b64 exec, -1")
            for s in d1[0]: a.e(s)
            a.e(g.lines[5])
            a.e("s_waitcnt lgkmcnt(0)")
            a.e("s_barrier")
            stamp(a, 45, 252)
            for j in range(1, 4):
                for s in d1[j]: a.e(s)
                if j < 3: a.e(g.lines[5+j])
        else:
            if cfg.e1e:
                a.e("s_waitcnt lgkmcnt(0)")
                for x in early_e1(): a.e(x)
            for s in sum(d1, []): a.e(s)
        a.e(f"s_cmp_lt_u32 s{sNT}, 2")
        a.e(f"s_cselect_b32 s{sP+2}, 0, s{sP+2}")
        a.e(f"s_cselect_b32 s{sE+2}, 0, s{sE+2}")
        if not first: a.e("s_waitcnt lgkmcnt(0)")
        for s in addr_se(): a.e(s)
        for s in list_reads_se(2) + list_reads_n(1): a.e(s)
        for s in flags_from_vcc(sF1): a.e(s)
    prologue(a, True)
    rare.label("K2_PRO2")
    rare.e("s_waitcnt vmcnt(0)")
    prologue(rare, False)
    rare.e("s_branch K2_NOX")
    stamp(a, 42, 252)
    for i in range(8):
        a.e(f"v_pk_mul_f32 {p2(ACX+2*i)}, {p2(ACX+2*i)}, s[{sT}:{sT+1}]")
    a.label("K2_NOX")
    stamp(a, 43, 252)
    a.e(f"s_cmp_eq_u32 s{sNT}, 0")
    a.e("s_cbranch_scc1 K2_NOTILES")
    a.e(f"ds_read_b128 v[{AQ}:{AQ+3}], v{vLA0}")
    for s in qfrag_reads(QY, 0, 0) + qfrag_reads(QX, 1, 0): a.e(s)
    if cfg.t1pos == 1:
        if not cfg.e1e: a.e(e_load(1))
        dma_half(a, 0)
    for i in range(4): a.e(f"v_mov_b32 v{AP+i}, 0")
    for i in range(4):
        shf = 16 * (i >> 1) + 4 * (i & 1)
        a.e(f"s_mov_b32 exec_lo, {hex(0xf << shf)}\ns_mov_b32 exec_hi, {hex(0xf << (shf + 8))}")
        a.e(f"v_mov_b32 v{AP+i}, 0x3f80")
    a.e("s_mov_b64 exec, -1")
    a.e(f"v_and_b32 v{IDX}, 3, v{vL}")
    a.e(f"v_mul_u32_u24 v{IDX}, 0x5555, v{IDX}")
    a.e(f"s_add_u32 s{sMA}, s{sM0}, {4096 - 128 + 256}")
    a.e(f"s_add_u32 s{sMB}, s{sM0}, 256")
    a.e(f"s_and_b32 s{sT}, s{sL}, 6")
    a.e(f"s_and_b32 s{sT+1}, s{sL}, 1")
    a.e(f"s_lshl1_add_u32 s{sT}, s{sT}, s{sT+1}")
    a.e(f"s_lshl_b32 s{sT}, s{sT}, 1")
    a.e(f"s_cselect_b32 s{sT+1}, 1, 0")
    a.e(f"s_lshl_b32 s{sEX+1}, s{sT+1}, s{sT}")
    a.e(f"s_lshl_b32 s{sEX}, s{sEX+1}, 1")
    a.e(f"s_cmp_eq_u32 s{sNT}, 1")
    a.e(f"s_cselect_b64 s[{sT}:{sT+1}], s[{sEX}:{sEX+1}], 0")
    a.e(f"s_or_b64 s[{sF0}:{sF0+1}], s[{sF0}:{sF0+1}], s[{sT}:{sT+1}]")
    for c in range(4):
        a.e(f"v_mov_b32 v{NN+2*c}, 0\nv_mov_b32 v{NN+2*c+1}, 0\nv_mov_b32 v{DD+2*c}, 1.0\nv_mov_b32 v{DD+2*c+1}, 1.0")
    a.e(f"v_mov_b32 v{vCUR}, v{vSD}\nv_mov_b32 v{vCUR+1}, v{vSD}")
    for c in range(4): a.e(f"v_mov_b32 v{ACC+c}, 0")
    a.e(f"s_sub_u32 s{sT}, s{sW4k}, s{sM0}")
    a.e(f"s_add_u32 s{sT}, s{sT}, {WU2 - 256}")
    a.e(f"v_add_u32 v{vT}, s{sT}, v{vRP0}")
    a.e(f"v_add_u32 v{vT+1}, s{sT}, v{vRP1}")
    stamp(a, 46, 252)
    a.e(f"s_waitcnt vmcnt({4 + cfg.e1e})" if cfg.t1pos == 2 else "s_waitcnt vmcnt(9)")
    stamp(a, 47, 252)
    for s in pfrag_reads(PY, 0, vT): a.e(s)
    mf = mfmas(0, PY, QY, 0)
    a.e("s_waitcnt lgkmcnt(8)")
    for s in mf[:4]: a.e(s)
    a.e("s_waitcnt lgkmcnt(0)")
    for s in mf[4:]: a.e(s)
    if cfg.t1pos == 2:
        if not cfg.e1e: a.e(e_load(1))
        dma_half(a, 0)
    stamp(a, 8, 252)
    if cfg.dbg:
        a.e("s_memtime s[90:91]\ns_waitcnt lgkmcnt(0)\nv_writelane_b32 v252, s90, 14")
    a.e(f"s_sub_u32 s{sCnt}, s{sNT}, 1")
    a.e(f"s_waitcnt vmcnt({5 - cfg.e1e})")
    stamp(a, 48, 252)
    for s in pfrag_reads(PX, 1): a.e(s)
    def lstamp(x):
        if not cfg.lst: return
        a.e("s_memrealtime s[90:91]")
        a.e(f"s_lshl_b32 s92, s{sCnt}, 1")
        a.e(f"s_add_u32 s92, s92, {x+2}")
        a.e("s_mov_b32 m0, s92")
        a.e("s_waitcnt lgkmcnt(0)")
        a.e("v_writelane_b32 v252, s90, m0")
    def iteration(par):
        exA = {
            0: addr_q(1 - par),
            1: qfrag_reads(QY, 0, 1 - par),
            2: [f"s_mov_b32 m0, s{sMA}", "s_waitcnt lgkmcnt(4)"] + dma_ld(1)[:2],
            3: dma_ld(1)[2:],
            4: [f"ds_read_b128 v[{AQ}:{AQ+3}], v{vLA}",
                f"s_cmp_lt_u32 s{sCnt}, 2", f"s_cbranch_scc1 WU2_{par}", f"WU2R_{par}:"],
            7: ["s_waitcnt vmcnt(4) lgkmcnt(0)"] + pfrag_reads(PY, 0),
        }
        half_step(a, ool, 0, par, exA, f"A{par}")
        ool.label(f"WU2_{par}")
        ool.e(f"s_mov_b32 s{sP+2}, 0")
        ool.e(f"s_mov_b32 s{sE+2}, 0")
        sFn = (sF1, sF0)[par]
        ool.e(f"s_or_b64 s[{sFn}:{sFn+1}], s[{sFn}:{sFn+1}], s[{sEX}:{sEX+1}]")
        ool.e(f"s_cmp_lg_u32 s{sCnt}, 0")
        ool.e(f"s_cbranch_scc1 WU2R_{par}")
        w_dma(ool, sWu, vWC, sW4k, 32768, WU2, sT)
        ool.e(f"s_branch WU2R_{par}")
        mf = mfmas(2, PX, QX, par)
        ool.label(f"EXA{par}_1")
        ool.e("s_waitcnt lgkmcnt(0)")
        ool.e(mf[2])
        ool.label(f"EXA{par}_2")
        ool.e(mf[3])
        ool.label(f"EXA{par}_3")
        ool.e(mf[4])
        w_dma(ool, sWu, vWC, sW4k, 32768, WU2, sT)
        ool.label(f"EXA{par}_4")
        ool.e(mf[5])
        ool.e("s_nop 7")
        ool.label(f"EXA{par}_5")
        ool.e(f"s_branch R_A{par}_7")
        exB = {
            0: qfrag_reads(QX, 1, 1 - par),
            1: addr_se(),
            2: [f"s_mov_b32 m0, s{sMB}", "s_waitcnt lgkmcnt(4)"] + dma_ld(0)[:2],
            3: dma_ld(0)[2:] + [e_load(par)],
            4: list_reads_se(3 + par) + list_reads_n(2 + par),
            5: adv if par else [],
            7: ["s_waitcnt vmcnt(5) lgkmcnt(0)"] + pfrag_reads(PX, 1),
        }
        lstamp(17)
        half_step(a, ool, 1, par, exB, f"B{par}")
        lstamp(16)
        for s in flags_from_vcc((sF0, sF1)[par]): a.e(s)
        a.e(f"s_sub_u32 s{sCnt}, s{sCnt}, 1")
    a.label("K2_LOOP")
    iteration(0)
    a.e("s_cbranch_scc1 K2_LEND")
    iteration(1)
    a.e("s_cbranch_scc0 K2_LOOP")
    a.label("K2_LEND")
    stamp(a, 9, 252)
    if cfg.dbg:
        a.e("s_memtime s[90:91]\ns_waitcnt lgkmcnt(0)\nv_writelane_b32 v252, s90, 15")
    flush_code(a, 0, 0)
    a.e(f"ds_write2_b32 v{vCUR}, v{ACC}, v{ACC+1} offset1:32")
    flush_code(a, 2, 1, wait=False)
    a.e(f"ds_write2_b32 v{vCUR+1}, v{ACC+2}, v{ACC+3} offset0:64 offset1:96")
    a.label("K2_AFTER")
    a.e(f"s_mov_b32 s{sFirst}, 0")
    a.e(f"s_bitcmp0_b32 s{sDm}, 0")
    a.e(f"s_cselect_b32 s{sX0+2}, -1, 0")
    a.e(f"s_bitcmp0_b32 s{sDm}, 4")
    a.e(f"s_cselect_b32 s{sX0+3}, -1, 0")
    a.e(f"s_lshr_b32 s{sT+1}, s{sW}, 2")
    a.e(f"s_lshl_b32 s{sT+2}, s{sT+1}, 5")
    a.e(f"v_add_u32 v{vT+8}, s{sT+2}, v{vM}")
    a.e(f"v_mul_u32_u24 v{vT+9}, 528, v{vT+8}")
    a.e(f"v_cmp_gt_u32 s[{sX0}:{sX0+1}], 49, v{vT+8}")
    a.e(f"s_and_b32 s{sT+2}, s{sW}, 3")
    a.e(f"s_lshl_b32 s{sT+2}, s{sT+2}, 7")
    a.e(f"v_lshl_add_u32 v{vT+5}, v{vH16}, 1, s{sT+2}")
    a.e(f"v_add_u32 v{vT+6}, v{vT+9}, v{vT+5}")
    a.e(f"v_add_u32 v{vT+4}, {WU2}, v{vWA}")
    a.e(f"s_add_u32 s{sT+2}, s{sM0}, {256 + 4096}")
    a.e(f"v_lshl_add_u32 v{vT+2}, v{vL}, 4, s{sT+2}")
    a.e(f"s_lshl_b32 s{sT+1}, s{sT+1}, 15")
    a.e(f"s_add_u32 s{sT+1}, s{sT+1}, {STG + 4096}")
    a.e(f"v_lshl_add_u32 v{vT+3}, v{vL}, 4, s{sT+1}")
    a.e(f"s_or_b32 s{sT}, s{sSusp}, s{sSusp+1}")
    a.e(f"s_or_b32 s{sT}, s{sT}, s{sMore}")
    a.e("s_cbranch_scc1 K2_SLOWM")
    a.e(f"s_and_b32 exec_lo, s{sX0+2}, 1")
    a.e(f"s_and_b32 exec_hi, s{sX0+3}, 1")
    a.e(f"ds_write_b32 v{vFA}, v{vSD} offset:512")
    a.label("K2_MERGED")
    a.e(f"s_mov_b64 exec, s[{sX0}:{sX0+1}]")
    a.e("s_waitcnt vmcnt(0) lgkmcnt(0)")
    a.e("s_barrier")
    stamp(a, 49, 252)
    a.e(f"s_cmp_lg_u32 s{sMore}, 0")
    a.e("s_cbranch_scc1 K2_MORE")
    wf = Asm(); wfrag_read(wf, 128, vT+4)
    a.e(f"ds_read_b32 v{vT+7}, v{vT+9} offset:{AGG + 512}")
    for j, o in enumerate((0, 16, 64, 80)):
        a.e(f"ds_read_b128 v[{64+4*j}:{67+4*j}], v{vT+6} offset:{AGG + o}")
    a.e("s_waitcnt lgkmcnt(4)")
    a.e(f"v_cmpx_ne_u32 vcc, 0, v{vT+7}")
    a.e(f"v_add_u32 v{vT+7}, v{vT+7}, v{vT+5}")
    for j, o in enumerate((0, 16, 64, 80)):
        a.e(f"ds_read_b128 v[{80+4*j}:{83+4*j}], v{vT+7} offset:{o}")
    a.e("s_mov_b64 exec, -1")
    for x in wf.lines[:8]: a.e(x)
    a.e("s_mov_b64 exec, vcc")
    for j in range(4):
        a.e(f"s_waitcnt lgkmcnt({11-j})")
        for i in range(2):
            r = 64 + 4*j + 2*i
            a.e(f"v_pk_add_f32 {p2(r)}, {p2(r)}, {p2(r+16)}")
    a.e("s_mov_b64 exec, -1")
    for j in range(2):
        for i in range(4):
            a.e(f"v_cvt_pk_bf16_f32 v{96+4*j+i}, v{64+8*j+2*i}, v{65+8*j+2*i}")
        a.e(f"ds_write_b128 v{vT+2}, v[{96+4*j}:{99+4*j}] offset:{1024*j}")
    for x in wf.lines[8:]: a.e(x)
    a.e("s_waitcnt lgkmcnt(8)")
    a.e("s_barrier")
    stamp(a, 10, 252)
    for st in range(8):
        a.e(f"ds_read_b128 v[{64+4*st}:{67+4*st}], v{vT+3} offset:{(st>>1)*8192 + (st&1)*1024}")
    if cfg.owt:
        a.e(f"v_mul_u32_u24 v{vT+10}, 80, v{vM}")
        a.e(f"v_lshl_add_u32 v{vT+10}, v{vH16}, 1, v{vT+10}")
        a.e(f"s_add_u32 s{sT+1}, s{sM0}, 256")
        a.e(f"v_add_u32 v{vT+10}, s{sT+1}, v{vT+10}")
        a.e(f"v_lshrrev_b32 v{vT+12}, 2, v{vL}")
        a.e(f"v_and_b32 v{vT+14}, 3, v{vL}")
        a.e(f"v_lshlrev_b32 v{vT+14}, 4, v{vT+14}")
        a.e(f"v_lshl_add_u32 v{vT+13}, v{vT+12}, 8, v{vT+14}")
        a.e(f"v_mul_u32_u24 v{vT+12}, 80, v{vT+12}")
        a.e(f"v_add3_u32 v{vT+12}, v{vT+12}, v{vT+14}, s{sT+1}")
        a.e(f"s_lshr_b32 s{sT+3}, s{sW}, 2")
        a.e(f"s_lshl_b32 s{sT+3}, s{sT+3}, 13")
        a.e(f"s_and_b32 s{sT+4}, s{sW}, 3")
        a.e(f"s_lshl_b32 s{sT+4}, s{sT+4}, 6")
        a.e(f"s_add_u32 s{sT+3}, s{sT+3}, s{sT+4}")
        a.e(f"v_add_u32 v{vT+13}, s{sT+3}, v{vT+13}")
    else:
        a.e(f"v_mul_u32_u24 v{vT+10}, 272, v{vT+8}")
        a.e(f"v_lshl_add_u32 v{vT+10}, v{vH16}, 1, v{vT+10}")
        a.e(f"s_and_b32 s{sT+1}, s{sW}, 3")
        a.e(f"s_lshl_b32 s{sT+1}, s{sT+1}, 6")
        a.e(f"s_add_u32 s{sT+1}, s{sT+1}, {STG}")
        a.e(f"v_add_u32 v{vT+10}, s{sT+1}, v{vT+10}")
        a.e(f"v_lshrrev_b32 v{vT+12}, 4, v0")
        a.e(f"v_lshlrev_b32 v{vT+13}, 4, v0")
        a.e(f"v_lshl_add_u32 v{vT+12}, v{vT+12}, 4, v{vT+13}")
        a.e(f"v_add_u32 v{vT+12}, {STG}, v{vT+12}")
    for st in range(8):
        a.e(f"s_waitcnt lgkmcnt({7-st})")
        c = f"v[{ACX}:{ACX+15}]" if st == 0 else "v[160:175]"
        a.e(f"v_mfma_f32_32x32x16_bf16 v[160:175], v[{128+4*st}:{131+4*st}], v[{64+4*st}:{67+4*st}], {c}")
    a.e(f"s_mov_b32 s{sT+1}, {LOG2E_NEG}")
    a.e(f"s_mov_b32 s{sT}, {LOG2E_NEG}")
    stamp(a, 50, 252)
    a.e(f"s_mov_b32 s{sT+2}, 0x7b800000")
    a.e(f"v_cmp_le_f32 s[{sX0+2}:{sX0+3}], s{sT+2}, v{vCHK}")
    a.e(f"v_mov_b32 v{vT+11}, 0x207")
    a.e("s_nop 6")
    a.e(f"v_cmp_class_f32 vcc, v160, v{vT+11}")
    for hf in range(2):
        R = range(8 * hf, 8 * hf + 8)
        for i in R: a.e(f"v_exp_f32 v{64+i}, v{160+i}")
        if hf == 0:
            a.e(f"s_and_b64 vcc, vcc, s[{sX0}:{sX0+1}]")
            a.e(f"s_or_b64 s[{sX0+2}:{sX0+3}], vcc, s[{sX0+2}:{sX0+3}]")
        if hf: a.e("s_nop 0")
        for i in R[::2]: a.e(f"v_pk_fma_f32 {p2(64+i)}, {p2(64+i)}, s[{sT}:{sT+1}], s[{sT}:{sT+1}]")
        for i in R: a.e(f"v_rcp_f32 v{64+i}, v{64+i}")
        for i in R[::2]: a.e(f"v_pk_mul_f32 {p2(64+i)}, {p2(160+i)}, {p2(64+i)}")
        for i in range(4 * hf, 4 * hf + 4): a.e(f"v_cvt_pk_bf16_f32 v{80+i}, v{64+2*i}, v{65+2*i}")
        o = " offset:16" if hf else ""
        a.e(f"ds_write_b128 v{vT+10}, v[{80+4*hf}:{83+4*hf}]{o}")
    if cfg.owt:
        a.e(f"ds_read_b128 v[88:91], v{vT+12}")
        a.e(f"ds_read_b128 v[92:95], v{vT+12} offset:{16*80}")
        a.e(f"v_mov_b32 v{vT}, 1")
        a.e(f"v_mov_b32 v{vT+1}, {FLG+4}")
        a.e(f"s_movk_i32 s{sT+1}, 4096")
        a.e("s_waitcnt lgkmcnt(1)")
        a.e(f"buffer_store_dwordx4 v[88:91], v{vT+13}, s[{sO}:{sO+3}], 0 offen {cfg.o_pol}")
        a.e("s_waitcnt lgkmcnt(0)")
        a.e(f"buffer_store_dwordx4 v[92:95], v{vT+13}, s[{sO}:{sO+3}], s{sT+1} offen {cfg.o_pol}")
        a.e(f"s_mov_b64 exec, s[{sX0+2}:{sX0+3}]")
        a.e(f"ds_write_b32 v{vT+1}, v{vT}")
        a.e("s_mov_b64 exec, -1")
        a.e("s_waitcnt lgkmcnt(0)")
        a.e("s_barrier")
        a.e(f"ds_read_b32 v{vT}, v{vT+1}")
    else:
        a.e(f"v_mov_b32 v{vT}, 1")
        a.e(f"v_mov_b32 v{vT+1}, {FLG+4}")
        a.e(f"s_mov_b64 exec, s[{sX0+2}:{sX0+3}]")
        a.e(f"ds_write_b32 v{vT+1}, v{vT}")
        a.e("s_mov_b64 exec, -1")
        a.e(f"s_movk_i32 s{sT+1}, 8192")
        a.e("s_waitcnt lgkmcnt(0)")
        stamp(a, 51, 252)
        a.e("s_barrier")
        stamp(a, 52, 252)
        a.e(f"ds_read_b128 v[88:91], v{vT+12}")
        a.e(f"ds_read_b128 v[92:95], v{vT+12} offset:{32*272}")
        a.e(f"ds_read_b32 v{vT}, v{vT+1}")
        a.e("s_waitcnt lgkmcnt(2)")
        a.e(f"buffer_store_dwordx4 v[88:91], v{vT+13}, s[{sO}:{sO+3}], 0 offen {cfg.o_pol}")
        a.e("s_waitcnt lgkmcnt(1)")
        a.e(f"buffer_store_dwordx4 v[92:95], v{vT+13}, s[{sO}:{sO+3}], s{sT+1} offen {cfg.o_pol}")
    stamp(a, 11, 252)
    if cfg.dbg:
        a.e("s_waitcnt vmcnt(0)")
        a.e(f"v_writelane_b32 v252, s{sNT}, 13")
    stamp(a, 12, 252)
    stamp_out(a, 252, 253, 1)
    if cfg.x: a.e("s_branch K2_END")
    a.e("s_waitcnt lgkmcnt(0)")
    a.e(f"v_readfirstlane_b32 s{sT}, v{vT}")
    a.e(f"s_cmp_lg_u32 s{sSafe}, 0")
    a.e("s_cbranch_scc1 K2_END")
    a.e(f"s_cmp_lg_u32 s{sT}, 0")
    a.e("s_cbranch_scc1 K2_SAFE")
    a.label("K2_END")
    a.e("s_endpgm")
    a.lines += ool.lines
    a.label("K2_CODE_END")
    a.lines += rare.lines
    a.label("K2_NOTILES")
    a.e("s_waitcnt vmcnt(0)")
    w_dma(a, sWu, vWC, sW4k, 32768, WU2, sT)
    a.e("s_branch K2_AFTER")
    a.label("K2_SLOWM")
    for c in range(4):
        a.e(f"ds_read_b32 v{vT+16+c}, v{vSD} offset:{128*c}")
    a.e("s_waitcnt vmcnt(0) lgkmcnt(0)")
    a.e("s_barrier")
    a.e(f"s_mov_b64 exec, s[{sX0+2}:{sX0+3}]")
    for c in range(4):
        a.e(f"ds_add_f32 v{vFA}, v{vT+16+c} offset:{128*c}")
    a.e("s_branch K2_MERGED")
    a.label("K2_SAFE")
    a.e("s_waitcnt vmcnt(0)")
    a.e("s_barrier")
    a.e(f"s_mov_b32 s{sSafe}, -1")
    a.e(f"s_mov_b32 s{sDone}, 0")
    reset_round(a, True)
    a.e("s_branch K2_ROUND")
    a.label("K2_MORE")
    a.e("s_mov_b64 exec, -1")
    a.e(f"s_add_u32 s{sDone}, s{sDone}, s{sLim}")
    a.e("s_branch K2_RESET")
    a.label("K2_TOOBIG")
    a.e("s_barrier")
    a.e(f"s_mov_b32 s{sLim}, 16")
    a.label("K2_RESET")
    reset_round(a, False)
    a.label("K2_ROUND")
    srd(a, sR, S_WS, off_c=cfg.wsoff + WS_S01, size=WS_OFFT + 262144 - WS_S01)
    a.e(f"v_and_b32 v{t}, 0x1fc, v0")
    a.e(f"s_lshl_b32 s{sT}, s{sBin}, 10")
    a.e(f"s_add_u32 s{sT}, s{sT}, {WS_OFFT - WS_S01}")
    a.e(f"v_mov_b32 v{vROFF}, 0")
    a.e(f"v_cmp_lt_u32 vcc, 32, v{vOC}")
    a.e("s_mov_b64 exec, vcc")
    a.e(f"buffer_load_dword v{vROFF}, v{t}, s[{sR}:{sR+3}], s{sT} offen")
    a.e("s_mov_b64 exec, -1")
    a.e(f"v_and_b32 v{vW0}, 3, v0")
    a.e(f"v_lshlrev_b32 v{vW0}, 2, v{vW0}")
    a.e(f"v_add_u32 v{vW0}, s{sDone}, v{vW0}")
    a.e(f"s_lshl_b32 s{sT}, s{sBin}, 7")
    a.e(f"v_lshl_add_u32 v{t}, v{t}, 13, s{sT}")
    a.e(f"s_mov_b32 s{sT}, {WS_REC - WS_S01 - 4}")
    a.e("s_waitcnt vmcnt(0)")
    a.e(f"v_add_u32 v{t+2}, v{vEB}, v{vROFF}")
    a.e(f"v_lshl_add_u32 v{t+2}, v{t+2}, 2, s{sT}")
    for g in range(2):
        a.e(f"v_add_u32 v{t+3}, {16*g}, v{vW0}")
        a.e(f"v_cmp_gt_u32 vcc, 32, v{t+3}")
        a.e("s_nop 1")
        a.e(f"v_cndmask_b32 v{t+4+g}, v{t+2}, v{t}, vcc")
        a.e(f"v_lshl_add_u32 v{t+4+g}, v{t+3}, 2, v{t+4+g}")
        a.e(f"buffer_load_dwordx4 v[{RC+4*g}:{RC+4*g+3}], v{t+4+g}, s[{sR}:{sR+3}], 0 offen")
    round_consts(a)
    a.e("s_waitcnt vmcnt(0) lgkmcnt(0)")
    a.e("s_barrier")
    a.e("s_branch K2_COUNT")

HEADER = open("cdna_kernels/" + NAME + ".s.ref").read().split("; Override launch")[0]
def generate():
    a = Asm()
    gen_k1(a)
    gen_k2(a)
    if cfg.rep:
        k, wg, idx = [int(v) for v in cfg.rep.split(",")]
        kernel_head(a, "rep_kernel")
        a.e("s_load_dwordx2 s[20:21], s[0:1], 64")
        a.e("s_cmp_lg_u32 s2, 0")
        a.e("s_cbranch_scc1 REP_END")
        a.e("s_waitcnt lgkmcnt(0)")
        srd(a, 8, S_WS, off_c=WS_DBG, size=0x200000)
        op = "max" if wg == 1 else "min"
        a.e("v_lshlrev_b32 v1, 11, v0")
        a.e(f"v_add_u32 v2, {k*0x100000 + idx*4}, v1")
        for j in range(4):
            a.e(f"s_mov_b32 s12, {j*64*2048}")
            a.e(f"buffer_load_dword v{4+j}, v1, s[8:11], s12 offen")
            a.e(f"buffer_load_dword v{8+j}, v2, s[8:11], s12 offen")
        a.e("s_waitcnt vmcnt(0)")
        for j in range(1, 4):
            a.e(f"v_min_u32 v4, v4, v{4+j}")
            a.e(f"v_{op}_u32 v8, v8, v{8+j}")
        a.e("s_nop 1")
        a.e("v_readlane_b32 s12, v4, 0")
        a.e("v_readlane_b32 s13, v8, 0")
        for l in range(1, 63):
            a.e(f"v_readlane_b32 s14, v4, {l}")
            a.e(f"v_readlane_b32 s15, v8, {l}")
            a.e("s_min_u32 s12, s12, s14")
            a.e(f"s_{op}_u32 s13, s13, s15")
        a.e("s_sub_u32 s12, s13, s12")
        a.e("s_min_u32 s12, s12, 8000")
        a.e("s_lshl_b32 s12, s12, 2")
        a.e("s_memrealtime s[14:15]")
        a.e("s_waitcnt lgkmcnt(0)")
        a.label("REP_L")
        a.e("s_memrealtime s[16:17]")
        a.e("s_waitcnt lgkmcnt(0)")
        a.e("s_sub_u32 s13, s16, s14")
        a.e("s_cmp_lt_u32 s13, s12")
        a.e("s_cbranch_scc1 REP_L")
        a.label("REP_END")
        a.e("s_endpgm")
    if cfg.align:
        a.lines, bad = align_pass(a.lines, "K2_LOOP" if cfg.align < 3 else "prep_kernel", "K2_CODE_END", cfg.align == 2)
        print("misaligned left:", bad, file=sys.stderr)
    body = a.text()
    probs = check_text(body)
    for p in probs: print("HAZARD", p, file=sys.stderr)
    k1lds = K1_LDS_B
    out = HEADER
    out += f"; @launch kernel=prep_kernel grid=(256,1,1) block=(512,1,1) lds={k1lds}\n"
    out += f"; @launch kernel={NAME}_kernel grid=(256,1,1) block=(512,1,1) lds={K2_LDS}\n"
    if cfg.rep: out += "; @launch kernel=rep_kernel grid=(1,1,1) block=(64,1,1) lds=0\n"
    out += '.amdgcn_target "amdgcn-amd-amdhsa--gfx950"\n' + body
    out += '.section .rodata,"a"\n.p2align 6\n' + kernel_desc("prep_kernel", 200 if cfg.dbg else 160, 96 if cfg.dbg else 80) + ".p2align 6\n" + kernel_desc(NAME + "_kernel", 256, 96)
    if cfg.rep: out += ".p2align 6\n" + kernel_desc("rep_kernel", 16, 32)
    return out

if __name__ == "__main__":
    outp = sys.argv[1]
    for kv in sys.argv[2:]:
        k, v = kv.split("=", 1)
        cur = getattr(cfg, k)
        setattr(cfg, k, (v not in ("0", "False")) if isinstance(cur, bool) else int(v, 0) if isinstance(cur, int) else v)
    open(outp, "w").write(generate())
```

```python
import sys
from asmlib import *

NAME = "gather_scatter__mpnn_edge_mlp__graph"
class Cfg:
    modeA = False
    wsoff = 0
    st_pol = "sc1"
    ld_pol = "nt"
    e_pol = ""
    prefetchP = 1
    pf0 = False
    early = True
    o_pol = "sc1"
    ot_pol = ""
    touch = 1
    etouch = 0
    epos = 1
    align = 1
    prio = 2
    bias = 14
    k1d = 0
    tlb = 0
    cw = 0
    g_pol = ''
    s_pol = ''
    owt = 1
    k1w = 0
    e1e = 0
    e0f = 0
    few = False
    spf = 0
    ratio = 0
    k1o = 0
    p_pol = 'sc1'
    pfm = 0
    pfmpos = 5
    pfe = 0
    et_pol = ''
    t1pos = 1
    pfn = 320
    pfpos = 1
    nw = '4,4,4,4'
    x_pol = ""
    dbg = False
    lst = False
    x = ""
    rep = ""
cfg = Cfg()

NB = 250; NPB = 50; CH = 1600
WS_P = 4096; WS_S01 = 0x320000; WS_REC = 0x900000; WS_OFFT = 0xA90000; WS_W3F = 0xAD0000; WS_WF = 0xAE0000
LOG2E_NEG = "0xbfb8aa3b"
LN2_NEG = "0xbf317218"

S_X, S_E, S_SRC, S_DST, S_WM, S_WU, S_OUT, S_DBG, S_WS = 4, 6, 8, 10, 12, 14, 16, 18, 20

def load_args(a):
    a.e("s_load_dwordx16 s[4:19], s[0:1], 0")
    a.e("s_load_dwordx2 s[20:21], s[0:1], 64")

def srd(a, d, ptr, off_s=None, off_c=0, size=0):
    if off_s is not None:
        a.e(f"s_add_u32 s{d}, s{ptr}, s{off_s}")
        a.e(f"s_addc_u32 s{d+1}, s{ptr+1}, 0")
        if off_c:
            a.e(f"s_add_u32 s{d}, s{d}, {off_c}")
            a.e(f"s_addc_u32 s{d+1}, s{d+1}, 0")
    elif off_c:
        a.e(f"s_add_u32 s{d}, s{ptr}, {off_c}")
        a.e(f"s_addc_u32 s{d+1}, s{ptr+1}, 0")
    else:
        a.e(f"s_mov_b32 s{d}, s{ptr}")
        a.e(f"s_mov_b32 s{d+1}, s{ptr+1}")
    a.e(f"s_mov_b32 s{d+2}, {size}")
    a.e(f"s_mov_b32 s{d+3}, 0x20000")

def idmap(a, dst, src, t, sh=5):
    a.e(f"s_and_b32 s{t}, s{src}, 7")
    a.e(f"s_lshr_b32 s{dst}, s{src}, 3")
    a.e(f"s_lshl_b32 s{t}, s{t}, {sh}")
    a.e(f"s_add_u32 s{dst}, s{dst}, s{t}")

def scan64(a, v):
    for sh in (1, 2, 4, 8):
        a.e("s_nop 1")
        a.e(f"v_add_u32_dpp v{v}, v{v}, v{v} row_shr:{sh} row_mask:0xf bank_mask:0xf bound_ctrl:0")
    a.e("s_nop 1")
    a.e(f"v_add_u32_dpp v{v}, v{v}, v{v} row_bcast:15 row_mask:0xa bank_mask:0xf")
    a.e("s_nop 1")
    a.e(f"v_add_u32_dpp v{v}, v{v}, v{v} row_bcast:31 row_mask:0xc bank_mask:0xf")

def x_dma(a, sX, sW, vL, lds_base, t0, st, pol="", strided=False):
    a.e(f"v_lshrrev_b32 v{t0}, 4, v{vL}")
    a.e(f"v_and_b32 v{t0+1}, 15, v{vL}")
    a.e(f"v_xor_b32 v{t0+1}, v{t0+1}, v{t0}")
    a.e(f"v_lshlrev_b32 v{t0+1}, 4, v{t0+1}")
    a.e(f"v_lshl_add_u32 v{t0}, v{t0}, 8, v{t0+1}")
    a.e(f"s_and_b32 s{st}, s{sW}, 1")
    a.e(f"s_lshl_b32 s{st}, s{st}, 7")
    a.e(f"v_xor_b32 v{t0}, s{st}, v{t0}")
    a.e(f"v_xor_b32 v{t0+1}, 64, v{t0}")
    if strided:
        a.e(f"s_lshr_b32 s{st+1}, s{sW}, 1")
        a.e(f"s_lshl_b32 s{st+1}, s{st+1}, 12")
        a.e(f"s_lshl_b32 s{st}, s{sW}, 11")
        a.e(f"s_add_u32 s{st+1}, s{st+1}, s{st}")
        a.e(f"s_add_u32 m0, s{st+1}, {lds_base}")
    else:
        a.e(f"s_lshl_b32 s{st}, s{sW}, 11")
        a.e(f"s_add_u32 m0, s{st}, {lds_base}")
    a.e("s_nop 0")
    a.e(f"buffer_load_dwordx4 v{t0}, s[{sX}:{sX+3}], s{st} offen {pol} lds")
    a.e(f"buffer_load_dwordx4 v{t0+1}, s[{sX}:{sX+3}], s{st} offen offset:1024 {pol} lds")

def w_lane_const(a, vW, vL, t):
    a.e(f"v_lshrrev_b32 v{t}, 4, v{vL}")
    a.e(f"v_and_b32 v{vW}, 15, v{vL}")
    a.e(f"v_lshlrev_b32 v{vW}, 4, v{vW}")
    a.e(f"v_lshlrev_b32 v{t+1}, 6, v{t}")
    a.e(f"v_xor_b32 v{vW}, v{vW}, v{t+1}")
    a.e(f"v_lshl_add_u32 v{vW}, v{t}, 8, v{vW}")

def w_dma(a, sSrd, vW, sW4096, goff, lds_base, st):
    a.e(f"s_add_u32 s{st}, s{sW4096}, {goff}")
    a.e(f"s_add_u32 m0, s{sW4096}, {lds_base}")
    a.e("s_nop 0")
    for i in range(4):
        o = f" offset:{1024*i}" if i else ""
        a.e(f"buffer_load_dwordx4 v{vW}, s[{sSrd}:{sSrd+3}], s{st} offen{o} lds")

def wfrag_const(a, vA, vL, sW, t, st):
    a.e(f"v_lshrrev_b32 v{t}, 5, v{vL}")
    a.e(f"v_bfe_u32 v{t+1}, v{vL}, 2, 2")
    a.e(f"v_lshl_add_u32 v{t}, v{t}, 3, v{t+1}")
    a.e(f"v_lshlrev_b32 v{vA}, 8, v{t}")
    a.e(f"v_and_b32 v{t}, 1, v{vL}")
    a.e(f"v_lshlrev_b32 v{t}, 5, v{t}")
    a.e(f"v_bfe_u32 v{t+2}, v{vL}, 1, 1")
    a.e(f"v_lshl_add_u32 v{t}, v{t+2}, 3, v{t}")
    a.e(f"v_bfe_u32 v{t+2}, v{vL}, 4, 1")
    a.e(f"v_lshl_add_u32 v{t}, v{t+2}, 4, v{t}")
    a.e(f"s_and_b32 s{st}, s{sW}, 3")
    a.e(f"s_lshl_b32 s{st}, s{st}, 6")
    a.e(f"v_add_u32 v{t}, s{st}, v{t}")
    a.e(f"v_lshlrev_b32 v{t+1}, 6, v{t+1}")
    a.e(f"v_xor_b32 v{t}, v{t}, v{t+1}")
    a.e(f"v_add_u32 v{vA}, v{vA}, v{t}")

def wfrag_read(a, dst, vAddr, off=0, stride=4096):
    for s in range(8):
        for u in range(2):
            r = (dst[s] if isinstance(dst, list) else dst + 4*s) + 2*u
            a.e(f"ds_read_b64_tr_b16 v[{r}:{r+1}], v{vAddr} offset:{off+s*stride+u*1024}")

def xfrag_read(a, dst, vL, sW, lds_base, t, st):
    a.e(f"v_and_b32 v{t}, 31, v{vL}")
    a.e(f"v_lshrrev_b32 v{t+1}, 5, v{vL}")
    a.e(f"v_and_b32 v{t+2}, 15, v{vL}")
    a.e(f"v_xor_b32 v{t+1}, v{t+1}, v{t+2}")
    a.e(f"v_lshlrev_b32 v{t+1}, 4, v{t+1}")
    a.e(f"v_lshl_add_u32 v{t}, v{t}, 8, v{t+1}")
    a.e(f"s_lshr_b32 s{st}, s{sW}, 2")
    a.e(f"s_lshl_b32 s{st}, s{st}, 13")
    a.e(f"s_add_u32 s{st}, s{st}, {lds_base}")
    a.e(f"v_add_u32 v{t}, s{st}, v{t}")
    for s in range(8):
        if s == 0:
            a.e(f"ds_read_b128 v[{dst}:{dst+3}], v{t}")
        else:
            r = t + 1 + (s & 1)
            a.e(f"v_xor_b32 v{r}, {32*s}, v{t}")
            a.e(f"ds_read_b128 v[{dst+4*s}:{dst+4*s+3}], v{r}")

def gemm8(a, acc, A, B, zero=True):
    for s in range(8):
        c = "0" if (s == 0 and zero) else f"v[{acc}:{acc+15}]"
        r = A[s] if isinstance(A, list) else A + 4*s
        a.e(f"v_mfma_f32_32x32x16_bf16 v[{acc}:{acc+15}], v[{r}:{r+3}], v[{B+4*s}:{B+4*s+3}], {c}")

WS_DBG = 0x2000000
def stamp(a, i, vst):
    if not cfg.dbg: return
    if cfg.few and not (i in (0, 1, 2, 3) if vst == 197 else i in (7, 8, 9, 12)): return
    a.e("s_memrealtime s[90:91]")
    a.e("s_waitcnt lgkmcnt(0)")
    a.e(f"v_writelane_b32 v{vst}, s90, {i}")
def stamp_out(a, vst, vt, kidx):
    if not cfg.dbg: return
    srd(a, 92, S_WS, off_c=WS_DBG + kidx * 0x100000, size=0x100000)
    a.e(f"s_lshl_b32 s90, s2, 11")
    a.e(f"v_lshl_add_u32 v{vt}, v0, 2, s90")
    a.e(f"buffer_store_dword v{vst}, v{vt}, s[92:95], 0 offen")

def kernel_head(a, name):
    a.e(".text")
    a.e(f".globl {name}")
    a.e(".p2align 8")
    a.e(f".type {name},@function")
    a.label(name)

def kernel_desc(name, vg, sg):
    acc = (vg + 3) // 4 * 4
    return f""".amdhsa_kernel {name}
  .amdhsa_next_free_vgpr {vg}
  .amdhsa_next_free_sgpr {sg}
  .amdhsa_accum_offset {acc}
  .amdhsa_group_segment_fixed_size 0
  .amdhsa_kernarg_size 72
  .amdhsa_user_sgpr_count 2
  .amdhsa_user_sgpr_kernarg_segment_ptr 1
  .amdhsa_system_sgpr_workgroup_id_x 1
.end_amdhsa_kernel
"""

K1_LDS_A = 16384 + 57344
K1_LDS_B = 65536 + 96*272
def gen_k1(a):
    kernel_head(a, "prep_kernel")
    load_args(a)
    sW, sId, sT = 22, 23, 44
    vL = 1
    a.e(f"v_and_b32 v{vL}, 63, v0")
    a.e(f"v_lshrrev_b32 v2, 6, v0")
    a.e("s_nop 0")
    a.e(f"v_readfirstlane_b32 s{sW}, v2")
    if cfg.dbg: a.e("v_mov_b32 v197, 0")
    stamp(a, 0, 197)
    if cfg.dbg:
        a.e("s_getreg_b32 s90, hwreg(HW_REG_XCC_ID)")
        a.e("s_add_u32 s90, s90, 1")
        a.e("v_writelane_b32 v197, s90, 63")
    if cfg.k1d: a.e(f"s_sleep {cfg.k1d}")
    a.e(f"s_mov_b32 s{sId}, s2")
    a.e("s_cmp_lt_u32 s2, 120")
    a.e("s_cbranch_scc1 K1_BIN")
    a.e(f"s_sub_u32 s{sId}, s2, 3")
    a.e("s_sub_u32 s3, s2, 123")
    a.e("s_cmp_lt_u32 s3, 5")
    a.e("s_cbranch_scc1 K1_BIN")
    a.e("s_cmp_ge_u32 s2, 256")
    a.e("s_cbranch_scc1 K1_END")
    a.e(f"s_and_b32 s{sT}, s2, 7")
    a.e(f"s_lshr_b32 s{sId}, s2, 3")
    a.e(f"s_lshl4_add_u32 s{sId}, s{sT}, s{sId}")
    a.e(f"s_min_u32 s{sT}, s{sT}, 2")
    a.e(f"s_add_u32 s{sId}, s{sId}, s{sT}")
    a.e(f"s_sub_u32 s{sId}, s{sId}, 15")
    a.e(f"s_mul_i32 s{sT+2}, s{sId}, 24576")
    a.e(f"s_sub_u32 s{sT+4}, 3200000, s{sT+2}")
    a.e(f"s_min_u32 s{sT+4}, s{sT+4}, 24576")
    a.e(f"v_lshrrev_b32 v2, 4, v{vL}")
    a.e(f"v_and_b32 v3, 15, v{vL}")
    a.e(f"v_xor_b32 v3, v3, v2")
    a.e(f"v_lshlrev_b32 v3, 4, v3")
    a.e(f"v_lshl_add_u32 v16, v2, 8, v3")
    for i in range(1, 4): a.e(f"v_xor_b32 v{16+i}, {64*i}, v16")
    w_lane_const(a, 4, vL, 5)
    a.e(f"s_lshl_b32 s{sT+3}, s{sW}, 12")
    a.e("s_waitcnt lgkmcnt(0)")
    def xl():
        a.e(f"s_mov_b32 m0, s{sT+3}")
        srd(a, 24, S_X, off_s=sT+2, size=f"s{sT+4}")
        for i in range(4):
            o = f" offset:{1024*i}" if i else ""
            a.e(f"buffer_load_dwordx4 v{16+i}, s[24:27], s{sT+3} offen{o} {cfg.x_pol} lds")
    def wl():
        srd(a, 28, S_WM, size=32768)
        w_dma(a, 28, 4, sT+3, 0, 32768, sT)
    xl(); wl()
    srd(a, 32, S_WS, off_s=sT+2, off_c=cfg.wsoff + WS_P, size=f"s{sT+4}")
    wfrag_const(a, 8, vL, sW, 9, sT)
    OT = 65536
    a.e(f"v_and_b32 v12, 31, v{vL}")
    a.e(f"v_lshrrev_b32 v13, 5, v{vL}")
    a.e(f"v_and_b32 v15, 15, v{vL}")
    a.e(f"v_xor_b32 v15, v15, v13")
    a.e(f"v_lshlrev_b32 v15, 4, v15")
    a.e(f"v_lshl_add_u32 v15, v12, 8, v15")
    a.e(f"s_lshr_b32 s{sT}, s{sW}, 2")
    a.e(f"s_lshl_b32 s{sT+1}, s{sT}, 14")
    a.e(f"v_add_u32 v20, s{sT+1}, v15")
    for st in range(1, 8): a.e(f"v_xor_b32 v{20+st}, {32*st}, v20")
    if cfg.k1w:
        a.e(f"v_lshlrev_b32 v13, 5, v13")
        a.e(f"v_mul_u32_u24 v12, 80, v12")
        a.e(f"s_mul_i32 s{sT+5}, s{sW}, {32*80}")
        a.e(f"s_add_u32 s{sT+5}, s{sT+5}, {OT}")
        a.e(f"v_add3_u32 v12, s{sT+5}, v12, v13")
        a.e(f"v_lshrrev_b32 v13, 2, v{vL}")
        a.e(f"v_and_b32 v15, 3, v{vL}")
        a.e(f"v_lshlrev_b32 v15, 4, v15")
        a.e(f"v_lshl_add_u32 v14, v13, 8, v15")
        a.e(f"v_mul_u32_u24 v13, 80, v13")
        a.e(f"v_add3_u32 v13, v13, v15, s{sT+5}")
        a.e(f"s_lshl_b32 s{sT}, s{sT}, 14")
        a.e(f"s_and_b32 s{sT+1}, s{sW}, 3")
        a.e(f"s_lshl_b32 s{sT+1}, s{sT+1}, 6")
        a.e(f"v_add_u32 v14, s{sT}, v14")
        a.e(f"v_add_u32 v14, s{sT+1}, v14")
        a.e("s_movk_i32 s65, 4096\ns_movk_i32 s66, 12288")
    else:
        a.e(f"v_lshlrev_b32 v13, 5, v13")
        a.e(f"v_mul_u32_u24 v12, 272, v12")
        a.e(f"s_mul_i32 s{sT}, s{sT}, {64*272}")
        a.e(f"s_and_b32 s{sT+1}, s{sW}, 3")
        a.e(f"s_lshl_b32 s{sT+1}, s{sT+1}, 6")
        a.e(f"s_add_u32 s{sT}, s{sT}, s{sT+1}")
        a.e(f"s_add_u32 s{sT}, s{sT}, {OT}")
        a.e(f"v_add3_u32 v12, s{sT}, v12, v13")
        a.e(f"v_lshrrev_b32 v13, 4, v0")
        a.e(f"v_lshlrev_b32 v14, 4, v0")
        a.e(f"v_lshl_add_u32 v13, v13, 4, v14")
        a.e(f"v_add_u32 v13, {OT}, v13")
    a.e(f"s_mov_b32 s{sT}, {LOG2E_NEG}")
    a.e(f"s_mov_b32 s{sT+1}, {LOG2E_NEG}")
    a.e("s_movk_i32 s62, 8192\ns_movk_i32 s63, 16384\ns_movk_i32 s64, 24576")
    WF, X0, X1, A0, A1 = 32, 64, 96, 128, 144
    def rw(st):
        for u in range(2):
            a.e(f"ds_read_b64_tr_b16 v[{WF+4*st+2*u}:{WF+4*st+2*u+1}], v8 offset:{32768+st*4096+u*1024}")
    def rx0(st): a.e(f"ds_read_b128 v[{X0+4*st}:{X0+4*st+3}], v{20+st}")
    def mm(A, X, st):
        c = "0" if st == 0 else f"v[{A}:{A+15}]"
        a.e(f"v_mfma_f32_32x32x16_bf16 v[{A}:{A+15}], v[{WF+4*st}:{WF+4*st+3}], v[{X+4*st}:{X+4*st+3}], {c}")
    def fin(b, A):
        for i in range(8):
            a.e(f"v_pk_mul_f32 v[{A+2*i}:{A+2*i+1}], v[{A+2*i}:{A+2*i+1}], s[{sT}:{sT+1}]")
        for i in range(8):
            a.e(f"v_cvt_pk_bf16_f32 v{A+i}, v{A+2*i}, v{A+1+2*i}")
        if cfg.k1w and b:
            a.e("s_waitcnt lgkmcnt(0)")
            st2(0)
            a.e("v_add_u32 v14, s62, v14")
            b = 0
        if cfg.k1w:
            a.e(f"ds_write_b128 v12, v[{A}:{A+3}]")
            a.e(f"ds_write_b128 v12, v[{A+4}:{A+7}] offset:16")
            a.e(f"ds_read_b128 v[{48+8*b}:{51+8*b}], v13")
            a.e(f"ds_read_b128 v[{52+8*b}:{55+8*b}], v13 offset:{16*80}")
        else:
            a.e(f"ds_write_b128 v12, v[{A}:{A+3}] offset:{b*32*272}")
            a.e(f"ds_write_b128 v12, v[{A+4}:{A+7}] offset:{b*32*272+16}")
    def st2(b):
        for j in range(2):
            a.e(f"buffer_store_dwordx4 v[{48+8*b+4*j}:{51+8*b+4*j}], v14, s[32:35], {['0','s65','s62','s66'][2*b+j]} offen {cfg.p_pol}")
    a.e(f"s_cmp_ge_u32 s{sW}, 4")
    a.e("s_waitcnt vmcnt(4)")
    a.e("s_barrier")
    for st in range(8): rx0(st)
    a.e("s_cbranch_scc1 K1_NX1")
    for st in range(8):
        a.e(f"ds_read_b128 v[{X1+4*st}:{X1+4*st+3}], v{20+st} offset:8192")
    a.label("K1_NX1")
    a.e("s_waitcnt vmcnt(0)")
    stamp(a, 1, 197)
    a.e("s_barrier")
    for st in range(8): rw(st)
    for st in range(8):
        a.e(f"s_waitcnt lgkmcnt({14-2*st})")
        mm(A0, X0, st)
    a.e("s_cbranch_scc1 K1_NX2")
    for st in range(8): mm(A1, X1, st)
    a.e("s_nop 2")
    fin(0, A0)
    fin(1, A1)
    a.e("s_branch K1_NX3")
    a.label("K1_NX2")
    a.e("s_nop 10")
    fin(0, A0)
    a.label("K1_NX3")
    a.e("s_waitcnt lgkmcnt(0)")
    if cfg.k1w:
        st2(0)
    else:
        a.e("s_barrier")
        for j in range(3):
            a.e(f"ds_read_b128 v[{48+4*j}:{51+4*j}], v13 offset:{j*32*272}")
        for j in range(3):
            a.e(f"s_waitcnt lgkmcnt({2-j})")
            a.e(f"buffer_store_dwordx4 v[{48+4*j}:{51+4*j}], v14, s[32:35], {['0','s62','s63'][j]} offen {cfg.p_pol}")
    stamp(a, 2, 197)
    if cfg.dbg: a.e("s_waitcnt vmcnt(0)")
    stamp(a, 3, 197)
    stamp_out(a, 197, 198, 0)
    a.e("s_endpgm")
    SL, FLAG, SORT = 0, 36864, 36880
    a.label("K1_BIN")
    a.e(f"s_mul_i32 s{sT+2}, s{sId}, 12800")
    a.e(f"s_lshl_b32 s{sT+3}, s{sId}, 15")
    a.e("v_lshlrev_b32 v2, 4, v0")
    a.e("s_movk_i32 s3, 6400")
    a.e("s_movk_i32 s59, 400")
    a.e("v_cmp_gt_u32 s[60:61], s59, v0")
    a.e("s_waitcnt lgkmcnt(0)")
    D, S, BA, RK, AD = 4, 12, 20, 28, 36
    srd(a, 24, S_DST, off_s=sT+2, size=12800)
    a.e(f"buffer_load_dwordx4 v[{D}:{D+3}], v2, s[24:27], 0 offen {cfg.ld_pol}")
    a.e(f"buffer_load_dwordx4 v[{D+4}:{D+7}], v2, s[24:27], s3 offen {cfg.ld_pol}")
    srd(a, 28, S_SRC, off_s=sT+2, size=12800)
    a.e(f"buffer_load_dwordx4 v[{S}:{S+3}], v2, s[28:31], 0 offen {cfg.ld_pol}")
    a.e(f"buffer_load_dwordx4 v[{S+4}:{S+7}], v2, s[28:31], s3 offen {cfg.ld_pol}")
    srd(a, 32, S_WS, off_s=sT+3, off_c=cfg.wsoff + WS_S01, size=32768)
    a.e("v_mov_b32 v44, 1")
    a.e("v_min_u32 v3, 256, v0")
    a.e("v_mul_u32_u24 v3, 144, v3")
    a.e(f"ds_write_b32 v3, v44 offset:{SL}")
    a.e("v_lshlrev_b32 v45, 22, v0")
    a.e("s_movk_i32 s58, 10700")
    a.e("s_movk_i32 s57, 144")
    a.e("v_lshrrev_b32 v46, 3, v0")
    a.e("v_lshl_add_u32 v46, v46, 4, v2")
    a.e(f"v_mov_b32 v48, {FLAG}")
    a.e("s_movk_i32 s62, 8192\ns_movk_i32 s63, 16384\ns_movk_i32 s64, 24576")
    a.e("s_waitcnt lgkmcnt(0)")
    a.e("s_barrier")
    if True:
        a.e(f"s_cmp_lg_u32 s{sW}, 7")
        a.e("s_cbranch_scc1 K1_NOTOUCH")
        a.e("s_cmp_ge_u32 s2, 124")
        a.e("s_cbranch_scc1 K1_W3")
        a.e(f"s_lshr_b32 s{sT}, s2, 3")
        a.e(f"v_lshlrev_b32 v70, 7, v{vL}")
        if cfg.touch & 1:
            srd(a, 72, S_WM, off_c=32768, size=32768)
            srd(a, 76, S_WU, size=65536)
            a.e(f"s_mul_i32 s{sT+1}, s{sT}, {18*128}")
            a.e("s_mov_b64 exec, 0x3ffff")
            a.e(f"buffer_load_dword v71, v70, s[72:75], s{sT+1} offen")
            a.e(f"s_mul_i32 s{sT+1}, s{sT}, {35*128}")
            a.e("s_mov_b32 exec_lo, -1\ns_mov_b32 exec_hi, 7")
            a.e(f"buffer_load_dword v72, v70, s[76:79], s{sT+1} offen")
        if cfg.touch & 2:
            a.e("s_mov_b64 exec, 0x1ff")
            a.e("s_getpc_b64 s[68:69]")
            a.label("K1_PC")
            a.e(f"s_add_u32 s68, s68, {NAME}_kernel-K1_PC")
            a.e("s_addc_u32 s69, s69, 0")
            a.e(f"s_mul_i32 s{sT+1}, s{sT}, {9*128}")
            a.e(f"v_add_u32 v74, s{sT+1}, v70")
            a.e(f"v_min_u32 v74, K2_CODE_END-{NAME}_kernel-4, v74")
            a.e("v_mov_b32 v75, s69")
            a.e("v_add_co_u32 v74, vcc, s68, v74")
            a.e("s_nop 1")
            a.e("v_addc_co_u32 v75, vcc, 0, v75, vcc")
            a.e("global_load_dword v73, v[74:75], off")
        a.e("s_mov_b64 exec, -1")
        a.e("s_branch K1_B2")
        a.label("K1_NOTOUCH")
    a.e("s_mov_b64 exec, s[60:61]")
    for j in range(2):
        a.e(f"s_waitcnt vmcnt({3-j})")
        if j == 0: stamp(a, 1, 197)
        for i in range(4*j, 4*j+4):
            a.e(f"v_mul_u32_u24 v{AD+i}, s58, v{D+i}")
            a.e(f"v_lshrrev_b32 v{AD+i}, 19, v{AD+i}")
            a.e(f"v_mul_u32_u24 v{BA+i}, s57, v{AD+i}")
            a.e(f"ds_add_rtn_u32 v{RK+i}, v{BA+i}, v44 offset:{SL}")
    for i in range(8):
        a.e(f"v_mul_u32_u24 v{AD+i}, 49, v{AD+i}")
        a.e(f"v_sub_u32 v{D+i}, v{D+i}, v{AD+i}")
        if i: a.e(f"v_add_u32 v45, {hex(((1600-3) if i == 4 else 1) << 20)}, v45")
        a.e(f"v_or_b32 v{D+i}, v{D+i}, v45")
    a.e(f"s_waitcnt vmcnt(0)")
    stamp(a, 4, 197)
    for i in range(8):
        a.e(f"s_waitcnt lgkmcnt(7)")
        a.e(f"v_min_u32 v{AD+i}, 32, v{RK+i}")
        a.e(f"v_lshl_or_b32 v{D+i}, v{S+i}, 6, v{D+i}")
        a.e(f"v_lshl_add_u32 v{AD+i}, v{AD+i}, 2, v{BA+i}")
        a.e(f"ds_write_b32 v{AD+i}, v{D+i} offset:{SL}")
    a.e(f"v_max3_u32 v47, v{RK}, v{RK+1}, v{RK+2}")
    a.e(f"v_max3_u32 v47, v47, v{RK+3}, v{RK+4}")
    a.e(f"v_max3_u32 v47, v47, v{RK+5}, v{RK+6}")
    a.e(f"v_max_u32 v47, v47, v{RK+7}")
    a.e("v_cmpx_le_u32 vcc, 32, v47")
    a.e("ds_write_b32 v48, v47")
    a.e("s_mov_b64 exec, -1")
    a.e("s_waitcnt lgkmcnt(0)")
    stamp(a, 5, 197)
    a.label("K1_B2")
    a.e("s_barrier")
    stamp(a, 6, 197)
    for j in range(4):
        a.e(f"ds_read_b128 v[{52+4*j}:{55+4*j}], v46 offset:{SL + j*9216}")
    a.e(f"ds_read_b32 v49, v48")
    for j in range(4):
        a.e(f"s_waitcnt lgkmcnt({4-j})")
        a.e(f"buffer_store_dwordx4 v[{52+4*j}:{55+4*j}], v2, s[32:35], {['0','s62','s63','s64'][j]} offen {cfg.st_pol}")
    a.e("s_waitcnt lgkmcnt(0)")
    a.e("v_readfirstlane_b32 s3, v49")
    a.e("s_cmp_lg_u32 s3, 1")
    a.e("s_cbranch_scc1 K1_FULL")
    stamp(a, 2, 197)
    if cfg.dbg: a.e("s_waitcnt vmcnt(0)")
    stamp(a, 3, 197)
    stamp_out(a, 197, 198, 0)
    a.label("K1_END")
    a.e("s_endpgm")
    a.label("K1_FULL")
    a.e("s_waitcnt vmcnt(0)")
    a.e(f"s_lshl_b32 s{sT+4}, s{sId}, 2")
    srd(a, 32, S_WS, off_s=sT+2, off_c=cfg.wsoff + WS_REC, size=12800)
    srd(a, 36, S_WS, off_s=sT+4, off_c=cfg.wsoff + WS_OFFT, size=255*1024 + 4)
    a.e(f"v_mul_u32_u24 v3, {4*144}, v{vL}")
    for i in range(4):
        a.e(f"ds_read_b32 v{52+i}, v3 offset:{SL + 144*i}")
    a.e("s_waitcnt lgkmcnt(0)")
    for i in range(4):
        a.e(f"v_add_u32 v{52+i}, -1, v{52+i}")
    a.e("v_add_u32 v56, v52, v53")
    a.e("v_add_u32 v57, v56, v54")
    a.e("v_add_u32 v58, v57, v55")
    a.e("v_mov_b32 v60, v58")
    scan64(a, 60)
    a.e("v_sub_u32 v60, v60, v58")
    a.e("v_add_u32 v61, v60, v52")
    a.e("v_add_u32 v62, v60, v56")
    a.e("v_add_u32 v63, v60, v57")
    for i in range(4):
        a.e(f"ds_write_b32 v3, v{60+i} offset:{SL + 144*i + 132}")
    a.e(f"s_cmp_lg_u32 s{sW}, 7")
    a.e("s_cbranch_scc1 K1_NOFFT")
    a.e(f"v_lshlrev_b32 v59, 12, v{vL}")
    for i in range(4):
        o = f" offset:{1024*i}" if i else ""
        a.e(f"buffer_store_dword v{60+i}, v59, s[36:39], 0 offen{o}")
    a.label("K1_NOFFT")
    a.e("s_mov_b64 exec, s[60:61]")
    a.e("s_waitcnt lgkmcnt(0)")
    for i in range(8):
        a.e(f"ds_read_b32 v{BA+i}, v{BA+i} offset:{SL + 132}")
    a.e("s_waitcnt lgkmcnt(0)")
    for i in range(8):
        a.e(f"v_add_lshl_u32 v{BA+i}, v{BA+i}, v{RK+i}, 2")
        a.e(f"ds_write_b32 v{BA+i}, v{D+i} offset:{SORT - 4}")
    a.e("s_mov_b64 exec, -1")
    a.e("s_waitcnt lgkmcnt(0)")
    a.e("s_barrier")
    a.e(f"ds_read_b128 v[4:7], v2 offset:{SORT}")
    a.e(f"ds_read_b128 v[8:11], v2 offset:{SORT + 8192}")
    a.e(f"s_waitcnt lgkmcnt(0)")
    a.e(f"buffer_store_dwordx4 v[4:7], v2, s[32:35], 0 offen")
    a.e(f"buffer_store_dwordx4 v[8:11], v2, s[32:35], s62 offen")
    a.e("s_endpgm")
    a.label("K1_W3")
    a.e(f"s_sub_u32 s{sT}, s2, 124")
    srd(a, 72, S_WM, off_c=65536, size=4096)
    srd(a, 76, S_WS, off_c=cfg.wsoff + WS_W3F, size=4096)
    a.e(f"v_and_b32 v70, 31, v{vL}")
    a.e("v_lshlrev_b32 v70, 1, v70")
    a.e(f"v_lshrrev_b32 v71, 5, v{vL}")
    a.e("v_lshl_add_u32 v70, v71, 11, v70")
    a.e(f"s_lshl_b32 s{sT+1}, s{sT}, 6")
    for j in range(8):
        o = f" offset:{256*j}" if j else ""
        a.e(f"buffer_load_ushort v{72+j}, v70, s[72:75], s{sT+1} offen{o}")
    a.e(f"s_lshl_b32 s{sT+1}, s{sT}, 10")
    a.e(f"s_mov_b32 s{sT}, {LOG2E_NEG}")
    a.e(f"v_lshlrev_b32 v71, 4, v{vL}")
    a.e("s_waitcnt vmcnt(0)")
    for j in range(8):
        a.e(f"v_lshlrev_b32 v{72+j}, 16, v{72+j}")
        a.e(f"v_mul_f32 v{72+j}, s{sT}, v{72+j}")
    for j in range(4):
        a.e(f"v_cvt_pk_bf16_f32 v{80+j}, v{72+2*j}, v{73+2*j}")
    a.e(f"buffer_store_dwordx4 v[80:83], v71, s[76:79], s{sT+1} offen {cfg.st_pol}")
    a.e("s_branch K1_B2")

CNT, FLG, LUT, QL, LIST, AGG, SIDE, WU2, STG = 0, 256, 288, 576, 13776, 30800, 56672, 65536, 98304
MAXT = 65
K2_LDS = 163840
vL, vM = 1, 2
vOC, vREM, vROFF, vEB = 3, 4, 5, 6
vAE, vAP, vAQ = 7, 8, 9
vCP, vRP0, vRP1, vCQ, vCL, vCA, vH16, vFA = 10, 11, 12, 13, 14, 15, 16, 17
vPA = 144
vEA, vLA = 20, 21
vQA = 22
vRS = 148
vC4 = 152
ACC = 156
vRN = 28
vRE = 30
vSD = 31
vCUR = 32
vCHK = 34
vWC, vWA = 35, 36
vPF = 38
vT = 40
Z = 64; PX = 128; PY = 128; QX = 160; QY = 168; EE = 176; AQ = 184; AP = 188; IDX = 192; W3 = 196
NN = 212; DD = 220; EX = 228; TT = 232; ACX = 236
sP, sE, sX, sO, sR, sWm, sWu, sOT = 24, 28, 32, 36, 40, 44, 48, 52
sW, sBin, sNT, sCnt, sG0, sG1, sG2, sLim, sDone, sSafe, sW4k, sM0, sMask, sMore, sFirst, sDm = 22, 23, 56, 57, 58, 59, 60, 61, 62, 63, 64, 65, 66, 67, 68, 69
sT = 70
sX0 = 80
sSusp = 88
sF0, sF1 = 32, 34
sMA, sMB, sL, sEX = 58, 59, 60, 52
PSIZE = 12500 * 256 + 3072
s256 = 79
ESIZE = 400000 * 32

def dma_m0(H, dest=None):
    if dest is None: dest = H
    return f"s_add_u32 m0, s{sW4k}, {WU2 - 128*H}" if dest == "alt" else f"s_add_u32 m0, s{sM0}, {dest*4096 - 128*H + 256}"
def dma_ld(H):
    out = []
    for j in range(4):
        imm = 1024 * j + 128 * H
        o = f" offset:{imm}" if imm else ""
        out.append(f"buffer_load_dwordx4 v{vPA+j}, s[{sP}:{sP+3}], 0 offen{o} {cfg.g_pol} lds")
    return out
def dma_ops(H, dest=None):
    l = dma_ld(H)
    return [[dma_m0(H, dest), "s_nop 0", l[0]], [l[1]], [l[2]], [l[3]]]
def dma_half(a, H, dest=None):
    for s in sum(dma_ops(H, dest), []): a.e(s)
def pfrag_reads(dst, H, va=None):
    out = []
    va = vRP0 if va is None else va
    for tq in range(2):
        for q in range(4):
            r = dst + 8 * tq + 2 * q
            out.append(f"ds_read_b64_tr_b16 v[{r}:{r+1}], v{va+tq} offset:{H*4096 + q*512}")
    return out
def qfrag_reads(dst, H, par):
    out = []
    for tq in range(2):
        for u in range(2):
            r = dst + 4 * tq + 2 * u
            out.append(f"ds_read_b64_tr_b16 v[{r}:{r+1}], v{vQA+2*par+u} offset:{(2*H+tq)*64}")
    return out
def list_reads_se(o=0):
    return [f"ds_read_b32 v{vRE}, v{vAE} offset:{128*o}", f"ds_read2_b32 v[{vRS}:{vRS+1}], v{vAP} offset0:{32*o} offset1:{32*o+8}", f"ds_read2_b32 v[{vRS+2}:{vRS+3}], v{vAP} offset0:{32*o+16} offset1:{32*o+24}"]
def list_reads_n(o=0):
    return [f"ds_read_u16 v{vRN}, v{vAQ} offset:{128*o}", f"ds_read_u16 v{vRN+1}, v{vAQ} offset:{128*o+64}"]
def addr_p():
    return [f"v_mad_u32_u16 v{vPA+j}, v{vRS+j}, s{s256}, v{vC4+j}" for j in range(4)]
def addr_e():
    return [f"v_and_or_b32 v{vEA}, v{vRE}, s{sMask}, v{18 if 'ehalf' in cfg.x else vH16}"]
def addr_l():
    return [f"v_and_or_b32 v{vLA}, v{vRE}, 16, v{vCL}", f"v_cmp_gt_i32 vcc, 0, v{vRE}"]
def addr_se():
    return addr_p() + addr_e() + addr_l()
def flags_from_vcc(sF):
    if "nf2" in cfg.x: return [f"s_mov_b32 s{sF}, 0", f"s_mov_b32 s{sF+1}, 0"]
    return [f"s_lshr_b32 s{sF+1}, vcc_lo, 4", f"s_mov_b32 s{sF}, vcc_lo", f"s_or_b32 s{sF+1}, s{sF+1}, vcc_lo", f"s_or_b32 s{sF+1}, s{sF+1}, s{sSafe}"]
def addr_q(par):
    return [f"v_add_u32 v{vQA+2*par}, v{vRN}, v{vCQ}", f"v_add_u32 v{vQA+2*par+1}, v{vRN+1}, v{vCQ}"]
def e_load(par):
    return f"buffer_load_dwordx4 v[{EE+4*par}:{EE+4*par+3}], v{vEA}, s[{sE}:{sE+3}], 0 offen {cfg.e_pol}"
def mfmas(c0, Pset, Qset, epar):
    out = []
    zz = lambda c: f"v[{Z+16*c}:{Z+16*c+15}]"
    f4 = lambda r: f"v[{r}:{r+3}]"
    M = "v_mfma_f32_32x32x16_bf16"
    for i in range(2): out.append(f"{M} {zz(c0+i)}, {f4(EE+4*epar)}, {f4(W3+4*(c0+i))}, 0")
    for i in range(2): out.append(f"{M} {zz(c0+i)}, {f4(AQ)}, {f4(Qset+4*i)}, {zz(c0+i)}")
    for i in range(2): out.append(f"v_smfmac_f32_32x32x32_bf16 {zz(c0+i)}, {f4(AP)}, v[{Pset+8*i}:{Pset+8*i+7}], v{IDX}")
    return out
p2 = lambda r: f"v[{r}:{r+1}]"
def flush_code(a, c0, X, mid=(), wait=True, chk=()):
    t = vT + 8 * X
    for i in range(2):
        c = c0 + i
        a.e(f"v_rcp_f32 v{t+2*i}, v{DD+2*c}")
        a.e(f"v_rcp_f32 v{t+2*i+1}, v{DD+2*c+1}")
    for s in chk: a.e(s)
    for i in range(2):
        c = c0 + i
        a.e(f"v_max3_f32 v{vCHK}, v{DD+2*c}, v{DD+2*c+1}, v{vCHK}")
    for s in mid: a.e(s)
    if wait: a.e("s_waitcnt lgkmcnt(0)")
    for j in range(2):
        for i in range(2):
            c = c0 + i
            a.e(f"v_fmac_f32 v{ACC+c}, v{NN+2*c+j}, v{t+2*i+j}")

def half_step(a, ool, X, par, extras, tag):
    c0 = 2 * X
    sF0 = (32, 34)[par]
    if X == 0: mf = mfmas(2, PX, QX, par)
    else:      mf = mfmas(0, PY, QY, 1 - par)
    def keep(s):
        if "nodma" in cfg.x and (" lds" in s or "m0" in s or s == "s_nop 0"): return False
        if "noe" in cfg.x and s.startswith("buffer_load") and " lds" not in s: return False
        if "nods" in cfg.x and s.startswith("ds_read"): return False
        if "nowait" in cfg.x and s.startswith("s_waitcnt"): return False
        if "novm" in cfg.x and s.startswith("s_waitcnt vmcnt"): return False
        return True
    extras = {k: [s for s in v if keep(s)] for k, v in extras.items()}
    for s in extras.get("pre", []): a.e(s)
    if cfg.prio == 1: a.e(f"s_setprio {1 - X}")
    if cfg.prio == 2 and X == 0: a.e(f"s_setprio {1 - par}")
    for k in range(8):
        if cfg.prio == 3 and k in (0, 4): a.e(f"s_setprio {1 if k == 0 else 0}")
        if cfg.prio == 4: a.e("s_setprio 1")
        if cfg.prio == 5: a.e("s_setprio 0")
        if "nomfma" not in cfg.x and k < len(mf): a.e(mf[k])
        for i in range(2):
            z = Z + 16 * (c0 + i) + 2 * k
            a.e(f"v_exp_f32 v{EX+2*i}, v{z}")
            a.e(f"v_exp_f32 v{EX+2*i+1}, v{z+1}")
        for s in extras.get(k, []): a.e(s)
        if cfg.prio == 4: a.e("s_setprio 0")
        if cfg.prio == 5: a.e("s_setprio 1")
        bit = 8 * (k >> 1) + 2 * (k & 1)
        lf, lb = f"F_{tag}_{k}", f"R_{tag}_{k}"
        if "nobr" not in cfg.x:
            a.e(f"s_bitcmp1_b32 s{sSafe if 'nofl' in cfg.x else sF0+1}, {bit}")
            a.e(f"s_cbranch_scc1 {lf}")
        for i in range(2):
            c = c0 + i; z = Z + 16 * c + 2 * k
            a.e(f"v_pk_fma_f32 {p2(TT+2*i)}, {p2(z)}, {p2(DD+2*c)}, {p2(NN+2*c)}")
        for i in range(2):
            c = c0 + i
            a.e(f"v_pk_fma_f32 {p2(DD+2*c)}, {p2(DD+2*c)}, {p2(EX+2*i)}, {p2(DD+2*c)}")
        for i in range(2):
            c = c0 + i
            a.e(f"v_pk_fma_f32 {p2(NN+2*c)}, {p2(NN+2*c)}, {p2(EX+2*i)}, {p2(TT+2*i)}")
        a.label(lb)
        ool.label(lf)
        t = vT + 8 * X
        ex = "K2_LEND" if X else (f"EXA{par}_{k}" if k < 6 else f"R_{tag}_7")
        sal = ([f"s_bitcmp1_b32 s{sF0}, {bit+1}", f"s_cbranch_scc1 {ex}"] if k else []) + \
              [f"s_bitcmp1_b32 s{sF0}, {bit}", f"s_cselect_b32 s{sT}, -1, 0", f"s_bitcmp1_b32 s{sF0}, {bit+4}", f"s_cselect_b32 s{sT+1}, -1, 0"]
        rc = [f"v_rcp_f32 v{t+j}, v{DD+2*c0+j}" for j in range(4)]
        n = len(sal)
        for j in range(4):
            ool.e(rc[j])
            for x in sal[:(n + 3 - j) // 4 if False else 0]: pass
            cnt = (n // 4) + (1 if j < n % 4 else 0)
            for _ in range(cnt): ool.e(sal.pop(0))
        for i in range(2):
            c = c0 + i
            ool.e(f"v_max3_f32 v{vCHK}, v{DD+2*c}, v{DD+2*c+1}, v{vCHK}")
        ool.e(f"v_mov_b32_dpp v{t+6}, v{vQA+2*par+(k>>2)} row_newbcast:{4*(k&3)} row_mask:0xf bank_mask:0xf")
        nk = sum(1 for x in extras.get(k, []) if x.startswith("ds_")) if cfg.cw else 0
        if k == 0 and cfg.cw: pass
        elif k == 7 and cfg.cw: pass
        else: ool.e(f"s_waitcnt lgkmcnt({nk})")
        for j in range(2):
            for i in range(2):
                c = c0 + i
                ool.e(f"v_fmac_f32 v{ACC+c}, v{NN+2*c+j}, v{t+2*i+j}")
        ool.e(f"s_mov_b64 exec, s[{sT}:{sT+1}]")
        ool.e(f"ds_write2_b32 v{vCUR+X}, v{ACC+c0}, v{ACC+c0+1} offset0:{32*c0} offset1:{32*c0+32}")
        ool.e(f"v_lshl_add_u32 v{vCUR+X}, v{t+6}, 1, v{vCA}")
        ool.e(f"ds_read2_b32 v[{ACC+c0}:{ACC+c0+1}], v{vCUR+X} offset0:{32*c0} offset1:{32*c0+32}")
        ool.e("s_mov_b64 exec, -1")
        for i in range(2):
            c = c0 + i
            ool.e(f"v_pk_add_f32 {p2(DD+2*c)}, {p2(EX+2*i)}, 1.0 op_sel_hi:[1,0]")
        for i in range(2):
            c = c0 + i; z = Z + 16 * c + 2 * k
            ool.e(f"v_pk_mov_b32 {p2(NN+2*c)}, {p2(z)}, {p2(z)} op_sel:[0,1]")
        ool.e(f"s_branch {lb}")

def lds_fill(a, base, nbytes, vdata, vaddr16, ex):
    n = (nbytes + 15) // 16
    r = 0
    while n >= 512:
        a.e(f"ds_write_b128 v{vaddr16}, v[{vdata}:{vdata+3}] offset:{base + r*8192}")
        n -= 512; r += 1
    if n:
        a.e(f"s_movk_i32 s{sT}, {n}")
        a.e(f"v_cmp_gt_u32 vcc, s{sT}, v0")
        a.e(f"s_and_saveexec_b64 s[{ex}:{ex+1}], vcc")
        a.e(f"ds_write_b128 v{vaddr16}, v[{vdata}:{vdata+3}] offset:{base + r*8192}")
        a.e(f"s_mov_b64 exec, s[{ex}:{ex+1}]")

def reset_round(a, zero_agg):
    t = vT
    a.e(f"v_lshlrev_b32 v{t}, 4, v0")
    a.e(f"v_mov_b32 v{t+8}, 0\nv_mov_b32 v{t+9}, 0\nv_mov_b32 v{t+10}, 0\nv_mov_b32 v{t+11}, 0")
    lds_fill(a, CNT, 272, t+8, t, sX0)
    if zero_agg: lds_fill(a, AGG, 49 * 528, t+8, t, sX0)

def onehot4(a, dst, vJ, vcond_sgpr, t):
    a.e(f"v_and_b32 v{t}, 1, v{vJ}")
    a.e(f"v_lshlrev_b32 v{t}, 4, v{t}")
    a.e(f"v_mov_b32 v{t+1}, 0x3f80")
    a.e(f"v_lshlrev_b32 v{t}, v{t}, v{t+1}")
    if vcond_sgpr is not None:
        a.e(f"v_cndmask_b32 v{t}, 0, v{t}, s[{vcond_sgpr}:{vcond_sgpr+1}]")
    a.e(f"v_lshrrev_b32 v{t+1}, 1, v{vJ}")
    for i in range(4):
        a.e(f"v_cmp_eq_u32 vcc, {i}, v{t+1}")
        a.e("s_nop 1")
        a.e(f"v_cndmask_b32 v{dst+i}, 0, v{t}, vcc")

def gen_k2(a):
    ool = Asm()
    rare = Asm()
    RC = 160; RK = 172; NA = 184; EN = 212
    XF, WU1F, W2F, QACC = 64, 96, [128, 132, 136, 140, 160, 164, 168, 172], 212
    vLA0, vXA, vW3A, vW0 = vT + 20, vT + 21, vT + 22, vT + 23
    t = vT + 12
    kernel_head(a, NAME + "_kernel")
    load_args(a)
    a.e(f"v_lshrrev_b32 v{vT+1}, 2, v0")
    a.e(f"v_and_b32 v{vW0}, 3, v0")
    a.e("s_cmp_ge_u32 s2, 256")
    a.e("s_cbranch_scc1 K2_END")
    if cfg.dbg:
        a.e("v_mov_b32 v252, 0")
        a.e("s_memrealtime s[92:93]")
    idmap(a, sBin, 2, sT)
    a.e(f"v_mul_u32_u24 v{vEB}, 3200, v{vT+1}")
    a.e(f"v_lshlrev_b32 v{vT+4}, 4, v{vW0}")
    a.e(f"s_lshl_b32 s{sT+2}, s{sBin}, 7")
    a.e(f"s_add_u32 s{sT+2}, s{sT+2}, {cfg.wsoff + WS_S01}")
    a.e(f"v_lshl_add_u32 v{vT+2}, v{vT+1}, 15, v{vT+4}")
    a.e(f"s_mov_b32 s{sOT+2}, {124*32768+128}")
    a.e(f"s_mov_b32 s{sOT+3}, 0x20000")
    a.e(f"v_lshrrev_b32 v{vT}, 6, v0")
    a.e(f"v_and_b32 v{vL}, 63, v0")
    a.e(f"v_readfirstlane_b32 s{sW}, v{vT}")
    a.e(f"s_mul_i32 s{sT+3}, s{sBin}, 12544")
    a.e(f"s_sub_u32 s{sT+4}, 3200000, s{sT+3}")
    a.e(f"s_min_u32 s{sT+4}, s{sT+4}, 12544")
    a.e(f"v_mov_b32 v{vT+8}, 0\nv_mov_b32 v{vT+9}, 0\nv_mov_b32 v{vT+10}, 0\nv_mov_b32 v{vT+11}, 0")
    a.e(f"v_lshlrev_b32 v{vW3A}, 4, v{vL}")
    a.e("s_mov_b64 exec, 0x1ffff")
    a.e(f"ds_write_b128 v{vW3A}, v[{vT+8}:{vT+11}] offset:{CNT}")
    a.e("s_mov_b64 exec, -1")
    WU1L = 32768
    NPF = cfg.prefetchP
    vXD, vW3D = vT + 18, vT + 7
    sM = sX0 + 4
    c = Asm(); x_dma(c, sX, sW, vL, STG, vXD, sM + 2, strided=True)
    for x in c.lines[:-4]: a.e(x)
    a.e(f"s_add_u32 s{sM+3}, s{sM+3}, {STG}")
    xd = c.lines[-2:]
    w_lane_const(a, vWC, vL, t)
    a.e(f"s_lshl_b32 s{sW4k}, s{sW}, 12")
    a.e(f"s_lshl_b32 s{sM0}, s{sW}, 13")
    a.e(f"s_add_u32 s{sM}, s{sM0}, {STG + 4096}")
    a.e(f"s_add_u32 s{sM0}, s{sM0}, {STG - 256}")
    a.e(f"s_add_u32 s{sM+1}, s{sW4k}, {WU1L}")
    a.e(f"v_lshlrev_b32 v{vW3D}, 4, v0")
    a.e(f"s_and_b32 s{sT+1}, s{sW}, 4")
    a.e(f"s_add_u32 s{sT}, s{sW}, s{sT+1}")
    a.e(f"s_lshl_b32 s{sT}, s{sT}, 10")
    a.e(f"s_add_u32 m0, s{sT}, {STG + 32768}")
    a.e(f"s_mov_b32 s{sR+2}, 4096")
    a.e(f"s_mov_b32 s{sR+3}, 0x20000")
    a.e("s_waitcnt lgkmcnt(0)")
    a.e(f"s_add_u32 s{sOT}, s{S_WS}, s{sT+2}")
    a.e(f"s_addc_u32 s{sOT+1}, s{S_WS+1}, 0")
    a.e(f"buffer_load_dwordx4 v[{RC}:{RC+3}], v{vT+2}, s[{sOT}:{sOT+3}], 0 offen {cfg.s_pol}")
    a.e(f"buffer_load_dwordx4 v[{RC+4}:{RC+7}], v{vT+2}, s[{sOT}:{sOT+3}], 0 offen offset:64 {cfg.s_pol}")
    a.e(f"s_add_u32 s{sR}, s{S_WS}, {cfg.wsoff + WS_W3F}")
    a.e(f"s_addc_u32 s{sR+1}, s{S_WS+1}, 0")
    a.e(f"buffer_load_dwordx4 v{vW3D}, s[{sR}:{sR+3}], 0 offen lds")
    if cfg.dbg:
        a.e("v_writelane_b32 v252, s92, 0")
        a.e("s_getreg_b32 s90, hwreg(HW_REG_XCC_ID)")
        a.e("s_add_u32 s90, s90, 1")
        a.e("v_writelane_b32 v252, s90, 39")
    stamp(a, 40, 252)
    srd(a, sX, S_X, off_s=sT+3, size=f"s{sT+4}")
    srd(a, sO, S_OUT, off_s=sT+3, size=f"s{sT+4}")
    srd(a, sWm, S_WM, off_c=32768, size=32768)
    srd(a, sWu, S_WU, size=256*256)
    if cfg.spf:
        a.e(f"s_lshr_b32 s{sT}, s2, 3")
        a.e(f"s_mul_i32 s{sT}, s{sT}, {781*128}")
        a.e(f"s_mul_i32 s{sT+1}, s{sW}, {cfg.spf*128}")
        a.e(f"s_add_u32 s{sT}, s{sT}, s{sT+1}")
        a.e(f"s_add_u32 s{sT}, s{sT}, {cfg.wsoff + WS_P + (781 - 8*cfg.spf)*128}")
        a.e(f"s_add_u32 s{sT}, s{S_WS}, s{sT}")
        a.e(f"s_addc_u32 s{sT+1}, s{S_WS+1}, 0")
    a.e("s_barrier")
    for j in range(cfg.spf):
        a.e(f"s_load_dword s78, s[{sT}:{sT+1}], {hex(128*j)}")
    stamp(a, 41, 252)
    def mix(lines, extra, first=0):
        out = []; n = len(lines); m = len(extra); k = 0; full = True
        for i, x in enumerate(lines):
            while full and k < m and k * n <= i * m: out += extra[k]; k += 1
            out.append(x)
            if "exec" in x.split(",")[0]: full = x.strip() == "s_mov_b64 exec, -1"
        return out + sum(extra[k:], [])
    dm = [[f"s_mov_b32 m0, s{sM+3}", "s_nop 0", xd[0]], [xd[1]]]
    for j, srdw in enumerate((sWm, sWu)):
        for i in range(4):
            o = f" offset:{1024*i}" if i else ""
            dm.append(([f"s_mov_b32 m0, s{sM+j}", "s_nop 0"] if i == 0 else []) + [f"buffer_load_dwordx4 v{vWC}, s[{srdw}:{srdw+3}], s{sW4k} offen{o} lds"])
    c = Asm(); sav = a.lines; a.lines = c.lines
    a.e(f"v_and_b32 v{t+1}, 7, v{vL}")
    onehot4(a, AQ, t+1, None, t+2)
    a.e(f"v_lshlrev_b32 v{t+2}, 5, v{vL}")
    a.e(f"v_and_b32 v{vM}, 31, v0")
    a.e(f"v_lshlrev_b32 v{vW0}, 2, v{vW0}")
    a.e("s_mov_b64 exec, 0x1ff")
    a.e(f"ds_write_b128 v{t+2}, v[{vT+8}:{vT+11}] offset:{LUT+16}")
    a.e("s_mov_b64 exec, 0x100")
    a.e(f"ds_write_b128 v{t+2}, v[{vT+8}:{vT+11}] offset:{LUT}")
    a.e("s_mov_b64 exec, 0xff")
    a.e(f"ds_write_b128 v{t+2}, v[{AQ}:{AQ+3}] offset:{LUT}")
    a.e("s_mov_b64 exec, -1")
    srd(a, sP, S_WS, off_c=cfg.wsoff + WS_P - 3072, size=PSIZE)
    if NPF:
        a.e(f"s_lshr_b32 s{sT}, s2, 3")
        a.e(f"s_mul_i32 s{sT}, s{sT}, {781*128}")
        a.e(f"s_add_u32 s{sT}, s{sT}, 3072")
        a.e(f"v_lshl_add_u32 v{vPF}, v{vL}, 3, s{sW}")
        if cfg.pfn < 512:
            a.e(f"s_movk_i32 s{sT+1}, {cfg.pfn}")
            a.e(f"v_cmp_gt_u32 vcc, s{sT+1}, v{vPF}")
        a.e(f"v_lshl_add_u32 v{vPF}, v{vPF}, 7, s{sT}")
        if NPF > 1:
            a.e(f"v_add_u32 v{vPF+1}, 0x10000, v{vPF}")
        if cfg.pfn < 512:
            a.e(f"v_mov_b32 v{vT+3}, 0x7ffffff0")
            a.e(f"v_cndmask_b32 v{vPF+NPF-1}, v{vT+3}, v{vPF+NPF-1}, vcc")
    if cfg.pfe:
        a.e(f"s_mul_i32 s{sT}, s2, 51200")
        a.e(f"v_lshl_add_u32 v{vPF+1}, v{vL}, 3, s{sW}")
        a.e(f"s_movk_i32 s{sT+1}, {cfg.pfe}")
        a.e(f"v_cmp_gt_u32 vcc, s{sT+1}, v{vPF+1}")
        a.e(f"v_lshl_add_u32 v{vPF+1}, v{vPF+1}, 7, s{sT}")
        a.e(f"v_mov_b32 v{vT+3}, 0x7ffffff0")
        a.e(f"v_cndmask_b32 v{vPF+1}, v{vT+3}, v{vPF+1}, vcc")
    NPP = NPF
    if cfg.pfm:
        a.e(f"v_lshl_add_u32 v{vPF+1}, v{vL}, 3, s{sW}")
        a.e(f"s_movk_i32 s{sT+1}, {cfg.pfm}")
        a.e(f"v_cmp_gt_u32 vcc, s{sT+1}, v{vPF+1}")
        a.e(f"s_add_u32 s{sT}, s{sT}, 0x10000")
        a.e(f"v_lshl_add_u32 v{vPF+1}, v{vPF+1}, 7, s{sT}")
        a.e(f"v_cndmask_b32 v{vPF+1}, v{vT+3}, v{vPF+1}, vcc")
        dm[cfg.pfmpos] = dm[cfg.pfmpos] + [f"buffer_load_dword v37, v{vPF+1}, s[{sP}:{sP+3}], 0 offen"]
    if cfg.tlb:
        a.e(f"v_lshlrev_b32 v{vPF+1}, 20, v{vL}")
    def pf(pos):
        if cfg.pfpos == pos:
            if cfg.tlb & 1: a.e(f"buffer_load_dword v37, v{vPF+1}, s[{sE}:{sE+3}], 0 offen")
            if cfg.tlb & 2: a.e(f"buffer_load_dword v37, v{vPF+1}, s[{sO}:{sO+3}], 0 offen")
            if cfg.pfe: a.e(f"buffer_load_dword v37, v{vPF+1}, s[{sE}:{sE+3}], 0 offen {cfg.et_pol}")
            for i in range(NPP): a.e(f"buffer_load_dword v37, v{vPF+i}, s[{sP}:{sP+3}], 0 offen")
    if cfg.pfe: NPF += 1
    NPF += (cfg.tlb & 1) + (cfg.tlb >> 1 & 1)
    a.e(f"s_mov_b32 s{sLim}, 32")
    a.e(f"s_mov_b32 s{sDone}, 0")
    wfrag_const(a, vWA, vL, sW, t, sT)
    a.e(f"v_add_u32 v{vW3A}, {STG + 32768}, v{vW3A}")
    a.e(f"v_lshrrev_b32 v{t}, 5, v{vL}")
    a.e(f"v_and_b32 v{t+1}, 15, v{vL}")
    a.e(f"v_xor_b32 v{t+2}, v{t}, v{t+1}")
    a.e(f"v_lshlrev_b32 v{t+2}, 4, v{t+2}")
    a.e(f"v_lshl_add_u32 v{vXA}, v{t+1}, 8, v{t+2}")
    a.e(f"v_bfe_u32 v{t+2}, v{vL}, 4, 1")
    a.e(f"v_lshl_add_u32 v{vXA}, v{t+2}, 13, v{vXA}")
    a.e(f"s_lshr_b32 s{sT}, s{sW}, 2")
    a.e(f"s_lshl_b32 s{sT}, s{sT}, 14")
    a.e(f"s_add_u32 s{sT}, s{sT}, {STG}")
    a.e(f"v_add_u32 v{vXA}, s{sT}, v{vXA}")
    srd(a, sE, S_E, size=ESIZE)
    a.e(f"s_mov_b32 s{sSafe}, 0")
    a.e(f"s_mov_b32 s{sFirst}, 1")
    a.e(f"s_mov_b32 s{sMask}, {'0x4003ffe0' if 'esm' in cfg.x else '0x7fffffe0'}")
    a.e(f"v_mov_b32 v{vCL}, {LUT + 256}")
    a.e(f"v_bfe_u32 v{t+1}, v{vL}, 3, 2")
    a.e(f"v_bfe_u32 v{t+3}, v{vL}, 1, 1")
    a.e(f"v_lshl_add_u32 v{t+1}, v{t+1}, 1, v{t+3}")
    a.e(f"v_lshlrev_b32 v{t+1}, 5, v{t+1}")
    a.e("s_mov_b32 exec_lo, 0x0f0f0f0f\ns_mov_b32 exec_hi, 0xf0f0f0f0")
    a.e(f"v_add_u32 v{vCL}, {LUT}, v{t+1}")
    a.e("s_mov_b64 exec, -1")
    a.e(f"v_lshlrev_b32 v{vH16}, 4, v{t}")
    if 'ehalf' in cfg.x: a.e(f"v_lshlrev_b32 v18, 30, v{t}")
    a.e(f"v_and_b32 v{t+1}, 3, v{vL}")
    a.e(f"v_lshlrev_b32 v{vCQ}, 3, v{t+1}")
    a.e(f"v_lshl_add_u32 v{vCQ}, v{t+2}, 5, v{vCQ}")
    a.e(f"v_add_u32 v{vCQ}, {QL}, v{vCQ}")
    a.e(f"v_lshlrev_b32 v{vCA}, 2, v{vM}")
    a.e(f"v_mad_u32_u24 v{vSD}, v{vH16}, 33, v{vCA}")
    a.e(f"s_mul_i32 s{sT}, s{sW}, 1056")
    a.e(f"s_add_u32 s{sT}, s{sT}, {SIDE}")
    a.e(f"v_add_u32 v{vSD}, s{sT}, v{vSD}")
    a.e(f"v_lshlrev_b32 v{t+2}, 6, v{t+2}")
    a.e(f"v_sub_u32 v{vCA}, v{vCA}, v{t+2}")
    a.e(f"v_add_u32 v{vCA}, {AGG - 2*QL}, v{vCA}")
    a.e(f"v_bfe_u32 v{t+1}, v{vL}, 2, 2")
    a.e(f"v_lshl_add_u32 v{vRP0}, v{t+1}, 7, v{vCQ}")
    a.e(f"v_lshl_add_u32 v{vRP0}, v{t}, 11, v{vRP0}")
    a.e(f"v_and_b32 v{t+1}, 8, v{vL}")
    a.e(f"v_lshl_add_u32 v{vRP0}, v{t+1}, 3, v{vRP0}")
    a.e(f"s_add_u32 s{sT}, s{sM0}, {256 - QL}")
    a.e(f"v_add_u32 v{vRP0}, s{sT}, v{vRP0}")
    a.e(f"v_xor_b32 v{vRP1}, 64, v{vRP0}")
    a.e(f"s_movk_i32 s{s256}, 256")
    a.e(f"v_mov_b32 v{vCHK}, 0")
    def round_consts(a):
        a.e(f"v_lshrrev_b32 v{t}, 3, v{vM}")
        a.e(f"v_and_b32 v{t+1}, 3, v{vL}")
        a.e(f"v_lshl_add_u32 v{vAE}, v{t}, 2, v{t+1}")
        a.e(f"v_lshlrev_b32 v{vAE}, 3, v{vAE}")
        a.e(f"v_bfe_u32 v{t+1}, v{vL}, 2, 2")
        a.e(f"v_lshlrev_b32 v{vAQ}, 4, v{t+1}")
        a.e(f"v_and_b32 v{vAP}, 24, v{vL}")
        a.e(f"v_and_b32 v{t}, 7, v{vL}")
        a.e(f"v_bfe_u32 v{t+1}, v{vL}, 4, 1")
        a.e(f"v_lshlrev_b32 v{t}, 4, v{t}")
        a.e(f"v_lshlrev_b32 v{t+1}, 6, v{t+1}")
        a.e(f"v_xor_b32 v{vC4+3}, v{t}, v{t+1}")
        for j in range(3):
            a.e(f"v_add_u32 v{vC4+j}, {1024*(3-j)}, v{vC4+3}")
        a.e(f"v_mov_b32 v{vT}, 1")
        a.e(f"v_mov_b32 v{vT+1}, {FLG}")
        a.e(f"v_lshlrev_b32 v{vT+2}, 2, v{vL}")
        a.e(f"s_mov_b32 s{sT}, 0x420000")
        a.e(f"s_brev_b32 s{sT+6}, 1")
        a.e(f"s_add_u32 s{sT+7}, s{sDone}, s{sLim}")
        a.e(f"v_cmp_ne_u32 s[{sX0+2}:{sX0+3}], 0, v{vW0}")
    round_consts(a)
    a.lines = sav
    for x in mix(c.lines, dm): a.e(x)
    stamp(a, 1, 252)
    pf(1)
    stamp(a, 4, 252)
    a.e(f"s_waitcnt vmcnt({11 + (1 if cfg.pfm else 0) + (NPF if cfg.pfpos <= 1 else 0)})")
    stamp(a, 5, 252)
    a.e(f"v_mov_b32_dpp v{vOC}, v{RC} quad_perm:[0,0,0,0] row_mask:0xf bank_mask:0xf")
    a.label("K2_COUNT")
    def groups(fn, lab, order=range(8), extra=(), pre=()):
        c = Asm(); sav = a.lines; a.lines = c.lines
        for i in order: fn(i)
        a.lines = sav
        for x in mix(c.lines, list(extra)): a.e(x)
    KK = lambda i: 16 * (i >> 2) + (i & 3)
    na = lambda i: f"v_lshlrev_b32_sdwa v{NA+i}, 2, v{RC+i} dst_sel:BYTE_0 dst_unused:UNUSED_PAD src0_sel:DWORD src1_sel:BYTE_0"
    a.e(na(1))
    a.e(f"v_min_u32 v{vREM}, s{sT+7}, v{vOC}")
    a.e(f"v_sub_u32 v{vREM}, v{vREM}, v{vW0}")
    a.e(f"v_cmp_lt_u32 s[{sX0+6}:{sX0+7}], s{sT+7}, v{vOC}")
    a.e(f"v_cmp_lt_i32 s[{sX0}:{sX0+1}], 0, v{vREM}")
    a.e(na(0))
    def f_cnt(i):
        a.e(f"v_cmpx_lt_i32 vcc, {KK(i)}, v{vREM}")
        if i < 7: a.e(na(i + 1))
        a.e(f"ds_add_rtn_u32 v{RK+i}, v{NA+i}, v{vT} offset:{CNT}")
    groups(f_cnt, "K2_G1", order=range(1, 8))
    a.e(f"s_and_b64 s[{sX0}:{sX0+1}], s[{sX0}:{sX0+1}], s[{sX0+2}:{sX0+3}]")
    a.e(f"s_mov_b64 exec, s[{sX0}:{sX0+1}]")
    a.e(f"ds_add_rtn_u32 v{RK}, v{NA}, v{vT} offset:{CNT}")
    a.e(f"s_mov_b64 exec, s[{sX0+6}:{sX0+7}]")
    a.e(f"ds_write_b32 v{vT+1}, v{vT}")
    a.e("s_mov_b64 exec, -1")
    def f_ent(i):
        e0 = EN + 2 * i
        a.e(f"v_lshrrev_b32 v{e0}, 20, v{RC+i}")
        a.e(f"v_add_lshl_u32 v{e0}, v{e0}, v{vEB}, 5")
    groups(f_ent, "K2_G2")
    pf(2)
    a.e("s_waitcnt lgkmcnt(0)")
    a.e("s_barrier")
    stamp(a, 6, 252)
    a.e(f"ds_read_b32 v{vT+6}, v{vT+2} offset:{CNT}")
    a.e(f"ds_read_b32 v{vT+5}, v{vT+1}")
    def f_ent2(i):
        e1 = EN + 1 + 2 * i
        a.e(f"v_bfe_u32 v{e1}, v{RC+i}, 6, 14")
        a.e(f"v_mad_u32_u24 v{e1}, v{NA+i}, s{sT}, v{e1}")
    groups(f_ent2, "K2_G5")
    a.e("s_waitcnt lgkmcnt(0)")
    a.e(f"v_add_u32 v{vT+3}, 1, v{vT+6}")
    a.e(f"v_lshrrev_b32 v{vT+3}, 1, v{vT+3}")
    a.e(f"v_mov_b32 v{vT+4}, v{vT+3}")
    a.e(f"v_readfirstlane_b32 s{sMore}, v{vT+5}")
    fl = []
    for i in range(8):
        fl.append(f"v_add_u32 v{RC+i}, -1, v{RK+i}")
        fl.append(f"v_and_or_b32 v{EN+2*i}, v{RC+i}, s{sT+6}, v{EN+2*i}")
    v = vT + 4
    dpp = [f"v_add_u32_dpp v{v}, v{v}, v{v} row_shr:{sh} row_mask:0xf bank_mask:0xf bound_ctrl:0" for sh in (1, 2, 4, 8)]
    dpp += [f"v_add_u32_dpp v{v}, v{v}, v{v} row_bcast:15 row_mask:0xa bank_mask:0xf", f"v_add_u32_dpp v{v}, v{v}, v{v} row_bcast:31 row_mask:0xc bank_mask:0xf"]
    for j in range(6):
        a.e(fl[2*j]); a.e(fl[2*j+1]); a.e(dpp[j])
    a.e(fl[12])
    a.e(f"v_readlane_b32 s{sT+5}, v{vT+4}, 63")
    a.e(f"v_sub_u32 v{vT+4}, v{vT+4}, v{vT+3}")
    a.e(f"v_lshlrev_b32 v{vT+4}, 4, v{vT+4}")
    def f_perm(i):
        a.e(f"ds_bpermute_b32 v{NA+i}, v{NA+i}, v{vT+4}")
        if i >= 8:
            a.e(f"v_add_u32 v{RC+i}, -1, v{RK+i}")
            a.e(f"v_and_or_b32 v{EN+2*i}, v{RC+i}, s{sT+6}, v{EN+2*i}")
    groups(f_perm, "K2_G3")
    for x in fl[13:]: a.e(x)
    pf(3)
    a.e(f"s_cmp_gt_u32 s{sT+5}, 1025")
    a.e("s_cbranch_scc1 K2_TOOBIG")
    a.e(f"s_add_u32 s{sT}, s{sT+5}, 7")
    a.e(f"s_lshr_b32 s{sT}, s{sT}, 3")
    if cfg.ratio:
        a.e(f"s_mul_i32 s{sT+1}, s{sT}, {cfg.ratio}")
        a.e(f"s_add_u32 s{sT+1}, s{sT+1}, 63")
        a.e(f"s_lshr_b32 s{sT+1}, s{sT+1}, 6")
    else:
        a.e(f"s_add_u32 s{sT+1}, s{sT}, {cfg.bias}")
        a.e(f"s_lshr_b32 s{sT+1}, s{sT+1}, 4")
        a.e(f"s_lshl_b32 s{sT+1}, s{sT+1}, 3")
    a.e(f"s_min_u32 s{sT+1}, s{sT+1}, s{sT}")
    a.e(f"s_sub_u32 s{sT+2}, s{sT}, s{sT+1}")
    a.e(f"s_and_b32 s{sT+3}, s{sW}, 3")
    a.e(f"s_mul_i32 s{sT+3}, s{sT+3}, s{sT}")
    a.e(f"s_cmp_lt_u32 s{sW}, 4")
    a.e(f"s_cselect_b32 s{sL}, s{sT+1}, s{sT+2}")
    a.e(f"s_cselect_b32 s{sT+4}, 0, s{sT+1}")
    a.e(f"s_add_u32 s{sT+3}, s{sT+3}, s{sT+4}")
    a.e(f"s_lshl_b32 s{sT+3}, s{sT+3}, 5")
    a.e(f"s_add_u32 s{sT+3}, s{sT+3}, {LIST}")
    a.e(f"s_lshl_b32 s{sT+4}, s{sL}, 4")
    a.e(f"s_add_u32 s{sNT}, s{sL}, 7")
    a.e(f"s_lshr_b32 s{sNT}, s{sNT}, 3")
    a.e(f"s_cmp_eq_u32 s{sW}, 7")
    a.e("s_cbranch_scc0 K2_NODUM")
    a.e(f"v_mov_b32 v{vT+8}, 0x7ffffff0\nv_mov_b32 v{vT+9}, 0xffff\nv_mov_b32 v{vT+10}, 0x7ffffff0\nv_mov_b32 v{vT+11}, 0xffff")
    a.e(f"v_lshl_add_u32 v{vT+7}, v{vT+6}, 3, v{vT+4}")
    a.e(f"v_and_b32 v{vT+6}, 1, v{vT+6}")
    a.e(f"v_cmp_eq_u32 vcc, 1, v{vT+6}")
    a.e("s_mov_b64 exec, vcc")
    a.e(f"ds_write_b64 v{vT+7}, v[{vT+8}:{vT+9}] offset:{LIST}")
    a.e("s_mov_b32 exec_lo, -1\ns_mov_b32 exec_hi, 0x7f")
    a.e(f"v_add_lshl_u32 v{vT+7}, v{vL}, s{sT+5}, 4")
    a.e(f"ds_write_b128 v{vT+7}, v[{vT+8}:{vT+11}] offset:{LIST}")
    a.e("s_mov_b64 exec, -1")
    a.label("K2_NODUM")
    a.e("s_waitcnt lgkmcnt(0)")
    a.e(f"v_lshl_add_u32 v{NA}, v{RK}, 3, v{NA}")
    def f_place(i):
        a.e(f"v_cmpx_lt_i32 vcc, {KK(i)}, v{vREM}")
        a.e(f"v_lshl_add_u32 v{NA+i}, v{RK+i}, 3, v{NA+i}")
        a.e(f"ds_write_b64 v{NA+i}, v[{EN+2*i}:{EN+1+2*i}] offset:{LIST}")
    groups(f_place, "K2_G4", order=range(1, 8))
    a.e(f"s_mov_b64 exec, s[{sX0}:{sX0+1}]")
    a.e(f"ds_write_b64 v{NA}, v[{EN}:{EN+1}] offset:{LIST}")
    a.e("s_mov_b64 exec, -1")
    a.e(f"v_add_u32 v{vAE}, s{sT+3}, v{vAE}")
    a.e(f"v_add3_u32 v{vAP}, v{vAP}, s{sT+3}, 4")
    a.e(f"v_add3_u32 v{vAQ}, v{vAQ}, s{sT+3}, 6")
    a.e("s_mov_b32 exec_lo, 0xf0f0f0f0\ns_mov_b32 exec_hi, 0xf0f0f0f0")
    a.e(f"v_add_u32 v{vAE}, s{sT+4}, v{vAE}")
    a.e("s_mov_b32 exec_lo, 0\ns_mov_b32 exec_hi, -1")
    a.e(f"v_add_u32 v{vAP}, s{sT+4}, v{vAP}")
    a.e(f"v_add_u32 v{vAQ}, s{sT+4}, v{vAQ}")
    a.e("s_mov_b64 exec, -1")
    a.e(f"s_sub_u32 s{sT+1}, s{sT+1}, 1")
    a.e(f"s_sub_u32 s{sT+2}, s{sT+2}, 1")
    a.e(f"s_min_u32 s{sT+1}, s{sT+1}, s{sT+2}")
    a.e(f"v_cmp_lt_u32 s[{sSusp}:{sSusp+1}], s{sT+1}, v{vT+3}")
    a.e(f"s_cmp_eq_u32 s{sNT}, 0")
    a.e(f"s_cselect_b32 s{sP+2}, 0, {PSIZE}")
    a.e(f"s_cselect_b32 s{sE+2}, 0, {ESIZE}")
    a.e(f"s_cmp_eq_u32 s{sFirst}, 0")
    a.e(f"s_waitcnt vmcnt({NPF}) lgkmcnt(0)")
    a.e("s_barrier")
    a.e("s_cbranch_scc1 K2_PRO2")
    stamp(a, 7, 252)
    adv = [f"v_add_u32 v{r}, s{s256}, v{r}" for r in (vAE, vAP, vAQ)]
    def early_e1():
        return addr_e() + [f"s_cmp_lt_u32 s{sNT}, 2", f"s_cselect_b32 s{sE+2}, 0, s{sE+2}", e_load(1)]
    def prologue(a, first):
        for s in list_reads_se() + list_reads_n(): a.e(s)
        if first:
            for st in range(8):
                if st == 0: a.e(f"ds_read_b128 v[{XF}:{XF+3}], v{vXA}")
                else:
                    r = vT + (st & 1)
                    a.e(f"v_xor_b32 v{r}, {32*st}, v{vXA}")
                    a.e(f"ds_read_b128 v[{XF+4*st}:{XF+4*st+3}], v{r}")
        a.e(f"s_waitcnt lgkmcnt({8 if first else 0})")
        for s in addr_se() + addr_q(0): a.e(s)
        for s in list_reads_se(1): a.e(s)
        for s in flags_from_vcc(sF0): a.e(s)
        d0 = dma_ops(0, "alt"); d1 = dma_ops(1)
        fr = Asm()
        if first:
            a.e(f"v_add_u32 v{vT+3}, {STG + 4096}, v{vWA}")
            wfrag_read(fr, W2F, vT+3, 0, 8192)
            wfrag_read(fr, WU1F, vWA, WU1L)
            for c in range(4):
                fr.e(f"ds_read_b128 v[{W3+4*c}:{W3+4*c+3}], v{vW3A} offset:{1024*c}")
        n4 = len(fr.lines) // 4
        if cfg.e0f: a.e(e_load(0))
        for s in d0[0] + fr.lines[:n4] + d0[1] + fr.lines[n4:2*n4]: a.e(s)
        if not cfg.e0f: a.e(e_load(0))
        for s in fr.lines[2*n4:3*n4]: a.e(s)
        a.e(f"v_cmp_ne_u32 vcc, v{vLA}, v{vCL}")
        a.e(f"v_mov_b32_dpp v{vFA}, v{vQA} row_newbcast:0 row_mask:0xf bank_mask:0xf")
        a.e(f"v_mov_b32 v{vLA0}, v{vLA}")
        for s in d0[2] + fr.lines[3*n4:]: a.e(s)
        a.e(f"s_cmp_eq_u32 s{sNT}, 0")
        a.e(f"s_cselect_b32 s{sDm}, -1, vcc_lo")
        a.e(f"v_lshl_add_u32 v{vFA}, v{vFA}, 1, v{vCA}")
        for s in d0[3]: a.e(s)
        if first:
            a.e(f"s_lshr_b32 s{sT+1}, s{sW}, 2")
            a.e(f"s_lshl_b32 s{sT+1}, s{sT+1}, 5")
            a.e(f"v_add_u32 v{vT+1}, s{sT+1}, v{vM}")
            a.e(f"v_mul_u32_u24 v{vT+2}, 264, v{vT+1}")
            a.e(f"v_lshl_add_u32 v{vT+2}, v{vH16}, 1, v{vT+2}")
            a.e(f"s_and_b32 s{sT+1}, s{sW}, 3")
            a.e(f"s_lshl_b32 s{sT+1}, s{sT+1}, 6")
            a.e(f"v_add_u32 v{vT+2}, s{sT+1}, v{vT+2}")
            a.e(f"v_cmp_gt_u32 s[{sX0}:{sX0+1}], 49, v{vT+1}")
            a.e(f"v_lshlrev_b32 v{vT}, 4, v0")
            a.e(f"v_mov_b32 v{vT+8}, 0\nv_mov_b32 v{vT+9}, 0\nv_mov_b32 v{vT+10}, 0\nv_mov_b32 v{vT+11}, 0")
            a.e(f"s_movk_i32 s{sT+1}, {49*528//16 - 1536}")
            a.e(f"v_cmp_gt_u32 s[{sX0+2}:{sX0+3}], s{sT+1}, v0")
            a.e(f"s_mov_b32 s{sT}, {LOG2E_NEG}")
            a.e(f"s_mov_b32 s{sT+1}, {LOG2E_NEG}")
            stamp(a, 44, 252)
            a.e("s_waitcnt lgkmcnt(0)")
            g = Asm(); gemm8(g, QACC, W2F, XF)
            for x in g.lines: a.e(x)
            g = Asm(); gemm8(g, ACX, WU1F, XF)
            q = [f"v_mul_f32 v{QACC+i}, s{sT}, v{QACC+i}" for i in range(16)] + [f"v_cvt_pk_bf16_f32 v{QACC+i}, v{QACC+2*i}, v{QACC+1+2*i}" for i in range(8)]
            a.e(g.lines[0])
            if cfg.e1e:
                for x in early_e1(): a.e(x)
                a.e("s_nop 5")
            else:
                a.e("s_nop 9")
            for j in range(3):
                a.e(g.lines[1+j])
                for x in q[j*8:j*8+8]: a.e(x)
            a.e(f"s_mov_b64 exec, s[{sX0}:{sX0+1}]")
            for gg in range(4):
                a.e(f"ds_write_b64 v{vT+2}, v[{QACC+2*gg}:{QACC+1+2*gg}] offset:{QL + 8*gg}")
            a.e("s_mov_b64 exec, -1")
            a.e("s_barrier")
            for j in range(3):
                a.e(f"ds_write_b128 v{vT}, v[{vT+8}:{vT+11}] offset:{AGG + j*8192}")
            a.e(g.lines[4])
            a.e(f"s_mov_b64 exec, s[{sX0+2}:{sX0+3}]")
            a.e(f"ds_write_b128 v{vT}, v[{vT+8}:{vT+11}] offset:{AGG + 3*8192}")
            a.e("s_mov_b64 exec, -1")
            for s in d1[0]: a.e(s)
            a.e(g.lines[5])
            a.e("s_waitcnt lgkmcnt(0)")
            a.e("s_barrier")
            stamp(a, 45, 252)
            for j in range(1, 4):
                for s in d1[j]: a.e(s)
                if j < 3: a.e(g.lines[5+j])
        else:
            if cfg.e1e:
                a.e("s_waitcnt lgkmcnt(0)")
                for x in early_e1(): a.e(x)
            for s in sum(d1, []): a.e(s)
        a.e(f"s_cmp_lt_u32 s{sNT}, 2")
        a.e(f"s_cselect_b32 s{sP+2}, 0, s{sP+2}")
        a.e(f"s_cselect_b32 s{sE+2}, 0, s{sE+2}")
        if not first: a.e("s_waitcnt lgkmcnt(0)")
        for s in addr_se(): a.e(s)
        for s in list_reads_se(2) + list_reads_n(1): a.e(s)
        for s in flags_from_vcc(sF1): a.e(s)
    prologue(a, True)
    rare.label("K2_PRO2")
    rare.e("s_waitcnt vmcnt(0)")
    prologue(rare, False)
    rare.e("s_branch K2_NOX")
    stamp(a, 42, 252)
    for i in range(8):
        a.e(f"v_pk_mul_f32 {p2(ACX+2*i)}, {p2(ACX+2*i)}, s[{sT}:{sT+1}]")
    a.label("K2_NOX")
    stamp(a, 43, 252)
    a.e(f"s_cmp_eq_u32 s{sNT}, 0")
    a.e("s_cbranch_scc1 K2_NOTILES")
    a.e(f"ds_read_b128 v[{AQ}:{AQ+3}], v{vLA0}")
    for s in qfrag_reads(QY, 0, 0) + qfrag_reads(QX, 1, 0): a.e(s)
    if cfg.t1pos == 1:
        if not cfg.e1e: a.e(e_load(1))
        dma_half(a, 0)
    for i in range(4): a.e(f"v_mov_b32 v{AP+i}, 0")
    for i in range(4):
        shf = 16 * (i >> 1) + 4 * (i & 1)
        a.e(f"s_mov_b32 exec_lo, {hex(0xf << shf)}\ns_mov_b32 exec_hi, {hex(0xf << (shf + 8))}")
        a.e(f"v_mov_b32 v{AP+i}, 0x3f80")
    a.e("s_mov_b64 exec, -1")
    a.e(f"v_and_b32 v{IDX}, 3, v{vL}")
    a.e(f"v_mul_u32_u24 v{IDX}, 0x5555, v{IDX}")
    a.e(f"s_add_u32 s{sMA}, s{sM0}, {4096 - 128 + 256}")
    a.e(f"s_add_u32 s{sMB}, s{sM0}, 256")
    a.e(f"s_and_b32 s{sT}, s{sL}, 6")
    a.e(f"s_and_b32 s{sT+1}, s{sL}, 1")
    a.e(f"s_lshl1_add_u32 s{sT}, s{sT}, s{sT+1}")
    a.e(f"s_lshl_b32 s{sT}, s{sT}, 1")
    a.e(f"s_cselect_b32 s{sT+1}, 1, 0")
    a.e(f"s_lshl_b32 s{sEX+1}, s{sT+1}, s{sT}")
    a.e(f"s_lshl_b32 s{sEX}, s{sEX+1}, 1")
    a.e(f"s_cmp_eq_u32 s{sNT}, 1")
    a.e(f"s_cselect_b64 s[{sT}:{sT+1}], s[{sEX}:{sEX+1}], 0")
    a.e(f"s_or_b64 s[{sF0}:{sF0+1}], s[{sF0}:{sF0+1}], s[{sT}:{sT+1}]")
    for c in range(4):
        a.e(f"v_mov_b32 v{NN+2*c}, 0\nv_mov_b32 v{NN+2*c+1}, 0\nv_mov_b32 v{DD+2*c}, 1.0\nv_mov_b32 v{DD+2*c+1}, 1.0")
    a.e(f"v_mov_b32 v{vCUR}, v{vSD}\nv_mov_b32 v{vCUR+1}, v{vSD}")
    for c in range(4): a.e(f"v_mov_b32 v{ACC+c}, 0")
    a.e(f"s_sub_u32 s{sT}, s{sW4k}, s{sM0}")
    a.e(f"s_add_u32 s{sT}, s{sT}, {WU2 - 256}")
    a.e(f"v_add_u32 v{vT}, s{sT}, v{vRP0}")
    a.e(f"v_add_u32 v{vT+1}, s{sT}, v{vRP1}")
    stamp(a, 46, 252)
    a.e(f"s_waitcnt vmcnt({4 + cfg.e1e})" if cfg.t1pos == 2 else "s_waitcnt vmcnt(9)")
    stamp(a, 47, 252)
    for s in pfrag_reads(PY, 0, vT): a.e(s)
    mf = mfmas(0, PY, QY, 0)
    a.e("s_waitcnt lgkmcnt(8)")
    for s in mf[:4]: a.e(s)
    a.e("s_waitcnt lgkmcnt(0)")
    for s in mf[4:]: a.e(s)
    if cfg.t1pos == 2:
        if not cfg.e1e: a.e(e_load(1))
        dma_half(a, 0)
    stamp(a, 8, 252)
    if cfg.dbg:
        a.e("s_memtime s[90:91]\ns_waitcnt lgkmcnt(0)\nv_writelane_b32 v252, s90, 14")
    a.e(f"s_sub_u32 s{sCnt}, s{sNT}, 1")
    a.e(f"s_waitcnt vmcnt({5 - cfg.e1e})")
    stamp(a, 48, 252)
    for s in pfrag_reads(PX, 1): a.e(s)
    def lstamp(x):
        if not cfg.lst: return
        a.e("s_memrealtime s[90:91]")
        a.e(f"s_lshl_b32 s92, s{sCnt}, 1")
        a.e(f"s_add_u32 s92, s92, {x+2}")
        a.e("s_mov_b32 m0, s92")
        a.e("s_waitcnt lgkmcnt(0)")
        a.e("v_writelane_b32 v252, s90, m0")
    def iteration(par):
        exA = {
            0: addr_q(1 - par),
            1: qfrag_reads(QY, 0, 1 - par),
            2: [f"s_mov_b32 m0, s{sMA}", "s_waitcnt lgkmcnt(4)"] + dma_ld(1)[:2],
            3: dma_ld(1)[2:],
            4: [f"ds_read_b128 v[{AQ}:{AQ+3}], v{vLA}",
                f"s_cmp_lt_u32 s{sCnt}, 2", f"s_cbranch_scc1 WU2_{par}", f"WU2R_{par}:"],
            7: ["s_waitcnt vmcnt(4) lgkmcnt(0)"] + pfrag_reads(PY, 0),
        }
        half_step(a, ool, 0, par, exA, f"A{par}")
        ool.label(f"WU2_{par}")
        ool.e(f"s_mov_b32 s{sP+2}, 0")
        ool.e(f"s_mov_b32 s{sE+2}, 0")
        sFn = (sF1, sF0)[par]
        ool.e(f"s_or_b64 s[{sFn}:{sFn+1}], s[{sFn}:{sFn+1}], s[{sEX}:{sEX+1}]")
        ool.e(f"s_cmp_lg_u32 s{sCnt}, 0")
        ool.e(f"s_cbranch_scc1 WU2R_{par}")
        w_dma(ool, sWu, vWC, sW4k, 32768, WU2, sT)
        ool.e(f"s_branch WU2R_{par}")
        mf = mfmas(2, PX, QX, par)
        ool.label(f"EXA{par}_1")
        ool.e("s_waitcnt lgkmcnt(0)")
        ool.e(mf[2])
        ool.label(f"EXA{par}_2")
        ool.e(mf[3])
        ool.label(f"EXA{par}_3")
        ool.e(mf[4])
        w_dma(ool, sWu, vWC, sW4k, 32768, WU2, sT)
        ool.label(f"EXA{par}_4")
        ool.e(mf[5])
        ool.e("s_nop 7")
        ool.label(f"EXA{par}_5")
        ool.e(f"s_branch R_A{par}_7")
        exB = {
            0: qfrag_reads(QX, 1, 1 - par),
            1: addr_se(),
            2: [f"s_mov_b32 m0, s{sMB}", "s_waitcnt lgkmcnt(4)"] + dma_ld(0)[:2],
            3: dma_ld(0)[2:] + [e_load(par)],
            4: list_reads_se(3 + par) + list_reads_n(2 + par),
            5: adv if par else [],
            7: ["s_waitcnt vmcnt(5) lgkmcnt(0)"] + pfrag_reads(PX, 1),
        }
        lstamp(17)
        half_step(a, ool, 1, par, exB, f"B{par}")
        lstamp(16)
        for s in flags_from_vcc((sF0, sF1)[par]): a.e(s)
        a.e(f"s_sub_u32 s{sCnt}, s{sCnt}, 1")
    a.label("K2_LOOP")
    iteration(0)
    a.e("s_cbranch_scc1 K2_LEND")
    iteration(1)
    a.e("s_cbranch_scc0 K2_LOOP")
    a.label("K2_LEND")
    stamp(a, 9, 252)
    if cfg.dbg:
        a.e("s_memtime s[90:91]\ns_waitcnt lgkmcnt(0)\nv_writelane_b32 v252, s90, 15")
    flush_code(a, 0, 0)
    a.e(f"ds_write2_b32 v{vCUR}, v{ACC}, v{ACC+1} offset1:32")
    flush_code(a, 2, 1, wait=False)
    a.e(f"ds_write2_b32 v{vCUR+1}, v{ACC+2}, v{ACC+3} offset0:64 offset1:96")
    a.label("K2_AFTER")
    a.e(f"s_mov_b32 s{sFirst}, 0")
    a.e(f"s_bitcmp0_b32 s{sDm}, 0")
    a.e(f"s_cselect_b32 s{sX0+2}, -1, 0")
    a.e(f"s_bitcmp0_b32 s{sDm}, 4")
    a.e(f"s_cselect_b32 s{sX0+3}, -1, 0")
    a.e(f"s_lshr_b32 s{sT+1}, s{sW}, 2")
    a.e(f"s_lshl_b32 s{sT+2}, s{sT+1}, 5")
    a.e(f"v_add_u32 v{vT+8}, s{sT+2}, v{vM}")
    a.e(f"v_mul_u32_u24 v{vT+9}, 528, v{vT+8}")
    a.e(f"v_cmp_gt_u32 s[{sX0}:{sX0+1}], 49, v{vT+8}")
    a.e(f"s_and_b32 s{sT+2}, s{sW}, 3")
    a.e(f"s_lshl_b32 s{sT+2}, s{sT+2}, 7")
    a.e(f"v_lshl_add_u32 v{vT+5}, v{vH16}, 1, s{sT+2}")
    a.e(f"v_add_u32 v{vT+6}, v{vT+9}, v{vT+5}")
    a.e(f"v_add_u32 v{vT+4}, {WU2}, v{vWA}")
    a.e(f"s_add_u32 s{sT+2}, s{sM0}, {256 + 4096}")
    a.e(f"v_lshl_add_u32 v{vT+2}, v{vL}, 4, s{sT+2}")
    a.e(f"s_lshl_b32 s{sT+1}, s{sT+1}, 15")
    a.e(f"s_add_u32 s{sT+1}, s{sT+1}, {STG + 4096}")
    a.e(f"v_lshl_add_u32 v{vT+3}, v{vL}, 4, s{sT+1}")
    a.e(f"s_or_b32 s{sT}, s{sSusp}, s{sSusp+1}")
    a.e(f"s_or_b32 s{sT}, s{sT}, s{sMore}")
    a.e("s_cbranch_scc1 K2_SLOWM")
    a.e(f"s_and_b32 exec_lo, s{sX0+2}, 1")
    a.e(f"s_and_b32 exec_hi, s{sX0+3}, 1")
    a.e(f"ds_write_b32 v{vFA}, v{vSD} offset:512")
    a.label("K2_MERGED")
    a.e(f"s_mov_b64 exec, s[{sX0}:{sX0+1}]")
    a.e("s_waitcnt vmcnt(0) lgkmcnt(0)")
    a.e("s_barrier")
    stamp(a, 49, 252)
    a.e(f"s_cmp_lg_u32 s{sMore}, 0")
    a.e("s_cbranch_scc1 K2_MORE")
    wf = Asm(); wfrag_read(wf, 128, vT+4)
    a.e(f"ds_read_b32 v{vT+7}, v{vT+9} offset:{AGG + 512}")
    for j, o in enumerate((0, 16, 64, 80)):
        a.e(f"ds_read_b128 v[{64+4*j}:{67+4*j}], v{vT+6} offset:{AGG + o}")
    a.e("s_waitcnt lgkmcnt(4)")
    a.e(f"v_cmpx_ne_u32 vcc, 0, v{vT+7}")
    a.e(f"v_add_u32 v{vT+7}, v{vT+7}, v{vT+5}")
    for j, o in enumerate((0, 16, 64, 80)):
        a.e(f"ds_read_b128 v[{80+4*j}:{83+4*j}], v{vT+7} offset:{o}")
    a.e("s_mov_b64 exec, -1")
    for x in wf.lines[:8]: a.e(x)
    a.e("s_mov_b64 exec, vcc")
    for j in range(4):
        a.e(f"s_waitcnt lgkmcnt({11-j})")
        for i in range(2):
            r = 64 + 4*j + 2*i
            a.e(f"v_pk_add_f32 {p2(r)}, {p2(r)}, {p2(r+16)}")
    a.e("s_mov_b64 exec, -1")
    for j in range(2):
        for i in range(4):
            a.e(f"v_cvt_pk_bf16_f32 v{96+4*j+i}, v{64+8*j+2*i}, v{65+8*j+2*i}")
        a.e(f"ds_write_b128 v{vT+2}, v[{96+4*j}:{99+4*j}] offset:{1024*j}")
    for x in wf.lines[8:]: a.e(x)
    a.e("s_waitcnt lgkmcnt(8)")
    a.e("s_barrier")
    stamp(a, 10, 252)
    for st in range(8):
        a.e(f"ds_read_b128 v[{64+4*st}:{67+4*st}], v{vT+3} offset:{(st>>1)*8192 + (st&1)*1024}")
    if cfg.owt:
        a.e(f"v_mul_u32_u24 v{vT+10}, 80, v{vM}")
        a.e(f"v_lshl_add_u32 v{vT+10}, v{vH16}, 1, v{vT+10}")
        a.e(f"s_add_u32 s{sT+1}, s{sM0}, 256")
        a.e(f"v_add_u32 v{vT+10}, s{sT+1}, v{vT+10}")
        a.e(f"v_lshrrev_b32 v{vT+12}, 2, v{vL}")
        a.e(f"v_and_b32 v{vT+14}, 3, v{vL}")
        a.e(f"v_lshlrev_b32 v{vT+14}, 4, v{vT+14}")
        a.e(f"v_lshl_add_u32 v{vT+13}, v{vT+12}, 8, v{vT+14}")
        a.e(f"v_mul_u32_u24 v{vT+12}, 80, v{vT+12}")
        a.e(f"v_add3_u32 v{vT+12}, v{vT+12}, v{vT+14}, s{sT+1}")
        a.e(f"s_lshr_b32 s{sT+3}, s{sW}, 2")
        a.e(f"s_lshl_b32 s{sT+3}, s{sT+3}, 13")
        a.e(f"s_and_b32 s{sT+4}, s{sW}, 3")
        a.e(f"s_lshl_b32 s{sT+4}, s{sT+4}, 6")
        a.e(f"s_add_u32 s{sT+3}, s{sT+3}, s{sT+4}")
        a.e(f"v_add_u32 v{vT+13}, s{sT+3}, v{vT+13}")
    else:
        a.e(f"v_mul_u32_u24 v{vT+10}, 272, v{vT+8}")
        a.e(f"v_lshl_add_u32 v{vT+10}, v{vH16}, 1, v{vT+10}")
        a.e(f"s_and_b32 s{sT+1}, s{sW}, 3")
        a.e(f"s_lshl_b32 s{sT+1}, s{sT+1}, 6")
        a.e(f"s_add_u32 s{sT+1}, s{sT+1}, {STG}")
        a.e(f"v_add_u32 v{vT+10}, s{sT+1}, v{vT+10}")
        a.e(f"v_lshrrev_b32 v{vT+12}, 4, v0")
        a.e(f"v_lshlrev_b32 v{vT+13}, 4, v0")
        a.e(f"v_lshl_add_u32 v{vT+12}, v{vT+12}, 4, v{vT+13}")
        a.e(f"v_add_u32 v{vT+12}, {STG}, v{vT+12}")
    for st in range(8):
        a.e(f"s_waitcnt lgkmcnt({7-st})")
        c = f"v[{ACX}:{ACX+15}]" if st == 0 else "v[160:175]"
        a.e(f"v_mfma_f32_32x32x16_bf16 v[160:175], v[{128+4*st}:{131+4*st}], v[{64+4*st}:{67+4*st}], {c}")
    a.e(f"s_mov_b32 s{sT+1}, {LOG2E_NEG}")
    a.e(f"s_mov_b32 s{sT}, {LOG2E_NEG}")
    stamp(a, 50, 252)
    a.e(f"s_mov_b32 s{sT+2}, 0x7b800000")
    a.e(f"v_cmp_le_f32 s[{sX0+2}:{sX0+3}], s{sT+2}, v{vCHK}")
    a.e(f"v_mov_b32 v{vT+11}, 0x207")
    a.e("s_nop 6")
    a.e(f"v_cmp_class_f32 vcc, v160, v{vT+11}")
    for hf in range(2):
        R = range(8 * hf, 8 * hf + 8)
        for i in R: a.e(f"v_exp_f32 v{64+i}, v{160+i}")
        if hf == 0:
            a.e(f"s_and_b64 vcc, vcc, s[{sX0}:{sX0+1}]")
            a.e(f"s_or_b64 s[{sX0+2}:{sX0+3}], vcc, s[{sX0+2}:{sX0+3}]")
        if hf: a.e("s_nop 0")
        for i in R[::2]: a.e(f"v_pk_fma_f32 {p2(64+i)}, {p2(64+i)}, s[{sT}:{sT+1}], s[{sT}:{sT+1}]")
        for i in R: a.e(f"v_rcp_f32 v{64+i}, v{64+i}")
        for i in R[::2]: a.e(f"v_pk_mul_f32 {p2(64+i)}, {p2(160+i)}, {p2(64+i)}")
        for i in range(4 * hf, 4 * hf + 4): a.e(f"v_cvt_pk_bf16_f32 v{80+i}, v{64+2*i}, v{65+2*i}")
        o = " offset:16" if hf else ""
        a.e(f"ds_write_b128 v{vT+10}, v[{80+4*hf}:{83+4*hf}]{o}")
    if cfg.owt:
        a.e(f"ds_read_b128 v[88:91], v{vT+12}")
        a.e(f"ds_read_b128 v[92:95], v{vT+12} offset:{16*80}")
        a.e(f"v_mov_b32 v{vT}, 1")
        a.e(f"v_mov_b32 v{vT+1}, {FLG+4}")
        a.e(f"s_movk_i32 s{sT+1}, 4096")
        a.e("s_waitcnt lgkmcnt(1)")
        a.e(f"buffer_store_dwordx4 v[88:91], v{vT+13}, s[{sO}:{sO+3}], 0 offen {cfg.o_pol}")
        a.e("s_waitcnt lgkmcnt(0)")
        a.e(f"buffer_store_dwordx4 v[92:95], v{vT+13}, s[{sO}:{sO+3}], s{sT+1} offen {cfg.o_pol}")
        a.e(f"s_mov_b64 exec, s[{sX0+2}:{sX0+3}]")
        a.e(f"ds_write_b32 v{vT+1}, v{vT}")
        a.e("s_mov_b64 exec, -1")
        a.e("s_waitcnt lgkmcnt(0)")
        a.e("s_barrier")
        a.e(f"ds_read_b32 v{vT}, v{vT+1}")
    else:
        a.e(f"v_mov_b32 v{vT}, 1")
        a.e(f"v_mov_b32 v{vT+1}, {FLG+4}")
        a.e(f"s_mov_b64 exec, s[{sX0+2}:{sX0+3}]")
        a.e(f"ds_write_b32 v{vT+1}, v{vT}")
        a.e("s_mov_b64 exec, -1")
        a.e(f"s_movk_i32 s{sT+1}, 8192")
        a.e("s_waitcnt lgkmcnt(0)")
        stamp(a, 51, 252)
        a.e("s_barrier")
        stamp(a, 52, 252)
        a.e(f"ds_read_b128 v[88:91], v{vT+12}")
        a.e(f"ds_read_b128 v[92:95], v{vT+12} offset:{32*272}")
        a.e(f"ds_read_b32 v{vT}, v{vT+1}")
        a.e("s_waitcnt lgkmcnt(2)")
        a.e(f"buffer_store_dwordx4 v[88:91], v{vT+13}, s[{sO}:{sO+3}], 0 offen {cfg.o_pol}")
        a.e("s_waitcnt lgkmcnt(1)")
        a.e(f"buffer_store_dwordx4 v[92:95], v{vT+13}, s[{sO}:{sO+3}], s{sT+1} offen {cfg.o_pol}")
    stamp(a, 11, 252)
    if cfg.dbg:
        a.e("s_waitcnt vmcnt(0)")
        a.e(f"v_writelane_b32 v252, s{sNT}, 13")
    stamp(a, 12, 252)
    stamp_out(a, 252, 253, 1)
    if cfg.x: a.e("s_branch K2_END")
    a.e("s_waitcnt lgkmcnt(0)")
    a.e(f"v_readfirstlane_b32 s{sT}, v{vT}")
    a.e(f"s_cmp_lg_u32 s{sSafe}, 0")
    a.e("s_cbranch_scc1 K2_END")
    a.e(f"s_cmp_lg_u32 s{sT}, 0")
    a.e("s_cbranch_scc1 K2_SAFE")
    a.label("K2_END")
    a.e("s_endpgm")
    a.lines += ool.lines
    a.label("K2_CODE_END")
    a.lines += rare.lines
    a.label("K2_NOTILES")
    a.e("s_waitcnt vmcnt(0)")
    w_dma(a, sWu, vWC, sW4k, 32768, WU2, sT)
    a.e("s_branch K2_AFTER")
    a.label("K2_SLOWM")
    for c in range(4):
        a.e(f"ds_read_b32 v{vT+16+c}, v{vSD} offset:{128*c}")
    a.e("s_waitcnt vmcnt(0) lgkmcnt(0)")
    a.e("s_barrier")
    a.e(f"s_mov_b64 exec, s[{sX0+2}:{sX0+3}]")
    for c in range(4):
        a.e(f"ds_add_f32 v{vFA}, v{vT+16+c} offset:{128*c}")
    a.e("s_branch K2_MERGED")
    a.label("K2_SAFE")
    a.e("s_waitcnt vmcnt(0)")
    a.e("s_barrier")
    a.e(f"s_mov_b32 s{sSafe}, -1")
    a.e(f"s_mov_b32 s{sDone}, 0")
    reset_round(a, True)
    a.e("s_branch K2_ROUND")
    a.label("K2_MORE")
    a.e("s_mov_b64 exec, -1")
    a.e(f"s_add_u32 s{sDone}, s{sDone}, s{sLim}")
    a.e("s_branch K2_RESET")
    a.label("K2_TOOBIG")
    a.e("s_barrier")
    a.e(f"s_mov_b32 s{sLim}, 16")
    a.label("K2_RESET")
    reset_round(a, False)
    a.label("K2_ROUND")
    srd(a, sR, S_WS, off_c=cfg.wsoff + WS_S01, size=WS_OFFT + 262144 - WS_S01)
    a.e(f"v_and_b32 v{t}, 0x1fc, v0")
    a.e(f"s_lshl_b32 s{sT}, s{sBin}, 10")
    a.e(f"s_add_u32 s{sT}, s{sT}, {WS_OFFT - WS_S01}")
    a.e(f"v_mov_b32 v{vROFF}, 0")
    a.e(f"v_cmp_lt_u32 vcc, 32, v{vOC}")
    a.e("s_mov_b64 exec, vcc")
    a.e(f"buffer_load_dword v{vROFF}, v{t}, s[{sR}:{sR+3}], s{sT} offen")
    a.e("s_mov_b64 exec, -1")
    a.e(f"v_and_b32 v{vW0}, 3, v0")
    a.e(f"v_lshlrev_b32 v{vW0}, 2, v{vW0}")
    a.e(f"v_add_u32 v{vW0}, s{sDone}, v{vW0}")
    a.e(f"s_lshl_b32 s{sT}, s{sBin}, 7")
    a.e(f"v_lshl_add_u32 v{t}, v{t}, 13, s{sT}")
    a.e(f"s_mov_b32 s{sT}, {WS_REC - WS_S01 - 4}")
    a.e("s_waitcnt vmcnt(0)")
    a.e(f"v_add_u32 v{t+2}, v{vEB}, v{vROFF}")
    a.e(f"v_lshl_add_u32 v{t+2}, v{t+2}, 2, s{sT}")
    for g in range(2):
        a.e(f"v_add_u32 v{t+3}, {16*g}, v{vW0}")
        a.e(f"v_cmp_gt_u32 vcc, 32, v{t+3}")
        a.e("s_nop 1")
        a.e(f"v_cndmask_b32 v{t+4+g}, v{t+2}, v{t}, vcc")
        a.e(f"v_lshl_add_u32 v{t+4+g}, v{t+3}, 2, v{t+4+g}")
        a.e(f"buffer_load_dwordx4 v[{RC+4*g}:{RC+4*g+3}], v{t+4+g}, s[{sR}:{sR+3}], 0 offen")
    round_consts(a)
    a.e("s_waitcnt vmcnt(0) lgkmcnt(0)")
    a.e("s_barrier")
    a.e("s_branch K2_COUNT")

HEADER = open("cdna_kernels/" + NAME + ".s.ref").read().split("; Override launch")[0]
def generate():
    a = Asm()
    gen_k1(a)
    gen_k2(a)
    if cfg.rep:
        k, wg, idx, j0, j1 = ([int(v) for v in cfg.rep.split(",")] + [0, 4])[:5]
        kernel_head(a, "rep_kernel")
        a.e("s_load_dwordx2 s[20:21], s[0:1], 64")
        a.e("s_cmp_lg_u32 s2, 0")
        a.e("s_cbranch_scc1 REP_END")
        a.e("s_waitcnt lgkmcnt(0)")
        srd(a, 8, S_WS, off_c=WS_DBG, size=0x200000)
        op = "max" if wg == 1 else "min"
        a.e("v_lshlrev_b32 v1, 11, v0")
        a.e(f"v_add_u32 v2, {k*0x100000 + idx*4}, v1")
        for j in range(4):
            a.e(f"s_mov_b32 s12, {j*64*2048}")
            a.e(f"buffer_load_dword v{4+j}, v1, s[8:11], s12 offen")
            a.e(f"buffer_load_dword v{8+j}, v2, s[8:11], s12 offen")
        a.e("s_waitcnt vmcnt(0)")
        for j in range(1, 4):
            a.e(f"v_min_u32 v4, v4, v{4+j}")
            if j0 < j < j1: a.e(f"v_{op}_u32 v{8+j0}, v{8+j0}, v{8+j}")
        a.e(f"v_mov_b32 v8, v{8+j0}")
        a.e("s_nop 1")
        a.e("v_readlane_b32 s12, v4, 0")
        a.e("v_readlane_b32 s13, v8, 0")
        for l in range(1, 63):
            a.e(f"v_readlane_b32 s14, v4, {l}")
            a.e(f"v_readlane_b32 s15, v8, {l}")
            a.e("s_min_u32 s12, s12, s14")
            a.e(f"s_{op}_u32 s13, s13, s15")
        a.e("s_sub_u32 s12, s13, s12")
        a.e("s_min_u32 s12, s12, 8000")
        a.e("s_lshl_b32 s12, s12, 2")
        a.e("s_memrealtime s[14:15]")
        a.e("s_waitcnt lgkmcnt(0)")
        a.label("REP_L")
        a.e("s_memrealtime s[16:17]")
        a.e("s_waitcnt lgkmcnt(0)")
        a.e("s_sub_u32 s13, s16, s14")
        a.e("s_cmp_lt_u32 s13, s12")
        a.e("s_cbranch_scc1 REP_L")
        a.label("REP_END")
        a.e("s_endpgm")
    if cfg.align:
        a.lines, bad = align_pass(a.lines, "K2_LOOP" if cfg.align < 3 else "prep_kernel", "K2_CODE_END", cfg.align == 2)
        print("misaligned left:", bad, file=sys.stderr)
    body = a.text()
    probs = check_text(body)
    for p in probs: print("HAZARD", p, file=sys.stderr)
    k1lds = K1_LDS_B
    out = HEADER
    out += f"; @launch kernel=prep_kernel grid=(256,1,1) block=(512,1,1) lds={k1lds}\n"
    out += f"; @launch kernel={NAME}_kernel grid=(256,1,1) block=(512,1,1) lds={K2_LDS}\n"
    if cfg.rep: out += "; @launch kernel=rep_kernel grid=(1,1,1) block=(64,1,1) lds=0\n"
    out += '.amdgcn_target "amdgcn-amd-amdhsa--gfx950"\n' + body
    out += '.section .rodata,"a"\n.p2align 6\n' + kernel_desc("prep_kernel", 200 if cfg.dbg else 160, 96 if cfg.dbg else 80) + ".p2align 6\n" + kernel_desc(NAME + "_kernel", 256, 96)
    if cfg.rep: out += ".p2align 6\n" + kernel_desc("rep_kernel", 16, 32)
    return out

if __name__ == "__main__":
    outp = sys.argv[1]
    for kv in sys.argv[2:]:
        k, v = kv.split("=", 1)
        cur = getattr(cfg, k)
        setattr(cfg, k, (v not in ("0", "False")) if isinstance(cur, bool) else int(v, 0) if isinstance(cur, int) else v)
    open(outp, "w").write(generate())
```

```python
import sys
from asmlib import *

NAME = "gather_scatter__mpnn_edge_mlp__graph"
class Cfg:
    modeA = False
    wsoff = 0
    st_pol = "sc1"
    ld_pol = "nt"
    e_pol = ""
    prefetchP = 1
    pf0 = False
    early = True
    o_pol = "sc1"
    ot_pol = ""
    touch = 1
    etouch = 0
    epos = 1
    align = 1
    prio = 2
    bias = 14
    gran = 0
    k1t = 0
    k1d = 0
    tlb = 0
    cw = 0
    g_pol = ''
    s_pol = ''
    owt = 1
    k1w = 0
    e1e = 0
    e0f = 0
    few = False
    spf = 0
    ratio = 0
    k1o = 0
    p_pol = 'sc1'
    pfm = 0
    pfmpos = 5
    pfe = 0
    et_pol = ''
    t1pos = 1
    pfn = 320
    pfpos = 1
    nw = '4,4,4,4'
    x_pol = ""
    dbg = False
    lst = False
    x = ""
    rep = ""
cfg = Cfg()

NB = 250; NPB = 50; CH = 1600
WS_P = 4096; WS_S01 = 0x320000; WS_REC = 0x900000; WS_OFFT = 0xA90000; WS_W3F = 0xAD0000; WS_WF = 0xAE0000
LOG2E_NEG = "0xbfb8aa3b"
LN2_NEG = "0xbf317218"

S_X, S_E, S_SRC, S_DST, S_WM, S_WU, S_OUT, S_DBG, S_WS = 4, 6, 8, 10, 12, 14, 16, 18, 20

def load_args(a):
    a.e("s_load_dwordx16 s[4:19], s[0:1], 0")
    a.e("s_load_dwordx2 s[20:21], s[0:1], 64")

def srd(a, d, ptr, off_s=None, off_c=0, size=0):
    if off_s is not None:
        a.e(f"s_add_u32 s{d}, s{ptr}, s{off_s}")
        a.e(f"s_addc_u32 s{d+1}, s{ptr+1}, 0")
        if off_c:
            a.e(f"s_add_u32 s{d}, s{d}, {off_c}")
            a.e(f"s_addc_u32 s{d+1}, s{d+1}, 0")
    elif off_c:
        a.e(f"s_add_u32 s{d}, s{ptr}, {off_c}")
        a.e(f"s_addc_u32 s{d+1}, s{ptr+1}, 0")
    else:
        a.e(f"s_mov_b32 s{d}, s{ptr}")
        a.e(f"s_mov_b32 s{d+1}, s{ptr+1}")
    a.e(f"s_mov_b32 s{d+2}, {size}")
    a.e(f"s_mov_b32 s{d+3}, 0x20000")

def idmap(a, dst, src, t, sh=5):
    a.e(f"s_and_b32 s{t}, s{src}, 7")
    a.e(f"s_lshr_b32 s{dst}, s{src}, 3")
    a.e(f"s_lshl_b32 s{t}, s{t}, {sh}")
    a.e(f"s_add_u32 s{dst}, s{dst}, s{t}")

def scan64(a, v):
    for sh in (1, 2, 4, 8):
        a.e("s_nop 1")
        a.e(f"v_add_u32_dpp v{v}, v{v}, v{v} row_shr:{sh} row_mask:0xf bank_mask:0xf bound_ctrl:0")
    a.e("s_nop 1")
    a.e(f"v_add_u32_dpp v{v}, v{v}, v{v} row_bcast:15 row_mask:0xa bank_mask:0xf")
    a.e("s_nop 1")
    a.e(f"v_add_u32_dpp v{v}, v{v}, v{v} row_bcast:31 row_mask:0xc bank_mask:0xf")

def x_dma(a, sX, sW, vL, lds_base, t0, st, pol="", strided=False):
    a.e(f"v_lshrrev_b32 v{t0}, 4, v{vL}")
    a.e(f"v_and_b32 v{t0+1}, 15, v{vL}")
    a.e(f"v_xor_b32 v{t0+1}, v{t0+1}, v{t0}")
    a.e(f"v_lshlrev_b32 v{t0+1}, 4, v{t0+1}")
    a.e(f"v_lshl_add_u32 v{t0}, v{t0}, 8, v{t0+1}")
    a.e(f"s_and_b32 s{st}, s{sW}, 1")
    a.e(f"s_lshl_b32 s{st}, s{st}, 7")
    a.e(f"v_xor_b32 v{t0}, s{st}, v{t0}")
    a.e(f"v_xor_b32 v{t0+1}, 64, v{t0}")
    if strided:
        a.e(f"s_lshr_b32 s{st+1}, s{sW}, 1")
        a.e(f"s_lshl_b32 s{st+1}, s{st+1}, 12")
        a.e(f"s_lshl_b32 s{st}, s{sW}, 11")
        a.e(f"s_add_u32 s{st+1}, s{st+1}, s{st}")
        a.e(f"s_add_u32 m0, s{st+1}, {lds_base}")
    else:
        a.e(f"s_lshl_b32 s{st}, s{sW}, 11")
        a.e(f"s_add_u32 m0, s{st}, {lds_base}")
    a.e("s_nop 0")
    a.e(f"buffer_load_dwordx4 v{t0}, s[{sX}:{sX+3}], s{st} offen {pol} lds")
    a.e(f"buffer_load_dwordx4 v{t0+1}, s[{sX}:{sX+3}], s{st} offen offset:1024 {pol} lds")

def w_lane_const(a, vW, vL, t):
    a.e(f"v_lshrrev_b32 v{t}, 4, v{vL}")
    a.e(f"v_and_b32 v{vW}, 15, v{vL}")
    a.e(f"v_lshlrev_b32 v{vW}, 4, v{vW}")
    a.e(f"v_lshlrev_b32 v{t+1}, 6, v{t}")
    a.e(f"v_xor_b32 v{vW}, v{vW}, v{t+1}")
    a.e(f"v_lshl_add_u32 v{vW}, v{t}, 8, v{vW}")

def w_dma(a, sSrd, vW, sW4096, goff, lds_base, st):
    a.e(f"s_add_u32 s{st}, s{sW4096}, {goff}")
    a.e(f"s_add_u32 m0, s{sW4096}, {lds_base}")
    a.e("s_nop 0")
    for i in range(4):
        o = f" offset:{1024*i}" if i else ""
        a.e(f"buffer_load_dwordx4 v{vW}, s[{sSrd}:{sSrd+3}], s{st} offen{o} lds")

def wfrag_const(a, vA, vL, sW, t, st):
    a.e(f"v_lshrrev_b32 v{t}, 5, v{vL}")
    a.e(f"v_bfe_u32 v{t+1}, v{vL}, 2, 2")
    a.e(f"v_lshl_add_u32 v{t}, v{t}, 3, v{t+1}")
    a.e(f"v_lshlrev_b32 v{vA}, 8, v{t}")
    a.e(f"v_and_b32 v{t}, 1, v{vL}")
    a.e(f"v_lshlrev_b32 v{t}, 5, v{t}")
    a.e(f"v_bfe_u32 v{t+2}, v{vL}, 1, 1")
    a.e(f"v_lshl_add_u32 v{t}, v{t+2}, 3, v{t}")
    a.e(f"v_bfe_u32 v{t+2}, v{vL}, 4, 1")
    a.e(f"v_lshl_add_u32 v{t}, v{t+2}, 4, v{t}")
    a.e(f"s_and_b32 s{st}, s{sW}, 3")
    a.e(f"s_lshl_b32 s{st}, s{st}, 6")
    a.e(f"v_add_u32 v{t}, s{st}, v{t}")
    a.e(f"v_lshlrev_b32 v{t+1}, 6, v{t+1}")
    a.e(f"v_xor_b32 v{t}, v{t}, v{t+1}")
    a.e(f"v_add_u32 v{vA}, v{vA}, v{t}")

def wfrag_read(a, dst, vAddr, off=0, stride=4096):
    for s in range(8):
        for u in range(2):
            r = (dst[s] if isinstance(dst, list) else dst + 4*s) + 2*u
            a.e(f"ds_read_b64_tr_b16 v[{r}:{r+1}], v{vAddr} offset:{off+s*stride+u*1024}")

def xfrag_read(a, dst, vL, sW, lds_base, t, st):
    a.e(f"v_and_b32 v{t}, 31, v{vL}")
    a.e(f"v_lshrrev_b32 v{t+1}, 5, v{vL}")
    a.e(f"v_and_b32 v{t+2}, 15, v{vL}")
    a.e(f"v_xor_b32 v{t+1}, v{t+1}, v{t+2}")
    a.e(f"v_lshlrev_b32 v{t+1}, 4, v{t+1}")
    a.e(f"v_lshl_add_u32 v{t}, v{t}, 8, v{t+1}")
    a.e(f"s_lshr_b32 s{st}, s{sW}, 2")
    a.e(f"s_lshl_b32 s{st}, s{st}, 13")
    a.e(f"s_add_u32 s{st}, s{st}, {lds_base}")
    a.e(f"v_add_u32 v{t}, s{st}, v{t}")
    for s in range(8):
        if s == 0:
            a.e(f"ds_read_b128 v[{dst}:{dst+3}], v{t}")
        else:
            r = t + 1 + (s & 1)
            a.e(f"v_xor_b32 v{r}, {32*s}, v{t}")
            a.e(f"ds_read_b128 v[{dst+4*s}:{dst+4*s+3}], v{r}")

def gemm8(a, acc, A, B, zero=True):
    for s in range(8):
        c = "0" if (s == 0 and zero) else f"v[{acc}:{acc+15}]"
        r = A[s] if isinstance(A, list) else A + 4*s
        a.e(f"v_mfma_f32_32x32x16_bf16 v[{acc}:{acc+15}], v[{r}:{r+3}], v[{B+4*s}:{B+4*s+3}], {c}")

WS_DBG = 0x2000000
def stamp(a, i, vst):
    if not cfg.dbg: return
    if cfg.few and not (i in (0, 1, 2, 3) if vst == 197 else i in (7, 8, 9, 12)): return
    a.e("s_memrealtime s[90:91]")
    a.e("s_waitcnt lgkmcnt(0)")
    a.e(f"v_writelane_b32 v{vst}, s90, {i}")
def stamp_out(a, vst, vt, kidx):
    if not cfg.dbg: return
    srd(a, 92, S_WS, off_c=WS_DBG + kidx * 0x100000, size=0x100000)
    a.e(f"s_lshl_b32 s90, s2, 11")
    a.e(f"v_lshl_add_u32 v{vt}, v0, 2, s90")
    a.e(f"buffer_store_dword v{vst}, v{vt}, s[92:95], 0 offen")

def kernel_head(a, name):
    a.e(".text")
    a.e(f".globl {name}")
    a.e(".p2align 8")
    a.e(f".type {name},@function")
    a.label(name)

def kernel_desc(name, vg, sg):
    acc = (vg + 3) // 4 * 4
    return f""".amdhsa_kernel {name}
  .amdhsa_next_free_vgpr {vg}
  .amdhsa_next_free_sgpr {sg}
  .amdhsa_accum_offset {acc}
  .amdhsa_group_segment_fixed_size 0
  .amdhsa_kernarg_size 72
  .amdhsa_user_sgpr_count 2
  .amdhsa_user_sgpr_kernarg_segment_ptr 1
  .amdhsa_system_sgpr_workgroup_id_x 1
.end_amdhsa_kernel
"""

K1_LDS_A = 16384 + 57344
K1_LDS_B = 65536 + 96*272
def gen_k1(a):
    kernel_head(a, "prep_kernel")
    load_args(a)
    sW, sId, sT = 22, 23, 44
    vL = 1
    a.e(f"v_and_b32 v{vL}, 63, v0")
    a.e(f"v_lshrrev_b32 v2, 6, v0")
    a.e("s_nop 0")
    a.e(f"v_readfirstlane_b32 s{sW}, v2")
    if cfg.dbg: a.e("v_mov_b32 v197, 0")
    stamp(a, 0, 197)
    if cfg.dbg:
        a.e("s_getreg_b32 s90, hwreg(HW_REG_XCC_ID)")
        a.e("s_add_u32 s90, s90, 1")
        a.e("v_writelane_b32 v197, s90, 63")
    if cfg.k1d: a.e(f"s_sleep {cfg.k1d}")
    a.e(f"s_mov_b32 s{sId}, s2")
    a.e("s_cmp_lt_u32 s2, 120")
    a.e("s_cbranch_scc1 K1_BIN")
    a.e(f"s_sub_u32 s{sId}, s2, 3")
    a.e("s_sub_u32 s3, s2, 123")
    a.e("s_cmp_lt_u32 s3, 5")
    a.e("s_cbranch_scc1 K1_BIN")
    a.e("s_cmp_ge_u32 s2, 256")
    a.e("s_cbranch_scc1 K1_END")
    a.e(f"s_and_b32 s{sT}, s2, 7")
    a.e(f"s_lshr_b32 s{sId}, s2, 3")
    a.e(f"s_lshl4_add_u32 s{sId}, s{sT}, s{sId}")
    a.e(f"s_min_u32 s{sT}, s{sT}, 2")
    a.e(f"s_add_u32 s{sId}, s{sId}, s{sT}")
    a.e(f"s_sub_u32 s{sId}, s{sId}, 15")
    a.e(f"s_mul_i32 s{sT+2}, s{sId}, 24576")
    a.e(f"s_sub_u32 s{sT+4}, 3200000, s{sT+2}")
    a.e(f"s_min_u32 s{sT+4}, s{sT+4}, 24576")
    a.e(f"v_lshrrev_b32 v2, 4, v{vL}")
    a.e(f"v_and_b32 v3, 15, v{vL}")
    a.e(f"v_xor_b32 v3, v3, v2")
    a.e(f"v_lshlrev_b32 v3, 4, v3")
    a.e(f"v_lshl_add_u32 v16, v2, 8, v3")
    for i in range(1, 4): a.e(f"v_xor_b32 v{16+i}, {64*i}, v16")
    w_lane_const(a, 4, vL, 5)
    a.e(f"s_lshl_b32 s{sT+3}, s{sW}, 12")
    a.e("s_waitcnt lgkmcnt(0)")
    def xl():
        a.e(f"s_mov_b32 m0, s{sT+3}")
        srd(a, 24, S_X, off_s=sT+2, size=f"s{sT+4}")
        for i in range(4):
            o = f" offset:{1024*i}" if i else ""
            a.e(f"buffer_load_dwordx4 v{16+i}, s[24:27], s{sT+3} offen{o} {cfg.x_pol} lds")
    def wl():
        srd(a, 28, S_WM, size=32768)
        w_dma(a, 28, 4, sT+3, 0, 32768, sT)
    xl(); wl()
    srd(a, 32, S_WS, off_s=sT+2, off_c=cfg.wsoff + WS_P, size=f"s{sT+4}")
    if cfg.k1t:
        a.e(f"v_lshlrev_b32 v30, 12, v0")
        a.e(f"buffer_load_dword v31, v30, s[32:35], 0 offen")
    wfrag_const(a, 8, vL, sW, 9, sT)
    OT = 65536
    a.e(f"v_and_b32 v12, 31, v{vL}")
    a.e(f"v_lshrrev_b32 v13, 5, v{vL}")
    a.e(f"v_and_b32 v15, 15, v{vL}")
    a.e(f"v_xor_b32 v15, v15, v13")
    a.e(f"v_lshlrev_b32 v15, 4, v15")
    a.e(f"v_lshl_add_u32 v15, v12, 8, v15")
    a.e(f"s_lshr_b32 s{sT}, s{sW}, 2")
    a.e(f"s_lshl_b32 s{sT+1}, s{sT}, 14")
    a.e(f"v_add_u32 v20, s{sT+1}, v15")
    for st in range(1, 8): a.e(f"v_xor_b32 v{20+st}, {32*st}, v20")
    if cfg.k1w:
        a.e(f"v_lshlrev_b32 v13, 5, v13")
        a.e(f"v_mul_u32_u24 v12, 80, v12")
        a.e(f"s_mul_i32 s{sT+5}, s{sW}, {32*80}")
        a.e(f"s_add_u32 s{sT+5}, s{sT+5}, {OT}")
        a.e(f"v_add3_u32 v12, s{sT+5}, v12, v13")
        a.e(f"v_lshrrev_b32 v13, 2, v{vL}")
        a.e(f"v_and_b32 v15, 3, v{vL}")
        a.e(f"v_lshlrev_b32 v15, 4, v15")
        a.e(f"v_lshl_add_u32 v14, v13, 8, v15")
        a.e(f"v_mul_u32_u24 v13, 80, v13")
        a.e(f"v_add3_u32 v13, v13, v15, s{sT+5}")
        a.e(f"s_lshl_b32 s{sT}, s{sT}, 14")
        a.e(f"s_and_b32 s{sT+1}, s{sW}, 3")
        a.e(f"s_lshl_b32 s{sT+1}, s{sT+1}, 6")
        a.e(f"v_add_u32 v14, s{sT}, v14")
        a.e(f"v_add_u32 v14, s{sT+1}, v14")
        a.e("s_movk_i32 s65, 4096\ns_movk_i32 s66, 12288")
    else:
        a.e(f"v_lshlrev_b32 v13, 5, v13")
        a.e(f"v_mul_u32_u24 v12, 272, v12")
        a.e(f"s_mul_i32 s{sT}, s{sT}, {64*272}")
        a.e(f"s_and_b32 s{sT+1}, s{sW}, 3")
        a.e(f"s_lshl_b32 s{sT+1}, s{sT+1}, 6")
        a.e(f"s_add_u32 s{sT}, s{sT}, s{sT+1}")
        a.e(f"s_add_u32 s{sT}, s{sT}, {OT}")
        a.e(f"v_add3_u32 v12, s{sT}, v12, v13")
        a.e(f"v_lshrrev_b32 v13, 4, v0")
        a.e(f"v_lshlrev_b32 v14, 4, v0")
        a.e(f"v_lshl_add_u32 v13, v13, 4, v14")
        a.e(f"v_add_u32 v13, {OT}, v13")
    a.e(f"s_mov_b32 s{sT}, {LOG2E_NEG}")
    a.e(f"s_mov_b32 s{sT+1}, {LOG2E_NEG}")
    a.e("s_movk_i32 s62, 8192\ns_movk_i32 s63, 16384\ns_movk_i32 s64, 24576")
    WF, X0, X1, A0, A1 = 32, 64, 96, 128, 144
    def rw(st):
        for u in range(2):
            a.e(f"ds_read_b64_tr_b16 v[{WF+4*st+2*u}:{WF+4*st+2*u+1}], v8 offset:{32768+st*4096+u*1024}")
    def rx0(st): a.e(f"ds_read_b128 v[{X0+4*st}:{X0+4*st+3}], v{20+st}")
    def mm(A, X, st):
        c = "0" if st == 0 else f"v[{A}:{A+15}]"
        a.e(f"v_mfma_f32_32x32x16_bf16 v[{A}:{A+15}], v[{WF+4*st}:{WF+4*st+3}], v[{X+4*st}:{X+4*st+3}], {c}")
    def fin(b, A):
        for i in range(8):
            a.e(f"v_pk_mul_f32 v[{A+2*i}:{A+2*i+1}], v[{A+2*i}:{A+2*i+1}], s[{sT}:{sT+1}]")
        for i in range(8):
            a.e(f"v_cvt_pk_bf16_f32 v{A+i}, v{A+2*i}, v{A+1+2*i}")
        if cfg.k1w and b:
            a.e("s_waitcnt lgkmcnt(0)")
            st2(0)
            a.e("v_add_u32 v14, s62, v14")
            b = 0
        if cfg.k1w:
            a.e(f"ds_write_b128 v12, v[{A}:{A+3}]")
            a.e(f"ds_write_b128 v12, v[{A+4}:{A+7}] offset:16")
            a.e(f"ds_read_b128 v[{48+8*b}:{51+8*b}], v13")
            a.e(f"ds_read_b128 v[{52+8*b}:{55+8*b}], v13 offset:{16*80}")
        else:
            a.e(f"ds_write_b128 v12, v[{A}:{A+3}] offset:{b*32*272}")
            a.e(f"ds_write_b128 v12, v[{A+4}:{A+7}] offset:{b*32*272+16}")
    def st2(b):
        for j in range(2):
            a.e(f"buffer_store_dwordx4 v[{48+8*b+4*j}:{51+8*b+4*j}], v14, s[32:35], {['0','s65','s62','s66'][2*b+j]} offen {cfg.p_pol}")
    a.e(f"s_cmp_ge_u32 s{sW}, 4")
    a.e(f"s_waitcnt vmcnt({4 + cfg.k1t})")
    a.e("s_barrier")
    for st in range(8): rx0(st)
    a.e("s_cbranch_scc1 K1_NX1")
    for st in range(8):
        a.e(f"ds_read_b128 v[{X1+4*st}:{X1+4*st+3}], v{20+st} offset:8192")
    a.label("K1_NX1")
    a.e(f"s_waitcnt vmcnt({cfg.k1t})")
    stamp(a, 1, 197)
    a.e("s_barrier")
    for st in range(8): rw(st)
    for st in range(8):
        a.e(f"s_waitcnt lgkmcnt({14-2*st})")
        mm(A0, X0, st)
    a.e("s_cbranch_scc1 K1_NX2")
    for st in range(8): mm(A1, X1, st)
    a.e("s_nop 2")
    fin(0, A0)
    fin(1, A1)
    a.e("s_branch K1_NX3")
    a.label("K1_NX2")
    a.e("s_nop 10")
    fin(0, A0)
    a.label("K1_NX3")
    a.e("s_waitcnt lgkmcnt(0)")
    if cfg.k1w:
        st2(0)
    else:
        a.e("s_barrier")
        for j in range(3):
            a.e(f"ds_read_b128 v[{48+4*j}:{51+4*j}], v13 offset:{j*32*272}")
        for j in range(3):
            a.e(f"s_waitcnt lgkmcnt({2-j})")
            a.e(f"buffer_store_dwordx4 v[{48+4*j}:{51+4*j}], v14, s[32:35], {['0','s62','s63'][j]} offen {cfg.p_pol}")
    stamp(a, 2, 197)
    if cfg.dbg: a.e("s_waitcnt vmcnt(0)")
    stamp(a, 3, 197)
    stamp_out(a, 197, 198, 0)
    a.e("s_endpgm")
    SL, FLAG, SORT = 0, 36864, 36880
    a.label("K1_BIN")
    a.e(f"s_mul_i32 s{sT+2}, s{sId}, 12800")
    a.e(f"s_lshl_b32 s{sT+3}, s{sId}, 15")
    a.e("v_lshlrev_b32 v2, 4, v0")
    a.e("s_movk_i32 s3, 6400")
    a.e("s_movk_i32 s59, 400")
    a.e("v_cmp_gt_u32 s[60:61], s59, v0")
    a.e("s_waitcnt lgkmcnt(0)")
    D, S, BA, RK, AD = 4, 12, 20, 28, 36
    srd(a, 24, S_DST, off_s=sT+2, size=12800)
    a.e(f"buffer_load_dwordx4 v[{D}:{D+3}], v2, s[24:27], 0 offen {cfg.ld_pol}")
    a.e(f"buffer_load_dwordx4 v[{D+4}:{D+7}], v2, s[24:27], s3 offen {cfg.ld_pol}")
    srd(a, 28, S_SRC, off_s=sT+2, size=12800)
    a.e(f"buffer_load_dwordx4 v[{S}:{S+3}], v2, s[28:31], 0 offen {cfg.ld_pol}")
    a.e(f"buffer_load_dwordx4 v[{S+4}:{S+7}], v2, s[28:31], s3 offen {cfg.ld_pol}")
    srd(a, 32, S_WS, off_s=sT+3, off_c=cfg.wsoff + WS_S01, size=32768)
    a.e("v_mov_b32 v44, 1")
    a.e("v_min_u32 v3, 256, v0")
    a.e("v_mul_u32_u24 v3, 144, v3")
    a.e(f"ds_write_b32 v3, v44 offset:{SL}")
    a.e("v_lshlrev_b32 v45, 22, v0")
    a.e("s_movk_i32 s58, 10700")
    a.e("s_movk_i32 s57, 144")
    a.e("v_lshrrev_b32 v46, 3, v0")
    a.e("v_lshl_add_u32 v46, v46, 4, v2")
    a.e(f"v_mov_b32 v48, {FLAG}")
    if cfg.gran:
        a.e("v_lshrrev_b32 v86, 3, v0")
        a.e("v_mul_u32_u24 v86, 144, v86")
        a.e(f"v_and_b32 v87, {8 - cfg.gran // 16}, v0")
        a.e("v_lshlrev_b32 v87, 2, v87")
    a.e("s_movk_i32 s62, 8192\ns_movk_i32 s63, 16384\ns_movk_i32 s64, 24576")
    a.e("s_waitcnt lgkmcnt(0)")
    a.e("s_barrier")
    if True:
        a.e(f"s_cmp_lg_u32 s{sW}, 7")
        a.e("s_cbranch_scc1 K1_NOTOUCH")
        if cfg.k1t:
            a.e(f"v_lshlrev_b32 v84, 12, v{vL}")
            a.e(f"buffer_load_dword v85, v84, s[32:35], 0 offen")
        a.e("s_cmp_ge_u32 s2, 124")
        a.e("s_cbranch_scc1 K1_W3")
        a.e(f"s_lshr_b32 s{sT}, s2, 3")
        a.e(f"v_lshlrev_b32 v70, 7, v{vL}")
        if cfg.touch & 1:
            srd(a, 72, S_WM, off_c=32768, size=32768)
            srd(a, 76, S_WU, size=65536)
            a.e(f"s_mul_i32 s{sT+1}, s{sT}, {18*128}")
            a.e("s_mov_b64 exec, 0x3ffff")
            a.e(f"buffer_load_dword v71, v70, s[72:75], s{sT+1} offen")
            a.e(f"s_mul_i32 s{sT+1}, s{sT}, {35*128}")
            a.e("s_mov_b32 exec_lo, -1\ns_mov_b32 exec_hi, 7")
            a.e(f"buffer_load_dword v72, v70, s[76:79], s{sT+1} offen")
        if cfg.touch & 2:
            a.e("s_mov_b64 exec, 0x1ff")
            a.e("s_getpc_b64 s[68:69]")
            a.label("K1_PC")
            a.e(f"s_add_u32 s68, s68, {NAME}_kernel-K1_PC")
            a.e("s_addc_u32 s69, s69, 0")
            a.e(f"s_mul_i32 s{sT+1}, s{sT}, {9*128}")
            a.e(f"v_add_u32 v74, s{sT+1}, v70")
            a.e(f"v_min_u32 v74, K2_CODE_END-{NAME}_kernel-4, v74")
            a.e("v_mov_b32 v75, s69")
            a.e("v_add_co_u32 v74, vcc, s68, v74")
            a.e("s_nop 1")
            a.e("v_addc_co_u32 v75, vcc, 0, v75, vcc")
            a.e("global_load_dword v73, v[74:75], off")
        a.e("s_mov_b64 exec, -1")
        a.e("s_branch K1_B2")
        a.label("K1_NOTOUCH")
    a.e("s_mov_b64 exec, s[60:61]")
    for j in range(2):
        a.e(f"s_waitcnt vmcnt({3-j})")
        if j == 0: stamp(a, 1, 197)
        for i in range(4*j, 4*j+4):
            a.e(f"v_mul_u32_u24 v{AD+i}, s58, v{D+i}")
            a.e(f"v_lshrrev_b32 v{AD+i}, 19, v{AD+i}")
            a.e(f"v_mul_u32_u24 v{BA+i}, s57, v{AD+i}")
            a.e(f"ds_add_rtn_u32 v{RK+i}, v{BA+i}, v44 offset:{SL}")
    for i in range(8):
        a.e(f"v_mul_u32_u24 v{AD+i}, 49, v{AD+i}")
        a.e(f"v_sub_u32 v{D+i}, v{D+i}, v{AD+i}")
        if i: a.e(f"v_add_u32 v45, {hex(((1600-3) if i == 4 else 1) << 20)}, v45")
        a.e(f"v_or_b32 v{D+i}, v{D+i}, v45")
    a.e(f"s_waitcnt vmcnt(0)")
    stamp(a, 4, 197)
    for i in range(8):
        a.e(f"s_waitcnt lgkmcnt(7)")
        a.e(f"v_min_u32 v{AD+i}, 32, v{RK+i}")
        a.e(f"v_lshl_or_b32 v{D+i}, v{S+i}, 6, v{D+i}")
        a.e(f"v_lshl_add_u32 v{AD+i}, v{AD+i}, 2, v{BA+i}")
        a.e(f"ds_write_b32 v{AD+i}, v{D+i} offset:{SL}")
    a.e(f"v_max3_u32 v47, v{RK}, v{RK+1}, v{RK+2}")
    a.e(f"v_max3_u32 v47, v47, v{RK+3}, v{RK+4}")
    a.e(f"v_max3_u32 v47, v47, v{RK+5}, v{RK+6}")
    a.e(f"v_max_u32 v47, v47, v{RK+7}")
    a.e("v_cmpx_le_u32 vcc, 32, v47")
    a.e("ds_write_b32 v48, v47")
    a.e("s_mov_b64 exec, -1")
    a.e("s_waitcnt lgkmcnt(0)")
    stamp(a, 5, 197)
    a.label("K1_B2")
    a.e("s_barrier")
    stamp(a, 6, 197)
    for j in range(4):
        if cfg.gran: a.e(f"ds_read_b32 v{88+j}, v86 offset:{SL + j*9216}")
        a.e(f"ds_read_b128 v[{52+4*j}:{55+4*j}], v46 offset:{SL + j*9216}")
    a.e(f"ds_read_b32 v49, v48")
    for j in range(4):
        a.e(f"s_waitcnt lgkmcnt({7-2*j if cfg.gran else 4-j})")
        if cfg.gran: a.e(f"v_cmpx_lt_u32 vcc, v87, v{88+j}")
        a.e(f"buffer_store_dwordx4 v[{52+4*j}:{55+4*j}], v2, s[32:35], {['0','s62','s63','s64'][j]} offen {cfg.st_pol}")
        if cfg.gran: a.e("s_mov_b64 exec, -1")
    a.e("s_waitcnt lgkmcnt(0)")
    a.e("v_readfirstlane_b32 s3, v49")
    a.e("s_cmp_lg_u32 s3, 1")
    a.e("s_cbranch_scc1 K1_FULL")
    stamp(a, 2, 197)
    if cfg.dbg: a.e("s_waitcnt vmcnt(0)")
    stamp(a, 3, 197)
    stamp_out(a, 197, 198, 0)
    a.label("K1_END")
    a.e("s_endpgm")
    a.label("K1_FULL")
    a.e("s_waitcnt vmcnt(0)")
    a.e(f"s_lshl_b32 s{sT+4}, s{sId}, 2")
    srd(a, 32, S_WS, off_s=sT+2, off_c=cfg.wsoff + WS_REC, size=12800)
    srd(a, 36, S_WS, off_s=sT+4, off_c=cfg.wsoff + WS_OFFT, size=255*1024 + 4)
    a.e(f"v_mul_u32_u24 v3, {4*144}, v{vL}")
    for i in range(4):
        a.e(f"ds_read_b32 v{52+i}, v3 offset:{SL + 144*i}")
    a.e("s_waitcnt lgkmcnt(0)")
    for i in range(4):
        a.e(f"v_add_u32 v{52+i}, -1, v{52+i}")
    a.e("v_add_u32 v56, v52, v53")
    a.e("v_add_u32 v57, v56, v54")
    a.e("v_add_u32 v58, v57, v55")
    a.e("v_mov_b32 v60, v58")
    scan64(a, 60)
    a.e("v_sub_u32 v60, v60, v58")
    a.e("v_add_u32 v61, v60, v52")
    a.e("v_add_u32 v62, v60, v56")
    a.e("v_add_u32 v63, v60, v57")
    for i in range(4):
        a.e(f"ds_write_b32 v3, v{60+i} offset:{SL + 144*i + 132}")
    a.e(f"s_cmp_lg_u32 s{sW}, 7")
    a.e("s_cbranch_scc1 K1_NOFFT")
    a.e(f"v_lshlrev_b32 v59, 12, v{vL}")
    for i in range(4):
        o = f" offset:{1024*i}" if i else ""
        a.e(f"buffer_store_dword v{60+i}, v59, s[36:39], 0 offen{o}")
    a.label("K1_NOFFT")
    a.e("s_mov_b64 exec, s[60:61]")
    a.e("s_waitcnt lgkmcnt(0)")
    for i in range(8):
        a.e(f"ds_read_b32 v{BA+i}, v{BA+i} offset:{SL + 132}")
    a.e("s_waitcnt lgkmcnt(0)")
    for i in range(8):
        a.e(f"v_add_lshl_u32 v{BA+i}, v{BA+i}, v{RK+i}, 2")
        a.e(f"ds_write_b32 v{BA+i}, v{D+i} offset:{SORT - 4}")
    a.e("s_mov_b64 exec, -1")
    a.e("s_waitcnt lgkmcnt(0)")
    a.e("s_barrier")
    a.e(f"ds_read_b128 v[4:7], v2 offset:{SORT}")
    a.e(f"ds_read_b128 v[8:11], v2 offset:{SORT + 8192}")
    a.e(f"s_waitcnt lgkmcnt(0)")
    a.e(f"buffer_store_dwordx4 v[4:7], v2, s[32:35], 0 offen")
    a.e(f"buffer_store_dwordx4 v[8:11], v2, s[32:35], s62 offen")
    a.e("s_endpgm")
    a.label("K1_W3")
    a.e(f"s_sub_u32 s{sT}, s2, 124")
    srd(a, 72, S_WM, off_c=65536, size=4096)
    srd(a, 76, S_WS, off_c=cfg.wsoff + WS_W3F, size=4096)
    a.e(f"v_and_b32 v70, 31, v{vL}")
    a.e("v_lshlrev_b32 v70, 1, v70")
    a.e(f"v_lshrrev_b32 v71, 5, v{vL}")
    a.e("v_lshl_add_u32 v70, v71, 11, v70")
    a.e(f"s_lshl_b32 s{sT+1}, s{sT}, 6")
    for j in range(8):
        o = f" offset:{256*j}" if j else ""
        a.e(f"buffer_load_ushort v{72+j}, v70, s[72:75], s{sT+1} offen{o}")
    a.e(f"s_lshl_b32 s{sT+1}, s{sT}, 10")
    a.e(f"s_mov_b32 s{sT}, {LOG2E_NEG}")
    a.e(f"v_lshlrev_b32 v71, 4, v{vL}")
    a.e("s_waitcnt vmcnt(0)")
    for j in range(8):
        a.e(f"v_lshlrev_b32 v{72+j}, 16, v{72+j}")
        a.e(f"v_mul_f32 v{72+j}, s{sT}, v{72+j}")
    for j in range(4):
        a.e(f"v_cvt_pk_bf16_f32 v{80+j}, v{72+2*j}, v{73+2*j}")
    a.e(f"buffer_store_dwordx4 v[80:83], v71, s[76:79], s{sT+1} offen {cfg.st_pol}")
    a.e("s_branch K1_B2")

CNT, FLG, LUT, QL, LIST, AGG, SIDE, WU2, STG = 0, 256, 288, 576, 13776, 30800, 56672, 65536, 98304
MAXT = 65
K2_LDS = 163840
vL, vM = 1, 2
vOC, vREM, vROFF, vEB = 3, 4, 5, 6
vAE, vAP, vAQ = 7, 8, 9
vCP, vRP0, vRP1, vCQ, vCL, vCA, vH16, vFA = 10, 11, 12, 13, 14, 15, 16, 17
vPA = 144
vEA, vLA = 20, 21
vQA = 22
vRS = 148
vC4 = 152
ACC = 156
vRN = 28
vRE = 30
vSD = 31
vCUR = 32
vCHK = 34
vWC, vWA = 35, 36
vPF = 38
vT = 40
Z = 64; PX = 128; PY = 128; QX = 160; QY = 168; EE = 176; AQ = 184; AP = 188; IDX = 192; W3 = 196
NN = 212; DD = 220; EX = 228; TT = 232; ACX = 236
sP, sE, sX, sO, sR, sWm, sWu, sOT = 24, 28, 32, 36, 40, 44, 48, 52
sW, sBin, sNT, sCnt, sG0, sG1, sG2, sLim, sDone, sSafe, sW4k, sM0, sMask, sMore, sFirst, sDm = 22, 23, 56, 57, 58, 59, 60, 61, 62, 63, 64, 65, 66, 67, 68, 69
sT = 70
sX0 = 80
sSusp = 88
sF0, sF1 = 32, 34
sMA, sMB, sL, sEX = 58, 59, 60, 52
PSIZE = 12500 * 256 + 3072
s256 = 79
ESIZE = 400000 * 32

def dma_m0(H, dest=None):
    if dest is None: dest = H
    return f"s_add_u32 m0, s{sW4k}, {WU2 - 128*H}" if dest == "alt" else f"s_add_u32 m0, s{sM0}, {dest*4096 - 128*H + 256}"
def dma_ld(H):
    out = []
    for j in range(4):
        imm = 1024 * j + 128 * H
        o = f" offset:{imm}" if imm else ""
        out.append(f"buffer_load_dwordx4 v{vPA+j}, s[{sP}:{sP+3}], 0 offen{o} {cfg.g_pol} lds")
    return out
def dma_ops(H, dest=None):
    l = dma_ld(H)
    return [[dma_m0(H, dest), "s_nop 0", l[0]], [l[1]], [l[2]], [l[3]]]
def dma_half(a, H, dest=None):
    for s in sum(dma_ops(H, dest), []): a.e(s)
def pfrag_reads(dst, H, va=None):
    out = []
    va = vRP0 if va is None else va
    for tq in range(2):
        for q in range(4):
            r = dst + 8 * tq + 2 * q
            out.append(f"ds_read_b64_tr_b16 v[{r}:{r+1}], v{va+tq} offset:{H*4096 + q*512}")
    return out
def qfrag_reads(dst, H, par):
    out = []
    for tq in range(2):
        for u in range(2):
            r = dst + 4 * tq + 2 * u
            out.append(f"ds_read_b64_tr_b16 v[{r}:{r+1}], v{vQA+2*par+u} offset:{(2*H+tq)*64}")
    return out
def list_reads_se(o=0):
    return [f"ds_read_b32 v{vRE}, v{vAE} offset:{128*o}", f"ds_read2_b32 v[{vRS}:{vRS+1}], v{vAP} offset0:{32*o} offset1:{32*o+8}", f"ds_read2_b32 v[{vRS+2}:{vRS+3}], v{vAP} offset0:{32*o+16} offset1:{32*o+24}"]
def list_reads_n(o=0):
    return [f"ds_read_u16 v{vRN}, v{vAQ} offset:{128*o}", f"ds_read_u16 v{vRN+1}, v{vAQ} offset:{128*o+64}"]
def addr_p():
    return [f"v_mad_u32_u16 v{vPA+j}, v{vRS+j}, s{s256}, v{vC4+j}" for j in range(4)]
def addr_e():
    return [f"v_and_or_b32 v{vEA}, v{vRE}, s{sMask}, v{18 if 'ehalf' in cfg.x else vH16}"]
def addr_l():
    return [f"v_and_or_b32 v{vLA}, v{vRE}, 16, v{vCL}", f"v_cmp_gt_i32 vcc, 0, v{vRE}"]
def addr_se():
    return addr_p() + addr_e() + addr_l()
def flags_from_vcc(sF):
    if "nf2" in cfg.x: return [f"s_mov_b32 s{sF}, 0", f"s_mov_b32 s{sF+1}, 0"]
    return [f"s_lshr_b32 s{sF+1}, vcc_lo, 4", f"s_mov_b32 s{sF}, vcc_lo", f"s_or_b32 s{sF+1}, s{sF+1}, vcc_lo", f"s_or_b32 s{sF+1}, s{sF+1}, s{sSafe}"]
def addr_q(par):
    return [f"v_add_u32 v{vQA+2*par}, v{vRN}, v{vCQ}", f"v_add_u32 v{vQA+2*par+1}, v{vRN+1}, v{vCQ}"]
def e_load(par):
    return f"buffer_load_dwordx4 v[{EE+4*par}:{EE+4*par+3}], v{vEA}, s[{sE}:{sE+3}], 0 offen {cfg.e_pol}"
def mfmas(c0, Pset, Qset, epar):
    out = []
    zz = lambda c: f"v[{Z+16*c}:{Z+16*c+15}]"
    f4 = lambda r: f"v[{r}:{r+3}]"
    M = "v_mfma_f32_32x32x16_bf16"
    for i in range(2): out.append(f"{M} {zz(c0+i)}, {f4(EE+4*epar)}, {f4(W3+4*(c0+i))}, 0")
    for i in range(2): out.append(f"{M} {zz(c0+i)}, {f4(AQ)}, {f4(Qset+4*i)}, {zz(c0+i)}")
    for i in range(2): out.append(f"v_smfmac_f32_32x32x32_bf16 {zz(c0+i)}, {f4(AP)}, v[{Pset+8*i}:{Pset+8*i+7}], v{IDX}")
    return out
p2 = lambda r: f"v[{r}:{r+1}]"
def flush_code(a, c0, X, mid=(), wait=True, chk=()):
    t = vT + 8 * X
    for i in range(2):
        c = c0 + i
        a.e(f"v_rcp_f32 v{t+2*i}, v{DD+2*c}")
        a.e(f"v_rcp_f32 v{t+2*i+1}, v{DD+2*c+1}")
    for s in chk: a.e(s)
    for i in range(2):
        c = c0 + i
        a.e(f"v_max3_f32 v{vCHK}, v{DD+2*c}, v{DD+2*c+1}, v{vCHK}")
    for s in mid: a.e(s)
    if wait: a.e("s_waitcnt lgkmcnt(0)")
    for j in range(2):
        for i in range(2):
            c = c0 + i
            a.e(f"v_fmac_f32 v{ACC+c}, v{NN+2*c+j}, v{t+2*i+j}")

def half_step(a, ool, X, par, extras, tag):
    c0 = 2 * X
    sF0 = (32, 34)[par]
    if X == 0: mf = mfmas(2, PX, QX, par)
    else:      mf = mfmas(0, PY, QY, 1 - par)
    def keep(s):
        if "nodma" in cfg.x and (" lds" in s or "m0" in s or s == "s_nop 0"): return False
        if "noe" in cfg.x and s.startswith("buffer_load") and " lds" not in s: return False
        if "nods" in cfg.x and s.startswith("ds_read"): return False
        if "nowait" in cfg.x and s.startswith("s_waitcnt"): return False
        if "novm" in cfg.x and s.startswith("s_waitcnt vmcnt"): return False
        return True
    extras = {k: [s for s in v if keep(s)] for k, v in extras.items()}
    for s in extras.get("pre", []): a.e(s)
    if cfg.prio == 1: a.e(f"s_setprio {1 - X}")
    if cfg.prio == 2 and X == 0: a.e(f"s_setprio {1 - par}")
    for k in range(8):
        if cfg.prio == 3 and k in (0, 4): a.e(f"s_setprio {1 if k == 0 else 0}")
        if cfg.prio == 4: a.e("s_setprio 1")
        if cfg.prio == 5: a.e("s_setprio 0")
        if "nomfma" not in cfg.x and k < len(mf): a.e(mf[k])
        for i in range(2):
            z = Z + 16 * (c0 + i) + 2 * k
            a.e(f"v_exp_f32 v{EX+2*i}, v{z}")
            a.e(f"v_exp_f32 v{EX+2*i+1}, v{z+1}")
        for s in extras.get(k, []): a.e(s)
        if cfg.prio == 4: a.e("s_setprio 0")
        if cfg.prio == 5: a.e("s_setprio 1")
        bit = 8 * (k >> 1) + 2 * (k & 1)
        lf, lb = f"F_{tag}_{k}", f"R_{tag}_{k}"
        if "nobr" not in cfg.x:
            a.e(f"s_bitcmp1_b32 s{sSafe if 'nofl' in cfg.x else sF0+1}, {bit}")
            a.e(f"s_cbranch_scc1 {lf}")
        for i in range(2):
            c = c0 + i; z = Z + 16 * c + 2 * k
            a.e(f"v_pk_fma_f32 {p2(TT+2*i)}, {p2(z)}, {p2(DD+2*c)}, {p2(NN+2*c)}")
        for i in range(2):
            c = c0 + i
            a.e(f"v_pk_fma_f32 {p2(DD+2*c)}, {p2(DD+2*c)}, {p2(EX+2*i)}, {p2(DD+2*c)}")
        for i in range(2):
            c = c0 + i
            a.e(f"v_pk_fma_f32 {p2(NN+2*c)}, {p2(NN+2*c)}, {p2(EX+2*i)}, {p2(TT+2*i)}")
        a.label(lb)
        ool.label(lf)
        t = vT + 8 * X
        ex = "K2_LEND" if X else (f"EXA{par}_{k}" if k < 6 else f"R_{tag}_7")
        sal = ([f"s_bitcmp1_b32 s{sF0}, {bit+1}", f"s_cbranch_scc1 {ex}"] if k else []) + \
              [f"s_bitcmp1_b32 s{sF0}, {bit}", f"s_cselect_b32 s{sT}, -1, 0", f"s_bitcmp1_b32 s{sF0}, {bit+4}", f"s_cselect_b32 s{sT+1}, -1, 0"]
        rc = [f"v_rcp_f32 v{t+j}, v{DD+2*c0+j}" for j in range(4)]
        n = len(sal)
        for j in range(4):
            ool.e(rc[j])
            for x in sal[:(n + 3 - j) // 4 if False else 0]: pass
            cnt = (n // 4) + (1 if j < n % 4 else 0)
            for _ in range(cnt): ool.e(sal.pop(0))
        for i in range(2):
            c = c0 + i
            ool.e(f"v_max3_f32 v{vCHK}, v{DD+2*c}, v{DD+2*c+1}, v{vCHK}")
        ool.e(f"v_mov_b32_dpp v{t+6}, v{vQA+2*par+(k>>2)} row_newbcast:{4*(k&3)} row_mask:0xf bank_mask:0xf")
        nk = sum(1 for x in extras.get(k, []) if x.startswith("ds_")) if cfg.cw else 0
        if k == 0 and cfg.cw: pass
        elif k == 7 and cfg.cw: pass
        else: ool.e(f"s_waitcnt lgkmcnt({nk})")
        for j in range(2):
            for i in range(2):
                c = c0 + i
                ool.e(f"v_fmac_f32 v{ACC+c}, v{NN+2*c+j}, v{t+2*i+j}")
        ool.e(f"s_mov_b64 exec, s[{sT}:{sT+1}]")
        ool.e(f"ds_write2_b32 v{vCUR+X}, v{ACC+c0}, v{ACC+c0+1} offset0:{32*c0} offset1:{32*c0+32}")
        ool.e(f"v_lshl_add_u32 v{vCUR+X}, v{t+6}, 1, v{vCA}")
        ool.e(f"ds_read2_b32 v[{ACC+c0}:{ACC+c0+1}], v{vCUR+X} offset0:{32*c0} offset1:{32*c0+32}")
        ool.e("s_mov_b64 exec, -1")
        for i in range(2):
            c = c0 + i
            ool.e(f"v_pk_add_f32 {p2(DD+2*c)}, {p2(EX+2*i)}, 1.0 op_sel_hi:[1,0]")
        for i in range(2):
            c = c0 + i; z = Z + 16 * c + 2 * k
            ool.e(f"v_pk_mov_b32 {p2(NN+2*c)}, {p2(z)}, {p2(z)} op_sel:[0,1]")
        ool.e(f"s_branch {lb}")

def lds_fill(a, base, nbytes, vdata, vaddr16, ex):
    n = (nbytes + 15) // 16
    r = 0
    while n >= 512:
        a.e(f"ds_write_b128 v{vaddr16}, v[{vdata}:{vdata+3}] offset:{base + r*8192}")
        n -= 512; r += 1
    if n:
        a.e(f"s_movk_i32 s{sT}, {n}")
        a.e(f"v_cmp_gt_u32 vcc, s{sT}, v0")
        a.e(f"s_and_saveexec_b64 s[{ex}:{ex+1}], vcc")
        a.e(f"ds_write_b128 v{vaddr16}, v[{vdata}:{vdata+3}] offset:{base + r*8192}")
        a.e(f"s_mov_b64 exec, s[{ex}:{ex+1}]")

def reset_round(a, zero_agg):
    t = vT
    a.e(f"v_lshlrev_b32 v{t}, 4, v0")
    a.e(f"v_mov_b32 v{t+8}, 0\nv_mov_b32 v{t+9}, 0\nv_mov_b32 v{t+10}, 0\nv_mov_b32 v{t+11}, 0")
    lds_fill(a, CNT, 272, t+8, t, sX0)
    if zero_agg: lds_fill(a, AGG, 49 * 528, t+8, t, sX0)

def onehot4(a, dst, vJ, vcond_sgpr, t):
    a.e(f"v_and_b32 v{t}, 1, v{vJ}")
    a.e(f"v_lshlrev_b32 v{t}, 4, v{t}")
    a.e(f"v_mov_b32 v{t+1}, 0x3f80")
    a.e(f"v_lshlrev_b32 v{t}, v{t}, v{t+1}")
    if vcond_sgpr is not None:
        a.e(f"v_cndmask_b32 v{t}, 0, v{t}, s[{vcond_sgpr}:{vcond_sgpr+1}]")
    a.e(f"v_lshrrev_b32 v{t+1}, 1, v{vJ}")
    for i in range(4):
        a.e(f"v_cmp_eq_u32 vcc, {i}, v{t+1}")
        a.e("s_nop 1")
        a.e(f"v_cndmask_b32 v{dst+i}, 0, v{t}, vcc")

def gen_k2(a):
    ool = Asm()
    rare = Asm()
    RC = 160; RK = 172; NA = 184; EN = 212
    XF, WU1F, W2F, QACC = 64, 96, [128, 132, 136, 140, 160, 164, 168, 172], 212
    vLA0, vXA, vW3A, vW0 = vT + 20, vT + 21, vT + 22, vT + 23
    t = vT + 12
    kernel_head(a, NAME + "_kernel")
    load_args(a)
    a.e(f"v_lshrrev_b32 v{vT+1}, 2, v0")
    a.e(f"v_and_b32 v{vW0}, 3, v0")
    a.e("s_cmp_ge_u32 s2, 256")
    a.e("s_cbranch_scc1 K2_END")
    if cfg.dbg:
        a.e("v_mov_b32 v252, 0")
        a.e("s_memrealtime s[92:93]")
    idmap(a, sBin, 2, sT)
    a.e(f"v_mul_u32_u24 v{vEB}, 3200, v{vT+1}")
    a.e(f"v_lshlrev_b32 v{vT+4}, 4, v{vW0}")
    a.e(f"s_lshl_b32 s{sT+2}, s{sBin}, 7")
    a.e(f"s_add_u32 s{sT+2}, s{sT+2}, {cfg.wsoff + WS_S01}")
    a.e(f"v_lshl_add_u32 v{vT+2}, v{vT+1}, 15, v{vT+4}")
    a.e(f"s_mov_b32 s{sOT+2}, {124*32768+128}")
    a.e(f"s_mov_b32 s{sOT+3}, 0x20000")
    a.e(f"v_lshrrev_b32 v{vT}, 6, v0")
    a.e(f"v_and_b32 v{vL}, 63, v0")
    a.e(f"v_readfirstlane_b32 s{sW}, v{vT}")
    a.e(f"s_mul_i32 s{sT+3}, s{sBin}, 12544")
    a.e(f"s_sub_u32 s{sT+4}, 3200000, s{sT+3}")
    a.e(f"s_min_u32 s{sT+4}, s{sT+4}, 12544")
    a.e(f"v_mov_b32 v{vT+8}, 0\nv_mov_b32 v{vT+9}, 0\nv_mov_b32 v{vT+10}, 0\nv_mov_b32 v{vT+11}, 0")
    a.e(f"v_lshlrev_b32 v{vW3A}, 4, v{vL}")
    a.e("s_mov_b64 exec, 0x1ffff")
    a.e(f"ds_write_b128 v{vW3A}, v[{vT+8}:{vT+11}] offset:{CNT}")
    a.e("s_mov_b64 exec, -1")
    WU1L = 32768
    NPF = cfg.prefetchP
    vXD, vW3D = vT + 18, vT + 7
    sM = sX0 + 4
    c = Asm(); x_dma(c, sX, sW, vL, STG, vXD, sM + 2, strided=True)
    for x in c.lines[:-4]: a.e(x)
    a.e(f"s_add_u32 s{sM+3}, s{sM+3}, {STG}")
    xd = c.lines[-2:]
    w_lane_const(a, vWC, vL, t)
    a.e(f"s_lshl_b32 s{sW4k}, s{sW}, 12")
    a.e(f"s_lshl_b32 s{sM0}, s{sW}, 13")
    a.e(f"s_add_u32 s{sM}, s{sM0}, {STG + 4096}")
    a.e(f"s_add_u32 s{sM0}, s{sM0}, {STG - 256}")
    a.e(f"s_add_u32 s{sM+1}, s{sW4k}, {WU1L}")
    a.e(f"v_lshlrev_b32 v{vW3D}, 4, v0")
    a.e(f"s_and_b32 s{sT+1}, s{sW}, 4")
    a.e(f"s_add_u32 s{sT}, s{sW}, s{sT+1}")
    a.e(f"s_lshl_b32 s{sT}, s{sT}, 10")
    a.e(f"s_add_u32 m0, s{sT}, {STG + 32768}")
    a.e(f"s_mov_b32 s{sR+2}, 4096")
    a.e(f"s_mov_b32 s{sR+3}, 0x20000")
    a.e("s_waitcnt lgkmcnt(0)")
    a.e(f"s_add_u32 s{sOT}, s{S_WS}, s{sT+2}")
    a.e(f"s_addc_u32 s{sOT+1}, s{S_WS+1}, 0")
    a.e(f"buffer_load_dwordx4 v[{RC}:{RC+3}], v{vT+2}, s[{sOT}:{sOT+3}], 0 offen {cfg.s_pol}")
    a.e(f"buffer_load_dwordx4 v[{RC+4}:{RC+7}], v{vT+2}, s[{sOT}:{sOT+3}], 0 offen offset:64 {cfg.s_pol}")
    a.e(f"s_add_u32 s{sR}, s{S_WS}, {cfg.wsoff + WS_W3F}")
    a.e(f"s_addc_u32 s{sR+1}, s{S_WS+1}, 0")
    a.e(f"buffer_load_dwordx4 v{vW3D}, s[{sR}:{sR+3}], 0 offen lds")
    if cfg.dbg:
        a.e("v_writelane_b32 v252, s92, 0")
        a.e("s_getreg_b32 s90, hwreg(HW_REG_XCC_ID)")
        a.e("s_add_u32 s90, s90, 1")
        a.e("v_writelane_b32 v252, s90, 39")
    stamp(a, 40, 252)
    srd(a, sX, S_X, off_s=sT+3, size=f"s{sT+4}")
    srd(a, sO, S_OUT, off_s=sT+3, size=f"s{sT+4}")
    srd(a, sWm, S_WM, off_c=32768, size=32768)
    srd(a, sWu, S_WU, size=256*256)
    if cfg.spf:
        a.e(f"s_lshr_b32 s{sT}, s2, 3")
        a.e(f"s_mul_i32 s{sT}, s{sT}, {781*128}")
        a.e(f"s_mul_i32 s{sT+1}, s{sW}, {cfg.spf*128}")
        a.e(f"s_add_u32 s{sT}, s{sT}, s{sT+1}")
        a.e(f"s_add_u32 s{sT}, s{sT}, {cfg.wsoff + WS_P + (781 - 8*cfg.spf)*128}")
        a.e(f"s_add_u32 s{sT}, s{S_WS}, s{sT}")
        a.e(f"s_addc_u32 s{sT+1}, s{S_WS+1}, 0")
    a.e("s_barrier")
    for j in range(cfg.spf):
        a.e(f"s_load_dword s78, s[{sT}:{sT+1}], {hex(128*j)}")
    stamp(a, 41, 252)
    def mix(lines, extra, first=0):
        out = []; n = len(lines); m = len(extra); k = 0; full = True
        for i, x in enumerate(lines):
            while full and k < m and k * n <= i * m: out += extra[k]; k += 1
            out.append(x)
            if "exec" in x.split(",")[0]: full = x.strip() == "s_mov_b64 exec, -1"
        return out + sum(extra[k:], [])
    dm = [[f"s_mov_b32 m0, s{sM+3}", "s_nop 0", xd[0]], [xd[1]]]
    for j, srdw in enumerate((sWm, sWu)):
        for i in range(4):
            o = f" offset:{1024*i}" if i else ""
            dm.append(([f"s_mov_b32 m0, s{sM+j}", "s_nop 0"] if i == 0 else []) + [f"buffer_load_dwordx4 v{vWC}, s[{srdw}:{srdw+3}], s{sW4k} offen{o} lds"])
    c = Asm(); sav = a.lines; a.lines = c.lines
    a.e(f"v_and_b32 v{t+1}, 7, v{vL}")
    onehot4(a, AQ, t+1, None, t+2)
    a.e(f"v_lshlrev_b32 v{t+2}, 5, v{vL}")
    a.e(f"v_and_b32 v{vM}, 31, v0")
    a.e(f"v_lshlrev_b32 v{vW0}, 2, v{vW0}")
    a.e("s_mov_b64 exec, 0x1ff")
    a.e(f"ds_write_b128 v{t+2}, v[{vT+8}:{vT+11}] offset:{LUT+16}")
    a.e("s_mov_b64 exec, 0x100")
    a.e(f"ds_write_b128 v{t+2}, v[{vT+8}:{vT+11}] offset:{LUT}")
    a.e("s_mov_b64 exec, 0xff")
    a.e(f"ds_write_b128 v{t+2}, v[{AQ}:{AQ+3}] offset:{LUT}")
    a.e("s_mov_b64 exec, -1")
    srd(a, sP, S_WS, off_c=cfg.wsoff + WS_P - 3072, size=PSIZE)
    if NPF:
        a.e(f"s_lshr_b32 s{sT}, s2, 3")
        a.e(f"s_mul_i32 s{sT}, s{sT}, {781*128}")
        a.e(f"s_add_u32 s{sT}, s{sT}, 3072")
        a.e(f"v_lshl_add_u32 v{vPF}, v{vL}, 3, s{sW}")
        if cfg.pfn < 512:
            a.e(f"s_movk_i32 s{sT+1}, {cfg.pfn}")
            a.e(f"v_cmp_gt_u32 vcc, s{sT+1}, v{vPF}")
        a.e(f"v_lshl_add_u32 v{vPF}, v{vPF}, 7, s{sT}")
        if NPF > 1:
            a.e(f"v_add_u32 v{vPF+1}, 0x10000, v{vPF}")
        if cfg.pfn < 512:
            a.e(f"v_mov_b32 v{vT+3}, 0x7ffffff0")
            a.e(f"v_cndmask_b32 v{vPF+NPF-1}, v{vT+3}, v{vPF+NPF-1}, vcc")
    if cfg.pfe:
        a.e(f"s_mul_i32 s{sT}, s2, 51200")
        a.e(f"v_lshl_add_u32 v{vPF+1}, v{vL}, 3, s{sW}")
        a.e(f"s_movk_i32 s{sT+1}, {cfg.pfe}")
        a.e(f"v_cmp_gt_u32 vcc, s{sT+1}, v{vPF+1}")
        a.e(f"v_lshl_add_u32 v{vPF+1}, v{vPF+1}, 7, s{sT}")
        a.e(f"v_mov_b32 v{vT+3}, 0x7ffffff0")
        a.e(f"v_cndmask_b32 v{vPF+1}, v{vT+3}, v{vPF+1}, vcc")
    NPP = NPF
    if cfg.pfm:
        a.e(f"v_lshl_add_u32 v{vPF+1}, v{vL}, 3, s{sW}")
        a.e(f"s_movk_i32 s{sT+1}, {cfg.pfm}")
        a.e(f"v_cmp_gt_u32 vcc, s{sT+1}, v{vPF+1}")
        a.e(f"s_add_u32 s{sT}, s{sT}, 0x10000")
        a.e(f"v_lshl_add_u32 v{vPF+1}, v{vPF+1}, 7, s{sT}")
        a.e(f"v_cndmask_b32 v{vPF+1}, v{vT+3}, v{vPF+1}, vcc")
        dm[cfg.pfmpos] = dm[cfg.pfmpos] + [f"buffer_load_dword v37, v{vPF+1}, s[{sP}:{sP+3}], 0 offen"]
    if cfg.tlb:
        a.e(f"v_lshlrev_b32 v{vPF+1}, 20, v{vL}")
    def pf(pos):
        if cfg.pfpos == pos:
            if cfg.tlb & 1: a.e(f"buffer_load_dword v37, v{vPF+1}, s[{sE}:{sE+3}], 0 offen")
            if cfg.tlb & 2: a.e(f"buffer_load_dword v37, v{vPF+1}, s[{sO}:{sO+3}], 0 offen")
            if cfg.pfe: a.e(f"buffer_load_dword v37, v{vPF+1}, s[{sE}:{sE+3}], 0 offen {cfg.et_pol}")
            for i in range(NPP): a.e(f"buffer_load_dword v37, v{vPF+i}, s[{sP}:{sP+3}], 0 offen")
    if cfg.pfe: NPF += 1
    NPF += (cfg.tlb & 1) + (cfg.tlb >> 1 & 1)
    a.e(f"s_mov_b32 s{sLim}, 32")
    a.e(f"s_mov_b32 s{sDone}, 0")
    wfrag_const(a, vWA, vL, sW, t, sT)
    a.e(f"v_add_u32 v{vW3A}, {STG + 32768}, v{vW3A}")
    a.e(f"v_lshrrev_b32 v{t}, 5, v{vL}")
    a.e(f"v_and_b32 v{t+1}, 15, v{vL}")
    a.e(f"v_xor_b32 v{t+2}, v{t}, v{t+1}")
    a.e(f"v_lshlrev_b32 v{t+2}, 4, v{t+2}")
    a.e(f"v_lshl_add_u32 v{vXA}, v{t+1}, 8, v{t+2}")
    a.e(f"v_bfe_u32 v{t+2}, v{vL}, 4, 1")
    a.e(f"v_lshl_add_u32 v{vXA}, v{t+2}, 13, v{vXA}")
    a.e(f"s_lshr_b32 s{sT}, s{sW}, 2")
    a.e(f"s_lshl_b32 s{sT}, s{sT}, 14")
    a.e(f"s_add_u32 s{sT}, s{sT}, {STG}")
    a.e(f"v_add_u32 v{vXA}, s{sT}, v{vXA}")
    srd(a, sE, S_E, size=ESIZE)
    a.e(f"s_mov_b32 s{sSafe}, 0")
    a.e(f"s_mov_b32 s{sFirst}, 1")
    a.e(f"s_mov_b32 s{sMask}, {'0x4003ffe0' if 'esm' in cfg.x else '0x7fffffe0'}")
    a.e(f"v_mov_b32 v{vCL}, {LUT + 256}")
    a.e(f"v_bfe_u32 v{t+1}, v{vL}, 3, 2")
    a.e(f"v_bfe_u32 v{t+3}, v{vL}, 1, 1")
    a.e(f"v_lshl_add_u32 v{t+1}, v{t+1}, 1, v{t+3}")
    a.e(f"v_lshlrev_b32 v{t+1}, 5, v{t+1}")
    a.e("s_mov_b32 exec_lo, 0x0f0f0f0f\ns_mov_b32 exec_hi, 0xf0f0f0f0")
    a.e(f"v_add_u32 v{vCL}, {LUT}, v{t+1}")
    a.e("s_mov_b64 exec, -1")
    a.e(f"v_lshlrev_b32 v{vH16}, 4, v{t}")
    if 'ehalf' in cfg.x: a.e(f"v_lshlrev_b32 v18, 30, v{t}")
    a.e(f"v_and_b32 v{t+1}, 3, v{vL}")
    a.e(f"v_lshlrev_b32 v{vCQ}, 3, v{t+1}")
    a.e(f"v_lshl_add_u32 v{vCQ}, v{t+2}, 5, v{vCQ}")
    a.e(f"v_add_u32 v{vCQ}, {QL}, v{vCQ}")
    a.e(f"v_lshlrev_b32 v{vCA}, 2, v{vM}")
    a.e(f"v_mad_u32_u24 v{vSD}, v{vH16}, 33, v{vCA}")
    a.e(f"s_mul_i32 s{sT}, s{sW}, 1056")
    a.e(f"s_add_u32 s{sT}, s{sT}, {SIDE}")
    a.e(f"v_add_u32 v{vSD}, s{sT}, v{vSD}")
    a.e(f"v_lshlrev_b32 v{t+2}, 6, v{t+2}")
    a.e(f"v_sub_u32 v{vCA}, v{vCA}, v{t+2}")
    a.e(f"v_add_u32 v{vCA}, {AGG - 2*QL}, v{vCA}")
    a.e(f"v_bfe_u32 v{t+1}, v{vL}, 2, 2")
    a.e(f"v_lshl_add_u32 v{vRP0}, v{t+1}, 7, v{vCQ}")
    a.e(f"v_lshl_add_u32 v{vRP0}, v{t}, 11, v{vRP0}")
    a.e(f"v_and_b32 v{t+1}, 8, v{vL}")
    a.e(f"v_lshl_add_u32 v{vRP0}, v{t+1}, 3, v{vRP0}")
    a.e(f"s_add_u32 s{sT}, s{sM0}, {256 - QL}")
    a.e(f"v_add_u32 v{vRP0}, s{sT}, v{vRP0}")
    a.e(f"v_xor_b32 v{vRP1}, 64, v{vRP0}")
    a.e(f"s_movk_i32 s{s256}, 256")
    a.e(f"v_mov_b32 v{vCHK}, 0")
    def round_consts(a):
        a.e(f"v_lshrrev_b32 v{t}, 3, v{vM}")
        a.e(f"v_and_b32 v{t+1}, 3, v{vL}")
        a.e(f"v_lshl_add_u32 v{vAE}, v{t}, 2, v{t+1}")
        a.e(f"v_lshlrev_b32 v{vAE}, 3, v{vAE}")
        a.e(f"v_bfe_u32 v{t+1}, v{vL}, 2, 2")
        a.e(f"v_lshlrev_b32 v{vAQ}, 4, v{t+1}")
        a.e(f"v_and_b32 v{vAP}, 24, v{vL}")
        a.e(f"v_and_b32 v{t}, 7, v{vL}")
        a.e(f"v_bfe_u32 v{t+1}, v{vL}, 4, 1")
        a.e(f"v_lshlrev_b32 v{t}, 4, v{t}")
        a.e(f"v_lshlrev_b32 v{t+1}, 6, v{t+1}")
        a.e(f"v_xor_b32 v{vC4+3}, v{t}, v{t+1}")
        for j in range(3):
            a.e(f"v_add_u32 v{vC4+j}, {1024*(3-j)}, v{vC4+3}")
        a.e(f"v_mov_b32 v{vT}, 1")
        a.e(f"v_mov_b32 v{vT+1}, {FLG}")
        a.e(f"v_lshlrev_b32 v{vT+2}, 2, v{vL}")
        a.e(f"s_mov_b32 s{sT}, 0x420000")
        a.e(f"s_brev_b32 s{sT+6}, 1")
        a.e(f"s_add_u32 s{sT+7}, s{sDone}, s{sLim}")
        a.e(f"v_cmp_ne_u32 s[{sX0+2}:{sX0+3}], 0, v{vW0}")
    round_consts(a)
    a.lines = sav
    for x in mix(c.lines, dm): a.e(x)
    stamp(a, 1, 252)
    pf(1)
    stamp(a, 4, 252)
    a.e(f"s_waitcnt vmcnt({11 + (1 if cfg.pfm else 0) + (NPF if cfg.pfpos <= 1 else 0)})")
    stamp(a, 5, 252)
    a.e(f"v_mov_b32_dpp v{vOC}, v{RC} quad_perm:[0,0,0,0] row_mask:0xf bank_mask:0xf")
    a.label("K2_COUNT")
    def groups(fn, lab, order=range(8), extra=(), pre=()):
        c = Asm(); sav = a.lines; a.lines = c.lines
        for i in order: fn(i)
        a.lines = sav
        for x in mix(c.lines, list(extra)): a.e(x)
    KK = lambda i: 16 * (i >> 2) + (i & 3)
    na = lambda i: f"v_lshlrev_b32_sdwa v{NA+i}, 2, v{RC+i} dst_sel:BYTE_0 dst_unused:UNUSED_PAD src0_sel:DWORD src1_sel:BYTE_0"
    a.e(na(1))
    a.e(f"v_min_u32 v{vREM}, s{sT+7}, v{vOC}")
    a.e(f"v_sub_u32 v{vREM}, v{vREM}, v{vW0}")
    a.e(f"v_cmp_lt_u32 s[{sX0+6}:{sX0+7}], s{sT+7}, v{vOC}")
    a.e(f"v_cmp_lt_i32 s[{sX0}:{sX0+1}], 0, v{vREM}")
    a.e(na(0))
    def f_cnt(i):
        a.e(f"v_cmpx_lt_i32 vcc, {KK(i)}, v{vREM}")
        if i < 7: a.e(na(i + 1))
        a.e(f"ds_add_rtn_u32 v{RK+i}, v{NA+i}, v{vT} offset:{CNT}")
    groups(f_cnt, "K2_G1", order=range(1, 8))
    a.e(f"s_and_b64 s[{sX0}:{sX0+1}], s[{sX0}:{sX0+1}], s[{sX0+2}:{sX0+3}]")
    a.e(f"s_mov_b64 exec, s[{sX0}:{sX0+1}]")
    a.e(f"ds_add_rtn_u32 v{RK}, v{NA}, v{vT} offset:{CNT}")
    a.e(f"s_mov_b64 exec, s[{sX0+6}:{sX0+7}]")
    a.e(f"ds_write_b32 v{vT+1}, v{vT}")
    a.e("s_mov_b64 exec, -1")
    def f_ent(i):
        e0 = EN + 2 * i
        a.e(f"v_lshrrev_b32 v{e0}, 20, v{RC+i}")
        a.e(f"v_add_lshl_u32 v{e0}, v{e0}, v{vEB}, 5")
    groups(f_ent, "K2_G2")
    pf(2)
    a.e("s_waitcnt lgkmcnt(0)")
    a.e("s_barrier")
    stamp(a, 6, 252)
    a.e(f"ds_read_b32 v{vT+6}, v{vT+2} offset:{CNT}")
    a.e(f"ds_read_b32 v{vT+5}, v{vT+1}")
    def f_ent2(i):
        e1 = EN + 1 + 2 * i
        a.e(f"v_bfe_u32 v{e1}, v{RC+i}, 6, 14")
        a.e(f"v_mad_u32_u24 v{e1}, v{NA+i}, s{sT}, v{e1}")
    groups(f_ent2, "K2_G5")
    a.e("s_waitcnt lgkmcnt(0)")
    a.e(f"v_add_u32 v{vT+3}, 1, v{vT+6}")
    a.e(f"v_lshrrev_b32 v{vT+3}, 1, v{vT+3}")
    a.e(f"v_mov_b32 v{vT+4}, v{vT+3}")
    a.e(f"v_readfirstlane_b32 s{sMore}, v{vT+5}")
    fl = []
    for i in range(8):
        fl.append(f"v_add_u32 v{RC+i}, -1, v{RK+i}")
        fl.append(f"v_and_or_b32 v{EN+2*i}, v{RC+i}, s{sT+6}, v{EN+2*i}")
    v = vT + 4
    dpp = [f"v_add_u32_dpp v{v}, v{v}, v{v} row_shr:{sh} row_mask:0xf bank_mask:0xf bound_ctrl:0" for sh in (1, 2, 4, 8)]
    dpp += [f"v_add_u32_dpp v{v}, v{v}, v{v} row_bcast:15 row_mask:0xa bank_mask:0xf", f"v_add_u32_dpp v{v}, v{v}, v{v} row_bcast:31 row_mask:0xc bank_mask:0xf"]
    for j in range(6):
        a.e(fl[2*j]); a.e(fl[2*j+1]); a.e(dpp[j])
    a.e(fl[12])
    a.e(f"v_readlane_b32 s{sT+5}, v{vT+4}, 63")
    a.e(f"v_sub_u32 v{vT+4}, v{vT+4}, v{vT+3}")
    a.e(f"v_lshlrev_b32 v{vT+4}, 4, v{vT+4}")
    def f_perm(i):
        a.e(f"ds_bpermute_b32 v{NA+i}, v{NA+i}, v{vT+4}")
        if i >= 8:
            a.e(f"v_add_u32 v{RC+i}, -1, v{RK+i}")
            a.e(f"v_and_or_b32 v{EN+2*i}, v{RC+i}, s{sT+6}, v{EN+2*i}")
    groups(f_perm, "K2_G3")
    for x in fl[13:]: a.e(x)
    pf(3)
    a.e(f"s_cmp_gt_u32 s{sT+5}, 1025")
    a.e("s_cbranch_scc1 K2_TOOBIG")
    a.e(f"s_add_u32 s{sT}, s{sT+5}, 7")
    a.e(f"s_lshr_b32 s{sT}, s{sT}, 3")
    if cfg.ratio:
        a.e(f"s_mul_i32 s{sT+1}, s{sT}, {cfg.ratio}")
        a.e(f"s_add_u32 s{sT+1}, s{sT+1}, 63")
        a.e(f"s_lshr_b32 s{sT+1}, s{sT+1}, 6")
    else:
        a.e(f"s_add_u32 s{sT+1}, s{sT}, {cfg.bias}")
        a.e(f"s_lshr_b32 s{sT+1}, s{sT+1}, 4")
        a.e(f"s_lshl_b32 s{sT+1}, s{sT+1}, 3")
    a.e(f"s_min_u32 s{sT+1}, s{sT+1}, s{sT}")
    a.e(f"s_sub_u32 s{sT+2}, s{sT}, s{sT+1}")
    a.e(f"s_and_b32 s{sT+3}, s{sW}, 3")
    a.e(f"s_mul_i32 s{sT+3}, s{sT+3}, s{sT}")
    a.e(f"s_cmp_lt_u32 s{sW}, 4")
    a.e(f"s_cselect_b32 s{sL}, s{sT+1}, s{sT+2}")
    a.e(f"s_cselect_b32 s{sT+4}, 0, s{sT+1}")
    a.e(f"s_add_u32 s{sT+3}, s{sT+3}, s{sT+4}")
    a.e(f"s_lshl_b32 s{sT+3}, s{sT+3}, 5")
    a.e(f"s_add_u32 s{sT+3}, s{sT+3}, {LIST}")
    a.e(f"s_lshl_b32 s{sT+4}, s{sL}, 4")
    a.e(f"s_add_u32 s{sNT}, s{sL}, 7")
    a.e(f"s_lshr_b32 s{sNT}, s{sNT}, 3")
    a.e(f"s_cmp_eq_u32 s{sW}, 7")
    a.e("s_cbranch_scc0 K2_NODUM")
    a.e(f"v_mov_b32 v{vT+8}, 0x7ffffff0\nv_mov_b32 v{vT+9}, 0xffff\nv_mov_b32 v{vT+10}, 0x7ffffff0\nv_mov_b32 v{vT+11}, 0xffff")
    a.e(f"v_lshl_add_u32 v{vT+7}, v{vT+6}, 3, v{vT+4}")
    a.e(f"v_and_b32 v{vT+6}, 1, v{vT+6}")
    a.e(f"v_cmp_eq_u32 vcc, 1, v{vT+6}")
    a.e("s_mov_b64 exec, vcc")
    a.e(f"ds_write_b64 v{vT+7}, v[{vT+8}:{vT+9}] offset:{LIST}")
    a.e("s_mov_b32 exec_lo, -1\ns_mov_b32 exec_hi, 0x7f")
    a.e(f"v_add_lshl_u32 v{vT+7}, v{vL}, s{sT+5}, 4")
    a.e(f"ds_write_b128 v{vT+7}, v[{vT+8}:{vT+11}] offset:{LIST}")
    a.e("s_mov_b64 exec, -1")
    a.label("K2_NODUM")
    a.e("s_waitcnt lgkmcnt(0)")
    a.e(f"v_lshl_add_u32 v{NA}, v{RK}, 3, v{NA}")
    def f_place(i):
        a.e(f"v_cmpx_lt_i32 vcc, {KK(i)}, v{vREM}")
        a.e(f"v_lshl_add_u32 v{NA+i}, v{RK+i}, 3, v{NA+i}")
        a.e(f"ds_write_b64 v{NA+i}, v[{EN+2*i}:{EN+1+2*i}] offset:{LIST}")
    groups(f_place, "K2_G4", order=range(1, 8))
    a.e(f"s_mov_b64 exec, s[{sX0}:{sX0+1}]")
    a.e(f"ds_write_b64 v{NA}, v[{EN}:{EN+1}] offset:{LIST}")
    a.e("s_mov_b64 exec, -1")
    a.e(f"v_add_u32 v{vAE}, s{sT+3}, v{vAE}")
    a.e(f"v_add3_u32 v{vAP}, v{vAP}, s{sT+3}, 4")
    a.e(f"v_add3_u32 v{vAQ}, v{vAQ}, s{sT+3}, 6")
    a.e("s_mov_b32 exec_lo, 0xf0f0f0f0\ns_mov_b32 exec_hi, 0xf0f0f0f0")
    a.e(f"v_add_u32 v{vAE}, s{sT+4}, v{vAE}")
    a.e("s_mov_b32 exec_lo, 0\ns_mov_b32 exec_hi, -1")
    a.e(f"v_add_u32 v{vAP}, s{sT+4}, v{vAP}")
    a.e(f"v_add_u32 v{vAQ}, s{sT+4}, v{vAQ}")
    a.e("s_mov_b64 exec, -1")
    a.e(f"s_sub_u32 s{sT+1}, s{sT+1}, 1")
    a.e(f"s_sub_u32 s{sT+2}, s{sT+2}, 1")
    a.e(f"s_min_u32 s{sT+1}, s{sT+1}, s{sT+2}")
    a.e(f"v_cmp_lt_u32 s[{sSusp}:{sSusp+1}], s{sT+1}, v{vT+3}")
    a.e(f"s_cmp_eq_u32 s{sNT}, 0")
    a.e(f"s_cselect_b32 s{sP+2}, 0, {PSIZE}")
    a.e(f"s_cselect_b32 s{sE+2}, 0, {ESIZE}")
    a.e(f"s_cmp_eq_u32 s{sFirst}, 0")
    a.e(f"s_waitcnt vmcnt({NPF}) lgkmcnt(0)")
    a.e("s_barrier")
    a.e("s_cbranch_scc1 K2_PRO2")
    stamp(a, 7, 252)
    adv = [f"v_add_u32 v{r}, s{s256}, v{r}" for r in (vAE, vAP, vAQ)]
    def early_e1():
        return addr_e() + [f"s_cmp_lt_u32 s{sNT}, 2", f"s_cselect_b32 s{sE+2}, 0, s{sE+2}", e_load(1)]
    def prologue(a, first):
        for s in list_reads_se() + list_reads_n(): a.e(s)
        if first:
            for st in range(8):
                if st == 0: a.e(f"ds_read_b128 v[{XF}:{XF+3}], v{vXA}")
                else:
                    r = vT + (st & 1)
                    a.e(f"v_xor_b32 v{r}, {32*st}, v{vXA}")
                    a.e(f"ds_read_b128 v[{XF+4*st}:{XF+4*st+3}], v{r}")
        a.e(f"s_waitcnt lgkmcnt({8 if first else 0})")
        for s in addr_se() + addr_q(0): a.e(s)
        for s in list_reads_se(1): a.e(s)
        for s in flags_from_vcc(sF0): a.e(s)
        d0 = dma_ops(0, "alt"); d1 = dma_ops(1)
        fr = Asm()
        if first:
            a.e(f"v_add_u32 v{vT+3}, {STG + 4096}, v{vWA}")
            wfrag_read(fr, W2F, vT+3, 0, 8192)
            wfrag_read(fr, WU1F, vWA, WU1L)
            for c in range(4):
                fr.e(f"ds_read_b128 v[{W3+4*c}:{W3+4*c+3}], v{vW3A} offset:{1024*c}")
        n4 = len(fr.lines) // 4
        if cfg.e0f: a.e(e_load(0))
        for s in d0[0] + fr.lines[:n4] + d0[1] + fr.lines[n4:2*n4]: a.e(s)
        if not cfg.e0f: a.e(e_load(0))
        for s in fr.lines[2*n4:3*n4]: a.e(s)
        a.e(f"v_cmp_ne_u32 vcc, v{vLA}, v{vCL}")
        a.e(f"v_mov_b32_dpp v{vFA}, v{vQA} row_newbcast:0 row_mask:0xf bank_mask:0xf")
        a.e(f"v_mov_b32 v{vLA0}, v{vLA}")
        for s in d0[2] + fr.lines[3*n4:]: a.e(s)
        a.e(f"s_cmp_eq_u32 s{sNT}, 0")
        a.e(f"s_cselect_b32 s{sDm}, -1, vcc_lo")
        a.e(f"v_lshl_add_u32 v{vFA}, v{vFA}, 1, v{vCA}")
        for s in d0[3]: a.e(s)
        if first:
            a.e(f"s_lshr_b32 s{sT+1}, s{sW}, 2")
            a.e(f"s_lshl_b32 s{sT+1}, s{sT+1}, 5")
            a.e(f"v_add_u32 v{vT+1}, s{sT+1}, v{vM}")
            a.e(f"v_mul_u32_u24 v{vT+2}, 264, v{vT+1}")
            a.e(f"v_lshl_add_u32 v{vT+2}, v{vH16}, 1, v{vT+2}")
            a.e(f"s_and_b32 s{sT+1}, s{sW}, 3")
            a.e(f"s_lshl_b32 s{sT+1}, s{sT+1}, 6")
            a.e(f"v_add_u32 v{vT+2}, s{sT+1}, v{vT+2}")
            a.e(f"v_cmp_gt_u32 s[{sX0}:{sX0+1}], 49, v{vT+1}")
            a.e(f"v_lshlrev_b32 v{vT}, 4, v0")
            a.e(f"v_mov_b32 v{vT+8}, 0\nv_mov_b32 v{vT+9}, 0\nv_mov_b32 v{vT+10}, 0\nv_mov_b32 v{vT+11}, 0")
            a.e(f"s_movk_i32 s{sT+1}, {49*528//16 - 1536}")
            a.e(f"v_cmp_gt_u32 s[{sX0+2}:{sX0+3}], s{sT+1}, v0")
            a.e(f"s_mov_b32 s{sT}, {LOG2E_NEG}")
            a.e(f"s_mov_b32 s{sT+1}, {LOG2E_NEG}")
            stamp(a, 44, 252)
            a.e("s_waitcnt lgkmcnt(0)")
            g = Asm(); gemm8(g, QACC, W2F, XF)
            for x in g.lines: a.e(x)
            g = Asm(); gemm8(g, ACX, WU1F, XF)
            q = [f"v_mul_f32 v{QACC+i}, s{sT}, v{QACC+i}" for i in range(16)] + [f"v_cvt_pk_bf16_f32 v{QACC+i}, v{QACC+2*i}, v{QACC+1+2*i}" for i in range(8)]
            a.e(g.lines[0])
            if cfg.e1e:
                for x in early_e1(): a.e(x)
                a.e("s_nop 5")
            else:
                a.e("s_nop 9")
            for j in range(3):
                a.e(g.lines[1+j])
                for x in q[j*8:j*8+8]: a.e(x)
            a.e(f"s_mov_b64 exec, s[{sX0}:{sX0+1}]")
            for gg in range(4):
                a.e(f"ds_write_b64 v{vT+2}, v[{QACC+2*gg}:{QACC+1+2*gg}] offset:{QL + 8*gg}")
            a.e("s_mov_b64 exec, -1")
            a.e("s_barrier")
            for j in range(3):
                a.e(f"ds_write_b128 v{vT}, v[{vT+8}:{vT+11}] offset:{AGG + j*8192}")
            a.e(g.lines[4])
            a.e(f"s_mov_b64 exec, s[{sX0+2}:{sX0+3}]")
            a.e(f"ds_write_b128 v{vT}, v[{vT+8}:{vT+11}] offset:{AGG + 3*8192}")
            a.e("s_mov_b64 exec, -1")
            for s in d1[0]: a.e(s)
            a.e(g.lines[5])
            a.e("s_waitcnt lgkmcnt(0)")
            a.e("s_barrier")
            stamp(a, 45, 252)
            for j in range(1, 4):
                for s in d1[j]: a.e(s)
                if j < 3: a.e(g.lines[5+j])
        else:
            if cfg.e1e:
                a.e("s_waitcnt lgkmcnt(0)")
                for x in early_e1(): a.e(x)
            for s in sum(d1, []): a.e(s)
        a.e(f"s_cmp_lt_u32 s{sNT}, 2")
        a.e(f"s_cselect_b32 s{sP+2}, 0, s{sP+2}")
        a.e(f"s_cselect_b32 s{sE+2}, 0, s{sE+2}")
        if not first: a.e("s_waitcnt lgkmcnt(0)")
        for s in addr_se(): a.e(s)
        for s in list_reads_se(2) + list_reads_n(1): a.e(s)
        for s in flags_from_vcc(sF1): a.e(s)
    prologue(a, True)
    rare.label("K2_PRO2")
    rare.e("s_waitcnt vmcnt(0)")
    prologue(rare, False)
    rare.e("s_branch K2_NOX")
    stamp(a, 42, 252)
    for i in range(8):
        a.e(f"v_pk_mul_f32 {p2(ACX+2*i)}, {p2(ACX+2*i)}, s[{sT}:{sT+1}]")
    a.label("K2_NOX")
    stamp(a, 43, 252)
    a.e(f"s_cmp_eq_u32 s{sNT}, 0")
    a.e("s_cbranch_scc1 K2_NOTILES")
    a.e(f"ds_read_b128 v[{AQ}:{AQ+3}], v{vLA0}")
    for s in qfrag_reads(QY, 0, 0) + qfrag_reads(QX, 1, 0): a.e(s)
    if cfg.t1pos == 1:
        if not cfg.e1e: a.e(e_load(1))
        dma_half(a, 0)
    for i in range(4): a.e(f"v_mov_b32 v{AP+i}, 0")
    for i in range(4):
        shf = 16 * (i >> 1) + 4 * (i & 1)
        a.e(f"s_mov_b32 exec_lo, {hex(0xf << shf)}\ns_mov_b32 exec_hi, {hex(0xf << (shf + 8))}")
        a.e(f"v_mov_b32 v{AP+i}, 0x3f80")
    a.e("s_mov_b64 exec, -1")
    a.e(f"v_and_b32 v{IDX}, 3, v{vL}")
    a.e(f"v_mul_u32_u24 v{IDX}, 0x5555, v{IDX}")
    a.e(f"s_add_u32 s{sMA}, s{sM0}, {4096 - 128 + 256}")
    a.e(f"s_add_u32 s{sMB}, s{sM0}, 256")
    a.e(f"s_and_b32 s{sT}, s{sL}, 6")
    a.e(f"s_and_b32 s{sT+1}, s{sL}, 1")
    a.e(f"s_lshl1_add_u32 s{sT}, s{sT}, s{sT+1}")
    a.e(f"s_lshl_b32 s{sT}, s{sT}, 1")
    a.e(f"s_cselect_b32 s{sT+1}, 1, 0")
    a.e(f"s_lshl_b32 s{sEX+1}, s{sT+1}, s{sT}")
    a.e(f"s_lshl_b32 s{sEX}, s{sEX+1}, 1")
    a.e(f"s_cmp_eq_u32 s{sNT}, 1")
    a.e(f"s_cselect_b64 s[{sT}:{sT+1}], s[{sEX}:{sEX+1}], 0")
    a.e(f"s_or_b64 s[{sF0}:{sF0+1}], s[{sF0}:{sF0+1}], s[{sT}:{sT+1}]")
    for c in range(4):
        a.e(f"v_mov_b32 v{NN+2*c}, 0\nv_mov_b32 v{NN+2*c+1}, 0\nv_mov_b32 v{DD+2*c}, 1.0\nv_mov_b32 v{DD+2*c+1}, 1.0")
    a.e(f"v_mov_b32 v{vCUR}, v{vSD}\nv_mov_b32 v{vCUR+1}, v{vSD}")
    for c in range(4): a.e(f"v_mov_b32 v{ACC+c}, 0")
    a.e(f"s_sub_u32 s{sT}, s{sW4k}, s{sM0}")
    a.e(f"s_add_u32 s{sT}, s{sT}, {WU2 - 256}")
    a.e(f"v_add_u32 v{vT}, s{sT}, v{vRP0}")
    a.e(f"v_add_u32 v{vT+1}, s{sT}, v{vRP1}")
    stamp(a, 46, 252)
    a.e(f"s_waitcnt vmcnt({4 + cfg.e1e})" if cfg.t1pos == 2 else "s_waitcnt vmcnt(9)")
    stamp(a, 47, 252)
    for s in pfrag_reads(PY, 0, vT): a.e(s)
    mf = mfmas(0, PY, QY, 0)
    a.e("s_waitcnt lgkmcnt(8)")
    for s in mf[:4]: a.e(s)
    a.e("s_waitcnt lgkmcnt(0)")
    for s in mf[4:]: a.e(s)
    if cfg.t1pos == 2:
        if not cfg.e1e: a.e(e_load(1))
        dma_half(a, 0)
    stamp(a, 8, 252)
    if cfg.dbg:
        a.e("s_memtime s[90:91]\ns_waitcnt lgkmcnt(0)\nv_writelane_b32 v252, s90, 14")
    a.e(f"s_sub_u32 s{sCnt}, s{sNT}, 1")
    a.e(f"s_waitcnt vmcnt({5 - cfg.e1e})")
    stamp(a, 48, 252)
    for s in pfrag_reads(PX, 1): a.e(s)
    def lstamp(x):
        if not cfg.lst: return
        a.e("s_memrealtime s[90:91]")
        a.e(f"s_lshl_b32 s92, s{sCnt}, 1")
        a.e(f"s_add_u32 s92, s92, {x+2}")
        a.e("s_mov_b32 m0, s92")
        a.e("s_waitcnt lgkmcnt(0)")
        a.e("v_writelane_b32 v252, s90, m0")
    def iteration(par):
        exA = {
            0: addr_q(1 - par),
            1: qfrag_reads(QY, 0, 1 - par),
            2: [f"s_mov_b32 m0, s{sMA}", "s_waitcnt lgkmcnt(4)"] + dma_ld(1)[:2],
            3: dma_ld(1)[2:],
            4: [f"ds_read_b128 v[{AQ}:{AQ+3}], v{vLA}",
                f"s_cmp_lt_u32 s{sCnt}, 2", f"s_cbranch_scc1 WU2_{par}", f"WU2R_{par}:"],
            7: ["s_waitcnt vmcnt(4) lgkmcnt(0)"] + pfrag_reads(PY, 0),
        }
        half_step(a, ool, 0, par, exA, f"A{par}")
        ool.label(f"WU2_{par}")
        ool.e(f"s_mov_b32 s{sP+2}, 0")
        ool.e(f"s_mov_b32 s{sE+2}, 0")
        sFn = (sF1, sF0)[par]
        ool.e(f"s_or_b64 s[{sFn}:{sFn+1}], s[{sFn}:{sFn+1}], s[{sEX}:{sEX+1}]")
        ool.e(f"s_cmp_lg_u32 s{sCnt}, 0")
        ool.e(f"s_cbranch_scc1 WU2R_{par}")
        w_dma(ool, sWu, vWC, sW4k, 32768, WU2, sT)
        ool.e(f"s_branch WU2R_{par}")
        mf = mfmas(2, PX, QX, par)
        ool.label(f"EXA{par}_1")
        ool.e("s_waitcnt lgkmcnt(0)")
        ool.e(mf[2])
        ool.label(f"EXA{par}_2")
        ool.e(mf[3])
        ool.label(f"EXA{par}_3")
        ool.e(mf[4])
        w_dma(ool, sWu, vWC, sW4k, 32768, WU2, sT)
        ool.label(f"EXA{par}_4")
        ool.e(mf[5])
        ool.e("s_nop 7")
        ool.label(f"EXA{par}_5")
        ool.e(f"s_branch R_A{par}_7")
        exB = {
            0: qfrag_reads(QX, 1, 1 - par),
            1: addr_se(),
            2: [f"s_mov_b32 m0, s{sMB}", "s_waitcnt lgkmcnt(4)"] + dma_ld(0)[:2],
            3: dma_ld(0)[2:] + [e_load(par)],
            4: list_reads_se(3 + par) + list_reads_n(2 + par),
            5: adv if par else [],
            7: ["s_waitcnt vmcnt(5) lgkmcnt(0)"] + pfrag_reads(PX, 1),
        }
        lstamp(17)
        half_step(a, ool, 1, par, exB, f"B{par}")
        lstamp(16)
        for s in flags_from_vcc((sF0, sF1)[par]): a.e(s)
        a.e(f"s_sub_u32 s{sCnt}, s{sCnt}, 1")
    a.label("K2_LOOP")
    iteration(0)
    a.e("s_cbranch_scc1 K2_LEND")
    iteration(1)
    a.e("s_cbranch_scc0 K2_LOOP")
    a.label("K2_LEND")
    stamp(a, 9, 252)
    if cfg.dbg:
        a.e("s_memtime s[90:91]\ns_waitcnt lgkmcnt(0)\nv_writelane_b32 v252, s90, 15")
    flush_code(a, 0, 0)
    a.e(f"ds_write2_b32 v{vCUR}, v{ACC}, v{ACC+1} offset1:32")
    flush_code(a, 2, 1, wait=False)
    a.e(f"ds_write2_b32 v{vCUR+1}, v{ACC+2}, v{ACC+3} offset0:64 offset1:96")
    a.label("K2_AFTER")
    a.e(f"s_mov_b32 s{sFirst}, 0")
    a.e(f"s_bitcmp0_b32 s{sDm}, 0")
    a.e(f"s_cselect_b32 s{sX0+2}, -1, 0")
    a.e(f"s_bitcmp0_b32 s{sDm}, 4")
    a.e(f"s_cselect_b32 s{sX0+3}, -1, 0")
    a.e(f"s_lshr_b32 s{sT+1}, s{sW}, 2")
    a.e(f"s_lshl_b32 s{sT+2}, s{sT+1}, 5")
    a.e(f"v_add_u32 v{vT+8}, s{sT+2}, v{vM}")
    a.e(f"v_mul_u32_u24 v{vT+9}, 528, v{vT+8}")
    a.e(f"v_cmp_gt_u32 s[{sX0}:{sX0+1}], 49, v{vT+8}")
    a.e(f"s_and_b32 s{sT+2}, s{sW}, 3")
    a.e(f"s_lshl_b32 s{sT+2}, s{sT+2}, 7")
    a.e(f"v_lshl_add_u32 v{vT+5}, v{vH16}, 1, s{sT+2}")
    a.e(f"v_add_u32 v{vT+6}, v{vT+9}, v{vT+5}")
    a.e(f"v_add_u32 v{vT+4}, {WU2}, v{vWA}")
    a.e(f"s_add_u32 s{sT+2}, s{sM0}, {256 + 4096}")
    a.e(f"v_lshl_add_u32 v{vT+2}, v{vL}, 4, s{sT+2}")
    a.e(f"s_lshl_b32 s{sT+1}, s{sT+1}, 15")
    a.e(f"s_add_u32 s{sT+1}, s{sT+1}, {STG + 4096}")
    a.e(f"v_lshl_add_u32 v{vT+3}, v{vL}, 4, s{sT+1}")
    a.e(f"s_or_b32 s{sT}, s{sSusp}, s{sSusp+1}")
    a.e(f"s_or_b32 s{sT}, s{sT}, s{sMore}")
    a.e("s_cbranch_scc1 K2_SLOWM")
    a.e(f"s_and_b32 exec_lo, s{sX0+2}, 1")
    a.e(f"s_and_b32 exec_hi, s{sX0+3}, 1")
    a.e(f"ds_write_b32 v{vFA}, v{vSD} offset:512")
    a.label("K2_MERGED")
    a.e(f"s_mov_b64 exec, s[{sX0}:{sX0+1}]")
    a.e("s_waitcnt vmcnt(0) lgkmcnt(0)")
    a.e("s_barrier")
    stamp(a, 49, 252)
    a.e(f"s_cmp_lg_u32 s{sMore}, 0")
    a.e("s_cbranch_scc1 K2_MORE")
    wf = Asm(); wfrag_read(wf, 128, vT+4)
    a.e(f"ds_read_b32 v{vT+7}, v{vT+9} offset:{AGG + 512}")
    for j, o in enumerate((0, 16, 64, 80)):
        a.e(f"ds_read_b128 v[{64+4*j}:{67+4*j}], v{vT+6} offset:{AGG + o}")
    a.e("s_waitcnt lgkmcnt(4)")
    a.e(f"v_cmpx_ne_u32 vcc, 0, v{vT+7}")
    a.e(f"v_add_u32 v{vT+7}, v{vT+7}, v{vT+5}")
    for j, o in enumerate((0, 16, 64, 80)):
        a.e(f"ds_read_b128 v[{80+4*j}:{83+4*j}], v{vT+7} offset:{o}")
    a.e("s_mov_b64 exec, -1")
    for x in wf.lines[:8]: a.e(x)
    a.e("s_mov_b64 exec, vcc")
    for j in range(4):
        a.e(f"s_waitcnt lgkmcnt({11-j})")
        for i in range(2):
            r = 64 + 4*j + 2*i
            a.e(f"v_pk_add_f32 {p2(r)}, {p2(r)}, {p2(r+16)}")
    a.e("s_mov_b64 exec, -1")
    for j in range(2):
        for i in range(4):
            a.e(f"v_cvt_pk_bf16_f32 v{96+4*j+i}, v{64+8*j+2*i}, v{65+8*j+2*i}")
        a.e(f"ds_write_b128 v{vT+2}, v[{96+4*j}:{99+4*j}] offset:{1024*j}")
    for x in wf.lines[8:]: a.e(x)
    a.e("s_waitcnt lgkmcnt(8)")
    a.e("s_barrier")
    stamp(a, 10, 252)
    for st in range(8):
        a.e(f"ds_read_b128 v[{64+4*st}:{67+4*st}], v{vT+3} offset:{(st>>1)*8192 + (st&1)*1024}")
    if cfg.owt:
        a.e(f"v_mul_u32_u24 v{vT+10}, 80, v{vM}")
        a.e(f"v_lshl_add_u32 v{vT+10}, v{vH16}, 1, v{vT+10}")
        a.e(f"s_add_u32 s{sT+1}, s{sM0}, 256")
        a.e(f"v_add_u32 v{vT+10}, s{sT+1}, v{vT+10}")
        a.e(f"v_lshrrev_b32 v{vT+12}, 2, v{vL}")
        a.e(f"v_and_b32 v{vT+14}, 3, v{vL}")
        a.e(f"v_lshlrev_b32 v{vT+14}, 4, v{vT+14}")
        a.e(f"v_lshl_add_u32 v{vT+13}, v{vT+12}, 8, v{vT+14}")
        a.e(f"v_mul_u32_u24 v{vT+12}, 80, v{vT+12}")
        a.e(f"v_add3_u32 v{vT+12}, v{vT+12}, v{vT+14}, s{sT+1}")
        a.e(f"s_lshr_b32 s{sT+3}, s{sW}, 2")
        a.e(f"s_lshl_b32 s{sT+3}, s{sT+3}, 13")
        a.e(f"s_and_b32 s{sT+4}, s{sW}, 3")
        a.e(f"s_lshl_b32 s{sT+4}, s{sT+4}, 6")
        a.e(f"s_add_u32 s{sT+3}, s{sT+3}, s{sT+4}")
        a.e(f"v_add_u32 v{vT+13}, s{sT+3}, v{vT+13}")
    else:
        a.e(f"v_mul_u32_u24 v{vT+10}, 272, v{vT+8}")
        a.e(f"v_lshl_add_u32 v{vT+10}, v{vH16}, 1, v{vT+10}")
        a.e(f"s_and_b32 s{sT+1}, s{sW}, 3")
        a.e(f"s_lshl_b32 s{sT+1}, s{sT+1}, 6")
        a.e(f"s_add_u32 s{sT+1}, s{sT+1}, {STG}")
        a.e(f"v_add_u32 v{vT+10}, s{sT+1}, v{vT+10}")
        a.e(f"v_lshrrev_b32 v{vT+12}, 4, v0")
        a.e(f"v_lshlrev_b32 v{vT+13}, 4, v0")
        a.e(f"v_lshl_add_u32 v{vT+12}, v{vT+12}, 4, v{vT+13}")
        a.e(f"v_add_u32 v{vT+12}, {STG}, v{vT+12}")
    for st in range(8):
        a.e(f"s_waitcnt lgkmcnt({7-st})")
        c = f"v[{ACX}:{ACX+15}]" if st == 0 else "v[160:175]"
        a.e(f"v_mfma_f32_32x32x16_bf16 v[160:175], v[{128+4*st}:{131+4*st}], v[{64+4*st}:{67+4*st}], {c}")
    a.e(f"s_mov_b32 s{sT+1}, {LOG2E_NEG}")
    a.e(f"s_mov_b32 s{sT}, {LOG2E_NEG}")
    stamp(a, 50, 252)
    a.e(f"s_mov_b32 s{sT+2}, 0x7b800000")
    a.e(f"v_cmp_le_f32 s[{sX0+2}:{sX0+3}], s{sT+2}, v{vCHK}")
    a.e(f"v_mov_b32 v{vT+11}, 0x207")
    a.e("s_nop 6")
    a.e(f"v_cmp_class_f32 vcc, v160, v{vT+11}")
    for hf in range(2):
        R = range(8 * hf, 8 * hf + 8)
        for i in R: a.e(f"v_exp_f32 v{64+i}, v{160+i}")
        if hf == 0:
            a.e(f"s_and_b64 vcc, vcc, s[{sX0}:{sX0+1}]")
            a.e(f"s_or_b64 s[{sX0+2}:{sX0+3}], vcc, s[{sX0+2}:{sX0+3}]")
        if hf: a.e("s_nop 0")
        for i in R[::2]: a.e(f"v_pk_fma_f32 {p2(64+i)}, {p2(64+i)}, s[{sT}:{sT+1}], s[{sT}:{sT+1}]")
        for i in R: a.e(f"v_rcp_f32 v{64+i}, v{64+i}")
        for i in R[::2]: a.e(f"v_pk_mul_f32 {p2(64+i)}, {p2(160+i)}, {p2(64+i)}")
        for i in range(4 * hf, 4 * hf + 4): a.e(f"v_cvt_pk_bf16_f32 v{80+i}, v{64+2*i}, v{65+2*i}")
        o = " offset:16" if hf else ""
        a.e(f"ds_write_b128 v{vT+10}, v[{80+4*hf}:{83+4*hf}]{o}")
    if cfg.owt:
        a.e(f"ds_read_b128 v[88:91], v{vT+12}")
        a.e(f"ds_read_b128 v[92:95], v{vT+12} offset:{16*80}")
        a.e(f"v_mov_b32 v{vT}, 1")
        a.e(f"v_mov_b32 v{vT+1}, {FLG+4}")
        a.e(f"s_movk_i32 s{sT+1}, 4096")
        a.e("s_waitcnt lgkmcnt(1)")
        a.e(f"buffer_store_dwordx4 v[88:91], v{vT+13}, s[{sO}:{sO+3}], 0 offen {cfg.o_pol}")
        a.e("s_waitcnt lgkmcnt(0)")
        a.e(f"buffer_store_dwordx4 v[92:95], v{vT+13}, s[{sO}:{sO+3}], s{sT+1} offen {cfg.o_pol}")
        a.e(f"s_mov_b64 exec, s[{sX0+2}:{sX0+3}]")
        a.e(f"ds_write_b32 v{vT+1}, v{vT}")
        a.e("s_mov_b64 exec, -1")
        a.e("s_waitcnt lgkmcnt(0)")
        a.e("s_barrier")
        a.e(f"ds_read_b32 v{vT}, v{vT+1}")
    else:
        a.e(f"v_mov_b32 v{vT}, 1")
        a.e(f"v_mov_b32 v{vT+1}, {FLG+4}")
        a.e(f"s_mov_b64 exec, s[{sX0+2}:{sX0+3}]")
        a.e(f"ds_write_b32 v{vT+1}, v{vT}")
        a.e("s_mov_b64 exec, -1")
        a.e(f"s_movk_i32 s{sT+1}, 8192")
        a.e("s_waitcnt lgkmcnt(0)")
        stamp(a, 51, 252)
        a.e("s_barrier")
        stamp(a, 52, 252)
        a.e(f"ds_read_b128 v[88:91], v{vT+12}")
        a.e(f"ds_read_b128 v[92:95], v{vT+12} offset:{32*272}")
        a.e(f"ds_read_b32 v{vT}, v{vT+1}")
        a.e("s_waitcnt lgkmcnt(2)")
        a.e(f"buffer_store_dwordx4 v[88:91], v{vT+13}, s[{sO}:{sO+3}], 0 offen {cfg.o_pol}")
        a.e("s_waitcnt lgkmcnt(1)")
        a.e(f"buffer_store_dwordx4 v[92:95], v{vT+13}, s[{sO}:{sO+3}], s{sT+1} offen {cfg.o_pol}")
    stamp(a, 11, 252)
    if cfg.dbg:
        a.e("s_waitcnt vmcnt(0)")
        a.e(f"v_writelane_b32 v252, s{sNT}, 13")
    stamp(a, 12, 252)
    stamp_out(a, 252, 253, 1)
    if cfg.x: a.e("s_branch K2_END")
    a.e("s_waitcnt lgkmcnt(0)")
    a.e(f"v_readfirstlane_b32 s{sT}, v{vT}")
    a.e(f"s_cmp_lg_u32 s{sSafe}, 0")
    a.e("s_cbranch_scc1 K2_END")
    a.e(f"s_cmp_lg_u32 s{sT}, 0")
    a.e("s_cbranch_scc1 K2_SAFE")
    a.label("K2_END")
    a.e("s_endpgm")
    a.lines += ool.lines
    a.label("K2_CODE_END")
    a.lines += rare.lines
    a.label("K2_NOTILES")
    a.e("s_waitcnt vmcnt(0)")
    w_dma(a, sWu, vWC, sW4k, 32768, WU2, sT)
    a.e("s_branch K2_AFTER")
    a.label("K2_SLOWM")
    for c in range(4):
        a.e(f"ds_read_b32 v{vT+16+c}, v{vSD} offset:{128*c}")
    a.e("s_waitcnt vmcnt(0) lgkmcnt(0)")
    a.e("s_barrier")
    a.e(f"s_mov_b64 exec, s[{sX0+2}:{sX0+3}]")
    for c in range(4):
        a.e(f"ds_add_f32 v{vFA}, v{vT+16+c} offset:{128*c}")
    a.e("s_branch K2_MERGED")
    a.label("K2_SAFE")
    a.e("s_waitcnt vmcnt(0)")
    a.e("s_barrier")
    a.e(f"s_mov_b32 s{sSafe}, -1")
    a.e(f"s_mov_b32 s{sDone}, 0")
    reset_round(a, True)
    a.e("s_branch K2_ROUND")
    a.label("K2_MORE")
    a.e("s_mov_b64 exec, -1")
    a.e(f"s_add_u32 s{sDone}, s{sDone}, s{sLim}")
    a.e("s_branch K2_RESET")
    a.label("K2_TOOBIG")
    a.e("s_barrier")
    a.e(f"s_mov_b32 s{sLim}, 16")
    a.label("K2_RESET")
    reset_round(a, False)
    a.label("K2_ROUND")
    srd(a, sR, S_WS, off_c=cfg.wsoff + WS_S01, size=WS_OFFT + 262144 - WS_S01)
    a.e(f"v_and_b32 v{t}, 0x1fc, v0")
    a.e(f"s_lshl_b32 s{sT}, s{sBin}, 10")
    a.e(f"s_add_u32 s{sT}, s{sT}, {WS_OFFT - WS_S01}")
    a.e(f"v_mov_b32 v{vROFF}, 0")
    a.e(f"v_cmp_lt_u32 vcc, 32, v{vOC}")
    a.e("s_mov_b64 exec, vcc")
    a.e(f"buffer_load_dword v{vROFF}, v{t}, s[{sR}:{sR+3}], s{sT} offen")
    a.e("s_mov_b64 exec, -1")
    a.e(f"v_and_b32 v{vW0}, 3, v0")
    a.e(f"v_lshlrev_b32 v{vW0}, 2, v{vW0}")
    a.e(f"v_add_u32 v{vW0}, s{sDone}, v{vW0}")
    a.e(f"s_lshl_b32 s{sT}, s{sBin}, 7")
    a.e(f"v_lshl_add_u32 v{t}, v{t}, 13, s{sT}")
    a.e(f"s_mov_b32 s{sT}, {WS_REC - WS_S01 - 4}")
    a.e("s_waitcnt vmcnt(0)")
    a.e(f"v_add_u32 v{t+2}, v{vEB}, v{vROFF}")
    a.e(f"v_lshl_add_u32 v{t+2}, v{t+2}, 2, s{sT}")
    for g in range(2):
        a.e(f"v_add_u32 v{t+3}, {16*g}, v{vW0}")
        a.e(f"v_cmp_gt_u32 vcc, 32, v{t+3}")
        a.e("s_nop 1")
        a.e(f"v_cndmask_b32 v{t+4+g}, v{t+2}, v{t}, vcc")
        a.e(f"v_lshl_add_u32 v{t+4+g}, v{t+3}, 2, v{t+4+g}")
        a.e(f"buffer_load_dwordx4 v[{RC+4*g}:{RC+4*g+3}], v{t+4+g}, s[{sR}:{sR+3}], 0 offen")
    round_consts(a)
    a.e("s_waitcnt vmcnt(0) lgkmcnt(0)")
    a.e("s_barrier")
    a.e("s_branch K2_COUNT")

HEADER = open("cdna_kernels/" + NAME + ".s.ref").read().split("; Override launch")[0]
def generate():
    a = Asm()
    gen_k1(a)
    gen_k2(a)
    if cfg.rep:
        k, wg, idx, j0, j1 = ([int(v) for v in cfg.rep.split(",")] + [0, 4])[:5]
        kernel_head(a, "rep_kernel")
        a.e("s_load_dwordx2 s[20:21], s[0:1], 64")
        a.e("s_cmp_lg_u32 s2, 0")
        a.e("s_cbranch_scc1 REP_END")
        a.e("s_waitcnt lgkmcnt(0)")
        srd(a, 8, S_WS, off_c=WS_DBG, size=0x200000)
        op = "max" if wg == 1 else "min"
        a.e("v_lshlrev_b32 v1, 11, v0")
        a.e(f"v_add_u32 v2, {k*0x100000 + idx*4}, v1")
        for j in range(4):
            a.e(f"s_mov_b32 s12, {j*64*2048}")
            a.e(f"buffer_load_dword v{4+j}, v1, s[8:11], s12 offen")
            a.e(f"buffer_load_dword v{8+j}, v2, s[8:11], s12 offen")
        a.e("s_waitcnt vmcnt(0)")
        for j in range(1, 4):
            a.e(f"v_min_u32 v4, v4, v{4+j}")
            if j0 < j < j1: a.e(f"v_{op}_u32 v{8+j0}, v{8+j0}, v{8+j}")
        a.e(f"v_mov_b32 v8, v{8+j0}")
        a.e("s_nop 1")
        a.e("v_readlane_b32 s12, v4, 0")
        a.e("v_readlane_b32 s13, v8, 0")
        for l in range(1, 63):
            a.e(f"v_readlane_b32 s14, v4, {l}")
            a.e(f"v_readlane_b32 s15, v8, {l}")
            a.e("s_min_u32 s12, s12, s14")
            a.e(f"s_{op}_u32 s13, s13, s15")
        a.e("s_sub_u32 s12, s13, s12")
        a.e("s_min_u32 s12, s12, 8000")
        a.e("s_lshl_b32 s12, s12, 2")
        a.e("s_memrealtime s[14:15]")
        a.e("s_waitcnt lgkmcnt(0)")
        a.label("REP_L")
        a.e("s_memrealtime s[16:17]")
        a.e("s_waitcnt lgkmcnt(0)")
        a.e("s_sub_u32 s13, s16, s14")
        a.e("s_cmp_lt_u32 s13, s12")
        a.e("s_cbranch_scc1 REP_L")
        a.label("REP_END")
        a.e("s_endpgm")
    if cfg.align:
        a.lines, bad = align_pass(a.lines, "K2_LOOP" if cfg.align < 3 else "prep_kernel", "K2_CODE_END", cfg.align == 2)
        print("misaligned left:", bad, file=sys.stderr)
    body = a.text()
    probs = check_text(body)
    for p in probs: print("HAZARD", p, file=sys.stderr)
    k1lds = K1_LDS_B
    out = HEADER
    out += f"; @launch kernel=prep_kernel grid=(256,1,1) block=(512,1,1) lds={k1lds}\n"
    out += f"; @launch kernel={NAME}_kernel grid=(256,1,1) block=(512,1,1) lds={K2_LDS}\n"
    if cfg.rep: out += "; @launch kernel=rep_kernel grid=(1,1,1) block=(64,1,1) lds=0\n"
    out += '.amdgcn_target "amdgcn-amd-amdhsa--gfx950"\n' + body
    out += '.section .rodata,"a"\n.p2align 6\n' + kernel_desc("prep_kernel", 200 if cfg.dbg else 160, 96 if cfg.dbg else 80) + ".p2align 6\n" + kernel_desc(NAME + "_kernel", 256, 96)
    if cfg.rep: out += ".p2align 6\n" + kernel_desc("rep_kernel", 16, 32)
    return out

if __name__ == "__main__":
    outp = sys.argv[1]
    for kv in sys.argv[2:]:
        k, v = kv.split("=", 1)
        cur = getattr(cfg, k)
        setattr(cfg, k, (v not in ("0", "False")) if isinstance(cur, bool) else int(v, 0) if isinstance(cur, int) else v)
    open(outp, "w").write(generate())
```

```python
import sys
from asmlib import *

NAME = "gather_scatter__mpnn_edge_mlp__graph"
class Cfg:
    modeA = False
    wsoff = 0
    st_pol = "sc1"
    ld_pol = "nt"
    e_pol = ""
    prefetchP = 1
    pf0 = False
    early = True
    o_pol = "sc1"
    ot_pol = ""
    touch = 1
    etouch = 0
    epos = 1
    align = 1
    prio = 2
    bias = 14
    lohi = 0
    gran = 0
    k1t = 0
    k1d = 0
    tlb = 0
    cw = 0
    g_pol = ''
    s_pol = ''
    owt = 1
    k1w = 0
    e1e = 0
    e0f = 0
    few = False
    spf = 0
    ratio = 0
    k1o = 0
    p_pol = 'sc1'
    pfm = 0
    pfmpos = 5
    pfe = 0
    et_pol = ''
    t1pos = 1
    pfn = 320
    pfpos = 1
    nw = '4,4,4,4'
    x_pol = ""
    dbg = False
    lst = False
    x = ""
    rep = ""
cfg = Cfg()

NB = 250; NPB = 50; CH = 1600
WS_P = 4096; WS_S01 = 0x320000; WS_REC = 0x900000; WS_OFFT = 0xA90000; WS_W3F = 0xAD0000; WS_WF = 0xAE0000
LOG2E_NEG = "0xbfb8aa3b"
LN2_NEG = "0xbf317218"

S_X, S_E, S_SRC, S_DST, S_WM, S_WU, S_OUT, S_DBG, S_WS = 4, 6, 8, 10, 12, 14, 16, 18, 20

def load_args(a):
    a.e("s_load_dwordx16 s[4:19], s[0:1], 0")
    a.e("s_load_dwordx2 s[20:21], s[0:1], 64")

def srd(a, d, ptr, off_s=None, off_c=0, size=0):
    if off_s is not None:
        a.e(f"s_add_u32 s{d}, s{ptr}, s{off_s}")
        a.e(f"s_addc_u32 s{d+1}, s{ptr+1}, 0")
        if off_c:
            a.e(f"s_add_u32 s{d}, s{d}, {off_c}")
            a.e(f"s_addc_u32 s{d+1}, s{d+1}, 0")
    elif off_c:
        a.e(f"s_add_u32 s{d}, s{ptr}, {off_c}")
        a.e(f"s_addc_u32 s{d+1}, s{ptr+1}, 0")
    else:
        a.e(f"s_mov_b32 s{d}, s{ptr}")
        a.e(f"s_mov_b32 s{d+1}, s{ptr+1}")
    a.e(f"s_mov_b32 s{d+2}, {size}")
    a.e(f"s_mov_b32 s{d+3}, 0x20000")

def idmap(a, dst, src, t, sh=5):
    a.e(f"s_and_b32 s{t}, s{src}, 7")
    a.e(f"s_lshr_b32 s{dst}, s{src}, 3")
    a.e(f"s_lshl_b32 s{t}, s{t}, {sh}")
    a.e(f"s_add_u32 s{dst}, s{dst}, s{t}")

def scan64(a, v):
    for sh in (1, 2, 4, 8):
        a.e("s_nop 1")
        a.e(f"v_add_u32_dpp v{v}, v{v}, v{v} row_shr:{sh} row_mask:0xf bank_mask:0xf bound_ctrl:0")
    a.e("s_nop 1")
    a.e(f"v_add_u32_dpp v{v}, v{v}, v{v} row_bcast:15 row_mask:0xa bank_mask:0xf")
    a.e("s_nop 1")
    a.e(f"v_add_u32_dpp v{v}, v{v}, v{v} row_bcast:31 row_mask:0xc bank_mask:0xf")

def x_dma(a, sX, sW, vL, lds_base, t0, st, pol="", strided=False):
    a.e(f"v_lshrrev_b32 v{t0}, 4, v{vL}")
    a.e(f"v_and_b32 v{t0+1}, 15, v{vL}")
    a.e(f"v_xor_b32 v{t0+1}, v{t0+1}, v{t0}")
    a.e(f"v_lshlrev_b32 v{t0+1}, 4, v{t0+1}")
    a.e(f"v_lshl_add_u32 v{t0}, v{t0}, 8, v{t0+1}")
    a.e(f"s_and_b32 s{st}, s{sW}, 1")
    a.e(f"s_lshl_b32 s{st}, s{st}, 7")
    a.e(f"v_xor_b32 v{t0}, s{st}, v{t0}")
    a.e(f"v_xor_b32 v{t0+1}, 64, v{t0}")
    if strided:
        a.e(f"s_lshr_b32 s{st+1}, s{sW}, 1")
        a.e(f"s_lshl_b32 s{st+1}, s{st+1}, 12")
        a.e(f"s_lshl_b32 s{st}, s{sW}, 11")
        a.e(f"s_add_u32 s{st+1}, s{st+1}, s{st}")
        a.e(f"s_add_u32 m0, s{st+1}, {lds_base}")
    else:
        a.e(f"s_lshl_b32 s{st}, s{sW}, 11")
        a.e(f"s_add_u32 m0, s{st}, {lds_base}")
    a.e("s_nop 0")
    a.e(f"buffer_load_dwordx4 v{t0}, s[{sX}:{sX+3}], s{st} offen {pol} lds")
    a.e(f"buffer_load_dwordx4 v{t0+1}, s[{sX}:{sX+3}], s{st} offen offset:1024 {pol} lds")

def w_lane_const(a, vW, vL, t):
    a.e(f"v_lshrrev_b32 v{t}, 4, v{vL}")
    a.e(f"v_and_b32 v{vW}, 15, v{vL}")
    a.e(f"v_lshlrev_b32 v{vW}, 4, v{vW}")
    a.e(f"v_lshlrev_b32 v{t+1}, 6, v{t}")
    a.e(f"v_xor_b32 v{vW}, v{vW}, v{t+1}")
    a.e(f"v_lshl_add_u32 v{vW}, v{t}, 8, v{vW}")

def w_dma(a, sSrd, vW, sW4096, goff, lds_base, st):
    a.e(f"s_add_u32 s{st}, s{sW4096}, {goff}")
    a.e(f"s_add_u32 m0, s{sW4096}, {lds_base}")
    a.e("s_nop 0")
    for i in range(4):
        o = f" offset:{1024*i}" if i else ""
        a.e(f"buffer_load_dwordx4 v{vW}, s[{sSrd}:{sSrd+3}], s{st} offen{o} lds")

def wfrag_const(a, vA, vL, sW, t, st):
    a.e(f"v_lshrrev_b32 v{t}, 5, v{vL}")
    a.e(f"v_bfe_u32 v{t+1}, v{vL}, 2, 2")
    a.e(f"v_lshl_add_u32 v{t}, v{t}, 3, v{t+1}")
    a.e(f"v_lshlrev_b32 v{vA}, 8, v{t}")
    a.e(f"v_and_b32 v{t}, 1, v{vL}")
    a.e(f"v_lshlrev_b32 v{t}, 5, v{t}")
    a.e(f"v_bfe_u32 v{t+2}, v{vL}, 1, 1")
    a.e(f"v_lshl_add_u32 v{t}, v{t+2}, 3, v{t}")
    a.e(f"v_bfe_u32 v{t+2}, v{vL}, 4, 1")
    a.e(f"v_lshl_add_u32 v{t}, v{t+2}, 4, v{t}")
    a.e(f"s_and_b32 s{st}, s{sW}, 3")
    a.e(f"s_lshl_b32 s{st}, s{st}, 6")
    a.e(f"v_add_u32 v{t}, s{st}, v{t}")
    a.e(f"v_lshlrev_b32 v{t+1}, 6, v{t+1}")
    a.e(f"v_xor_b32 v{t}, v{t}, v{t+1}")
    a.e(f"v_add_u32 v{vA}, v{vA}, v{t}")

def wfrag_read(a, dst, vAddr, off=0, stride=4096):
    for s in range(8):
        for u in range(2):
            r = (dst[s] if isinstance(dst, list) else dst + 4*s) + 2*u
            a.e(f"ds_read_b64_tr_b16 v[{r}:{r+1}], v{vAddr} offset:{off+s*stride+u*1024}")

def xfrag_read(a, dst, vL, sW, lds_base, t, st):
    a.e(f"v_and_b32 v{t}, 31, v{vL}")
    a.e(f"v_lshrrev_b32 v{t+1}, 5, v{vL}")
    a.e(f"v_and_b32 v{t+2}, 15, v{vL}")
    a.e(f"v_xor_b32 v{t+1}, v{t+1}, v{t+2}")
    a.e(f"v_lshlrev_b32 v{t+1}, 4, v{t+1}")
    a.e(f"v_lshl_add_u32 v{t}, v{t}, 8, v{t+1}")
    a.e(f"s_lshr_b32 s{st}, s{sW}, 2")
    a.e(f"s_lshl_b32 s{st}, s{st}, 13")
    a.e(f"s_add_u32 s{st}, s{st}, {lds_base}")
    a.e(f"v_add_u32 v{t}, s{st}, v{t}")
    for s in range(8):
        if s == 0:
            a.e(f"ds_read_b128 v[{dst}:{dst+3}], v{t}")
        else:
            r = t + 1 + (s & 1)
            a.e(f"v_xor_b32 v{r}, {32*s}, v{t}")
            a.e(f"ds_read_b128 v[{dst+4*s}:{dst+4*s+3}], v{r}")

def gemm8(a, acc, A, B, zero=True):
    for s in range(8):
        c = "0" if (s == 0 and zero) else f"v[{acc}:{acc+15}]"
        r = A[s] if isinstance(A, list) else A + 4*s
        a.e(f"v_mfma_f32_32x32x16_bf16 v[{acc}:{acc+15}], v[{r}:{r+3}], v[{B+4*s}:{B+4*s+3}], {c}")

WS_DBG = 0x2000000
def stamp(a, i, vst):
    if not cfg.dbg: return
    if cfg.few and not (i in (0, 1, 2, 3) if vst == 197 else i in (7, 8, 9, 12)): return
    a.e("s_memrealtime s[90:91]")
    a.e("s_waitcnt lgkmcnt(0)")
    a.e(f"v_writelane_b32 v{vst}, s90, {i}")
def stamp_out(a, vst, vt, kidx):
    if not cfg.dbg: return
    srd(a, 92, S_WS, off_c=WS_DBG + kidx * 0x100000, size=0x100000)
    a.e(f"s_lshl_b32 s90, s2, 11")
    a.e(f"v_lshl_add_u32 v{vt}, v0, 2, s90")
    a.e(f"buffer_store_dword v{vst}, v{vt}, s[92:95], 0 offen")

def kernel_head(a, name):
    a.e(".text")
    a.e(f".globl {name}")
    a.e(".p2align 8")
    a.e(f".type {name},@function")
    a.label(name)

def kernel_desc(name, vg, sg):
    acc = (vg + 3) // 4 * 4
    return f""".amdhsa_kernel {name}
  .amdhsa_next_free_vgpr {vg}
  .amdhsa_next_free_sgpr {sg}
  .amdhsa_accum_offset {acc}
  .amdhsa_group_segment_fixed_size 0
  .amdhsa_kernarg_size 72
  .amdhsa_user_sgpr_count 2
  .amdhsa_user_sgpr_kernarg_segment_ptr 1
  .amdhsa_system_sgpr_workgroup_id_x 1
.end_amdhsa_kernel
"""

K1_LDS_A = 16384 + 57344
K1_LDS_B = 65536 + 96*272
def gen_k1(a):
    kernel_head(a, "prep_kernel")
    load_args(a)
    sW, sId, sT = 22, 23, 44
    vL = 1
    a.e(f"v_and_b32 v{vL}, 63, v0")
    a.e(f"v_lshrrev_b32 v2, 6, v0")
    a.e("s_nop 0")
    a.e(f"v_readfirstlane_b32 s{sW}, v2")
    if cfg.dbg: a.e("v_mov_b32 v197, 0")
    stamp(a, 0, 197)
    if cfg.dbg:
        a.e("s_getreg_b32 s90, hwreg(HW_REG_XCC_ID)")
        a.e("s_add_u32 s90, s90, 1")
        a.e("v_writelane_b32 v197, s90, 63")
    if cfg.k1d: a.e(f"s_sleep {cfg.k1d}")
    a.e(f"s_mov_b32 s{sId}, s2")
    a.e("s_cmp_lt_u32 s2, 120")
    a.e("s_cbranch_scc1 K1_BIN")
    a.e(f"s_sub_u32 s{sId}, s2, 3")
    a.e("s_sub_u32 s3, s2, 123")
    a.e("s_cmp_lt_u32 s3, 5")
    a.e("s_cbranch_scc1 K1_BIN")
    a.e("s_cmp_ge_u32 s2, 256")
    a.e("s_cbranch_scc1 K1_END")
    a.e(f"s_and_b32 s{sT}, s2, 7")
    a.e(f"s_lshr_b32 s{sId}, s2, 3")
    a.e(f"s_lshl4_add_u32 s{sId}, s{sT}, s{sId}")
    a.e(f"s_min_u32 s{sT}, s{sT}, 2")
    a.e(f"s_add_u32 s{sId}, s{sId}, s{sT}")
    a.e(f"s_sub_u32 s{sId}, s{sId}, 15")
    a.e(f"s_mul_i32 s{sT+2}, s{sId}, 24576")
    a.e(f"s_sub_u32 s{sT+4}, 3200000, s{sT+2}")
    a.e(f"s_min_u32 s{sT+4}, s{sT+4}, 24576")
    a.e(f"v_lshrrev_b32 v2, 4, v{vL}")
    a.e(f"v_and_b32 v3, 15, v{vL}")
    a.e(f"v_xor_b32 v3, v3, v2")
    a.e(f"v_lshlrev_b32 v3, 4, v3")
    a.e(f"v_lshl_add_u32 v16, v2, 8, v3")
    for i in range(1, 4): a.e(f"v_xor_b32 v{16+i}, {64*i}, v16")
    w_lane_const(a, 4, vL, 5)
    a.e(f"s_lshl_b32 s{sT+3}, s{sW}, 12")
    a.e("s_waitcnt lgkmcnt(0)")
    def xl():
        a.e(f"s_mov_b32 m0, s{sT+3}")
        srd(a, 24, S_X, off_s=sT+2, size=f"s{sT+4}")
        for i in range(4):
            o = f" offset:{1024*i}" if i else ""
            a.e(f"buffer_load_dwordx4 v{16+i}, s[24:27], s{sT+3} offen{o} {cfg.x_pol} lds")
    def wl():
        srd(a, 28, S_WM, size=32768)
        w_dma(a, 28, 4, sT+3, 0, 32768, sT)
    xl(); wl()
    srd(a, 32, S_WS, off_s=sT+2, off_c=cfg.wsoff + WS_P, size=f"s{sT+4}")
    if cfg.k1t:
        a.e(f"v_lshlrev_b32 v30, 12, v0")
        a.e(f"buffer_load_dword v31, v30, s[32:35], 0 offen")
    wfrag_const(a, 8, vL, sW, 9, sT)
    OT = 65536
    a.e(f"v_and_b32 v12, 31, v{vL}")
    a.e(f"v_lshrrev_b32 v13, 5, v{vL}")
    a.e(f"v_and_b32 v15, 15, v{vL}")
    a.e(f"v_xor_b32 v15, v15, v13")
    a.e(f"v_lshlrev_b32 v15, 4, v15")
    a.e(f"v_lshl_add_u32 v15, v12, 8, v15")
    a.e(f"s_lshr_b32 s{sT}, s{sW}, 2")
    a.e(f"s_lshl_b32 s{sT+1}, s{sT}, 14")
    a.e(f"v_add_u32 v20, s{sT+1}, v15")
    for st in range(1, 8): a.e(f"v_xor_b32 v{20+st}, {32*st}, v20")
    if cfg.k1w:
        a.e(f"v_lshlrev_b32 v13, 5, v13")
        a.e(f"v_mul_u32_u24 v12, 80, v12")
        a.e(f"s_mul_i32 s{sT+5}, s{sW}, {32*80}")
        a.e(f"s_add_u32 s{sT+5}, s{sT+5}, {OT}")
        a.e(f"v_add3_u32 v12, s{sT+5}, v12, v13")
        a.e(f"v_lshrrev_b32 v13, 2, v{vL}")
        a.e(f"v_and_b32 v15, 3, v{vL}")
        a.e(f"v_lshlrev_b32 v15, 4, v15")
        a.e(f"v_lshl_add_u32 v14, v13, 8, v15")
        a.e(f"v_mul_u32_u24 v13, 80, v13")
        a.e(f"v_add3_u32 v13, v13, v15, s{sT+5}")
        a.e(f"s_lshl_b32 s{sT}, s{sT}, 14")
        a.e(f"s_and_b32 s{sT+1}, s{sW}, 3")
        a.e(f"s_lshl_b32 s{sT+1}, s{sT+1}, 6")
        a.e(f"v_add_u32 v14, s{sT}, v14")
        a.e(f"v_add_u32 v14, s{sT+1}, v14")
        a.e("s_movk_i32 s65, 4096\ns_movk_i32 s66, 12288")
    else:
        a.e(f"v_lshlrev_b32 v13, 5, v13")
        a.e(f"v_mul_u32_u24 v12, 272, v12")
        a.e(f"s_mul_i32 s{sT}, s{sT}, {64*272}")
        a.e(f"s_and_b32 s{sT+1}, s{sW}, 3")
        a.e(f"s_lshl_b32 s{sT+1}, s{sT+1}, 6")
        a.e(f"s_add_u32 s{sT}, s{sT}, s{sT+1}")
        a.e(f"s_add_u32 s{sT}, s{sT}, {OT}")
        a.e(f"v_add3_u32 v12, s{sT}, v12, v13")
        a.e(f"v_lshrrev_b32 v13, 4, v0")
        a.e(f"v_lshlrev_b32 v14, 4, v0")
        a.e(f"v_lshl_add_u32 v13, v13, 4, v14")
        a.e(f"v_add_u32 v13, {OT}, v13")
    a.e(f"s_mov_b32 s{sT}, {LOG2E_NEG}")
    a.e(f"s_mov_b32 s{sT+1}, {LOG2E_NEG}")
    a.e("s_movk_i32 s62, 8192\ns_movk_i32 s63, 16384\ns_movk_i32 s64, 24576")
    WF, X0, X1, A0, A1 = 32, 64, 96, 128, 144
    def rw(st):
        for u in range(2):
            a.e(f"ds_read_b64_tr_b16 v[{WF+4*st+2*u}:{WF+4*st+2*u+1}], v8 offset:{32768+st*4096+u*1024}")
    def rx0(st): a.e(f"ds_read_b128 v[{X0+4*st}:{X0+4*st+3}], v{20+st}")
    def mm(A, X, st):
        c = "0" if st == 0 else f"v[{A}:{A+15}]"
        a.e(f"v_mfma_f32_32x32x16_bf16 v[{A}:{A+15}], v[{WF+4*st}:{WF+4*st+3}], v[{X+4*st}:{X+4*st+3}], {c}")
    def fin(b, A):
        for i in range(8):
            a.e(f"v_pk_mul_f32 v[{A+2*i}:{A+2*i+1}], v[{A+2*i}:{A+2*i+1}], s[{sT}:{sT+1}]")
        for i in range(8):
            a.e(f"v_cvt_pk_bf16_f32 v{A+i}, v{A+2*i}, v{A+1+2*i}")
        if cfg.k1w and b:
            a.e("s_waitcnt lgkmcnt(0)")
            st2(0)
            a.e("v_add_u32 v14, s62, v14")
            b = 0
        if cfg.k1w:
            a.e(f"ds_write_b128 v12, v[{A}:{A+3}]")
            a.e(f"ds_write_b128 v12, v[{A+4}:{A+7}] offset:16")
            a.e(f"ds_read_b128 v[{48+8*b}:{51+8*b}], v13")
            a.e(f"ds_read_b128 v[{52+8*b}:{55+8*b}], v13 offset:{16*80}")
        else:
            a.e(f"ds_write_b128 v12, v[{A}:{A+3}] offset:{b*32*272}")
            a.e(f"ds_write_b128 v12, v[{A+4}:{A+7}] offset:{b*32*272+16}")
    def st2(b):
        for j in range(2):
            a.e(f"buffer_store_dwordx4 v[{48+8*b+4*j}:{51+8*b+4*j}], v14, s[32:35], {['0','s65','s62','s66'][2*b+j]} offen {cfg.p_pol}")
    a.e(f"s_cmp_ge_u32 s{sW}, 4")
    a.e(f"s_waitcnt vmcnt({4 + cfg.k1t})")
    a.e("s_barrier")
    for st in range(8): rx0(st)
    a.e("s_cbranch_scc1 K1_NX1")
    for st in range(8):
        a.e(f"ds_read_b128 v[{X1+4*st}:{X1+4*st+3}], v{20+st} offset:8192")
    a.label("K1_NX1")
    a.e(f"s_waitcnt vmcnt({cfg.k1t})")
    stamp(a, 1, 197)
    a.e("s_barrier")
    for st in range(8): rw(st)
    for st in range(8):
        a.e(f"s_waitcnt lgkmcnt({14-2*st})")
        mm(A0, X0, st)
    a.e("s_cbranch_scc1 K1_NX2")
    for st in range(8): mm(A1, X1, st)
    a.e("s_nop 2")
    fin(0, A0)
    fin(1, A1)
    a.e("s_branch K1_NX3")
    a.label("K1_NX2")
    a.e("s_nop 10")
    fin(0, A0)
    a.label("K1_NX3")
    a.e("s_waitcnt lgkmcnt(0)")
    if cfg.k1w:
        st2(0)
    else:
        a.e("s_barrier")
        for j in range(3):
            a.e(f"ds_read_b128 v[{48+4*j}:{51+4*j}], v13 offset:{j*32*272}")
        for j in range(3):
            a.e(f"s_waitcnt lgkmcnt({2-j})")
            a.e(f"buffer_store_dwordx4 v[{48+4*j}:{51+4*j}], v14, s[32:35], {['0','s62','s63'][j]} offen {cfg.p_pol}")
    stamp(a, 2, 197)
    if cfg.dbg: a.e("s_waitcnt vmcnt(0)")
    stamp(a, 3, 197)
    stamp_out(a, 197, 198, 0)
    a.e("s_endpgm")
    SL, FLAG, SORT = 0, 36864, 36880
    a.label("K1_BIN")
    a.e(f"s_mul_i32 s{sT+2}, s{sId}, 12800")
    a.e(f"s_lshl_b32 s{sT+3}, s{sId}, 15")
    a.e("v_lshlrev_b32 v2, 4, v0")
    a.e("s_movk_i32 s3, 6400")
    a.e("s_movk_i32 s59, 400")
    a.e("v_cmp_gt_u32 s[60:61], s59, v0")
    a.e("s_waitcnt lgkmcnt(0)")
    D, S, BA, RK, AD = 4, 12, 20, 28, 36
    srd(a, 24, S_DST, off_s=sT+2, size=12800)
    a.e(f"buffer_load_dwordx4 v[{D}:{D+3}], v2, s[24:27], 0 offen {cfg.ld_pol}")
    a.e(f"buffer_load_dwordx4 v[{D+4}:{D+7}], v2, s[24:27], s3 offen {cfg.ld_pol}")
    srd(a, 28, S_SRC, off_s=sT+2, size=12800)
    a.e(f"buffer_load_dwordx4 v[{S}:{S+3}], v2, s[28:31], 0 offen {cfg.ld_pol}")
    a.e(f"buffer_load_dwordx4 v[{S+4}:{S+7}], v2, s[28:31], s3 offen {cfg.ld_pol}")
    srd(a, 32, S_WS, off_s=sT+3, off_c=cfg.wsoff + WS_S01, size=32768)
    a.e("v_mov_b32 v44, 1")
    a.e("v_min_u32 v3, 256, v0")
    a.e("v_mul_u32_u24 v3, 144, v3")
    a.e(f"ds_write_b32 v3, v44 offset:{SL}")
    a.e("v_lshlrev_b32 v45, 22, v0")
    a.e("s_movk_i32 s58, 10700")
    a.e("s_movk_i32 s57, 144")
    if cfg.lohi:
        a.e("v_lshrrev_b32 v86, 2, v0")
        a.e("v_mul_u32_u24 v86, 144, v86")
        a.e("v_and_b32 v46, 3, v0")
        a.e("v_lshl_add_u32 v46, v46, 4, v86")
    else:
        a.e("v_lshrrev_b32 v46, 3, v0")
        a.e("v_lshl_add_u32 v46, v46, 4, v2")
    a.e(f"v_mov_b32 v48, {FLAG}")
    if cfg.gran:
        a.e("v_lshrrev_b32 v86, 3, v0")
        a.e("v_mul_u32_u24 v86, 144, v86")
        a.e(f"v_and_b32 v87, {8 - cfg.gran // 16}, v0")
        a.e("v_lshlrev_b32 v87, 2, v87")
    a.e("s_movk_i32 s62, 8192\ns_movk_i32 s63, 16384\ns_movk_i32 s64, 24576")
    a.e("s_waitcnt lgkmcnt(0)")
    a.e("s_barrier")
    if True:
        a.e(f"s_cmp_lg_u32 s{sW}, 7")
        a.e("s_cbranch_scc1 K1_NOTOUCH")
        if cfg.k1t:
            a.e(f"v_lshlrev_b32 v84, 12, v{vL}")
            a.e(f"buffer_load_dword v85, v84, s[32:35], 0 offen")
        a.e("s_cmp_ge_u32 s2, 124")
        a.e("s_cbranch_scc1 K1_W3")
        a.e(f"s_lshr_b32 s{sT}, s2, 3")
        a.e(f"v_lshlrev_b32 v70, 7, v{vL}")
        if cfg.touch & 1:
            srd(a, 72, S_WM, off_c=32768, size=32768)
            srd(a, 76, S_WU, size=65536)
            a.e(f"s_mul_i32 s{sT+1}, s{sT}, {18*128}")
            a.e("s_mov_b64 exec, 0x3ffff")
            a.e(f"buffer_load_dword v71, v70, s[72:75], s{sT+1} offen")
            a.e(f"s_mul_i32 s{sT+1}, s{sT}, {35*128}")
            a.e("s_mov_b32 exec_lo, -1\ns_mov_b32 exec_hi, 7")
            a.e(f"buffer_load_dword v72, v70, s[76:79], s{sT+1} offen")
        if cfg.touch & 2:
            a.e("s_mov_b64 exec, 0x1ff")
            a.e("s_getpc_b64 s[68:69]")
            a.label("K1_PC")
            a.e(f"s_add_u32 s68, s68, {NAME}_kernel-K1_PC")
            a.e("s_addc_u32 s69, s69, 0")
            a.e(f"s_mul_i32 s{sT+1}, s{sT}, {9*128}")
            a.e(f"v_add_u32 v74, s{sT+1}, v70")
            a.e(f"v_min_u32 v74, K2_CODE_END-{NAME}_kernel-4, v74")
            a.e("v_mov_b32 v75, s69")
            a.e("v_add_co_u32 v74, vcc, s68, v74")
            a.e("s_nop 1")
            a.e("v_addc_co_u32 v75, vcc, 0, v75, vcc")
            a.e("global_load_dword v73, v[74:75], off")
        a.e("s_mov_b64 exec, -1")
        a.e("s_branch K1_B2")
        a.label("K1_NOTOUCH")
    a.e("s_mov_b64 exec, s[60:61]")
    for j in range(2):
        a.e(f"s_waitcnt vmcnt({3-j})")
        if j == 0: stamp(a, 1, 197)
        for i in range(4*j, 4*j+4):
            a.e(f"v_mul_u32_u24 v{AD+i}, s58, v{D+i}")
            a.e(f"v_lshrrev_b32 v{AD+i}, 19, v{AD+i}")
            a.e(f"v_mul_u32_u24 v{BA+i}, s57, v{AD+i}")
            a.e(f"ds_add_rtn_u32 v{RK+i}, v{BA+i}, v44 offset:{SL}")
    for i in range(8):
        a.e(f"v_mul_u32_u24 v{AD+i}, 49, v{AD+i}")
        a.e(f"v_sub_u32 v{D+i}, v{D+i}, v{AD+i}")
        if i: a.e(f"v_add_u32 v45, {hex(((1600-3) if i == 4 else 1) << 20)}, v45")
        a.e(f"v_or_b32 v{D+i}, v{D+i}, v45")
    a.e(f"s_waitcnt vmcnt(0)")
    stamp(a, 4, 197)
    for i in range(8):
        a.e(f"s_waitcnt lgkmcnt(7)")
        a.e(f"v_min_u32 v{AD+i}, 32, v{RK+i}")
        a.e(f"v_lshl_or_b32 v{D+i}, v{S+i}, 6, v{D+i}")
        a.e(f"v_lshl_add_u32 v{AD+i}, v{AD+i}, 2, v{BA+i}")
        a.e(f"ds_write_b32 v{AD+i}, v{D+i} offset:{SL}")
    a.e(f"v_max3_u32 v47, v{RK}, v{RK+1}, v{RK+2}")
    a.e(f"v_max3_u32 v47, v47, v{RK+3}, v{RK+4}")
    a.e(f"v_max3_u32 v47, v47, v{RK+5}, v{RK+6}")
    a.e(f"v_max_u32 v47, v47, v{RK+7}")
    a.e("v_cmpx_le_u32 vcc, 32, v47")
    a.e("ds_write_b32 v48, v47")
    a.e("s_mov_b64 exec, -1")
    a.e("s_waitcnt lgkmcnt(0)")
    stamp(a, 5, 197)
    a.label("K1_B2")
    a.e("s_barrier")
    stamp(a, 6, 197)
    if cfg.lohi:
        for j in range(4):
            a.e(f"ds_read_b128 v[{52+4*j}:{55+4*j}], v46 offset:{SL + (j&1)*128*144 + (j>>1)*64}")
        a.e(f"ds_read_b32 v49, v48")
        for j in range(4):
            a.e(f"s_waitcnt lgkmcnt({4-j})")
            if j < 2: a.e(f"v_mov_b32_dpp v{88+j}, v{52+4*j} quad_perm:[0,0,0,0] row_mask:0xf bank_mask:0xf")
            else: a.e(f"v_cmpx_lt_u32 vcc, 16, v{86+j}")
            a.e(f"buffer_store_dwordx4 v[{52+4*j}:{55+4*j}], v2, s[32:35], {['0','s62','s63','s64'][j]} offen {cfg.st_pol}")
            if j >= 2: a.e("s_mov_b64 exec, -1")
        a.e("s_nop 0")
    else:
        for j in range(4):
            if cfg.gran: a.e(f"ds_read_b32 v{88+j}, v86 offset:{SL + j*9216}")
            a.e(f"ds_read_b128 v[{52+4*j}:{55+4*j}], v46 offset:{SL + j*9216}")
        a.e(f"ds_read_b32 v49, v48")
        for j in range(4):
            a.e(f"s_waitcnt lgkmcnt({7-2*j if cfg.gran else 4-j})")
            if cfg.gran: a.e(f"v_cmpx_lt_u32 vcc, v87, v{88+j}")
            a.e(f"buffer_store_dwordx4 v[{52+4*j}:{55+4*j}], v2, s[32:35], {['0','s62','s63','s64'][j]} offen {cfg.st_pol}")
            if cfg.gran: a.e("s_mov_b64 exec, -1")
        if cfg.gran: a.e("s_nop 0")
    a.e("s_waitcnt lgkmcnt(0)")
    a.e("v_readfirstlane_b32 s3, v49")
    a.e("s_cmp_lg_u32 s3, 1")
    a.e("s_cbranch_scc1 K1_FULL")
    stamp(a, 2, 197)
    if cfg.dbg: a.e("s_waitcnt vmcnt(0)")
    stamp(a, 3, 197)
    stamp_out(a, 197, 198, 0)
    a.label("K1_END")
    a.e("s_endpgm")
    a.label("K1_FULL")
    a.e("s_waitcnt vmcnt(0)")
    a.e(f"s_lshl_b32 s{sT+4}, s{sId}, 2")
    srd(a, 32, S_WS, off_s=sT+2, off_c=cfg.wsoff + WS_REC, size=12800)
    srd(a, 36, S_WS, off_s=sT+4, off_c=cfg.wsoff + WS_OFFT, size=255*1024 + 4)
    a.e(f"v_mul_u32_u24 v3, {4*144}, v{vL}")
    for i in range(4):
        a.e(f"ds_read_b32 v{52+i}, v3 offset:{SL + 144*i}")
    a.e("s_waitcnt lgkmcnt(0)")
    for i in range(4):
        a.e(f"v_add_u32 v{52+i}, -1, v{52+i}")
    a.e("v_add_u32 v56, v52, v53")
    a.e("v_add_u32 v57, v56, v54")
    a.e("v_add_u32 v58, v57, v55")
    a.e("v_mov_b32 v60, v58")
    scan64(a, 60)
    a.e("v_sub_u32 v60, v60, v58")
    a.e("v_add_u32 v61, v60, v52")
    a.e("v_add_u32 v62, v60, v56")
    a.e("v_add_u32 v63, v60, v57")
    for i in range(4):
        a.e(f"ds_write_b32 v3, v{60+i} offset:{SL + 144*i + 132}")
    a.e(f"s_cmp_lg_u32 s{sW}, 7")
    a.e("s_cbranch_scc1 K1_NOFFT")
    a.e(f"v_lshlrev_b32 v59, 12, v{vL}")
    for i in range(4):
        o = f" offset:{1024*i}" if i else ""
        a.e(f"buffer_store_dword v{60+i}, v59, s[36:39], 0 offen{o}")
    a.label("K1_NOFFT")
    a.e("s_mov_b64 exec, s[60:61]")
    a.e("s_waitcnt lgkmcnt(0)")
    for i in range(8):
        a.e(f"ds_read_b32 v{BA+i}, v{BA+i} offset:{SL + 132}")
    a.e("s_waitcnt lgkmcnt(0)")
    for i in range(8):
        a.e(f"v_add_lshl_u32 v{BA+i}, v{BA+i}, v{RK+i}, 2")
        a.e(f"ds_write_b32 v{BA+i}, v{D+i} offset:{SORT - 4}")
    a.e("s_mov_b64 exec, -1")
    a.e("s_waitcnt lgkmcnt(0)")
    a.e("s_barrier")
    a.e(f"ds_read_b128 v[4:7], v2 offset:{SORT}")
    a.e(f"ds_read_b128 v[8:11], v2 offset:{SORT + 8192}")
    a.e(f"s_waitcnt lgkmcnt(0)")
    a.e(f"buffer_store_dwordx4 v[4:7], v2, s[32:35], 0 offen")
    a.e(f"buffer_store_dwordx4 v[8:11], v2, s[32:35], s62 offen")
    a.e("s_endpgm")
    a.label("K1_W3")
    a.e(f"s_sub_u32 s{sT}, s2, 124")
    srd(a, 72, S_WM, off_c=65536, size=4096)
    srd(a, 76, S_WS, off_c=cfg.wsoff + WS_W3F, size=4096)
    a.e(f"v_and_b32 v70, 31, v{vL}")
    a.e("v_lshlrev_b32 v70, 1, v70")
    a.e(f"v_lshrrev_b32 v71, 5, v{vL}")
    a.e("v_lshl_add_u32 v70, v71, 11, v70")
    a.e(f"s_lshl_b32 s{sT+1}, s{sT}, 6")
    for j in range(8):
        o = f" offset:{256*j}" if j else ""
        a.e(f"buffer_load_ushort v{72+j}, v70, s[72:75], s{sT+1} offen{o}")
    a.e(f"s_lshl_b32 s{sT+1}, s{sT}, 10")
    a.e(f"s_mov_b32 s{sT}, {LOG2E_NEG}")
    a.e(f"v_lshlrev_b32 v71, 4, v{vL}")
    a.e("s_waitcnt vmcnt(0)")
    for j in range(8):
        a.e(f"v_lshlrev_b32 v{72+j}, 16, v{72+j}")
        a.e(f"v_mul_f32 v{72+j}, s{sT}, v{72+j}")
    for j in range(4):
        a.e(f"v_cvt_pk_bf16_f32 v{80+j}, v{72+2*j}, v{73+2*j}")
    a.e(f"buffer_store_dwordx4 v[80:83], v71, s[76:79], s{sT+1} offen {cfg.st_pol}")
    a.e("s_branch K1_B2")

CNT, FLG, LUT, QL, LIST, AGG, SIDE, WU2, STG = 0, 256, 288, 576, 13776, 30800, 56672, 65536, 98304
MAXT = 65
K2_LDS = 163840
vL, vM = 1, 2
vOC, vREM, vROFF, vEB = 3, 4, 5, 6
vAE, vAP, vAQ = 7, 8, 9
vCP, vRP0, vRP1, vCQ, vCL, vCA, vH16, vFA = 10, 11, 12, 13, 14, 15, 16, 17
vPA = 144
vEA, vLA = 20, 21
vQA = 22
vRS = 148
vC4 = 152
ACC = 156
vRN = 28
vRE = 30
vSD = 31
vCUR = 32
vCHK = 34
vWC, vWA = 35, 36
vPF = 38
vT = 40
Z = 64; PX = 128; PY = 128; QX = 160; QY = 168; EE = 176; AQ = 184; AP = 188; IDX = 192; W3 = 196
NN = 212; DD = 220; EX = 228; TT = 232; ACX = 236
sP, sE, sX, sO, sR, sWm, sWu, sOT = 24, 28, 32, 36, 40, 44, 48, 52
sW, sBin, sNT, sCnt, sG0, sG1, sG2, sLim, sDone, sSafe, sW4k, sM0, sMask, sMore, sFirst, sDm = 22, 23, 56, 57, 58, 59, 60, 61, 62, 63, 64, 65, 66, 67, 68, 69
sT = 70
sX0 = 80
sSusp = 88
sF0, sF1 = 32, 34
sMA, sMB, sL, sEX = 58, 59, 60, 52
PSIZE = 12500 * 256 + 3072
s256 = 79
ESIZE = 400000 * 32

def dma_m0(H, dest=None):
    if dest is None: dest = H
    return f"s_add_u32 m0, s{sW4k}, {WU2 - 128*H}" if dest == "alt" else f"s_add_u32 m0, s{sM0}, {dest*4096 - 128*H + 256}"
def dma_ld(H):
    out = []
    for j in range(4):
        imm = 1024 * j + 128 * H
        o = f" offset:{imm}" if imm else ""
        out.append(f"buffer_load_dwordx4 v{vPA+j}, s[{sP}:{sP+3}], 0 offen{o} {cfg.g_pol} lds")
    return out
def dma_ops(H, dest=None):
    l = dma_ld(H)
    return [[dma_m0(H, dest), "s_nop 0", l[0]], [l[1]], [l[2]], [l[3]]]
def dma_half(a, H, dest=None):
    for s in sum(dma_ops(H, dest), []): a.e(s)
def pfrag_reads(dst, H, va=None):
    out = []
    va = vRP0 if va is None else va
    for tq in range(2):
        for q in range(4):
            r = dst + 8 * tq + 2 * q
            out.append(f"ds_read_b64_tr_b16 v[{r}:{r+1}], v{va+tq} offset:{H*4096 + q*512}")
    return out
def qfrag_reads(dst, H, par):
    out = []
    for tq in range(2):
        for u in range(2):
            r = dst + 4 * tq + 2 * u
            out.append(f"ds_read_b64_tr_b16 v[{r}:{r+1}], v{vQA+2*par+u} offset:{(2*H+tq)*64}")
    return out
def list_reads_se(o=0):
    return [f"ds_read_b32 v{vRE}, v{vAE} offset:{128*o}", f"ds_read2_b32 v[{vRS}:{vRS+1}], v{vAP} offset0:{32*o} offset1:{32*o+8}", f"ds_read2_b32 v[{vRS+2}:{vRS+3}], v{vAP} offset0:{32*o+16} offset1:{32*o+24}"]
def list_reads_n(o=0):
    return [f"ds_read_u16 v{vRN}, v{vAQ} offset:{128*o}", f"ds_read_u16 v{vRN+1}, v{vAQ} offset:{128*o+64}"]
def addr_p():
    return [f"v_mad_u32_u16 v{vPA+j}, v{vRS+j}, s{s256}, v{vC4+j}" for j in range(4)]
def addr_e():
    return [f"v_and_or_b32 v{vEA}, v{vRE}, s{sMask}, v{18 if 'ehalf' in cfg.x else vH16}"]
def addr_l():
    return [f"v_and_or_b32 v{vLA}, v{vRE}, 16, v{vCL}", f"v_cmp_gt_i32 vcc, 0, v{vRE}"]
def addr_se():
    return addr_p() + addr_e() + addr_l()
def flags_from_vcc(sF):
    if "nf2" in cfg.x: return [f"s_mov_b32 s{sF}, 0", f"s_mov_b32 s{sF+1}, 0"]
    return [f"s_lshr_b32 s{sF+1}, vcc_lo, 4", f"s_mov_b32 s{sF}, vcc_lo", f"s_or_b32 s{sF+1}, s{sF+1}, vcc_lo", f"s_or_b32 s{sF+1}, s{sF+1}, s{sSafe}"]
def addr_q(par):
    return [f"v_add_u32 v{vQA+2*par}, v{vRN}, v{vCQ}", f"v_add_u32 v{vQA+2*par+1}, v{vRN+1}, v{vCQ}"]
def e_load(par):
    return f"buffer_load_dwordx4 v[{EE+4*par}:{EE+4*par+3}], v{vEA}, s[{sE}:{sE+3}], 0 offen {cfg.e_pol}"
def mfmas(c0, Pset, Qset, epar):
    out = []
    zz = lambda c: f"v[{Z+16*c}:{Z+16*c+15}]"
    f4 = lambda r: f"v[{r}:{r+3}]"
    M = "v_mfma_f32_32x32x16_bf16"
    for i in range(2): out.append(f"{M} {zz(c0+i)}, {f4(EE+4*epar)}, {f4(W3+4*(c0+i))}, 0")
    for i in range(2): out.append(f"{M} {zz(c0+i)}, {f4(AQ)}, {f4(Qset+4*i)}, {zz(c0+i)}")
    for i in range(2): out.append(f"v_smfmac_f32_32x32x32_bf16 {zz(c0+i)}, {f4(AP)}, v[{Pset+8*i}:{Pset+8*i+7}], v{IDX}")
    return out
p2 = lambda r: f"v[{r}:{r+1}]"
def flush_code(a, c0, X, mid=(), wait=True, chk=()):
    t = vT + 8 * X
    for i in range(2):
        c = c0 + i
        a.e(f"v_rcp_f32 v{t+2*i}, v{DD+2*c}")
        a.e(f"v_rcp_f32 v{t+2*i+1}, v{DD+2*c+1}")
    for s in chk: a.e(s)
    for i in range(2):
        c = c0 + i
        a.e(f"v_max3_f32 v{vCHK}, v{DD+2*c}, v{DD+2*c+1}, v{vCHK}")
    for s in mid: a.e(s)
    if wait: a.e("s_waitcnt lgkmcnt(0)")
    for j in range(2):
        for i in range(2):
            c = c0 + i
            a.e(f"v_fmac_f32 v{ACC+c}, v{NN+2*c+j}, v{t+2*i+j}")

def half_step(a, ool, X, par, extras, tag):
    c0 = 2 * X
    sF0 = (32, 34)[par]
    if X == 0: mf = mfmas(2, PX, QX, par)
    else:      mf = mfmas(0, PY, QY, 1 - par)
    def keep(s):
        if "nodma" in cfg.x and (" lds" in s or "m0" in s or s == "s_nop 0"): return False
        if "noe" in cfg.x and s.startswith("buffer_load") and " lds" not in s: return False
        if "nods" in cfg.x and s.startswith("ds_read"): return False
        if "nowait" in cfg.x and s.startswith("s_waitcnt"): return False
        if "novm" in cfg.x and s.startswith("s_waitcnt vmcnt"): return False
        return True
    extras = {k: [s for s in v if keep(s)] for k, v in extras.items()}
    for s in extras.get("pre", []): a.e(s)
    if cfg.prio == 1: a.e(f"s_setprio {1 - X}")
    if cfg.prio == 2 and X == 0: a.e(f"s_setprio {1 - par}")
    for k in range(8):
        if cfg.prio == 3 and k in (0, 4): a.e(f"s_setprio {1 if k == 0 else 0}")
        if cfg.prio == 4: a.e("s_setprio 1")
        if cfg.prio == 5: a.e("s_setprio 0")
        if "nomfma" not in cfg.x and k < len(mf): a.e(mf[k])
        for i in range(2):
            z = Z + 16 * (c0 + i) + 2 * k
            a.e(f"v_exp_f32 v{EX+2*i}, v{z}")
            a.e(f"v_exp_f32 v{EX+2*i+1}, v{z+1}")
        for s in extras.get(k, []): a.e(s)
        if cfg.prio == 4: a.e("s_setprio 0")
        if cfg.prio == 5: a.e("s_setprio 1")
        bit = 8 * (k >> 1) + 2 * (k & 1)
        lf, lb = f"F_{tag}_{k}", f"R_{tag}_{k}"
        if "nobr" not in cfg.x:
            a.e(f"s_bitcmp1_b32 s{sSafe if 'nofl' in cfg.x else sF0+1}, {bit}")
            a.e(f"s_cbranch_scc1 {lf}")
        for i in range(2):
            c = c0 + i; z = Z + 16 * c + 2 * k
            a.e(f"v_pk_fma_f32 {p2(TT+2*i)}, {p2(z)}, {p2(DD+2*c)}, {p2(NN+2*c)}")
        for i in range(2):
            c = c0 + i
            a.e(f"v_pk_fma_f32 {p2(DD+2*c)}, {p2(DD+2*c)}, {p2(EX+2*i)}, {p2(DD+2*c)}")
        for i in range(2):
            c = c0 + i
            a.e(f"v_pk_fma_f32 {p2(NN+2*c)}, {p2(NN+2*c)}, {p2(EX+2*i)}, {p2(TT+2*i)}")
        a.label(lb)
        ool.label(lf)
        t = vT + 8 * X
        ex = "K2_LEND" if X else (f"EXA{par}_{k}" if k < 6 else f"R_{tag}_7")
        sal = ([f"s_bitcmp1_b32 s{sF0}, {bit+1}", f"s_cbranch_scc1 {ex}"] if k else []) + \
              [f"s_bitcmp1_b32 s{sF0}, {bit}", f"s_cselect_b32 s{sT}, -1, 0", f"s_bitcmp1_b32 s{sF0}, {bit+4}", f"s_cselect_b32 s{sT+1}, -1, 0"]
        rc = [f"v_rcp_f32 v{t+j}, v{DD+2*c0+j}" for j in range(4)]
        n = len(sal)
        for j in range(4):
            ool.e(rc[j])
            for x in sal[:(n + 3 - j) // 4 if False else 0]: pass
            cnt = (n // 4) + (1 if j < n % 4 else 0)
            for _ in range(cnt): ool.e(sal.pop(0))
        for i in range(2):
            c = c0 + i
            ool.e(f"v_max3_f32 v{vCHK}, v{DD+2*c}, v{DD+2*c+1}, v{vCHK}")
        ool.e(f"v_mov_b32_dpp v{t+6}, v{vQA+2*par+(k>>2)} row_newbcast:{4*(k&3)} row_mask:0xf bank_mask:0xf")
        nk = sum(1 for x in extras.get(k, []) if x.startswith("ds_")) if cfg.cw else 0
        if k == 0 and cfg.cw: pass
        elif k == 7 and cfg.cw: pass
        else: ool.e(f"s_waitcnt lgkmcnt({nk})")
        for j in range(2):
            for i in range(2):
                c = c0 + i
                ool.e(f"v_fmac_f32 v{ACC+c}, v{NN+2*c+j}, v{t+2*i+j}")
        ool.e(f"s_mov_b64 exec, s[{sT}:{sT+1}]")
        ool.e(f"ds_write2_b32 v{vCUR+X}, v{ACC+c0}, v{ACC+c0+1} offset0:{32*c0} offset1:{32*c0+32}")
        ool.e(f"v_lshl_add_u32 v{vCUR+X}, v{t+6}, 1, v{vCA}")
        ool.e(f"ds_read2_b32 v[{ACC+c0}:{ACC+c0+1}], v{vCUR+X} offset0:{32*c0} offset1:{32*c0+32}")
        ool.e("s_mov_b64 exec, -1")
        for i in range(2):
            c = c0 + i
            ool.e(f"v_pk_add_f32 {p2(DD+2*c)}, {p2(EX+2*i)}, 1.0 op_sel_hi:[1,0]")
        for i in range(2):
            c = c0 + i; z = Z + 16 * c + 2 * k
            ool.e(f"v_pk_mov_b32 {p2(NN+2*c)}, {p2(z)}, {p2(z)} op_sel:[0,1]")
        ool.e(f"s_branch {lb}")

def lds_fill(a, base, nbytes, vdata, vaddr16, ex):
    n = (nbytes + 15) // 16
    r = 0
    while n >= 512:
        a.e(f"ds_write_b128 v{vaddr16}, v[{vdata}:{vdata+3}] offset:{base + r*8192}")
        n -= 512; r += 1
    if n:
        a.e(f"s_movk_i32 s{sT}, {n}")
        a.e(f"v_cmp_gt_u32 vcc, s{sT}, v0")
        a.e(f"s_and_saveexec_b64 s[{ex}:{ex+1}], vcc")
        a.e(f"ds_write_b128 v{vaddr16}, v[{vdata}:{vdata+3}] offset:{base + r*8192}")
        a.e(f"s_mov_b64 exec, s[{ex}:{ex+1}]")

def reset_round(a, zero_agg):
    t = vT
    a.e(f"v_lshlrev_b32 v{t}, 4, v0")
    a.e(f"v_mov_b32 v{t+8}, 0\nv_mov_b32 v{t+9}, 0\nv_mov_b32 v{t+10}, 0\nv_mov_b32 v{t+11}, 0")
    lds_fill(a, CNT, 272, t+8, t, sX0)
    if zero_agg: lds_fill(a, AGG, 49 * 528, t+8, t, sX0)

def onehot4(a, dst, vJ, vcond_sgpr, t):
    a.e(f"v_and_b32 v{t}, 1, v{vJ}")
    a.e(f"v_lshlrev_b32 v{t}, 4, v{t}")
    a.e(f"v_mov_b32 v{t+1}, 0x3f80")
    a.e(f"v_lshlrev_b32 v{t}, v{t}, v{t+1}")
    if vcond_sgpr is not None:
        a.e(f"v_cndmask_b32 v{t}, 0, v{t}, s[{vcond_sgpr}:{vcond_sgpr+1}]")
    a.e(f"v_lshrrev_b32 v{t+1}, 1, v{vJ}")
    for i in range(4):
        a.e(f"v_cmp_eq_u32 vcc, {i}, v{t+1}")
        a.e("s_nop 1")
        a.e(f"v_cndmask_b32 v{dst+i}, 0, v{t}, vcc")

def gen_k2(a):
    ool = Asm()
    rare = Asm()
    RC = 160; RK = 172; NA = 184; EN = 212
    XF, WU1F, W2F, QACC = 64, 96, [128, 132, 136, 140, 160, 164, 168, 172], 212
    vLA0, vXA, vW3A, vW0 = vT + 20, vT + 21, vT + 22, vT + 23
    t = vT + 12
    kernel_head(a, NAME + "_kernel")
    load_args(a)
    a.e(f"v_lshrrev_b32 v{vT+1}, 2, v0")
    a.e(f"v_and_b32 v{vW0}, 3, v0")
    a.e("s_cmp_ge_u32 s2, 256")
    a.e("s_cbranch_scc1 K2_END")
    if cfg.dbg:
        a.e("v_mov_b32 v252, 0")
        a.e("s_memrealtime s[92:93]")
    idmap(a, sBin, 2, sT)
    a.e(f"v_mul_u32_u24 v{vEB}, 3200, v{vT+1}")
    a.e(f"v_lshlrev_b32 v{vT+4}, 4, v{vW0}")
    a.e(f"s_lshl_b32 s{sT+2}, s{sBin}, {6 if cfg.lohi else 7}")
    if cfg.lohi: a.e(f"s_movk_i32 s{sT+5}, 16384")
    a.e(f"s_add_u32 s{sT+2}, s{sT+2}, {cfg.wsoff + WS_S01}")
    a.e(f"v_lshl_add_u32 v{vT+2}, v{vT+1}, 15, v{vT+4}")
    a.e(f"s_mov_b32 s{sOT+2}, {124*32768 + (16384+64 if cfg.lohi else 128)}")
    a.e(f"s_mov_b32 s{sOT+3}, 0x20000")
    a.e(f"v_lshrrev_b32 v{vT}, 6, v0")
    a.e(f"v_and_b32 v{vL}, 63, v0")
    a.e(f"v_readfirstlane_b32 s{sW}, v{vT}")
    a.e(f"s_mul_i32 s{sT+3}, s{sBin}, 12544")
    a.e(f"s_sub_u32 s{sT+4}, 3200000, s{sT+3}")
    a.e(f"s_min_u32 s{sT+4}, s{sT+4}, 12544")
    a.e(f"v_mov_b32 v{vT+8}, 0\nv_mov_b32 v{vT+9}, 0\nv_mov_b32 v{vT+10}, 0\nv_mov_b32 v{vT+11}, 0")
    a.e(f"v_lshlrev_b32 v{vW3A}, 4, v{vL}")
    a.e("s_mov_b64 exec, 0x1ffff")
    a.e(f"ds_write_b128 v{vW3A}, v[{vT+8}:{vT+11}] offset:{CNT}")
    a.e("s_mov_b64 exec, -1")
    WU1L = 32768
    NPF = cfg.prefetchP
    vXD, vW3D = vT + 18, vT + 7
    sM = sX0 + 4
    c = Asm(); x_dma(c, sX, sW, vL, STG, vXD, sM + 2, strided=True)
    for x in c.lines[:-4]: a.e(x)
    a.e(f"s_add_u32 s{sM+3}, s{sM+3}, {STG}")
    xd = c.lines[-2:]
    w_lane_const(a, vWC, vL, t)
    a.e(f"s_lshl_b32 s{sW4k}, s{sW}, 12")
    a.e(f"s_lshl_b32 s{sM0}, s{sW}, 13")
    a.e(f"s_add_u32 s{sM}, s{sM0}, {STG + 4096}")
    a.e(f"s_add_u32 s{sM0}, s{sM0}, {STG - 256}")
    a.e(f"s_add_u32 s{sM+1}, s{sW4k}, {WU1L}")
    a.e(f"v_lshlrev_b32 v{vW3D}, 4, v0")
    a.e(f"s_and_b32 s{sT+1}, s{sW}, 4")
    a.e(f"s_add_u32 s{sT}, s{sW}, s{sT+1}")
    a.e(f"s_lshl_b32 s{sT}, s{sT}, 10")
    a.e(f"s_add_u32 m0, s{sT}, {STG + 32768}")
    a.e(f"s_mov_b32 s{sR+2}, 4096")
    a.e(f"s_mov_b32 s{sR+3}, 0x20000")
    a.e("s_waitcnt lgkmcnt(0)")
    a.e(f"s_add_u32 s{sOT}, s{S_WS}, s{sT+2}")
    a.e(f"s_addc_u32 s{sOT+1}, s{S_WS+1}, 0")
    a.e(f"buffer_load_dwordx4 v[{RC}:{RC+3}], v{vT+2}, s[{sOT}:{sOT+3}], 0 offen {cfg.s_pol}")
    a.e(f"buffer_load_dwordx4 v[{RC+4}:{RC+7}], v{vT+2}, s[{sOT}:{sOT+3}], " + (f"s{sT+5} offen" if cfg.lohi else "0 offen offset:64"))
    a.e(f"s_add_u32 s{sR}, s{S_WS}, {cfg.wsoff + WS_W3F}")
    a.e(f"s_addc_u32 s{sR+1}, s{S_WS+1}, 0")
    a.e(f"buffer_load_dwordx4 v{vW3D}, s[{sR}:{sR+3}], 0 offen lds")
    if cfg.dbg:
        a.e("v_writelane_b32 v252, s92, 0")
        a.e("s_getreg_b32 s90, hwreg(HW_REG_XCC_ID)")
        a.e("s_add_u32 s90, s90, 1")
        a.e("v_writelane_b32 v252, s90, 39")
    stamp(a, 40, 252)
    srd(a, sX, S_X, off_s=sT+3, size=f"s{sT+4}")
    srd(a, sO, S_OUT, off_s=sT+3, size=f"s{sT+4}")
    srd(a, sWm, S_WM, off_c=32768, size=32768)
    srd(a, sWu, S_WU, size=256*256)
    if cfg.spf:
        a.e(f"s_lshr_b32 s{sT}, s2, 3")
        a.e(f"s_mul_i32 s{sT}, s{sT}, {781*128}")
        a.e(f"s_mul_i32 s{sT+1}, s{sW}, {cfg.spf*128}")
        a.e(f"s_add_u32 s{sT}, s{sT}, s{sT+1}")
        a.e(f"s_add_u32 s{sT}, s{sT}, {cfg.wsoff + WS_P + (781 - 8*cfg.spf)*128}")
        a.e(f"s_add_u32 s{sT}, s{S_WS}, s{sT}")
        a.e(f"s_addc_u32 s{sT+1}, s{S_WS+1}, 0")
    a.e("s_barrier")
    for j in range(cfg.spf):
        a.e(f"s_load_dword s78, s[{sT}:{sT+1}], {hex(128*j)}")
    stamp(a, 41, 252)
    def mix(lines, extra, first=0):
        out = []; n = len(lines); m = len(extra); k = 0; full = True
        for i, x in enumerate(lines):
            while full and k < m and k * n <= i * m: out += extra[k]; k += 1
            out.append(x)
            if "exec" in x.split(",")[0]: full = x.strip() == "s_mov_b64 exec, -1"
        return out + sum(extra[k:], [])
    dm = [[f"s_mov_b32 m0, s{sM+3}", "s_nop 0", xd[0]], [xd[1]]]
    for j, srdw in enumerate((sWm, sWu)):
        for i in range(4):
            o = f" offset:{1024*i}" if i else ""
            dm.append(([f"s_mov_b32 m0, s{sM+j}", "s_nop 0"] if i == 0 else []) + [f"buffer_load_dwordx4 v{vWC}, s[{srdw}:{srdw+3}], s{sW4k} offen{o} lds"])
    c = Asm(); sav = a.lines; a.lines = c.lines
    a.e(f"v_and_b32 v{t+1}, 7, v{vL}")
    onehot4(a, AQ, t+1, None, t+2)
    a.e(f"v_lshlrev_b32 v{t+2}, 5, v{vL}")
    a.e(f"v_and_b32 v{vM}, 31, v0")
    a.e(f"v_lshlrev_b32 v{vW0}, 2, v{vW0}")
    a.e("s_mov_b64 exec, 0x1ff")
    a.e(f"ds_write_b128 v{t+2}, v[{vT+8}:{vT+11}] offset:{LUT+16}")
    a.e("s_mov_b64 exec, 0x100")
    a.e(f"ds_write_b128 v{t+2}, v[{vT+8}:{vT+11}] offset:{LUT}")
    a.e("s_mov_b64 exec, 0xff")
    a.e(f"ds_write_b128 v{t+2}, v[{AQ}:{AQ+3}] offset:{LUT}")
    a.e("s_mov_b64 exec, -1")
    srd(a, sP, S_WS, off_c=cfg.wsoff + WS_P - 3072, size=PSIZE)
    if NPF:
        a.e(f"s_lshr_b32 s{sT}, s2, 3")
        a.e(f"s_mul_i32 s{sT}, s{sT}, {781*128}")
        a.e(f"s_add_u32 s{sT}, s{sT}, 3072")
        a.e(f"v_lshl_add_u32 v{vPF}, v{vL}, 3, s{sW}")
        if cfg.pfn < 512:
            a.e(f"s_movk_i32 s{sT+1}, {cfg.pfn}")
            a.e(f"v_cmp_gt_u32 vcc, s{sT+1}, v{vPF}")
        a.e(f"v_lshl_add_u32 v{vPF}, v{vPF}, 7, s{sT}")
        if NPF > 1:
            a.e(f"v_add_u32 v{vPF+1}, 0x10000, v{vPF}")
        if cfg.pfn < 512:
            a.e(f"v_mov_b32 v{vT+3}, 0x7ffffff0")
            a.e(f"v_cndmask_b32 v{vPF+NPF-1}, v{vT+3}, v{vPF+NPF-1}, vcc")
    if cfg.pfe:
        a.e(f"s_mul_i32 s{sT}, s2, 51200")
        a.e(f"v_lshl_add_u32 v{vPF+1}, v{vL}, 3, s{sW}")
        a.e(f"s_movk_i32 s{sT+1}, {cfg.pfe}")
        a.e(f"v_cmp_gt_u32 vcc, s{sT+1}, v{vPF+1}")
        a.e(f"v_lshl_add_u32 v{vPF+1}, v{vPF+1}, 7, s{sT}")
        a.e(f"v_mov_b32 v{vT+3}, 0x7ffffff0")
        a.e(f"v_cndmask_b32 v{vPF+1}, v{vT+3}, v{vPF+1}, vcc")
    NPP = NPF
    if cfg.pfm:
        a.e(f"v_lshl_add_u32 v{vPF+1}, v{vL}, 3, s{sW}")
        a.e(f"s_movk_i32 s{sT+1}, {cfg.pfm}")
        a.e(f"v_cmp_gt_u32 vcc, s{sT+1}, v{vPF+1}")
        a.e(f"s_add_u32 s{sT}, s{sT}, 0x10000")
        a.e(f"v_lshl_add_u32 v{vPF+1}, v{vPF+1}, 7, s{sT}")
        a.e(f"v_cndmask_b32 v{vPF+1}, v{vT+3}, v{vPF+1}, vcc")
        dm[cfg.pfmpos] = dm[cfg.pfmpos] + [f"buffer_load_dword v37, v{vPF+1}, s[{sP}:{sP+3}], 0 offen"]
    if cfg.tlb:
        a.e(f"v_lshlrev_b32 v{vPF+1}, 20, v{vL}")
    def pf(pos):
        if cfg.pfpos == pos:
            if cfg.tlb & 1: a.e(f"buffer_load_dword v37, v{vPF+1}, s[{sE}:{sE+3}], 0 offen")
            if cfg.tlb & 2: a.e(f"buffer_load_dword v37, v{vPF+1}, s[{sO}:{sO+3}], 0 offen")
            if cfg.pfe: a.e(f"buffer_load_dword v37, v{vPF+1}, s[{sE}:{sE+3}], 0 offen {cfg.et_pol}")
            for i in range(NPP): a.e(f"buffer_load_dword v37, v{vPF+i}, s[{sP}:{sP+3}], 0 offen")
    if cfg.pfe: NPF += 1
    NPF += (cfg.tlb & 1) + (cfg.tlb >> 1 & 1)
    a.e(f"s_mov_b32 s{sLim}, 32")
    a.e(f"s_mov_b32 s{sDone}, 0")
    wfrag_const(a, vWA, vL, sW, t, sT)
    a.e(f"v_add_u32 v{vW3A}, {STG + 32768}, v{vW3A}")
    a.e(f"v_lshrrev_b32 v{t}, 5, v{vL}")
    a.e(f"v_and_b32 v{t+1}, 15, v{vL}")
    a.e(f"v_xor_b32 v{t+2}, v{t}, v{t+1}")
    a.e(f"v_lshlrev_b32 v{t+2}, 4, v{t+2}")
    a.e(f"v_lshl_add_u32 v{vXA}, v{t+1}, 8, v{t+2}")
    a.e(f"v_bfe_u32 v{t+2}, v{vL}, 4, 1")
    a.e(f"v_lshl_add_u32 v{vXA}, v{t+2}, 13, v{vXA}")
    a.e(f"s_lshr_b32 s{sT}, s{sW}, 2")
    a.e(f"s_lshl_b32 s{sT}, s{sT}, 14")
    a.e(f"s_add_u32 s{sT}, s{sT}, {STG}")
    a.e(f"v_add_u32 v{vXA}, s{sT}, v{vXA}")
    srd(a, sE, S_E, size=ESIZE)
    a.e(f"s_mov_b32 s{sSafe}, 0")
    a.e(f"s_mov_b32 s{sFirst}, 1")
    a.e(f"s_mov_b32 s{sMask}, {'0x4003ffe0' if 'esm' in cfg.x else '0x7fffffe0'}")
    a.e(f"v_mov_b32 v{vCL}, {LUT + 256}")
    a.e(f"v_bfe_u32 v{t+1}, v{vL}, 3, 2")
    a.e(f"v_bfe_u32 v{t+3}, v{vL}, 1, 1")
    a.e(f"v_lshl_add_u32 v{t+1}, v{t+1}, 1, v{t+3}")
    a.e(f"v_lshlrev_b32 v{t+1}, 5, v{t+1}")
    a.e("s_mov_b32 exec_lo, 0x0f0f0f0f\ns_mov_b32 exec_hi, 0xf0f0f0f0")
    a.e(f"v_add_u32 v{vCL}, {LUT}, v{t+1}")
    a.e("s_mov_b64 exec, -1")
    a.e(f"v_lshlrev_b32 v{vH16}, 4, v{t}")
    if 'ehalf' in cfg.x: a.e(f"v_lshlrev_b32 v18, 30, v{t}")
    a.e(f"v_and_b32 v{t+1}, 3, v{vL}")
    a.e(f"v_lshlrev_b32 v{vCQ}, 3, v{t+1}")
    a.e(f"v_lshl_add_u32 v{vCQ}, v{t+2}, 5, v{vCQ}")
    a.e(f"v_add_u32 v{vCQ}, {QL}, v{vCQ}")
    a.e(f"v_lshlrev_b32 v{vCA}, 2, v{vM}")
    a.e(f"v_mad_u32_u24 v{vSD}, v{vH16}, 33, v{vCA}")
    a.e(f"s_mul_i32 s{sT}, s{sW}, 1056")
    a.e(f"s_add_u32 s{sT}, s{sT}, {SIDE}")
    a.e(f"v_add_u32 v{vSD}, s{sT}, v{vSD}")
    a.e(f"v_lshlrev_b32 v{t+2}, 6, v{t+2}")
    a.e(f"v_sub_u32 v{vCA}, v{vCA}, v{t+2}")
    a.e(f"v_add_u32 v{vCA}, {AGG - 2*QL}, v{vCA}")
    a.e(f"v_bfe_u32 v{t+1}, v{vL}, 2, 2")
    a.e(f"v_lshl_add_u32 v{vRP0}, v{t+1}, 7, v{vCQ}")
    a.e(f"v_lshl_add_u32 v{vRP0}, v{t}, 11, v{vRP0}")
    a.e(f"v_and_b32 v{t+1}, 8, v{vL}")
    a.e(f"v_lshl_add_u32 v{vRP0}, v{t+1}, 3, v{vRP0}")
    a.e(f"s_add_u32 s{sT}, s{sM0}, {256 - QL}")
    a.e(f"v_add_u32 v{vRP0}, s{sT}, v{vRP0}")
    a.e(f"v_xor_b32 v{vRP1}, 64, v{vRP0}")
    a.e(f"s_movk_i32 s{s256}, 256")
    a.e(f"v_mov_b32 v{vCHK}, 0")
    def round_consts(a):
        a.e(f"v_lshrrev_b32 v{t}, 3, v{vM}")
        a.e(f"v_and_b32 v{t+1}, 3, v{vL}")
        a.e(f"v_lshl_add_u32 v{vAE}, v{t}, 2, v{t+1}")
        a.e(f"v_lshlrev_b32 v{vAE}, 3, v{vAE}")
        a.e(f"v_bfe_u32 v{t+1}, v{vL}, 2, 2")
        a.e(f"v_lshlrev_b32 v{vAQ}, 4, v{t+1}")
        a.e(f"v_and_b32 v{vAP}, 24, v{vL}")
        a.e(f"v_and_b32 v{t}, 7, v{vL}")
        a.e(f"v_bfe_u32 v{t+1}, v{vL}, 4, 1")
        a.e(f"v_lshlrev_b32 v{t}, 4, v{t}")
        a.e(f"v_lshlrev_b32 v{t+1}, 6, v{t+1}")
        a.e(f"v_xor_b32 v{vC4+3}, v{t}, v{t+1}")
        for j in range(3):
            a.e(f"v_add_u32 v{vC4+j}, {1024*(3-j)}, v{vC4+3}")
        a.e(f"v_mov_b32 v{vT}, 1")
        a.e(f"v_mov_b32 v{vT+1}, {FLG}")
        a.e(f"v_lshlrev_b32 v{vT+2}, 2, v{vL}")
        a.e(f"s_mov_b32 s{sT}, 0x420000")
        a.e(f"s_brev_b32 s{sT+6}, 1")
        a.e(f"s_add_u32 s{sT+7}, s{sDone}, s{sLim}")
        a.e(f"v_cmp_ne_u32 s[{sX0+2}:{sX0+3}], 0, v{vW0}")
    round_consts(a)
    a.lines = sav
    for x in mix(c.lines, dm): a.e(x)
    stamp(a, 1, 252)
    pf(1)
    stamp(a, 4, 252)
    NV = 11 + (1 if cfg.pfm else 0) + (NPF if cfg.pfpos <= 1 else 0)
    a.e(f"s_waitcnt vmcnt({NV + 1})")
    stamp(a, 5, 252)
    a.e(f"v_mov_b32_dpp v{vOC}, v{RC} quad_perm:[0,0,0,0] row_mask:0xf bank_mask:0xf")
    a.label("K2_COUNT")
    def groups(fn, lab, order=range(8), extra=(), pre=()):
        c = Asm(); sav = a.lines; a.lines = c.lines
        for i in order: fn(i)
        a.lines = sav
        for x in mix(c.lines, list(extra)): a.e(x)
    KK = lambda i: 16 * (i >> 2) + (i & 3)
    na = lambda i: f"v_lshlrev_b32_sdwa v{NA+i}, 2, v{RC+i} dst_sel:BYTE_0 dst_unused:UNUSED_PAD src0_sel:DWORD src1_sel:BYTE_0"
    a.e(na(1))
    a.e(f"v_min_u32 v{vREM}, s{sT+7}, v{vOC}")
    a.e(f"v_sub_u32 v{vREM}, v{vREM}, v{vW0}")
    a.e(f"v_cmp_lt_u32 s[{sX0+6}:{sX0+7}], s{sT+7}, v{vOC}")
    a.e(f"v_cmp_lt_i32 s[{sX0}:{sX0+1}], 0, v{vREM}")
    a.e(na(0))
    def f_cnt(i):
        a.e(f"v_cmpx_lt_i32 vcc, {KK(i)}, v{vREM}")
        if i == 3: a.e(f"s_waitcnt vmcnt({NV})")
        if i < 7: a.e(na(i + 1))
        a.e(f"ds_add_rtn_u32 v{RK+i}, v{NA+i}, v{vT} offset:{CNT}")
    groups(f_cnt, "K2_G1", order=range(1, 8))
    a.e(f"s_and_b64 s[{sX0}:{sX0+1}], s[{sX0}:{sX0+1}], s[{sX0+2}:{sX0+3}]")
    a.e(f"s_mov_b64 exec, s[{sX0}:{sX0+1}]")
    a.e(f"ds_add_rtn_u32 v{RK}, v{NA}, v{vT} offset:{CNT}")
    a.e(f"s_mov_b64 exec, s[{sX0+6}:{sX0+7}]")
    a.e(f"ds_write_b32 v{vT+1}, v{vT}")
    a.e("s_mov_b64 exec, -1")
    def f_ent(i):
        e0 = EN + 2 * i
        a.e(f"v_lshrrev_b32 v{e0}, 20, v{RC+i}")
        a.e(f"v_add_lshl_u32 v{e0}, v{e0}, v{vEB}, 5")
    groups(f_ent, "K2_G2")
    pf(2)
    a.e("s_waitcnt lgkmcnt(0)")
    a.e("s_barrier")
    stamp(a, 6, 252)
    a.e(f"ds_read_b32 v{vT+6}, v{vT+2} offset:{CNT}")
    a.e(f"ds_read_b32 v{vT+5}, v{vT+1}")
    def f_ent2(i):
        e1 = EN + 1 + 2 * i
        a.e(f"v_bfe_u32 v{e1}, v{RC+i}, 6, 14")
        a.e(f"v_mad_u32_u24 v{e1}, v{NA+i}, s{sT}, v{e1}")
    groups(f_ent2, "K2_G5")
    a.e("s_waitcnt lgkmcnt(0)")
    a.e(f"v_add_u32 v{vT+3}, 1, v{vT+6}")
    a.e(f"v_lshrrev_b32 v{vT+3}, 1, v{vT+3}")
    a.e(f"v_mov_b32 v{vT+4}, v{vT+3}")
    a.e(f"v_readfirstlane_b32 s{sMore}, v{vT+5}")
    fl = []
    for i in range(8):
        fl.append(f"v_add_u32 v{RC+i}, -1, v{RK+i}")
        fl.append(f"v_and_or_b32 v{EN+2*i}, v{RC+i}, s{sT+6}, v{EN+2*i}")
    v = vT + 4
    dpp = [f"v_add_u32_dpp v{v}, v{v}, v{v} row_shr:{sh} row_mask:0xf bank_mask:0xf bound_ctrl:0" for sh in (1, 2, 4, 8)]
    dpp += [f"v_add_u32_dpp v{v}, v{v}, v{v} row_bcast:15 row_mask:0xa bank_mask:0xf", f"v_add_u32_dpp v{v}, v{v}, v{v} row_bcast:31 row_mask:0xc bank_mask:0xf"]
    for j in range(6):
        a.e(fl[2*j]); a.e(fl[2*j+1]); a.e(dpp[j])
    a.e(fl[12])
    a.e(f"v_readlane_b32 s{sT+5}, v{vT+4}, 63")
    a.e(f"v_sub_u32 v{vT+4}, v{vT+4}, v{vT+3}")
    a.e(f"v_lshlrev_b32 v{vT+4}, 4, v{vT+4}")
    def f_perm(i):
        a.e(f"ds_bpermute_b32 v{NA+i}, v{NA+i}, v{vT+4}")
        if i >= 8:
            a.e(f"v_add_u32 v{RC+i}, -1, v{RK+i}")
            a.e(f"v_and_or_b32 v{EN+2*i}, v{RC+i}, s{sT+6}, v{EN+2*i}")
    groups(f_perm, "K2_G3")
    for x in fl[13:]: a.e(x)
    pf(3)
    a.e(f"s_cmp_gt_u32 s{sT+5}, 1025")
    a.e("s_cbranch_scc1 K2_TOOBIG")
    a.e(f"s_add_u32 s{sT}, s{sT+5}, 7")
    a.e(f"s_lshr_b32 s{sT}, s{sT}, 3")
    if cfg.ratio:
        a.e(f"s_mul_i32 s{sT+1}, s{sT}, {cfg.ratio}")
        a.e(f"s_add_u32 s{sT+1}, s{sT+1}, 63")
        a.e(f"s_lshr_b32 s{sT+1}, s{sT+1}, 6")
    else:
        a.e(f"s_add_u32 s{sT+1}, s{sT}, {cfg.bias}")
        a.e(f"s_lshr_b32 s{sT+1}, s{sT+1}, 4")
        a.e(f"s_lshl_b32 s{sT+1}, s{sT+1}, 3")
    a.e(f"s_min_u32 s{sT+1}, s{sT+1}, s{sT}")
    a.e(f"s_sub_u32 s{sT+2}, s{sT}, s{sT+1}")
    a.e(f"s_and_b32 s{sT+3}, s{sW}, 3")
    a.e(f"s_mul_i32 s{sT+3}, s{sT+3}, s{sT}")
    a.e(f"s_cmp_lt_u32 s{sW}, 4")
    a.e(f"s_cselect_b32 s{sL}, s{sT+1}, s{sT+2}")
    a.e(f"s_cselect_b32 s{sT+4}, 0, s{sT+1}")
    a.e(f"s_add_u32 s{sT+3}, s{sT+3}, s{sT+4}")
    a.e(f"s_lshl_b32 s{sT+3}, s{sT+3}, 5")
    a.e(f"s_add_u32 s{sT+3}, s{sT+3}, {LIST}")
    a.e(f"s_lshl_b32 s{sT+4}, s{sL}, 4")
    a.e(f"s_add_u32 s{sNT}, s{sL}, 7")
    a.e(f"s_lshr_b32 s{sNT}, s{sNT}, 3")
    a.e(f"s_cmp_eq_u32 s{sW}, 7")
    a.e("s_cbranch_scc0 K2_NODUM")
    a.e(f"v_mov_b32 v{vT+8}, 0x7ffffff0\nv_mov_b32 v{vT+9}, 0xffff\nv_mov_b32 v{vT+10}, 0x7ffffff0\nv_mov_b32 v{vT+11}, 0xffff")
    a.e(f"v_lshl_add_u32 v{vT+7}, v{vT+6}, 3, v{vT+4}")
    a.e(f"v_and_b32 v{vT+6}, 1, v{vT+6}")
    a.e(f"v_cmp_eq_u32 vcc, 1, v{vT+6}")
    a.e("s_mov_b64 exec, vcc")
    a.e(f"ds_write_b64 v{vT+7}, v[{vT+8}:{vT+9}] offset:{LIST}")
    a.e("s_mov_b32 exec_lo, -1\ns_mov_b32 exec_hi, 0x7f")
    a.e(f"v_add_lshl_u32 v{vT+7}, v{vL}, s{sT+5}, 4")
    a.e(f"ds_write_b128 v{vT+7}, v[{vT+8}:{vT+11}] offset:{LIST}")
    a.e("s_mov_b64 exec, -1")
    a.label("K2_NODUM")
    a.e("s_waitcnt lgkmcnt(0)")
    a.e(f"v_lshl_add_u32 v{NA}, v{RK}, 3, v{NA}")
    def f_place(i):
        a.e(f"v_cmpx_lt_i32 vcc, {KK(i)}, v{vREM}")
        a.e(f"v_lshl_add_u32 v{NA+i}, v{RK+i}, 3, v{NA+i}")
        a.e(f"ds_write_b64 v{NA+i}, v[{EN+2*i}:{EN+1+2*i}] offset:{LIST}")
    groups(f_place, "K2_G4", order=range(1, 8))
    a.e(f"s_mov_b64 exec, s[{sX0}:{sX0+1}]")
    a.e(f"ds_write_b64 v{NA}, v[{EN}:{EN+1}] offset:{LIST}")
    a.e("s_mov_b64 exec, -1")
    a.e(f"v_add_u32 v{vAE}, s{sT+3}, v{vAE}")
    a.e(f"v_add3_u32 v{vAP}, v{vAP}, s{sT+3}, 4")
    a.e(f"v_add3_u32 v{vAQ}, v{vAQ}, s{sT+3}, 6")
    a.e("s_mov_b32 exec_lo, 0xf0f0f0f0\ns_mov_b32 exec_hi, 0xf0f0f0f0")
    a.e(f"v_add_u32 v{vAE}, s{sT+4}, v{vAE}")
    a.e("s_mov_b32 exec_lo, 0\ns_mov_b32 exec_hi, -1")
    a.e(f"v_add_u32 v{vAP}, s{sT+4}, v{vAP}")
    a.e(f"v_add_u32 v{vAQ}, s{sT+4}, v{vAQ}")
    a.e("s_mov_b64 exec, -1")
    a.e(f"s_sub_u32 s{sT+1}, s{sT+1}, 1")
    a.e(f"s_sub_u32 s{sT+2}, s{sT+2}, 1")
    a.e(f"s_min_u32 s{sT+1}, s{sT+1}, s{sT+2}")
    a.e(f"v_cmp_lt_u32 s[{sSusp}:{sSusp+1}], s{sT+1}, v{vT+3}")
    a.e(f"s_cmp_eq_u32 s{sNT}, 0")
    a.e(f"s_cselect_b32 s{sP+2}, 0, {PSIZE}")
    a.e(f"s_cselect_b32 s{sE+2}, 0, {ESIZE}")
    a.e(f"s_cmp_eq_u32 s{sFirst}, 0")
    a.e(f"s_waitcnt vmcnt({NPF}) lgkmcnt(0)")
    a.e("s_barrier")
    a.e("s_cbranch_scc1 K2_PRO2")
    stamp(a, 7, 252)
    adv = [f"v_add_u32 v{r}, s{s256}, v{r}" for r in (vAE, vAP, vAQ)]
    def early_e1():
        return addr_e() + [f"s_cmp_lt_u32 s{sNT}, 2", f"s_cselect_b32 s{sE+2}, 0, s{sE+2}", e_load(1)]
    def prologue(a, first):
        for s in list_reads_se() + list_reads_n(): a.e(s)
        if first:
            for st in range(8):
                if st == 0: a.e(f"ds_read_b128 v[{XF}:{XF+3}], v{vXA}")
                else:
                    r = vT + (st & 1)
                    a.e(f"v_xor_b32 v{r}, {32*st}, v{vXA}")
                    a.e(f"ds_read_b128 v[{XF+4*st}:{XF+4*st+3}], v{r}")
        a.e(f"s_waitcnt lgkmcnt({8 if first else 0})")
        for s in addr_se() + addr_q(0): a.e(s)
        for s in list_reads_se(1): a.e(s)
        for s in flags_from_vcc(sF0): a.e(s)
        d0 = dma_ops(0, "alt"); d1 = dma_ops(1)
        fr = Asm()
        if first:
            a.e(f"v_add_u32 v{vT+3}, {STG + 4096}, v{vWA}")
            wfrag_read(fr, W2F, vT+3, 0, 8192)
            wfrag_read(fr, WU1F, vWA, WU1L)
            for c in range(4):
                fr.e(f"ds_read_b128 v[{W3+4*c}:{W3+4*c+3}], v{vW3A} offset:{1024*c}")
        n4 = len(fr.lines) // 4
        if cfg.e0f: a.e(e_load(0))
        for s in d0[0] + fr.lines[:n4] + d0[1] + fr.lines[n4:2*n4]: a.e(s)
        if not cfg.e0f: a.e(e_load(0))
        for s in fr.lines[2*n4:3*n4]: a.e(s)
        a.e(f"v_cmp_ne_u32 vcc, v{vLA}, v{vCL}")
        a.e(f"v_mov_b32_dpp v{vFA}, v{vQA} row_newbcast:0 row_mask:0xf bank_mask:0xf")
        a.e(f"v_mov_b32 v{vLA0}, v{vLA}")
        for s in d0[2] + fr.lines[3*n4:]: a.e(s)
        a.e(f"s_cmp_eq_u32 s{sNT}, 0")
        a.e(f"s_cselect_b32 s{sDm}, -1, vcc_lo")
        a.e(f"v_lshl_add_u32 v{vFA}, v{vFA}, 1, v{vCA}")
        for s in d0[3]: a.e(s)
        if first:
            a.e(f"s_lshr_b32 s{sT+1}, s{sW}, 2")
            a.e(f"s_lshl_b32 s{sT+1}, s{sT+1}, 5")
            a.e(f"v_add_u32 v{vT+1}, s{sT+1}, v{vM}")
            a.e(f"v_mul_u32_u24 v{vT+2}, 264, v{vT+1}")
            a.e(f"v_lshl_add_u32 v{vT+2}, v{vH16}, 1, v{vT+2}")
            a.e(f"s_and_b32 s{sT+1}, s{sW}, 3")
            a.e(f"s_lshl_b32 s{sT+1}, s{sT+1}, 6")
            a.e(f"v_add_u32 v{vT+2}, s{sT+1}, v{vT+2}")
            a.e(f"v_cmp_gt_u32 s[{sX0}:{sX0+1}], 49, v{vT+1}")
            a.e(f"v_lshlrev_b32 v{vT}, 4, v0")
            a.e(f"v_mov_b32 v{vT+8}, 0\nv_mov_b32 v{vT+9}, 0\nv_mov_b32 v{vT+10}, 0\nv_mov_b32 v{vT+11}, 0")
            a.e(f"s_movk_i32 s{sT+1}, {49*528//16 - 1536}")
            a.e(f"v_cmp_gt_u32 s[{sX0+2}:{sX0+3}], s{sT+1}, v0")
            a.e(f"s_mov_b32 s{sT}, {LOG2E_NEG}")
            a.e(f"s_mov_b32 s{sT+1}, {LOG2E_NEG}")
            stamp(a, 44, 252)
            a.e("s_waitcnt lgkmcnt(0)")
            g = Asm(); gemm8(g, QACC, W2F, XF)
            for x in g.lines: a.e(x)
            g = Asm(); gemm8(g, ACX, WU1F, XF)
            q = [f"v_mul_f32 v{QACC+i}, s{sT}, v{QACC+i}" for i in range(16)] + [f"v_cvt_pk_bf16_f32 v{QACC+i}, v{QACC+2*i}, v{QACC+1+2*i}" for i in range(8)]
            a.e(g.lines[0])
            if cfg.e1e:
                for x in early_e1(): a.e(x)
                a.e("s_nop 5")
            else:
                a.e("s_nop 9")
            for j in range(3):
                a.e(g.lines[1+j])
                for x in q[j*8:j*8+8]: a.e(x)
            a.e(f"s_mov_b64 exec, s[{sX0}:{sX0+1}]")
            for gg in range(4):
                a.e(f"ds_write_b64 v{vT+2}, v[{QACC+2*gg}:{QACC+1+2*gg}] offset:{QL + 8*gg}")
            a.e("s_mov_b64 exec, -1")
            a.e("s_barrier")
            for j in range(3):
                a.e(f"ds_write_b128 v{vT}, v[{vT+8}:{vT+11}] offset:{AGG + j*8192}")
            a.e(g.lines[4])
            a.e(f"s_mov_b64 exec, s[{sX0+2}:{sX0+3}]")
            a.e(f"ds_write_b128 v{vT}, v[{vT+8}:{vT+11}] offset:{AGG + 3*8192}")
            a.e("s_mov_b64 exec, -1")
            for s in d1[0]: a.e(s)
            a.e(g.lines[5])
            a.e("s_waitcnt lgkmcnt(0)")
            a.e("s_barrier")
            stamp(a, 45, 252)
            for j in range(1, 4):
                for s in d1[j]: a.e(s)
                if j < 3: a.e(g.lines[5+j])
        else:
            if cfg.e1e:
                a.e("s_waitcnt lgkmcnt(0)")
                for x in early_e1(): a.e(x)
            for s in sum(d1, []): a.e(s)
        a.e(f"s_cmp_lt_u32 s{sNT}, 2")
        a.e(f"s_cselect_b32 s{sP+2}, 0, s{sP+2}")
        a.e(f"s_cselect_b32 s{sE+2}, 0, s{sE+2}")
        if not first: a.e("s_waitcnt lgkmcnt(0)")
        for s in addr_se(): a.e(s)
        for s in list_reads_se(2) + list_reads_n(1): a.e(s)
        for s in flags_from_vcc(sF1): a.e(s)
    prologue(a, True)
    rare.label("K2_PRO2")
    rare.e("s_waitcnt vmcnt(0)")
    prologue(rare, False)
    rare.e("s_branch K2_NOX")
    stamp(a, 42, 252)
    for i in range(8):
        a.e(f"v_pk_mul_f32 {p2(ACX+2*i)}, {p2(ACX+2*i)}, s[{sT}:{sT+1}]")
    a.label("K2_NOX")
    stamp(a, 43, 252)
    a.e(f"s_cmp_eq_u32 s{sNT}, 0")
    a.e("s_cbranch_scc1 K2_NOTILES")
    a.e(f"ds_read_b128 v[{AQ}:{AQ+3}], v{vLA0}")
    for s in qfrag_reads(QY, 0, 0) + qfrag_reads(QX, 1, 0): a.e(s)
    if cfg.t1pos == 1:
        if not cfg.e1e: a.e(e_load(1))
        dma_half(a, 0)
    for i in range(4): a.e(f"v_mov_b32 v{AP+i}, 0")
    for i in range(4):
        shf = 16 * (i >> 1) + 4 * (i & 1)
        a.e(f"s_mov_b32 exec_lo, {hex(0xf << shf)}\ns_mov_b32 exec_hi, {hex(0xf << (shf + 8))}")
        a.e(f"v_mov_b32 v{AP+i}, 0x3f80")
    a.e("s_mov_b64 exec, -1")
    a.e(f"v_and_b32 v{IDX}, 3, v{vL}")
    a.e(f"v_mul_u32_u24 v{IDX}, 0x5555, v{IDX}")
    a.e(f"s_add_u32 s{sMA}, s{sM0}, {4096 - 128 + 256}")
    a.e(f"s_add_u32 s{sMB}, s{sM0}, 256")
    a.e(f"s_and_b32 s{sT}, s{sL}, 6")
    a.e(f"s_and_b32 s{sT+1}, s{sL}, 1")
    a.e(f"s_lshl1_add_u32 s{sT}, s{sT}, s{sT+1}")
    a.e(f"s_lshl_b32 s{sT}, s{sT}, 1")
    a.e(f"s_cselect_b32 s{sT+1}, 1, 0")
    a.e(f"s_lshl_b32 s{sEX+1}, s{sT+1}, s{sT}")
    a.e(f"s_lshl_b32 s{sEX}, s{sEX+1}, 1")
    a.e(f"s_cmp_eq_u32 s{sNT}, 1")
    a.e(f"s_cselect_b64 s[{sT}:{sT+1}], s[{sEX}:{sEX+1}], 0")
    a.e(f"s_or_b64 s[{sF0}:{sF0+1}], s[{sF0}:{sF0+1}], s[{sT}:{sT+1}]")
    for c in range(4):
        a.e(f"v_mov_b32 v{NN+2*c}, 0\nv_mov_b32 v{NN+2*c+1}, 0\nv_mov_b32 v{DD+2*c}, 1.0\nv_mov_b32 v{DD+2*c+1}, 1.0")
    a.e(f"v_mov_b32 v{vCUR}, v{vSD}\nv_mov_b32 v{vCUR+1}, v{vSD}")
    for c in range(4): a.e(f"v_mov_b32 v{ACC+c}, 0")
    a.e(f"s_sub_u32 s{sT}, s{sW4k}, s{sM0}")
    a.e(f"s_add_u32 s{sT}, s{sT}, {WU2 - 256}")
    a.e(f"v_add_u32 v{vT}, s{sT}, v{vRP0}")
    a.e(f"v_add_u32 v{vT+1}, s{sT}, v{vRP1}")
    stamp(a, 46, 252)
    a.e(f"s_waitcnt vmcnt({4 + cfg.e1e})" if cfg.t1pos == 2 else "s_waitcnt vmcnt(9)")
    stamp(a, 47, 252)
    for s in pfrag_reads(PY, 0, vT): a.e(s)
    mf = mfmas(0, PY, QY, 0)
    a.e("s_waitcnt lgkmcnt(8)")
    for s in mf[:4]: a.e(s)
    a.e("s_waitcnt lgkmcnt(0)")
    for s in mf[4:]: a.e(s)
    if cfg.t1pos == 2:
        if not cfg.e1e: a.e(e_load(1))
        dma_half(a, 0)
    stamp(a, 8, 252)
    if cfg.dbg:
        a.e("s_memtime s[90:91]\ns_waitcnt lgkmcnt(0)\nv_writelane_b32 v252, s90, 14")
    a.e(f"s_sub_u32 s{sCnt}, s{sNT}, 1")
    a.e(f"s_waitcnt vmcnt({5 - cfg.e1e})")
    stamp(a, 48, 252)
    for s in pfrag_reads(PX, 1): a.e(s)
    def lstamp(x):
        if not cfg.lst: return
        a.e("s_memrealtime s[90:91]")
        a.e(f"s_lshl_b32 s92, s{sCnt}, 1")
        a.e(f"s_add_u32 s92, s92, {x+2}")
        a.e("s_mov_b32 m0, s92")
        a.e("s_waitcnt lgkmcnt(0)")
        a.e("v_writelane_b32 v252, s90, m0")
    def iteration(par):
        exA = {
            0: addr_q(1 - par),
            1: qfrag_reads(QY, 0, 1 - par),
            2: [f"s_mov_b32 m0, s{sMA}", "s_waitcnt lgkmcnt(4)"] + dma_ld(1)[:2],
            3: dma_ld(1)[2:],
            4: [f"ds_read_b128 v[{AQ}:{AQ+3}], v{vLA}",
                f"s_cmp_lt_u32 s{sCnt}, 2", f"s_cbranch_scc1 WU2_{par}", f"WU2R_{par}:"],
            7: ["s_waitcnt vmcnt(4) lgkmcnt(0)"] + pfrag_reads(PY, 0),
        }
        half_step(a, ool, 0, par, exA, f"A{par}")
        ool.label(f"WU2_{par}")
        ool.e(f"s_mov_b32 s{sP+2}, 0")
        ool.e(f"s_mov_b32 s{sE+2}, 0")
        sFn = (sF1, sF0)[par]
        ool.e(f"s_or_b64 s[{sFn}:{sFn+1}], s[{sFn}:{sFn+1}], s[{sEX}:{sEX+1}]")
        ool.e(f"s_cmp_lg_u32 s{sCnt}, 0")
        ool.e(f"s_cbranch_scc1 WU2R_{par}")
        w_dma(ool, sWu, vWC, sW4k, 32768, WU2, sT)
        ool.e(f"s_branch WU2R_{par}")
        mf = mfmas(2, PX, QX, par)
        ool.label(f"EXA{par}_1")
        ool.e("s_waitcnt lgkmcnt(0)")
        ool.e(mf[2])
        ool.label(f"EXA{par}_2")
        ool.e(mf[3])
        ool.label(f"EXA{par}_3")
        ool.e(mf[4])
        w_dma(ool, sWu, vWC, sW4k, 32768, WU2, sT)
        ool.label(f"EXA{par}_4")
        ool.e(mf[5])
        ool.e("s_nop 7")
        ool.label(f"EXA{par}_5")
        ool.e(f"s_branch R_A{par}_7")
        exB = {
            0: qfrag_reads(QX, 1, 1 - par),
            1: addr_se(),
            2: [f"s_mov_b32 m0, s{sMB}", "s_waitcnt lgkmcnt(4)"] + dma_ld(0)[:2],
            3: dma_ld(0)[2:] + [e_load(par)],
            4: list_reads_se(3 + par) + list_reads_n(2 + par),
            5: adv if par else [],
            7: ["s_waitcnt vmcnt(5) lgkmcnt(0)"] + pfrag_reads(PX, 1),
        }
        lstamp(17)
        half_step(a, ool, 1, par, exB, f"B{par}")
        lstamp(16)
        for s in flags_from_vcc((sF0, sF1)[par]): a.e(s)
        a.e(f"s_sub_u32 s{sCnt}, s{sCnt}, 1")
    a.label("K2_LOOP")
    iteration(0)
    a.e("s_cbranch_scc1 K2_LEND")
    iteration(1)
    a.e("s_cbranch_scc0 K2_LOOP")
    a.label("K2_LEND")
    stamp(a, 9, 252)
    if cfg.dbg:
        a.e("s_memtime s[90:91]\ns_waitcnt lgkmcnt(0)\nv_writelane_b32 v252, s90, 15")
    flush_code(a, 0, 0)
    a.e(f"ds_write2_b32 v{vCUR}, v{ACC}, v{ACC+1} offset1:32")
    flush_code(a, 2, 1, wait=False)
    a.e(f"ds_write2_b32 v{vCUR+1}, v{ACC+2}, v{ACC+3} offset0:64 offset1:96")
    a.label("K2_AFTER")
    a.e(f"s_mov_b32 s{sFirst}, 0")
    a.e(f"s_bitcmp0_b32 s{sDm}, 0")
    a.e(f"s_cselect_b32 s{sX0+2}, -1, 0")
    a.e(f"s_bitcmp0_b32 s{sDm}, 4")
    a.e(f"s_cselect_b32 s{sX0+3}, -1, 0")
    a.e(f"s_lshr_b32 s{sT+1}, s{sW}, 2")
    a.e(f"s_lshl_b32 s{sT+2}, s{sT+1}, 5")
    a.e(f"v_add_u32 v{vT+8}, s{sT+2}, v{vM}")
    a.e(f"v_mul_u32_u24 v{vT+9}, 528, v{vT+8}")
    a.e(f"v_cmp_gt_u32 s[{sX0}:{sX0+1}], 49, v{vT+8}")
    a.e(f"s_and_b32 s{sT+2}, s{sW}, 3")
    a.e(f"s_lshl_b32 s{sT+2}, s{sT+2}, 7")
    a.e(f"v_lshl_add_u32 v{vT+5}, v{vH16}, 1, s{sT+2}")
    a.e(f"v_add_u32 v{vT+6}, v{vT+9}, v{vT+5}")
    a.e(f"v_add_u32 v{vT+4}, {WU2}, v{vWA}")
    a.e(f"s_add_u32 s{sT+2}, s{sM0}, {256 + 4096}")
    a.e(f"v_lshl_add_u32 v{vT+2}, v{vL}, 4, s{sT+2}")
    a.e(f"s_lshl_b32 s{sT+1}, s{sT+1}, 15")
    a.e(f"s_add_u32 s{sT+1}, s{sT+1}, {STG + 4096}")
    a.e(f"v_lshl_add_u32 v{vT+3}, v{vL}, 4, s{sT+1}")
    a.e(f"s_or_b32 s{sT}, s{sSusp}, s{sSusp+1}")
    a.e(f"s_or_b32 s{sT}, s{sT}, s{sMore}")
    a.e("s_cbranch_scc1 K2_SLOWM")
    a.e(f"s_and_b32 exec_lo, s{sX0+2}, 1")
    a.e(f"s_and_b32 exec_hi, s{sX0+3}, 1")
    a.e(f"ds_write_b32 v{vFA}, v{vSD} offset:512")
    a.label("K2_MERGED")
    a.e(f"s_mov_b64 exec, s[{sX0}:{sX0+1}]")
    a.e("s_waitcnt vmcnt(0) lgkmcnt(0)")
    a.e("s_barrier")
    stamp(a, 49, 252)
    a.e(f"s_cmp_lg_u32 s{sMore}, 0")
    a.e("s_cbranch_scc1 K2_MORE")
    wf = Asm(); wfrag_read(wf, 128, vT+4)
    a.e(f"ds_read_b32 v{vT+7}, v{vT+9} offset:{AGG + 512}")
    for j, o in enumerate((0, 16, 64, 80)):
        a.e(f"ds_read_b128 v[{64+4*j}:{67+4*j}], v{vT+6} offset:{AGG + o}")
    a.e("s_waitcnt lgkmcnt(4)")
    a.e(f"v_cmpx_ne_u32 vcc, 0, v{vT+7}")
    a.e(f"v_add_u32 v{vT+7}, v{vT+7}, v{vT+5}")
    for j, o in enumerate((0, 16, 64, 80)):
        a.e(f"ds_read_b128 v[{80+4*j}:{83+4*j}], v{vT+7} offset:{o}")
    a.e("s_mov_b64 exec, -1")
    for x in wf.lines[:8]: a.e(x)
    a.e("s_mov_b64 exec, vcc")
    for j in range(4):
        a.e(f"s_waitcnt lgkmcnt({11-j})")
        for i in range(2):
            r = 64 + 4*j + 2*i
            a.e(f"v_pk_add_f32 {p2(r)}, {p2(r)}, {p2(r+16)}")
    a.e("s_mov_b64 exec, -1")
    for j in range(2):
        for i in range(4):
            a.e(f"v_cvt_pk_bf16_f32 v{96+4*j+i}, v{64+8*j+2*i}, v{65+8*j+2*i}")
        a.e(f"ds_write_b128 v{vT+2}, v[{96+4*j}:{99+4*j}] offset:{1024*j}")
    for x in wf.lines[8:]: a.e(x)
    a.e("s_waitcnt lgkmcnt(8)")
    a.e("s_barrier")
    stamp(a, 10, 252)
    for st in range(8):
        a.e(f"ds_read_b128 v[{64+4*st}:{67+4*st}], v{vT+3} offset:{(st>>1)*8192 + (st&1)*1024}")
    if cfg.owt:
        a.e(f"v_mul_u32_u24 v{vT+10}, 80, v{vM}")
        a.e(f"v_lshl_add_u32 v{vT+10}, v{vH16}, 1, v{vT+10}")
        a.e(f"s_add_u32 s{sT+1}, s{sM0}, 256")
        a.e(f"v_add_u32 v{vT+10}, s{sT+1}, v{vT+10}")
        a.e(f"v_lshrrev_b32 v{vT+12}, 2, v{vL}")
        a.e(f"v_and_b32 v{vT+14}, 3, v{vL}")
        a.e(f"v_lshlrev_b32 v{vT+14}, 4, v{vT+14}")
        a.e(f"v_lshl_add_u32 v{vT+13}, v{vT+12}, 8, v{vT+14}")
        a.e(f"v_mul_u32_u24 v{vT+12}, 80, v{vT+12}")
        a.e(f"v_add3_u32 v{vT+12}, v{vT+12}, v{vT+14}, s{sT+1}")
        a.e(f"s_lshr_b32 s{sT+3}, s{sW}, 2")
        a.e(f"s_lshl_b32 s{sT+3}, s{sT+3}, 13")
        a.e(f"s_and_b32 s{sT+4}, s{sW}, 3")
        a.e(f"s_lshl_b32 s{sT+4}, s{sT+4}, 6")
        a.e(f"s_add_u32 s{sT+3}, s{sT+3}, s{sT+4}")
        a.e(f"v_add_u32 v{vT+13}, s{sT+3}, v{vT+13}")
    else:
        a.e(f"v_mul_u32_u24 v{vT+10}, 272, v{vT+8}")
        a.e(f"v_lshl_add_u32 v{vT+10}, v{vH16}, 1, v{vT+10}")
        a.e(f"s_and_b32 s{sT+1}, s{sW}, 3")
        a.e(f"s_lshl_b32 s{sT+1}, s{sT+1}, 6")
        a.e(f"s_add_u32 s{sT+1}, s{sT+1}, {STG}")
        a.e(f"v_add_u32 v{vT+10}, s{sT+1}, v{vT+10}")
        a.e(f"v_lshrrev_b32 v{vT+12}, 4, v0")
        a.e(f"v_lshlrev_b32 v{vT+13}, 4, v0")
        a.e(f"v_lshl_add_u32 v{vT+12}, v{vT+12}, 4, v{vT+13}")
        a.e(f"v_add_u32 v{vT+12}, {STG}, v{vT+12}")
    for st in range(8):
        a.e(f"s_waitcnt lgkmcnt({7-st})")
        c = f"v[{ACX}:{ACX+15}]" if st == 0 else "v[160:175]"
        a.e(f"v_mfma_f32_32x32x16_bf16 v[160:175], v[{128+4*st}:{131+4*st}], v[{64+4*st}:{67+4*st}], {c}")
    a.e(f"s_mov_b32 s{sT+1}, {LOG2E_NEG}")
    a.e(f"s_mov_b32 s{sT}, {LOG2E_NEG}")
    stamp(a, 50, 252)
    a.e(f"s_mov_b32 s{sT+2}, 0x7b800000")
    a.e(f"v_cmp_le_f32 s[{sX0+2}:{sX0+3}], s{sT+2}, v{vCHK}")
    a.e(f"v_mov_b32 v{vT+11}, 0x207")
    a.e("s_nop 6")
    a.e(f"v_cmp_class_f32 vcc, v160, v{vT+11}")
    for hf in range(2):
        R = range(8 * hf, 8 * hf + 8)
        for i in R: a.e(f"v_exp_f32 v{64+i}, v{160+i}")
        if hf == 0:
            a.e(f"s_and_b64 vcc, vcc, s[{sX0}:{sX0+1}]")
            a.e(f"s_or_b64 s[{sX0+2}:{sX0+3}], vcc, s[{sX0+2}:{sX0+3}]")
        if hf: a.e("s_nop 0")
        for i in R[::2]: a.e(f"v_pk_fma_f32 {p2(64+i)}, {p2(64+i)}, s[{sT}:{sT+1}], s[{sT}:{sT+1}]")
        for i in R: a.e(f"v_rcp_f32 v{64+i}, v{64+i}")
        for i in R[::2]: a.e(f"v_pk_mul_f32 {p2(64+i)}, {p2(160+i)}, {p2(64+i)}")
        for i in range(4 * hf, 4 * hf + 4): a.e(f"v_cvt_pk_bf16_f32 v{80+i}, v{64+2*i}, v{65+2*i}")
        o = " offset:16" if hf else ""
        a.e(f"ds_write_b128 v{vT+10}, v[{80+4*hf}:{83+4*hf}]{o}")
    if cfg.owt:
        a.e(f"ds_read_b128 v[88:91], v{vT+12}")
        a.e(f"ds_read_b128 v[92:95], v{vT+12} offset:{16*80}")
        a.e(f"v_mov_b32 v{vT}, 1")
        a.e(f"v_mov_b32 v{vT+1}, {FLG+4}")
        a.e(f"s_movk_i32 s{sT+1}, 4096")
        a.e("s_waitcnt lgkmcnt(1)")
        a.e(f"buffer_store_dwordx4 v[88:91], v{vT+13}, s[{sO}:{sO+3}], 0 offen {cfg.o_pol}")
        a.e("s_waitcnt lgkmcnt(0)")
        a.e(f"buffer_store_dwordx4 v[92:95], v{vT+13}, s[{sO}:{sO+3}], s{sT+1} offen {cfg.o_pol}")
        a.e(f"s_mov_b64 exec, s[{sX0+2}:{sX0+3}]")
        a.e(f"ds_write_b32 v{vT+1}, v{vT}")
        a.e("s_mov_b64 exec, -1")
        a.e("s_waitcnt lgkmcnt(0)")
        a.e("s_barrier")
        a.e(f"ds_read_b32 v{vT}, v{vT+1}")
    else:
        a.e(f"v_mov_b32 v{vT}, 1")
        a.e(f"v_mov_b32 v{vT+1}, {FLG+4}")
        a.e(f"s_mov_b64 exec, s[{sX0+2}:{sX0+3}]")
        a.e(f"ds_write_b32 v{vT+1}, v{vT}")
        a.e("s_mov_b64 exec, -1")
        a.e(f"s_movk_i32 s{sT+1}, 8192")
        a.e("s_waitcnt lgkmcnt(0)")
        stamp(a, 51, 252)
        a.e("s_barrier")
        stamp(a, 52, 252)
        a.e(f"ds_read_b128 v[88:91], v{vT+12}")
        a.e(f"ds_read_b128 v[92:95], v{vT+12} offset:{32*272}")
        a.e(f"ds_read_b32 v{vT}, v{vT+1}")
        a.e("s_waitcnt lgkmcnt(2)")
        a.e(f"buffer_store_dwordx4 v[88:91], v{vT+13}, s[{sO}:{sO+3}], 0 offen {cfg.o_pol}")
        a.e("s_waitcnt lgkmcnt(1)")
        a.e(f"buffer_store_dwordx4 v[92:95], v{vT+13}, s[{sO}:{sO+3}], s{sT+1} offen {cfg.o_pol}")
    stamp(a, 11, 252)
    if cfg.dbg:
        a.e("s_waitcnt vmcnt(0)")
        a.e(f"v_writelane_b32 v252, s{sNT}, 13")
    stamp(a, 12, 252)
    stamp_out(a, 252, 253, 1)
    if cfg.x: a.e("s_branch K2_END")
    a.e("s_waitcnt lgkmcnt(0)")
    a.e(f"v_readfirstlane_b32 s{sT}, v{vT}")
    a.e(f"s_cmp_lg_u32 s{sSafe}, 0")
    a.e("s_cbranch_scc1 K2_END")
    a.e(f"s_cmp_lg_u32 s{sT}, 0")
    a.e("s_cbranch_scc1 K2_SAFE")
    a.label("K2_END")
    a.e("s_endpgm")
    a.lines += ool.lines
    a.label("K2_CODE_END")
    a.lines += rare.lines
    a.label("K2_NOTILES")
    a.e("s_waitcnt vmcnt(0)")
    w_dma(a, sWu, vWC, sW4k, 32768, WU2, sT)
    a.e("s_branch K2_AFTER")
    a.label("K2_SLOWM")
    for c in range(4):
        a.e(f"ds_read_b32 v{vT+16+c}, v{vSD} offset:{128*c}")
    a.e("s_waitcnt vmcnt(0) lgkmcnt(0)")
    a.e("s_barrier")
    a.e(f"s_mov_b64 exec, s[{sX0+2}:{sX0+3}]")
    for c in range(4):
        a.e(f"ds_add_f32 v{vFA}, v{vT+16+c} offset:{128*c}")
    a.e("s_branch K2_MERGED")
    a.label("K2_SAFE")
    a.e("s_waitcnt vmcnt(0)")
    a.e("s_barrier")
    a.e(f"s_mov_b32 s{sSafe}, -1")
    a.e(f"s_mov_b32 s{sDone}, 0")
    reset_round(a, True)
    a.e("s_branch K2_ROUND")
    a.label("K2_MORE")
    a.e("s_mov_b64 exec, -1")
    a.e(f"s_add_u32 s{sDone}, s{sDone}, s{sLim}")
    a.e("s_branch K2_RESET")
    a.label("K2_TOOBIG")
    a.e("s_barrier")
    a.e(f"s_mov_b32 s{sLim}, 16")
    a.label("K2_RESET")
    reset_round(a, False)
    a.label("K2_ROUND")
    srd(a, sR, S_WS, off_c=cfg.wsoff + WS_S01, size=WS_OFFT + 262144 - WS_S01)
    a.e(f"v_and_b32 v{t}, 0x1fc, v0")
    a.e(f"s_lshl_b32 s{sT}, s{sBin}, 10")
    a.e(f"s_add_u32 s{sT}, s{sT}, {WS_OFFT - WS_S01}")
    a.e(f"v_mov_b32 v{vROFF}, 0")
    a.e(f"v_cmp_lt_u32 vcc, 32, v{vOC}")
    a.e("s_mov_b64 exec, vcc")
    a.e(f"buffer_load_dword v{vROFF}, v{t}, s[{sR}:{sR+3}], s{sT} offen")
    a.e("s_mov_b64 exec, -1")
    a.e(f"v_and_b32 v{vW0}, 3, v0")
    a.e(f"v_lshlrev_b32 v{vW0}, 2, v{vW0}")
    a.e(f"v_add_u32 v{vW0}, s{sDone}, v{vW0}")
    a.e(f"s_lshl_b32 s{sT}, s{sBin}, {6 if cfg.lohi else 7}")
    a.e(f"v_lshl_add_u32 v{t}, v{t}, 13, s{sT}")
    a.e(f"s_mov_b32 s{sT}, {WS_REC - WS_S01 - 4}")
    a.e("s_waitcnt vmcnt(0)")
    a.e(f"v_add_u32 v{t+2}, v{vEB}, v{vROFF}")
    a.e(f"v_lshl_add_u32 v{t+2}, v{t+2}, 2, s{sT}")
    for g in range(2):
        a.e(f"v_add_u32 v{t+3}, {16*g}, v{vW0}")
        a.e(f"v_cmp_gt_u32 vcc, 32, v{t+3}")
        a.e("s_nop 1")
        if cfg.lohi:
            a.e(f"v_and_b32 v{t+1}, 16, v{t+3}")
            a.e(f"v_mul_u32_u24 v{t+1}, 1020, v{t+1}")
            a.e(f"v_add_u32 v{t+1}, v{t+1}, v{t}")
            a.e(f"v_cndmask_b32 v{t+4+g}, v{t+2}, v{t+1}, vcc")
        else:
            a.e(f"v_cndmask_b32 v{t+4+g}, v{t+2}, v{t}, vcc")
        a.e(f"v_lshl_add_u32 v{t+4+g}, v{t+3}, 2, v{t+4+g}")
        a.e(f"buffer_load_dwordx4 v[{RC+4*g}:{RC+4*g+3}], v{t+4+g}, s[{sR}:{sR+3}], 0 offen")
    round_consts(a)
    a.e("s_waitcnt vmcnt(0) lgkmcnt(0)")
    a.e("s_barrier")
    a.e("s_branch K2_COUNT")

HEADER = open("cdna_kernels/" + NAME + ".s.ref").read().split("; Override launch")[0]
def generate():
    a = Asm()
    gen_k1(a)
    gen_k2(a)
    if cfg.rep:
        k, wg, idx, j0, j1 = ([int(v) for v in cfg.rep.split(",")] + [0, 4])[:5]
        kernel_head(a, "rep_kernel")
        a.e("s_load_dwordx2 s[20:21], s[0:1], 64")
        a.e("s_cmp_lg_u32 s2, 0")
        a.e("s_cbranch_scc1 REP_END")
        a.e("s_waitcnt lgkmcnt(0)")
        srd(a, 8, S_WS, off_c=WS_DBG, size=0x200000)
        op = "max" if wg == 1 else "min"
        a.e("v_lshlrev_b32 v1, 11, v0")
        a.e(f"v_add_u32 v2, {k*0x100000 + idx*4}, v1")
        for j in range(4):
            a.e(f"s_mov_b32 s12, {j*64*2048}")
            a.e(f"buffer_load_dword v{4+j}, v1, s[8:11], s12 offen")
            a.e(f"buffer_load_dword v{8+j}, v2, s[8:11], s12 offen")
        a.e("s_waitcnt vmcnt(0)")
        for j in range(1, 4):
            a.e(f"v_min_u32 v4, v4, v{4+j}")
            if j0 < j < j1: a.e(f"v_{op}_u32 v{8+j0}, v{8+j0}, v{8+j}")
        a.e(f"v_mov_b32 v8, v{8+j0}")
        a.e("s_nop 1")
        a.e("v_readlane_b32 s12, v4, 0")
        a.e("v_readlane_b32 s13, v8, 0")
        for l in range(1, 63):
            a.e(f"v_readlane_b32 s14, v4, {l}")
            a.e(f"v_readlane_b32 s15, v8, {l}")
            a.e("s_min_u32 s12, s12, s14")
            a.e(f"s_{op}_u32 s13, s13, s15")
        a.e("s_sub_u32 s12, s13, s12")
        a.e("s_min_u32 s12, s12, 8000")
        a.e("s_lshl_b32 s12, s12, 2")
        a.e("s_memrealtime s[14:15]")
        a.e("s_waitcnt lgkmcnt(0)")
        a.label("REP_L")
        a.e("s_memrealtime s[16:17]")
        a.e("s_waitcnt lgkmcnt(0)")
        a.e("s_sub_u32 s13, s16, s14")
        a.e("s_cmp_lt_u32 s13, s12")
        a.e("s_cbranch_scc1 REP_L")
        a.label("REP_END")
        a.e("s_endpgm")
    if cfg.align:
        a.lines, bad = align_pass(a.lines, "K2_LOOP" if cfg.align < 3 else "prep_kernel", "K2_CODE_END", cfg.align == 2)
        print("misaligned left:", bad, file=sys.stderr)
    body = a.text()
    probs = check_text(body)
    for p in probs: print("HAZARD", p, file=sys.stderr)
    k1lds = K1_LDS_B
    out = HEADER
    out += f"; @launch kernel=prep_kernel grid=(256,1,1) block=(512,1,1) lds={k1lds}\n"
    out += f"; @launch kernel={NAME}_kernel grid=(256,1,1) block=(512,1,1) lds={K2_LDS}\n"
    if cfg.rep: out += "; @launch kernel=rep_kernel grid=(1,1,1) block=(64,1,1) lds=0\n"
    out += '.amdgcn_target "amdgcn-amd-amdhsa--gfx950"\n' + body
    out += '.section .rodata,"a"\n.p2align 6\n' + kernel_desc("prep_kernel", 200 if cfg.dbg else 160, 96 if cfg.dbg else 80) + ".p2align 6\n" + kernel_desc(NAME + "_kernel", 256, 96)
    if cfg.rep: out += ".p2align 6\n" + kernel_desc("rep_kernel", 16, 32)
    return out

if __name__ == "__main__":
    outp = sys.argv[1]
    for kv in sys.argv[2:]:
        k, v = kv.split("=", 1)
        cur = getattr(cfg, k)
        setattr(cfg, k, (v not in ("0", "False")) if isinstance(cur, bool) else int(v, 0) if isinstance(cur, int) else v)
    open(outp, "w").write(generate())
```

```python
import sys
from asmlib import *

NAME = "gather_scatter__mpnn_edge_mlp__graph"
class Cfg:
    modeA = False
    wsoff = 0
    st_pol = "sc1"
    ld_pol = "nt"
    e_pol = ""
    prefetchP = 1
    pf0 = False
    early = True
    o_pol = "sc1"
    ot_pol = ""
    touch = 1
    etouch = 0
    epos = 1
    align = 1
    prio = 2
    bias = 14
    w3o = 0xAD0000
    lohi = 0
    gran = 0
    k1t = 0
    k1d = 0
    tlb = 0
    cw = 0
    g_pol = ''
    s_pol = ''
    owt = 1
    k1w = 0
    e1e = 0
    e0f = 0
    few = False
    spf = 0
    ratio = 0
    k1o = 0
    p_pol = 'sc1'
    pfm = 0
    pfmpos = 5
    pfe = 0
    et_pol = ''
    t1pos = 1
    pfn = 320
    pfpos = 1
    nw = '4,4,4,4'
    x_pol = ""
    dbg = False
    lst = False
    x = ""
    rep = ""
cfg = Cfg()

NB = 250; NPB = 50; CH = 1600
WS_P = 4096; WS_S01 = 0x320000; WS_REC = 0x900000; WS_OFFT = 0xA90000;  WS_WF = 0xAE0000
LOG2E_NEG = "0xbfb8aa3b"
LN2_NEG = "0xbf317218"

S_X, S_E, S_SRC, S_DST, S_WM, S_WU, S_OUT, S_DBG, S_WS = 4, 6, 8, 10, 12, 14, 16, 18, 20

def load_args(a):
    a.e("s_load_dwordx16 s[4:19], s[0:1], 0")
    a.e("s_load_dwordx2 s[20:21], s[0:1], 64")

def srd(a, d, ptr, off_s=None, off_c=0, size=0):
    if off_s is not None:
        a.e(f"s_add_u32 s{d}, s{ptr}, s{off_s}")
        a.e(f"s_addc_u32 s{d+1}, s{ptr+1}, 0")
        if off_c:
            a.e(f"s_add_u32 s{d}, s{d}, {off_c}")
            a.e(f"s_addc_u32 s{d+1}, s{d+1}, 0")
    elif off_c:
        a.e(f"s_add_u32 s{d}, s{ptr}, {off_c}")
        a.e(f"s_addc_u32 s{d+1}, s{ptr+1}, 0")
    else:
        a.e(f"s_mov_b32 s{d}, s{ptr}")
        a.e(f"s_mov_b32 s{d+1}, s{ptr+1}")
    a.e(f"s_mov_b32 s{d+2}, {size}")
    a.e(f"s_mov_b32 s{d+3}, 0x20000")

def idmap(a, dst, src, t, sh=5):
    a.e(f"s_and_b32 s{t}, s{src}, 7")
    a.e(f"s_lshr_b32 s{dst}, s{src}, 3")
    a.e(f"s_lshl_b32 s{t}, s{t}, {sh}")
    a.e(f"s_add_u32 s{dst}, s{dst}, s{t}")

def scan64(a, v):
    for sh in (1, 2, 4, 8):
        a.e("s_nop 1")
        a.e(f"v_add_u32_dpp v{v}, v{v}, v{v} row_shr:{sh} row_mask:0xf bank_mask:0xf bound_ctrl:0")
    a.e("s_nop 1")
    a.e(f"v_add_u32_dpp v{v}, v{v}, v{v} row_bcast:15 row_mask:0xa bank_mask:0xf")
    a.e("s_nop 1")
    a.e(f"v_add_u32_dpp v{v}, v{v}, v{v} row_bcast:31 row_mask:0xc bank_mask:0xf")

def x_dma(a, sX, sW, vL, lds_base, t0, st, pol="", strided=False):
    a.e(f"v_lshrrev_b32 v{t0}, 4, v{vL}")
    a.e(f"v_and_b32 v{t0+1}, 15, v{vL}")
    a.e(f"v_xor_b32 v{t0+1}, v{t0+1}, v{t0}")
    a.e(f"v_lshlrev_b32 v{t0+1}, 4, v{t0+1}")
    a.e(f"v_lshl_add_u32 v{t0}, v{t0}, 8, v{t0+1}")
    a.e(f"s_and_b32 s{st}, s{sW}, 1")
    a.e(f"s_lshl_b32 s{st}, s{st}, 7")
    a.e(f"v_xor_b32 v{t0}, s{st}, v{t0}")
    a.e(f"v_xor_b32 v{t0+1}, 64, v{t0}")
    if strided:
        a.e(f"s_lshr_b32 s{st+1}, s{sW}, 1")
        a.e(f"s_lshl_b32 s{st+1}, s{st+1}, 12")
        a.e(f"s_lshl_b32 s{st}, s{sW}, 11")
        a.e(f"s_add_u32 s{st+1}, s{st+1}, s{st}")
        a.e(f"s_add_u32 m0, s{st+1}, {lds_base}")
    else:
        a.e(f"s_lshl_b32 s{st}, s{sW}, 11")
        a.e(f"s_add_u32 m0, s{st}, {lds_base}")
    a.e("s_nop 0")
    a.e(f"buffer_load_dwordx4 v{t0}, s[{sX}:{sX+3}], s{st} offen {pol} lds")
    a.e(f"buffer_load_dwordx4 v{t0+1}, s[{sX}:{sX+3}], s{st} offen offset:1024 {pol} lds")

def w_lane_const(a, vW, vL, t):
    a.e(f"v_lshrrev_b32 v{t}, 4, v{vL}")
    a.e(f"v_and_b32 v{vW}, 15, v{vL}")
    a.e(f"v_lshlrev_b32 v{vW}, 4, v{vW}")
    a.e(f"v_lshlrev_b32 v{t+1}, 6, v{t}")
    a.e(f"v_xor_b32 v{vW}, v{vW}, v{t+1}")
    a.e(f"v_lshl_add_u32 v{vW}, v{t}, 8, v{vW}")

def w_dma(a, sSrd, vW, sW4096, goff, lds_base, st):
    a.e(f"s_add_u32 s{st}, s{sW4096}, {goff}")
    a.e(f"s_add_u32 m0, s{sW4096}, {lds_base}")
    a.e("s_nop 0")
    for i in range(4):
        o = f" offset:{1024*i}" if i else ""
        a.e(f"buffer_load_dwordx4 v{vW}, s[{sSrd}:{sSrd+3}], s{st} offen{o} lds")

def wfrag_const(a, vA, vL, sW, t, st):
    a.e(f"v_lshrrev_b32 v{t}, 5, v{vL}")
    a.e(f"v_bfe_u32 v{t+1}, v{vL}, 2, 2")
    a.e(f"v_lshl_add_u32 v{t}, v{t}, 3, v{t+1}")
    a.e(f"v_lshlrev_b32 v{vA}, 8, v{t}")
    a.e(f"v_and_b32 v{t}, 1, v{vL}")
    a.e(f"v_lshlrev_b32 v{t}, 5, v{t}")
    a.e(f"v_bfe_u32 v{t+2}, v{vL}, 1, 1")
    a.e(f"v_lshl_add_u32 v{t}, v{t+2}, 3, v{t}")
    a.e(f"v_bfe_u32 v{t+2}, v{vL}, 4, 1")
    a.e(f"v_lshl_add_u32 v{t}, v{t+2}, 4, v{t}")
    a.e(f"s_and_b32 s{st}, s{sW}, 3")
    a.e(f"s_lshl_b32 s{st}, s{st}, 6")
    a.e(f"v_add_u32 v{t}, s{st}, v{t}")
    a.e(f"v_lshlrev_b32 v{t+1}, 6, v{t+1}")
    a.e(f"v_xor_b32 v{t}, v{t}, v{t+1}")
    a.e(f"v_add_u32 v{vA}, v{vA}, v{t}")

def wfrag_read(a, dst, vAddr, off=0, stride=4096):
    for s in range(8):
        for u in range(2):
            r = (dst[s] if isinstance(dst, list) else dst + 4*s) + 2*u
            a.e(f"ds_read_b64_tr_b16 v[{r}:{r+1}], v{vAddr} offset:{off+s*stride+u*1024}")

def xfrag_read(a, dst, vL, sW, lds_base, t, st):
    a.e(f"v_and_b32 v{t}, 31, v{vL}")
    a.e(f"v_lshrrev_b32 v{t+1}, 5, v{vL}")
    a.e(f"v_and_b32 v{t+2}, 15, v{vL}")
    a.e(f"v_xor_b32 v{t+1}, v{t+1}, v{t+2}")
    a.e(f"v_lshlrev_b32 v{t+1}, 4, v{t+1}")
    a.e(f"v_lshl_add_u32 v{t}, v{t}, 8, v{t+1}")
    a.e(f"s_lshr_b32 s{st}, s{sW}, 2")
    a.e(f"s_lshl_b32 s{st}, s{st}, 13")
    a.e(f"s_add_u32 s{st}, s{st}, {lds_base}")
    a.e(f"v_add_u32 v{t}, s{st}, v{t}")
    for s in range(8):
        if s == 0:
            a.e(f"ds_read_b128 v[{dst}:{dst+3}], v{t}")
        else:
            r = t + 1 + (s & 1)
            a.e(f"v_xor_b32 v{r}, {32*s}, v{t}")
            a.e(f"ds_read_b128 v[{dst+4*s}:{dst+4*s+3}], v{r}")

def gemm8(a, acc, A, B, zero=True):
    for s in range(8):
        c = "0" if (s == 0 and zero) else f"v[{acc}:{acc+15}]"
        r = A[s] if isinstance(A, list) else A + 4*s
        a.e(f"v_mfma_f32_32x32x16_bf16 v[{acc}:{acc+15}], v[{r}:{r+3}], v[{B+4*s}:{B+4*s+3}], {c}")

WS_DBG = 0x2000000
def stamp(a, i, vst):
    if not cfg.dbg: return
    if cfg.few and not (i in (0, 1, 2, 3) if vst == 197 else i in (7, 8, 9, 12)): return
    a.e("s_memrealtime s[90:91]")
    a.e("s_waitcnt lgkmcnt(0)")
    a.e(f"v_writelane_b32 v{vst}, s90, {i}")
def stamp_out(a, vst, vt, kidx):
    if not cfg.dbg: return
    srd(a, 92, S_WS, off_c=WS_DBG + kidx * 0x100000, size=0x100000)
    a.e(f"s_lshl_b32 s90, s2, 11")
    a.e(f"v_lshl_add_u32 v{vt}, v0, 2, s90")
    a.e(f"buffer_store_dword v{vst}, v{vt}, s[92:95], 0 offen")

def kernel_head(a, name):
    a.e(".text")
    a.e(f".globl {name}")
    a.e(".p2align 8")
    a.e(f".type {name},@function")
    a.label(name)

def kernel_desc(name, vg, sg):
    acc = (vg + 3) // 4 * 4
    return f""".amdhsa_kernel {name}
  .amdhsa_next_free_vgpr {vg}
  .amdhsa_next_free_sgpr {sg}
  .amdhsa_accum_offset {acc}
  .amdhsa_group_segment_fixed_size 0
  .amdhsa_kernarg_size 72
  .amdhsa_user_sgpr_count 2
  .amdhsa_user_sgpr_kernarg_segment_ptr 1
  .amdhsa_system_sgpr_workgroup_id_x 1
.end_amdhsa_kernel
"""

K1_LDS_A = 16384 + 57344
K1_LDS_B = 65536 + 96*272
def gen_k1(a):
    kernel_head(a, "prep_kernel")
    load_args(a)
    sW, sId, sT = 22, 23, 44
    vL = 1
    a.e(f"v_and_b32 v{vL}, 63, v0")
    a.e(f"v_lshrrev_b32 v2, 6, v0")
    a.e("s_nop 0")
    a.e(f"v_readfirstlane_b32 s{sW}, v2")
    if cfg.dbg: a.e("v_mov_b32 v197, 0")
    stamp(a, 0, 197)
    if cfg.dbg:
        a.e("s_getreg_b32 s90, hwreg(HW_REG_XCC_ID)")
        a.e("s_add_u32 s90, s90, 1")
        a.e("v_writelane_b32 v197, s90, 63")
    if cfg.k1d: a.e(f"s_sleep {cfg.k1d}")
    a.e(f"s_mov_b32 s{sId}, s2")
    a.e("s_cmp_lt_u32 s2, 120")
    a.e("s_cbranch_scc1 K1_BIN")
    a.e(f"s_sub_u32 s{sId}, s2, 3")
    a.e("s_sub_u32 s3, s2, 123")
    a.e("s_cmp_lt_u32 s3, 5")
    a.e("s_cbranch_scc1 K1_BIN")
    a.e("s_cmp_ge_u32 s2, 256")
    a.e("s_cbranch_scc1 K1_END")
    a.e(f"s_and_b32 s{sT}, s2, 7")
    a.e(f"s_lshr_b32 s{sId}, s2, 3")
    a.e(f"s_lshl4_add_u32 s{sId}, s{sT}, s{sId}")
    a.e(f"s_min_u32 s{sT}, s{sT}, 2")
    a.e(f"s_add_u32 s{sId}, s{sId}, s{sT}")
    a.e(f"s_sub_u32 s{sId}, s{sId}, 15")
    a.e(f"s_mul_i32 s{sT+2}, s{sId}, 24576")
    a.e(f"s_sub_u32 s{sT+4}, 3200000, s{sT+2}")
    a.e(f"s_min_u32 s{sT+4}, s{sT+4}, 24576")
    a.e(f"v_lshrrev_b32 v2, 4, v{vL}")
    a.e(f"v_and_b32 v3, 15, v{vL}")
    a.e(f"v_xor_b32 v3, v3, v2")
    a.e(f"v_lshlrev_b32 v3, 4, v3")
    a.e(f"v_lshl_add_u32 v16, v2, 8, v3")
    for i in range(1, 4): a.e(f"v_xor_b32 v{16+i}, {64*i}, v16")
    w_lane_const(a, 4, vL, 5)
    a.e(f"s_lshl_b32 s{sT+3}, s{sW}, 12")
    a.e("s_waitcnt lgkmcnt(0)")
    if cfg.k1t == 2:
        srd(a, 32, S_WS, off_s=sT+2, off_c=cfg.wsoff + WS_P, size=f"s{sT+4}")
        a.e(f"v_lshlrev_b32 v30, 12, v0")
        a.e(f"buffer_load_dword v31, v30, s[32:35], 0 offen")
    def xl():
        a.e(f"s_mov_b32 m0, s{sT+3}")
        srd(a, 24, S_X, off_s=sT+2, size=f"s{sT+4}")
        for i in range(4):
            o = f" offset:{1024*i}" if i else ""
            a.e(f"buffer_load_dwordx4 v{16+i}, s[24:27], s{sT+3} offen{o} {cfg.x_pol} lds")
    def wl():
        srd(a, 28, S_WM, size=32768)
        w_dma(a, 28, 4, sT+3, 0, 32768, sT)
    xl(); wl()
    srd(a, 32, S_WS, off_s=sT+2, off_c=cfg.wsoff + WS_P, size=f"s{sT+4}")
    if cfg.k1t == 1:
        a.e(f"v_lshlrev_b32 v30, 12, v0")
        a.e(f"buffer_load_dword v31, v30, s[32:35], 0 offen")
    wfrag_const(a, 8, vL, sW, 9, sT)
    OT = 65536
    a.e(f"v_and_b32 v12, 31, v{vL}")
    a.e(f"v_lshrrev_b32 v13, 5, v{vL}")
    a.e(f"v_and_b32 v15, 15, v{vL}")
    a.e(f"v_xor_b32 v15, v15, v13")
    a.e(f"v_lshlrev_b32 v15, 4, v15")
    a.e(f"v_lshl_add_u32 v15, v12, 8, v15")
    a.e(f"s_lshr_b32 s{sT}, s{sW}, 2")
    a.e(f"s_lshl_b32 s{sT+1}, s{sT}, 14")
    a.e(f"v_add_u32 v20, s{sT+1}, v15")
    for st in range(1, 8): a.e(f"v_xor_b32 v{20+st}, {32*st}, v20")
    if cfg.k1w:
        a.e(f"v_lshlrev_b32 v13, 5, v13")
        a.e(f"v_mul_u32_u24 v12, 80, v12")
        a.e(f"s_mul_i32 s{sT+5}, s{sW}, {32*80}")
        a.e(f"s_add_u32 s{sT+5}, s{sT+5}, {OT}")
        a.e(f"v_add3_u32 v12, s{sT+5}, v12, v13")
        a.e(f"v_lshrrev_b32 v13, 2, v{vL}")
        a.e(f"v_and_b32 v15, 3, v{vL}")
        a.e(f"v_lshlrev_b32 v15, 4, v15")
        a.e(f"v_lshl_add_u32 v14, v13, 8, v15")
        a.e(f"v_mul_u32_u24 v13, 80, v13")
        a.e(f"v_add3_u32 v13, v13, v15, s{sT+5}")
        a.e(f"s_lshl_b32 s{sT}, s{sT}, 14")
        a.e(f"s_and_b32 s{sT+1}, s{sW}, 3")
        a.e(f"s_lshl_b32 s{sT+1}, s{sT+1}, 6")
        a.e(f"v_add_u32 v14, s{sT}, v14")
        a.e(f"v_add_u32 v14, s{sT+1}, v14")
        a.e("s_movk_i32 s65, 4096\ns_movk_i32 s66, 12288")
    else:
        a.e(f"v_lshlrev_b32 v13, 5, v13")
        a.e(f"v_mul_u32_u24 v12, 272, v12")
        a.e(f"s_mul_i32 s{sT}, s{sT}, {64*272}")
        a.e(f"s_and_b32 s{sT+1}, s{sW}, 3")
        a.e(f"s_lshl_b32 s{sT+1}, s{sT+1}, 6")
        a.e(f"s_add_u32 s{sT}, s{sT}, s{sT+1}")
        a.e(f"s_add_u32 s{sT}, s{sT}, {OT}")
        a.e(f"v_add3_u32 v12, s{sT}, v12, v13")
        a.e(f"v_lshrrev_b32 v13, 4, v0")
        a.e(f"v_lshlrev_b32 v14, 4, v0")
        a.e(f"v_lshl_add_u32 v13, v13, 4, v14")
        a.e(f"v_add_u32 v13, {OT}, v13")
    a.e(f"s_mov_b32 s{sT}, {LOG2E_NEG}")
    a.e(f"s_mov_b32 s{sT+1}, {LOG2E_NEG}")
    a.e("s_movk_i32 s62, 8192\ns_movk_i32 s63, 16384\ns_movk_i32 s64, 24576")
    WF, X0, X1, A0, A1 = 32, 64, 96, 128, 144
    def rw(st):
        for u in range(2):
            a.e(f"ds_read_b64_tr_b16 v[{WF+4*st+2*u}:{WF+4*st+2*u+1}], v8 offset:{32768+st*4096+u*1024}")
    def rx0(st): a.e(f"ds_read_b128 v[{X0+4*st}:{X0+4*st+3}], v{20+st}")
    def mm(A, X, st):
        c = "0" if st == 0 else f"v[{A}:{A+15}]"
        a.e(f"v_mfma_f32_32x32x16_bf16 v[{A}:{A+15}], v[{WF+4*st}:{WF+4*st+3}], v[{X+4*st}:{X+4*st+3}], {c}")
    def fin(b, A):
        for i in range(8):
            a.e(f"v_pk_mul_f32 v[{A+2*i}:{A+2*i+1}], v[{A+2*i}:{A+2*i+1}], s[{sT}:{sT+1}]")
        for i in range(8):
            a.e(f"v_cvt_pk_bf16_f32 v{A+i}, v{A+2*i}, v{A+1+2*i}")
        if cfg.k1w and b:
            a.e("s_waitcnt lgkmcnt(0)")
            st2(0)
            a.e("v_add_u32 v14, s62, v14")
            b = 0
        if cfg.k1w:
            a.e(f"ds_write_b128 v12, v[{A}:{A+3}]")
            a.e(f"ds_write_b128 v12, v[{A+4}:{A+7}] offset:16")
            a.e(f"ds_read_b128 v[{48+8*b}:{51+8*b}], v13")
            a.e(f"ds_read_b128 v[{52+8*b}:{55+8*b}], v13 offset:{16*80}")
        else:
            a.e(f"ds_write_b128 v12, v[{A}:{A+3}] offset:{b*32*272}")
            a.e(f"ds_write_b128 v12, v[{A+4}:{A+7}] offset:{b*32*272+16}")
    def st2(b):
        for j in range(2):
            a.e(f"buffer_store_dwordx4 v[{48+8*b+4*j}:{51+8*b+4*j}], v14, s[32:35], {['0','s65','s62','s66'][2*b+j]} offen {cfg.p_pol}")
    a.e(f"s_cmp_ge_u32 s{sW}, 4")
    a.e(f"s_waitcnt vmcnt({4 + (cfg.k1t == 1)})")
    a.e("s_barrier")
    for st in range(8): rx0(st)
    a.e("s_cbranch_scc1 K1_NX1")
    for st in range(8):
        a.e(f"ds_read_b128 v[{X1+4*st}:{X1+4*st+3}], v{20+st} offset:8192")
    a.label("K1_NX1")
    a.e(f"s_waitcnt vmcnt({int(cfg.k1t == 1)})")
    stamp(a, 1, 197)
    a.e("s_barrier")
    for st in range(8): rw(st)
    for st in range(8):
        a.e(f"s_waitcnt lgkmcnt({14-2*st})")
        mm(A0, X0, st)
    a.e("s_cbranch_scc1 K1_NX2")
    for st in range(8): mm(A1, X1, st)
    a.e("s_nop 2")
    fin(0, A0)
    fin(1, A1)
    a.e("s_branch K1_NX3")
    a.label("K1_NX2")
    a.e("s_nop 10")
    fin(0, A0)
    a.label("K1_NX3")
    a.e("s_waitcnt lgkmcnt(0)")
    if cfg.k1w:
        st2(0)
    else:
        a.e("s_barrier")
        for j in range(3):
            a.e(f"ds_read_b128 v[{48+4*j}:{51+4*j}], v13 offset:{j*32*272}")
        for j in range(3):
            a.e(f"s_waitcnt lgkmcnt({2-j})")
            a.e(f"buffer_store_dwordx4 v[{48+4*j}:{51+4*j}], v14, s[32:35], {['0','s62','s63'][j]} offen {cfg.p_pol}")
    stamp(a, 2, 197)
    if cfg.dbg: a.e("s_waitcnt vmcnt(0)")
    stamp(a, 3, 197)
    stamp_out(a, 197, 198, 0)
    a.e("s_endpgm")
    SL, FLAG, SORT = 0, 36864, 36880
    a.label("K1_BIN")
    a.e(f"s_mul_i32 s{sT+2}, s{sId}, 12800")
    a.e(f"s_lshl_b32 s{sT+3}, s{sId}, 15")
    a.e("v_lshlrev_b32 v2, 4, v0")
    a.e("s_movk_i32 s3, 6400")
    a.e("s_movk_i32 s59, 400")
    a.e("v_cmp_gt_u32 s[60:61], s59, v0")
    a.e("s_waitcnt lgkmcnt(0)")
    D, S, BA, RK, AD = 4, 12, 20, 28, 36
    srd(a, 24, S_DST, off_s=sT+2, size=12800)
    a.e(f"buffer_load_dwordx4 v[{D}:{D+3}], v2, s[24:27], 0 offen {cfg.ld_pol}")
    a.e(f"buffer_load_dwordx4 v[{D+4}:{D+7}], v2, s[24:27], s3 offen {cfg.ld_pol}")
    srd(a, 28, S_SRC, off_s=sT+2, size=12800)
    a.e(f"buffer_load_dwordx4 v[{S}:{S+3}], v2, s[28:31], 0 offen {cfg.ld_pol}")
    a.e(f"buffer_load_dwordx4 v[{S+4}:{S+7}], v2, s[28:31], s3 offen {cfg.ld_pol}")
    srd(a, 32, S_WS, off_s=sT+3, off_c=cfg.wsoff + WS_S01, size=32768)
    a.e("v_mov_b32 v44, 1")
    a.e("v_min_u32 v3, 256, v0")
    a.e("v_mul_u32_u24 v3, 144, v3")
    a.e(f"ds_write_b32 v3, v44 offset:{SL}")
    a.e("v_lshlrev_b32 v45, 22, v0")
    a.e("s_movk_i32 s58, 10700")
    a.e("s_movk_i32 s57, 144")
    if cfg.lohi:
        a.e("v_lshrrev_b32 v86, 2, v0")
        a.e("v_mul_u32_u24 v86, 144, v86")
        a.e("v_and_b32 v46, 3, v0")
        a.e("v_lshl_add_u32 v46, v46, 4, v86")
    else:
        a.e("v_lshrrev_b32 v46, 3, v0")
        a.e("v_lshl_add_u32 v46, v46, 4, v2")
    a.e(f"v_mov_b32 v48, {FLAG}")
    if cfg.gran:
        a.e("v_lshrrev_b32 v86, 3, v0")
        a.e("v_mul_u32_u24 v86, 144, v86")
        a.e(f"v_and_b32 v87, {8 - cfg.gran // 16}, v0")
        a.e("v_lshlrev_b32 v87, 2, v87")
    a.e("s_movk_i32 s62, 8192\ns_movk_i32 s63, 16384\ns_movk_i32 s64, 24576")
    a.e("s_waitcnt lgkmcnt(0)")
    a.e("s_barrier")
    if True:
        a.e(f"s_cmp_lg_u32 s{sW}, 7")
        a.e("s_cbranch_scc1 K1_NOTOUCH")
        if cfg.k1t:
            a.e(f"v_lshlrev_b32 v84, 12, v{vL}")
            a.e(f"buffer_load_dword v85, v84, s[32:35], 0 offen")
        a.e("s_cmp_ge_u32 s2, 124")
        a.e("s_cbranch_scc1 K1_W3")
        a.e(f"s_lshr_b32 s{sT}, s2, 3")
        a.e(f"v_lshlrev_b32 v70, 7, v{vL}")
        if cfg.touch & 1:
            srd(a, 72, S_WM, off_c=32768, size=32768)
            srd(a, 76, S_WU, size=65536)
            a.e(f"s_mul_i32 s{sT+1}, s{sT}, {18*128}")
            a.e("s_mov_b64 exec, 0x3ffff")
            a.e(f"buffer_load_dword v71, v70, s[72:75], s{sT+1} offen")
            a.e(f"s_mul_i32 s{sT+1}, s{sT}, {35*128}")
            a.e("s_mov_b32 exec_lo, -1\ns_mov_b32 exec_hi, 7")
            a.e(f"buffer_load_dword v72, v70, s[76:79], s{sT+1} offen")
        if cfg.touch & 2:
            a.e("s_mov_b64 exec, 0x1ff")
            a.e("s_getpc_b64 s[68:69]")
            a.label("K1_PC")
            a.e(f"s_add_u32 s68, s68, {NAME}_kernel-K1_PC")
            a.e("s_addc_u32 s69, s69, 0")
            a.e(f"s_mul_i32 s{sT+1}, s{sT}, {9*128}")
            a.e(f"v_add_u32 v74, s{sT+1}, v70")
            a.e(f"v_min_u32 v74, K2_CODE_END-{NAME}_kernel-4, v74")
            a.e("v_mov_b32 v75, s69")
            a.e("v_add_co_u32 v74, vcc, s68, v74")
            a.e("s_nop 1")
            a.e("v_addc_co_u32 v75, vcc, 0, v75, vcc")
            a.e("global_load_dword v73, v[74:75], off")
        a.e("s_mov_b64 exec, -1")
        a.e("s_branch K1_B2")
        a.label("K1_NOTOUCH")
    a.e("s_mov_b64 exec, s[60:61]")
    for j in range(2):
        a.e(f"s_waitcnt vmcnt({3-j})")
        if j == 0: stamp(a, 1, 197)
        for i in range(4*j, 4*j+4):
            a.e(f"v_mul_u32_u24 v{AD+i}, s58, v{D+i}")
            a.e(f"v_lshrrev_b32 v{AD+i}, 19, v{AD+i}")
            a.e(f"v_mul_u32_u24 v{BA+i}, s57, v{AD+i}")
            a.e(f"ds_add_rtn_u32 v{RK+i}, v{BA+i}, v44 offset:{SL}")
    for i in range(8):
        a.e(f"v_mul_u32_u24 v{AD+i}, 49, v{AD+i}")
        a.e(f"v_sub_u32 v{D+i}, v{D+i}, v{AD+i}")
        if i: a.e(f"v_add_u32 v45, {hex(((1600-3) if i == 4 else 1) << 20)}, v45")
        a.e(f"v_or_b32 v{D+i}, v{D+i}, v45")
    a.e(f"s_waitcnt vmcnt(0)")
    stamp(a, 4, 197)
    for i in range(8):
        a.e(f"s_waitcnt lgkmcnt(7)")
        a.e(f"v_min_u32 v{AD+i}, 32, v{RK+i}")
        a.e(f"v_lshl_or_b32 v{D+i}, v{S+i}, 6, v{D+i}")
        a.e(f"v_lshl_add_u32 v{AD+i}, v{AD+i}, 2, v{BA+i}")
        a.e(f"ds_write_b32 v{AD+i}, v{D+i} offset:{SL}")
    a.e(f"v_max3_u32 v47, v{RK}, v{RK+1}, v{RK+2}")
    a.e(f"v_max3_u32 v47, v47, v{RK+3}, v{RK+4}")
    a.e(f"v_max3_u32 v47, v47, v{RK+5}, v{RK+6}")
    a.e(f"v_max_u32 v47, v47, v{RK+7}")
    a.e("v_cmpx_le_u32 vcc, 32, v47")
    a.e("ds_write_b32 v48, v47")
    a.e("s_mov_b64 exec, -1")
    a.e("s_waitcnt lgkmcnt(0)")
    stamp(a, 5, 197)
    a.label("K1_B2")
    a.e("s_barrier")
    stamp(a, 6, 197)
    if cfg.lohi:
        for j in range(4):
            a.e(f"ds_read_b128 v[{52+4*j}:{55+4*j}], v46 offset:{SL + (j&1)*128*144 + (j>>1)*64}")
        a.e(f"ds_read_b32 v49, v48")
        for j in range(4):
            a.e(f"s_waitcnt lgkmcnt({4-j})")
            if j < 2: a.e(f"v_mov_b32_dpp v{88+j}, v{52+4*j} quad_perm:[0,0,0,0] row_mask:0xf bank_mask:0xf")
            else: a.e(f"v_cmpx_lt_u32 vcc, 16, v{86+j}")
            a.e(f"buffer_store_dwordx4 v[{52+4*j}:{55+4*j}], v2, s[32:35], {['0','s62','s63','s64'][j]} offen {cfg.st_pol}")
            if j >= 2: a.e("s_mov_b64 exec, -1")
        a.e("s_nop 0")
    else:
        for j in range(4):
            if cfg.gran: a.e(f"ds_read_b32 v{88+j}, v86 offset:{SL + j*9216}")
            a.e(f"ds_read_b128 v[{52+4*j}:{55+4*j}], v46 offset:{SL + j*9216}")
        a.e(f"ds_read_b32 v49, v48")
        for j in range(4):
            a.e(f"s_waitcnt lgkmcnt({7-2*j if cfg.gran else 4-j})")
            if cfg.gran: a.e(f"v_cmpx_lt_u32 vcc, v87, v{88+j}")
            a.e(f"buffer_store_dwordx4 v[{52+4*j}:{55+4*j}], v2, s[32:35], {['0','s62','s63','s64'][j]} offen {cfg.st_pol}")
            if cfg.gran: a.e("s_mov_b64 exec, -1")
        if cfg.gran: a.e("s_nop 0")
    a.e("s_waitcnt lgkmcnt(0)")
    a.e("v_readfirstlane_b32 s3, v49")
    a.e("s_cmp_lg_u32 s3, 1")
    a.e("s_cbranch_scc1 K1_FULL")
    stamp(a, 2, 197)
    if cfg.dbg: a.e("s_waitcnt vmcnt(0)")
    stamp(a, 3, 197)
    stamp_out(a, 197, 198, 0)
    a.label("K1_END")
    a.e("s_endpgm")
    a.label("K1_FULL")
    a.e("s_waitcnt vmcnt(0)")
    a.e(f"s_lshl_b32 s{sT+4}, s{sId}, 2")
    srd(a, 32, S_WS, off_s=sT+2, off_c=cfg.wsoff + WS_REC, size=12800)
    srd(a, 36, S_WS, off_s=sT+4, off_c=cfg.wsoff + WS_OFFT, size=255*1024 + 4)
    a.e(f"v_mul_u32_u24 v3, {4*144}, v{vL}")
    for i in range(4):
        a.e(f"ds_read_b32 v{52+i}, v3 offset:{SL + 144*i}")
    a.e("s_waitcnt lgkmcnt(0)")
    for i in range(4):
        a.e(f"v_add_u32 v{52+i}, -1, v{52+i}")
    a.e("v_add_u32 v56, v52, v53")
    a.e("v_add_u32 v57, v56, v54")
    a.e("v_add_u32 v58, v57, v55")
    a.e("v_mov_b32 v60, v58")
    scan64(a, 60)
    a.e("v_sub_u32 v60, v60, v58")
    a.e("v_add_u32 v61, v60, v52")
    a.e("v_add_u32 v62, v60, v56")
    a.e("v_add_u32 v63, v60, v57")
    for i in range(4):
        a.e(f"ds_write_b32 v3, v{60+i} offset:{SL + 144*i + 132}")
    a.e(f"s_cmp_lg_u32 s{sW}, 7")
    a.e("s_cbranch_scc1 K1_NOFFT")
    a.e(f"v_lshlrev_b32 v59, 12, v{vL}")
    for i in range(4):
        o = f" offset:{1024*i}" if i else ""
        a.e(f"buffer_store_dword v{60+i}, v59, s[36:39], 0 offen{o}")
    a.label("K1_NOFFT")
    a.e("s_mov_b64 exec, s[60:61]")
    a.e("s_waitcnt lgkmcnt(0)")
    for i in range(8):
        a.e(f"ds_read_b32 v{BA+i}, v{BA+i} offset:{SL + 132}")
    a.e("s_waitcnt lgkmcnt(0)")
    for i in range(8):
        a.e(f"v_add_lshl_u32 v{BA+i}, v{BA+i}, v{RK+i}, 2")
        a.e(f"ds_write_b32 v{BA+i}, v{D+i} offset:{SORT - 4}")
    a.e("s_mov_b64 exec, -1")
    a.e("s_waitcnt lgkmcnt(0)")
    a.e("s_barrier")
    a.e(f"ds_read_b128 v[4:7], v2 offset:{SORT}")
    a.e(f"ds_read_b128 v[8:11], v2 offset:{SORT + 8192}")
    a.e(f"s_waitcnt lgkmcnt(0)")
    a.e(f"buffer_store_dwordx4 v[4:7], v2, s[32:35], 0 offen")
    a.e(f"buffer_store_dwordx4 v[8:11], v2, s[32:35], s62 offen")
    a.e("s_endpgm")
    a.label("K1_W3")
    a.e(f"s_sub_u32 s{sT}, s2, 124")
    srd(a, 72, S_WM, off_c=65536, size=4096)
    srd(a, 76, S_WS, off_c=cfg.wsoff + cfg.w3o, size=4096)
    a.e(f"v_and_b32 v70, 31, v{vL}")
    a.e("v_lshlrev_b32 v70, 1, v70")
    a.e(f"v_lshrrev_b32 v71, 5, v{vL}")
    a.e("v_lshl_add_u32 v70, v71, 11, v70")
    a.e(f"s_lshl_b32 s{sT+1}, s{sT}, 6")
    for j in range(8):
        o = f" offset:{256*j}" if j else ""
        a.e(f"buffer_load_ushort v{72+j}, v70, s[72:75], s{sT+1} offen{o}")
    a.e(f"s_lshl_b32 s{sT+1}, s{sT}, 10")
    a.e(f"s_mov_b32 s{sT}, {LOG2E_NEG}")
    a.e(f"v_lshlrev_b32 v71, 4, v{vL}")
    a.e("s_waitcnt vmcnt(0)")
    for j in range(8):
        a.e(f"v_lshlrev_b32 v{72+j}, 16, v{72+j}")
        a.e(f"v_mul_f32 v{72+j}, s{sT}, v{72+j}")
    for j in range(4):
        a.e(f"v_cvt_pk_bf16_f32 v{80+j}, v{72+2*j}, v{73+2*j}")
    a.e(f"buffer_store_dwordx4 v[80:83], v71, s[76:79], s{sT+1} offen {cfg.st_pol}")
    a.e("s_branch K1_B2")

CNT, FLG, LUT, QL, LIST, AGG, SIDE, WU2, STG = 0, 256, 288, 576, 13776, 30800, 56672, 65536, 98304
MAXT = 65
K2_LDS = 163840
vL, vM = 1, 2
vOC, vREM, vROFF, vEB = 3, 4, 5, 6
vAE, vAP, vAQ = 7, 8, 9
vCP, vRP0, vRP1, vCQ, vCL, vCA, vH16, vFA = 10, 11, 12, 13, 14, 15, 16, 17
vPA = 144
vEA, vLA = 20, 21
vQA = 22
vRS = 148
vC4 = 152
ACC = 156
vRN = 28
vRE = 30
vSD = 31
vCUR = 32
vCHK = 34
vWC, vWA = 35, 36
vPF = 38
vT = 40
Z = 64; PX = 128; PY = 128; QX = 160; QY = 168; EE = 176; AQ = 184; AP = 188; IDX = 192; W3 = 196
NN = 212; DD = 220; EX = 228; TT = 232; ACX = 236
sP, sE, sX, sO, sR, sWm, sWu, sOT = 24, 28, 32, 36, 40, 44, 48, 52
sW, sBin, sNT, sCnt, sG0, sG1, sG2, sLim, sDone, sSafe, sW4k, sM0, sMask, sMore, sFirst, sDm = 22, 23, 56, 57, 58, 59, 60, 61, 62, 63, 64, 65, 66, 67, 68, 69
sT = 70
sX0 = 80
sSusp = 88
sF0, sF1 = 32, 34
sMA, sMB, sL, sEX = 58, 59, 60, 52
PSIZE = 12500 * 256 + 3072
s256 = 79
ESIZE = 400000 * 32

def dma_m0(H, dest=None):
    if dest is None: dest = H
    return f"s_add_u32 m0, s{sW4k}, {WU2 - 128*H}" if dest == "alt" else f"s_add_u32 m0, s{sM0}, {dest*4096 - 128*H + 256}"
def dma_ld(H):
    out = []
    for j in range(4):
        imm = 1024 * j + 128 * H
        o = f" offset:{imm}" if imm else ""
        out.append(f"buffer_load_dwordx4 v{vPA+j}, s[{sP}:{sP+3}], 0 offen{o} {cfg.g_pol} lds")
    return out
def dma_ops(H, dest=None):
    l = dma_ld(H)
    return [[dma_m0(H, dest), "s_nop 0", l[0]], [l[1]], [l[2]], [l[3]]]
def dma_half(a, H, dest=None):
    for s in sum(dma_ops(H, dest), []): a.e(s)
def pfrag_reads(dst, H, va=None):
    out = []
    va = vRP0 if va is None else va
    for tq in range(2):
        for q in range(4):
            r = dst + 8 * tq + 2 * q
            out.append(f"ds_read_b64_tr_b16 v[{r}:{r+1}], v{va+tq} offset:{H*4096 + q*512}")
    return out
def qfrag_reads(dst, H, par):
    out = []
    for tq in range(2):
        for u in range(2):
            r = dst + 4 * tq + 2 * u
            out.append(f"ds_read_b64_tr_b16 v[{r}:{r+1}], v{vQA+2*par+u} offset:{(2*H+tq)*64}")
    return out
def list_reads_se(o=0):
    return [f"ds_read_b32 v{vRE}, v{vAE} offset:{128*o}", f"ds_read2_b32 v[{vRS}:{vRS+1}], v{vAP} offset0:{32*o} offset1:{32*o+8}", f"ds_read2_b32 v[{vRS+2}:{vRS+3}], v{vAP} offset0:{32*o+16} offset1:{32*o+24}"]
def list_reads_n(o=0):
    return [f"ds_read_u16 v{vRN}, v{vAQ} offset:{128*o}", f"ds_read_u16 v{vRN+1}, v{vAQ} offset:{128*o+64}"]
def addr_p():
    return [f"v_mad_u32_u16 v{vPA+j}, v{vRS+j}, s{s256}, v{vC4+j}" for j in range(4)]
def addr_e():
    return [f"v_and_or_b32 v{vEA}, v{vRE}, s{sMask}, v{18 if 'ehalf' in cfg.x else vH16}"]
def addr_l():
    return [f"v_and_or_b32 v{vLA}, v{vRE}, 16, v{vCL}", f"v_cmp_gt_i32 vcc, 0, v{vRE}"]
def addr_se():
    return addr_p() + addr_e() + addr_l()
def flags_from_vcc(sF):
    if "nf2" in cfg.x: return [f"s_mov_b32 s{sF}, 0", f"s_mov_b32 s{sF+1}, 0"]
    return [f"s_lshr_b32 s{sF+1}, vcc_lo, 4", f"s_mov_b32 s{sF}, vcc_lo", f"s_or_b32 s{sF+1}, s{sF+1}, vcc_lo", f"s_or_b32 s{sF+1}, s{sF+1}, s{sSafe}"]
def addr_q(par):
    return [f"v_add_u32 v{vQA+2*par}, v{vRN}, v{vCQ}", f"v_add_u32 v{vQA+2*par+1}, v{vRN+1}, v{vCQ}"]
def e_load(par):
    return f"buffer_load_dwordx4 v[{EE+4*par}:{EE+4*par+3}], v{vEA}, s[{sE}:{sE+3}], 0 offen {cfg.e_pol}"
def mfmas(c0, Pset, Qset, epar):
    out = []
    zz = lambda c: f"v[{Z+16*c}:{Z+16*c+15}]"
    f4 = lambda r: f"v[{r}:{r+3}]"
    M = "v_mfma_f32_32x32x16_bf16"
    for i in range(2): out.append(f"{M} {zz(c0+i)}, {f4(EE+4*epar)}, {f4(W3+4*(c0+i))}, 0")
    for i in range(2): out.append(f"{M} {zz(c0+i)}, {f4(AQ)}, {f4(Qset+4*i)}, {zz(c0+i)}")
    for i in range(2): out.append(f"v_smfmac_f32_32x32x32_bf16 {zz(c0+i)}, {f4(AP)}, v[{Pset+8*i}:{Pset+8*i+7}], v{IDX}")
    return out
p2 = lambda r: f"v[{r}:{r+1}]"
def flush_code(a, c0, X, mid=(), wait=True, chk=()):
    t = vT + 8 * X
    for i in range(2):
        c = c0 + i
        a.e(f"v_rcp_f32 v{t+2*i}, v{DD+2*c}")
        a.e(f"v_rcp_f32 v{t+2*i+1}, v{DD+2*c+1}")
    for s in chk: a.e(s)
    for i in range(2):
        c = c0 + i
        a.e(f"v_max3_f32 v{vCHK}, v{DD+2*c}, v{DD+2*c+1}, v{vCHK}")
    for s in mid: a.e(s)
    if wait: a.e("s_waitcnt lgkmcnt(0)")
    for j in range(2):
        for i in range(2):
            c = c0 + i
            a.e(f"v_fmac_f32 v{ACC+c}, v{NN+2*c+j}, v{t+2*i+j}")

def half_step(a, ool, X, par, extras, tag):
    c0 = 2 * X
    sF0 = (32, 34)[par]
    if X == 0: mf = mfmas(2, PX, QX, par)
    else:      mf = mfmas(0, PY, QY, 1 - par)
    def keep(s):
        if "nodma" in cfg.x and (" lds" in s or "m0" in s or s == "s_nop 0"): return False
        if "noe" in cfg.x and s.startswith("buffer_load") and " lds" not in s: return False
        if "nods" in cfg.x and s.startswith("ds_read"): return False
        if "nowait" in cfg.x and s.startswith("s_waitcnt"): return False
        if "novm" in cfg.x and s.startswith("s_waitcnt vmcnt"): return False
        return True
    extras = {k: [s for s in v if keep(s)] for k, v in extras.items()}
    for s in extras.get("pre", []): a.e(s)
    if cfg.prio == 1: a.e(f"s_setprio {1 - X}")
    if cfg.prio == 2 and X == 0: a.e(f"s_setprio {1 - par}")
    for k in range(8):
        if cfg.prio == 3 and k in (0, 4): a.e(f"s_setprio {1 if k == 0 else 0}")
        if cfg.prio == 4: a.e("s_setprio 1")
        if cfg.prio == 5: a.e("s_setprio 0")
        if "nomfma" not in cfg.x and k < len(mf): a.e(mf[k])
        for i in range(2):
            z = Z + 16 * (c0 + i) + 2 * k
            a.e(f"v_exp_f32 v{EX+2*i}, v{z}")
            a.e(f"v_exp_f32 v{EX+2*i+1}, v{z+1}")
        for s in extras.get(k, []): a.e(s)
        if cfg.prio == 4: a.e("s_setprio 0")
        if cfg.prio == 5: a.e("s_setprio 1")
        bit = 8 * (k >> 1) + 2 * (k & 1)
        lf, lb = f"F_{tag}_{k}", f"R_{tag}_{k}"
        if "nobr" not in cfg.x:
            a.e(f"s_bitcmp1_b32 s{sSafe if 'nofl' in cfg.x else sF0+1}, {bit}")
            a.e(f"s_cbranch_scc1 {lf}")
        for i in range(2):
            c = c0 + i; z = Z + 16 * c + 2 * k
            a.e(f"v_pk_fma_f32 {p2(TT+2*i)}, {p2(z)}, {p2(DD+2*c)}, {p2(NN+2*c)}")
        for i in range(2):
            c = c0 + i
            a.e(f"v_pk_fma_f32 {p2(DD+2*c)}, {p2(DD+2*c)}, {p2(EX+2*i)}, {p2(DD+2*c)}")
        for i in range(2):
            c = c0 + i
            a.e(f"v_pk_fma_f32 {p2(NN+2*c)}, {p2(NN+2*c)}, {p2(EX+2*i)}, {p2(TT+2*i)}")
        a.label(lb)
        ool.label(lf)
        t = vT + 8 * X
        ex = "K2_LEND" if X else (f"EXA{par}_{k}" if k < 6 else f"R_{tag}_7")
        sal = ([f"s_bitcmp1_b32 s{sF0}, {bit+1}", f"s_cbranch_scc1 {ex}"] if k else []) + \
              [f"s_bitcmp1_b32 s{sF0}, {bit}", f"s_cselect_b32 s{sT}, -1, 0", f"s_bitcmp1_b32 s{sF0}, {bit+4}", f"s_cselect_b32 s{sT+1}, -1, 0"]
        rc = [f"v_rcp_f32 v{t+j}, v{DD+2*c0+j}" for j in range(4)]
        n = len(sal)
        for j in range(4):
            ool.e(rc[j])
            for x in sal[:(n + 3 - j) // 4 if False else 0]: pass
            cnt = (n // 4) + (1 if j < n % 4 else 0)
            for _ in range(cnt): ool.e(sal.pop(0))
        for i in range(2):
            c = c0 + i
            ool.e(f"v_max3_f32 v{vCHK}, v{DD+2*c}, v{DD+2*c+1}, v{vCHK}")
        ool.e(f"v_mov_b32_dpp v{t+6}, v{vQA+2*par+(k>>2)} row_newbcast:{4*(k&3)} row_mask:0xf bank_mask:0xf")
        nk = sum(1 for x in extras.get(k, []) if x.startswith("ds_")) if cfg.cw else 0
        if k == 0 and cfg.cw: pass
        elif k == 7 and cfg.cw: pass
        else: ool.e(f"s_waitcnt lgkmcnt({nk})")
        for j in range(2):
            for i in range(2):
                c = c0 + i
                ool.e(f"v_fmac_f32 v{ACC+c}, v{NN+2*c+j}, v{t+2*i+j}")
        ool.e(f"s_mov_b64 exec, s[{sT}:{sT+1}]")
        ool.e(f"ds_write2_b32 v{vCUR+X}, v{ACC+c0}, v{ACC+c0+1} offset0:{32*c0} offset1:{32*c0+32}")
        ool.e(f"v_lshl_add_u32 v{vCUR+X}, v{t+6}, 1, v{vCA}")
        ool.e(f"ds_read2_b32 v[{ACC+c0}:{ACC+c0+1}], v{vCUR+X} offset0:{32*c0} offset1:{32*c0+32}")
        ool.e("s_mov_b64 exec, -1")
        for i in range(2):
            c = c0 + i
            ool.e(f"v_pk_add_f32 {p2(DD+2*c)}, {p2(EX+2*i)}, 1.0 op_sel_hi:[1,0]")
        for i in range(2):
            c = c0 + i; z = Z + 16 * c + 2 * k
            ool.e(f"v_pk_mov_b32 {p2(NN+2*c)}, {p2(z)}, {p2(z)} op_sel:[0,1]")
        ool.e(f"s_branch {lb}")

def lds_fill(a, base, nbytes, vdata, vaddr16, ex):
    n = (nbytes + 15) // 16
    r = 0
    while n >= 512:
        a.e(f"ds_write_b128 v{vaddr16}, v[{vdata}:{vdata+3}] offset:{base + r*8192}")
        n -= 512; r += 1
    if n:
        a.e(f"s_movk_i32 s{sT}, {n}")
        a.e(f"v_cmp_gt_u32 vcc, s{sT}, v0")
        a.e(f"s_and_saveexec_b64 s[{ex}:{ex+1}], vcc")
        a.e(f"ds_write_b128 v{vaddr16}, v[{vdata}:{vdata+3}] offset:{base + r*8192}")
        a.e(f"s_mov_b64 exec, s[{ex}:{ex+1}]")

def reset_round(a, zero_agg):
    t = vT
    a.e(f"v_lshlrev_b32 v{t}, 4, v0")
    a.e(f"v_mov_b32 v{t+8}, 0\nv_mov_b32 v{t+9}, 0\nv_mov_b32 v{t+10}, 0\nv_mov_b32 v{t+11}, 0")
    lds_fill(a, CNT, 272, t+8, t, sX0)
    if zero_agg: lds_fill(a, AGG, 49 * 528, t+8, t, sX0)

def onehot4(a, dst, vJ, vcond_sgpr, t):
    a.e(f"v_and_b32 v{t}, 1, v{vJ}")
    a.e(f"v_lshlrev_b32 v{t}, 4, v{t}")
    a.e(f"v_mov_b32 v{t+1}, 0x3f80")
    a.e(f"v_lshlrev_b32 v{t}, v{t}, v{t+1}")
    if vcond_sgpr is not None:
        a.e(f"v_cndmask_b32 v{t}, 0, v{t}, s[{vcond_sgpr}:{vcond_sgpr+1}]")
    a.e(f"v_lshrrev_b32 v{t+1}, 1, v{vJ}")
    for i in range(4):
        a.e(f"v_cmp_eq_u32 vcc, {i}, v{t+1}")
        a.e("s_nop 1")
        a.e(f"v_cndmask_b32 v{dst+i}, 0, v{t}, vcc")

def gen_k2(a):
    ool = Asm()
    rare = Asm()
    RC = 160; RK = 172; NA = 184; EN = 212
    XF, WU1F, W2F, QACC = 64, 96, [128, 132, 136, 140, 160, 164, 168, 172], 212
    vLA0, vXA, vW3A, vW0 = vT + 20, vT + 21, vT + 22, vT + 23
    t = vT + 12
    kernel_head(a, NAME + "_kernel")
    load_args(a)
    a.e(f"v_lshrrev_b32 v{vT+1}, 2, v0")
    a.e(f"v_and_b32 v{vW0}, 3, v0")
    a.e("s_cmp_ge_u32 s2, 256")
    a.e("s_cbranch_scc1 K2_END")
    if cfg.dbg:
        a.e("v_mov_b32 v252, 0")
        a.e("s_memrealtime s[92:93]")
    idmap(a, sBin, 2, sT)
    a.e(f"v_mul_u32_u24 v{vEB}, 3200, v{vT+1}")
    a.e(f"v_lshlrev_b32 v{vT+4}, 4, v{vW0}")
    a.e(f"s_lshl_b32 s{sT+2}, s{sBin}, {6 if cfg.lohi else 7}")
    if cfg.lohi: a.e(f"s_movk_i32 s{sT+5}, 16384")
    a.e(f"s_add_u32 s{sT+2}, s{sT+2}, {cfg.wsoff + WS_S01}")
    a.e(f"v_lshl_add_u32 v{vT+2}, v{vT+1}, 15, v{vT+4}")
    a.e(f"s_mov_b32 s{sOT+2}, {124*32768 + (16384+64 if cfg.lohi else 128)}")
    a.e(f"s_mov_b32 s{sOT+3}, 0x20000")
    a.e(f"v_lshrrev_b32 v{vT}, 6, v0")
    a.e(f"v_and_b32 v{vL}, 63, v0")
    a.e(f"v_readfirstlane_b32 s{sW}, v{vT}")
    a.e(f"s_mul_i32 s{sT+3}, s{sBin}, 12544")
    a.e(f"s_sub_u32 s{sT+4}, 3200000, s{sT+3}")
    a.e(f"s_min_u32 s{sT+4}, s{sT+4}, 12544")
    a.e(f"v_mov_b32 v{vT+8}, 0\nv_mov_b32 v{vT+9}, 0\nv_mov_b32 v{vT+10}, 0\nv_mov_b32 v{vT+11}, 0")
    a.e(f"v_lshlrev_b32 v{vW3A}, 4, v{vL}")
    a.e("s_mov_b64 exec, 0x1ffff")
    a.e(f"ds_write_b128 v{vW3A}, v[{vT+8}:{vT+11}] offset:{CNT}")
    a.e("s_mov_b64 exec, -1")
    WU1L = 32768
    NPF = cfg.prefetchP
    vXD, vW3D = vT + 18, vT + 7
    sM = sX0 + 4
    c = Asm(); x_dma(c, sX, sW, vL, STG, vXD, sM + 2, strided=True)
    for x in c.lines[:-4]: a.e(x)
    a.e(f"s_add_u32 s{sM+3}, s{sM+3}, {STG}")
    xd = c.lines[-2:]
    w_lane_const(a, vWC, vL, t)
    a.e(f"s_lshl_b32 s{sW4k}, s{sW}, 12")
    a.e(f"s_lshl_b32 s{sM0}, s{sW}, 13")
    a.e(f"s_add_u32 s{sM}, s{sM0}, {STG + 4096}")
    a.e(f"s_add_u32 s{sM0}, s{sM0}, {STG - 256}")
    a.e(f"s_add_u32 s{sM+1}, s{sW4k}, {WU1L}")
    a.e(f"v_lshlrev_b32 v{vW3D}, 4, v0")
    a.e(f"s_and_b32 s{sT+1}, s{sW}, 4")
    a.e(f"s_add_u32 s{sT}, s{sW}, s{sT+1}")
    a.e(f"s_lshl_b32 s{sT}, s{sT}, 10")
    a.e(f"s_add_u32 m0, s{sT}, {STG + 32768}")
    a.e(f"s_mov_b32 s{sR+2}, 4096")
    a.e(f"s_mov_b32 s{sR+3}, 0x20000")
    a.e("s_waitcnt lgkmcnt(0)")
    a.e(f"s_add_u32 s{sOT}, s{S_WS}, s{sT+2}")
    a.e(f"s_addc_u32 s{sOT+1}, s{S_WS+1}, 0")
    a.e(f"buffer_load_dwordx4 v[{RC}:{RC+3}], v{vT+2}, s[{sOT}:{sOT+3}], 0 offen {cfg.s_pol}")
    a.e(f"buffer_load_dwordx4 v[{RC+4}:{RC+7}], v{vT+2}, s[{sOT}:{sOT+3}], " + (f"s{sT+5} offen" if cfg.lohi else "0 offen offset:64"))
    a.e(f"s_add_u32 s{sR}, s{S_WS}, {cfg.wsoff + cfg.w3o}")
    a.e(f"s_addc_u32 s{sR+1}, s{S_WS+1}, 0")
    a.e(f"buffer_load_dwordx4 v{vW3D}, s[{sR}:{sR+3}], 0 offen lds")
    if cfg.dbg:
        a.e("v_writelane_b32 v252, s92, 0")
        a.e("s_getreg_b32 s90, hwreg(HW_REG_XCC_ID)")
        a.e("s_add_u32 s90, s90, 1")
        a.e("v_writelane_b32 v252, s90, 39")
    stamp(a, 40, 252)
    srd(a, sX, S_X, off_s=sT+3, size=f"s{sT+4}")
    srd(a, sO, S_OUT, off_s=sT+3, size=f"s{sT+4}")
    srd(a, sWm, S_WM, off_c=32768, size=32768)
    srd(a, sWu, S_WU, size=256*256)
    if cfg.spf:
        a.e(f"s_lshr_b32 s{sT}, s2, 3")
        a.e(f"s_mul_i32 s{sT}, s{sT}, {781*128}")
        a.e(f"s_mul_i32 s{sT+1}, s{sW}, {cfg.spf*128}")
        a.e(f"s_add_u32 s{sT}, s{sT}, s{sT+1}")
        a.e(f"s_add_u32 s{sT}, s{sT}, {cfg.wsoff + WS_P + (781 - 8*cfg.spf)*128}")
        a.e(f"s_add_u32 s{sT}, s{S_WS}, s{sT}")
        a.e(f"s_addc_u32 s{sT+1}, s{S_WS+1}, 0")
    a.e("s_barrier")
    for j in range(cfg.spf):
        a.e(f"s_load_dword s78, s[{sT}:{sT+1}], {hex(128*j)}")
    stamp(a, 41, 252)
    def mix(lines, extra, first=0):
        out = []; n = len(lines); m = len(extra); k = 0; full = True
        for i, x in enumerate(lines):
            while full and k < m and k * n <= i * m: out += extra[k]; k += 1
            out.append(x)
            if "exec" in x.split(",")[0]: full = x.strip() == "s_mov_b64 exec, -1"
        return out + sum(extra[k:], [])
    dm = [[f"s_mov_b32 m0, s{sM+3}", "s_nop 0", xd[0]], [xd[1]]]
    for j, srdw in enumerate((sWm, sWu)):
        for i in range(4):
            o = f" offset:{1024*i}" if i else ""
            dm.append(([f"s_mov_b32 m0, s{sM+j}", "s_nop 0"] if i == 0 else []) + [f"buffer_load_dwordx4 v{vWC}, s[{srdw}:{srdw+3}], s{sW4k} offen{o} lds"])
    c = Asm(); sav = a.lines; a.lines = c.lines
    a.e(f"v_and_b32 v{t+1}, 7, v{vL}")
    onehot4(a, AQ, t+1, None, t+2)
    a.e(f"v_lshlrev_b32 v{t+2}, 5, v{vL}")
    a.e(f"v_and_b32 v{vM}, 31, v0")
    a.e(f"v_lshlrev_b32 v{vW0}, 2, v{vW0}")
    a.e("s_mov_b64 exec, 0x1ff")
    a.e(f"ds_write_b128 v{t+2}, v[{vT+8}:{vT+11}] offset:{LUT+16}")
    a.e("s_mov_b64 exec, 0x100")
    a.e(f"ds_write_b128 v{t+2}, v[{vT+8}:{vT+11}] offset:{LUT}")
    a.e("s_mov_b64 exec, 0xff")
    a.e(f"ds_write_b128 v{t+2}, v[{AQ}:{AQ+3}] offset:{LUT}")
    a.e("s_mov_b64 exec, -1")
    srd(a, sP, S_WS, off_c=cfg.wsoff + WS_P - 3072, size=PSIZE)
    if NPF:
        a.e(f"s_lshr_b32 s{sT}, s2, 3")
        a.e(f"s_mul_i32 s{sT}, s{sT}, {781*128}")
        a.e(f"s_add_u32 s{sT}, s{sT}, 3072")
        a.e(f"v_lshl_add_u32 v{vPF}, v{vL}, 3, s{sW}")
        if cfg.pfn < 512:
            a.e(f"s_movk_i32 s{sT+1}, {cfg.pfn}")
            a.e(f"v_cmp_gt_u32 vcc, s{sT+1}, v{vPF}")
        a.e(f"v_lshl_add_u32 v{vPF}, v{vPF}, 7, s{sT}")
        if NPF > 1:
            a.e(f"v_add_u32 v{vPF+1}, 0x10000, v{vPF}")
        if cfg.pfn < 512:
            a.e(f"v_mov_b32 v{vT+3}, 0x7ffffff0")
            a.e(f"v_cndmask_b32 v{vPF+NPF-1}, v{vT+3}, v{vPF+NPF-1}, vcc")
    if cfg.pfe:
        a.e(f"s_mul_i32 s{sT}, s2, 51200")
        a.e(f"v_lshl_add_u32 v{vPF+1}, v{vL}, 3, s{sW}")
        a.e(f"s_movk_i32 s{sT+1}, {cfg.pfe}")
        a.e(f"v_cmp_gt_u32 vcc, s{sT+1}, v{vPF+1}")
        a.e(f"v_lshl_add_u32 v{vPF+1}, v{vPF+1}, 7, s{sT}")
        a.e(f"v_mov_b32 v{vT+3}, 0x7ffffff0")
        a.e(f"v_cndmask_b32 v{vPF+1}, v{vT+3}, v{vPF+1}, vcc")
    NPP = NPF
    if cfg.pfm:
        a.e(f"v_lshl_add_u32 v{vPF+1}, v{vL}, 3, s{sW}")
        a.e(f"s_movk_i32 s{sT+1}, {cfg.pfm}")
        a.e(f"v_cmp_gt_u32 vcc, s{sT+1}, v{vPF+1}")
        a.e(f"s_add_u32 s{sT}, s{sT}, 0x10000")
        a.e(f"v_lshl_add_u32 v{vPF+1}, v{vPF+1}, 7, s{sT}")
        a.e(f"v_cndmask_b32 v{vPF+1}, v{vT+3}, v{vPF+1}, vcc")
        dm[cfg.pfmpos] = dm[cfg.pfmpos] + [f"buffer_load_dword v37, v{vPF+1}, s[{sP}:{sP+3}], 0 offen"]
    if cfg.tlb:
        a.e(f"v_lshlrev_b32 v{vPF+1}, 20, v{vL}")
    def pf(pos):
        if cfg.pfpos == pos:
            if cfg.tlb & 1: a.e(f"buffer_load_dword v37, v{vPF+1}, s[{sE}:{sE+3}], 0 offen")
            if cfg.tlb & 2: a.e(f"buffer_load_dword v37, v{vPF+1}, s[{sO}:{sO+3}], 0 offen")
            if cfg.pfe: a.e(f"buffer_load_dword v37, v{vPF+1}, s[{sE}:{sE+3}], 0 offen {cfg.et_pol}")
            for i in range(NPP): a.e(f"buffer_load_dword v37, v{vPF+i}, s[{sP}:{sP+3}], 0 offen")
    if cfg.pfe: NPF += 1
    NPF += (cfg.tlb & 1) + (cfg.tlb >> 1 & 1)
    a.e(f"s_mov_b32 s{sLim}, 32")
    a.e(f"s_mov_b32 s{sDone}, 0")
    wfrag_const(a, vWA, vL, sW, t, sT)
    a.e(f"v_add_u32 v{vW3A}, {STG + 32768}, v{vW3A}")
    a.e(f"v_lshrrev_b32 v{t}, 5, v{vL}")
    a.e(f"v_and_b32 v{t+1}, 15, v{vL}")
    a.e(f"v_xor_b32 v{t+2}, v{t}, v{t+1}")
    a.e(f"v_lshlrev_b32 v{t+2}, 4, v{t+2}")
    a.e(f"v_lshl_add_u32 v{vXA}, v{t+1}, 8, v{t+2}")
    a.e(f"v_bfe_u32 v{t+2}, v{vL}, 4, 1")
    a.e(f"v_lshl_add_u32 v{vXA}, v{t+2}, 13, v{vXA}")
    a.e(f"s_lshr_b32 s{sT}, s{sW}, 2")
    a.e(f"s_lshl_b32 s{sT}, s{sT}, 14")
    a.e(f"s_add_u32 s{sT}, s{sT}, {STG}")
    a.e(f"v_add_u32 v{vXA}, s{sT}, v{vXA}")
    srd(a, sE, S_E, size=ESIZE)
    a.e(f"s_mov_b32 s{sSafe}, 0")
    a.e(f"s_mov_b32 s{sFirst}, 1")
    a.e(f"s_mov_b32 s{sMask}, {'0x4003ffe0' if 'esm' in cfg.x else '0x7fffffe0'}")
    a.e(f"v_mov_b32 v{vCL}, {LUT + 256}")
    a.e(f"v_bfe_u32 v{t+1}, v{vL}, 3, 2")
    a.e(f"v_bfe_u32 v{t+3}, v{vL}, 1, 1")
    a.e(f"v_lshl_add_u32 v{t+1}, v{t+1}, 1, v{t+3}")
    a.e(f"v_lshlrev_b32 v{t+1}, 5, v{t+1}")
    a.e("s_mov_b32 exec_lo, 0x0f0f0f0f\ns_mov_b32 exec_hi, 0xf0f0f0f0")
    a.e(f"v_add_u32 v{vCL}, {LUT}, v{t+1}")
    a.e("s_mov_b64 exec, -1")
    a.e(f"v_lshlrev_b32 v{vH16}, 4, v{t}")
    if 'ehalf' in cfg.x: a.e(f"v_lshlrev_b32 v18, 30, v{t}")
    a.e(f"v_and_b32 v{t+1}, 3, v{vL}")
    a.e(f"v_lshlrev_b32 v{vCQ}, 3, v{t+1}")
    a.e(f"v_lshl_add_u32 v{vCQ}, v{t+2}, 5, v{vCQ}")
    a.e(f"v_add_u32 v{vCQ}, {QL}, v{vCQ}")
    a.e(f"v_lshlrev_b32 v{vCA}, 2, v{vM}")
    a.e(f"v_mad_u32_u24 v{vSD}, v{vH16}, 33, v{vCA}")
    a.e(f"s_mul_i32 s{sT}, s{sW}, 1056")
    a.e(f"s_add_u32 s{sT}, s{sT}, {SIDE}")
    a.e(f"v_add_u32 v{vSD}, s{sT}, v{vSD}")
    a.e(f"v_lshlrev_b32 v{t+2}, 6, v{t+2}")
    a.e(f"v_sub_u32 v{vCA}, v{vCA}, v{t+2}")
    a.e(f"v_add_u32 v{vCA}, {AGG - 2*QL}, v{vCA}")
    a.e(f"v_bfe_u32 v{t+1}, v{vL}, 2, 2")
    a.e(f"v_lshl_add_u32 v{vRP0}, v{t+1}, 7, v{vCQ}")
    a.e(f"v_lshl_add_u32 v{vRP0}, v{t}, 11, v{vRP0}")
    a.e(f"v_and_b32 v{t+1}, 8, v{vL}")
    a.e(f"v_lshl_add_u32 v{vRP0}, v{t+1}, 3, v{vRP0}")
    a.e(f"s_add_u32 s{sT}, s{sM0}, {256 - QL}")
    a.e(f"v_add_u32 v{vRP0}, s{sT}, v{vRP0}")
    a.e(f"v_xor_b32 v{vRP1}, 64, v{vRP0}")
    a.e(f"s_movk_i32 s{s256}, 256")
    a.e(f"v_mov_b32 v{vCHK}, 0")
    def round_consts(a):
        a.e(f"v_lshrrev_b32 v{t}, 3, v{vM}")
        a.e(f"v_and_b32 v{t+1}, 3, v{vL}")
        a.e(f"v_lshl_add_u32 v{vAE}, v{t}, 2, v{t+1}")
        a.e(f"v_lshlrev_b32 v{vAE}, 3, v{vAE}")
        a.e(f"v_bfe_u32 v{t+1}, v{vL}, 2, 2")
        a.e(f"v_lshlrev_b32 v{vAQ}, 4, v{t+1}")
        a.e(f"v_and_b32 v{vAP}, 24, v{vL}")
        a.e(f"v_and_b32 v{t}, 7, v{vL}")
        a.e(f"v_bfe_u32 v{t+1}, v{vL}, 4, 1")
        a.e(f"v_lshlrev_b32 v{t}, 4, v{t}")
        a.e(f"v_lshlrev_b32 v{t+1}, 6, v{t+1}")
        a.e(f"v_xor_b32 v{vC4+3}, v{t}, v{t+1}")
        for j in range(3):
            a.e(f"v_add_u32 v{vC4+j}, {1024*(3-j)}, v{vC4+3}")
        a.e(f"v_mov_b32 v{vT}, 1")
        a.e(f"v_mov_b32 v{vT+1}, {FLG}")
        a.e(f"v_lshlrev_b32 v{vT+2}, 2, v{vL}")
        a.e(f"s_mov_b32 s{sT}, 0x420000")
        a.e(f"s_brev_b32 s{sT+6}, 1")
        a.e(f"s_add_u32 s{sT+7}, s{sDone}, s{sLim}")
        a.e(f"v_cmp_ne_u32 s[{sX0+2}:{sX0+3}], 0, v{vW0}")
    round_consts(a)
    a.lines = sav
    for x in mix(c.lines, dm): a.e(x)
    stamp(a, 1, 252)
    pf(1)
    stamp(a, 4, 252)
    NV = 11 + (1 if cfg.pfm else 0) + (NPF if cfg.pfpos <= 1 else 0)
    a.e(f"s_waitcnt vmcnt({NV + 1})")
    stamp(a, 5, 252)
    a.e(f"v_mov_b32_dpp v{vOC}, v{RC} quad_perm:[0,0,0,0] row_mask:0xf bank_mask:0xf")
    a.label("K2_COUNT")
    def groups(fn, lab, order=range(8), extra=(), pre=()):
        c = Asm(); sav = a.lines; a.lines = c.lines
        for i in order: fn(i)
        a.lines = sav
        for x in mix(c.lines, list(extra)): a.e(x)
    KK = lambda i: 16 * (i >> 2) + (i & 3)
    na = lambda i: f"v_lshlrev_b32_sdwa v{NA+i}, 2, v{RC+i} dst_sel:BYTE_0 dst_unused:UNUSED_PAD src0_sel:DWORD src1_sel:BYTE_0"
    a.e(na(1))
    a.e(f"v_min_u32 v{vREM}, s{sT+7}, v{vOC}")
    a.e(f"v_sub_u32 v{vREM}, v{vREM}, v{vW0}")
    a.e(f"v_cmp_lt_u32 s[{sX0+6}:{sX0+7}], s{sT+7}, v{vOC}")
    a.e(f"v_cmp_lt_i32 s[{sX0}:{sX0+1}], 0, v{vREM}")
    a.e(na(0))
    def f_cnt(i):
        a.e(f"v_cmpx_lt_i32 vcc, {KK(i)}, v{vREM}")
        if i == 3: a.e(f"s_waitcnt vmcnt({NV})")
        if i < 7: a.e(na(i + 1))
        a.e(f"ds_add_rtn_u32 v{RK+i}, v{NA+i}, v{vT} offset:{CNT}")
    groups(f_cnt, "K2_G1", order=range(1, 8))
    a.e(f"s_and_b64 s[{sX0}:{sX0+1}], s[{sX0}:{sX0+1}], s[{sX0+2}:{sX0+3}]")
    a.e(f"s_mov_b64 exec, s[{sX0}:{sX0+1}]")
    a.e(f"ds_add_rtn_u32 v{RK}, v{NA}, v{vT} offset:{CNT}")
    a.e(f"s_mov_b64 exec, s[{sX0+6}:{sX0+7}]")
    a.e(f"ds_write_b32 v{vT+1}, v{vT}")
    a.e("s_mov_b64 exec, -1")
    def f_ent(i):
        e0 = EN + 2 * i
        a.e(f"v_lshrrev_b32 v{e0}, 20, v{RC+i}")
        a.e(f"v_add_lshl_u32 v{e0}, v{e0}, v{vEB}, 5")
    groups(f_ent, "K2_G2")
    pf(2)
    a.e("s_waitcnt lgkmcnt(0)")
    a.e("s_barrier")
    stamp(a, 6, 252)
    a.e(f"ds_read_b32 v{vT+6}, v{vT+2} offset:{CNT}")
    a.e(f"ds_read_b32 v{vT+5}, v{vT+1}")
    def f_ent2(i):
        e1 = EN + 1 + 2 * i
        a.e(f"v_bfe_u32 v{e1}, v{RC+i}, 6, 14")
        a.e(f"v_mad_u32_u24 v{e1}, v{NA+i}, s{sT}, v{e1}")
    groups(f_ent2, "K2_G5")
    a.e("s_waitcnt lgkmcnt(0)")
    a.e(f"v_add_u32 v{vT+3}, 1, v{vT+6}")
    a.e(f"v_lshrrev_b32 v{vT+3}, 1, v{vT+3}")
    a.e(f"v_mov_b32 v{vT+4}, v{vT+3}")
    a.e(f"v_readfirstlane_b32 s{sMore}, v{vT+5}")
    fl = []
    for i in range(8):
        fl.append(f"v_add_u32 v{RC+i}, -1, v{RK+i}")
        fl.append(f"v_and_or_b32 v{EN+2*i}, v{RC+i}, s{sT+6}, v{EN+2*i}")
    v = vT + 4
    dpp = [f"v_add_u32_dpp v{v}, v{v}, v{v} row_shr:{sh} row_mask:0xf bank_mask:0xf bound_ctrl:0" for sh in (1, 2, 4, 8)]
    dpp += [f"v_add_u32_dpp v{v}, v{v}, v{v} row_bcast:15 row_mask:0xa bank_mask:0xf", f"v_add_u32_dpp v{v}, v{v}, v{v} row_bcast:31 row_mask:0xc bank_mask:0xf"]
    for j in range(6):
        a.e(fl[2*j]); a.e(fl[2*j+1]); a.e(dpp[j])
    a.e(fl[12])
    a.e(f"v_readlane_b32 s{sT+5}, v{vT+4}, 63")
    a.e(f"v_sub_u32 v{vT+4}, v{vT+4}, v{vT+3}")
    a.e(f"v_lshlrev_b32 v{vT+4}, 4, v{vT+4}")
    def f_perm(i):
        a.e(f"ds_bpermute_b32 v{NA+i}, v{NA+i}, v{vT+4}")
        if i >= 8:
            a.e(f"v_add_u32 v{RC+i}, -1, v{RK+i}")
            a.e(f"v_and_or_b32 v{EN+2*i}, v{RC+i}, s{sT+6}, v{EN+2*i}")
    groups(f_perm, "K2_G3")
    for x in fl[13:]: a.e(x)
    pf(3)
    a.e(f"s_cmp_gt_u32 s{sT+5}, 1025")
    a.e("s_cbranch_scc1 K2_TOOBIG")
    a.e(f"s_add_u32 s{sT}, s{sT+5}, 7")
    a.e(f"s_lshr_b32 s{sT}, s{sT}, 3")
    if cfg.ratio:
        a.e(f"s_mul_i32 s{sT+1}, s{sT}, {cfg.ratio}")
        a.e(f"s_add_u32 s{sT+1}, s{sT+1}, 63")
        a.e(f"s_lshr_b32 s{sT+1}, s{sT+1}, 6")
    else:
        a.e(f"s_add_u32 s{sT+1}, s{sT}, {cfg.bias}")
        a.e(f"s_lshr_b32 s{sT+1}, s{sT+1}, 4")
        a.e(f"s_lshl_b32 s{sT+1}, s{sT+1}, 3")
    a.e(f"s_min_u32 s{sT+1}, s{sT+1}, s{sT}")
    a.e(f"s_sub_u32 s{sT+2}, s{sT}, s{sT+1}")
    a.e(f"s_and_b32 s{sT+3}, s{sW}, 3")
    a.e(f"s_mul_i32 s{sT+3}, s{sT+3}, s{sT}")
    a.e(f"s_cmp_lt_u32 s{sW}, 4")
    a.e(f"s_cselect_b32 s{sL}, s{sT+1}, s{sT+2}")
    a.e(f"s_cselect_b32 s{sT+4}, 0, s{sT+1}")
    a.e(f"s_add_u32 s{sT+3}, s{sT+3}, s{sT+4}")
    a.e(f"s_lshl_b32 s{sT+3}, s{sT+3}, 5")
    a.e(f"s_add_u32 s{sT+3}, s{sT+3}, {LIST}")
    a.e(f"s_lshl_b32 s{sT+4}, s{sL}, 4")
    a.e(f"s_add_u32 s{sNT}, s{sL}, 7")
    a.e(f"s_lshr_b32 s{sNT}, s{sNT}, 3")
    a.e(f"s_cmp_eq_u32 s{sW}, 7")
    a.e("s_cbranch_scc0 K2_NODUM")
    a.e(f"v_mov_b32 v{vT+8}, 0x7ffffff0\nv_mov_b32 v{vT+9}, 0xffff\nv_mov_b32 v{vT+10}, 0x7ffffff0\nv_mov_b32 v{vT+11}, 0xffff")
    a.e(f"v_lshl_add_u32 v{vT+7}, v{vT+6}, 3, v{vT+4}")
    a.e(f"v_and_b32 v{vT+6}, 1, v{vT+6}")
    a.e(f"v_cmp_eq_u32 vcc, 1, v{vT+6}")
    a.e("s_mov_b64 exec, vcc")
    a.e(f"ds_write_b64 v{vT+7}, v[{vT+8}:{vT+9}] offset:{LIST}")
    a.e("s_mov_b32 exec_lo, -1\ns_mov_b32 exec_hi, 0x7f")
    a.e(f"v_add_lshl_u32 v{vT+7}, v{vL}, s{sT+5}, 4")
    a.e(f"ds_write_b128 v{vT+7}, v[{vT+8}:{vT+11}] offset:{LIST}")
    a.e("s_mov_b64 exec, -1")
    a.label("K2_NODUM")
    a.e("s_waitcnt lgkmcnt(0)")
    a.e(f"v_lshl_add_u32 v{NA}, v{RK}, 3, v{NA}")
    def f_place(i):
        a.e(f"v_cmpx_lt_i32 vcc, {KK(i)}, v{vREM}")
        a.e(f"v_lshl_add_u32 v{NA+i}, v{RK+i}, 3, v{NA+i}")
        a.e(f"ds_write_b64 v{NA+i}, v[{EN+2*i}:{EN+1+2*i}] offset:{LIST}")
    groups(f_place, "K2_G4", order=range(1, 8))
    a.e(f"s_mov_b64 exec, s[{sX0}:{sX0+1}]")
    a.e(f"ds_write_b64 v{NA}, v[{EN}:{EN+1}] offset:{LIST}")
    a.e("s_mov_b64 exec, -1")
    a.e(f"v_add_u32 v{vAE}, s{sT+3}, v{vAE}")
    a.e(f"v_add3_u32 v{vAP}, v{vAP}, s{sT+3}, 4")
    a.e(f"v_add3_u32 v{vAQ}, v{vAQ}, s{sT+3}, 6")
    a.e("s_mov_b32 exec_lo, 0xf0f0f0f0\ns_mov_b32 exec_hi, 0xf0f0f0f0")
    a.e(f"v_add_u32 v{vAE}, s{sT+4}, v{vAE}")
    a.e("s_mov_b32 exec_lo, 0\ns_mov_b32 exec_hi, -1")
    a.e(f"v_add_u32 v{vAP}, s{sT+4}, v{vAP}")
    a.e(f"v_add_u32 v{vAQ}, s{sT+4}, v{vAQ}")
    a.e("s_mov_b64 exec, -1")
    a.e(f"s_sub_u32 s{sT+1}, s{sT+1}, 1")
    a.e(f"s_sub_u32 s{sT+2}, s{sT+2}, 1")
    a.e(f"s_min_u32 s{sT+1}, s{sT+1}, s{sT+2}")
    a.e(f"v_cmp_lt_u32 s[{sSusp}:{sSusp+1}], s{sT+1}, v{vT+3}")
    a.e(f"s_cmp_eq_u32 s{sNT}, 0")
    a.e(f"s_cselect_b32 s{sP+2}, 0, {PSIZE}")
    a.e(f"s_cselect_b32 s{sE+2}, 0, {ESIZE}")
    a.e(f"s_cmp_eq_u32 s{sFirst}, 0")
    a.e(f"s_waitcnt vmcnt({NPF}) lgkmcnt(0)")
    a.e("s_barrier")
    a.e("s_cbranch_scc1 K2_PRO2")
    stamp(a, 7, 252)
    adv = [f"v_add_u32 v{r}, s{s256}, v{r}" for r in (vAE, vAP, vAQ)]
    def early_e1():
        return addr_e() + [f"s_cmp_lt_u32 s{sNT}, 2", f"s_cselect_b32 s{sE+2}, 0, s{sE+2}", e_load(1)]
    def prologue(a, first):
        for s in list_reads_se() + list_reads_n(): a.e(s)
        if first:
            for st in range(8):
                if st == 0: a.e(f"ds_read_b128 v[{XF}:{XF+3}], v{vXA}")
                else:
                    r = vT + (st & 1)
                    a.e(f"v_xor_b32 v{r}, {32*st}, v{vXA}")
                    a.e(f"ds_read_b128 v[{XF+4*st}:{XF+4*st+3}], v{r}")
        a.e(f"s_waitcnt lgkmcnt({8 if first else 0})")
        for s in addr_se() + addr_q(0): a.e(s)
        for s in list_reads_se(1): a.e(s)
        for s in flags_from_vcc(sF0): a.e(s)
        d0 = dma_ops(0, "alt"); d1 = dma_ops(1)
        fr = Asm()
        if first:
            a.e(f"v_add_u32 v{vT+3}, {STG + 4096}, v{vWA}")
            wfrag_read(fr, W2F, vT+3, 0, 8192)
            wfrag_read(fr, WU1F, vWA, WU1L)
            for c in range(4):
                fr.e(f"ds_read_b128 v[{W3+4*c}:{W3+4*c+3}], v{vW3A} offset:{1024*c}")
        n4 = len(fr.lines) // 4
        if cfg.e0f: a.e(e_load(0))
        for s in d0[0] + fr.lines[:n4] + d0[1] + fr.lines[n4:2*n4]: a.e(s)
        if not cfg.e0f: a.e(e_load(0))
        for s in fr.lines[2*n4:3*n4]: a.e(s)
        a.e(f"v_cmp_ne_u32 vcc, v{vLA}, v{vCL}")
        a.e(f"v_mov_b32_dpp v{vFA}, v{vQA} row_newbcast:0 row_mask:0xf bank_mask:0xf")
        a.e(f"v_mov_b32 v{vLA0}, v{vLA}")
        for s in d0[2] + fr.lines[3*n4:]: a.e(s)
        a.e(f"s_cmp_eq_u32 s{sNT}, 0")
        a.e(f"s_cselect_b32 s{sDm}, -1, vcc_lo")
        a.e(f"v_lshl_add_u32 v{vFA}, v{vFA}, 1, v{vCA}")
        for s in d0[3]: a.e(s)
        if first:
            a.e(f"s_lshr_b32 s{sT+1}, s{sW}, 2")
            a.e(f"s_lshl_b32 s{sT+1}, s{sT+1}, 5")
            a.e(f"v_add_u32 v{vT+1}, s{sT+1}, v{vM}")
            a.e(f"v_mul_u32_u24 v{vT+2}, 264, v{vT+1}")
            a.e(f"v_lshl_add_u32 v{vT+2}, v{vH16}, 1, v{vT+2}")
            a.e(f"s_and_b32 s{sT+1}, s{sW}, 3")
            a.e(f"s_lshl_b32 s{sT+1}, s{sT+1}, 6")
            a.e(f"v_add_u32 v{vT+2}, s{sT+1}, v{vT+2}")
            a.e(f"v_cmp_gt_u32 s[{sX0}:{sX0+1}], 49, v{vT+1}")
            a.e(f"v_lshlrev_b32 v{vT}, 4, v0")
            a.e(f"v_mov_b32 v{vT+8}, 0\nv_mov_b32 v{vT+9}, 0\nv_mov_b32 v{vT+10}, 0\nv_mov_b32 v{vT+11}, 0")
            a.e(f"s_movk_i32 s{sT+1}, {49*528//16 - 1536}")
            a.e(f"v_cmp_gt_u32 s[{sX0+2}:{sX0+3}], s{sT+1}, v0")
            a.e(f"s_mov_b32 s{sT}, {LOG2E_NEG}")
            a.e(f"s_mov_b32 s{sT+1}, {LOG2E_NEG}")
            stamp(a, 44, 252)
            a.e("s_waitcnt lgkmcnt(0)")
            g = Asm(); gemm8(g, QACC, W2F, XF)
            for x in g.lines: a.e(x)
            g = Asm(); gemm8(g, ACX, WU1F, XF)
            q = [f"v_mul_f32 v{QACC+i}, s{sT}, v{QACC+i}" for i in range(16)] + [f"v_cvt_pk_bf16_f32 v{QACC+i}, v{QACC+2*i}, v{QACC+1+2*i}" for i in range(8)]
            a.e(g.lines[0])
            if cfg.e1e:
                for x in early_e1(): a.e(x)
                a.e("s_nop 5")
            else:
                a.e("s_nop 9")
            for j in range(3):
                a.e(g.lines[1+j])
                for x in q[j*8:j*8+8]: a.e(x)
            a.e(f"s_mov_b64 exec, s[{sX0}:{sX0+1}]")
            for gg in range(4):
                a.e(f"ds_write_b64 v{vT+2}, v[{QACC+2*gg}:{QACC+1+2*gg}] offset:{QL + 8*gg}")
            a.e("s_mov_b64 exec, -1")
            a.e("s_barrier")
            for j in range(3):
                a.e(f"ds_write_b128 v{vT}, v[{vT+8}:{vT+11}] offset:{AGG + j*8192}")
            a.e(g.lines[4])
            a.e(f"s_mov_b64 exec, s[{sX0+2}:{sX0+3}]")
            a.e(f"ds_write_b128 v{vT}, v[{vT+8}:{vT+11}] offset:{AGG + 3*8192}")
            a.e("s_mov_b64 exec, -1")
            for s in d1[0]: a.e(s)
            a.e(g.lines[5])
            a.e("s_waitcnt lgkmcnt(0)")
            a.e("s_barrier")
            stamp(a, 45, 252)
            for j in range(1, 4):
                for s in d1[j]: a.e(s)
                if j < 3: a.e(g.lines[5+j])
        else:
            if cfg.e1e:
                a.e("s_waitcnt lgkmcnt(0)")
                for x in early_e1(): a.e(x)
            for s in sum(d1, []): a.e(s)
        a.e(f"s_cmp_lt_u32 s{sNT}, 2")
        a.e(f"s_cselect_b32 s{sP+2}, 0, s{sP+2}")
        a.e(f"s_cselect_b32 s{sE+2}, 0, s{sE+2}")
        if not first: a.e("s_waitcnt lgkmcnt(0)")
        for s in addr_se(): a.e(s)
        for s in list_reads_se(2) + list_reads_n(1): a.e(s)
        for s in flags_from_vcc(sF1): a.e(s)
    prologue(a, True)
    rare.label("K2_PRO2")
    rare.e("s_waitcnt vmcnt(0)")
    prologue(rare, False)
    rare.e("s_branch K2_NOX")
    stamp(a, 42, 252)
    for i in range(8):
        a.e(f"v_pk_mul_f32 {p2(ACX+2*i)}, {p2(ACX+2*i)}, s[{sT}:{sT+1}]")
    a.label("K2_NOX")
    stamp(a, 43, 252)
    a.e(f"s_cmp_eq_u32 s{sNT}, 0")
    a.e("s_cbranch_scc1 K2_NOTILES")
    a.e(f"ds_read_b128 v[{AQ}:{AQ+3}], v{vLA0}")
    for s in qfrag_reads(QY, 0, 0) + qfrag_reads(QX, 1, 0): a.e(s)
    if cfg.t1pos == 1:
        if not cfg.e1e: a.e(e_load(1))
        dma_half(a, 0)
    for i in range(4): a.e(f"v_mov_b32 v{AP+i}, 0")
    for i in range(4):
        shf = 16 * (i >> 1) + 4 * (i & 1)
        a.e(f"s_mov_b32 exec_lo, {hex(0xf << shf)}\ns_mov_b32 exec_hi, {hex(0xf << (shf + 8))}")
        a.e(f"v_mov_b32 v{AP+i}, 0x3f80")
    a.e("s_mov_b64 exec, -1")
    a.e(f"v_and_b32 v{IDX}, 3, v{vL}")
    a.e(f"v_mul_u32_u24 v{IDX}, 0x5555, v{IDX}")
    a.e(f"s_add_u32 s{sMA}, s{sM0}, {4096 - 128 + 256}")
    a.e(f"s_add_u32 s{sMB}, s{sM0}, 256")
    a.e(f"s_and_b32 s{sT}, s{sL}, 6")
    a.e(f"s_and_b32 s{sT+1}, s{sL}, 1")
    a.e(f"s_lshl1_add_u32 s{sT}, s{sT}, s{sT+1}")
    a.e(f"s_lshl_b32 s{sT}, s{sT}, 1")
    a.e(f"s_cselect_b32 s{sT+1}, 1, 0")
    a.e(f"s_lshl_b32 s{sEX+1}, s{sT+1}, s{sT}")
    a.e(f"s_lshl_b32 s{sEX}, s{sEX+1}, 1")
    a.e(f"s_cmp_eq_u32 s{sNT}, 1")
    a.e(f"s_cselect_b64 s[{sT}:{sT+1}], s[{sEX}:{sEX+1}], 0")
    a.e(f"s_or_b64 s[{sF0}:{sF0+1}], s[{sF0}:{sF0+1}], s[{sT}:{sT+1}]")
    for c in range(4):
        a.e(f"v_mov_b32 v{NN+2*c}, 0\nv_mov_b32 v{NN+2*c+1}, 0\nv_mov_b32 v{DD+2*c}, 1.0\nv_mov_b32 v{DD+2*c+1}, 1.0")
    a.e(f"v_mov_b32 v{vCUR}, v{vSD}\nv_mov_b32 v{vCUR+1}, v{vSD}")
    for c in range(4): a.e(f"v_mov_b32 v{ACC+c}, 0")
    a.e(f"s_sub_u32 s{sT}, s{sW4k}, s{sM0}")
    a.e(f"s_add_u32 s{sT}, s{sT}, {WU2 - 256}")
    a.e(f"v_add_u32 v{vT}, s{sT}, v{vRP0}")
    a.e(f"v_add_u32 v{vT+1}, s{sT}, v{vRP1}")
    stamp(a, 46, 252)
    a.e(f"s_waitcnt vmcnt({4 + cfg.e1e})" if cfg.t1pos == 2 else "s_waitcnt vmcnt(9)")
    stamp(a, 47, 252)
    for s in pfrag_reads(PY, 0, vT): a.e(s)
    mf = mfmas(0, PY, QY, 0)
    a.e("s_waitcnt lgkmcnt(8)")
    for s in mf[:4]: a.e(s)
    a.e("s_waitcnt lgkmcnt(0)")
    for s in mf[4:]: a.e(s)
    if cfg.t1pos == 2:
        if not cfg.e1e: a.e(e_load(1))
        dma_half(a, 0)
    stamp(a, 8, 252)
    if cfg.dbg:
        a.e("s_memtime s[90:91]\ns_waitcnt lgkmcnt(0)\nv_writelane_b32 v252, s90, 14")
    a.e(f"s_sub_u32 s{sCnt}, s{sNT}, 1")
    a.e(f"s_waitcnt vmcnt({5 - cfg.e1e})")
    stamp(a, 48, 252)
    for s in pfrag_reads(PX, 1): a.e(s)
    def lstamp(x):
        if not cfg.lst: return
        a.e("s_memrealtime s[90:91]")
        a.e(f"s_lshl_b32 s92, s{sCnt}, 1")
        a.e(f"s_add_u32 s92, s92, {x+2}")
        a.e("s_mov_b32 m0, s92")
        a.e("s_waitcnt lgkmcnt(0)")
        a.e("v_writelane_b32 v252, s90, m0")
    def iteration(par):
        exA = {
            0: addr_q(1 - par),
            1: qfrag_reads(QY, 0, 1 - par),
            2: [f"s_mov_b32 m0, s{sMA}", "s_waitcnt lgkmcnt(4)"] + dma_ld(1)[:2],
            3: dma_ld(1)[2:],
            4: [f"ds_read_b128 v[{AQ}:{AQ+3}], v{vLA}",
                f"s_cmp_lt_u32 s{sCnt}, 2", f"s_cbranch_scc1 WU2_{par}", f"WU2R_{par}:"],
            7: ["s_waitcnt vmcnt(4) lgkmcnt(0)"] + pfrag_reads(PY, 0),
        }
        half_step(a, ool, 0, par, exA, f"A{par}")
        ool.label(f"WU2_{par}")
        ool.e(f"s_mov_b32 s{sP+2}, 0")
        ool.e(f"s_mov_b32 s{sE+2}, 0")
        sFn = (sF1, sF0)[par]
        ool.e(f"s_or_b64 s[{sFn}:{sFn+1}], s[{sFn}:{sFn+1}], s[{sEX}:{sEX+1}]")
        ool.e(f"s_cmp_lg_u32 s{sCnt}, 0")
        ool.e(f"s_cbranch_scc1 WU2R_{par}")
        w_dma(ool, sWu, vWC, sW4k, 32768, WU2, sT)
        ool.e(f"s_branch WU2R_{par}")
        mf = mfmas(2, PX, QX, par)
        ool.label(f"EXA{par}_1")
        ool.e("s_waitcnt lgkmcnt(0)")
        ool.e(mf[2])
        ool.label(f"EXA{par}_2")
        ool.e(mf[3])
        ool.label(f"EXA{par}_3")
        ool.e(mf[4])
        w_dma(ool, sWu, vWC, sW4k, 32768, WU2, sT)
        ool.label(f"EXA{par}_4")
        ool.e(mf[5])
        ool.e("s_nop 7")
        ool.label(f"EXA{par}_5")
        ool.e(f"s_branch R_A{par}_7")
        exB = {
            0: qfrag_reads(QX, 1, 1 - par),
            1: addr_se(),
            2: [f"s_mov_b32 m0, s{sMB}", "s_waitcnt lgkmcnt(4)"] + dma_ld(0)[:2],
            3: dma_ld(0)[2:] + [e_load(par)],
            4: list_reads_se(3 + par) + list_reads_n(2 + par),
            5: adv if par else [],
            7: ["s_waitcnt vmcnt(5) lgkmcnt(0)"] + pfrag_reads(PX, 1),
        }
        lstamp(17)
        half_step(a, ool, 1, par, exB, f"B{par}")
        lstamp(16)
        for s in flags_from_vcc((sF0, sF1)[par]): a.e(s)
        a.e(f"s_sub_u32 s{sCnt}, s{sCnt}, 1")
    a.label("K2_LOOP")
    iteration(0)
    a.e("s_cbranch_scc1 K2_LEND")
    iteration(1)
    a.e("s_cbranch_scc0 K2_LOOP")
    a.label("K2_LEND")
    stamp(a, 9, 252)
    if cfg.dbg:
        a.e("s_memtime s[90:91]\ns_waitcnt lgkmcnt(0)\nv_writelane_b32 v252, s90, 15")
    flush_code(a, 0, 0)
    a.e(f"ds_write2_b32 v{vCUR}, v{ACC}, v{ACC+1} offset1:32")
    flush_code(a, 2, 1, wait=False)
    a.e(f"ds_write2_b32 v{vCUR+1}, v{ACC+2}, v{ACC+3} offset0:64 offset1:96")
    a.label("K2_AFTER")
    a.e(f"s_mov_b32 s{sFirst}, 0")
    a.e(f"s_bitcmp0_b32 s{sDm}, 0")
    a.e(f"s_cselect_b32 s{sX0+2}, -1, 0")
    a.e(f"s_bitcmp0_b32 s{sDm}, 4")
    a.e(f"s_cselect_b32 s{sX0+3}, -1, 0")
    a.e(f"s_lshr_b32 s{sT+1}, s{sW}, 2")
    a.e(f"s_lshl_b32 s{sT+2}, s{sT+1}, 5")
    a.e(f"v_add_u32 v{vT+8}, s{sT+2}, v{vM}")
    a.e(f"v_mul_u32_u24 v{vT+9}, 528, v{vT+8}")
    a.e(f"v_cmp_gt_u32 s[{sX0}:{sX0+1}], 49, v{vT+8}")
    a.e(f"s_and_b32 s{sT+2}, s{sW}, 3")
    a.e(f"s_lshl_b32 s{sT+2}, s{sT+2}, 7")
    a.e(f"v_lshl_add_u32 v{vT+5}, v{vH16}, 1, s{sT+2}")
    a.e(f"v_add_u32 v{vT+6}, v{vT+9}, v{vT+5}")
    a.e(f"v_add_u32 v{vT+4}, {WU2}, v{vWA}")
    a.e(f"s_add_u32 s{sT+2}, s{sM0}, {256 + 4096}")
    a.e(f"v_lshl_add_u32 v{vT+2}, v{vL}, 4, s{sT+2}")
    a.e(f"s_lshl_b32 s{sT+1}, s{sT+1}, 15")
    a.e(f"s_add_u32 s{sT+1}, s{sT+1}, {STG + 4096}")
    a.e(f"v_lshl_add_u32 v{vT+3}, v{vL}, 4, s{sT+1}")
    a.e(f"s_or_b32 s{sT}, s{sSusp}, s{sSusp+1}")
    a.e(f"s_or_b32 s{sT}, s{sT}, s{sMore}")
    a.e("s_cbranch_scc1 K2_SLOWM")
    a.e(f"s_and_b32 exec_lo, s{sX0+2}, 1")
    a.e(f"s_and_b32 exec_hi, s{sX0+3}, 1")
    a.e(f"ds_write_b32 v{vFA}, v{vSD} offset:512")
    a.label("K2_MERGED")
    a.e(f"s_mov_b64 exec, s[{sX0}:{sX0+1}]")
    a.e("s_waitcnt vmcnt(0) lgkmcnt(0)")
    a.e("s_barrier")
    stamp(a, 49, 252)
    a.e(f"s_cmp_lg_u32 s{sMore}, 0")
    a.e("s_cbranch_scc1 K2_MORE")
    wf = Asm(); wfrag_read(wf, 128, vT+4)
    a.e(f"ds_read_b32 v{vT+7}, v{vT+9} offset:{AGG + 512}")
    for j, o in enumerate((0, 16, 64, 80)):
        a.e(f"ds_read_b128 v[{64+4*j}:{67+4*j}], v{vT+6} offset:{AGG + o}")
    a.e("s_waitcnt lgkmcnt(4)")
    a.e(f"v_cmpx_ne_u32 vcc, 0, v{vT+7}")
    a.e(f"v_add_u32 v{vT+7}, v{vT+7}, v{vT+5}")
    for j, o in enumerate((0, 16, 64, 80)):
        a.e(f"ds_read_b128 v[{80+4*j}:{83+4*j}], v{vT+7} offset:{o}")
    a.e("s_mov_b64 exec, -1")
    for x in wf.lines[:8]: a.e(x)
    a.e("s_mov_b64 exec, vcc")
    for j in range(4):
        a.e(f"s_waitcnt lgkmcnt({11-j})")
        for i in range(2):
            r = 64 + 4*j + 2*i
            a.e(f"v_pk_add_f32 {p2(r)}, {p2(r)}, {p2(r+16)}")
    a.e("s_mov_b64 exec, -1")
    for j in range(2):
        for i in range(4):
            a.e(f"v_cvt_pk_bf16_f32 v{96+4*j+i}, v{64+8*j+2*i}, v{65+8*j+2*i}")
        a.e(f"ds_write_b128 v{vT+2}, v[{96+4*j}:{99+4*j}] offset:{1024*j}")
    for x in wf.lines[8:]: a.e(x)
    a.e("s_waitcnt lgkmcnt(8)")
    a.e("s_barrier")
    stamp(a, 10, 252)
    for st in range(8):
        a.e(f"ds_read_b128 v[{64+4*st}:{67+4*st}], v{vT+3} offset:{(st>>1)*8192 + (st&1)*1024}")
    if cfg.owt:
        a.e(f"v_mul_u32_u24 v{vT+10}, 80, v{vM}")
        a.e(f"v_lshl_add_u32 v{vT+10}, v{vH16}, 1, v{vT+10}")
        a.e(f"s_add_u32 s{sT+1}, s{sM0}, 256")
        a.e(f"v_add_u32 v{vT+10}, s{sT+1}, v{vT+10}")
        a.e(f"v_lshrrev_b32 v{vT+12}, 2, v{vL}")
        a.e(f"v_and_b32 v{vT+14}, 3, v{vL}")
        a.e(f"v_lshlrev_b32 v{vT+14}, 4, v{vT+14}")
        a.e(f"v_lshl_add_u32 v{vT+13}, v{vT+12}, 8, v{vT+14}")
        a.e(f"v_mul_u32_u24 v{vT+12}, 80, v{vT+12}")
        a.e(f"v_add3_u32 v{vT+12}, v{vT+12}, v{vT+14}, s{sT+1}")
        a.e(f"s_lshr_b32 s{sT+3}, s{sW}, 2")
        a.e(f"s_lshl_b32 s{sT+3}, s{sT+3}, 13")
        a.e(f"s_and_b32 s{sT+4}, s{sW}, 3")
        a.e(f"s_lshl_b32 s{sT+4}, s{sT+4}, 6")
        a.e(f"s_add_u32 s{sT+3}, s{sT+3}, s{sT+4}")
        a.e(f"v_add_u32 v{vT+13}, s{sT+3}, v{vT+13}")
    else:
        a.e(f"v_mul_u32_u24 v{vT+10}, 272, v{vT+8}")
        a.e(f"v_lshl_add_u32 v{vT+10}, v{vH16}, 1, v{vT+10}")
        a.e(f"s_and_b32 s{sT+1}, s{sW}, 3")
        a.e(f"s_lshl_b32 s{sT+1}, s{sT+1}, 6")
        a.e(f"s_add_u32 s{sT+1}, s{sT+1}, {STG}")
        a.e(f"v_add_u32 v{vT+10}, s{sT+1}, v{vT+10}")
        a.e(f"v_lshrrev_b32 v{vT+12}, 4, v0")
        a.e(f"v_lshlrev_b32 v{vT+13}, 4, v0")
        a.e(f"v_lshl_add_u32 v{vT+12}, v{vT+12}, 4, v{vT+13}")
        a.e(f"v_add_u32 v{vT+12}, {STG}, v{vT+12}")
    for st in range(8):
        a.e(f"s_waitcnt lgkmcnt({7-st})")
        c = f"v[{ACX}:{ACX+15}]" if st == 0 else "v[160:175]"
        a.e(f"v_mfma_f32_32x32x16_bf16 v[160:175], v[{128+4*st}:{131+4*st}], v[{64+4*st}:{67+4*st}], {c}")
    a.e(f"s_mov_b32 s{sT+1}, {LOG2E_NEG}")
    a.e(f"s_mov_b32 s{sT}, {LOG2E_NEG}")
    stamp(a, 50, 252)
    a.e(f"s_mov_b32 s{sT+2}, 0x7b800000")
    a.e(f"v_cmp_le_f32 s[{sX0+2}:{sX0+3}], s{sT+2}, v{vCHK}")
    a.e(f"v_mov_b32 v{vT+11}, 0x207")
    a.e("s_nop 6")
    a.e(f"v_cmp_class_f32 vcc, v160, v{vT+11}")
    for hf in range(2):
        R = range(8 * hf, 8 * hf + 8)
        for i in R: a.e(f"v_exp_f32 v{64+i}, v{160+i}")
        if hf == 0:
            a.e(f"s_and_b64 vcc, vcc, s[{sX0}:{sX0+1}]")
            a.e(f"s_or_b64 s[{sX0+2}:{sX0+3}], vcc, s[{sX0+2}:{sX0+3}]")
        if hf: a.e("s_nop 0")
        for i in R[::2]: a.e(f"v_pk_fma_f32 {p2(64+i)}, {p2(64+i)}, s[{sT}:{sT+1}], s[{sT}:{sT+1}]")
        for i in R: a.e(f"v_rcp_f32 v{64+i}, v{64+i}")
        for i in R[::2]: a.e(f"v_pk_mul_f32 {p2(64+i)}, {p2(160+i)}, {p2(64+i)}")
        for i in range(4 * hf, 4 * hf + 4): a.e(f"v_cvt_pk_bf16_f32 v{80+i}, v{64+2*i}, v{65+2*i}")
        o = " offset:16" if hf else ""
        a.e(f"ds_write_b128 v{vT+10}, v[{80+4*hf}:{83+4*hf}]{o}")
    if cfg.owt:
        a.e(f"ds_read_b128 v[88:91], v{vT+12}")
        a.e(f"ds_read_b128 v[92:95], v{vT+12} offset:{16*80}")
        a.e(f"v_mov_b32 v{vT}, 1")
        a.e(f"v_mov_b32 v{vT+1}, {FLG+4}")
        a.e(f"s_movk_i32 s{sT+1}, 4096")
        a.e("s_waitcnt lgkmcnt(1)")
        a.e(f"buffer_store_dwordx4 v[88:91], v{vT+13}, s[{sO}:{sO+3}], 0 offen {cfg.o_pol}")
        a.e("s_waitcnt lgkmcnt(0)")
        a.e(f"buffer_store_dwordx4 v[92:95], v{vT+13}, s[{sO}:{sO+3}], s{sT+1} offen {cfg.o_pol}")
        a.e(f"s_mov_b64 exec, s[{sX0+2}:{sX0+3}]")
        a.e(f"ds_write_b32 v{vT+1}, v{vT}")
        a.e("s_mov_b64 exec, -1")
        a.e("s_waitcnt lgkmcnt(0)")
        a.e("s_barrier")
        a.e(f"ds_read_b32 v{vT}, v{vT+1}")
    else:
        a.e(f"v_mov_b32 v{vT}, 1")
        a.e(f"v_mov_b32 v{vT+1}, {FLG+4}")
        a.e(f"s_mov_b64 exec, s[{sX0+2}:{sX0+3}]")
        a.e(f"ds_write_b32 v{vT+1}, v{vT}")
        a.e("s_mov_b64 exec, -1")
        a.e(f"s_movk_i32 s{sT+1}, 8192")
        a.e("s_waitcnt lgkmcnt(0)")
        stamp(a, 51, 252)
        a.e("s_barrier")
        stamp(a, 52, 252)
        a.e(f"ds_read_b128 v[88:91], v{vT+12}")
        a.e(f"ds_read_b128 v[92:95], v{vT+12} offset:{32*272}")
        a.e(f"ds_read_b32 v{vT}, v{vT+1}")
        a.e("s_waitcnt lgkmcnt(2)")
        a.e(f"buffer_store_dwordx4 v[88:91], v{vT+13}, s[{sO}:{sO+3}], 0 offen {cfg.o_pol}")
        a.e("s_waitcnt lgkmcnt(1)")
        a.e(f"buffer_store_dwordx4 v[92:95], v{vT+13}, s[{sO}:{sO+3}], s{sT+1} offen {cfg.o_pol}")
    stamp(a, 11, 252)
    if cfg.dbg:
        a.e("s_waitcnt vmcnt(0)")
        a.e(f"v_writelane_b32 v252, s{sNT}, 13")
    stamp(a, 12, 252)
    stamp_out(a, 252, 253, 1)
    if cfg.x: a.e("s_branch K2_END")
    a.e("s_waitcnt lgkmcnt(0)")
    a.e(f"v_readfirstlane_b32 s{sT}, v{vT}")
    a.e(f"s_cmp_lg_u32 s{sSafe}, 0")
    a.e("s_cbranch_scc1 K2_END")
    a.e(f"s_cmp_lg_u32 s{sT}, 0")
    a.e("s_cbranch_scc1 K2_SAFE")
    a.label("K2_END")
    a.e("s_endpgm")
    a.lines += ool.lines
    a.label("K2_CODE_END")
    a.lines += rare.lines
    a.label("K2_NOTILES")
    a.e("s_waitcnt vmcnt(0)")
    w_dma(a, sWu, vWC, sW4k, 32768, WU2, sT)
    a.e("s_branch K2_AFTER")
    a.label("K2_SLOWM")
    for c in range(4):
        a.e(f"ds_read_b32 v{vT+16+c}, v{vSD} offset:{128*c}")
    a.e("s_waitcnt vmcnt(0) lgkmcnt(0)")
    a.e("s_barrier")
    a.e(f"s_mov_b64 exec, s[{sX0+2}:{sX0+3}]")
    for c in range(4):
        a.e(f"ds_add_f32 v{vFA}, v{vT+16+c} offset:{128*c}")
    a.e("s_branch K2_MERGED")
    a.label("K2_SAFE")
    a.e("s_waitcnt vmcnt(0)")
    a.e("s_barrier")
    a.e(f"s_mov_b32 s{sSafe}, -1")
    a.e(f"s_mov_b32 s{sDone}, 0")
    reset_round(a, True)
    a.e("s_branch K2_ROUND")
    a.label("K2_MORE")
    a.e("s_mov_b64 exec, -1")
    a.e(f"s_add_u32 s{sDone}, s{sDone}, s{sLim}")
    a.e("s_branch K2_RESET")
    a.label("K2_TOOBIG")
    a.e("s_barrier")
    a.e(f"s_mov_b32 s{sLim}, 16")
    a.label("K2_RESET")
    reset_round(a, False)
    a.label("K2_ROUND")
    srd(a, sR, S_WS, off_c=cfg.wsoff + WS_S01, size=WS_OFFT + 262144 - WS_S01)
    a.e(f"v_and_b32 v{t}, 0x1fc, v0")
    a.e(f"s_lshl_b32 s{sT}, s{sBin}, 10")
    a.e(f"s_add_u32 s{sT}, s{sT}, {WS_OFFT - WS_S01}")
    a.e(f"v_mov_b32 v{vROFF}, 0")
    a.e(f"v_cmp_lt_u32 vcc, 32, v{vOC}")
    a.e("s_mov_b64 exec, vcc")
    a.e(f"buffer_load_dword v{vROFF}, v{t}, s[{sR}:{sR+3}], s{sT} offen")
    a.e("s_mov_b64 exec, -1")
    a.e(f"v_and_b32 v{vW0}, 3, v0")
    a.e(f"v_lshlrev_b32 v{vW0}, 2, v{vW0}")
    a.e(f"v_add_u32 v{vW0}, s{sDone}, v{vW0}")
    a.e(f"s_lshl_b32 s{sT}, s{sBin}, {6 if cfg.lohi else 7}")
    a.e(f"v_lshl_add_u32 v{t}, v{t}, 13, s{sT}")
    a.e(f"s_mov_b32 s{sT}, {WS_REC - WS_S01 - 4}")
    a.e("s_waitcnt vmcnt(0)")
    a.e(f"v_add_u32 v{t+2}, v{vEB}, v{vROFF}")
    a.e(f"v_lshl_add_u32 v{t+2}, v{t+2}, 2, s{sT}")
    for g in range(2):
        a.e(f"v_add_u32 v{t+3}, {16*g}, v{vW0}")
        a.e(f"v_cmp_gt_u32 vcc, 32, v{t+3}")
        a.e("s_nop 1")
        if cfg.lohi:
            a.e(f"v_and_b32 v{t+1}, 16, v{t+3}")
            a.e(f"v_mul_u32_u24 v{t+1}, 1020, v{t+1}")
            a.e(f"v_add_u32 v{t+1}, v{t+1}, v{t}")
            a.e(f"v_cndmask_b32 v{t+4+g}, v{t+2}, v{t+1}, vcc")
        else:
            a.e(f"v_cndmask_b32 v{t+4+g}, v{t+2}, v{t}, vcc")
        a.e(f"v_lshl_add_u32 v{t+4+g}, v{t+3}, 2, v{t+4+g}")
        a.e(f"buffer_load_dwordx4 v[{RC+4*g}:{RC+4*g+3}], v{t+4+g}, s[{sR}:{sR+3}], 0 offen")
    round_consts(a)
    a.e("s_waitcnt vmcnt(0) lgkmcnt(0)")
    a.e("s_barrier")
    a.e("s_branch K2_COUNT")

HEADER = open("cdna_kernels/" + NAME + ".s.ref").read().split("; Override launch")[0]
def generate():
    a = Asm()
    gen_k1(a)
    gen_k2(a)
    if cfg.rep:
        rp = [int(v) for v in cfg.rep.split(",")]; k, wg, idx, j0, j1 = (rp + [0, 4])[:5]; xs = rp[5:]
        kernel_head(a, "rep_kernel")
        a.e("s_load_dwordx2 s[20:21], s[0:1], 64")
        a.e("s_cmp_lg_u32 s2, 0")
        a.e("s_cbranch_scc1 REP_END")
        a.e("s_waitcnt lgkmcnt(0)")
        srd(a, 8, S_WS, off_c=WS_DBG, size=0x200000)
        op = "max" if wg == 1 else "min"
        a.e("v_lshlrev_b32 v1, 11, v0")
        a.e(f"v_add_u32 v2, {k*0x100000 + idx*4}, v1")
        for j in range(4):
            a.e(f"s_mov_b32 s12, {j*64*2048}")
            a.e(f"buffer_load_dword v{4+j}, v1, s[8:11], s12 offen")
            a.e(f"buffer_load_dword v{8+j}, v2, s[8:11], s12 offen")
        a.e("s_waitcnt vmcnt(0)")
        for j in range(1, 4):
            a.e(f"v_min_u32 v4, v4, v{4+j}")
            if j0 < j < j1: a.e(f"v_{op}_u32 v{8+j0}, v{8+j0}, v{8+j}")
        a.e(f"v_mov_b32 v8, v{8+j0}")
        a.e("s_nop 1")
        a.e("v_readlane_b32 s12, v4, 0")
        a.e(f"v_readlane_b32 s13, v8, {xs[0] if xs else 0}")
        for l in range(1, 63):
            a.e(f"v_readlane_b32 s14, v4, {l}")
            a.e(f"v_readlane_b32 s15, v8, {l}")
            a.e("s_min_u32 s12, s12, s14")
            if not xs or l % 8 in xs: a.e(f"s_{op}_u32 s13, s13, s15")
        a.e("s_sub_u32 s12, s13, s12")
        a.e("s_min_u32 s12, s12, 8000")
        a.e("s_lshl_b32 s12, s12, 2")
        a.e("s_memrealtime s[14:15]")
        a.e("s_waitcnt lgkmcnt(0)")
        a.label("REP_L")
        a.e("s_memrealtime s[16:17]")
        a.e("s_waitcnt lgkmcnt(0)")
        a.e("s_sub_u32 s13, s16, s14")
        a.e("s_cmp_lt_u32 s13, s12")
        a.e("s_cbranch_scc1 REP_L")
        a.label("REP_END")
        a.e("s_endpgm")
    if cfg.align:
        a.lines, bad = align_pass(a.lines, "K2_LOOP" if cfg.align < 3 else "prep_kernel", "K2_CODE_END", cfg.align == 2)
        print("misaligned left:", bad, file=sys.stderr)
    body = a.text()
    probs = check_text(body)
    for p in probs: print("HAZARD", p, file=sys.stderr)
    k1lds = K1_LDS_B
    out = HEADER
    out += f"; @launch kernel=prep_kernel grid=(256,1,1) block=(512,1,1) lds={k1lds}\n"
    out += f"; @launch kernel={NAME}_kernel grid=(256,1,1) block=(512,1,1) lds={K2_LDS}\n"
    if cfg.rep: out += "; @launch kernel=rep_kernel grid=(1,1,1) block=(64,1,1) lds=0\n"
    out += '.amdgcn_target "amdgcn-amd-amdhsa--gfx950"\n' + body
    out += '.section .rodata,"a"\n.p2align 6\n' + kernel_desc("prep_kernel", 200 if cfg.dbg else 160, 96 if cfg.dbg else 80) + ".p2align 6\n" + kernel_desc(NAME + "_kernel", 256, 96)
    if cfg.rep: out += ".p2align 6\n" + kernel_desc("rep_kernel", 16, 32)
    return out

if __name__ == "__main__":
    outp = sys.argv[1]
    for kv in sys.argv[2:]:
        k, v = kv.split("=", 1)
        cur = getattr(cfg, k)
        setattr(cfg, k, (v not in ("0", "False")) if isinstance(cur, bool) else int(v, 0) if isinstance(cur, int) else v)
    open(outp, "w").write(generate())
```

```python
import sys
from asmlib import *

NAME = "gather_scatter__mpnn_edge_mlp__graph"
class Cfg:
    modeA = False
    wsoff = 0
    st_pol = "sc1"
    ld_pol = "nt"
    e_pol = ""
    prefetchP = 1
    pf0 = False
    early = True
    o_pol = "sc1"
    ot_pol = ""
    touch = 1
    etouch = 0
    epos = 1
    align = 1
    prio = 2
    bias = 14
    k1s = 0
    w3o = 0xAD0000
    lohi = 0
    gran = 0
    k1t = 0
    k1d = 0
    tlb = 0
    cw = 0
    g_pol = ''
    s_pol = ''
    owt = 1
    k1w = 0
    e1e = 0
    e0f = 0
    few = False
    spf = 0
    ratio = 0
    k1o = 0
    p_pol = 'sc1'
    pfm = 0
    pfmpos = 5
    pfe = 0
    et_pol = ''
    t1pos = 1
    pfn = 320
    pfpos = 1
    nw = '4,4,4,4'
    x_pol = ""
    dbg = False
    lst = False
    x = ""
    rep = ""
cfg = Cfg()

NB = 250; NPB = 50; CH = 1600
WS_P = 4096; WS_S01 = 0x320000; WS_REC = 0x900000; WS_OFFT = 0xA90000;  WS_WF = 0xAE0000
LOG2E_NEG = "0xbfb8aa3b"
LN2_NEG = "0xbf317218"

S_X, S_E, S_SRC, S_DST, S_WM, S_WU, S_OUT, S_DBG, S_WS = 4, 6, 8, 10, 12, 14, 16, 18, 20

def load_args(a):
    a.e("s_load_dwordx16 s[4:19], s[0:1], 0")
    a.e("s_load_dwordx2 s[20:21], s[0:1], 64")

def srd(a, d, ptr, off_s=None, off_c=0, size=0):
    if off_s is not None:
        a.e(f"s_add_u32 s{d}, s{ptr}, s{off_s}")
        a.e(f"s_addc_u32 s{d+1}, s{ptr+1}, 0")
        if off_c:
            a.e(f"s_add_u32 s{d}, s{d}, {off_c}")
            a.e(f"s_addc_u32 s{d+1}, s{d+1}, 0")
    elif off_c:
        a.e(f"s_add_u32 s{d}, s{ptr}, {off_c}")
        a.e(f"s_addc_u32 s{d+1}, s{ptr+1}, 0")
    else:
        a.e(f"s_mov_b32 s{d}, s{ptr}")
        a.e(f"s_mov_b32 s{d+1}, s{ptr+1}")
    a.e(f"s_mov_b32 s{d+2}, {size}")
    a.e(f"s_mov_b32 s{d+3}, 0x20000")

def idmap(a, dst, src, t, sh=5):
    a.e(f"s_and_b32 s{t}, s{src}, 7")
    a.e(f"s_lshr_b32 s{dst}, s{src}, 3")
    a.e(f"s_lshl_b32 s{t}, s{t}, {sh}")
    a.e(f"s_add_u32 s{dst}, s{dst}, s{t}")

def scan64(a, v):
    for sh in (1, 2, 4, 8):
        a.e("s_nop 1")
        a.e(f"v_add_u32_dpp v{v}, v{v}, v{v} row_shr:{sh} row_mask:0xf bank_mask:0xf bound_ctrl:0")
    a.e("s_nop 1")
    a.e(f"v_add_u32_dpp v{v}, v{v}, v{v} row_bcast:15 row_mask:0xa bank_mask:0xf")
    a.e("s_nop 1")
    a.e(f"v_add_u32_dpp v{v}, v{v}, v{v} row_bcast:31 row_mask:0xc bank_mask:0xf")

def x_dma(a, sX, sW, vL, lds_base, t0, st, pol="", strided=False):
    a.e(f"v_lshrrev_b32 v{t0}, 4, v{vL}")
    a.e(f"v_and_b32 v{t0+1}, 15, v{vL}")
    a.e(f"v_xor_b32 v{t0+1}, v{t0+1}, v{t0}")
    a.e(f"v_lshlrev_b32 v{t0+1}, 4, v{t0+1}")
    a.e(f"v_lshl_add_u32 v{t0}, v{t0}, 8, v{t0+1}")
    a.e(f"s_and_b32 s{st}, s{sW}, 1")
    a.e(f"s_lshl_b32 s{st}, s{st}, 7")
    a.e(f"v_xor_b32 v{t0}, s{st}, v{t0}")
    a.e(f"v_xor_b32 v{t0+1}, 64, v{t0}")
    if strided:
        a.e(f"s_lshr_b32 s{st+1}, s{sW}, 1")
        a.e(f"s_lshl_b32 s{st+1}, s{st+1}, 12")
        a.e(f"s_lshl_b32 s{st}, s{sW}, 11")
        a.e(f"s_add_u32 s{st+1}, s{st+1}, s{st}")
        a.e(f"s_add_u32 m0, s{st+1}, {lds_base}")
    else:
        a.e(f"s_lshl_b32 s{st}, s{sW}, 11")
        a.e(f"s_add_u32 m0, s{st}, {lds_base}")
    a.e("s_nop 0")
    a.e(f"buffer_load_dwordx4 v{t0}, s[{sX}:{sX+3}], s{st} offen {pol} lds")
    a.e(f"buffer_load_dwordx4 v{t0+1}, s[{sX}:{sX+3}], s{st} offen offset:1024 {pol} lds")

def w_lane_const(a, vW, vL, t):
    a.e(f"v_lshrrev_b32 v{t}, 4, v{vL}")
    a.e(f"v_and_b32 v{vW}, 15, v{vL}")
    a.e(f"v_lshlrev_b32 v{vW}, 4, v{vW}")
    a.e(f"v_lshlrev_b32 v{t+1}, 6, v{t}")
    a.e(f"v_xor_b32 v{vW}, v{vW}, v{t+1}")
    a.e(f"v_lshl_add_u32 v{vW}, v{t}, 8, v{vW}")

def w_dma(a, sSrd, vW, sW4096, goff, lds_base, st):
    a.e(f"s_add_u32 s{st}, s{sW4096}, {goff}")
    a.e(f"s_add_u32 m0, s{sW4096}, {lds_base}")
    a.e("s_nop 0")
    for i in range(4):
        o = f" offset:{1024*i}" if i else ""
        a.e(f"buffer_load_dwordx4 v{vW}, s[{sSrd}:{sSrd+3}], s{st} offen{o} lds")

def wfrag_const(a, vA, vL, sW, t, st):
    a.e(f"v_lshrrev_b32 v{t}, 5, v{vL}")
    a.e(f"v_bfe_u32 v{t+1}, v{vL}, 2, 2")
    a.e(f"v_lshl_add_u32 v{t}, v{t}, 3, v{t+1}")
    a.e(f"v_lshlrev_b32 v{vA}, 8, v{t}")
    a.e(f"v_and_b32 v{t}, 1, v{vL}")
    a.e(f"v_lshlrev_b32 v{t}, 5, v{t}")
    a.e(f"v_bfe_u32 v{t+2}, v{vL}, 1, 1")
    a.e(f"v_lshl_add_u32 v{t}, v{t+2}, 3, v{t}")
    a.e(f"v_bfe_u32 v{t+2}, v{vL}, 4, 1")
    a.e(f"v_lshl_add_u32 v{t}, v{t+2}, 4, v{t}")
    a.e(f"s_and_b32 s{st}, s{sW}, 3")
    a.e(f"s_lshl_b32 s{st}, s{st}, 6")
    a.e(f"v_add_u32 v{t}, s{st}, v{t}")
    a.e(f"v_lshlrev_b32 v{t+1}, 6, v{t+1}")
    a.e(f"v_xor_b32 v{t}, v{t}, v{t+1}")
    a.e(f"v_add_u32 v{vA}, v{vA}, v{t}")

def wfrag_read(a, dst, vAddr, off=0, stride=4096):
    for s in range(8):
        for u in range(2):
            r = (dst[s] if isinstance(dst, list) else dst + 4*s) + 2*u
            a.e(f"ds_read_b64_tr_b16 v[{r}:{r+1}], v{vAddr} offset:{off+s*stride+u*1024}")

def xfrag_read(a, dst, vL, sW, lds_base, t, st):
    a.e(f"v_and_b32 v{t}, 31, v{vL}")
    a.e(f"v_lshrrev_b32 v{t+1}, 5, v{vL}")
    a.e(f"v_and_b32 v{t+2}, 15, v{vL}")
    a.e(f"v_xor_b32 v{t+1}, v{t+1}, v{t+2}")
    a.e(f"v_lshlrev_b32 v{t+1}, 4, v{t+1}")
    a.e(f"v_lshl_add_u32 v{t}, v{t}, 8, v{t+1}")
    a.e(f"s_lshr_b32 s{st}, s{sW}, 2")
    a.e(f"s_lshl_b32 s{st}, s{st}, 13")
    a.e(f"s_add_u32 s{st}, s{st}, {lds_base}")
    a.e(f"v_add_u32 v{t}, s{st}, v{t}")
    for s in range(8):
        if s == 0:
            a.e(f"ds_read_b128 v[{dst}:{dst+3}], v{t}")
        else:
            r = t + 1 + (s & 1)
            a.e(f"v_xor_b32 v{r}, {32*s}, v{t}")
            a.e(f"ds_read_b128 v[{dst+4*s}:{dst+4*s+3}], v{r}")

def gemm8(a, acc, A, B, zero=True):
    for s in range(8):
        c = "0" if (s == 0 and zero) else f"v[{acc}:{acc+15}]"
        r = A[s] if isinstance(A, list) else A + 4*s
        a.e(f"v_mfma_f32_32x32x16_bf16 v[{acc}:{acc+15}], v[{r}:{r+3}], v[{B+4*s}:{B+4*s+3}], {c}")

WS_DBG = 0x2000000
def stamp(a, i, vst):
    if not cfg.dbg: return
    if cfg.few and not (i in (0, 1, 2, 3) if vst == 197 else i in (7, 8, 9, 12)): return
    a.e("s_memrealtime s[90:91]")
    a.e("s_waitcnt lgkmcnt(0)")
    a.e(f"v_writelane_b32 v{vst}, s90, {i}")
def stamp_out(a, vst, vt, kidx):
    if not cfg.dbg: return
    srd(a, 92, S_WS, off_c=WS_DBG + kidx * 0x100000, size=0x100000)
    a.e(f"s_lshl_b32 s90, s2, 11")
    a.e(f"v_lshl_add_u32 v{vt}, v0, 2, s90")
    a.e(f"buffer_store_dword v{vst}, v{vt}, s[92:95], 0 offen")

def kernel_head(a, name):
    a.e(".text")
    a.e(f".globl {name}")
    a.e(".p2align 8")
    a.e(f".type {name},@function")
    a.label(name)

def kernel_desc(name, vg, sg):
    acc = (vg + 3) // 4 * 4
    return f""".amdhsa_kernel {name}
  .amdhsa_next_free_vgpr {vg}
  .amdhsa_next_free_sgpr {sg}
  .amdhsa_accum_offset {acc}
  .amdhsa_group_segment_fixed_size 0
  .amdhsa_kernarg_size 72
  .amdhsa_user_sgpr_count 2
  .amdhsa_user_sgpr_kernarg_segment_ptr 1
  .amdhsa_system_sgpr_workgroup_id_x 1
.end_amdhsa_kernel
"""

K1_LDS_A = 16384 + 57344
K1_LDS_B = 65536 + 96*272
def gen_k1(a):
    kernel_head(a, "prep_kernel")
    load_args(a)
    sW, sId, sT = 22, 23, 44
    vL = 1
    a.e(f"v_and_b32 v{vL}, 63, v0")
    a.e(f"v_lshrrev_b32 v2, 6, v0")
    a.e("s_nop 0")
    a.e(f"v_readfirstlane_b32 s{sW}, v2")
    if cfg.dbg: a.e("v_mov_b32 v197, 0")
    stamp(a, 0, 197)
    if cfg.dbg:
        a.e("s_getreg_b32 s90, hwreg(HW_REG_XCC_ID)")
        a.e("s_add_u32 s90, s90, 1")
        a.e("v_writelane_b32 v197, s90, 63")
    if cfg.k1d: a.e(f"s_sleep {cfg.k1d}")
    a.e(f"s_mov_b32 s{sId}, s2")
    a.e("s_cmp_lt_u32 s2, 120")
    a.e("s_cbranch_scc1 K1_BIN")
    a.e(f"s_sub_u32 s{sId}, s2, 3")
    a.e("s_sub_u32 s3, s2, 123")
    a.e("s_cmp_lt_u32 s3, 5")
    a.e("s_cbranch_scc1 K1_BIN")
    a.e("s_cmp_ge_u32 s2, 256")
    a.e("s_cbranch_scc1 K1_END")
    a.e(f"s_and_b32 s{sT}, s2, 7")
    a.e(f"s_lshr_b32 s{sId}, s2, 3")
    a.e(f"s_lshl4_add_u32 s{sId}, s{sT}, s{sId}")
    a.e(f"s_min_u32 s{sT}, s{sT}, 2")
    a.e(f"s_add_u32 s{sId}, s{sId}, s{sT}")
    a.e(f"s_sub_u32 s{sId}, s{sId}, 15")
    a.e(f"s_mul_i32 s{sT+2}, s{sId}, 24576")
    a.e(f"s_sub_u32 s{sT+4}, 3200000, s{sT+2}")
    a.e(f"s_min_u32 s{sT+4}, s{sT+4}, 24576")
    a.e(f"v_lshrrev_b32 v2, 4, v{vL}")
    a.e(f"v_and_b32 v3, 15, v{vL}")
    a.e(f"v_xor_b32 v3, v3, v2")
    a.e(f"v_lshlrev_b32 v3, 4, v3")
    a.e(f"v_lshl_add_u32 v16, v2, 8, v3")
    for i in range(1, 4): a.e(f"v_xor_b32 v{16+i}, {64*i}, v16")
    w_lane_const(a, 4, vL, 5)
    a.e(f"s_lshl_b32 s{sT+3}, s{sW}, 12")
    a.e("s_waitcnt lgkmcnt(0)")
    if cfg.k1t == 2:
        srd(a, 32, S_WS, off_s=sT+2, off_c=cfg.wsoff + WS_P, size=f"s{sT+4}")
        a.e(f"v_lshlrev_b32 v30, 12, v0")
        a.e(f"buffer_load_dword v31, v30, s[32:35], 0 offen")
    def xl():
        a.e(f"s_mov_b32 m0, s{sT+3}")
        srd(a, 24, S_X, off_s=sT+2, size=f"s{sT+4}")
        for i in range(4):
            o = f" offset:{1024*i}" if i else ""
            a.e(f"buffer_load_dwordx4 v{16+i}, s[24:27], s{sT+3} offen{o} {cfg.x_pol} lds")
    def wl():
        srd(a, 28, S_WM, size=32768)
        w_dma(a, 28, 4, sT+3, 0, 32768, sT)
    xl(); wl()
    srd(a, 32, S_WS, off_s=sT+2, off_c=cfg.wsoff + WS_P, size=f"s{sT+4}")
    if cfg.k1t == 1:
        a.e(f"v_lshlrev_b32 v30, 12, v0")
        a.e(f"buffer_load_dword v31, v30, s[32:35], 0 offen")
    if cfg.k1s == 1:
        a.e("s_lshl_b32 s67, s2, 10")
        srd(a, 68, S_WS, off_s=67, off_c=cfg.wsoff + 0x710000, size=1024)
        a.e("v_lshlrev_b32 v28, 4, v0")
        a.e(f"buffer_store_dwordx4 v[28:31], v28, s[68:71], 0 offen {cfg.st_pol}")
    if cfg.k1s == 2:
        a.e("v_lshlrev_b32 v28, 12, v0")
        a.e(f"buffer_store_dword v28, v28, s[32:35], 0 offen {cfg.st_pol}")
    wfrag_const(a, 8, vL, sW, 9, sT)
    OT = 65536
    a.e(f"v_and_b32 v12, 31, v{vL}")
    a.e(f"v_lshrrev_b32 v13, 5, v{vL}")
    a.e(f"v_and_b32 v15, 15, v{vL}")
    a.e(f"v_xor_b32 v15, v15, v13")
    a.e(f"v_lshlrev_b32 v15, 4, v15")
    a.e(f"v_lshl_add_u32 v15, v12, 8, v15")
    a.e(f"s_lshr_b32 s{sT}, s{sW}, 2")
    a.e(f"s_lshl_b32 s{sT+1}, s{sT}, 14")
    a.e(f"v_add_u32 v20, s{sT+1}, v15")
    for st in range(1, 8): a.e(f"v_xor_b32 v{20+st}, {32*st}, v20")
    if cfg.k1w:
        a.e(f"v_lshlrev_b32 v13, 5, v13")
        a.e(f"v_mul_u32_u24 v12, 80, v12")
        a.e(f"s_mul_i32 s{sT+5}, s{sW}, {32*80}")
        a.e(f"s_add_u32 s{sT+5}, s{sT+5}, {OT}")
        a.e(f"v_add3_u32 v12, s{sT+5}, v12, v13")
        a.e(f"v_lshrrev_b32 v13, 2, v{vL}")
        a.e(f"v_and_b32 v15, 3, v{vL}")
        a.e(f"v_lshlrev_b32 v15, 4, v15")
        a.e(f"v_lshl_add_u32 v14, v13, 8, v15")
        a.e(f"v_mul_u32_u24 v13, 80, v13")
        a.e(f"v_add3_u32 v13, v13, v15, s{sT+5}")
        a.e(f"s_lshl_b32 s{sT}, s{sT}, 14")
        a.e(f"s_and_b32 s{sT+1}, s{sW}, 3")
        a.e(f"s_lshl_b32 s{sT+1}, s{sT+1}, 6")
        a.e(f"v_add_u32 v14, s{sT}, v14")
        a.e(f"v_add_u32 v14, s{sT+1}, v14")
        a.e("s_movk_i32 s65, 4096\ns_movk_i32 s66, 12288")
    else:
        a.e(f"v_lshlrev_b32 v13, 5, v13")
        a.e(f"v_mul_u32_u24 v12, 272, v12")
        a.e(f"s_mul_i32 s{sT}, s{sT}, {64*272}")
        a.e(f"s_and_b32 s{sT+1}, s{sW}, 3")
        a.e(f"s_lshl_b32 s{sT+1}, s{sT+1}, 6")
        a.e(f"s_add_u32 s{sT}, s{sT}, s{sT+1}")
        a.e(f"s_add_u32 s{sT}, s{sT}, {OT}")
        a.e(f"v_add3_u32 v12, s{sT}, v12, v13")
        a.e(f"v_lshrrev_b32 v13, 4, v0")
        a.e(f"v_lshlrev_b32 v14, 4, v0")
        a.e(f"v_lshl_add_u32 v13, v13, 4, v14")
        a.e(f"v_add_u32 v13, {OT}, v13")
    a.e(f"s_mov_b32 s{sT}, {LOG2E_NEG}")
    a.e(f"s_mov_b32 s{sT+1}, {LOG2E_NEG}")
    a.e("s_movk_i32 s62, 8192\ns_movk_i32 s63, 16384\ns_movk_i32 s64, 24576")
    WF, X0, X1, A0, A1 = 32, 64, 96, 128, 144
    def rw(st):
        for u in range(2):
            a.e(f"ds_read_b64_tr_b16 v[{WF+4*st+2*u}:{WF+4*st+2*u+1}], v8 offset:{32768+st*4096+u*1024}")
    def rx0(st): a.e(f"ds_read_b128 v[{X0+4*st}:{X0+4*st+3}], v{20+st}")
    def mm(A, X, st):
        c = "0" if st == 0 else f"v[{A}:{A+15}]"
        a.e(f"v_mfma_f32_32x32x16_bf16 v[{A}:{A+15}], v[{WF+4*st}:{WF+4*st+3}], v[{X+4*st}:{X+4*st+3}], {c}")
    def fin(b, A):
        for i in range(8):
            a.e(f"v_pk_mul_f32 v[{A+2*i}:{A+2*i+1}], v[{A+2*i}:{A+2*i+1}], s[{sT}:{sT+1}]")
        for i in range(8):
            a.e(f"v_cvt_pk_bf16_f32 v{A+i}, v{A+2*i}, v{A+1+2*i}")
        if cfg.k1w and b:
            a.e("s_waitcnt lgkmcnt(0)")
            st2(0)
            a.e("v_add_u32 v14, s62, v14")
            b = 0
        if cfg.k1w:
            a.e(f"ds_write_b128 v12, v[{A}:{A+3}]")
            a.e(f"ds_write_b128 v12, v[{A+4}:{A+7}] offset:16")
            a.e(f"ds_read_b128 v[{48+8*b}:{51+8*b}], v13")
            a.e(f"ds_read_b128 v[{52+8*b}:{55+8*b}], v13 offset:{16*80}")
        else:
            a.e(f"ds_write_b128 v12, v[{A}:{A+3}] offset:{b*32*272}")
            a.e(f"ds_write_b128 v12, v[{A+4}:{A+7}] offset:{b*32*272+16}")
    def st2(b):
        for j in range(2):
            a.e(f"buffer_store_dwordx4 v[{48+8*b+4*j}:{51+8*b+4*j}], v14, s[32:35], {['0','s65','s62','s66'][2*b+j]} offen {cfg.p_pol}")
    a.e(f"s_cmp_ge_u32 s{sW}, 4")
    a.e(f"s_waitcnt vmcnt({4 + (cfg.k1t == 1) + (cfg.k1s > 0)})")
    a.e("s_barrier")
    for st in range(8): rx0(st)
    a.e("s_cbranch_scc1 K1_NX1")
    for st in range(8):
        a.e(f"ds_read_b128 v[{X1+4*st}:{X1+4*st+3}], v{20+st} offset:8192")
    a.label("K1_NX1")
    a.e(f"s_waitcnt vmcnt({int(cfg.k1t == 1) + (cfg.k1s > 0)})")
    stamp(a, 1, 197)
    a.e("s_barrier")
    for st in range(8): rw(st)
    for st in range(8):
        a.e(f"s_waitcnt lgkmcnt({14-2*st})")
        mm(A0, X0, st)
    a.e("s_cbranch_scc1 K1_NX2")
    for st in range(8): mm(A1, X1, st)
    a.e("s_nop 2")
    fin(0, A0)
    fin(1, A1)
    a.e("s_branch K1_NX3")
    a.label("K1_NX2")
    a.e("s_nop 10")
    fin(0, A0)
    a.label("K1_NX3")
    a.e("s_waitcnt vmcnt(0) lgkmcnt(0)" if cfg.k1s == 2 else "s_waitcnt lgkmcnt(0)")
    if cfg.k1w:
        st2(0)
    else:
        a.e("s_barrier")
        for j in range(3):
            a.e(f"ds_read_b128 v[{48+4*j}:{51+4*j}], v13 offset:{j*32*272}")
        for j in range(3):
            a.e(f"s_waitcnt lgkmcnt({2-j})")
            a.e(f"buffer_store_dwordx4 v[{48+4*j}:{51+4*j}], v14, s[32:35], {['0','s62','s63'][j]} offen {cfg.p_pol}")
    stamp(a, 2, 197)
    if cfg.dbg: a.e("s_waitcnt vmcnt(0)")
    stamp(a, 3, 197)
    stamp_out(a, 197, 198, 0)
    a.e("s_endpgm")
    SL, FLAG, SORT = 0, 36864, 36880
    a.label("K1_BIN")
    a.e(f"s_mul_i32 s{sT+2}, s{sId}, 12800")
    a.e(f"s_lshl_b32 s{sT+3}, s{sId}, 15")
    a.e("v_lshlrev_b32 v2, 4, v0")
    a.e("s_movk_i32 s3, 6400")
    a.e("s_movk_i32 s59, 400")
    a.e("v_cmp_gt_u32 s[60:61], s59, v0")
    a.e("s_waitcnt lgkmcnt(0)")
    D, S, BA, RK, AD = 4, 12, 20, 28, 36
    srd(a, 24, S_DST, off_s=sT+2, size=12800)
    a.e(f"buffer_load_dwordx4 v[{D}:{D+3}], v2, s[24:27], 0 offen {cfg.ld_pol}")
    a.e(f"buffer_load_dwordx4 v[{D+4}:{D+7}], v2, s[24:27], s3 offen {cfg.ld_pol}")
    srd(a, 28, S_SRC, off_s=sT+2, size=12800)
    a.e(f"buffer_load_dwordx4 v[{S}:{S+3}], v2, s[28:31], 0 offen {cfg.ld_pol}")
    a.e(f"buffer_load_dwordx4 v[{S+4}:{S+7}], v2, s[28:31], s3 offen {cfg.ld_pol}")
    srd(a, 32, S_WS, off_s=sT+3, off_c=cfg.wsoff + WS_S01, size=32768)
    if cfg.k1s == 1:
        a.e("s_lshl_b32 s67, s2, 10")
        srd(a, 68, S_WS, off_s=67, off_c=cfg.wsoff + 0x710000, size=1024)
        a.e("v_lshlrev_b32 v92, 4, v0")
        a.e(f"buffer_store_dwordx4 v[92:95], v92, s[68:71], 0 offen {cfg.st_pol}")
    if cfg.k1s == 2:
        a.e("v_lshlrev_b32 v92, 12, v0")
        a.e(f"buffer_store_dword v92, v92, s[32:35], 0 offen {cfg.st_pol}")
    a.e("v_mov_b32 v44, 1")
    a.e("v_min_u32 v3, 256, v0")
    a.e("v_mul_u32_u24 v3, 144, v3")
    a.e(f"ds_write_b32 v3, v44 offset:{SL}")
    a.e("v_lshlrev_b32 v45, 22, v0")
    a.e("s_movk_i32 s58, 10700")
    a.e("s_movk_i32 s57, 144")
    if cfg.lohi:
        a.e("v_lshrrev_b32 v86, 2, v0")
        a.e("v_mul_u32_u24 v86, 144, v86")
        a.e("v_and_b32 v46, 3, v0")
        a.e("v_lshl_add_u32 v46, v46, 4, v86")
    else:
        a.e("v_lshrrev_b32 v46, 3, v0")
        a.e("v_lshl_add_u32 v46, v46, 4, v2")
    a.e(f"v_mov_b32 v48, {FLAG}")
    if cfg.gran:
        a.e("v_lshrrev_b32 v86, 3, v0")
        a.e("v_mul_u32_u24 v86, 144, v86")
        a.e(f"v_and_b32 v87, {8 - cfg.gran // 16}, v0")
        a.e("v_lshlrev_b32 v87, 2, v87")
    a.e("s_movk_i32 s62, 8192\ns_movk_i32 s63, 16384\ns_movk_i32 s64, 24576")
    a.e("s_waitcnt lgkmcnt(0)")
    a.e("s_barrier")
    if True:
        a.e(f"s_cmp_lg_u32 s{sW}, 7")
        a.e("s_cbranch_scc1 K1_NOTOUCH")
        if cfg.k1t:
            a.e(f"v_lshlrev_b32 v84, 12, v{vL}")
            a.e(f"buffer_load_dword v85, v84, s[32:35], 0 offen")
        a.e("s_cmp_ge_u32 s2, 124")
        a.e("s_cbranch_scc1 K1_W3")
        a.e(f"s_lshr_b32 s{sT}, s2, 3")
        a.e(f"v_lshlrev_b32 v70, 7, v{vL}")
        if cfg.touch & 1:
            srd(a, 72, S_WM, off_c=32768, size=32768)
            srd(a, 76, S_WU, size=65536)
            a.e(f"s_mul_i32 s{sT+1}, s{sT}, {18*128}")
            a.e("s_mov_b64 exec, 0x3ffff")
            a.e(f"buffer_load_dword v71, v70, s[72:75], s{sT+1} offen")
            a.e(f"s_mul_i32 s{sT+1}, s{sT}, {35*128}")
            a.e("s_mov_b32 exec_lo, -1\ns_mov_b32 exec_hi, 7")
            a.e(f"buffer_load_dword v72, v70, s[76:79], s{sT+1} offen")
        if cfg.touch & 2:
            a.e("s_mov_b64 exec, 0x1ff")
            a.e("s_getpc_b64 s[68:69]")
            a.label("K1_PC")
            a.e(f"s_add_u32 s68, s68, {NAME}_kernel-K1_PC")
            a.e("s_addc_u32 s69, s69, 0")
            a.e(f"s_mul_i32 s{sT+1}, s{sT}, {9*128}")
            a.e(f"v_add_u32 v74, s{sT+1}, v70")
            a.e(f"v_min_u32 v74, K2_CODE_END-{NAME}_kernel-4, v74")
            a.e("v_mov_b32 v75, s69")
            a.e("v_add_co_u32 v74, vcc, s68, v74")
            a.e("s_nop 1")
            a.e("v_addc_co_u32 v75, vcc, 0, v75, vcc")
            a.e("global_load_dword v73, v[74:75], off")
        a.e("s_mov_b64 exec, -1")
        a.e("s_branch K1_B2")
        a.label("K1_NOTOUCH")
    a.e("s_mov_b64 exec, s[60:61]")
    for j in range(2):
        a.e(f"s_waitcnt vmcnt({3 - j + (cfg.k1s > 0)})")
        if j == 0: stamp(a, 1, 197)
        for i in range(4*j, 4*j+4):
            a.e(f"v_mul_u32_u24 v{AD+i}, s58, v{D+i}")
            a.e(f"v_lshrrev_b32 v{AD+i}, 19, v{AD+i}")
            a.e(f"v_mul_u32_u24 v{BA+i}, s57, v{AD+i}")
            a.e(f"ds_add_rtn_u32 v{RK+i}, v{BA+i}, v44 offset:{SL}")
    for i in range(8):
        a.e(f"v_mul_u32_u24 v{AD+i}, 49, v{AD+i}")
        a.e(f"v_sub_u32 v{D+i}, v{D+i}, v{AD+i}")
        if i: a.e(f"v_add_u32 v45, {hex(((1600-3) if i == 4 else 1) << 20)}, v45")
        a.e(f"v_or_b32 v{D+i}, v{D+i}, v45")
    a.e(f"s_waitcnt vmcnt({int(cfg.k1s > 0)})")
    stamp(a, 4, 197)
    for i in range(8):
        a.e(f"s_waitcnt lgkmcnt(7)")
        a.e(f"v_min_u32 v{AD+i}, 32, v{RK+i}")
        a.e(f"v_lshl_or_b32 v{D+i}, v{S+i}, 6, v{D+i}")
        a.e(f"v_lshl_add_u32 v{AD+i}, v{AD+i}, 2, v{BA+i}")
        a.e(f"ds_write_b32 v{AD+i}, v{D+i} offset:{SL}")
    a.e(f"v_max3_u32 v47, v{RK}, v{RK+1}, v{RK+2}")
    a.e(f"v_max3_u32 v47, v47, v{RK+3}, v{RK+4}")
    a.e(f"v_max3_u32 v47, v47, v{RK+5}, v{RK+6}")
    a.e(f"v_max_u32 v47, v47, v{RK+7}")
    a.e("v_cmpx_le_u32 vcc, 32, v47")
    a.e("ds_write_b32 v48, v47")
    a.e("s_mov_b64 exec, -1")
    a.e("s_waitcnt vmcnt(0) lgkmcnt(0)" if cfg.k1s == 2 else "s_waitcnt lgkmcnt(0)")
    stamp(a, 5, 197)
    a.label("K1_B2")
    a.e("s_barrier")
    stamp(a, 6, 197)
    if cfg.lohi:
        for j in range(4):
            a.e(f"ds_read_b128 v[{52+4*j}:{55+4*j}], v46 offset:{SL + (j&1)*128*144 + (j>>1)*64}")
        a.e(f"ds_read_b32 v49, v48")
        for j in range(4):
            a.e(f"s_waitcnt lgkmcnt({4-j})")
            if j < 2: a.e(f"v_mov_b32_dpp v{88+j}, v{52+4*j} quad_perm:[0,0,0,0] row_mask:0xf bank_mask:0xf")
            else: a.e(f"v_cmpx_lt_u32 vcc, 16, v{86+j}")
            a.e(f"buffer_store_dwordx4 v[{52+4*j}:{55+4*j}], v2, s[32:35], {['0','s62','s63','s64'][j]} offen {cfg.st_pol}")
            if j >= 2: a.e("s_mov_b64 exec, -1")
        a.e("s_nop 0")
    else:
        for j in range(4):
            if cfg.gran: a.e(f"ds_read_b32 v{88+j}, v86 offset:{SL + j*9216}")
            a.e(f"ds_read_b128 v[{52+4*j}:{55+4*j}], v46 offset:{SL + j*9216}")
        a.e(f"ds_read_b32 v49, v48")
        for j in range(4):
            a.e(f"s_waitcnt lgkmcnt({7-2*j if cfg.gran else 4-j})")
            if cfg.gran: a.e(f"v_cmpx_lt_u32 vcc, v87, v{88+j}")
            a.e(f"buffer_store_dwordx4 v[{52+4*j}:{55+4*j}], v2, s[32:35], {['0','s62','s63','s64'][j]} offen {cfg.st_pol}")
            if cfg.gran: a.e("s_mov_b64 exec, -1")
        if cfg.gran: a.e("s_nop 0")
    a.e("s_waitcnt lgkmcnt(0)")
    a.e("v_readfirstlane_b32 s3, v49")
    a.e("s_cmp_lg_u32 s3, 1")
    a.e("s_cbranch_scc1 K1_FULL")
    stamp(a, 2, 197)
    if cfg.dbg: a.e("s_waitcnt vmcnt(0)")
    stamp(a, 3, 197)
    stamp_out(a, 197, 198, 0)
    a.label("K1_END")
    a.e("s_endpgm")
    a.label("K1_FULL")
    a.e("s_waitcnt vmcnt(0)")
    a.e(f"s_lshl_b32 s{sT+4}, s{sId}, 2")
    srd(a, 32, S_WS, off_s=sT+2, off_c=cfg.wsoff + WS_REC, size=12800)
    srd(a, 36, S_WS, off_s=sT+4, off_c=cfg.wsoff + WS_OFFT, size=255*1024 + 4)
    a.e(f"v_mul_u32_u24 v3, {4*144}, v{vL}")
    for i in range(4):
        a.e(f"ds_read_b32 v{52+i}, v3 offset:{SL + 144*i}")
    a.e("s_waitcnt lgkmcnt(0)")
    for i in range(4):
        a.e(f"v_add_u32 v{52+i}, -1, v{52+i}")
    a.e("v_add_u32 v56, v52, v53")
    a.e("v_add_u32 v57, v56, v54")
    a.e("v_add_u32 v58, v57, v55")
    a.e("v_mov_b32 v60, v58")
    scan64(a, 60)
    a.e("v_sub_u32 v60, v60, v58")
    a.e("v_add_u32 v61, v60, v52")
    a.e("v_add_u32 v62, v60, v56")
    a.e("v_add_u32 v63, v60, v57")
    for i in range(4):
        a.e(f"ds_write_b32 v3, v{60+i} offset:{SL + 144*i + 132}")
    a.e(f"s_cmp_lg_u32 s{sW}, 7")
    a.e("s_cbranch_scc1 K1_NOFFT")
    a.e(f"v_lshlrev_b32 v59, 12, v{vL}")
    for i in range(4):
        o = f" offset:{1024*i}" if i else ""
        a.e(f"buffer_store_dword v{60+i}, v59, s[36:39], 0 offen{o}")
    a.label("K1_NOFFT")
    a.e("s_mov_b64 exec, s[60:61]")
    a.e("s_waitcnt lgkmcnt(0)")
    for i in range(8):
        a.e(f"ds_read_b32 v{BA+i}, v{BA+i} offset:{SL + 132}")
    a.e("s_waitcnt lgkmcnt(0)")
    for i in range(8):
        a.e(f"v_add_lshl_u32 v{BA+i}, v{BA+i}, v{RK+i}, 2")
        a.e(f"ds_write_b32 v{BA+i}, v{D+i} offset:{SORT - 4}")
    a.e("s_mov_b64 exec, -1")
    a.e("s_waitcnt lgkmcnt(0)")
    a.e("s_barrier")
    a.e(f"ds_read_b128 v[4:7], v2 offset:{SORT}")
    a.e(f"ds_read_b128 v[8:11], v2 offset:{SORT + 8192}")
    a.e(f"s_waitcnt lgkmcnt(0)")
    a.e(f"buffer_store_dwordx4 v[4:7], v2, s[32:35], 0 offen")
    a.e(f"buffer_store_dwordx4 v[8:11], v2, s[32:35], s62 offen")
    a.e("s_endpgm")
    a.label("K1_W3")
    a.e(f"s_sub_u32 s{sT}, s2, 124")
    srd(a, 72, S_WM, off_c=65536, size=4096)
    srd(a, 76, S_WS, off_c=cfg.wsoff + cfg.w3o, size=4096)
    a.e(f"v_and_b32 v70, 31, v{vL}")
    a.e("v_lshlrev_b32 v70, 1, v70")
    a.e(f"v_lshrrev_b32 v71, 5, v{vL}")
    a.e("v_lshl_add_u32 v70, v71, 11, v70")
    a.e(f"s_lshl_b32 s{sT+1}, s{sT}, 6")
    for j in range(8):
        o = f" offset:{256*j}" if j else ""
        a.e(f"buffer_load_ushort v{72+j}, v70, s[72:75], s{sT+1} offen{o}")
    a.e(f"s_lshl_b32 s{sT+1}, s{sT}, 10")
    a.e(f"s_mov_b32 s{sT}, {LOG2E_NEG}")
    a.e(f"v_lshlrev_b32 v71, 4, v{vL}")
    a.e("s_waitcnt vmcnt(0)")
    for j in range(8):
        a.e(f"v_lshlrev_b32 v{72+j}, 16, v{72+j}")
        a.e(f"v_mul_f32 v{72+j}, s{sT}, v{72+j}")
    for j in range(4):
        a.e(f"v_cvt_pk_bf16_f32 v{80+j}, v{72+2*j}, v{73+2*j}")
    a.e(f"buffer_store_dwordx4 v[80:83], v71, s[76:79], s{sT+1} offen {cfg.st_pol}")
    a.e("s_branch K1_B2")

CNT, FLG, LUT, QL, LIST, AGG, SIDE, WU2, STG = 0, 256, 288, 576, 13776, 30800, 56672, 65536, 98304
MAXT = 65
K2_LDS = 163840
vL, vM = 1, 2
vOC, vREM, vROFF, vEB = 3, 4, 5, 6
vAE, vAP, vAQ = 7, 8, 9
vCP, vRP0, vRP1, vCQ, vCL, vCA, vH16, vFA = 10, 11, 12, 13, 14, 15, 16, 17
vPA = 144
vEA, vLA = 20, 21
vQA = 22
vRS = 148
vC4 = 152
ACC = 156
vRN = 28
vRE = 30
vSD = 31
vCUR = 32
vCHK = 34
vWC, vWA = 35, 36
vPF = 38
vT = 40
Z = 64; PX = 128; PY = 128; QX = 160; QY = 168; EE = 176; AQ = 184; AP = 188; IDX = 192; W3 = 196
NN = 212; DD = 220; EX = 228; TT = 232; ACX = 236
sP, sE, sX, sO, sR, sWm, sWu, sOT = 24, 28, 32, 36, 40, 44, 48, 52
sW, sBin, sNT, sCnt, sG0, sG1, sG2, sLim, sDone, sSafe, sW4k, sM0, sMask, sMore, sFirst, sDm = 22, 23, 56, 57, 58, 59, 60, 61, 62, 63, 64, 65, 66, 67, 68, 69
sT = 70
sX0 = 80
sSusp = 88
sF0, sF1 = 32, 34
sMA, sMB, sL, sEX = 58, 59, 60, 52
PSIZE = 12500 * 256 + 3072
s256 = 79
ESIZE = 400000 * 32

def dma_m0(H, dest=None):
    if dest is None: dest = H
    return f"s_add_u32 m0, s{sW4k}, {WU2 - 128*H}" if dest == "alt" else f"s_add_u32 m0, s{sM0}, {dest*4096 - 128*H + 256}"
def dma_ld(H):
    out = []
    for j in range(4):
        imm = 1024 * j + 128 * H
        o = f" offset:{imm}" if imm else ""
        out.append(f"buffer_load_dwordx4 v{vPA+j}, s[{sP}:{sP+3}], 0 offen{o} {cfg.g_pol} lds")
    return out
def dma_ops(H, dest=None):
    l = dma_ld(H)
    return [[dma_m0(H, dest), "s_nop 0", l[0]], [l[1]], [l[2]], [l[3]]]
def dma_half(a, H, dest=None):
    for s in sum(dma_ops(H, dest), []): a.e(s)
def pfrag_reads(dst, H, va=None):
    out = []
    va = vRP0 if va is None else va
    for tq in range(2):
        for q in range(4):
            r = dst + 8 * tq + 2 * q
            out.append(f"ds_read_b64_tr_b16 v[{r}:{r+1}], v{va+tq} offset:{H*4096 + q*512}")
    return out
def qfrag_reads(dst, H, par):
    out = []
    for tq in range(2):
        for u in range(2):
            r = dst + 4 * tq + 2 * u
            out.append(f"ds_read_b64_tr_b16 v[{r}:{r+1}], v{vQA+2*par+u} offset:{(2*H+tq)*64}")
    return out
def list_reads_se(o=0):
    return [f"ds_read_b32 v{vRE}, v{vAE} offset:{128*o}", f"ds_read2_b32 v[{vRS}:{vRS+1}], v{vAP} offset0:{32*o} offset1:{32*o+8}", f"ds_read2_b32 v[{vRS+2}:{vRS+3}], v{vAP} offset0:{32*o+16} offset1:{32*o+24}"]
def list_reads_n(o=0):
    return [f"ds_read_u16 v{vRN}, v{vAQ} offset:{128*o}", f"ds_read_u16 v{vRN+1}, v{vAQ} offset:{128*o+64}"]
def addr_p():
    return [f"v_mad_u32_u16 v{vPA+j}, v{vRS+j}, s{s256}, v{vC4+j}" for j in range(4)]
def addr_e():
    return [f"v_and_or_b32 v{vEA}, v{vRE}, s{sMask}, v{18 if 'ehalf' in cfg.x else vH16}"]
def addr_l():
    return [f"v_and_or_b32 v{vLA}, v{vRE}, 16, v{vCL}", f"v_cmp_gt_i32 vcc, 0, v{vRE}"]
def addr_se():
    return addr_p() + addr_e() + addr_l()
def flags_from_vcc(sF):
    if "nf2" in cfg.x: return [f"s_mov_b32 s{sF}, 0", f"s_mov_b32 s{sF+1}, 0"]
    return [f"s_lshr_b32 s{sF+1}, vcc_lo, 4", f"s_mov_b32 s{sF}, vcc_lo", f"s_or_b32 s{sF+1}, s{sF+1}, vcc_lo", f"s_or_b32 s{sF+1}, s{sF+1}, s{sSafe}"]
def addr_q(par):
    return [f"v_add_u32 v{vQA+2*par}, v{vRN}, v{vCQ}", f"v_add_u32 v{vQA+2*par+1}, v{vRN+1}, v{vCQ}"]
def e_load(par):
    return f"buffer_load_dwordx4 v[{EE+4*par}:{EE+4*par+3}], v{vEA}, s[{sE}:{sE+3}], 0 offen {cfg.e_pol}"
def mfmas(c0, Pset, Qset, epar):
    out = []
    zz = lambda c: f"v[{Z+16*c}:{Z+16*c+15}]"
    f4 = lambda r: f"v[{r}:{r+3}]"
    M = "v_mfma_f32_32x32x16_bf16"
    for i in range(2): out.append(f"{M} {zz(c0+i)}, {f4(EE+4*epar)}, {f4(W3+4*(c0+i))}, 0")
    for i in range(2): out.append(f"{M} {zz(c0+i)}, {f4(AQ)}, {f4(Qset+4*i)}, {zz(c0+i)}")
    for i in range(2): out.append(f"v_smfmac_f32_32x32x32_bf16 {zz(c0+i)}, {f4(AP)}, v[{Pset+8*i}:{Pset+8*i+7}], v{IDX}")
    return out
p2 = lambda r: f"v[{r}:{r+1}]"
def flush_code(a, c0, X, mid=(), wait=True, chk=()):
    t = vT + 8 * X
    for i in range(2):
        c = c0 + i
        a.e(f"v_rcp_f32 v{t+2*i}, v{DD+2*c}")
        a.e(f"v_rcp_f32 v{t+2*i+1}, v{DD+2*c+1}")
    for s in chk: a.e(s)
    for i in range(2):
        c = c0 + i
        a.e(f"v_max3_f32 v{vCHK}, v{DD+2*c}, v{DD+2*c+1}, v{vCHK}")
    for s in mid: a.e(s)
    if wait: a.e("s_waitcnt lgkmcnt(0)")
    for j in range(2):
        for i in range(2):
            c = c0 + i
            a.e(f"v_fmac_f32 v{ACC+c}, v{NN+2*c+j}, v{t+2*i+j}")

def half_step(a, ool, X, par, extras, tag):
    c0 = 2 * X
    sF0 = (32, 34)[par]
    if X == 0: mf = mfmas(2, PX, QX, par)
    else:      mf = mfmas(0, PY, QY, 1 - par)
    def keep(s):
        if "nodma" in cfg.x and (" lds" in s or "m0" in s or s == "s_nop 0"): return False
        if "noe" in cfg.x and s.startswith("buffer_load") and " lds" not in s: return False
        if "nods" in cfg.x and s.startswith("ds_read"): return False
        if "nowait" in cfg.x and s.startswith("s_waitcnt"): return False
        if "novm" in cfg.x and s.startswith("s_waitcnt vmcnt"): return False
        return True
    extras = {k: [s for s in v if keep(s)] for k, v in extras.items()}
    for s in extras.get("pre", []): a.e(s)
    if cfg.prio == 1: a.e(f"s_setprio {1 - X}")
    if cfg.prio == 2 and X == 0: a.e(f"s_setprio {1 - par}")
    for k in range(8):
        if cfg.prio == 3 and k in (0, 4): a.e(f"s_setprio {1 if k == 0 else 0}")
        if cfg.prio == 4: a.e("s_setprio 1")
        if cfg.prio == 5: a.e("s_setprio 0")
        if "nomfma" not in cfg.x and k < len(mf): a.e(mf[k])
        for i in range(2):
            z = Z + 16 * (c0 + i) + 2 * k
            a.e(f"v_exp_f32 v{EX+2*i}, v{z}")
            a.e(f"v_exp_f32 v{EX+2*i+1}, v{z+1}")
        for s in extras.get(k, []): a.e(s)
        if cfg.prio == 4: a.e("s_setprio 0")
        if cfg.prio == 5: a.e("s_setprio 1")
        bit = 8 * (k >> 1) + 2 * (k & 1)
        lf, lb = f"F_{tag}_{k}", f"R_{tag}_{k}"
        if "nobr" not in cfg.x:
            a.e(f"s_bitcmp1_b32 s{sSafe if 'nofl' in cfg.x else sF0+1}, {bit}")
            a.e(f"s_cbranch_scc1 {lf}")
        for i in range(2):
            c = c0 + i; z = Z + 16 * c + 2 * k
            a.e(f"v_pk_fma_f32 {p2(TT+2*i)}, {p2(z)}, {p2(DD+2*c)}, {p2(NN+2*c)}")
        for i in range(2):
            c = c0 + i
            a.e(f"v_pk_fma_f32 {p2(DD+2*c)}, {p2(DD+2*c)}, {p2(EX+2*i)}, {p2(DD+2*c)}")
        for i in range(2):
            c = c0 + i
            a.e(f"v_pk_fma_f32 {p2(NN+2*c)}, {p2(NN+2*c)}, {p2(EX+2*i)}, {p2(TT+2*i)}")
        a.label(lb)
        ool.label(lf)
        t = vT + 8 * X
        ex = "K2_LEND" if X else (f"EXA{par}_{k}" if k < 6 else f"R_{tag}_7")
        sal = ([f"s_bitcmp1_b32 s{sF0}, {bit+1}", f"s_cbranch_scc1 {ex}"] if k else []) + \
              [f"s_bitcmp1_b32 s{sF0}, {bit}", f"s_cselect_b32 s{sT}, -1, 0", f"s_bitcmp1_b32 s{sF0}, {bit+4}", f"s_cselect_b32 s{sT+1}, -1, 0"]
        rc = [f"v_rcp_f32 v{t+j}, v{DD+2*c0+j}" for j in range(4)]
        n = len(sal)
        for j in range(4):
            ool.e(rc[j])
            for x in sal[:(n + 3 - j) // 4 if False else 0]: pass
            cnt = (n // 4) + (1 if j < n % 4 else 0)
            for _ in range(cnt): ool.e(sal.pop(0))
        for i in range(2):
            c = c0 + i
            ool.e(f"v_max3_f32 v{vCHK}, v{DD+2*c}, v{DD+2*c+1}, v{vCHK}")
        ool.e(f"v_mov_b32_dpp v{t+6}, v{vQA+2*par+(k>>2)} row_newbcast:{4*(k&3)} row_mask:0xf bank_mask:0xf")
        nk = sum(1 for x in extras.get(k, []) if x.startswith("ds_")) if cfg.cw else 0
        if k == 0 and cfg.cw: pass
        elif k == 7 and cfg.cw: pass
        else: ool.e(f"s_waitcnt lgkmcnt({nk})")
        for j in range(2):
            for i in range(2):
                c = c0 + i
                ool.e(f"v_fmac_f32 v{ACC+c}, v{NN+2*c+j}, v{t+2*i+j}")
        ool.e(f"s_mov_b64 exec, s[{sT}:{sT+1}]")
        ool.e(f"ds_write2_b32 v{vCUR+X}, v{ACC+c0}, v{ACC+c0+1} offset0:{32*c0} offset1:{32*c0+32}")
        ool.e(f"v_lshl_add_u32 v{vCUR+X}, v{t+6}, 1, v{vCA}")
        ool.e(f"ds_read2_b32 v[{ACC+c0}:{ACC+c0+1}], v{vCUR+X} offset0:{32*c0} offset1:{32*c0+32}")
        ool.e("s_mov_b64 exec, -1")
        for i in range(2):
            c = c0 + i
            ool.e(f"v_pk_add_f32 {p2(DD+2*c)}, {p2(EX+2*i)}, 1.0 op_sel_hi:[1,0]")
        for i in range(2):
            c = c0 + i; z = Z + 16 * c + 2 * k
            ool.e(f"v_pk_mov_b32 {p2(NN+2*c)}, {p2(z)}, {p2(z)} op_sel:[0,1]")
        ool.e(f"s_branch {lb}")

def lds_fill(a, base, nbytes, vdata, vaddr16, ex):
    n = (nbytes + 15) // 16
    r = 0
    while n >= 512:
        a.e(f"ds_write_b128 v{vaddr16}, v[{vdata}:{vdata+3}] offset:{base + r*8192}")
        n -= 512; r += 1
    if n:
        a.e(f"s_movk_i32 s{sT}, {n}")
        a.e(f"v_cmp_gt_u32 vcc, s{sT}, v0")
        a.e(f"s_and_saveexec_b64 s[{ex}:{ex+1}], vcc")
        a.e(f"ds_write_b128 v{vaddr16}, v[{vdata}:{vdata+3}] offset:{base + r*8192}")
        a.e(f"s_mov_b64 exec, s[{ex}:{ex+1}]")

def reset_round(a, zero_agg):
    t = vT
    a.e(f"v_lshlrev_b32 v{t}, 4, v0")
    a.e(f"v_mov_b32 v{t+8}, 0\nv_mov_b32 v{t+9}, 0\nv_mov_b32 v{t+10}, 0\nv_mov_b32 v{t+11}, 0")
    lds_fill(a, CNT, 272, t+8, t, sX0)
    if zero_agg: lds_fill(a, AGG, 49 * 528, t+8, t, sX0)

def onehot4(a, dst, vJ, vcond_sgpr, t):
    a.e(f"v_and_b32 v{t}, 1, v{vJ}")
    a.e(f"v_lshlrev_b32 v{t}, 4, v{t}")
    a.e(f"v_mov_b32 v{t+1}, 0x3f80")
    a.e(f"v_lshlrev_b32 v{t}, v{t}, v{t+1}")
    if vcond_sgpr is not None:
        a.e(f"v_cndmask_b32 v{t}, 0, v{t}, s[{vcond_sgpr}:{vcond_sgpr+1}]")
    a.e(f"v_lshrrev_b32 v{t+1}, 1, v{vJ}")
    for i in range(4):
        a.e(f"v_cmp_eq_u32 vcc, {i}, v{t+1}")
        a.e("s_nop 1")
        a.e(f"v_cndmask_b32 v{dst+i}, 0, v{t}, vcc")

def gen_k2(a):
    ool = Asm()
    rare = Asm()
    RC = 160; RK = 172; NA = 184; EN = 212
    XF, WU1F, W2F, QACC = 64, 96, [128, 132, 136, 140, 160, 164, 168, 172], 212
    vLA0, vXA, vW3A, vW0 = vT + 20, vT + 21, vT + 22, vT + 23
    t = vT + 12
    kernel_head(a, NAME + "_kernel")
    load_args(a)
    a.e(f"v_lshrrev_b32 v{vT+1}, 2, v0")
    a.e(f"v_and_b32 v{vW0}, 3, v0")
    a.e("s_cmp_ge_u32 s2, 256")
    a.e("s_cbranch_scc1 K2_END")
    if cfg.dbg:
        a.e("v_mov_b32 v252, 0")
        a.e("s_memrealtime s[92:93]")
    idmap(a, sBin, 2, sT)
    a.e(f"v_mul_u32_u24 v{vEB}, 3200, v{vT+1}")
    a.e(f"v_lshlrev_b32 v{vT+4}, 4, v{vW0}")
    a.e(f"s_lshl_b32 s{sT+2}, s{sBin}, {6 if cfg.lohi else 7}")
    if cfg.lohi: a.e(f"s_movk_i32 s{sT+5}, 16384")
    a.e(f"s_add_u32 s{sT+2}, s{sT+2}, {cfg.wsoff + WS_S01}")
    a.e(f"v_lshl_add_u32 v{vT+2}, v{vT+1}, 15, v{vT+4}")
    a.e(f"s_mov_b32 s{sOT+2}, {124*32768 + (16384+64 if cfg.lohi else 128)}")
    a.e(f"s_mov_b32 s{sOT+3}, 0x20000")
    a.e(f"v_lshrrev_b32 v{vT}, 6, v0")
    a.e(f"v_and_b32 v{vL}, 63, v0")
    a.e(f"v_readfirstlane_b32 s{sW}, v{vT}")
    a.e(f"s_mul_i32 s{sT+3}, s{sBin}, 12544")
    a.e(f"s_sub_u32 s{sT+4}, 3200000, s{sT+3}")
    a.e(f"s_min_u32 s{sT+4}, s{sT+4}, 12544")
    a.e(f"v_mov_b32 v{vT+8}, 0\nv_mov_b32 v{vT+9}, 0\nv_mov_b32 v{vT+10}, 0\nv_mov_b32 v{vT+11}, 0")
    a.e(f"v_lshlrev_b32 v{vW3A}, 4, v{vL}")
    a.e("s_mov_b64 exec, 0x1ffff")
    a.e(f"ds_write_b128 v{vW3A}, v[{vT+8}:{vT+11}] offset:{CNT}")
    a.e("s_mov_b64 exec, -1")
    WU1L = 32768
    NPF = cfg.prefetchP
    vXD, vW3D = vT + 18, vT + 7
    sM = sX0 + 4
    c = Asm(); x_dma(c, sX, sW, vL, STG, vXD, sM + 2, strided=True)
    for x in c.lines[:-4]: a.e(x)
    a.e(f"s_add_u32 s{sM+3}, s{sM+3}, {STG}")
    xd = c.lines[-2:]
    w_lane_const(a, vWC, vL, t)
    a.e(f"s_lshl_b32 s{sW4k}, s{sW}, 12")
    a.e(f"s_lshl_b32 s{sM0}, s{sW}, 13")
    a.e(f"s_add_u32 s{sM}, s{sM0}, {STG + 4096}")
    a.e(f"s_add_u32 s{sM0}, s{sM0}, {STG - 256}")
    a.e(f"s_add_u32 s{sM+1}, s{sW4k}, {WU1L}")
    a.e(f"v_lshlrev_b32 v{vW3D}, 4, v0")
    a.e(f"s_and_b32 s{sT+1}, s{sW}, 4")
    a.e(f"s_add_u32 s{sT}, s{sW}, s{sT+1}")
    a.e(f"s_lshl_b32 s{sT}, s{sT}, 10")
    a.e(f"s_add_u32 m0, s{sT}, {STG + 32768}")
    a.e(f"s_mov_b32 s{sR+2}, 4096")
    a.e(f"s_mov_b32 s{sR+3}, 0x20000")
    a.e("s_waitcnt lgkmcnt(0)")
    a.e(f"s_add_u32 s{sOT}, s{S_WS}, s{sT+2}")
    a.e(f"s_addc_u32 s{sOT+1}, s{S_WS+1}, 0")
    a.e(f"buffer_load_dwordx4 v[{RC}:{RC+3}], v{vT+2}, s[{sOT}:{sOT+3}], 0 offen {cfg.s_pol}")
    a.e(f"buffer_load_dwordx4 v[{RC+4}:{RC+7}], v{vT+2}, s[{sOT}:{sOT+3}], " + (f"s{sT+5} offen" if cfg.lohi else "0 offen offset:64"))
    a.e(f"s_add_u32 s{sR}, s{S_WS}, {cfg.wsoff + cfg.w3o}")
    a.e(f"s_addc_u32 s{sR+1}, s{S_WS+1}, 0")
    a.e(f"buffer_load_dwordx4 v{vW3D}, s[{sR}:{sR+3}], 0 offen lds")
    if cfg.dbg:
        a.e("v_writelane_b32 v252, s92, 0")
        a.e("s_getreg_b32 s90, hwreg(HW_REG_XCC_ID)")
        a.e("s_add_u32 s90, s90, 1")
        a.e("v_writelane_b32 v252, s90, 39")
    stamp(a, 40, 252)
    srd(a, sX, S_X, off_s=sT+3, size=f"s{sT+4}")
    srd(a, sO, S_OUT, off_s=sT+3, size=f"s{sT+4}")
    srd(a, sWm, S_WM, off_c=32768, size=32768)
    srd(a, sWu, S_WU, size=256*256)
    if cfg.spf:
        a.e(f"s_lshr_b32 s{sT}, s2, 3")
        a.e(f"s_mul_i32 s{sT}, s{sT}, {781*128}")
        a.e(f"s_mul_i32 s{sT+1}, s{sW}, {cfg.spf*128}")
        a.e(f"s_add_u32 s{sT}, s{sT}, s{sT+1}")
        a.e(f"s_add_u32 s{sT}, s{sT}, {cfg.wsoff + WS_P + (781 - 8*cfg.spf)*128}")
        a.e(f"s_add_u32 s{sT}, s{S_WS}, s{sT}")
        a.e(f"s_addc_u32 s{sT+1}, s{S_WS+1}, 0")
    a.e("s_barrier")
    for j in range(cfg.spf):
        a.e(f"s_load_dword s78, s[{sT}:{sT+1}], {hex(128*j)}")
    stamp(a, 41, 252)
    def mix(lines, extra, first=0):
        out = []; n = len(lines); m = len(extra); k = 0; full = True
        for i, x in enumerate(lines):
            while full and k < m and k * n <= i * m: out += extra[k]; k += 1
            out.append(x)
            if "exec" in x.split(",")[0]: full = x.strip() == "s_mov_b64 exec, -1"
        return out + sum(extra[k:], [])
    dm = [[f"s_mov_b32 m0, s{sM+3}", "s_nop 0", xd[0]], [xd[1]]]
    for j, srdw in enumerate((sWm, sWu)):
        for i in range(4):
            o = f" offset:{1024*i}" if i else ""
            dm.append(([f"s_mov_b32 m0, s{sM+j}", "s_nop 0"] if i == 0 else []) + [f"buffer_load_dwordx4 v{vWC}, s[{srdw}:{srdw+3}], s{sW4k} offen{o} lds"])
    c = Asm(); sav = a.lines; a.lines = c.lines
    a.e(f"v_and_b32 v{t+1}, 7, v{vL}")
    onehot4(a, AQ, t+1, None, t+2)
    a.e(f"v_lshlrev_b32 v{t+2}, 5, v{vL}")
    a.e(f"v_and_b32 v{vM}, 31, v0")
    a.e(f"v_lshlrev_b32 v{vW0}, 2, v{vW0}")
    a.e("s_mov_b64 exec, 0x1ff")
    a.e(f"ds_write_b128 v{t+2}, v[{vT+8}:{vT+11}] offset:{LUT+16}")
    a.e("s_mov_b64 exec, 0x100")
    a.e(f"ds_write_b128 v{t+2}, v[{vT+8}:{vT+11}] offset:{LUT}")
    a.e("s_mov_b64 exec, 0xff")
    a.e(f"ds_write_b128 v{t+2}, v[{AQ}:{AQ+3}] offset:{LUT}")
    a.e("s_mov_b64 exec, -1")
    srd(a, sP, S_WS, off_c=cfg.wsoff + WS_P - 3072, size=PSIZE)
    if NPF:
        a.e(f"s_lshr_b32 s{sT}, s2, 3")
        a.e(f"s_mul_i32 s{sT}, s{sT}, {781*128}")
        a.e(f"s_add_u32 s{sT}, s{sT}, 3072")
        a.e(f"v_lshl_add_u32 v{vPF}, v{vL}, 3, s{sW}")
        if cfg.pfn < 512:
            a.e(f"s_movk_i32 s{sT+1}, {cfg.pfn}")
            a.e(f"v_cmp_gt_u32 vcc, s{sT+1}, v{vPF}")
        a.e(f"v_lshl_add_u32 v{vPF}, v{vPF}, 7, s{sT}")
        if NPF > 1:
            a.e(f"v_add_u32 v{vPF+1}, 0x10000, v{vPF}")
        if cfg.pfn < 512:
            a.e(f"v_mov_b32 v{vT+3}, 0x7ffffff0")
            a.e(f"v_cndmask_b32 v{vPF+NPF-1}, v{vT+3}, v{vPF+NPF-1}, vcc")
    if cfg.pfe:
        a.e(f"s_mul_i32 s{sT}, s2, 51200")
        a.e(f"v_lshl_add_u32 v{vPF+1}, v{vL}, 3, s{sW}")
        a.e(f"s_movk_i32 s{sT+1}, {cfg.pfe}")
        a.e(f"v_cmp_gt_u32 vcc, s{sT+1}, v{vPF+1}")
        a.e(f"v_lshl_add_u32 v{vPF+1}, v{vPF+1}, 7, s{sT}")
        a.e(f"v_mov_b32 v{vT+3}, 0x7ffffff0")
        a.e(f"v_cndmask_b32 v{vPF+1}, v{vT+3}, v{vPF+1}, vcc")
    NPP = NPF
    if cfg.pfm:
        a.e(f"v_lshl_add_u32 v{vPF+1}, v{vL}, 3, s{sW}")
        a.e(f"s_movk_i32 s{sT+1}, {cfg.pfm}")
        a.e(f"v_cmp_gt_u32 vcc, s{sT+1}, v{vPF+1}")
        a.e(f"s_add_u32 s{sT}, s{sT}, 0x10000")
        a.e(f"v_lshl_add_u32 v{vPF+1}, v{vPF+1}, 7, s{sT}")
        a.e(f"v_cndmask_b32 v{vPF+1}, v{vT+3}, v{vPF+1}, vcc")
        dm[cfg.pfmpos] = dm[cfg.pfmpos] + [f"buffer_load_dword v37, v{vPF+1}, s[{sP}:{sP+3}], 0 offen"]
    if cfg.tlb:
        a.e(f"v_lshlrev_b32 v{vPF+1}, 20, v{vL}")
    def pf(pos):
        if cfg.pfpos == pos:
            if cfg.tlb & 1: a.e(f"buffer_load_dword v37, v{vPF+1}, s[{sE}:{sE+3}], 0 offen")
            if cfg.tlb & 2: a.e(f"buffer_load_dword v37, v{vPF+1}, s[{sO}:{sO+3}], 0 offen")
            if cfg.pfe: a.e(f"buffer_load_dword v37, v{vPF+1}, s[{sE}:{sE+3}], 0 offen {cfg.et_pol}")
            for i in range(NPP): a.e(f"buffer_load_dword v37, v{vPF+i}, s[{sP}:{sP+3}], 0 offen")
    if cfg.pfe: NPF += 1
    NPF += (cfg.tlb & 1) + (cfg.tlb >> 1 & 1)
    a.e(f"s_mov_b32 s{sLim}, 32")
    a.e(f"s_mov_b32 s{sDone}, 0")
    wfrag_const(a, vWA, vL, sW, t, sT)
    a.e(f"v_add_u32 v{vW3A}, {STG + 32768}, v{vW3A}")
    a.e(f"v_lshrrev_b32 v{t}, 5, v{vL}")
    a.e(f"v_and_b32 v{t+1}, 15, v{vL}")
    a.e(f"v_xor_b32 v{t+2}, v{t}, v{t+1}")
    a.e(f"v_lshlrev_b32 v{t+2}, 4, v{t+2}")
    a.e(f"v_lshl_add_u32 v{vXA}, v{t+1}, 8, v{t+2}")
    a.e(f"v_bfe_u32 v{t+2}, v{vL}, 4, 1")
    a.e(f"v_lshl_add_u32 v{vXA}, v{t+2}, 13, v{vXA}")
    a.e(f"s_lshr_b32 s{sT}, s{sW}, 2")
    a.e(f"s_lshl_b32 s{sT}, s{sT}, 14")
    a.e(f"s_add_u32 s{sT}, s{sT}, {STG}")
    a.e(f"v_add_u32 v{vXA}, s{sT}, v{vXA}")
    srd(a, sE, S_E, size=ESIZE)
    a.e(f"s_mov_b32 s{sSafe}, 0")
    a.e(f"s_mov_b32 s{sFirst}, 1")
    a.e(f"s_mov_b32 s{sMask}, {'0x4003ffe0' if 'esm' in cfg.x else '0x7fffffe0'}")
    a.e(f"v_mov_b32 v{vCL}, {LUT + 256}")
    a.e(f"v_bfe_u32 v{t+1}, v{vL}, 3, 2")
    a.e(f"v_bfe_u32 v{t+3}, v{vL}, 1, 1")
    a.e(f"v_lshl_add_u32 v{t+1}, v{t+1}, 1, v{t+3}")
    a.e(f"v_lshlrev_b32 v{t+1}, 5, v{t+1}")
    a.e("s_mov_b32 exec_lo, 0x0f0f0f0f\ns_mov_b32 exec_hi, 0xf0f0f0f0")
    a.e(f"v_add_u32 v{vCL}, {LUT}, v{t+1}")
    a.e("s_mov_b64 exec, -1")
    a.e(f"v_lshlrev_b32 v{vH16}, 4, v{t}")
    if 'ehalf' in cfg.x: a.e(f"v_lshlrev_b32 v18, 30, v{t}")
    a.e(f"v_and_b32 v{t+1}, 3, v{vL}")
    a.e(f"v_lshlrev_b32 v{vCQ}, 3, v{t+1}")
    a.e(f"v_lshl_add_u32 v{vCQ}, v{t+2}, 5, v{vCQ}")
    a.e(f"v_add_u32 v{vCQ}, {QL}, v{vCQ}")
    a.e(f"v_lshlrev_b32 v{vCA}, 2, v{vM}")
    a.e(f"v_mad_u32_u24 v{vSD}, v{vH16}, 33, v{vCA}")
    a.e(f"s_mul_i32 s{sT}, s{sW}, 1056")
    a.e(f"s_add_u32 s{sT}, s{sT}, {SIDE}")
    a.e(f"v_add_u32 v{vSD}, s{sT}, v{vSD}")
    a.e(f"v_lshlrev_b32 v{t+2}, 6, v{t+2}")
    a.e(f"v_sub_u32 v{vCA}, v{vCA}, v{t+2}")
    a.e(f"v_add_u32 v{vCA}, {AGG - 2*QL}, v{vCA}")
    a.e(f"v_bfe_u32 v{t+1}, v{vL}, 2, 2")
    a.e(f"v_lshl_add_u32 v{vRP0}, v{t+1}, 7, v{vCQ}")
    a.e(f"v_lshl_add_u32 v{vRP0}, v{t}, 11, v{vRP0}")
    a.e(f"v_and_b32 v{t+1}, 8, v{vL}")
    a.e(f"v_lshl_add_u32 v{vRP0}, v{t+1}, 3, v{vRP0}")
    a.e(f"s_add_u32 s{sT}, s{sM0}, {256 - QL}")
    a.e(f"v_add_u32 v{vRP0}, s{sT}, v{vRP0}")
    a.e(f"v_xor_b32 v{vRP1}, 64, v{vRP0}")
    a.e(f"s_movk_i32 s{s256}, 256")
    a.e(f"v_mov_b32 v{vCHK}, 0")
    def round_consts(a):
        a.e(f"v_lshrrev_b32 v{t}, 3, v{vM}")
        a.e(f"v_and_b32 v{t+1}, 3, v{vL}")
        a.e(f"v_lshl_add_u32 v{vAE}, v{t}, 2, v{t+1}")
        a.e(f"v_lshlrev_b32 v{vAE}, 3, v{vAE}")
        a.e(f"v_bfe_u32 v{t+1}, v{vL}, 2, 2")
        a.e(f"v_lshlrev_b32 v{vAQ}, 4, v{t+1}")
        a.e(f"v_and_b32 v{vAP}, 24, v{vL}")
        a.e(f"v_and_b32 v{t}, 7, v{vL}")
        a.e(f"v_bfe_u32 v{t+1}, v{vL}, 4, 1")
        a.e(f"v_lshlrev_b32 v{t}, 4, v{t}")
        a.e(f"v_lshlrev_b32 v{t+1}, 6, v{t+1}")
        a.e(f"v_xor_b32 v{vC4+3}, v{t}, v{t+1}")
        for j in range(3):
            a.e(f"v_add_u32 v{vC4+j}, {1024*(3-j)}, v{vC4+3}")
        a.e(f"v_mov_b32 v{vT}, 1")
        a.e(f"v_mov_b32 v{vT+1}, {FLG}")
        a.e(f"v_lshlrev_b32 v{vT+2}, 2, v{vL}")
        a.e(f"s_mov_b32 s{sT}, 0x420000")
        a.e(f"s_brev_b32 s{sT+6}, 1")
        a.e(f"s_add_u32 s{sT+7}, s{sDone}, s{sLim}")
        a.e(f"v_cmp_ne_u32 s[{sX0+2}:{sX0+3}], 0, v{vW0}")
    round_consts(a)
    a.lines = sav
    for x in mix(c.lines, dm): a.e(x)
    stamp(a, 1, 252)
    pf(1)
    stamp(a, 4, 252)
    NV = 11 + (1 if cfg.pfm else 0) + (NPF if cfg.pfpos <= 1 else 0)
    a.e(f"s_waitcnt vmcnt({NV + 1})")
    stamp(a, 5, 252)
    a.e(f"v_mov_b32_dpp v{vOC}, v{RC} quad_perm:[0,0,0,0] row_mask:0xf bank_mask:0xf")
    a.label("K2_COUNT")
    def groups(fn, lab, order=range(8), extra=(), pre=()):
        c = Asm(); sav = a.lines; a.lines = c.lines
        for i in order: fn(i)
        a.lines = sav
        for x in mix(c.lines, list(extra)): a.e(x)
    KK = lambda i: 16 * (i >> 2) + (i & 3)
    na = lambda i: f"v_lshlrev_b32_sdwa v{NA+i}, 2, v{RC+i} dst_sel:BYTE_0 dst_unused:UNUSED_PAD src0_sel:DWORD src1_sel:BYTE_0"
    a.e(na(1))
    a.e(f"v_min_u32 v{vREM}, s{sT+7}, v{vOC}")
    a.e(f"v_sub_u32 v{vREM}, v{vREM}, v{vW0}")
    a.e(f"v_cmp_lt_u32 s[{sX0+6}:{sX0+7}], s{sT+7}, v{vOC}")
    a.e(f"v_cmp_lt_i32 s[{sX0}:{sX0+1}], 0, v{vREM}")
    a.e(na(0))
    def f_cnt(i):
        a.e(f"v_cmpx_lt_i32 vcc, {KK(i)}, v{vREM}")
        if i == 3: a.e(f"s_waitcnt vmcnt({NV})")
        if i < 7: a.e(na(i + 1))
        a.e(f"ds_add_rtn_u32 v{RK+i}, v{NA+i}, v{vT} offset:{CNT}")
    groups(f_cnt, "K2_G1", order=range(1, 8))
    a.e(f"s_and_b64 s[{sX0}:{sX0+1}], s[{sX0}:{sX0+1}], s[{sX0+2}:{sX0+3}]")
    a.e(f"s_mov_b64 exec, s[{sX0}:{sX0+1}]")
    a.e(f"ds_add_rtn_u32 v{RK}, v{NA}, v{vT} offset:{CNT}")
    a.e(f"s_mov_b64 exec, s[{sX0+6}:{sX0+7}]")
    a.e(f"ds_write_b32 v{vT+1}, v{vT}")
    a.e("s_mov_b64 exec, -1")
    def f_ent(i):
        e0 = EN + 2 * i
        a.e(f"v_lshrrev_b32 v{e0}, 20, v{RC+i}")
        a.e(f"v_add_lshl_u32 v{e0}, v{e0}, v{vEB}, 5")
    groups(f_ent, "K2_G2")
    pf(2)
    a.e("s_waitcnt lgkmcnt(0)")
    a.e("s_barrier")
    stamp(a, 6, 252)
    a.e(f"ds_read_b32 v{vT+6}, v{vT+2} offset:{CNT}")
    a.e(f"ds_read_b32 v{vT+5}, v{vT+1}")
    def f_ent2(i):
        e1 = EN + 1 + 2 * i
        a.e(f"v_bfe_u32 v{e1}, v{RC+i}, 6, 14")
        a.e(f"v_mad_u32_u24 v{e1}, v{NA+i}, s{sT}, v{e1}")
    groups(f_ent2, "K2_G5")
    a.e("s_waitcnt lgkmcnt(0)")
    a.e(f"v_add_u32 v{vT+3}, 1, v{vT+6}")
    a.e(f"v_lshrrev_b32 v{vT+3}, 1, v{vT+3}")
    a.e(f"v_mov_b32 v{vT+4}, v{vT+3}")
    a.e(f"v_readfirstlane_b32 s{sMore}, v{vT+5}")
    fl = []
    for i in range(8):
        fl.append(f"v_add_u32 v{RC+i}, -1, v{RK+i}")
        fl.append(f"v_and_or_b32 v{EN+2*i}, v{RC+i}, s{sT+6}, v{EN+2*i}")
    v = vT + 4
    dpp = [f"v_add_u32_dpp v{v}, v{v}, v{v} row_shr:{sh} row_mask:0xf bank_mask:0xf bound_ctrl:0" for sh in (1, 2, 4, 8)]
    dpp += [f"v_add_u32_dpp v{v}, v{v}, v{v} row_bcast:15 row_mask:0xa bank_mask:0xf", f"v_add_u32_dpp v{v}, v{v}, v{v} row_bcast:31 row_mask:0xc bank_mask:0xf"]
    for j in range(6):
        a.e(fl[2*j]); a.e(fl[2*j+1]); a.e(dpp[j])
    a.e(fl[12])
    a.e(f"v_readlane_b32 s{sT+5}, v{vT+4}, 63")
    a.e(f"v_sub_u32 v{vT+4}, v{vT+4}, v{vT+3}")
    a.e(f"v_lshlrev_b32 v{vT+4}, 4, v{vT+4}")
    def f_perm(i):
        a.e(f"ds_bpermute_b32 v{NA+i}, v{NA+i}, v{vT+4}")
        if i >= 8:
            a.e(f"v_add_u32 v{RC+i}, -1, v{RK+i}")
            a.e(f"v_and_or_b32 v{EN+2*i}, v{RC+i}, s{sT+6}, v{EN+2*i}")
    groups(f_perm, "K2_G3")
    for x in fl[13:]: a.e(x)
    pf(3)
    a.e(f"s_cmp_gt_u32 s{sT+5}, 1025")
    a.e("s_cbranch_scc1 K2_TOOBIG")
    a.e(f"s_add_u32 s{sT}, s{sT+5}, 7")
    a.e(f"s_lshr_b32 s{sT}, s{sT}, 3")
    if cfg.ratio:
        a.e(f"s_mul_i32 s{sT+1}, s{sT}, {cfg.ratio}")
        a.e(f"s_add_u32 s{sT+1}, s{sT+1}, 63")
        a.e(f"s_lshr_b32 s{sT+1}, s{sT+1}, 6")
    else:
        a.e(f"s_add_u32 s{sT+1}, s{sT}, {cfg.bias}")
        a.e(f"s_lshr_b32 s{sT+1}, s{sT+1}, 4")
        a.e(f"s_lshl_b32 s{sT+1}, s{sT+1}, 3")
    a.e(f"s_min_u32 s{sT+1}, s{sT+1}, s{sT}")
    a.e(f"s_sub_u32 s{sT+2}, s{sT}, s{sT+1}")
    a.e(f"s_and_b32 s{sT+3}, s{sW}, 3")
    a.e(f"s_mul_i32 s{sT+3}, s{sT+3}, s{sT}")
    a.e(f"s_cmp_lt_u32 s{sW}, 4")
    a.e(f"s_cselect_b32 s{sL}, s{sT+1}, s{sT+2}")
    a.e(f"s_cselect_b32 s{sT+4}, 0, s{sT+1}")
    a.e(f"s_add_u32 s{sT+3}, s{sT+3}, s{sT+4}")
    a.e(f"s_lshl_b32 s{sT+3}, s{sT+3}, 5")
    a.e(f"s_add_u32 s{sT+3}, s{sT+3}, {LIST}")
    a.e(f"s_lshl_b32 s{sT+4}, s{sL}, 4")
    a.e(f"s_add_u32 s{sNT}, s{sL}, 7")
    a.e(f"s_lshr_b32 s{sNT}, s{sNT}, 3")
    a.e(f"s_cmp_eq_u32 s{sW}, 7")
    a.e("s_cbranch_scc0 K2_NODUM")
    a.e(f"v_mov_b32 v{vT+8}, 0x7ffffff0\nv_mov_b32 v{vT+9}, 0xffff\nv_mov_b32 v{vT+10}, 0x7ffffff0\nv_mov_b32 v{vT+11}, 0xffff")
    a.e(f"v_lshl_add_u32 v{vT+7}, v{vT+6}, 3, v{vT+4}")
    a.e(f"v_and_b32 v{vT+6}, 1, v{vT+6}")
    a.e(f"v_cmp_eq_u32 vcc, 1, v{vT+6}")
    a.e("s_mov_b64 exec, vcc")
    a.e(f"ds_write_b64 v{vT+7}, v[{vT+8}:{vT+9}] offset:{LIST}")
    a.e("s_mov_b32 exec_lo, -1\ns_mov_b32 exec_hi, 0x7f")
    a.e(f"v_add_lshl_u32 v{vT+7}, v{vL}, s{sT+5}, 4")
    a.e(f"ds_write_b128 v{vT+7}, v[{vT+8}:{vT+11}] offset:{LIST}")
    a.e("s_mov_b64 exec, -1")
    a.label("K2_NODUM")
    a.e("s_waitcnt lgkmcnt(0)")
    a.e(f"v_lshl_add_u32 v{NA}, v{RK}, 3, v{NA}")
    def f_place(i):
        a.e(f"v_cmpx_lt_i32 vcc, {KK(i)}, v{vREM}")
        a.e(f"v_lshl_add_u32 v{NA+i}, v{RK+i}, 3, v{NA+i}")
        a.e(f"ds_write_b64 v{NA+i}, v[{EN+2*i}:{EN+1+2*i}] offset:{LIST}")
    groups(f_place, "K2_G4", order=range(1, 8))
    a.e(f"s_mov_b64 exec, s[{sX0}:{sX0+1}]")
    a.e(f"ds_write_b64 v{NA}, v[{EN}:{EN+1}] offset:{LIST}")
    a.e("s_mov_b64 exec, -1")
    a.e(f"v_add_u32 v{vAE}, s{sT+3}, v{vAE}")
    a.e(f"v_add3_u32 v{vAP}, v{vAP}, s{sT+3}, 4")
    a.e(f"v_add3_u32 v{vAQ}, v{vAQ}, s{sT+3}, 6")
    a.e("s_mov_b32 exec_lo, 0xf0f0f0f0\ns_mov_b32 exec_hi, 0xf0f0f0f0")
    a.e(f"v_add_u32 v{vAE}, s{sT+4}, v{vAE}")
    a.e("s_mov_b32 exec_lo, 0\ns_mov_b32 exec_hi, -1")
    a.e(f"v_add_u32 v{vAP}, s{sT+4}, v{vAP}")
    a.e(f"v_add_u32 v{vAQ}, s{sT+4}, v{vAQ}")
    a.e("s_mov_b64 exec, -1")
    a.e(f"s_sub_u32 s{sT+1}, s{sT+1}, 1")
    a.e(f"s_sub_u32 s{sT+2}, s{sT+2}, 1")
    a.e(f"s_min_u32 s{sT+1}, s{sT+1}, s{sT+2}")
    a.e(f"v_cmp_lt_u32 s[{sSusp}:{sSusp+1}], s{sT+1}, v{vT+3}")
    a.e(f"s_cmp_eq_u32 s{sNT}, 0")
    a.e(f"s_cselect_b32 s{sP+2}, 0, {PSIZE}")
    a.e(f"s_cselect_b32 s{sE+2}, 0, {ESIZE}")
    a.e(f"s_cmp_eq_u32 s{sFirst}, 0")
    a.e(f"s_waitcnt vmcnt({NPF}) lgkmcnt(0)")
    a.e("s_barrier")
    a.e("s_cbranch_scc1 K2_PRO2")
    stamp(a, 7, 252)
    adv = [f"v_add_u32 v{r}, s{s256}, v{r}" for r in (vAE, vAP, vAQ)]
    def early_e1():
        return addr_e() + [f"s_cmp_lt_u32 s{sNT}, 2", f"s_cselect_b32 s{sE+2}, 0, s{sE+2}", e_load(1)]
    def prologue(a, first):
        for s in list_reads_se() + list_reads_n(): a.e(s)
        if first:
            for st in range(8):
                if st == 0: a.e(f"ds_read_b128 v[{XF}:{XF+3}], v{vXA}")
                else:
                    r = vT + (st & 1)
                    a.e(f"v_xor_b32 v{r}, {32*st}, v{vXA}")
                    a.e(f"ds_read_b128 v[{XF+4*st}:{XF+4*st+3}], v{r}")
        a.e(f"s_waitcnt lgkmcnt({8 if first else 0})")
        for s in addr_se() + addr_q(0): a.e(s)
        for s in list_reads_se(1): a.e(s)
        for s in flags_from_vcc(sF0): a.e(s)
        d0 = dma_ops(0, "alt"); d1 = dma_ops(1)
        fr = Asm()
        if first:
            a.e(f"v_add_u32 v{vT+3}, {STG + 4096}, v{vWA}")
            wfrag_read(fr, W2F, vT+3, 0, 8192)
            wfrag_read(fr, WU1F, vWA, WU1L)
            for c in range(4):
                fr.e(f"ds_read_b128 v[{W3+4*c}:{W3+4*c+3}], v{vW3A} offset:{1024*c}")
        n4 = len(fr.lines) // 4
        if cfg.e0f: a.e(e_load(0))
        for s in d0[0] + fr.lines[:n4] + d0[1] + fr.lines[n4:2*n4]: a.e(s)
        if not cfg.e0f: a.e(e_load(0))
        for s in fr.lines[2*n4:3*n4]: a.e(s)
        a.e(f"v_cmp_ne_u32 vcc, v{vLA}, v{vCL}")
        a.e(f"v_mov_b32_dpp v{vFA}, v{vQA} row_newbcast:0 row_mask:0xf bank_mask:0xf")
        a.e(f"v_mov_b32 v{vLA0}, v{vLA}")
        for s in d0[2] + fr.lines[3*n4:]: a.e(s)
        a.e(f"s_cmp_eq_u32 s{sNT}, 0")
        a.e(f"s_cselect_b32 s{sDm}, -1, vcc_lo")
        a.e(f"v_lshl_add_u32 v{vFA}, v{vFA}, 1, v{vCA}")
        for s in d0[3]: a.e(s)
        if first:
            a.e(f"s_lshr_b32 s{sT+1}, s{sW}, 2")
            a.e(f"s_lshl_b32 s{sT+1}, s{sT+1}, 5")
            a.e(f"v_add_u32 v{vT+1}, s{sT+1}, v{vM}")
            a.e(f"v_mul_u32_u24 v{vT+2}, 264, v{vT+1}")
            a.e(f"v_lshl_add_u32 v{vT+2}, v{vH16}, 1, v{vT+2}")
            a.e(f"s_and_b32 s{sT+1}, s{sW}, 3")
            a.e(f"s_lshl_b32 s{sT+1}, s{sT+1}, 6")
            a.e(f"v_add_u32 v{vT+2}, s{sT+1}, v{vT+2}")
            a.e(f"v_cmp_gt_u32 s[{sX0}:{sX0+1}], 49, v{vT+1}")
            a.e(f"v_lshlrev_b32 v{vT}, 4, v0")
            a.e(f"v_mov_b32 v{vT+8}, 0\nv_mov_b32 v{vT+9}, 0\nv_mov_b32 v{vT+10}, 0\nv_mov_b32 v{vT+11}, 0")
            a.e(f"s_movk_i32 s{sT+1}, {49*528//16 - 1536}")
            a.e(f"v_cmp_gt_u32 s[{sX0+2}:{sX0+3}], s{sT+1}, v0")
            a.e(f"s_mov_b32 s{sT}, {LOG2E_NEG}")
            a.e(f"s_mov_b32 s{sT+1}, {LOG2E_NEG}")
            stamp(a, 44, 252)
            a.e("s_waitcnt lgkmcnt(0)")
            g = Asm(); gemm8(g, QACC, W2F, XF)
            for x in g.lines: a.e(x)
            g = Asm(); gemm8(g, ACX, WU1F, XF)
            q = [f"v_mul_f32 v{QACC+i}, s{sT}, v{QACC+i}" for i in range(16)] + [f"v_cvt_pk_bf16_f32 v{QACC+i}, v{QACC+2*i}, v{QACC+1+2*i}" for i in range(8)]
            a.e(g.lines[0])
            if cfg.e1e:
                for x in early_e1(): a.e(x)
                a.e("s_nop 5")
            else:
                a.e("s_nop 9")
            for j in range(3):
                a.e(g.lines[1+j])
                for x in q[j*8:j*8+8]: a.e(x)
            a.e(f"s_mov_b64 exec, s[{sX0}:{sX0+1}]")
            for gg in range(4):
                a.e(f"ds_write_b64 v{vT+2}, v[{QACC+2*gg}:{QACC+1+2*gg}] offset:{QL + 8*gg}")
            a.e("s_mov_b64 exec, -1")
            a.e("s_barrier")
            for j in range(3):
                a.e(f"ds_write_b128 v{vT}, v[{vT+8}:{vT+11}] offset:{AGG + j*8192}")
            a.e(g.lines[4])
            a.e(f"s_mov_b64 exec, s[{sX0+2}:{sX0+3}]")
            a.e(f"ds_write_b128 v{vT}, v[{vT+8}:{vT+11}] offset:{AGG + 3*8192}")
            a.e("s_mov_b64 exec, -1")
            for s in d1[0]: a.e(s)
            a.e(g.lines[5])
            a.e("s_waitcnt lgkmcnt(0)")
            a.e("s_barrier")
            stamp(a, 45, 252)
            for j in range(1, 4):
                for s in d1[j]: a.e(s)
                if j < 3: a.e(g.lines[5+j])
        else:
            if cfg.e1e:
                a.e("s_waitcnt lgkmcnt(0)")
                for x in early_e1(): a.e(x)
            for s in sum(d1, []): a.e(s)
        a.e(f"s_cmp_lt_u32 s{sNT}, 2")
        a.e(f"s_cselect_b32 s{sP+2}, 0, s{sP+2}")
        a.e(f"s_cselect_b32 s{sE+2}, 0, s{sE+2}")
        if not first: a.e("s_waitcnt lgkmcnt(0)")
        for s in addr_se(): a.e(s)
        for s in list_reads_se(2) + list_reads_n(1): a.e(s)
        for s in flags_from_vcc(sF1): a.e(s)
    prologue(a, True)
    rare.label("K2_PRO2")
    rare.e("s_waitcnt vmcnt(0)")
    prologue(rare, False)
    rare.e("s_branch K2_NOX")
    stamp(a, 42, 252)
    for i in range(8):
        a.e(f"v_pk_mul_f32 {p2(ACX+2*i)}, {p2(ACX+2*i)}, s[{sT}:{sT+1}]")
    a.label("K2_NOX")
    stamp(a, 43, 252)
    a.e(f"s_cmp_eq_u32 s{sNT}, 0")
    a.e("s_cbranch_scc1 K2_NOTILES")
    a.e(f"ds_read_b128 v[{AQ}:{AQ+3}], v{vLA0}")
    for s in qfrag_reads(QY, 0, 0) + qfrag_reads(QX, 1, 0): a.e(s)
    if cfg.t1pos == 1:
        if not cfg.e1e: a.e(e_load(1))
        dma_half(a, 0)
    for i in range(4): a.e(f"v_mov_b32 v{AP+i}, 0")
    for i in range(4):
        shf = 16 * (i >> 1) + 4 * (i & 1)
        a.e(f"s_mov_b32 exec_lo, {hex(0xf << shf)}\ns_mov_b32 exec_hi, {hex(0xf << (shf + 8))}")
        a.e(f"v_mov_b32 v{AP+i}, 0x3f80")
    a.e("s_mov_b64 exec, -1")
    a.e(f"v_and_b32 v{IDX}, 3, v{vL}")
    a.e(f"v_mul_u32_u24 v{IDX}, 0x5555, v{IDX}")
    a.e(f"s_add_u32 s{sMA}, s{sM0}, {4096 - 128 + 256}")
    a.e(f"s_add_u32 s{sMB}, s{sM0}, 256")
    a.e(f"s_and_b32 s{sT}, s{sL}, 6")
    a.e(f"s_and_b32 s{sT+1}, s{sL}, 1")
    a.e(f"s_lshl1_add_u32 s{sT}, s{sT}, s{sT+1}")
    a.e(f"s_lshl_b32 s{sT}, s{sT}, 1")
    a.e(f"s_cselect_b32 s{sT+1}, 1, 0")
    a.e(f"s_lshl_b32 s{sEX+1}, s{sT+1}, s{sT}")
    a.e(f"s_lshl_b32 s{sEX}, s{sEX+1}, 1")
    a.e(f"s_cmp_eq_u32 s{sNT}, 1")
    a.e(f"s_cselect_b64 s[{sT}:{sT+1}], s[{sEX}:{sEX+1}], 0")
    a.e(f"s_or_b64 s[{sF0}:{sF0+1}], s[{sF0}:{sF0+1}], s[{sT}:{sT+1}]")
    for c in range(4):
        a.e(f"v_mov_b32 v{NN+2*c}, 0\nv_mov_b32 v{NN+2*c+1}, 0\nv_mov_b32 v{DD+2*c}, 1.0\nv_mov_b32 v{DD+2*c+1}, 1.0")
    a.e(f"v_mov_b32 v{vCUR}, v{vSD}\nv_mov_b32 v{vCUR+1}, v{vSD}")
    for c in range(4): a.e(f"v_mov_b32 v{ACC+c}, 0")
    a.e(f"s_sub_u32 s{sT}, s{sW4k}, s{sM0}")
    a.e(f"s_add_u32 s{sT}, s{sT}, {WU2 - 256}")
    a.e(f"v_add_u32 v{vT}, s{sT}, v{vRP0}")
    a.e(f"v_add_u32 v{vT+1}, s{sT}, v{vRP1}")
    stamp(a, 46, 252)
    a.e(f"s_waitcnt vmcnt({4 + cfg.e1e})" if cfg.t1pos == 2 else "s_waitcnt vmcnt(9)")
    stamp(a, 47, 252)
    for s in pfrag_reads(PY, 0, vT): a.e(s)
    mf = mfmas(0, PY, QY, 0)
    a.e("s_waitcnt lgkmcnt(8)")
    for s in mf[:4]: a.e(s)
    a.e("s_waitcnt lgkmcnt(0)")
    for s in mf[4:]: a.e(s)
    if cfg.t1pos == 2:
        if not cfg.e1e: a.e(e_load(1))
        dma_half(a, 0)
    stamp(a, 8, 252)
    if cfg.dbg:
        a.e("s_memtime s[90:91]\ns_waitcnt lgkmcnt(0)\nv_writelane_b32 v252, s90, 14")
    a.e(f"s_sub_u32 s{sCnt}, s{sNT}, 1")
    a.e(f"s_waitcnt vmcnt({5 - cfg.e1e})")
    stamp(a, 48, 252)
    for s in pfrag_reads(PX, 1): a.e(s)
    def lstamp(x):
        if not cfg.lst: return
        a.e("s_memrealtime s[90:91]")
        a.e(f"s_lshl_b32 s92, s{sCnt}, 1")
        a.e(f"s_add_u32 s92, s92, {x+2}")
        a.e("s_mov_b32 m0, s92")
        a.e("s_waitcnt lgkmcnt(0)")
        a.e("v_writelane_b32 v252, s90, m0")
    def iteration(par):
        exA = {
            0: addr_q(1 - par),
            1: qfrag_reads(QY, 0, 1 - par),
            2: [f"s_mov_b32 m0, s{sMA}", "s_waitcnt lgkmcnt(4)"] + dma_ld(1)[:2],
            3: dma_ld(1)[2:],
            4: [f"ds_read_b128 v[{AQ}:{AQ+3}], v{vLA}",
                f"s_cmp_lt_u32 s{sCnt}, 2", f"s_cbranch_scc1 WU2_{par}", f"WU2R_{par}:"],
            7: ["s_waitcnt vmcnt(4) lgkmcnt(0)"] + pfrag_reads(PY, 0),
        }
        half_step(a, ool, 0, par, exA, f"A{par}")
        ool.label(f"WU2_{par}")
        ool.e(f"s_mov_b32 s{sP+2}, 0")
        ool.e(f"s_mov_b32 s{sE+2}, 0")
        sFn = (sF1, sF0)[par]
        ool.e(f"s_or_b64 s[{sFn}:{sFn+1}], s[{sFn}:{sFn+1}], s[{sEX}:{sEX+1}]")
        ool.e(f"s_cmp_lg_u32 s{sCnt}, 0")
        ool.e(f"s_cbranch_scc1 WU2R_{par}")
        w_dma(ool, sWu, vWC, sW4k, 32768, WU2, sT)
        ool.e(f"s_branch WU2R_{par}")
        mf = mfmas(2, PX, QX, par)
        ool.label(f"EXA{par}_1")
        ool.e("s_waitcnt lgkmcnt(0)")
        ool.e(mf[2])
        ool.label(f"EXA{par}_2")
        ool.e(mf[3])
        ool.label(f"EXA{par}_3")
        ool.e(mf[4])
        w_dma(ool, sWu, vWC, sW4k, 32768, WU2, sT)
        ool.label(f"EXA{par}_4")
        ool.e(mf[5])
        ool.e("s_nop 7")
        ool.label(f"EXA{par}_5")
        ool.e(f"s_branch R_A{par}_7")
        exB = {
            0: qfrag_reads(QX, 1, 1 - par),
            1: addr_se(),
            2: [f"s_mov_b32 m0, s{sMB}", "s_waitcnt lgkmcnt(4)"] + dma_ld(0)[:2],
            3: dma_ld(0)[2:] + [e_load(par)],
            4: list_reads_se(3 + par) + list_reads_n(2 + par),
            5: adv if par else [],
            7: ["s_waitcnt vmcnt(5) lgkmcnt(0)"] + pfrag_reads(PX, 1),
        }
        lstamp(17)
        half_step(a, ool, 1, par, exB, f"B{par}")
        lstamp(16)
        for s in flags_from_vcc((sF0, sF1)[par]): a.e(s)
        a.e(f"s_sub_u32 s{sCnt}, s{sCnt}, 1")
    a.label("K2_LOOP")
    iteration(0)
    a.e("s_cbranch_scc1 K2_LEND")
    iteration(1)
    a.e("s_cbranch_scc0 K2_LOOP")
    a.label("K2_LEND")
    stamp(a, 9, 252)
    if cfg.dbg:
        a.e("s_memtime s[90:91]\ns_waitcnt lgkmcnt(0)\nv_writelane_b32 v252, s90, 15")
    flush_code(a, 0, 0)
    a.e(f"ds_write2_b32 v{vCUR}, v{ACC}, v{ACC+1} offset1:32")
    flush_code(a, 2, 1, wait=False)
    a.e(f"ds_write2_b32 v{vCUR+1}, v{ACC+2}, v{ACC+3} offset0:64 offset1:96")
    a.label("K2_AFTER")
    a.e(f"s_mov_b32 s{sFirst}, 0")
    a.e(f"s_bitcmp0_b32 s{sDm}, 0")
    a.e(f"s_cselect_b32 s{sX0+2}, -1, 0")
    a.e(f"s_bitcmp0_b32 s{sDm}, 4")
    a.e(f"s_cselect_b32 s{sX0+3}, -1, 0")
    a.e(f"s_lshr_b32 s{sT+1}, s{sW}, 2")
    a.e(f"s_lshl_b32 s{sT+2}, s{sT+1}, 5")
    a.e(f"v_add_u32 v{vT+8}, s{sT+2}, v{vM}")
    a.e(f"v_mul_u32_u24 v{vT+9}, 528, v{vT+8}")
    a.e(f"v_cmp_gt_u32 s[{sX0}:{sX0+1}], 49, v{vT+8}")
    a.e(f"s_and_b32 s{sT+2}, s{sW}, 3")
    a.e(f"s_lshl_b32 s{sT+2}, s{sT+2}, 7")
    a.e(f"v_lshl_add_u32 v{vT+5}, v{vH16}, 1, s{sT+2}")
    a.e(f"v_add_u32 v{vT+6}, v{vT+9}, v{vT+5}")
    a.e(f"v_add_u32 v{vT+4}, {WU2}, v{vWA}")
    a.e(f"s_add_u32 s{sT+2}, s{sM0}, {256 + 4096}")
    a.e(f"v_lshl_add_u32 v{vT+2}, v{vL}, 4, s{sT+2}")
    a.e(f"s_lshl_b32 s{sT+1}, s{sT+1}, 15")
    a.e(f"s_add_u32 s{sT+1}, s{sT+1}, {STG + 4096}")
    a.e(f"v_lshl_add_u32 v{vT+3}, v{vL}, 4, s{sT+1}")
    a.e(f"s_or_b32 s{sT}, s{sSusp}, s{sSusp+1}")
    a.e(f"s_or_b32 s{sT}, s{sT}, s{sMore}")
    a.e("s_cbranch_scc1 K2_SLOWM")
    a.e(f"s_and_b32 exec_lo, s{sX0+2}, 1")
    a.e(f"s_and_b32 exec_hi, s{sX0+3}, 1")
    a.e(f"ds_write_b32 v{vFA}, v{vSD} offset:512")
    a.label("K2_MERGED")
    a.e(f"s_mov_b64 exec, s[{sX0}:{sX0+1}]")
    a.e("s_waitcnt vmcnt(0) lgkmcnt(0)")
    a.e("s_barrier")
    stamp(a, 49, 252)
    a.e(f"s_cmp_lg_u32 s{sMore}, 0")
    a.e("s_cbranch_scc1 K2_MORE")
    wf = Asm(); wfrag_read(wf, 128, vT+4)
    a.e(f"ds_read_b32 v{vT+7}, v{vT+9} offset:{AGG + 512}")
    for j, o in enumerate((0, 16, 64, 80)):
        a.e(f"ds_read_b128 v[{64+4*j}:{67+4*j}], v{vT+6} offset:{AGG + o}")
    a.e("s_waitcnt lgkmcnt(4)")
    a.e(f"v_cmpx_ne_u32 vcc, 0, v{vT+7}")
    a.e(f"v_add_u32 v{vT+7}, v{vT+7}, v{vT+5}")
    for j, o in enumerate((0, 16, 64, 80)):
        a.e(f"ds_read_b128 v[{80+4*j}:{83+4*j}], v{vT+7} offset:{o}")
    a.e("s_mov_b64 exec, -1")
    for x in wf.lines[:8]: a.e(x)
    a.e("s_mov_b64 exec, vcc")
    for j in range(4):
        a.e(f"s_waitcnt lgkmcnt({11-j})")
        for i in range(2):
            r = 64 + 4*j + 2*i
            a.e(f"v_pk_add_f32 {p2(r)}, {p2(r)}, {p2(r+16)}")
    a.e("s_mov_b64 exec, -1")
    for j in range(2):
        for i in range(4):
            a.e(f"v_cvt_pk_bf16_f32 v{96+4*j+i}, v{64+8*j+2*i}, v{65+8*j+2*i}")
        a.e(f"ds_write_b128 v{vT+2}, v[{96+4*j}:{99+4*j}] offset:{1024*j}")
    for x in wf.lines[8:]: a.e(x)
    a.e("s_waitcnt lgkmcnt(8)")
    a.e("s_barrier")
    stamp(a, 10, 252)
    for st in range(8):
        a.e(f"ds_read_b128 v[{64+4*st}:{67+4*st}], v{vT+3} offset:{(st>>1)*8192 + (st&1)*1024}")
    if cfg.owt:
        a.e(f"v_mul_u32_u24 v{vT+10}, 80, v{vM}")
        a.e(f"v_lshl_add_u32 v{vT+10}, v{vH16}, 1, v{vT+10}")
        a.e(f"s_add_u32 s{sT+1}, s{sM0}, 256")
        a.e(f"v_add_u32 v{vT+10}, s{sT+1}, v{vT+10}")
        a.e(f"v_lshrrev_b32 v{vT+12}, 2, v{vL}")
        a.e(f"v_and_b32 v{vT+14}, 3, v{vL}")
        a.e(f"v_lshlrev_b32 v{vT+14}, 4, v{vT+14}")
        a.e(f"v_lshl_add_u32 v{vT+13}, v{vT+12}, 8, v{vT+14}")
        a.e(f"v_mul_u32_u24 v{vT+12}, 80, v{vT+12}")
        a.e(f"v_add3_u32 v{vT+12}, v{vT+12}, v{vT+14}, s{sT+1}")
        a.e(f"s_lshr_b32 s{sT+3}, s{sW}, 2")
        a.e(f"s_lshl_b32 s{sT+3}, s{sT+3}, 13")
        a.e(f"s_and_b32 s{sT+4}, s{sW}, 3")
        a.e(f"s_lshl_b32 s{sT+4}, s{sT+4}, 6")
        a.e(f"s_add_u32 s{sT+3}, s{sT+3}, s{sT+4}")
        a.e(f"v_add_u32 v{vT+13}, s{sT+3}, v{vT+13}")
    else:
        a.e(f"v_mul_u32_u24 v{vT+10}, 272, v{vT+8}")
        a.e(f"v_lshl_add_u32 v{vT+10}, v{vH16}, 1, v{vT+10}")
        a.e(f"s_and_b32 s{sT+1}, s{sW}, 3")
        a.e(f"s_lshl_b32 s{sT+1}, s{sT+1}, 6")
        a.e(f"s_add_u32 s{sT+1}, s{sT+1}, {STG}")
        a.e(f"v_add_u32 v{vT+10}, s{sT+1}, v{vT+10}")
        a.e(f"v_lshrrev_b32 v{vT+12}, 4, v0")
        a.e(f"v_lshlrev_b32 v{vT+13}, 4, v0")
        a.e(f"v_lshl_add_u32 v{vT+12}, v{vT+12}, 4, v{vT+13}")
        a.e(f"v_add_u32 v{vT+12}, {STG}, v{vT+12}")
    for st in range(8):
        a.e(f"s_waitcnt lgkmcnt({7-st})")
        c = f"v[{ACX}:{ACX+15}]" if st == 0 else "v[160:175]"
        a.e(f"v_mfma_f32_32x32x16_bf16 v[160:175], v[{128+4*st}:{131+4*st}], v[{64+4*st}:{67+4*st}], {c}")
    a.e(f"s_mov_b32 s{sT+1}, {LOG2E_NEG}")
    a.e(f"s_mov_b32 s{sT}, {LOG2E_NEG}")
    stamp(a, 50, 252)
    a.e(f"s_mov_b32 s{sT+2}, 0x7b800000")
    a.e(f"v_cmp_le_f32 s[{sX0+2}:{sX0+3}], s{sT+2}, v{vCHK}")
    a.e(f"v_mov_b32 v{vT+11}, 0x207")
    a.e("s_nop 6")
    a.e(f"v_cmp_class_f32 vcc, v160, v{vT+11}")
    for hf in range(2):
        R = range(8 * hf, 8 * hf + 8)
        for i in R: a.e(f"v_exp_f32 v{64+i}, v{160+i}")
        if hf == 0:
            a.e(f"s_and_b64 vcc, vcc, s[{sX0}:{sX0+1}]")
            a.e(f"s_or_b64 s[{sX0+2}:{sX0+3}], vcc, s[{sX0+2}:{sX0+3}]")
        if hf: a.e("s_nop 0")
        for i in R[::2]: a.e(f"v_pk_fma_f32 {p2(64+i)}, {p2(64+i)}, s[{sT}:{sT+1}], s[{sT}:{sT+1}]")
        for i in R: a.e(f"v_rcp_f32 v{64+i}, v{64+i}")
        for i in R[::2]: a.e(f"v_pk_mul_f32 {p2(64+i)}, {p2(160+i)}, {p2(64+i)}")
        for i in range(4 * hf, 4 * hf + 4): a.e(f"v_cvt_pk_bf16_f32 v{80+i}, v{64+2*i}, v{65+2*i}")
        o = " offset:16" if hf else ""
        a.e(f"ds_write_b128 v{vT+10}, v[{80+4*hf}:{83+4*hf}]{o}")
    if cfg.owt:
        a.e(f"ds_read_b128 v[88:91], v{vT+12}")
        a.e(f"ds_read_b128 v[92:95], v{vT+12} offset:{16*80}")
        a.e(f"v_mov_b32 v{vT}, 1")
        a.e(f"v_mov_b32 v{vT+1}, {FLG+4}")
        a.e(f"s_movk_i32 s{sT+1}, 4096")
        a.e("s_waitcnt lgkmcnt(1)")
        a.e(f"buffer_store_dwordx4 v[88:91], v{vT+13}, s[{sO}:{sO+3}], 0 offen {cfg.o_pol}")
        a.e("s_waitcnt lgkmcnt(0)")
        a.e(f"buffer_store_dwordx4 v[92:95], v{vT+13}, s[{sO}:{sO+3}], s{sT+1} offen {cfg.o_pol}")
        a.e(f"s_mov_b64 exec, s[{sX0+2}:{sX0+3}]")
        a.e(f"ds_write_b32 v{vT+1}, v{vT}")
        a.e("s_mov_b64 exec, -1")
        a.e("s_waitcnt lgkmcnt(0)")
        a.e("s_barrier")
        a.e(f"ds_read_b32 v{vT}, v{vT+1}")
    else:
        a.e(f"v_mov_b32 v{vT}, 1")
        a.e(f"v_mov_b32 v{vT+1}, {FLG+4}")
        a.e(f"s_mov_b64 exec, s[{sX0+2}:{sX0+3}]")
        a.e(f"ds_write_b32 v{vT+1}, v{vT}")
        a.e("s_mov_b64 exec, -1")
        a.e(f"s_movk_i32 s{sT+1}, 8192")
        a.e("s_waitcnt lgkmcnt(0)")
        stamp(a, 51, 252)
        a.e("s_barrier")
        stamp(a, 52, 252)
        a.e(f"ds_read_b128 v[88:91], v{vT+12}")
        a.e(f"ds_read_b128 v[92:95], v{vT+12} offset:{32*272}")
        a.e(f"ds_read_b32 v{vT}, v{vT+1}")
        a.e("s_waitcnt lgkmcnt(2)")
        a.e(f"buffer_store_dwordx4 v[88:91], v{vT+13}, s[{sO}:{sO+3}], 0 offen {cfg.o_pol}")
        a.e("s_waitcnt lgkmcnt(1)")
        a.e(f"buffer_store_dwordx4 v[92:95], v{vT+13}, s[{sO}:{sO+3}], s{sT+1} offen {cfg.o_pol}")
    stamp(a, 11, 252)
    if cfg.dbg:
        a.e("s_waitcnt vmcnt(0)")
        a.e(f"v_writelane_b32 v252, s{sNT}, 13")
    stamp(a, 12, 252)
    stamp_out(a, 252, 253, 1)
    if cfg.x: a.e("s_branch K2_END")
    a.e("s_waitcnt lgkmcnt(0)")
    a.e(f"v_readfirstlane_b32 s{sT}, v{vT}")
    a.e(f"s_cmp_lg_u32 s{sSafe}, 0")
    a.e("s_cbranch_scc1 K2_END")
    a.e(f"s_cmp_lg_u32 s{sT}, 0")
    a.e("s_cbranch_scc1 K2_SAFE")
    a.label("K2_END")
    a.e("s_endpgm")
    a.lines += ool.lines
    a.label("K2_CODE_END")
    a.lines += rare.lines
    a.label("K2_NOTILES")
    a.e("s_waitcnt vmcnt(0)")
    w_dma(a, sWu, vWC, sW4k, 32768, WU2, sT)
    a.e("s_branch K2_AFTER")
    a.label("K2_SLOWM")
    for c in range(4):
        a.e(f"ds_read_b32 v{vT+16+c}, v{vSD} offset:{128*c}")
    a.e("s_waitcnt vmcnt(0) lgkmcnt(0)")
    a.e("s_barrier")
    a.e(f"s_mov_b64 exec, s[{sX0+2}:{sX0+3}]")
    for c in range(4):
        a.e(f"ds_add_f32 v{vFA}, v{vT+16+c} offset:{128*c}")
    a.e("s_branch K2_MERGED")
    a.label("K2_SAFE")
    a.e("s_waitcnt vmcnt(0)")
    a.e("s_barrier")
    a.e(f"s_mov_b32 s{sSafe}, -1")
    a.e(f"s_mov_b32 s{sDone}, 0")
    reset_round(a, True)
    a.e("s_branch K2_ROUND")
    a.label("K2_MORE")
    a.e("s_mov_b64 exec, -1")
    a.e(f"s_add_u32 s{sDone}, s{sDone}, s{sLim}")
    a.e("s_branch K2_RESET")
    a.label("K2_TOOBIG")
    a.e("s_barrier")
    a.e(f"s_mov_b32 s{sLim}, 16")
    a.label("K2_RESET")
    reset_round(a, False)
    a.label("K2_ROUND")
    srd(a, sR, S_WS, off_c=cfg.wsoff + WS_S01, size=WS_OFFT + 262144 - WS_S01)
    a.e(f"v_and_b32 v{t}, 0x1fc, v0")
    a.e(f"s_lshl_b32 s{sT}, s{sBin}, 10")
    a.e(f"s_add_u32 s{sT}, s{sT}, {WS_OFFT - WS_S01}")
    a.e(f"v_mov_b32 v{vROFF}, 0")
    a.e(f"v_cmp_lt_u32 vcc, 32, v{vOC}")
    a.e("s_mov_b64 exec, vcc")
    a.e(f"buffer_load_dword v{vROFF}, v{t}, s[{sR}:{sR+3}], s{sT} offen")
    a.e("s_mov_b64 exec, -1")
    a.e(f"v_and_b32 v{vW0}, 3, v0")
    a.e(f"v_lshlrev_b32 v{vW0}, 2, v{vW0}")
    a.e(f"v_add_u32 v{vW0}, s{sDone}, v{vW0}")
    a.e(f"s_lshl_b32 s{sT}, s{sBin}, {6 if cfg.lohi else 7}")
    a.e(f"v_lshl_add_u32 v{t}, v{t}, 13, s{sT}")
    a.e(f"s_mov_b32 s{sT}, {WS_REC - WS_S01 - 4}")
    a.e("s_waitcnt vmcnt(0)")
    a.e(f"v_add_u32 v{t+2}, v{vEB}, v{vROFF}")
    a.e(f"v_lshl_add_u32 v{t+2}, v{t+2}, 2, s{sT}")
    for g in range(2):
        a.e(f"v_add_u32 v{t+3}, {16*g}, v{vW0}")
        a.e(f"v_cmp_gt_u32 vcc, 32, v{t+3}")
        a.e("s_nop 1")
        if cfg.lohi:
            a.e(f"v_and_b32 v{t+1}, 16, v{t+3}")
            a.e(f"v_mul_u32_u24 v{t+1}, 1020, v{t+1}")
            a.e(f"v_add_u32 v{t+1}, v{t+1}, v{t}")
            a.e(f"v_cndmask_b32 v{t+4+g}, v{t+2}, v{t+1}, vcc")
        else:
            a.e(f"v_cndmask_b32 v{t+4+g}, v{t+2}, v{t}, vcc")
        a.e(f"v_lshl_add_u32 v{t+4+g}, v{t+3}, 2, v{t+4+g}")
        a.e(f"buffer_load_dwordx4 v[{RC+4*g}:{RC+4*g+3}], v{t+4+g}, s[{sR}:{sR+3}], 0 offen")
    round_consts(a)
    a.e("s_waitcnt vmcnt(0) lgkmcnt(0)")
    a.e("s_barrier")
    a.e("s_branch K2_COUNT")

HEADER = open("cdna_kernels/" + NAME + ".s.ref").read().split("; Override launch")[0]
def generate():
    a = Asm()
    gen_k1(a)
    gen_k2(a)
    if cfg.rep:
        rp = [int(v) for v in cfg.rep.split(",")]; k, wg, idx, j0, j1 = (rp + [0, 4])[:5]; xs = rp[5:]
        kernel_head(a, "rep_kernel")
        a.e("s_load_dwordx2 s[20:21], s[0:1], 64")
        a.e("s_cmp_lg_u32 s2, 0")
        a.e("s_cbranch_scc1 REP_END")
        a.e("s_waitcnt lgkmcnt(0)")
        srd(a, 8, S_WS, off_c=WS_DBG, size=0x200000)
        op = "max" if wg == 1 else "min"
        a.e("v_lshlrev_b32 v1, 11, v0")
        a.e(f"v_add_u32 v2, {k*0x100000 + idx*4}, v1")
        for j in range(4):
            a.e(f"s_mov_b32 s12, {j*64*2048}")
            a.e(f"buffer_load_dword v{4+j}, v1, s[8:11], s12 offen")
            a.e(f"buffer_load_dword v{8+j}, v2, s[8:11], s12 offen")
        a.e("s_waitcnt vmcnt(0)")
        for j in range(1, 4):
            a.e(f"v_min_u32 v4, v4, v{4+j}")
            if j0 < j < j1: a.e(f"v_{op}_u32 v{8+j0}, v{8+j0}, v{8+j}")
        a.e(f"v_mov_b32 v8, v{8+j0}")
        a.e("s_nop 1")
        a.e("v_readlane_b32 s12, v4, 0")
        a.e(f"v_readlane_b32 s13, v8, {xs[0] if xs else 0}")
        for l in range(1, 63):
            a.e(f"v_readlane_b32 s14, v4, {l}")
            a.e(f"v_readlane_b32 s15, v8, {l}")
            a.e("s_min_u32 s12, s12, s14")
            if not xs or l % 8 in xs: a.e(f"s_{op}_u32 s13, s13, s15")
        a.e("s_sub_u32 s12, s13, s12")
        a.e("s_min_u32 s12, s12, 8000")
        a.e("s_lshl_b32 s12, s12, 2")
        a.e("s_memrealtime s[14:15]")
        a.e("s_waitcnt lgkmcnt(0)")
        a.label("REP_L")
        a.e("s_memrealtime s[16:17]")
        a.e("s_waitcnt lgkmcnt(0)")
        a.e("s_sub_u32 s13, s16, s14")
        a.e("s_cmp_lt_u32 s13, s12")
        a.e("s_cbranch_scc1 REP_L")
        a.label("REP_END")
        a.e("s_endpgm")
    if cfg.align:
        a.lines, bad = align_pass(a.lines, "K2_LOOP" if cfg.align < 3 else "prep_kernel", "K2_CODE_END", cfg.align == 2)
        print("misaligned left:", bad, file=sys.stderr)
    body = a.text()
    probs = check_text(body)
    for p in probs: print("HAZARD", p, file=sys.stderr)
    k1lds = K1_LDS_B
    out = HEADER
    out += f"; @launch kernel=prep_kernel grid=(256,1,1) block=(512,1,1) lds={k1lds}\n"
    out += f"; @launch kernel={NAME}_kernel grid=(256,1,1) block=(512,1,1) lds={K2_LDS}\n"
    if cfg.rep: out += "; @launch kernel=rep_kernel grid=(1,1,1) block=(64,1,1) lds=0\n"
    out += '.amdgcn_target "amdgcn-amd-amdhsa--gfx950"\n' + body
    out += '.section .rodata,"a"\n.p2align 6\n' + kernel_desc("prep_kernel", 200 if cfg.dbg else 160, 96 if cfg.dbg else 80) + ".p2align 6\n" + kernel_desc(NAME + "_kernel", 256, 96)
    if cfg.rep: out += ".p2align 6\n" + kernel_desc("rep_kernel", 16, 32)
    return out

if __name__ == "__main__":
    outp = sys.argv[1]
    for kv in sys.argv[2:]:
        k, v = kv.split("=", 1)
        cur = getattr(cfg, k)
        setattr(cfg, k, (v not in ("0", "False")) if isinstance(cur, bool) else int(v, 0) if isinstance(cur, int) else v)
    open(outp, "w").write(generate())
```

```python
import sys
from asmlib import *

NAME = "gather_scatter__mpnn_edge_mlp__graph"
class Cfg:
    modeA = False
    wsoff = 0
    st_pol = "sc1"
    ld_pol = "nt"
    e_pol = ""
    prefetchP = 1
    pf0 = False
    early = True
    o_pol = "sc1"
    ot_pol = ""
    touch = 1
    etouch = 0
    epos = 1
    align = 1
    prio = 2
    bias = 14
    k1s = 0
    w3o = 0xAD0000
    lohi = 0
    gran = 0
    k1t = 0
    k1d = 0
    tlb = 0
    cw = 0
    g_pol = ''
    s_pol = ''
    owt = 1
    k1w = 0
    e1e = 0
    e0f = 0
    few = False
    spf = 0
    ratio = 0
    k1o = 0
    p_pol = 'sc1'
    pmix = 3
    p_pol2 = ''
    pfm = 0
    pfmpos = 5
    pfe = 0
    et_pol = ''
    t1pos = 1
    pfn = 320
    pfpos = 1
    nw = '4,4,4,4'
    x_pol = ""
    dbg = False
    lst = False
    x = ""
    rep = ""
cfg = Cfg()

NB = 250; NPB = 50; CH = 1600
WS_P = 4096; WS_S01 = 0x320000; WS_REC = 0x900000; WS_OFFT = 0xA90000;  WS_WF = 0xAE0000
LOG2E_NEG = "0xbfb8aa3b"
LN2_NEG = "0xbf317218"

S_X, S_E, S_SRC, S_DST, S_WM, S_WU, S_OUT, S_DBG, S_WS = 4, 6, 8, 10, 12, 14, 16, 18, 20

def load_args(a):
    a.e("s_load_dwordx16 s[4:19], s[0:1], 0")
    a.e("s_load_dwordx2 s[20:21], s[0:1], 64")

def srd(a, d, ptr, off_s=None, off_c=0, size=0):
    if off_s is not None:
        a.e(f"s_add_u32 s{d}, s{ptr}, s{off_s}")
        a.e(f"s_addc_u32 s{d+1}, s{ptr+1}, 0")
        if off_c:
            a.e(f"s_add_u32 s{d}, s{d}, {off_c}")
            a.e(f"s_addc_u32 s{d+1}, s{d+1}, 0")
    elif off_c:
        a.e(f"s_add_u32 s{d}, s{ptr}, {off_c}")
        a.e(f"s_addc_u32 s{d+1}, s{ptr+1}, 0")
    else:
        a.e(f"s_mov_b32 s{d}, s{ptr}")
        a.e(f"s_mov_b32 s{d+1}, s{ptr+1}")
    a.e(f"s_mov_b32 s{d+2}, {size}")
    a.e(f"s_mov_b32 s{d+3}, 0x20000")

def idmap(a, dst, src, t, sh=5):
    a.e(f"s_and_b32 s{t}, s{src}, 7")
    a.e(f"s_lshr_b32 s{dst}, s{src}, 3")
    a.e(f"s_lshl_b32 s{t}, s{t}, {sh}")
    a.e(f"s_add_u32 s{dst}, s{dst}, s{t}")

def scan64(a, v):
    for sh in (1, 2, 4, 8):
        a.e("s_nop 1")
        a.e(f"v_add_u32_dpp v{v}, v{v}, v{v} row_shr:{sh} row_mask:0xf bank_mask:0xf bound_ctrl:0")
    a.e("s_nop 1")
    a.e(f"v_add_u32_dpp v{v}, v{v}, v{v} row_bcast:15 row_mask:0xa bank_mask:0xf")
    a.e("s_nop 1")
    a.e(f"v_add_u32_dpp v{v}, v{v}, v{v} row_bcast:31 row_mask:0xc bank_mask:0xf")

def x_dma(a, sX, sW, vL, lds_base, t0, st, pol="", strided=False):
    a.e(f"v_lshrrev_b32 v{t0}, 4, v{vL}")
    a.e(f"v_and_b32 v{t0+1}, 15, v{vL}")
    a.e(f"v_xor_b32 v{t0+1}, v{t0+1}, v{t0}")
    a.e(f"v_lshlrev_b32 v{t0+1}, 4, v{t0+1}")
    a.e(f"v_lshl_add_u32 v{t0}, v{t0}, 8, v{t0+1}")
    a.e(f"s_and_b32 s{st}, s{sW}, 1")
    a.e(f"s_lshl_b32 s{st}, s{st}, 7")
    a.e(f"v_xor_b32 v{t0}, s{st}, v{t0}")
    a.e(f"v_xor_b32 v{t0+1}, 64, v{t0}")
    if strided:
        a.e(f"s_lshr_b32 s{st+1}, s{sW}, 1")
        a.e(f"s_lshl_b32 s{st+1}, s{st+1}, 12")
        a.e(f"s_lshl_b32 s{st}, s{sW}, 11")
        a.e(f"s_add_u32 s{st+1}, s{st+1}, s{st}")
        a.e(f"s_add_u32 m0, s{st+1}, {lds_base}")
    else:
        a.e(f"s_lshl_b32 s{st}, s{sW}, 11")
        a.e(f"s_add_u32 m0, s{st}, {lds_base}")
    a.e("s_nop 0")
    a.e(f"buffer_load_dwordx4 v{t0}, s[{sX}:{sX+3}], s{st} offen {pol} lds")
    a.e(f"buffer_load_dwordx4 v{t0+1}, s[{sX}:{sX+3}], s{st} offen offset:1024 {pol} lds")

def w_lane_const(a, vW, vL, t):
    a.e(f"v_lshrrev_b32 v{t}, 4, v{vL}")
    a.e(f"v_and_b32 v{vW}, 15, v{vL}")
    a.e(f"v_lshlrev_b32 v{vW}, 4, v{vW}")
    a.e(f"v_lshlrev_b32 v{t+1}, 6, v{t}")
    a.e(f"v_xor_b32 v{vW}, v{vW}, v{t+1}")
    a.e(f"v_lshl_add_u32 v{vW}, v{t}, 8, v{vW}")

def w_dma(a, sSrd, vW, sW4096, goff, lds_base, st):
    a.e(f"s_add_u32 s{st}, s{sW4096}, {goff}")
    a.e(f"s_add_u32 m0, s{sW4096}, {lds_base}")
    a.e("s_nop 0")
    for i in range(4):
        o = f" offset:{1024*i}" if i else ""
        a.e(f"buffer_load_dwordx4 v{vW}, s[{sSrd}:{sSrd+3}], s{st} offen{o} lds")

def wfrag_const(a, vA, vL, sW, t, st):
    a.e(f"v_lshrrev_b32 v{t}, 5, v{vL}")
    a.e(f"v_bfe_u32 v{t+1}, v{vL}, 2, 2")
    a.e(f"v_lshl_add_u32 v{t}, v{t}, 3, v{t+1}")
    a.e(f"v_lshlrev_b32 v{vA}, 8, v{t}")
    a.e(f"v_and_b32 v{t}, 1, v{vL}")
    a.e(f"v_lshlrev_b32 v{t}, 5, v{t}")
    a.e(f"v_bfe_u32 v{t+2}, v{vL}, 1, 1")
    a.e(f"v_lshl_add_u32 v{t}, v{t+2}, 3, v{t}")
    a.e(f"v_bfe_u32 v{t+2}, v{vL}, 4, 1")
    a.e(f"v_lshl_add_u32 v{t}, v{t+2}, 4, v{t}")
    a.e(f"s_and_b32 s{st}, s{sW}, 3")
    a.e(f"s_lshl_b32 s{st}, s{st}, 6")
    a.e(f"v_add_u32 v{t}, s{st}, v{t}")
    a.e(f"v_lshlrev_b32 v{t+1}, 6, v{t+1}")
    a.e(f"v_xor_b32 v{t}, v{t}, v{t+1}")
    a.e(f"v_add_u32 v{vA}, v{vA}, v{t}")

def wfrag_read(a, dst, vAddr, off=0, stride=4096):
    for s in range(8):
        for u in range(2):
            r = (dst[s] if isinstance(dst, list) else dst + 4*s) + 2*u
            a.e(f"ds_read_b64_tr_b16 v[{r}:{r+1}], v{vAddr} offset:{off+s*stride+u*1024}")

def xfrag_read(a, dst, vL, sW, lds_base, t, st):
    a.e(f"v_and_b32 v{t}, 31, v{vL}")
    a.e(f"v_lshrrev_b32 v{t+1}, 5, v{vL}")
    a.e(f"v_and_b32 v{t+2}, 15, v{vL}")
    a.e(f"v_xor_b32 v{t+1}, v{t+1}, v{t+2}")
    a.e(f"v_lshlrev_b32 v{t+1}, 4, v{t+1}")
    a.e(f"v_lshl_add_u32 v{t}, v{t}, 8, v{t+1}")
    a.e(f"s_lshr_b32 s{st}, s{sW}, 2")
    a.e(f"s_lshl_b32 s{st}, s{st}, 13")
    a.e(f"s_add_u32 s{st}, s{st}, {lds_base}")
    a.e(f"v_add_u32 v{t}, s{st}, v{t}")
    for s in range(8):
        if s == 0:
            a.e(f"ds_read_b128 v[{dst}:{dst+3}], v{t}")
        else:
            r = t + 1 + (s & 1)
            a.e(f"v_xor_b32 v{r}, {32*s}, v{t}")
            a.e(f"ds_read_b128 v[{dst+4*s}:{dst+4*s+3}], v{r}")

def gemm8(a, acc, A, B, zero=True):
    for s in range(8):
        c = "0" if (s == 0 and zero) else f"v[{acc}:{acc+15}]"
        r = A[s] if isinstance(A, list) else A + 4*s
        a.e(f"v_mfma_f32_32x32x16_bf16 v[{acc}:{acc+15}], v[{r}:{r+3}], v[{B+4*s}:{B+4*s+3}], {c}")

WS_DBG = 0x2000000
def stamp(a, i, vst):
    if not cfg.dbg: return
    if cfg.few and not (i in (0, 1, 2, 3) if vst == 197 else i in (7, 8, 9, 12)): return
    a.e("s_memrealtime s[90:91]")
    a.e("s_waitcnt lgkmcnt(0)")
    a.e(f"v_writelane_b32 v{vst}, s90, {i}")
def stamp_out(a, vst, vt, kidx):
    if not cfg.dbg: return
    srd(a, 92, S_WS, off_c=WS_DBG + kidx * 0x100000, size=0x100000)
    a.e(f"s_lshl_b32 s90, s2, 11")
    a.e(f"v_lshl_add_u32 v{vt}, v0, 2, s90")
    a.e(f"buffer_store_dword v{vst}, v{vt}, s[92:95], 0 offen")

def kernel_head(a, name):
    a.e(".text")
    a.e(f".globl {name}")
    a.e(".p2align 8")
    a.e(f".type {name},@function")
    a.label(name)

def kernel_desc(name, vg, sg):
    acc = (vg + 3) // 4 * 4
    return f""".amdhsa_kernel {name}
  .amdhsa_next_free_vgpr {vg}
  .amdhsa_next_free_sgpr {sg}
  .amdhsa_accum_offset {acc}
  .amdhsa_group_segment_fixed_size 0
  .amdhsa_kernarg_size 72
  .amdhsa_user_sgpr_count 2
  .amdhsa_user_sgpr_kernarg_segment_ptr 1
  .amdhsa_system_sgpr_workgroup_id_x 1
.end_amdhsa_kernel
"""

K1_LDS_A = 16384 + 57344
K1_LDS_B = 65536 + 96*272
def gen_k1(a):
    kernel_head(a, "prep_kernel")
    load_args(a)
    sW, sId, sT = 22, 23, 44
    vL = 1
    a.e(f"v_and_b32 v{vL}, 63, v0")
    a.e(f"v_lshrrev_b32 v2, 6, v0")
    a.e("s_nop 0")
    a.e(f"v_readfirstlane_b32 s{sW}, v2")
    if cfg.dbg: a.e("v_mov_b32 v197, 0")
    stamp(a, 0, 197)
    if cfg.dbg:
        a.e("s_getreg_b32 s90, hwreg(HW_REG_XCC_ID)")
        a.e("s_add_u32 s90, s90, 1")
        a.e("v_writelane_b32 v197, s90, 63")
    if cfg.k1d: a.e(f"s_sleep {cfg.k1d}")
    a.e(f"s_mov_b32 s{sId}, s2")
    a.e("s_cmp_lt_u32 s2, 120")
    a.e("s_cbranch_scc1 K1_BIN")
    a.e(f"s_sub_u32 s{sId}, s2, 3")
    a.e("s_sub_u32 s3, s2, 123")
    a.e("s_cmp_lt_u32 s3, 5")
    a.e("s_cbranch_scc1 K1_BIN")
    a.e("s_cmp_ge_u32 s2, 256")
    a.e("s_cbranch_scc1 K1_END")
    a.e(f"s_and_b32 s{sT}, s2, 7")
    a.e(f"s_lshr_b32 s{sId}, s2, 3")
    a.e(f"s_lshl4_add_u32 s{sId}, s{sT}, s{sId}")
    a.e(f"s_min_u32 s{sT}, s{sT}, 2")
    a.e(f"s_add_u32 s{sId}, s{sId}, s{sT}")
    a.e(f"s_sub_u32 s{sId}, s{sId}, 15")
    a.e(f"s_mul_i32 s{sT+2}, s{sId}, 24576")
    a.e(f"s_sub_u32 s{sT+4}, 3200000, s{sT+2}")
    a.e(f"s_min_u32 s{sT+4}, s{sT+4}, 24576")
    a.e(f"v_lshrrev_b32 v2, 4, v{vL}")
    a.e(f"v_and_b32 v3, 15, v{vL}")
    a.e(f"v_xor_b32 v3, v3, v2")
    a.e(f"v_lshlrev_b32 v3, 4, v3")
    a.e(f"v_lshl_add_u32 v16, v2, 8, v3")
    for i in range(1, 4): a.e(f"v_xor_b32 v{16+i}, {64*i}, v16")
    w_lane_const(a, 4, vL, 5)
    a.e(f"s_lshl_b32 s{sT+3}, s{sW}, 12")
    a.e("s_waitcnt lgkmcnt(0)")
    if cfg.k1t == 2:
        srd(a, 32, S_WS, off_s=sT+2, off_c=cfg.wsoff + WS_P, size=f"s{sT+4}")
        a.e(f"v_lshlrev_b32 v30, 12, v0")
        a.e(f"buffer_load_dword v31, v30, s[32:35], 0 offen")
    def xl():
        a.e(f"s_mov_b32 m0, s{sT+3}")
        srd(a, 24, S_X, off_s=sT+2, size=f"s{sT+4}")
        for i in range(4):
            o = f" offset:{1024*i}" if i else ""
            a.e(f"buffer_load_dwordx4 v{16+i}, s[24:27], s{sT+3} offen{o} {cfg.x_pol} lds")
    def wl():
        srd(a, 28, S_WM, size=32768)
        w_dma(a, 28, 4, sT+3, 0, 32768, sT)
    xl(); wl()
    srd(a, 32, S_WS, off_s=sT+2, off_c=cfg.wsoff + WS_P, size=f"s{sT+4}")
    if cfg.k1t == 1:
        a.e(f"v_lshlrev_b32 v30, 12, v0")
        a.e(f"buffer_load_dword v31, v30, s[32:35], 0 offen")
    if cfg.k1s == 1:
        a.e("s_lshl_b32 s67, s2, 10")
        srd(a, 68, S_WS, off_s=67, off_c=cfg.wsoff + 0x710000, size=1024)
        a.e("v_lshlrev_b32 v28, 4, v0")
        a.e(f"buffer_store_dwordx4 v[28:31], v28, s[68:71], 0 offen {cfg.st_pol}")
    if cfg.k1s == 2:
        a.e("v_lshlrev_b32 v28, 12, v0")
        a.e(f"buffer_store_dword v28, v28, s[32:35], 0 offen {cfg.st_pol}")
    wfrag_const(a, 8, vL, sW, 9, sT)
    OT = 65536
    a.e(f"v_and_b32 v12, 31, v{vL}")
    a.e(f"v_lshrrev_b32 v13, 5, v{vL}")
    a.e(f"v_and_b32 v15, 15, v{vL}")
    a.e(f"v_xor_b32 v15, v15, v13")
    a.e(f"v_lshlrev_b32 v15, 4, v15")
    a.e(f"v_lshl_add_u32 v15, v12, 8, v15")
    a.e(f"s_lshr_b32 s{sT}, s{sW}, 2")
    a.e(f"s_lshl_b32 s{sT+1}, s{sT}, 14")
    a.e(f"v_add_u32 v20, s{sT+1}, v15")
    for st in range(1, 8): a.e(f"v_xor_b32 v{20+st}, {32*st}, v20")
    if cfg.k1w:
        a.e(f"v_lshlrev_b32 v13, 5, v13")
        a.e(f"v_mul_u32_u24 v12, 80, v12")
        a.e(f"s_mul_i32 s{sT+5}, s{sW}, {32*80}")
        a.e(f"s_add_u32 s{sT+5}, s{sT+5}, {OT}")
        a.e(f"v_add3_u32 v12, s{sT+5}, v12, v13")
        a.e(f"v_lshrrev_b32 v13, 2, v{vL}")
        a.e(f"v_and_b32 v15, 3, v{vL}")
        a.e(f"v_lshlrev_b32 v15, 4, v15")
        a.e(f"v_lshl_add_u32 v14, v13, 8, v15")
        a.e(f"v_mul_u32_u24 v13, 80, v13")
        a.e(f"v_add3_u32 v13, v13, v15, s{sT+5}")
        a.e(f"s_lshl_b32 s{sT}, s{sT}, 14")
        a.e(f"s_and_b32 s{sT+1}, s{sW}, 3")
        a.e(f"s_lshl_b32 s{sT+1}, s{sT+1}, 6")
        a.e(f"v_add_u32 v14, s{sT}, v14")
        a.e(f"v_add_u32 v14, s{sT+1}, v14")
        a.e("s_movk_i32 s65, 4096\ns_movk_i32 s66, 12288")
    else:
        a.e(f"v_lshlrev_b32 v13, 5, v13")
        a.e(f"v_mul_u32_u24 v12, 272, v12")
        a.e(f"s_mul_i32 s{sT}, s{sT}, {64*272}")
        a.e(f"s_and_b32 s{sT+1}, s{sW}, 3")
        a.e(f"s_lshl_b32 s{sT+1}, s{sT+1}, 6")
        a.e(f"s_add_u32 s{sT}, s{sT}, s{sT+1}")
        a.e(f"s_add_u32 s{sT}, s{sT}, {OT}")
        a.e(f"v_add3_u32 v12, s{sT}, v12, v13")
        a.e(f"v_lshrrev_b32 v13, 4, v0")
        a.e(f"v_lshlrev_b32 v14, 4, v0")
        a.e(f"v_lshl_add_u32 v13, v13, 4, v14")
        a.e(f"v_add_u32 v13, {OT}, v13")
    a.e(f"s_mov_b32 s{sT}, {LOG2E_NEG}")
    a.e(f"s_mov_b32 s{sT+1}, {LOG2E_NEG}")
    a.e("s_movk_i32 s62, 8192\ns_movk_i32 s63, 16384\ns_movk_i32 s64, 24576")
    WF, X0, X1, A0, A1 = 32, 64, 96, 128, 144
    def rw(st):
        for u in range(2):
            a.e(f"ds_read_b64_tr_b16 v[{WF+4*st+2*u}:{WF+4*st+2*u+1}], v8 offset:{32768+st*4096+u*1024}")
    def rx0(st): a.e(f"ds_read_b128 v[{X0+4*st}:{X0+4*st+3}], v{20+st}")
    def mm(A, X, st):
        c = "0" if st == 0 else f"v[{A}:{A+15}]"
        a.e(f"v_mfma_f32_32x32x16_bf16 v[{A}:{A+15}], v[{WF+4*st}:{WF+4*st+3}], v[{X+4*st}:{X+4*st+3}], {c}")
    def fin(b, A):
        for i in range(8):
            a.e(f"v_pk_mul_f32 v[{A+2*i}:{A+2*i+1}], v[{A+2*i}:{A+2*i+1}], s[{sT}:{sT+1}]")
        for i in range(8):
            a.e(f"v_cvt_pk_bf16_f32 v{A+i}, v{A+2*i}, v{A+1+2*i}")
        if cfg.k1w and b:
            a.e("s_waitcnt lgkmcnt(0)")
            st2(0)
            a.e("v_add_u32 v14, s62, v14")
            b = 0
        if cfg.k1w:
            a.e(f"ds_write_b128 v12, v[{A}:{A+3}]")
            a.e(f"ds_write_b128 v12, v[{A+4}:{A+7}] offset:16")
            a.e(f"ds_read_b128 v[{48+8*b}:{51+8*b}], v13")
            a.e(f"ds_read_b128 v[{52+8*b}:{55+8*b}], v13 offset:{16*80}")
        else:
            a.e(f"ds_write_b128 v12, v[{A}:{A+3}] offset:{b*32*272}")
            a.e(f"ds_write_b128 v12, v[{A+4}:{A+7}] offset:{b*32*272+16}")
    def st2(b):
        for j in range(2):
            a.e(f"buffer_store_dwordx4 v[{48+8*b+4*j}:{51+8*b+4*j}], v14, s[32:35], {['0','s65','s62','s66'][2*b+j]} offen {cfg.p_pol}")
    a.e(f"s_cmp_ge_u32 s{sW}, 4")
    a.e(f"s_waitcnt vmcnt({4 + (cfg.k1t == 1) + (cfg.k1s > 0)})")
    a.e("s_barrier")
    for st in range(8): rx0(st)
    a.e("s_cbranch_scc1 K1_NX1")
    for st in range(8):
        a.e(f"ds_read_b128 v[{X1+4*st}:{X1+4*st+3}], v{20+st} offset:8192")
    a.label("K1_NX1")
    a.e(f"s_waitcnt vmcnt({int(cfg.k1t == 1) + (cfg.k1s > 0)})")
    stamp(a, 1, 197)
    a.e("s_barrier")
    for st in range(8): rw(st)
    for st in range(8):
        a.e(f"s_waitcnt lgkmcnt({14-2*st})")
        mm(A0, X0, st)
    a.e("s_cbranch_scc1 K1_NX2")
    for st in range(8): mm(A1, X1, st)
    a.e("s_nop 2")
    fin(0, A0)
    fin(1, A1)
    a.e("s_branch K1_NX3")
    a.label("K1_NX2")
    a.e("s_nop 10")
    fin(0, A0)
    a.label("K1_NX3")
    a.e("s_waitcnt vmcnt(0) lgkmcnt(0)" if cfg.k1s == 2 else "s_waitcnt lgkmcnt(0)")
    if cfg.k1w:
        st2(0)
    else:
        a.e("s_barrier")
        for j in range(3):
            a.e(f"ds_read_b128 v[{48+4*j}:{51+4*j}], v13 offset:{j*32*272}")
        for j in range(3):
            a.e(f"s_waitcnt lgkmcnt({2-j})")
            a.e(f"buffer_store_dwordx4 v[{48+4*j}:{51+4*j}], v14, s[32:35], {['0','s62','s63'][j]} offen {cfg.p_pol if j < cfg.pmix else cfg.p_pol2}")
    stamp(a, 2, 197)
    if cfg.dbg: a.e("s_waitcnt vmcnt(0)")
    stamp(a, 3, 197)
    stamp_out(a, 197, 198, 0)
    a.e("s_endpgm")
    SL, FLAG, SORT = 0, 36864, 36880
    a.label("K1_BIN")
    a.e(f"s_mul_i32 s{sT+2}, s{sId}, 12800")
    a.e(f"s_lshl_b32 s{sT+3}, s{sId}, 15")
    a.e("v_lshlrev_b32 v2, 4, v0")
    a.e("s_movk_i32 s3, 6400")
    a.e("s_movk_i32 s59, 400")
    a.e("v_cmp_gt_u32 s[60:61], s59, v0")
    a.e("s_waitcnt lgkmcnt(0)")
    D, S, BA, RK, AD = 4, 12, 20, 28, 36
    srd(a, 24, S_DST, off_s=sT+2, size=12800)
    a.e(f"buffer_load_dwordx4 v[{D}:{D+3}], v2, s[24:27], 0 offen {cfg.ld_pol}")
    a.e(f"buffer_load_dwordx4 v[{D+4}:{D+7}], v2, s[24:27], s3 offen {cfg.ld_pol}")
    srd(a, 28, S_SRC, off_s=sT+2, size=12800)
    a.e(f"buffer_load_dwordx4 v[{S}:{S+3}], v2, s[28:31], 0 offen {cfg.ld_pol}")
    a.e(f"buffer_load_dwordx4 v[{S+4}:{S+7}], v2, s[28:31], s3 offen {cfg.ld_pol}")
    srd(a, 32, S_WS, off_s=sT+3, off_c=cfg.wsoff + WS_S01, size=32768)
    if cfg.k1s == 1:
        a.e("s_lshl_b32 s67, s2, 10")
        srd(a, 68, S_WS, off_s=67, off_c=cfg.wsoff + 0x710000, size=1024)
        a.e("v_lshlrev_b32 v92, 4, v0")
        a.e(f"buffer_store_dwordx4 v[92:95], v92, s[68:71], 0 offen {cfg.st_pol}")
    if cfg.k1s == 2:
        a.e("v_lshlrev_b32 v92, 12, v0")
        a.e(f"buffer_store_dword v92, v92, s[32:35], 0 offen {cfg.st_pol}")
    a.e("v_mov_b32 v44, 1")
    a.e("v_min_u32 v3, 256, v0")
    a.e("v_mul_u32_u24 v3, 144, v3")
    a.e(f"ds_write_b32 v3, v44 offset:{SL}")
    a.e("v_lshlrev_b32 v45, 22, v0")
    a.e("s_movk_i32 s58, 10700")
    a.e("s_movk_i32 s57, 144")
    if cfg.lohi:
        a.e("v_lshrrev_b32 v86, 2, v0")
        a.e("v_mul_u32_u24 v86, 144, v86")
        a.e("v_and_b32 v46, 3, v0")
        a.e("v_lshl_add_u32 v46, v46, 4, v86")
    else:
        a.e("v_lshrrev_b32 v46, 3, v0")
        a.e("v_lshl_add_u32 v46, v46, 4, v2")
    a.e(f"v_mov_b32 v48, {FLAG}")
    if cfg.gran:
        a.e("v_lshrrev_b32 v86, 3, v0")
        a.e("v_mul_u32_u24 v86, 144, v86")
        a.e(f"v_and_b32 v87, {8 - cfg.gran // 16}, v0")
        a.e("v_lshlrev_b32 v87, 2, v87")
    a.e("s_movk_i32 s62, 8192\ns_movk_i32 s63, 16384\ns_movk_i32 s64, 24576")
    a.e("s_waitcnt lgkmcnt(0)")
    a.e("s_barrier")
    if True:
        a.e(f"s_cmp_lg_u32 s{sW}, 7")
        a.e("s_cbranch_scc1 K1_NOTOUCH")
        if cfg.k1t:
            a.e(f"v_lshlrev_b32 v84, 12, v{vL}")
            a.e(f"buffer_load_dword v85, v84, s[32:35], 0 offen")
        a.e("s_cmp_ge_u32 s2, 124")
        a.e("s_cbranch_scc1 K1_W3")
        a.e(f"s_lshr_b32 s{sT}, s2, 3")
        a.e(f"v_lshlrev_b32 v70, 7, v{vL}")
        if cfg.touch & 1:
            srd(a, 72, S_WM, off_c=32768, size=32768)
            srd(a, 76, S_WU, size=65536)
            a.e(f"s_mul_i32 s{sT+1}, s{sT}, {18*128}")
            a.e("s_mov_b64 exec, 0x3ffff")
            a.e(f"buffer_load_dword v71, v70, s[72:75], s{sT+1} offen")
            a.e(f"s_mul_i32 s{sT+1}, s{sT}, {35*128}")
            a.e("s_mov_b32 exec_lo, -1\ns_mov_b32 exec_hi, 7")
            a.e(f"buffer_load_dword v72, v70, s[76:79], s{sT+1} offen")
        if cfg.touch & 2:
            a.e("s_mov_b64 exec, 0x1ff")
            a.e("s_getpc_b64 s[68:69]")
            a.label("K1_PC")
            a.e(f"s_add_u32 s68, s68, {NAME}_kernel-K1_PC")
            a.e("s_addc_u32 s69, s69, 0")
            a.e(f"s_mul_i32 s{sT+1}, s{sT}, {9*128}")
            a.e(f"v_add_u32 v74, s{sT+1}, v70")
            a.e(f"v_min_u32 v74, K2_CODE_END-{NAME}_kernel-4, v74")
            a.e("v_mov_b32 v75, s69")
            a.e("v_add_co_u32 v74, vcc, s68, v74")
            a.e("s_nop 1")
            a.e("v_addc_co_u32 v75, vcc, 0, v75, vcc")
            a.e("global_load_dword v73, v[74:75], off")
        a.e("s_mov_b64 exec, -1")
        a.e("s_branch K1_B2")
        a.label("K1_NOTOUCH")
    a.e("s_mov_b64 exec, s[60:61]")
    for j in range(2):
        a.e(f"s_waitcnt vmcnt({3 - j + (cfg.k1s > 0)})")
        if j == 0: stamp(a, 1, 197)
        for i in range(4*j, 4*j+4):
            a.e(f"v_mul_u32_u24 v{AD+i}, s58, v{D+i}")
            a.e(f"v_lshrrev_b32 v{AD+i}, 19, v{AD+i}")
            a.e(f"v_mul_u32_u24 v{BA+i}, s57, v{AD+i}")
            a.e(f"ds_add_rtn_u32 v{RK+i}, v{BA+i}, v44 offset:{SL}")
    for i in range(8):
        a.e(f"v_mul_u32_u24 v{AD+i}, 49, v{AD+i}")
        a.e(f"v_sub_u32 v{D+i}, v{D+i}, v{AD+i}")
        if i: a.e(f"v_add_u32 v45, {hex(((1600-3) if i == 4 else 1) << 20)}, v45")
        a.e(f"v_or_b32 v{D+i}, v{D+i}, v45")
    a.e(f"s_waitcnt vmcnt({int(cfg.k1s > 0)})")
    stamp(a, 4, 197)
    for i in range(8):
        a.e(f"s_waitcnt lgkmcnt(7)")
        a.e(f"v_min_u32 v{AD+i}, 32, v{RK+i}")
        a.e(f"v_lshl_or_b32 v{D+i}, v{S+i}, 6, v{D+i}")
        a.e(f"v_lshl_add_u32 v{AD+i}, v{AD+i}, 2, v{BA+i}")
        a.e(f"ds_write_b32 v{AD+i}, v{D+i} offset:{SL}")
    a.e(f"v_max3_u32 v47, v{RK}, v{RK+1}, v{RK+2}")
    a.e(f"v_max3_u32 v47, v47, v{RK+3}, v{RK+4}")
    a.e(f"v_max3_u32 v47, v47, v{RK+5}, v{RK+6}")
    a.e(f"v_max_u32 v47, v47, v{RK+7}")
    a.e("v_cmpx_le_u32 vcc, 32, v47")
    a.e("ds_write_b32 v48, v47")
    a.e("s_mov_b64 exec, -1")
    a.e("s_waitcnt vmcnt(0) lgkmcnt(0)" if cfg.k1s == 2 else "s_waitcnt lgkmcnt(0)")
    stamp(a, 5, 197)
    a.label("K1_B2")
    a.e("s_barrier")
    stamp(a, 6, 197)
    if cfg.lohi:
        for j in range(4):
            a.e(f"ds_read_b128 v[{52+4*j}:{55+4*j}], v46 offset:{SL + (j&1)*128*144 + (j>>1)*64}")
        a.e(f"ds_read_b32 v49, v48")
        for j in range(4):
            a.e(f"s_waitcnt lgkmcnt({4-j})")
            if j < 2: a.e(f"v_mov_b32_dpp v{88+j}, v{52+4*j} quad_perm:[0,0,0,0] row_mask:0xf bank_mask:0xf")
            else:
                if cfg.lohi == 2 and j == 2:
                    for r in (88, 89): a.e(f"v_max_u32_dpp v{r}, v{r}, v{r} row_half_mirror row_mask:0xf bank_mask:0xf")
                a.e(f"v_cmpx_lt_u32 vcc, 16, v{86+j}")
            a.e(f"buffer_store_dwordx4 v[{52+4*j}:{55+4*j}], v2, s[32:35], {['0','s62','s63','s64'][j]} offen {cfg.st_pol}")
            if j >= 2: a.e("s_mov_b64 exec, -1")
        a.e("s_nop 0")
    else:
        for j in range(4):
            if cfg.gran: a.e(f"ds_read_b32 v{88+j}, v86 offset:{SL + j*9216}")
            a.e(f"ds_read_b128 v[{52+4*j}:{55+4*j}], v46 offset:{SL + j*9216}")
        a.e(f"ds_read_b32 v49, v48")
        for j in range(4):
            a.e(f"s_waitcnt lgkmcnt({7-2*j if cfg.gran else 4-j})")
            if cfg.gran: a.e(f"v_cmpx_lt_u32 vcc, v87, v{88+j}")
            a.e(f"buffer_store_dwordx4 v[{52+4*j}:{55+4*j}], v2, s[32:35], {['0','s62','s63','s64'][j]} offen {cfg.st_pol}")
            if cfg.gran: a.e("s_mov_b64 exec, -1")
        if cfg.gran: a.e("s_nop 0")
    a.e("s_waitcnt lgkmcnt(0)")
    a.e("v_readfirstlane_b32 s3, v49")
    a.e("s_cmp_lg_u32 s3, 1")
    a.e("s_cbranch_scc1 K1_FULL")
    stamp(a, 2, 197)
    if cfg.dbg: a.e("s_waitcnt vmcnt(0)")
    stamp(a, 3, 197)
    stamp_out(a, 197, 198, 0)
    a.label("K1_END")
    a.e("s_endpgm")
    a.label("K1_FULL")
    a.e("s_waitcnt vmcnt(0)")
    a.e(f"s_lshl_b32 s{sT+4}, s{sId}, 2")
    srd(a, 32, S_WS, off_s=sT+2, off_c=cfg.wsoff + WS_REC, size=12800)
    srd(a, 36, S_WS, off_s=sT+4, off_c=cfg.wsoff + WS_OFFT, size=255*1024 + 4)
    a.e(f"v_mul_u32_u24 v3, {4*144}, v{vL}")
    for i in range(4):
        a.e(f"ds_read_b32 v{52+i}, v3 offset:{SL + 144*i}")
    a.e("s_waitcnt lgkmcnt(0)")
    for i in range(4):
        a.e(f"v_add_u32 v{52+i}, -1, v{52+i}")
    a.e("v_add_u32 v56, v52, v53")
    a.e("v_add_u32 v57, v56, v54")
    a.e("v_add_u32 v58, v57, v55")
    a.e("v_mov_b32 v60, v58")
    scan64(a, 60)
    a.e("v_sub_u32 v60, v60, v58")
    a.e("v_add_u32 v61, v60, v52")
    a.e("v_add_u32 v62, v60, v56")
    a.e("v_add_u32 v63, v60, v57")
    for i in range(4):
        a.e(f"ds_write_b32 v3, v{60+i} offset:{SL + 144*i + 132}")
    a.e(f"s_cmp_lg_u32 s{sW}, 7")
    a.e("s_cbranch_scc1 K1_NOFFT")
    a.e(f"v_lshlrev_b32 v59, 12, v{vL}")
    for i in range(4):
        o = f" offset:{1024*i}" if i else ""
        a.e(f"buffer_store_dword v{60+i}, v59, s[36:39], 0 offen{o}")
    a.label("K1_NOFFT")
    a.e("s_mov_b64 exec, s[60:61]")
    a.e("s_waitcnt lgkmcnt(0)")
    for i in range(8):
        a.e(f"ds_read_b32 v{BA+i}, v{BA+i} offset:{SL + 132}")
    a.e("s_waitcnt lgkmcnt(0)")
    for i in range(8):
        a.e(f"v_add_lshl_u32 v{BA+i}, v{BA+i}, v{RK+i}, 2")
        a.e(f"ds_write_b32 v{BA+i}, v{D+i} offset:{SORT - 4}")
    a.e("s_mov_b64 exec, -1")
    a.e("s_waitcnt lgkmcnt(0)")
    a.e("s_barrier")
    a.e(f"ds_read_b128 v[4:7], v2 offset:{SORT}")
    a.e(f"ds_read_b128 v[8:11], v2 offset:{SORT + 8192}")
    a.e(f"s_waitcnt lgkmcnt(0)")
    a.e(f"buffer_store_dwordx4 v[4:7], v2, s[32:35], 0 offen")
    a.e(f"buffer_store_dwordx4 v[8:11], v2, s[32:35], s62 offen")
    a.e("s_endpgm")
    a.label("K1_W3")
    a.e(f"s_sub_u32 s{sT}, s2, 124")
    srd(a, 72, S_WM, off_c=65536, size=4096)
    srd(a, 76, S_WS, off_c=cfg.wsoff + cfg.w3o, size=4096)
    a.e(f"v_and_b32 v70, 31, v{vL}")
    a.e("v_lshlrev_b32 v70, 1, v70")
    a.e(f"v_lshrrev_b32 v71, 5, v{vL}")
    a.e("v_lshl_add_u32 v70, v71, 11, v70")
    a.e(f"s_lshl_b32 s{sT+1}, s{sT}, 6")
    for j in range(8):
        o = f" offset:{256*j}" if j else ""
        a.e(f"buffer_load_ushort v{72+j}, v70, s[72:75], s{sT+1} offen{o}")
    a.e(f"s_lshl_b32 s{sT+1}, s{sT}, 10")
    a.e(f"s_mov_b32 s{sT}, {LOG2E_NEG}")
    a.e(f"v_lshlrev_b32 v71, 4, v{vL}")
    a.e("s_waitcnt vmcnt(0)")
    for j in range(8):
        a.e(f"v_lshlrev_b32 v{72+j}, 16, v{72+j}")
        a.e(f"v_mul_f32 v{72+j}, s{sT}, v{72+j}")
    for j in range(4):
        a.e(f"v_cvt_pk_bf16_f32 v{80+j}, v{72+2*j}, v{73+2*j}")
    a.e(f"buffer_store_dwordx4 v[80:83], v71, s[76:79], s{sT+1} offen {cfg.st_pol}")
    a.e("s_branch K1_B2")

CNT, FLG, LUT, QL, LIST, AGG, SIDE, WU2, STG = 0, 256, 288, 576, 13776, 30800, 56672, 65536, 98304
MAXT = 65
K2_LDS = 163840
vL, vM = 1, 2
vOC, vREM, vROFF, vEB = 3, 4, 5, 6
vAE, vAP, vAQ = 7, 8, 9
vCP, vRP0, vRP1, vCQ, vCL, vCA, vH16, vFA = 10, 11, 12, 13, 14, 15, 16, 17
vPA = 144
vEA, vLA = 20, 21
vQA = 22
vRS = 148
vC4 = 152
ACC = 156
vRN = 28
vRE = 30
vSD = 31
vCUR = 32
vCHK = 34
vWC, vWA = 35, 36
vPF = 38
vT = 40
Z = 64; PX = 128; PY = 128; QX = 160; QY = 168; EE = 176; AQ = 184; AP = 188; IDX = 192; W3 = 196
NN = 212; DD = 220; EX = 228; TT = 232; ACX = 236
sP, sE, sX, sO, sR, sWm, sWu, sOT = 24, 28, 32, 36, 40, 44, 48, 52
sW, sBin, sNT, sCnt, sG0, sG1, sG2, sLim, sDone, sSafe, sW4k, sM0, sMask, sMore, sFirst, sDm = 22, 23, 56, 57, 58, 59, 60, 61, 62, 63, 64, 65, 66, 67, 68, 69
sT = 70
sX0 = 80
sSusp = 88
sF0, sF1 = 32, 34
sMA, sMB, sL, sEX = 58, 59, 60, 52
PSIZE = 12500 * 256 + 3072
s256 = 79
ESIZE = 400000 * 32

def dma_m0(H, dest=None):
    if dest is None: dest = H
    return f"s_add_u32 m0, s{sW4k}, {WU2 - 128*H}" if dest == "alt" else f"s_add_u32 m0, s{sM0}, {dest*4096 - 128*H + 256}"
def dma_ld(H):
    out = []
    for j in range(4):
        imm = 1024 * j + 128 * H
        o = f" offset:{imm}" if imm else ""
        out.append(f"buffer_load_dwordx4 v{vPA+j}, s[{sP}:{sP+3}], 0 offen{o} {cfg.g_pol} lds")
    return out
def dma_ops(H, dest=None):
    l = dma_ld(H)
    return [[dma_m0(H, dest), "s_nop 0", l[0]], [l[1]], [l[2]], [l[3]]]
def dma_half(a, H, dest=None):
    for s in sum(dma_ops(H, dest), []): a.e(s)
def pfrag_reads(dst, H, va=None):
    out = []
    va = vRP0 if va is None else va
    for tq in range(2):
        for q in range(4):
            r = dst + 8 * tq + 2 * q
            out.append(f"ds_read_b64_tr_b16 v[{r}:{r+1}], v{va+tq} offset:{H*4096 + q*512}")
    return out
def qfrag_reads(dst, H, par):
    out = []
    for tq in range(2):
        for u in range(2):
            r = dst + 4 * tq + 2 * u
            out.append(f"ds_read_b64_tr_b16 v[{r}:{r+1}], v{vQA+2*par+u} offset:{(2*H+tq)*64}")
    return out
def list_reads_se(o=0):
    return [f"ds_read_b32 v{vRE}, v{vAE} offset:{128*o}", f"ds_read2_b32 v[{vRS}:{vRS+1}], v{vAP} offset0:{32*o} offset1:{32*o+8}", f"ds_read2_b32 v[{vRS+2}:{vRS+3}], v{vAP} offset0:{32*o+16} offset1:{32*o+24}"]
def list_reads_n(o=0):
    return [f"ds_read_u16 v{vRN}, v{vAQ} offset:{128*o}", f"ds_read_u16 v{vRN+1}, v{vAQ} offset:{128*o+64}"]
def addr_p():
    return [f"v_mad_u32_u16 v{vPA+j}, v{vRS+j}, s{s256}, v{vC4+j}" for j in range(4)]
def addr_e():
    return [f"v_and_or_b32 v{vEA}, v{vRE}, s{sMask}, v{18 if 'ehalf' in cfg.x else vH16}"]
def addr_l():
    return [f"v_and_or_b32 v{vLA}, v{vRE}, 16, v{vCL}", f"v_cmp_gt_i32 vcc, 0, v{vRE}"]
def addr_se():
    return addr_p() + addr_e() + addr_l()
def flags_from_vcc(sF):
    if "nf2" in cfg.x: return [f"s_mov_b32 s{sF}, 0", f"s_mov_b32 s{sF+1}, 0"]
    return [f"s_lshr_b32 s{sF+1}, vcc_lo, 4", f"s_mov_b32 s{sF}, vcc_lo", f"s_or_b32 s{sF+1}, s{sF+1}, vcc_lo", f"s_or_b32 s{sF+1}, s{sF+1}, s{sSafe}"]
def addr_q(par):
    return [f"v_add_u32 v{vQA+2*par}, v{vRN}, v{vCQ}", f"v_add_u32 v{vQA+2*par+1}, v{vRN+1}, v{vCQ}"]
def e_load(par):
    return f"buffer_load_dwordx4 v[{EE+4*par}:{EE+4*par+3}], v{vEA}, s[{sE}:{sE+3}], 0 offen {cfg.e_pol}"
def mfmas(c0, Pset, Qset, epar):
    out = []
    zz = lambda c: f"v[{Z+16*c}:{Z+16*c+15}]"
    f4 = lambda r: f"v[{r}:{r+3}]"
    M = "v_mfma_f32_32x32x16_bf16"
    for i in range(2): out.append(f"{M} {zz(c0+i)}, {f4(EE+4*epar)}, {f4(W3+4*(c0+i))}, 0")
    for i in range(2): out.append(f"{M} {zz(c0+i)}, {f4(AQ)}, {f4(Qset+4*i)}, {zz(c0+i)}")
    for i in range(2): out.append(f"v_smfmac_f32_32x32x32_bf16 {zz(c0+i)}, {f4(AP)}, v[{Pset+8*i}:{Pset+8*i+7}], v{IDX}")
    return out
p2 = lambda r: f"v[{r}:{r+1}]"
def flush_code(a, c0, X, mid=(), wait=True, chk=()):
    t = vT + 8 * X
    for i in range(2):
        c = c0 + i
        a.e(f"v_rcp_f32 v{t+2*i}, v{DD+2*c}")
        a.e(f"v_rcp_f32 v{t+2*i+1}, v{DD+2*c+1}")
    for s in chk: a.e(s)
    for i in range(2):
        c = c0 + i
        a.e(f"v_max3_f32 v{vCHK}, v{DD+2*c}, v{DD+2*c+1}, v{vCHK}")
    for s in mid: a.e(s)
    if wait: a.e("s_waitcnt lgkmcnt(0)")
    for j in range(2):
        for i in range(2):
            c = c0 + i
            a.e(f"v_fmac_f32 v{ACC+c}, v{NN+2*c+j}, v{t+2*i+j}")

def half_step(a, ool, X, par, extras, tag):
    c0 = 2 * X
    sF0 = (32, 34)[par]
    if X == 0: mf = mfmas(2, PX, QX, par)
    else:      mf = mfmas(0, PY, QY, 1 - par)
    def keep(s):
        if "nodma" in cfg.x and (" lds" in s or "m0" in s or s == "s_nop 0"): return False
        if "noe" in cfg.x and s.startswith("buffer_load") and " lds" not in s: return False
        if "nods" in cfg.x and s.startswith("ds_read"): return False
        if "nowait" in cfg.x and s.startswith("s_waitcnt"): return False
        if "novm" in cfg.x and s.startswith("s_waitcnt vmcnt"): return False
        return True
    extras = {k: [s for s in v if keep(s)] for k, v in extras.items()}
    for s in extras.get("pre", []): a.e(s)
    if cfg.prio == 1: a.e(f"s_setprio {1 - X}")
    if cfg.prio == 2 and X == 0: a.e(f"s_setprio {1 - par}")
    for k in range(8):
        if cfg.prio == 3 and k in (0, 4): a.e(f"s_setprio {1 if k == 0 else 0}")
        if cfg.prio == 4: a.e("s_setprio 1")
        if cfg.prio == 5: a.e("s_setprio 0")
        if "nomfma" not in cfg.x and k < len(mf): a.e(mf[k])
        for i in range(2):
            z = Z + 16 * (c0 + i) + 2 * k
            a.e(f"v_exp_f32 v{EX+2*i}, v{z}")
            a.e(f"v_exp_f32 v{EX+2*i+1}, v{z+1}")
        for s in extras.get(k, []): a.e(s)
        if cfg.prio == 4: a.e("s_setprio 0")
        if cfg.prio == 5: a.e("s_setprio 1")
        bit = 8 * (k >> 1) + 2 * (k & 1)
        lf, lb = f"F_{tag}_{k}", f"R_{tag}_{k}"
        if "nobr" not in cfg.x:
            a.e(f"s_bitcmp1_b32 s{sSafe if 'nofl' in cfg.x else sF0+1}, {bit}")
            a.e(f"s_cbranch_scc1 {lf}")
        for i in range(2):
            c = c0 + i; z = Z + 16 * c + 2 * k
            a.e(f"v_pk_fma_f32 {p2(TT+2*i)}, {p2(z)}, {p2(DD+2*c)}, {p2(NN+2*c)}")
        for i in range(2):
            c = c0 + i
            a.e(f"v_pk_fma_f32 {p2(DD+2*c)}, {p2(DD+2*c)}, {p2(EX+2*i)}, {p2(DD+2*c)}")
        for i in range(2):
            c = c0 + i
            a.e(f"v_pk_fma_f32 {p2(NN+2*c)}, {p2(NN+2*c)}, {p2(EX+2*i)}, {p2(TT+2*i)}")
        a.label(lb)
        ool.label(lf)
        t = vT + 8 * X
        ex = "K2_LEND" if X else (f"EXA{par}_{k}" if k < 6 else f"R_{tag}_7")
        sal = ([f"s_bitcmp1_b32 s{sF0}, {bit+1}", f"s_cbranch_scc1 {ex}"] if k else []) + \
              [f"s_bitcmp1_b32 s{sF0}, {bit}", f"s_cselect_b32 s{sT}, -1, 0", f"s_bitcmp1_b32 s{sF0}, {bit+4}", f"s_cselect_b32 s{sT+1}, -1, 0"]
        rc = [f"v_rcp_f32 v{t+j}, v{DD+2*c0+j}" for j in range(4)]
        n = len(sal)
        for j in range(4):
            ool.e(rc[j])
            for x in sal[:(n + 3 - j) // 4 if False else 0]: pass
            cnt = (n // 4) + (1 if j < n % 4 else 0)
            for _ in range(cnt): ool.e(sal.pop(0))
        for i in range(2):
            c = c0 + i
            ool.e(f"v_max3_f32 v{vCHK}, v{DD+2*c}, v{DD+2*c+1}, v{vCHK}")
        ool.e(f"v_mov_b32_dpp v{t+6}, v{vQA+2*par+(k>>2)} row_newbcast:{4*(k&3)} row_mask:0xf bank_mask:0xf")
        nk = sum(1 for x in extras.get(k, []) if x.startswith("ds_")) if cfg.cw else 0
        if k == 0 and cfg.cw: pass
        elif k == 7 and cfg.cw: pass
        else: ool.e(f"s_waitcnt lgkmcnt({nk})")
        for j in range(2):
            for i in range(2):
                c = c0 + i
                ool.e(f"v_fmac_f32 v{ACC+c}, v{NN+2*c+j}, v{t+2*i+j}")
        ool.e(f"s_mov_b64 exec, s[{sT}:{sT+1}]")
        ool.e(f"ds_write2_b32 v{vCUR+X}, v{ACC+c0}, v{ACC+c0+1} offset0:{32*c0} offset1:{32*c0+32}")
        ool.e(f"v_lshl_add_u32 v{vCUR+X}, v{t+6}, 1, v{vCA}")
        ool.e(f"ds_read2_b32 v[{ACC+c0}:{ACC+c0+1}], v{vCUR+X} offset0:{32*c0} offset1:{32*c0+32}")
        ool.e("s_mov_b64 exec, -1")
        for i in range(2):
            c = c0 + i
            ool.e(f"v_pk_add_f32 {p2(DD+2*c)}, {p2(EX+2*i)}, 1.0 op_sel_hi:[1,0]")
        for i in range(2):
            c = c0 + i; z = Z + 16 * c + 2 * k
            ool.e(f"v_pk_mov_b32 {p2(NN+2*c)}, {p2(z)}, {p2(z)} op_sel:[0,1]")
        ool.e(f"s_branch {lb}")

def lds_fill(a, base, nbytes, vdata, vaddr16, ex):
    n = (nbytes + 15) // 16
    r = 0
    while n >= 512:
        a.e(f"ds_write_b128 v{vaddr16}, v[{vdata}:{vdata+3}] offset:{base + r*8192}")
        n -= 512; r += 1
    if n:
        a.e(f"s_movk_i32 s{sT}, {n}")
        a.e(f"v_cmp_gt_u32 vcc, s{sT}, v0")
        a.e(f"s_and_saveexec_b64 s[{ex}:{ex+1}], vcc")
        a.e(f"ds_write_b128 v{vaddr16}, v[{vdata}:{vdata+3}] offset:{base + r*8192}")
        a.e(f"s_mov_b64 exec, s[{ex}:{ex+1}]")

def reset_round(a, zero_agg):
    t = vT
    a.e(f"v_lshlrev_b32 v{t}, 4, v0")
    a.e(f"v_mov_b32 v{t+8}, 0\nv_mov_b32 v{t+9}, 0\nv_mov_b32 v{t+10}, 0\nv_mov_b32 v{t+11}, 0")
    lds_fill(a, CNT, 272, t+8, t, sX0)
    if zero_agg: lds_fill(a, AGG, 49 * 528, t+8, t, sX0)

def onehot4(a, dst, vJ, vcond_sgpr, t):
    a.e(f"v_and_b32 v{t}, 1, v{vJ}")
    a.e(f"v_lshlrev_b32 v{t}, 4, v{t}")
    a.e(f"v_mov_b32 v{t+1}, 0x3f80")
    a.e(f"v_lshlrev_b32 v{t}, v{t}, v{t+1}")
    if vcond_sgpr is not None:
        a.e(f"v_cndmask_b32 v{t}, 0, v{t}, s[{vcond_sgpr}:{vcond_sgpr+1}]")
    a.e(f"v_lshrrev_b32 v{t+1}, 1, v{vJ}")
    for i in range(4):
        a.e(f"v_cmp_eq_u32 vcc, {i}, v{t+1}")
        a.e("s_nop 1")
        a.e(f"v_cndmask_b32 v{dst+i}, 0, v{t}, vcc")

def gen_k2(a):
    ool = Asm()
    rare = Asm()
    RC = 160; RK = 172; NA = 184; EN = 212
    XF, WU1F, W2F, QACC = 64, 96, [128, 132, 136, 140, 160, 164, 168, 172], 212
    vLA0, vXA, vW3A, vW0 = vT + 20, vT + 21, vT + 22, vT + 23
    t = vT + 12
    kernel_head(a, NAME + "_kernel")
    load_args(a)
    a.e(f"v_lshrrev_b32 v{vT+1}, 2, v0")
    a.e(f"v_and_b32 v{vW0}, 3, v0")
    a.e("s_cmp_ge_u32 s2, 256")
    a.e("s_cbranch_scc1 K2_END")
    if cfg.dbg:
        a.e("v_mov_b32 v252, 0")
        a.e("s_memrealtime s[92:93]")
    idmap(a, sBin, 2, sT)
    a.e(f"v_mul_u32_u24 v{vEB}, 3200, v{vT+1}")
    a.e(f"v_lshlrev_b32 v{vT+4}, 4, v{vW0}")
    a.e(f"s_lshl_b32 s{sT+2}, s{sBin}, {6 if cfg.lohi else 7}")
    if cfg.lohi: a.e(f"s_movk_i32 s{sT+5}, 16384")
    a.e(f"s_add_u32 s{sT+2}, s{sT+2}, {cfg.wsoff + WS_S01}")
    a.e(f"v_lshl_add_u32 v{vT+2}, v{vT+1}, 15, v{vT+4}")
    a.e(f"s_mov_b32 s{sOT+2}, {124*32768 + (16384+64 if cfg.lohi else 128)}")
    a.e(f"s_mov_b32 s{sOT+3}, 0x20000")
    a.e(f"v_lshrrev_b32 v{vT}, 6, v0")
    a.e(f"v_and_b32 v{vL}, 63, v0")
    a.e(f"v_readfirstlane_b32 s{sW}, v{vT}")
    a.e(f"s_mul_i32 s{sT+3}, s{sBin}, 12544")
    a.e(f"s_sub_u32 s{sT+4}, 3200000, s{sT+3}")
    a.e(f"s_min_u32 s{sT+4}, s{sT+4}, 12544")
    a.e(f"v_mov_b32 v{vT+8}, 0\nv_mov_b32 v{vT+9}, 0\nv_mov_b32 v{vT+10}, 0\nv_mov_b32 v{vT+11}, 0")
    a.e(f"v_lshlrev_b32 v{vW3A}, 4, v{vL}")
    a.e("s_mov_b64 exec, 0x1ffff")
    a.e(f"ds_write_b128 v{vW3A}, v[{vT+8}:{vT+11}] offset:{CNT}")
    a.e("s_mov_b64 exec, -1")
    WU1L = 32768
    NPF = cfg.prefetchP
    vXD, vW3D = vT + 18, vT + 7
    sM = sX0 + 4
    c = Asm(); x_dma(c, sX, sW, vL, STG, vXD, sM + 2, strided=True)
    for x in c.lines[:-4]: a.e(x)
    a.e(f"s_add_u32 s{sM+3}, s{sM+3}, {STG}")
    xd = c.lines[-2:]
    w_lane_const(a, vWC, vL, t)
    a.e(f"s_lshl_b32 s{sW4k}, s{sW}, 12")
    a.e(f"s_lshl_b32 s{sM0}, s{sW}, 13")
    a.e(f"s_add_u32 s{sM}, s{sM0}, {STG + 4096}")
    a.e(f"s_add_u32 s{sM0}, s{sM0}, {STG - 256}")
    a.e(f"s_add_u32 s{sM+1}, s{sW4k}, {WU1L}")
    a.e(f"v_lshlrev_b32 v{vW3D}, 4, v0")
    a.e(f"s_and_b32 s{sT+1}, s{sW}, 4")
    a.e(f"s_add_u32 s{sT}, s{sW}, s{sT+1}")
    a.e(f"s_lshl_b32 s{sT}, s{sT}, 10")
    a.e(f"s_add_u32 m0, s{sT}, {STG + 32768}")
    a.e(f"s_mov_b32 s{sR+2}, 4096")
    a.e(f"s_mov_b32 s{sR+3}, 0x20000")
    a.e("s_waitcnt lgkmcnt(0)")
    a.e(f"s_add_u32 s{sOT}, s{S_WS}, s{sT+2}")
    a.e(f"s_addc_u32 s{sOT+1}, s{S_WS+1}, 0")
    a.e(f"buffer_load_dwordx4 v[{RC}:{RC+3}], v{vT+2}, s[{sOT}:{sOT+3}], 0 offen {cfg.s_pol}")
    a.e(f"buffer_load_dwordx4 v[{RC+4}:{RC+7}], v{vT+2}, s[{sOT}:{sOT+3}], " + (f"s{sT+5} offen" if cfg.lohi else "0 offen offset:64"))
    a.e(f"s_add_u32 s{sR}, s{S_WS}, {cfg.wsoff + cfg.w3o}")
    a.e(f"s_addc_u32 s{sR+1}, s{S_WS+1}, 0")
    a.e(f"buffer_load_dwordx4 v{vW3D}, s[{sR}:{sR+3}], 0 offen lds")
    if cfg.dbg:
        a.e("v_writelane_b32 v252, s92, 0")
        a.e("s_getreg_b32 s90, hwreg(HW_REG_XCC_ID)")
        a.e("s_add_u32 s90, s90, 1")
        a.e("v_writelane_b32 v252, s90, 39")
    stamp(a, 40, 252)
    srd(a, sX, S_X, off_s=sT+3, size=f"s{sT+4}")
    srd(a, sO, S_OUT, off_s=sT+3, size=f"s{sT+4}")
    srd(a, sWm, S_WM, off_c=32768, size=32768)
    srd(a, sWu, S_WU, size=256*256)
    if cfg.spf:
        a.e(f"s_lshr_b32 s{sT}, s2, 3")
        a.e(f"s_mul_i32 s{sT}, s{sT}, {781*128}")
        a.e(f"s_mul_i32 s{sT+1}, s{sW}, {cfg.spf*128}")
        a.e(f"s_add_u32 s{sT}, s{sT}, s{sT+1}")
        a.e(f"s_add_u32 s{sT}, s{sT}, {cfg.wsoff + WS_P + (781 - 8*cfg.spf)*128}")
        a.e(f"s_add_u32 s{sT}, s{S_WS}, s{sT}")
        a.e(f"s_addc_u32 s{sT+1}, s{S_WS+1}, 0")
    a.e("s_barrier")
    for j in range(cfg.spf):
        a.e(f"s_load_dword s78, s[{sT}:{sT+1}], {hex(128*j)}")
    stamp(a, 41, 252)
    def mix(lines, extra, first=0):
        out = []; n = len(lines); m = len(extra); k = 0; full = True
        for i, x in enumerate(lines):
            while full and k < m and k * n <= i * m: out += extra[k]; k += 1
            out.append(x)
            if "exec" in x.split(",")[0]: full = x.strip() == "s_mov_b64 exec, -1"
        return out + sum(extra[k:], [])
    dm = [[f"s_mov_b32 m0, s{sM+3}", "s_nop 0", xd[0]], [xd[1]]]
    for j, srdw in enumerate((sWm, sWu)):
        for i in range(4):
            o = f" offset:{1024*i}" if i else ""
            dm.append(([f"s_mov_b32 m0, s{sM+j}", "s_nop 0"] if i == 0 else []) + [f"buffer_load_dwordx4 v{vWC}, s[{srdw}:{srdw+3}], s{sW4k} offen{o} lds"])
    c = Asm(); sav = a.lines; a.lines = c.lines
    a.e(f"v_and_b32 v{t+1}, 7, v{vL}")
    onehot4(a, AQ, t+1, None, t+2)
    a.e(f"v_lshlrev_b32 v{t+2}, 5, v{vL}")
    a.e(f"v_and_b32 v{vM}, 31, v0")
    a.e(f"v_lshlrev_b32 v{vW0}, 2, v{vW0}")
    a.e("s_mov_b64 exec, 0x1ff")
    a.e(f"ds_write_b128 v{t+2}, v[{vT+8}:{vT+11}] offset:{LUT+16}")
    a.e("s_mov_b64 exec, 0x100")
    a.e(f"ds_write_b128 v{t+2}, v[{vT+8}:{vT+11}] offset:{LUT}")
    a.e("s_mov_b64 exec, 0xff")
    a.e(f"ds_write_b128 v{t+2}, v[{AQ}:{AQ+3}] offset:{LUT}")
    a.e("s_mov_b64 exec, -1")
    srd(a, sP, S_WS, off_c=cfg.wsoff + WS_P - 3072, size=PSIZE)
    if NPF:
        a.e(f"s_lshr_b32 s{sT}, s2, 3")
        a.e(f"s_mul_i32 s{sT}, s{sT}, {781*128}")
        a.e(f"s_add_u32 s{sT}, s{sT}, 3072")
        a.e(f"v_lshl_add_u32 v{vPF}, v{vL}, 3, s{sW}")
        if cfg.pfn < 512:
            a.e(f"s_movk_i32 s{sT+1}, {cfg.pfn}")
            a.e(f"v_cmp_gt_u32 vcc, s{sT+1}, v{vPF}")
        a.e(f"v_lshl_add_u32 v{vPF}, v{vPF}, 7, s{sT}")
        if NPF > 1:
            a.e(f"v_add_u32 v{vPF+1}, 0x10000, v{vPF}")
        if cfg.pfn < 512:
            a.e(f"v_mov_b32 v{vT+3}, 0x7ffffff0")
            a.e(f"v_cndmask_b32 v{vPF+NPF-1}, v{vT+3}, v{vPF+NPF-1}, vcc")
    if cfg.pfe:
        a.e(f"s_mul_i32 s{sT}, s2, 51200")
        a.e(f"v_lshl_add_u32 v{vPF+1}, v{vL}, 3, s{sW}")
        a.e(f"s_movk_i32 s{sT+1}, {cfg.pfe}")
        a.e(f"v_cmp_gt_u32 vcc, s{sT+1}, v{vPF+1}")
        a.e(f"v_lshl_add_u32 v{vPF+1}, v{vPF+1}, 7, s{sT}")
        a.e(f"v_mov_b32 v{vT+3}, 0x7ffffff0")
        a.e(f"v_cndmask_b32 v{vPF+1}, v{vT+3}, v{vPF+1}, vcc")
    NPP = NPF
    if cfg.pfm:
        a.e(f"v_lshl_add_u32 v{vPF+1}, v{vL}, 3, s{sW}")
        a.e(f"s_movk_i32 s{sT+1}, {cfg.pfm}")
        a.e(f"v_cmp_gt_u32 vcc, s{sT+1}, v{vPF+1}")
        a.e(f"s_add_u32 s{sT}, s{sT}, 0x10000")
        a.e(f"v_lshl_add_u32 v{vPF+1}, v{vPF+1}, 7, s{sT}")
        a.e(f"v_cndmask_b32 v{vPF+1}, v{vT+3}, v{vPF+1}, vcc")
        dm[cfg.pfmpos] = dm[cfg.pfmpos] + [f"buffer_load_dword v37, v{vPF+1}, s[{sP}:{sP+3}], 0 offen"]
    if cfg.tlb:
        a.e(f"v_lshlrev_b32 v{vPF+1}, 20, v{vL}")
    def pf(pos):
        if cfg.pfpos == pos:
            if cfg.tlb & 1: a.e(f"buffer_load_dword v37, v{vPF+1}, s[{sE}:{sE+3}], 0 offen")
            if cfg.tlb & 2: a.e(f"buffer_load_dword v37, v{vPF+1}, s[{sO}:{sO+3}], 0 offen")
            if cfg.pfe: a.e(f"buffer_load_dword v37, v{vPF+1}, s[{sE}:{sE+3}], 0 offen {cfg.et_pol}")
            for i in range(NPP): a.e(f"buffer_load_dword v37, v{vPF+i}, s[{sP}:{sP+3}], 0 offen")
    if cfg.pfe: NPF += 1
    NPF += (cfg.tlb & 1) + (cfg.tlb >> 1 & 1)
    a.e(f"s_mov_b32 s{sLim}, 32")
    a.e(f"s_mov_b32 s{sDone}, 0")
    wfrag_const(a, vWA, vL, sW, t, sT)
    a.e(f"v_add_u32 v{vW3A}, {STG + 32768}, v{vW3A}")
    a.e(f"v_lshrrev_b32 v{t}, 5, v{vL}")
    a.e(f"v_and_b32 v{t+1}, 15, v{vL}")
    a.e(f"v_xor_b32 v{t+2}, v{t}, v{t+1}")
    a.e(f"v_lshlrev_b32 v{t+2}, 4, v{t+2}")
    a.e(f"v_lshl_add_u32 v{vXA}, v{t+1}, 8, v{t+2}")
    a.e(f"v_bfe_u32 v{t+2}, v{vL}, 4, 1")
    a.e(f"v_lshl_add_u32 v{vXA}, v{t+2}, 13, v{vXA}")
    a.e(f"s_lshr_b32 s{sT}, s{sW}, 2")
    a.e(f"s_lshl_b32 s{sT}, s{sT}, 14")
    a.e(f"s_add_u32 s{sT}, s{sT}, {STG}")
    a.e(f"v_add_u32 v{vXA}, s{sT}, v{vXA}")
    srd(a, sE, S_E, size=ESIZE)
    a.e(f"s_mov_b32 s{sSafe}, 0")
    a.e(f"s_mov_b32 s{sFirst}, 1")
    a.e(f"s_mov_b32 s{sMask}, {'0x4003ffe0' if 'esm' in cfg.x else '0x7fffffe0'}")
    a.e(f"v_mov_b32 v{vCL}, {LUT + 256}")
    a.e(f"v_bfe_u32 v{t+1}, v{vL}, 3, 2")
    a.e(f"v_bfe_u32 v{t+3}, v{vL}, 1, 1")
    a.e(f"v_lshl_add_u32 v{t+1}, v{t+1}, 1, v{t+3}")
    a.e(f"v_lshlrev_b32 v{t+1}, 5, v{t+1}")
    a.e("s_mov_b32 exec_lo, 0x0f0f0f0f\ns_mov_b32 exec_hi, 0xf0f0f0f0")
    a.e(f"v_add_u32 v{vCL}, {LUT}, v{t+1}")
    a.e("s_mov_b64 exec, -1")
    a.e(f"v_lshlrev_b32 v{vH16}, 4, v{t}")
    if 'ehalf' in cfg.x: a.e(f"v_lshlrev_b32 v18, 30, v{t}")
    a.e(f"v_and_b32 v{t+1}, 3, v{vL}")
    a.e(f"v_lshlrev_b32 v{vCQ}, 3, v{t+1}")
    a.e(f"v_lshl_add_u32 v{vCQ}, v{t+2}, 5, v{vCQ}")
    a.e(f"v_add_u32 v{vCQ}, {QL}, v{vCQ}")
    a.e(f"v_lshlrev_b32 v{vCA}, 2, v{vM}")
    a.e(f"v_mad_u32_u24 v{vSD}, v{vH16}, 33, v{vCA}")
    a.e(f"s_mul_i32 s{sT}, s{sW}, 1056")
    a.e(f"s_add_u32 s{sT}, s{sT}, {SIDE}")
    a.e(f"v_add_u32 v{vSD}, s{sT}, v{vSD}")
    a.e(f"v_lshlrev_b32 v{t+2}, 6, v{t+2}")
    a.e(f"v_sub_u32 v{vCA}, v{vCA}, v{t+2}")
    a.e(f"v_add_u32 v{vCA}, {AGG - 2*QL}, v{vCA}")
    a.e(f"v_bfe_u32 v{t+1}, v{vL}, 2, 2")
    a.e(f"v_lshl_add_u32 v{vRP0}, v{t+1}, 7, v{vCQ}")
    a.e(f"v_lshl_add_u32 v{vRP0}, v{t}, 11, v{vRP0}")
    a.e(f"v_and_b32 v{t+1}, 8, v{vL}")
    a.e(f"v_lshl_add_u32 v{vRP0}, v{t+1}, 3, v{vRP0}")
    a.e(f"s_add_u32 s{sT}, s{sM0}, {256 - QL}")
    a.e(f"v_add_u32 v{vRP0}, s{sT}, v{vRP0}")
    a.e(f"v_xor_b32 v{vRP1}, 64, v{vRP0}")
    a.e(f"s_movk_i32 s{s256}, 256")
    a.e(f"v_mov_b32 v{vCHK}, 0")
    def round_consts(a):
        a.e(f"v_lshrrev_b32 v{t}, 3, v{vM}")
        a.e(f"v_and_b32 v{t+1}, 3, v{vL}")
        a.e(f"v_lshl_add_u32 v{vAE}, v{t}, 2, v{t+1}")
        a.e(f"v_lshlrev_b32 v{vAE}, 3, v{vAE}")
        a.e(f"v_bfe_u32 v{t+1}, v{vL}, 2, 2")
        a.e(f"v_lshlrev_b32 v{vAQ}, 4, v{t+1}")
        a.e(f"v_and_b32 v{vAP}, 24, v{vL}")
        a.e(f"v_and_b32 v{t}, 7, v{vL}")
        a.e(f"v_bfe_u32 v{t+1}, v{vL}, 4, 1")
        a.e(f"v_lshlrev_b32 v{t}, 4, v{t}")
        a.e(f"v_lshlrev_b32 v{t+1}, 6, v{t+1}")
        a.e(f"v_xor_b32 v{vC4+3}, v{t}, v{t+1}")
        for j in range(3):
            a.e(f"v_add_u32 v{vC4+j}, {1024*(3-j)}, v{vC4+3}")
        a.e(f"v_mov_b32 v{vT}, 1")
        a.e(f"v_mov_b32 v{vT+1}, {FLG}")
        a.e(f"v_lshlrev_b32 v{vT+2}, 2, v{vL}")
        a.e(f"s_mov_b32 s{sT}, 0x420000")
        a.e(f"s_brev_b32 s{sT+6}, 1")
        a.e(f"s_add_u32 s{sT+7}, s{sDone}, s{sLim}")
        a.e(f"v_cmp_ne_u32 s[{sX0+2}:{sX0+3}], 0, v{vW0}")
    round_consts(a)
    a.lines = sav
    for x in mix(c.lines, dm): a.e(x)
    stamp(a, 1, 252)
    pf(1)
    stamp(a, 4, 252)
    NV = 11 + (1 if cfg.pfm else 0) + (NPF if cfg.pfpos <= 1 else 0)
    a.e(f"s_waitcnt vmcnt({NV + 1})")
    stamp(a, 5, 252)
    a.e(f"v_mov_b32_dpp v{vOC}, v{RC} quad_perm:[0,0,0,0] row_mask:0xf bank_mask:0xf")
    a.label("K2_COUNT")
    def groups(fn, lab, order=range(8), extra=(), pre=()):
        c = Asm(); sav = a.lines; a.lines = c.lines
        for i in order: fn(i)
        a.lines = sav
        for x in mix(c.lines, list(extra)): a.e(x)
    KK = lambda i: 16 * (i >> 2) + (i & 3)
    na = lambda i: f"v_lshlrev_b32_sdwa v{NA+i}, 2, v{RC+i} dst_sel:BYTE_0 dst_unused:UNUSED_PAD src0_sel:DWORD src1_sel:BYTE_0"
    a.e(na(1))
    a.e(f"v_min_u32 v{vREM}, s{sT+7}, v{vOC}")
    a.e(f"v_sub_u32 v{vREM}, v{vREM}, v{vW0}")
    a.e(f"v_cmp_lt_u32 s[{sX0+6}:{sX0+7}], s{sT+7}, v{vOC}")
    a.e(f"v_cmp_lt_i32 s[{sX0}:{sX0+1}], 0, v{vREM}")
    a.e(na(0))
    def f_cnt(i):
        a.e(f"v_cmpx_lt_i32 vcc, {KK(i)}, v{vREM}")
        if i == 3: a.e(f"s_waitcnt vmcnt({NV})")
        if i < 7: a.e(na(i + 1))
        a.e(f"ds_add_rtn_u32 v{RK+i}, v{NA+i}, v{vT} offset:{CNT}")
    groups(f_cnt, "K2_G1", order=range(1, 8))
    a.e(f"s_and_b64 s[{sX0}:{sX0+1}], s[{sX0}:{sX0+1}], s[{sX0+2}:{sX0+3}]")
    a.e(f"s_mov_b64 exec, s[{sX0}:{sX0+1}]")
    a.e(f"ds_add_rtn_u32 v{RK}, v{NA}, v{vT} offset:{CNT}")
    a.e(f"s_mov_b64 exec, s[{sX0+6}:{sX0+7}]")
    a.e(f"ds_write_b32 v{vT+1}, v{vT}")
    a.e("s_mov_b64 exec, -1")
    def f_ent(i):
        e0 = EN + 2 * i
        a.e(f"v_lshrrev_b32 v{e0}, 20, v{RC+i}")
        a.e(f"v_add_lshl_u32 v{e0}, v{e0}, v{vEB}, 5")
    groups(f_ent, "K2_G2")
    pf(2)
    a.e("s_waitcnt lgkmcnt(0)")
    a.e("s_barrier")
    stamp(a, 6, 252)
    a.e(f"ds_read_b32 v{vT+6}, v{vT+2} offset:{CNT}")
    a.e(f"ds_read_b32 v{vT+5}, v{vT+1}")
    def f_ent2(i):
        e1 = EN + 1 + 2 * i
        a.e(f"v_bfe_u32 v{e1}, v{RC+i}, 6, 14")
        a.e(f"v_mad_u32_u24 v{e1}, v{NA+i}, s{sT}, v{e1}")
    groups(f_ent2, "K2_G5")
    a.e("s_waitcnt lgkmcnt(0)")
    a.e(f"v_add_u32 v{vT+3}, 1, v{vT+6}")
    a.e(f"v_lshrrev_b32 v{vT+3}, 1, v{vT+3}")
    a.e(f"v_mov_b32 v{vT+4}, v{vT+3}")
    a.e(f"v_readfirstlane_b32 s{sMore}, v{vT+5}")
    fl = []
    for i in range(8):
        fl.append(f"v_add_u32 v{RC+i}, -1, v{RK+i}")
        fl.append(f"v_and_or_b32 v{EN+2*i}, v{RC+i}, s{sT+6}, v{EN+2*i}")
    v = vT + 4
    dpp = [f"v_add_u32_dpp v{v}, v{v}, v{v} row_shr:{sh} row_mask:0xf bank_mask:0xf bound_ctrl:0" for sh in (1, 2, 4, 8)]
    dpp += [f"v_add_u32_dpp v{v}, v{v}, v{v} row_bcast:15 row_mask:0xa bank_mask:0xf", f"v_add_u32_dpp v{v}, v{v}, v{v} row_bcast:31 row_mask:0xc bank_mask:0xf"]
    for j in range(6):
        a.e(fl[2*j]); a.e(fl[2*j+1]); a.e(dpp[j])
    a.e(fl[12])
    a.e(f"v_readlane_b32 s{sT+5}, v{vT+4}, 63")
    a.e(f"v_sub_u32 v{vT+4}, v{vT+4}, v{vT+3}")
    a.e(f"v_lshlrev_b32 v{vT+4}, 4, v{vT+4}")
    def f_perm(i):
        a.e(f"ds_bpermute_b32 v{NA+i}, v{NA+i}, v{vT+4}")
        if i >= 8:
            a.e(f"v_add_u32 v{RC+i}, -1, v{RK+i}")
            a.e(f"v_and_or_b32 v{EN+2*i}, v{RC+i}, s{sT+6}, v{EN+2*i}")
    groups(f_perm, "K2_G3")
    for x in fl[13:]: a.e(x)
    pf(3)
    a.e(f"s_cmp_gt_u32 s{sT+5}, 1025")
    a.e("s_cbranch_scc1 K2_TOOBIG")
    a.e(f"s_add_u32 s{sT}, s{sT+5}, 7")
    a.e(f"s_lshr_b32 s{sT}, s{sT}, 3")
    if cfg.ratio:
        a.e(f"s_mul_i32 s{sT+1}, s{sT}, {cfg.ratio}")
        a.e(f"s_add_u32 s{sT+1}, s{sT+1}, 63")
        a.e(f"s_lshr_b32 s{sT+1}, s{sT+1}, 6")
    else:
        a.e(f"s_add_u32 s{sT+1}, s{sT}, {cfg.bias}")
        a.e(f"s_lshr_b32 s{sT+1}, s{sT+1}, 4")
        a.e(f"s_lshl_b32 s{sT+1}, s{sT+1}, 3")
    a.e(f"s_min_u32 s{sT+1}, s{sT+1}, s{sT}")
    a.e(f"s_sub_u32 s{sT+2}, s{sT}, s{sT+1}")
    a.e(f"s_and_b32 s{sT+3}, s{sW}, 3")
    a.e(f"s_mul_i32 s{sT+3}, s{sT+3}, s{sT}")
    a.e(f"s_cmp_lt_u32 s{sW}, 4")
    a.e(f"s_cselect_b32 s{sL}, s{sT+1}, s{sT+2}")
    a.e(f"s_cselect_b32 s{sT+4}, 0, s{sT+1}")
    a.e(f"s_add_u32 s{sT+3}, s{sT+3}, s{sT+4}")
    a.e(f"s_lshl_b32 s{sT+3}, s{sT+3}, 5")
    a.e(f"s_add_u32 s{sT+3}, s{sT+3}, {LIST}")
    a.e(f"s_lshl_b32 s{sT+4}, s{sL}, 4")
    a.e(f"s_add_u32 s{sNT}, s{sL}, 7")
    a.e(f"s_lshr_b32 s{sNT}, s{sNT}, 3")
    a.e(f"s_cmp_eq_u32 s{sW}, 7")
    a.e("s_cbranch_scc0 K2_NODUM")
    a.e(f"v_mov_b32 v{vT+8}, 0x7ffffff0\nv_mov_b32 v{vT+9}, 0xffff\nv_mov_b32 v{vT+10}, 0x7ffffff0\nv_mov_b32 v{vT+11}, 0xffff")
    a.e(f"v_lshl_add_u32 v{vT+7}, v{vT+6}, 3, v{vT+4}")
    a.e(f"v_and_b32 v{vT+6}, 1, v{vT+6}")
    a.e(f"v_cmp_eq_u32 vcc, 1, v{vT+6}")
    a.e("s_mov_b64 exec, vcc")
    a.e(f"ds_write_b64 v{vT+7}, v[{vT+8}:{vT+9}] offset:{LIST}")
    a.e("s_mov_b32 exec_lo, -1\ns_mov_b32 exec_hi, 0x7f")
    a.e(f"v_add_lshl_u32 v{vT+7}, v{vL}, s{sT+5}, 4")
    a.e(f"ds_write_b128 v{vT+7}, v[{vT+8}:{vT+11}] offset:{LIST}")
    a.e("s_mov_b64 exec, -1")
    a.label("K2_NODUM")
    a.e("s_waitcnt lgkmcnt(0)")
    a.e(f"v_lshl_add_u32 v{NA}, v{RK}, 3, v{NA}")
    def f_place(i):
        a.e(f"v_cmpx_lt_i32 vcc, {KK(i)}, v{vREM}")
        a.e(f"v_lshl_add_u32 v{NA+i}, v{RK+i}, 3, v{NA+i}")
        a.e(f"ds_write_b64 v{NA+i}, v[{EN+2*i}:{EN+1+2*i}] offset:{LIST}")
    groups(f_place, "K2_G4", order=range(1, 8))
    a.e(f"s_mov_b64 exec, s[{sX0}:{sX0+1}]")
    a.e(f"ds_write_b64 v{NA}, v[{EN}:{EN+1}] offset:{LIST}")
    a.e("s_mov_b64 exec, -1")
    a.e(f"v_add_u32 v{vAE}, s{sT+3}, v{vAE}")
    a.e(f"v_add3_u32 v{vAP}, v{vAP}, s{sT+3}, 4")
    a.e(f"v_add3_u32 v{vAQ}, v{vAQ}, s{sT+3}, 6")
    a.e("s_mov_b32 exec_lo, 0xf0f0f0f0\ns_mov_b32 exec_hi, 0xf0f0f0f0")
    a.e(f"v_add_u32 v{vAE}, s{sT+4}, v{vAE}")
    a.e("s_mov_b32 exec_lo, 0\ns_mov_b32 exec_hi, -1")
    a.e(f"v_add_u32 v{vAP}, s{sT+4}, v{vAP}")
    a.e(f"v_add_u32 v{vAQ}, s{sT+4}, v{vAQ}")
    a.e("s_mov_b64 exec, -1")
    a.e(f"s_sub_u32 s{sT+1}, s{sT+1}, 1")
    a.e(f"s_sub_u32 s{sT+2}, s{sT+2}, 1")
    a.e(f"s_min_u32 s{sT+1}, s{sT+1}, s{sT+2}")
    a.e(f"v_cmp_lt_u32 s[{sSusp}:{sSusp+1}], s{sT+1}, v{vT+3}")
    a.e(f"s_cmp_eq_u32 s{sNT}, 0")
    a.e(f"s_cselect_b32 s{sP+2}, 0, {PSIZE}")
    a.e(f"s_cselect_b32 s{sE+2}, 0, {ESIZE}")
    a.e(f"s_cmp_eq_u32 s{sFirst}, 0")
    a.e(f"s_waitcnt vmcnt({NPF}) lgkmcnt(0)")
    a.e("s_barrier")
    a.e("s_cbranch_scc1 K2_PRO2")
    stamp(a, 7, 252)
    adv = [f"v_add_u32 v{r}, s{s256}, v{r}" for r in (vAE, vAP, vAQ)]
    def early_e1():
        return addr_e() + [f"s_cmp_lt_u32 s{sNT}, 2", f"s_cselect_b32 s{sE+2}, 0, s{sE+2}", e_load(1)]
    def prologue(a, first):
        for s in list_reads_se() + list_reads_n(): a.e(s)
        if first:
            for st in range(8):
                if st == 0: a.e(f"ds_read_b128 v[{XF}:{XF+3}], v{vXA}")
                else:
                    r = vT + (st & 1)
                    a.e(f"v_xor_b32 v{r}, {32*st}, v{vXA}")
                    a.e(f"ds_read_b128 v[{XF+4*st}:{XF+4*st+3}], v{r}")
        a.e(f"s_waitcnt lgkmcnt({8 if first else 0})")
        for s in addr_se() + addr_q(0): a.e(s)
        for s in list_reads_se(1): a.e(s)
        for s in flags_from_vcc(sF0): a.e(s)
        d0 = dma_ops(0, "alt"); d1 = dma_ops(1)
        fr = Asm()
        if first:
            a.e(f"v_add_u32 v{vT+3}, {STG + 4096}, v{vWA}")
            wfrag_read(fr, W2F, vT+3, 0, 8192)
            wfrag_read(fr, WU1F, vWA, WU1L)
            for c in range(4):
                fr.e(f"ds_read_b128 v[{W3+4*c}:{W3+4*c+3}], v{vW3A} offset:{1024*c}")
        n4 = len(fr.lines) // 4
        if cfg.e0f: a.e(e_load(0))
        for s in d0[0] + fr.lines[:n4] + d0[1] + fr.lines[n4:2*n4]: a.e(s)
        if not cfg.e0f: a.e(e_load(0))
        for s in fr.lines[2*n4:3*n4]: a.e(s)
        a.e(f"v_cmp_ne_u32 vcc, v{vLA}, v{vCL}")
        a.e(f"v_mov_b32_dpp v{vFA}, v{vQA} row_newbcast:0 row_mask:0xf bank_mask:0xf")
        a.e(f"v_mov_b32 v{vLA0}, v{vLA}")
        for s in d0[2] + fr.lines[3*n4:]: a.e(s)
        a.e(f"s_cmp_eq_u32 s{sNT}, 0")
        a.e(f"s_cselect_b32 s{sDm}, -1, vcc_lo")
        a.e(f"v_lshl_add_u32 v{vFA}, v{vFA}, 1, v{vCA}")
        for s in d0[3]: a.e(s)
        if first:
            a.e(f"s_lshr_b32 s{sT+1}, s{sW}, 2")
            a.e(f"s_lshl_b32 s{sT+1}, s{sT+1}, 5")
            a.e(f"v_add_u32 v{vT+1}, s{sT+1}, v{vM}")
            a.e(f"v_mul_u32_u24 v{vT+2}, 264, v{vT+1}")
            a.e(f"v_lshl_add_u32 v{vT+2}, v{vH16}, 1, v{vT+2}")
            a.e(f"s_and_b32 s{sT+1}, s{sW}, 3")
            a.e(f"s_lshl_b32 s{sT+1}, s{sT+1}, 6")
            a.e(f"v_add_u32 v{vT+2}, s{sT+1}, v{vT+2}")
            a.e(f"v_cmp_gt_u32 s[{sX0}:{sX0+1}], 49, v{vT+1}")
            a.e(f"v_lshlrev_b32 v{vT}, 4, v0")
            a.e(f"v_mov_b32 v{vT+8}, 0\nv_mov_b32 v{vT+9}, 0\nv_mov_b32 v{vT+10}, 0\nv_mov_b32 v{vT+11}, 0")
            a.e(f"s_movk_i32 s{sT+1}, {49*528//16 - 1536}")
            a.e(f"v_cmp_gt_u32 s[{sX0+2}:{sX0+3}], s{sT+1}, v0")
            a.e(f"s_mov_b32 s{sT}, {LOG2E_NEG}")
            a.e(f"s_mov_b32 s{sT+1}, {LOG2E_NEG}")
            stamp(a, 44, 252)
            a.e("s_waitcnt lgkmcnt(0)")
            g = Asm(); gemm8(g, QACC, W2F, XF)
            for x in g.lines: a.e(x)
            g = Asm(); gemm8(g, ACX, WU1F, XF)
            q = [f"v_mul_f32 v{QACC+i}, s{sT}, v{QACC+i}" for i in range(16)] + [f"v_cvt_pk_bf16_f32 v{QACC+i}, v{QACC+2*i}, v{QACC+1+2*i}" for i in range(8)]
            a.e(g.lines[0])
            if cfg.e1e:
                for x in early_e1(): a.e(x)
                a.e("s_nop 5")
            else:
                a.e("s_nop 9")
            for j in range(3):
                a.e(g.lines[1+j])
                for x in q[j*8:j*8+8]: a.e(x)
            a.e(f"s_mov_b64 exec, s[{sX0}:{sX0+1}]")
            for gg in range(4):
                a.e(f"ds_write_b64 v{vT+2}, v[{QACC+2*gg}:{QACC+1+2*gg}] offset:{QL + 8*gg}")
            a.e("s_mov_b64 exec, -1")
            a.e("s_barrier")
            for j in range(3):
                a.e(f"ds_write_b128 v{vT}, v[{vT+8}:{vT+11}] offset:{AGG + j*8192}")
            a.e(g.lines[4])
            a.e(f"s_mov_b64 exec, s[{sX0+2}:{sX0+3}]")
            a.e(f"ds_write_b128 v{vT}, v[{vT+8}:{vT+11}] offset:{AGG + 3*8192}")
            a.e("s_mov_b64 exec, -1")
            for s in d1[0]: a.e(s)
            a.e(g.lines[5])
            a.e("s_waitcnt lgkmcnt(0)")
            a.e("s_barrier")
            stamp(a, 45, 252)
            for j in range(1, 4):
                for s in d1[j]: a.e(s)
                if j < 3: a.e(g.lines[5+j])
        else:
            if cfg.e1e:
                a.e("s_waitcnt lgkmcnt(0)")
                for x in early_e1(): a.e(x)
            for s in sum(d1, []): a.e(s)
        a.e(f"s_cmp_lt_u32 s{sNT}, 2")
        a.e(f"s_cselect_b32 s{sP+2}, 0, s{sP+2}")
        a.e(f"s_cselect_b32 s{sE+2}, 0, s{sE+2}")
        if not first: a.e("s_waitcnt lgkmcnt(0)")
        for s in addr_se(): a.e(s)
        for s in list_reads_se(2) + list_reads_n(1): a.e(s)
        for s in flags_from_vcc(sF1): a.e(s)
    prologue(a, True)
    rare.label("K2_PRO2")
    rare.e("s_waitcnt vmcnt(0)")
    prologue(rare, False)
    rare.e("s_branch K2_NOX")
    stamp(a, 42, 252)
    for i in range(8):
        a.e(f"v_pk_mul_f32 {p2(ACX+2*i)}, {p2(ACX+2*i)}, s[{sT}:{sT+1}]")
    a.label("K2_NOX")
    stamp(a, 43, 252)
    a.e(f"s_cmp_eq_u32 s{sNT}, 0")
    a.e("s_cbranch_scc1 K2_NOTILES")
    a.e(f"ds_read_b128 v[{AQ}:{AQ+3}], v{vLA0}")
    for s in qfrag_reads(QY, 0, 0) + qfrag_reads(QX, 1, 0): a.e(s)
    if cfg.t1pos == 1:
        if not cfg.e1e: a.e(e_load(1))
        dma_half(a, 0)
    for i in range(4): a.e(f"v_mov_b32 v{AP+i}, 0")
    for i in range(4):
        shf = 16 * (i >> 1) + 4 * (i & 1)
        a.e(f"s_mov_b32 exec_lo, {hex(0xf << shf)}\ns_mov_b32 exec_hi, {hex(0xf << (shf + 8))}")
        a.e(f"v_mov_b32 v{AP+i}, 0x3f80")
    a.e("s_mov_b64 exec, -1")
    a.e(f"v_and_b32 v{IDX}, 3, v{vL}")
    a.e(f"v_mul_u32_u24 v{IDX}, 0x5555, v{IDX}")
    a.e(f"s_add_u32 s{sMA}, s{sM0}, {4096 - 128 + 256}")
    a.e(f"s_add_u32 s{sMB}, s{sM0}, 256")
    a.e(f"s_and_b32 s{sT}, s{sL}, 6")
    a.e(f"s_and_b32 s{sT+1}, s{sL}, 1")
    a.e(f"s_lshl1_add_u32 s{sT}, s{sT}, s{sT+1}")
    a.e(f"s_lshl_b32 s{sT}, s{sT}, 1")
    a.e(f"s_cselect_b32 s{sT+1}, 1, 0")
    a.e(f"s_lshl_b32 s{sEX+1}, s{sT+1}, s{sT}")
    a.e(f"s_lshl_b32 s{sEX}, s{sEX+1}, 1")
    a.e(f"s_cmp_eq_u32 s{sNT}, 1")
    a.e(f"s_cselect_b64 s[{sT}:{sT+1}], s[{sEX}:{sEX+1}], 0")
    a.e(f"s_or_b64 s[{sF0}:{sF0+1}], s[{sF0}:{sF0+1}], s[{sT}:{sT+1}]")
    for c in range(4):
        a.e(f"v_mov_b32 v{NN+2*c}, 0\nv_mov_b32 v{NN+2*c+1}, 0\nv_mov_b32 v{DD+2*c}, 1.0\nv_mov_b32 v{DD+2*c+1}, 1.0")
    a.e(f"v_mov_b32 v{vCUR}, v{vSD}\nv_mov_b32 v{vCUR+1}, v{vSD}")
    for c in range(4): a.e(f"v_mov_b32 v{ACC+c}, 0")
    a.e(f"s_sub_u32 s{sT}, s{sW4k}, s{sM0}")
    a.e(f"s_add_u32 s{sT}, s{sT}, {WU2 - 256}")
    a.e(f"v_add_u32 v{vT}, s{sT}, v{vRP0}")
    a.e(f"v_add_u32 v{vT+1}, s{sT}, v{vRP1}")
    stamp(a, 46, 252)
    a.e(f"s_waitcnt vmcnt({4 + cfg.e1e})" if cfg.t1pos == 2 else "s_waitcnt vmcnt(9)")
    stamp(a, 47, 252)
    for s in pfrag_reads(PY, 0, vT): a.e(s)
    mf = mfmas(0, PY, QY, 0)
    a.e("s_waitcnt lgkmcnt(8)")
    for s in mf[:4]: a.e(s)
    a.e("s_waitcnt lgkmcnt(0)")
    for s in mf[4:]: a.e(s)
    if cfg.t1pos == 2:
        if not cfg.e1e: a.e(e_load(1))
        dma_half(a, 0)
    stamp(a, 8, 252)
    if cfg.dbg:
        a.e("s_memtime s[90:91]\ns_waitcnt lgkmcnt(0)\nv_writelane_b32 v252, s90, 14")
    a.e(f"s_sub_u32 s{sCnt}, s{sNT}, 1")
    a.e(f"s_waitcnt vmcnt({5 - cfg.e1e})")
    stamp(a, 48, 252)
    for s in pfrag_reads(PX, 1): a.e(s)
    def lstamp(x):
        if not cfg.lst: return
        a.e("s_memrealtime s[90:91]")
        a.e(f"s_lshl_b32 s92, s{sCnt}, 1")
        a.e(f"s_add_u32 s92, s92, {x+2}")
        a.e("s_mov_b32 m0, s92")
        a.e("s_waitcnt lgkmcnt(0)")
        a.e("v_writelane_b32 v252, s90, m0")
    def iteration(par):
        exA = {
            0: addr_q(1 - par),
            1: qfrag_reads(QY, 0, 1 - par),
            2: [f"s_mov_b32 m0, s{sMA}", "s_waitcnt lgkmcnt(4)"] + dma_ld(1)[:2],
            3: dma_ld(1)[2:],
            4: [f"ds_read_b128 v[{AQ}:{AQ+3}], v{vLA}",
                f"s_cmp_lt_u32 s{sCnt}, 2", f"s_cbranch_scc1 WU2_{par}", f"WU2R_{par}:"],
            7: ["s_waitcnt vmcnt(4) lgkmcnt(0)"] + pfrag_reads(PY, 0),
        }
        half_step(a, ool, 0, par, exA, f"A{par}")
        ool.label(f"WU2_{par}")
        ool.e(f"s_mov_b32 s{sP+2}, 0")
        ool.e(f"s_mov_b32 s{sE+2}, 0")
        sFn = (sF1, sF0)[par]
        ool.e(f"s_or_b64 s[{sFn}:{sFn+1}], s[{sFn}:{sFn+1}], s[{sEX}:{sEX+1}]")
        ool.e(f"s_cmp_lg_u32 s{sCnt}, 0")
        ool.e(f"s_cbranch_scc1 WU2R_{par}")
        w_dma(ool, sWu, vWC, sW4k, 32768, WU2, sT)
        ool.e(f"s_branch WU2R_{par}")
        mf = mfmas(2, PX, QX, par)
        ool.label(f"EXA{par}_1")
        ool.e("s_waitcnt lgkmcnt(0)")
        ool.e(mf[2])
        ool.label(f"EXA{par}_2")
        ool.e(mf[3])
        ool.label(f"EXA{par}_3")
        ool.e(mf[4])
        w_dma(ool, sWu, vWC, sW4k, 32768, WU2, sT)
        ool.label(f"EXA{par}_4")
        ool.e(mf[5])
        ool.e("s_nop 7")
        ool.label(f"EXA{par}_5")
        ool.e(f"s_branch R_A{par}_7")
        exB = {
            0: qfrag_reads(QX, 1, 1 - par),
            1: addr_se(),
            2: [f"s_mov_b32 m0, s{sMB}", "s_waitcnt lgkmcnt(4)"] + dma_ld(0)[:2],
            3: dma_ld(0)[2:] + [e_load(par)],
            4: list_reads_se(3 + par) + list_reads_n(2 + par),
            5: adv if par else [],
            7: ["s_waitcnt vmcnt(5) lgkmcnt(0)"] + pfrag_reads(PX, 1),
        }
        lstamp(17)
        half_step(a, ool, 1, par, exB, f"B{par}")
        lstamp(16)
        for s in flags_from_vcc((sF0, sF1)[par]): a.e(s)
        a.e(f"s_sub_u32 s{sCnt}, s{sCnt}, 1")
    a.label("K2_LOOP")
    iteration(0)
    a.e("s_cbranch_scc1 K2_LEND")
    iteration(1)
    a.e("s_cbranch_scc0 K2_LOOP")
    a.label("K2_LEND")
    stamp(a, 9, 252)
    if cfg.dbg:
        a.e("s_memtime s[90:91]\ns_waitcnt lgkmcnt(0)\nv_writelane_b32 v252, s90, 15")
    flush_code(a, 0, 0)
    a.e(f"ds_write2_b32 v{vCUR}, v{ACC}, v{ACC+1} offset1:32")
    flush_code(a, 2, 1, wait=False)
    a.e(f"ds_write2_b32 v{vCUR+1}, v{ACC+2}, v{ACC+3} offset0:64 offset1:96")
    a.label("K2_AFTER")
    a.e(f"s_mov_b32 s{sFirst}, 0")
    a.e(f"s_bitcmp0_b32 s{sDm}, 0")
    a.e(f"s_cselect_b32 s{sX0+2}, -1, 0")
    a.e(f"s_bitcmp0_b32 s{sDm}, 4")
    a.e(f"s_cselect_b32 s{sX0+3}, -1, 0")
    a.e(f"s_lshr_b32 s{sT+1}, s{sW}, 2")
    a.e(f"s_lshl_b32 s{sT+2}, s{sT+1}, 5")
    a.e(f"v_add_u32 v{vT+8}, s{sT+2}, v{vM}")
    a.e(f"v_mul_u32_u24 v{vT+9}, 528, v{vT+8}")
    a.e(f"v_cmp_gt_u32 s[{sX0}:{sX0+1}], 49, v{vT+8}")
    a.e(f"s_and_b32 s{sT+2}, s{sW}, 3")
    a.e(f"s_lshl_b32 s{sT+2}, s{sT+2}, 7")
    a.e(f"v_lshl_add_u32 v{vT+5}, v{vH16}, 1, s{sT+2}")
    a.e(f"v_add_u32 v{vT+6}, v{vT+9}, v{vT+5}")
    a.e(f"v_add_u32 v{vT+4}, {WU2}, v{vWA}")
    a.e(f"s_add_u32 s{sT+2}, s{sM0}, {256 + 4096}")
    a.e(f"v_lshl_add_u32 v{vT+2}, v{vL}, 4, s{sT+2}")
    a.e(f"s_lshl_b32 s{sT+1}, s{sT+1}, 15")
    a.e(f"s_add_u32 s{sT+1}, s{sT+1}, {STG + 4096}")
    a.e(f"v_lshl_add_u32 v{vT+3}, v{vL}, 4, s{sT+1}")
    a.e(f"s_or_b32 s{sT}, s{sSusp}, s{sSusp+1}")
    a.e(f"s_or_b32 s{sT}, s{sT}, s{sMore}")
    a.e("s_cbranch_scc1 K2_SLOWM")
    a.e(f"s_and_b32 exec_lo, s{sX0+2}, 1")
    a.e(f"s_and_b32 exec_hi, s{sX0+3}, 1")
    a.e(f"ds_write_b32 v{vFA}, v{vSD} offset:512")
    a.label("K2_MERGED")
    a.e(f"s_mov_b64 exec, s[{sX0}:{sX0+1}]")
    a.e("s_waitcnt vmcnt(0) lgkmcnt(0)")
    a.e("s_barrier")
    stamp(a, 49, 252)
    a.e(f"s_cmp_lg_u32 s{sMore}, 0")
    a.e("s_cbranch_scc1 K2_MORE")
    wf = Asm(); wfrag_read(wf, 128, vT+4)
    a.e(f"ds_read_b32 v{vT+7}, v{vT+9} offset:{AGG + 512}")
    for j, o in enumerate((0, 16, 64, 80)):
        a.e(f"ds_read_b128 v[{64+4*j}:{67+4*j}], v{vT+6} offset:{AGG + o}")
    a.e("s_waitcnt lgkmcnt(4)")
    a.e(f"v_cmpx_ne_u32 vcc, 0, v{vT+7}")
    a.e(f"v_add_u32 v{vT+7}, v{vT+7}, v{vT+5}")
    for j, o in enumerate((0, 16, 64, 80)):
        a.e(f"ds_read_b128 v[{80+4*j}:{83+4*j}], v{vT+7} offset:{o}")
    a.e("s_mov_b64 exec, -1")
    for x in wf.lines[:8]: a.e(x)
    a.e("s_mov_b64 exec, vcc")
    for j in range(4):
        a.e(f"s_waitcnt lgkmcnt({11-j})")
        for i in range(2):
            r = 64 + 4*j + 2*i
            a.e(f"v_pk_add_f32 {p2(r)}, {p2(r)}, {p2(r+16)}")
    a.e("s_mov_b64 exec, -1")
    for j in range(2):
        for i in range(4):
            a.e(f"v_cvt_pk_bf16_f32 v{96+4*j+i}, v{64+8*j+2*i}, v{65+8*j+2*i}")
        a.e(f"ds_write_b128 v{vT+2}, v[{96+4*j}:{99+4*j}] offset:{1024*j}")
    for x in wf.lines[8:]: a.e(x)
    a.e("s_waitcnt lgkmcnt(8)")
    a.e("s_barrier")
    stamp(a, 10, 252)
    for st in range(8):
        a.e(f"ds_read_b128 v[{64+4*st}:{67+4*st}], v{vT+3} offset:{(st>>1)*8192 + (st&1)*1024}")
    if cfg.owt:
        a.e(f"v_mul_u32_u24 v{vT+10}, 80, v{vM}")
        a.e(f"v_lshl_add_u32 v{vT+10}, v{vH16}, 1, v{vT+10}")
        a.e(f"s_add_u32 s{sT+1}, s{sM0}, 256")
        a.e(f"v_add_u32 v{vT+10}, s{sT+1}, v{vT+10}")
        a.e(f"v_lshrrev_b32 v{vT+12}, 2, v{vL}")
        a.e(f"v_and_b32 v{vT+14}, 3, v{vL}")
        a.e(f"v_lshlrev_b32 v{vT+14}, 4, v{vT+14}")
        a.e(f"v_lshl_add_u32 v{vT+13}, v{vT+12}, 8, v{vT+14}")
        a.e(f"v_mul_u32_u24 v{vT+12}, 80, v{vT+12}")
        a.e(f"v_add3_u32 v{vT+12}, v{vT+12}, v{vT+14}, s{sT+1}")
        a.e(f"s_lshr_b32 s{sT+3}, s{sW}, 2")
        a.e(f"s_lshl_b32 s{sT+3}, s{sT+3}, 13")
        a.e(f"s_and_b32 s{sT+4}, s{sW}, 3")
        a.e(f"s_lshl_b32 s{sT+4}, s{sT+4}, 6")
        a.e(f"s_add_u32 s{sT+3}, s{sT+3}, s{sT+4}")
        a.e(f"v_add_u32 v{vT+13}, s{sT+3}, v{vT+13}")
    else:
        a.e(f"v_mul_u32_u24 v{vT+10}, 272, v{vT+8}")
        a.e(f"v_lshl_add_u32 v{vT+10}, v{vH16}, 1, v{vT+10}")
        a.e(f"s_and_b32 s{sT+1}, s{sW}, 3")
        a.e(f"s_lshl_b32 s{sT+1}, s{sT+1}, 6")
        a.e(f"s_add_u32 s{sT+1}, s{sT+1}, {STG}")
        a.e(f"v_add_u32 v{vT+10}, s{sT+1}, v{vT+10}")
        a.e(f"v_lshrrev_b32 v{vT+12}, 4, v0")
        a.e(f"v_lshlrev_b32 v{vT+13}, 4, v0")
        a.e(f"v_lshl_add_u32 v{vT+12}, v{vT+12}, 4, v{vT+13}")
        a.e(f"v_add_u32 v{vT+12}, {STG}, v{vT+12}")
    for st in range(8):
        a.e(f"s_waitcnt lgkmcnt({7-st})")
        c = f"v[{ACX}:{ACX+15}]" if st == 0 else "v[160:175]"
        a.e(f"v_mfma_f32_32x32x16_bf16 v[160:175], v[{128+4*st}:{131+4*st}], v[{64+4*st}:{67+4*st}], {c}")
    a.e(f"s_mov_b32 s{sT+1}, {LOG2E_NEG}")
    a.e(f"s_mov_b32 s{sT}, {LOG2E_NEG}")
    stamp(a, 50, 252)
    a.e(f"s_mov_b32 s{sT+2}, 0x7b800000")
    a.e(f"v_cmp_le_f32 s[{sX0+2}:{sX0+3}], s{sT+2}, v{vCHK}")
    a.e(f"v_mov_b32 v{vT+11}, 0x207")
    a.e("s_nop 6")
    a.e(f"v_cmp_class_f32 vcc, v160, v{vT+11}")
    for hf in range(2):
        R = range(8 * hf, 8 * hf + 8)
        for i in R: a.e(f"v_exp_f32 v{64+i}, v{160+i}")
        if hf == 0:
            a.e(f"s_and_b64 vcc, vcc, s[{sX0}:{sX0+1}]")
            a.e(f"s_or_b64 s[{sX0+2}:{sX0+3}], vcc, s[{sX0+2}:{sX0+3}]")
        if hf: a.e("s_nop 0")
        for i in R[::2]: a.e(f"v_pk_fma_f32 {p2(64+i)}, {p2(64+i)}, s[{sT}:{sT+1}], s[{sT}:{sT+1}]")
        for i in R: a.e(f"v_rcp_f32 v{64+i}, v{64+i}")
        for i in R[::2]: a.e(f"v_pk_mul_f32 {p2(64+i)}, {p2(160+i)}, {p2(64+i)}")
        for i in range(4 * hf, 4 * hf + 4): a.e(f"v_cvt_pk_bf16_f32 v{80+i}, v{64+2*i}, v{65+2*i}")
        o = " offset:16" if hf else ""
        a.e(f"ds_write_b128 v{vT+10}, v[{80+4*hf}:{83+4*hf}]{o}")
    if cfg.owt:
        a.e(f"ds_read_b128 v[88:91], v{vT+12}")
        a.e(f"ds_read_b128 v[92:95], v{vT+12} offset:{16*80}")
        a.e(f"v_mov_b32 v{vT}, 1")
        a.e(f"v_mov_b32 v{vT+1}, {FLG+4}")
        a.e(f"s_movk_i32 s{sT+1}, 4096")
        a.e("s_waitcnt lgkmcnt(1)")
        a.e(f"buffer_store_dwordx4 v[88:91], v{vT+13}, s[{sO}:{sO+3}], 0 offen {cfg.o_pol}")
        a.e("s_waitcnt lgkmcnt(0)")
        a.e(f"buffer_store_dwordx4 v[92:95], v{vT+13}, s[{sO}:{sO+3}], s{sT+1} offen {cfg.o_pol}")
        a.e(f"s_mov_b64 exec, s[{sX0+2}:{sX0+3}]")
        a.e(f"ds_write_b32 v{vT+1}, v{vT}")
        a.e("s_mov_b64 exec, -1")
        a.e("s_waitcnt lgkmcnt(0)")
        a.e("s_barrier")
        a.e(f"ds_read_b32 v{vT}, v{vT+1}")
    else:
        a.e(f"v_mov_b32 v{vT}, 1")
        a.e(f"v_mov_b32 v{vT+1}, {FLG+4}")
        a.e(f"s_mov_b64 exec, s[{sX0+2}:{sX0+3}]")
        a.e(f"ds_write_b32 v{vT+1}, v{vT}")
        a.e("s_mov_b64 exec, -1")
        a.e(f"s_movk_i32 s{sT+1}, 8192")
        a.e("s_waitcnt lgkmcnt(0)")
        stamp(a, 51, 252)
        a.e("s_barrier")
        stamp(a, 52, 252)
        a.e(f"ds_read_b128 v[88:91], v{vT+12}")
        a.e(f"ds_read_b128 v[92:95], v{vT+12} offset:{32*272}")
        a.e(f"ds_read_b32 v{vT}, v{vT+1}")
        a.e("s_waitcnt lgkmcnt(2)")
        a.e(f"buffer_store_dwordx4 v[88:91], v{vT+13}, s[{sO}:{sO+3}], 0 offen {cfg.o_pol}")
        a.e("s_waitcnt lgkmcnt(1)")
        a.e(f"buffer_store_dwordx4 v[92:95], v{vT+13}, s[{sO}:{sO+3}], s{sT+1} offen {cfg.o_pol}")
    stamp(a, 11, 252)
    if cfg.dbg:
        a.e("s_waitcnt vmcnt(0)")
        a.e(f"v_writelane_b32 v252, s{sNT}, 13")
    stamp(a, 12, 252)
    stamp_out(a, 252, 253, 1)
    if cfg.x: a.e("s_branch K2_END")
    a.e("s_waitcnt lgkmcnt(0)")
    a.e(f"v_readfirstlane_b32 s{sT}, v{vT}")
    a.e(f"s_cmp_lg_u32 s{sSafe}, 0")
    a.e("s_cbranch_scc1 K2_END")
    a.e(f"s_cmp_lg_u32 s{sT}, 0")
    a.e("s_cbranch_scc1 K2_SAFE")
    a.label("K2_END")
    a.e("s_endpgm")
    a.lines += ool.lines
    a.label("K2_CODE_END")
    a.lines += rare.lines
    a.label("K2_NOTILES")
    a.e("s_waitcnt vmcnt(0)")
    w_dma(a, sWu, vWC, sW4k, 32768, WU2, sT)
    a.e("s_branch K2_AFTER")
    a.label("K2_SLOWM")
    for c in range(4):
        a.e(f"ds_read_b32 v{vT+16+c}, v{vSD} offset:{128*c}")
    a.e("s_waitcnt vmcnt(0) lgkmcnt(0)")
    a.e("s_barrier")
    a.e(f"s_mov_b64 exec, s[{sX0+2}:{sX0+3}]")
    for c in range(4):
        a.e(f"ds_add_f32 v{vFA}, v{vT+16+c} offset:{128*c}")
    a.e("s_branch K2_MERGED")
    a.label("K2_SAFE")
    a.e("s_waitcnt vmcnt(0)")
    a.e("s_barrier")
    a.e(f"s_mov_b32 s{sSafe}, -1")
    a.e(f"s_mov_b32 s{sDone}, 0")
    reset_round(a, True)
    a.e("s_branch K2_ROUND")
    a.label("K2_MORE")
    a.e("s_mov_b64 exec, -1")
    a.e(f"s_add_u32 s{sDone}, s{sDone}, s{sLim}")
    a.e("s_branch K2_RESET")
    a.label("K2_TOOBIG")
    a.e("s_barrier")
    a.e(f"s_mov_b32 s{sLim}, 16")
    a.label("K2_RESET")
    reset_round(a, False)
    a.label("K2_ROUND")
    srd(a, sR, S_WS, off_c=cfg.wsoff + WS_S01, size=WS_OFFT + 262144 - WS_S01)
    a.e(f"v_and_b32 v{t}, 0x1fc, v0")
    a.e(f"s_lshl_b32 s{sT}, s{sBin}, 10")
    a.e(f"s_add_u32 s{sT}, s{sT}, {WS_OFFT - WS_S01}")
    a.e(f"v_mov_b32 v{vROFF}, 0")
    a.e(f"v_cmp_lt_u32 vcc, 32, v{vOC}")
    a.e("s_mov_b64 exec, vcc")
    a.e(f"buffer_load_dword v{vROFF}, v{t}, s[{sR}:{sR+3}], s{sT} offen")
    a.e("s_mov_b64 exec, -1")
    a.e(f"v_and_b32 v{vW0}, 3, v0")
    a.e(f"v_lshlrev_b32 v{vW0}, 2, v{vW0}")
    a.e(f"v_add_u32 v{vW0}, s{sDone}, v{vW0}")
    a.e(f"s_lshl_b32 s{sT}, s{sBin}, {6 if cfg.lohi else 7}")
    a.e(f"v_lshl_add_u32 v{t}, v{t}, 13, s{sT}")
    a.e(f"s_mov_b32 s{sT}, {WS_REC - WS_S01 - 4}")
    a.e("s_waitcnt vmcnt(0)")
    a.e(f"v_add_u32 v{t+2}, v{vEB}, v{vROFF}")
    a.e(f"v_lshl_add_u32 v{t+2}, v{t+2}, 2, s{sT}")
    for g in range(2):
        a.e(f"v_add_u32 v{t+3}, {16*g}, v{vW0}")
        a.e(f"v_cmp_gt_u32 vcc, 32, v{t+3}")
        a.e("s_nop 1")
        if cfg.lohi:
            a.e(f"v_and_b32 v{t+1}, 16, v{t+3}")
            a.e(f"v_mul_u32_u24 v{t+1}, 1020, v{t+1}")
            a.e(f"v_add_u32 v{t+1}, v{t+1}, v{t}")
            a.e(f"v_cndmask_b32 v{t+4+g}, v{t+2}, v{t+1}, vcc")
        else:
            a.e(f"v_cndmask_b32 v{t+4+g}, v{t+2}, v{t}, vcc")
        a.e(f"v_lshl_add_u32 v{t+4+g}, v{t+3}, 2, v{t+4+g}")
        a.e(f"buffer_load_dwordx4 v[{RC+4*g}:{RC+4*g+3}], v{t+4+g}, s[{sR}:{sR+3}], 0 offen")
    round_consts(a)
    a.e("s_waitcnt vmcnt(0) lgkmcnt(0)")
    a.e("s_barrier")
    a.e("s_branch K2_COUNT")

HEADER = open("cdna_kernels/" + NAME + ".s.ref").read().split("; Override launch")[0]
def generate():
    a = Asm()
    gen_k1(a)
    gen_k2(a)
    if cfg.rep:
        rp = [int(v) for v in cfg.rep.split(",")]; k, wg, idx, j0, j1 = (rp + [0, 4])[:5]; xs = rp[5:]
        kernel_head(a, "rep_kernel")
        a.e("s_load_dwordx2 s[20:21], s[0:1], 64")
        a.e("s_cmp_lg_u32 s2, 0")
        a.e("s_cbranch_scc1 REP_END")
        a.e("s_waitcnt lgkmcnt(0)")
        srd(a, 8, S_WS, off_c=WS_DBG, size=0x200000)
        op = "max" if wg == 1 else "min"
        a.e("v_lshlrev_b32 v1, 11, v0")
        a.e(f"v_add_u32 v2, {k*0x100000 + idx*4}, v1")
        for j in range(4):
            a.e(f"s_mov_b32 s12, {j*64*2048}")
            a.e(f"buffer_load_dword v{4+j}, v1, s[8:11], s12 offen")
            a.e(f"buffer_load_dword v{8+j}, v2, s[8:11], s12 offen")
        a.e("s_waitcnt vmcnt(0)")
        for j in range(1, 4):
            a.e(f"v_min_u32 v4, v4, v{4+j}")
            if j0 < j < j1: a.e(f"v_{op}_u32 v{8+j0}, v{8+j0}, v{8+j}")
        a.e(f"v_mov_b32 v8, v{8+j0}")
        a.e("s_nop 1")
        a.e("v_readlane_b32 s12, v4, 0")
        a.e(f"v_readlane_b32 s13, v8, {xs[0] if xs else 0}")
        for l in range(1, 63):
            a.e(f"v_readlane_b32 s14, v4, {l}")
            a.e(f"v_readlane_b32 s15, v8, {l}")
            a.e("s_min_u32 s12, s12, s14")
            if not xs or l % 8 in xs: a.e(f"s_{op}_u32 s13, s13, s15")
        a.e("s_sub_u32 s12, s13, s12")
        a.e("s_min_u32 s12, s12, 8000")
        a.e("s_lshl_b32 s12, s12, 2")
        a.e("s_memrealtime s[14:15]")
        a.e("s_waitcnt lgkmcnt(0)")
        a.label("REP_L")
        a.e("s_memrealtime s[16:17]")
        a.e("s_waitcnt lgkmcnt(0)")
        a.e("s_sub_u32 s13, s16, s14")
        a.e("s_cmp_lt_u32 s13, s12")
        a.e("s_cbranch_scc1 REP_L")
        a.label("REP_END")
        a.e("s_endpgm")
    if cfg.align:
        a.lines, bad = align_pass(a.lines, "K2_LOOP" if cfg.align < 3 else "prep_kernel", "K2_CODE_END", cfg.align == 2)
        print("misaligned left:", bad, file=sys.stderr)
    body = a.text()
    probs = check_text(body)
    for p in probs: print("HAZARD", p, file=sys.stderr)
    k1lds = K1_LDS_B
    out = HEADER
    out += f"; @launch kernel=prep_kernel grid=(256,1,1) block=(512,1,1) lds={k1lds}\n"
    out += f"; @launch kernel={NAME}_kernel grid=(256,1,1) block=(512,1,1) lds={K2_LDS}\n"
    if cfg.rep: out += "; @launch kernel=rep_kernel grid=(1,1,1) block=(64,1,1) lds=0\n"
    out += '.amdgcn_target "amdgcn-amd-amdhsa--gfx950"\n' + body
    out += '.section .rodata,"a"\n.p2align 6\n' + kernel_desc("prep_kernel", 200 if cfg.dbg else 160, 96 if cfg.dbg else 80) + ".p2align 6\n" + kernel_desc(NAME + "_kernel", 256, 96)
    if cfg.rep: out += ".p2align 6\n" + kernel_desc("rep_kernel", 16, 32)
    return out

if __name__ == "__main__":
    outp = sys.argv[1]
    for kv in sys.argv[2:]:
        k, v = kv.split("=", 1)
        cur = getattr(cfg, k)
        setattr(cfg, k, (v not in ("0", "False")) if isinstance(cur, bool) else int(v, 0) if isinstance(cur, int) else v)
    open(outp, "w").write(generate())
```

```python
import sys
from asmlib import *

NAME = "gather_scatter__mpnn_edge_mlp__graph"
class Cfg:
    modeA = False
    wsoff = 0
    st_pol = "sc1"
    ld_pol = "nt"
    e_pol = ""
    prefetchP = 1
    pf0 = False
    early = True
    o_pol = "sc1"
    ot_pol = ""
    touch = 1
    etouch = 0
    epos = 1
    align = 1
    prio = 2
    bias = 14
    k1s = 0
    w3o = 0xAD0000
    lohi = 0
    gran = 0
    k1t = 0
    k1d = 0
    tlb = 0
    cw = 0
    g_pol = ''
    s_pol = ''
    owt = 1
    k1w = 0
    e1e = 0
    e0f = 0
    few = False
    spf = 0
    ratio = 0
    k1o = 0
    p_pol = 'sc1'
    pmix = 3
    pmap = 0
    swp = 0
    p_pol2 = ''
    pfm = 0
    pfmpos = 5
    pfe = 0
    et_pol = ''
    t1pos = 1
    pfn = 320
    pfpos = 1
    nw = '4,4,4,4'
    x_pol = ""
    dbg = False
    lst = False
    x = ""
    rep = ""
cfg = Cfg()

NB = 250; NPB = 50; CH = 1600
WS_P = 4096; WS_S01 = 0x320000; WS_REC = 0x900000; WS_OFFT = 0xA90000;  WS_WF = 0xAE0000
LOG2E_NEG = "0xbfb8aa3b"
LN2_NEG = "0xbf317218"

S_X, S_E, S_SRC, S_DST, S_WM, S_WU, S_OUT, S_DBG, S_WS = 4, 6, 8, 10, 12, 14, 16, 18, 20

def load_args(a):
    a.e("s_load_dwordx16 s[4:19], s[0:1], 0")
    a.e("s_load_dwordx2 s[20:21], s[0:1], 64")

def srd(a, d, ptr, off_s=None, off_c=0, size=0):
    if off_s is not None:
        a.e(f"s_add_u32 s{d}, s{ptr}, s{off_s}")
        a.e(f"s_addc_u32 s{d+1}, s{ptr+1}, 0")
        if off_c:
            a.e(f"s_add_u32 s{d}, s{d}, {off_c}")
            a.e(f"s_addc_u32 s{d+1}, s{d+1}, 0")
    elif off_c:
        a.e(f"s_add_u32 s{d}, s{ptr}, {off_c}")
        a.e(f"s_addc_u32 s{d+1}, s{ptr+1}, 0")
    else:
        a.e(f"s_mov_b32 s{d}, s{ptr}")
        a.e(f"s_mov_b32 s{d+1}, s{ptr+1}")
    a.e(f"s_mov_b32 s{d+2}, {size}")
    a.e(f"s_mov_b32 s{d+3}, 0x20000")

def idmap(a, dst, src, t, sh=5):
    a.e(f"s_and_b32 s{t}, s{src}, 7")
    a.e(f"s_lshr_b32 s{dst}, s{src}, 3")
    a.e(f"s_lshl_b32 s{t}, s{t}, {sh}")
    a.e(f"s_add_u32 s{dst}, s{dst}, s{t}")

def scan64(a, v):
    for sh in (1, 2, 4, 8):
        a.e("s_nop 1")
        a.e(f"v_add_u32_dpp v{v}, v{v}, v{v} row_shr:{sh} row_mask:0xf bank_mask:0xf bound_ctrl:0")
    a.e("s_nop 1")
    a.e(f"v_add_u32_dpp v{v}, v{v}, v{v} row_bcast:15 row_mask:0xa bank_mask:0xf")
    a.e("s_nop 1")
    a.e(f"v_add_u32_dpp v{v}, v{v}, v{v} row_bcast:31 row_mask:0xc bank_mask:0xf")

def x_dma(a, sX, sW, vL, lds_base, t0, st, pol="", strided=False):
    a.e(f"v_lshrrev_b32 v{t0}, 4, v{vL}")
    a.e(f"v_and_b32 v{t0+1}, 15, v{vL}")
    a.e(f"v_xor_b32 v{t0+1}, v{t0+1}, v{t0}")
    a.e(f"v_lshlrev_b32 v{t0+1}, 4, v{t0+1}")
    a.e(f"v_lshl_add_u32 v{t0}, v{t0}, 8, v{t0+1}")
    a.e(f"s_and_b32 s{st}, s{sW}, 1")
    a.e(f"s_lshl_b32 s{st}, s{st}, 7")
    a.e(f"v_xor_b32 v{t0}, s{st}, v{t0}")
    a.e(f"v_xor_b32 v{t0+1}, 64, v{t0}")
    if strided:
        a.e(f"s_lshr_b32 s{st+1}, s{sW}, 1")
        a.e(f"s_lshl_b32 s{st+1}, s{st+1}, 12")
        a.e(f"s_lshl_b32 s{st}, s{sW}, 11")
        a.e(f"s_add_u32 s{st+1}, s{st+1}, s{st}")
        a.e(f"s_add_u32 m0, s{st+1}, {lds_base}")
    else:
        a.e(f"s_lshl_b32 s{st}, s{sW}, 11")
        a.e(f"s_add_u32 m0, s{st}, {lds_base}")
    a.e("s_nop 0")
    a.e(f"buffer_load_dwordx4 v{t0}, s[{sX}:{sX+3}], s{st} offen {pol} lds")
    a.e(f"buffer_load_dwordx4 v{t0+1}, s[{sX}:{sX+3}], s{st} offen offset:1024 {pol} lds")

def w_lane_const(a, vW, vL, t):
    a.e(f"v_lshrrev_b32 v{t}, 4, v{vL}")
    a.e(f"v_and_b32 v{vW}, 15, v{vL}")
    a.e(f"v_lshlrev_b32 v{vW}, 4, v{vW}")
    a.e(f"v_lshlrev_b32 v{t+1}, 6, v{t}")
    a.e(f"v_xor_b32 v{vW}, v{vW}, v{t+1}")
    a.e(f"v_lshl_add_u32 v{vW}, v{t}, 8, v{vW}")

def w_dma(a, sSrd, vW, sW4096, goff, lds_base, st):
    a.e(f"s_add_u32 s{st}, s{sW4096}, {goff}")
    a.e(f"s_add_u32 m0, s{sW4096}, {lds_base}")
    a.e("s_nop 0")
    for i in range(4):
        o = f" offset:{1024*i}" if i else ""
        a.e(f"buffer_load_dwordx4 v{vW}, s[{sSrd}:{sSrd+3}], s{st} offen{o} lds")

def wfrag_const(a, vA, vL, sW, t, st):
    a.e(f"v_lshrrev_b32 v{t}, 5, v{vL}")
    a.e(f"v_bfe_u32 v{t+1}, v{vL}, 2, 2")
    a.e(f"v_lshl_add_u32 v{t}, v{t}, 3, v{t+1}")
    a.e(f"v_lshlrev_b32 v{vA}, 8, v{t}")
    a.e(f"v_and_b32 v{t}, 1, v{vL}")
    a.e(f"v_lshlrev_b32 v{t}, 5, v{t}")
    a.e(f"v_bfe_u32 v{t+2}, v{vL}, 1, 1")
    a.e(f"v_lshl_add_u32 v{t}, v{t+2}, 3, v{t}")
    a.e(f"v_bfe_u32 v{t+2}, v{vL}, 4, 1")
    a.e(f"v_lshl_add_u32 v{t}, v{t+2}, 4, v{t}")
    a.e(f"s_and_b32 s{st}, s{sW}, 3")
    a.e(f"s_lshl_b32 s{st}, s{st}, 6")
    a.e(f"v_add_u32 v{t}, s{st}, v{t}")
    a.e(f"v_lshlrev_b32 v{t+1}, 6, v{t+1}")
    a.e(f"v_xor_b32 v{t}, v{t}, v{t+1}")
    a.e(f"v_add_u32 v{vA}, v{vA}, v{t}")

def wfrag_read(a, dst, vAddr, off=0, stride=4096):
    for s in range(8):
        for u in range(2):
            r = (dst[s] if isinstance(dst, list) else dst + 4*s) + 2*u
            a.e(f"ds_read_b64_tr_b16 v[{r}:{r+1}], v{vAddr} offset:{off+s*stride+u*1024}")

def xfrag_read(a, dst, vL, sW, lds_base, t, st):
    a.e(f"v_and_b32 v{t}, 31, v{vL}")
    a.e(f"v_lshrrev_b32 v{t+1}, 5, v{vL}")
    a.e(f"v_and_b32 v{t+2}, 15, v{vL}")
    a.e(f"v_xor_b32 v{t+1}, v{t+1}, v{t+2}")
    a.e(f"v_lshlrev_b32 v{t+1}, 4, v{t+1}")
    a.e(f"v_lshl_add_u32 v{t}, v{t}, 8, v{t+1}")
    a.e(f"s_lshr_b32 s{st}, s{sW}, 2")
    a.e(f"s_lshl_b32 s{st}, s{st}, 13")
    a.e(f"s_add_u32 s{st}, s{st}, {lds_base}")
    a.e(f"v_add_u32 v{t}, s{st}, v{t}")
    for s in range(8):
        if s == 0:
            a.e(f"ds_read_b128 v[{dst}:{dst+3}], v{t}")
        else:
            r = t + 1 + (s & 1)
            a.e(f"v_xor_b32 v{r}, {32*s}, v{t}")
            a.e(f"ds_read_b128 v[{dst+4*s}:{dst+4*s+3}], v{r}")

def gemm8(a, acc, A, B, zero=True):
    for s in range(8):
        c = "0" if (s == 0 and zero) else f"v[{acc}:{acc+15}]"
        r = A[s] if isinstance(A, list) else A + 4*s
        a.e(f"v_mfma_f32_32x32x16_bf16 v[{acc}:{acc+15}], v[{r}:{r+3}], v[{B+4*s}:{B+4*s+3}], {c}")

WS_DBG = 0x2000000
def stamp(a, i, vst):
    if not cfg.dbg: return
    if cfg.few and not (i in (0, 1, 2, 3) if vst == 197 else i in (7, 8, 9, 12)): return
    a.e("s_memrealtime s[90:91]")
    a.e("s_waitcnt lgkmcnt(0)")
    a.e(f"v_writelane_b32 v{vst}, s90, {i}")
def stamp_out(a, vst, vt, kidx):
    if not cfg.dbg: return
    srd(a, 92, S_WS, off_c=WS_DBG + kidx * 0x100000, size=0x100000)
    a.e(f"s_lshl_b32 s90, s2, 11")
    a.e(f"v_lshl_add_u32 v{vt}, v0, 2, s90")
    a.e(f"buffer_store_dword v{vst}, v{vt}, s[92:95], 0 offen")

def kernel_head(a, name):
    a.e(".text")
    a.e(f".globl {name}")
    a.e(".p2align 8")
    a.e(f".type {name},@function")
    a.label(name)

def kernel_desc(name, vg, sg):
    acc = (vg + 3) // 4 * 4
    return f""".amdhsa_kernel {name}
  .amdhsa_next_free_vgpr {vg}
  .amdhsa_next_free_sgpr {sg}
  .amdhsa_accum_offset {acc}
  .amdhsa_group_segment_fixed_size 0
  .amdhsa_kernarg_size 72
  .amdhsa_user_sgpr_count 2
  .amdhsa_user_sgpr_kernarg_segment_ptr 1
  .amdhsa_system_sgpr_workgroup_id_x 1
.end_amdhsa_kernel
"""

K1_LDS_A = 16384 + 57344
K1_LDS_B = 65536 + 96*272
def gen_k1(a):
    kernel_head(a, "prep_kernel")
    load_args(a)
    sW, sId, sT = 22, 23, 44
    vL = 1
    a.e(f"v_and_b32 v{vL}, 63, v0")
    a.e(f"v_lshrrev_b32 v2, 6, v0")
    a.e("s_nop 0")
    a.e(f"v_readfirstlane_b32 s{sW}, v2")
    if cfg.dbg: a.e("v_mov_b32 v197, 0")
    stamp(a, 0, 197)
    if cfg.dbg:
        a.e("s_getreg_b32 s90, hwreg(HW_REG_XCC_ID)")
        a.e("s_add_u32 s90, s90, 1")
        a.e("v_writelane_b32 v197, s90, 63")
    if cfg.k1d: a.e(f"s_sleep {cfg.k1d}")
    if cfg.swp == 1: a.e("s_xor_b32 s2, s2, 128")
    if cfg.swp == 2:
        a.e("s_and_b32 s3, s2, 0xffffff07")
        a.e(f"s_bfe_u32 s{sId}, s2, 0x10003")
        a.e(f"s_xor_b32 s{sId}, s{sId}, 1")
        a.e(f"s_lshl_b32 s{sId}, s{sId}, 7")
        a.e(f"s_or_b32 s3, s3, s{sId}")
        a.e(f"s_bfe_u32 s{sId}, s2, 0x40004")
        a.e(f"s_lshl_b32 s{sId}, s{sId}, 3")
        a.e(f"s_or_b32 s2, s3, s{sId}")
    a.e(f"s_mov_b32 s{sId}, s2")
    a.e("s_cmp_lt_u32 s2, 120")
    a.e("s_cbranch_scc1 K1_BIN")
    a.e(f"s_sub_u32 s{sId}, s2, 3")
    a.e("s_sub_u32 s3, s2, 123")
    a.e("s_cmp_lt_u32 s3, 5")
    a.e("s_cbranch_scc1 K1_BIN")
    a.e("s_cmp_ge_u32 s2, 256")
    a.e("s_cbranch_scc1 K1_END")
    a.e(f"s_and_b32 s{sT}, s2, 7")
    a.e(f"s_lshr_b32 s{sId}, s2, 3")
    a.e(f"s_lshl4_add_u32 s{sId}, s{sT}, s{sId}")
    a.e(f"s_min_u32 s{sT}, s{sT}, 2")
    a.e(f"s_add_u32 s{sId}, s{sId}, s{sT}")
    a.e(f"s_sub_u32 s{sId}, s{sId}, 15")
    if cfg.pmap == 1:
        a.e(f"s_sub_u32 s{sId}, s2, 120")
        a.e(f"s_sub_u32 s{sT}, s2, 125")
        a.e("s_cmp_ge_u32 s2, 128")
        a.e(f"s_cselect_b32 s{sId}, s{sT}, s{sId}")
    a.e(f"s_mul_i32 s{sT+2}, s{sId}, 24576")
    a.e(f"s_sub_u32 s{sT+4}, 3200000, s{sT+2}")
    a.e(f"s_min_u32 s{sT+4}, s{sT+4}, 24576")
    a.e(f"v_lshrrev_b32 v2, 4, v{vL}")
    a.e(f"v_and_b32 v3, 15, v{vL}")
    a.e(f"v_xor_b32 v3, v3, v2")
    a.e(f"v_lshlrev_b32 v3, 4, v3")
    a.e(f"v_lshl_add_u32 v16, v2, 8, v3")
    for i in range(1, 4): a.e(f"v_xor_b32 v{16+i}, {64*i}, v16")
    w_lane_const(a, 4, vL, 5)
    a.e(f"s_lshl_b32 s{sT+3}, s{sW}, 12")
    a.e("s_waitcnt lgkmcnt(0)")
    if cfg.k1t == 2:
        srd(a, 32, S_WS, off_s=sT+2, off_c=cfg.wsoff + WS_P, size=f"s{sT+4}")
        a.e(f"v_lshlrev_b32 v30, 12, v0")
        a.e(f"buffer_load_dword v31, v30, s[32:35], 0 offen")
    def xl():
        a.e(f"s_mov_b32 m0, s{sT+3}")
        srd(a, 24, S_X, off_s=sT+2, size=f"s{sT+4}")
        for i in range(4):
            o = f" offset:{1024*i}" if i else ""
            a.e(f"buffer_load_dwordx4 v{16+i}, s[24:27], s{sT+3} offen{o} {cfg.x_pol} lds")
    def wl():
        srd(a, 28, S_WM, size=32768)
        w_dma(a, 28, 4, sT+3, 0, 32768, sT)
    xl(); wl()
    srd(a, 32, S_WS, off_s=sT+2, off_c=cfg.wsoff + WS_P, size=f"s{sT+4}")
    if cfg.k1t == 1:
        a.e(f"v_lshlrev_b32 v30, 12, v0")
        a.e(f"buffer_load_dword v31, v30, s[32:35], 0 offen")
    if cfg.k1s == 1:
        a.e("s_lshl_b32 s67, s2, 10")
        srd(a, 68, S_WS, off_s=67, off_c=cfg.wsoff + 0x710000, size=1024)
        a.e("v_lshlrev_b32 v28, 4, v0")
        a.e(f"buffer_store_dwordx4 v[28:31], v28, s[68:71], 0 offen {cfg.st_pol}")
    if cfg.k1s == 2:
        a.e("v_lshlrev_b32 v28, 12, v0")
        a.e(f"buffer_store_dword v28, v28, s[32:35], 0 offen {cfg.st_pol}")
    wfrag_const(a, 8, vL, sW, 9, sT)
    OT = 65536
    a.e(f"v_and_b32 v12, 31, v{vL}")
    a.e(f"v_lshrrev_b32 v13, 5, v{vL}")
    a.e(f"v_and_b32 v15, 15, v{vL}")
    a.e(f"v_xor_b32 v15, v15, v13")
    a.e(f"v_lshlrev_b32 v15, 4, v15")
    a.e(f"v_lshl_add_u32 v15, v12, 8, v15")
    a.e(f"s_lshr_b32 s{sT}, s{sW}, 2")
    a.e(f"s_lshl_b32 s{sT+1}, s{sT}, 14")
    a.e(f"v_add_u32 v20, s{sT+1}, v15")
    for st in range(1, 8): a.e(f"v_xor_b32 v{20+st}, {32*st}, v20")
    if cfg.k1w:
        a.e(f"v_lshlrev_b32 v13, 5, v13")
        a.e(f"v_mul_u32_u24 v12, 80, v12")
        a.e(f"s_mul_i32 s{sT+5}, s{sW}, {32*80}")
        a.e(f"s_add_u32 s{sT+5}, s{sT+5}, {OT}")
        a.e(f"v_add3_u32 v12, s{sT+5}, v12, v13")
        a.e(f"v_lshrrev_b32 v13, 2, v{vL}")
        a.e(f"v_and_b32 v15, 3, v{vL}")
        a.e(f"v_lshlrev_b32 v15, 4, v15")
        a.e(f"v_lshl_add_u32 v14, v13, 8, v15")
        a.e(f"v_mul_u32_u24 v13, 80, v13")
        a.e(f"v_add3_u32 v13, v13, v15, s{sT+5}")
        a.e(f"s_lshl_b32 s{sT}, s{sT}, 14")
        a.e(f"s_and_b32 s{sT+1}, s{sW}, 3")
        a.e(f"s_lshl_b32 s{sT+1}, s{sT+1}, 6")
        a.e(f"v_add_u32 v14, s{sT}, v14")
        a.e(f"v_add_u32 v14, s{sT+1}, v14")
        a.e("s_movk_i32 s65, 4096\ns_movk_i32 s66, 12288")
    else:
        a.e(f"v_lshlrev_b32 v13, 5, v13")
        a.e(f"v_mul_u32_u24 v12, 272, v12")
        a.e(f"s_mul_i32 s{sT}, s{sT}, {64*272}")
        a.e(f"s_and_b32 s{sT+1}, s{sW}, 3")
        a.e(f"s_lshl_b32 s{sT+1}, s{sT+1}, 6")
        a.e(f"s_add_u32 s{sT}, s{sT}, s{sT+1}")
        a.e(f"s_add_u32 s{sT}, s{sT}, {OT}")
        a.e(f"v_add3_u32 v12, s{sT}, v12, v13")
        a.e(f"v_lshrrev_b32 v13, 4, v0")
        a.e(f"v_lshlrev_b32 v14, 4, v0")
        a.e(f"v_lshl_add_u32 v13, v13, 4, v14")
        a.e(f"v_add_u32 v13, {OT}, v13")
    a.e(f"s_mov_b32 s{sT}, {LOG2E_NEG}")
    a.e(f"s_mov_b32 s{sT+1}, {LOG2E_NEG}")
    a.e("s_movk_i32 s62, 8192\ns_movk_i32 s63, 16384\ns_movk_i32 s64, 24576")
    WF, X0, X1, A0, A1 = 32, 64, 96, 128, 144
    def rw(st):
        for u in range(2):
            a.e(f"ds_read_b64_tr_b16 v[{WF+4*st+2*u}:{WF+4*st+2*u+1}], v8 offset:{32768+st*4096+u*1024}")
    def rx0(st): a.e(f"ds_read_b128 v[{X0+4*st}:{X0+4*st+3}], v{20+st}")
    def mm(A, X, st):
        c = "0" if st == 0 else f"v[{A}:{A+15}]"
        a.e(f"v_mfma_f32_32x32x16_bf16 v[{A}:{A+15}], v[{WF+4*st}:{WF+4*st+3}], v[{X+4*st}:{X+4*st+3}], {c}")
    def fin(b, A):
        for i in range(8):
            a.e(f"v_pk_mul_f32 v[{A+2*i}:{A+2*i+1}], v[{A+2*i}:{A+2*i+1}], s[{sT}:{sT+1}]")
        for i in range(8):
            a.e(f"v_cvt_pk_bf16_f32 v{A+i}, v{A+2*i}, v{A+1+2*i}")
        if cfg.k1w and b:
            a.e("s_waitcnt lgkmcnt(0)")
            st2(0)
            a.e("v_add_u32 v14, s62, v14")
            b = 0
        if cfg.k1w:
            a.e(f"ds_write_b128 v12, v[{A}:{A+3}]")
            a.e(f"ds_write_b128 v12, v[{A+4}:{A+7}] offset:16")
            a.e(f"ds_read_b128 v[{48+8*b}:{51+8*b}], v13")
            a.e(f"ds_read_b128 v[{52+8*b}:{55+8*b}], v13 offset:{16*80}")
        else:
            a.e(f"ds_write_b128 v12, v[{A}:{A+3}] offset:{b*32*272}")
            a.e(f"ds_write_b128 v12, v[{A+4}:{A+7}] offset:{b*32*272+16}")
    def st2(b):
        for j in range(2):
            a.e(f"buffer_store_dwordx4 v[{48+8*b+4*j}:{51+8*b+4*j}], v14, s[32:35], {['0','s65','s62','s66'][2*b+j]} offen {cfg.p_pol}")
    a.e(f"s_cmp_ge_u32 s{sW}, 4")
    a.e(f"s_waitcnt vmcnt({4 + (cfg.k1t == 1) + (cfg.k1s > 0)})")
    a.e("s_barrier")
    for st in range(8): rx0(st)
    a.e("s_cbranch_scc1 K1_NX1")
    for st in range(8):
        a.e(f"ds_read_b128 v[{X1+4*st}:{X1+4*st+3}], v{20+st} offset:8192")
    a.label("K1_NX1")
    a.e(f"s_waitcnt vmcnt({int(cfg.k1t == 1) + (cfg.k1s > 0)})")
    stamp(a, 1, 197)
    a.e("s_barrier")
    for st in range(8): rw(st)
    for st in range(8):
        a.e(f"s_waitcnt lgkmcnt({14-2*st})")
        mm(A0, X0, st)
    a.e("s_cbranch_scc1 K1_NX2")
    for st in range(8): mm(A1, X1, st)
    a.e("s_nop 2")
    fin(0, A0)
    fin(1, A1)
    a.e("s_branch K1_NX3")
    a.label("K1_NX2")
    a.e("s_nop 10")
    fin(0, A0)
    a.label("K1_NX3")
    a.e("s_waitcnt vmcnt(0) lgkmcnt(0)" if cfg.k1s == 2 else "s_waitcnt lgkmcnt(0)")
    if cfg.k1w:
        st2(0)
    else:
        a.e("s_barrier")
        for j in range(3):
            a.e(f"ds_read_b128 v[{48+4*j}:{51+4*j}], v13 offset:{j*32*272}")
        for j in range(3):
            a.e(f"s_waitcnt lgkmcnt({2-j})")
            a.e(f"buffer_store_dwordx4 v[{48+4*j}:{51+4*j}], v14, s[32:35], {['0','s62','s63'][j]} offen {cfg.p_pol if j < cfg.pmix else cfg.p_pol2}")
    stamp(a, 2, 197)
    if cfg.dbg: a.e("s_waitcnt vmcnt(0)")
    stamp(a, 3, 197)
    stamp_out(a, 197, 198, 0)
    a.e("s_endpgm")
    SL, FLAG, SORT = 0, 36864, 36880
    a.label("K1_BIN")
    a.e(f"s_mul_i32 s{sT+2}, s{sId}, 12800")
    a.e(f"s_lshl_b32 s{sT+3}, s{sId}, 15")
    a.e("v_lshlrev_b32 v2, 4, v0")
    a.e("s_movk_i32 s3, 6400")
    a.e("s_movk_i32 s59, 400")
    a.e("v_cmp_gt_u32 s[60:61], s59, v0")
    a.e("s_waitcnt lgkmcnt(0)")
    D, S, BA, RK, AD = 4, 12, 20, 28, 36
    srd(a, 24, S_DST, off_s=sT+2, size=12800)
    a.e(f"buffer_load_dwordx4 v[{D}:{D+3}], v2, s[24:27], 0 offen {cfg.ld_pol}")
    a.e(f"buffer_load_dwordx4 v[{D+4}:{D+7}], v2, s[24:27], s3 offen {cfg.ld_pol}")
    srd(a, 28, S_SRC, off_s=sT+2, size=12800)
    a.e(f"buffer_load_dwordx4 v[{S}:{S+3}], v2, s[28:31], 0 offen {cfg.ld_pol}")
    a.e(f"buffer_load_dwordx4 v[{S+4}:{S+7}], v2, s[28:31], s3 offen {cfg.ld_pol}")
    srd(a, 32, S_WS, off_s=sT+3, off_c=cfg.wsoff + WS_S01, size=32768)
    if cfg.k1s == 1:
        a.e("s_lshl_b32 s67, s2, 10")
        srd(a, 68, S_WS, off_s=67, off_c=cfg.wsoff + 0x710000, size=1024)
        a.e("v_lshlrev_b32 v92, 4, v0")
        a.e(f"buffer_store_dwordx4 v[92:95], v92, s[68:71], 0 offen {cfg.st_pol}")
    if cfg.k1s == 2:
        a.e("v_lshlrev_b32 v92, 12, v0")
        a.e(f"buffer_store_dword v92, v92, s[32:35], 0 offen {cfg.st_pol}")
    a.e("v_mov_b32 v44, 1")
    a.e("v_min_u32 v3, 256, v0")
    a.e("v_mul_u32_u24 v3, 144, v3")
    a.e(f"ds_write_b32 v3, v44 offset:{SL}")
    a.e("v_lshlrev_b32 v45, 22, v0")
    a.e("s_movk_i32 s58, 10700")
    a.e("s_movk_i32 s57, 144")
    if cfg.lohi:
        a.e("v_lshrrev_b32 v86, 2, v0")
        a.e("v_mul_u32_u24 v86, 144, v86")
        a.e("v_and_b32 v46, 3, v0")
        a.e("v_lshl_add_u32 v46, v46, 4, v86")
    else:
        a.e("v_lshrrev_b32 v46, 3, v0")
        a.e("v_lshl_add_u32 v46, v46, 4, v2")
    a.e(f"v_mov_b32 v48, {FLAG}")
    if cfg.gran:
        a.e("v_lshrrev_b32 v86, 3, v0")
        a.e("v_mul_u32_u24 v86, 144, v86")
        a.e(f"v_and_b32 v87, {8 - cfg.gran // 16}, v0")
        a.e("v_lshlrev_b32 v87, 2, v87")
    a.e("s_movk_i32 s62, 8192\ns_movk_i32 s63, 16384\ns_movk_i32 s64, 24576")
    a.e("s_waitcnt lgkmcnt(0)")
    a.e("s_barrier")
    if True:
        a.e(f"s_cmp_lg_u32 s{sW}, 7")
        a.e("s_cbranch_scc1 K1_NOTOUCH")
        if cfg.k1t:
            a.e(f"v_lshlrev_b32 v84, 12, v{vL}")
            a.e(f"buffer_load_dword v85, v84, s[32:35], 0 offen")
        a.e("s_cmp_ge_u32 s2, 124")
        a.e("s_cbranch_scc1 K1_W3")
        a.e(f"s_lshr_b32 s{sT}, s2, 3")
        a.e(f"v_lshlrev_b32 v70, 7, v{vL}")
        if cfg.touch & 1:
            srd(a, 72, S_WM, off_c=32768, size=32768)
            srd(a, 76, S_WU, size=65536)
            a.e(f"s_mul_i32 s{sT+1}, s{sT}, {18*128}")
            a.e("s_mov_b64 exec, 0x3ffff")
            a.e(f"buffer_load_dword v71, v70, s[72:75], s{sT+1} offen")
            a.e(f"s_mul_i32 s{sT+1}, s{sT}, {35*128}")
            a.e("s_mov_b32 exec_lo, -1\ns_mov_b32 exec_hi, 7")
            a.e(f"buffer_load_dword v72, v70, s[76:79], s{sT+1} offen")
        if cfg.touch & 2:
            a.e("s_mov_b64 exec, 0x1ff")
            a.e("s_getpc_b64 s[68:69]")
            a.label("K1_PC")
            a.e(f"s_add_u32 s68, s68, {NAME}_kernel-K1_PC")
            a.e("s_addc_u32 s69, s69, 0")
            a.e(f"s_mul_i32 s{sT+1}, s{sT}, {9*128}")
            a.e(f"v_add_u32 v74, s{sT+1}, v70")
            a.e(f"v_min_u32 v74, K2_CODE_END-{NAME}_kernel-4, v74")
            a.e("v_mov_b32 v75, s69")
            a.e("v_add_co_u32 v74, vcc, s68, v74")
            a.e("s_nop 1")
            a.e("v_addc_co_u32 v75, vcc, 0, v75, vcc")
            a.e("global_load_dword v73, v[74:75], off")
        a.e("s_mov_b64 exec, -1")
        a.e("s_branch K1_B2")
        a.label("K1_NOTOUCH")
    a.e("s_mov_b64 exec, s[60:61]")
    for j in range(2):
        a.e(f"s_waitcnt vmcnt({3 - j + (cfg.k1s > 0)})")
        if j == 0: stamp(a, 1, 197)
        for i in range(4*j, 4*j+4):
            a.e(f"v_mul_u32_u24 v{AD+i}, s58, v{D+i}")
            a.e(f"v_lshrrev_b32 v{AD+i}, 19, v{AD+i}")
            a.e(f"v_mul_u32_u24 v{BA+i}, s57, v{AD+i}")
            a.e(f"ds_add_rtn_u32 v{RK+i}, v{BA+i}, v44 offset:{SL}")
    for i in range(8):
        a.e(f"v_mul_u32_u24 v{AD+i}, 49, v{AD+i}")
        a.e(f"v_sub_u32 v{D+i}, v{D+i}, v{AD+i}")
        if i: a.e(f"v_add_u32 v45, {hex(((1600-3) if i == 4 else 1) << 20)}, v45")
        a.e(f"v_or_b32 v{D+i}, v{D+i}, v45")
    a.e(f"s_waitcnt vmcnt({int(cfg.k1s > 0)})")
    stamp(a, 4, 197)
    for i in range(8):
        a.e(f"s_waitcnt lgkmcnt(7)")
        a.e(f"v_min_u32 v{AD+i}, 32, v{RK+i}")
        a.e(f"v_lshl_or_b32 v{D+i}, v{S+i}, 6, v{D+i}")
        a.e(f"v_lshl_add_u32 v{AD+i}, v{AD+i}, 2, v{BA+i}")
        a.e(f"ds_write_b32 v{AD+i}, v{D+i} offset:{SL}")
    a.e(f"v_max3_u32 v47, v{RK}, v{RK+1}, v{RK+2}")
    a.e(f"v_max3_u32 v47, v47, v{RK+3}, v{RK+4}")
    a.e(f"v_max3_u32 v47, v47, v{RK+5}, v{RK+6}")
    a.e(f"v_max_u32 v47, v47, v{RK+7}")
    a.e("v_cmpx_le_u32 vcc, 32, v47")
    a.e("ds_write_b32 v48, v47")
    a.e("s_mov_b64 exec, -1")
    a.e("s_waitcnt vmcnt(0) lgkmcnt(0)" if cfg.k1s == 2 else "s_waitcnt lgkmcnt(0)")
    stamp(a, 5, 197)
    a.label("K1_B2")
    a.e("s_barrier")
    stamp(a, 6, 197)
    if cfg.lohi:
        for j in range(4):
            a.e(f"ds_read_b128 v[{52+4*j}:{55+4*j}], v46 offset:{SL + (j&1)*128*144 + (j>>1)*64}")
        a.e(f"ds_read_b32 v49, v48")
        for j in range(4):
            a.e(f"s_waitcnt lgkmcnt({4-j})")
            if j < 2: a.e(f"v_mov_b32_dpp v{88+j}, v{52+4*j} quad_perm:[0,0,0,0] row_mask:0xf bank_mask:0xf")
            else:
                if cfg.lohi == 2 and j == 2:
                    for r in (88, 89): a.e(f"v_max_u32_dpp v{r}, v{r}, v{r} row_half_mirror row_mask:0xf bank_mask:0xf")
                a.e(f"v_cmpx_lt_u32 vcc, 16, v{86+j}")
            a.e(f"buffer_store_dwordx4 v[{52+4*j}:{55+4*j}], v2, s[32:35], {['0','s62','s63','s64'][j]} offen {cfg.st_pol}")
            if j >= 2: a.e("s_mov_b64 exec, -1")
        a.e("s_nop 0")
    else:
        for j in range(4):
            if cfg.gran: a.e(f"ds_read_b32 v{88+j}, v86 offset:{SL + j*9216}")
            a.e(f"ds_read_b128 v[{52+4*j}:{55+4*j}], v46 offset:{SL + j*9216}")
        a.e(f"ds_read_b32 v49, v48")
        for j in range(4):
            a.e(f"s_waitcnt lgkmcnt({7-2*j if cfg.gran else 4-j})")
            if cfg.gran: a.e(f"v_cmpx_lt_u32 vcc, v87, v{88+j}")
            a.e(f"buffer_store_dwordx4 v[{52+4*j}:{55+4*j}], v2, s[32:35], {['0','s62','s63','s64'][j]} offen {cfg.st_pol}")
            if cfg.gran: a.e("s_mov_b64 exec, -1")
        if cfg.gran: a.e("s_nop 0")
    a.e("s_waitcnt lgkmcnt(0)")
    a.e("v_readfirstlane_b32 s3, v49")
    a.e("s_cmp_lg_u32 s3, 1")
    a.e("s_cbranch_scc1 K1_FULL")
    stamp(a, 2, 197)
    if cfg.dbg: a.e("s_waitcnt vmcnt(0)")
    stamp(a, 3, 197)
    stamp_out(a, 197, 198, 0)
    a.label("K1_END")
    a.e("s_endpgm")
    a.label("K1_FULL")
    a.e("s_waitcnt vmcnt(0)")
    a.e(f"s_lshl_b32 s{sT+4}, s{sId}, 2")
    srd(a, 32, S_WS, off_s=sT+2, off_c=cfg.wsoff + WS_REC, size=12800)
    srd(a, 36, S_WS, off_s=sT+4, off_c=cfg.wsoff + WS_OFFT, size=255*1024 + 4)
    a.e(f"v_mul_u32_u24 v3, {4*144}, v{vL}")
    for i in range(4):
        a.e(f"ds_read_b32 v{52+i}, v3 offset:{SL + 144*i}")
    a.e("s_waitcnt lgkmcnt(0)")
    for i in range(4):
        a.e(f"v_add_u32 v{52+i}, -1, v{52+i}")
    a.e("v_add_u32 v56, v52, v53")
    a.e("v_add_u32 v57, v56, v54")
    a.e("v_add_u32 v58, v57, v55")
    a.e("v_mov_b32 v60, v58")
    scan64(a, 60)
    a.e("v_sub_u32 v60, v60, v58")
    a.e("v_add_u32 v61, v60, v52")
    a.e("v_add_u32 v62, v60, v56")
    a.e("v_add_u32 v63, v60, v57")
    for i in range(4):
        a.e(f"ds_write_b32 v3, v{60+i} offset:{SL + 144*i + 132}")
    a.e(f"s_cmp_lg_u32 s{sW}, 7")
    a.e("s_cbranch_scc1 K1_NOFFT")
    a.e(f"v_lshlrev_b32 v59, 12, v{vL}")
    for i in range(4):
        o = f" offset:{1024*i}" if i else ""
        a.e(f"buffer_store_dword v{60+i}, v59, s[36:39], 0 offen{o}")
    a.label("K1_NOFFT")
    a.e("s_mov_b64 exec, s[60:61]")
    a.e("s_waitcnt lgkmcnt(0)")
    for i in range(8):
        a.e(f"ds_read_b32 v{BA+i}, v{BA+i} offset:{SL + 132}")
    a.e("s_waitcnt lgkmcnt(0)")
    for i in range(8):
        a.e(f"v_add_lshl_u32 v{BA+i}, v{BA+i}, v{RK+i}, 2")
        a.e(f"ds_write_b32 v{BA+i}, v{D+i} offset:{SORT - 4}")
    a.e("s_mov_b64 exec, -1")
    a.e("s_waitcnt lgkmcnt(0)")
    a.e("s_barrier")
    a.e(f"ds_read_b128 v[4:7], v2 offset:{SORT}")
    a.e(f"ds_read_b128 v[8:11], v2 offset:{SORT + 8192}")
    a.e(f"s_waitcnt lgkmcnt(0)")
    a.e(f"buffer_store_dwordx4 v[4:7], v2, s[32:35], 0 offen")
    a.e(f"buffer_store_dwordx4 v[8:11], v2, s[32:35], s62 offen")
    a.e("s_endpgm")
    a.label("K1_W3")
    a.e(f"s_sub_u32 s{sT}, s2, 124")
    srd(a, 72, S_WM, off_c=65536, size=4096)
    srd(a, 76, S_WS, off_c=cfg.wsoff + cfg.w3o, size=4096)
    a.e(f"v_and_b32 v70, 31, v{vL}")
    a.e("v_lshlrev_b32 v70, 1, v70")
    a.e(f"v_lshrrev_b32 v71, 5, v{vL}")
    a.e("v_lshl_add_u32 v70, v71, 11, v70")
    a.e(f"s_lshl_b32 s{sT+1}, s{sT}, 6")
    for j in range(8):
        o = f" offset:{256*j}" if j else ""
        a.e(f"buffer_load_ushort v{72+j}, v70, s[72:75], s{sT+1} offen{o}")
    a.e(f"s_lshl_b32 s{sT+1}, s{sT}, 10")
    a.e(f"s_mov_b32 s{sT}, {LOG2E_NEG}")
    a.e(f"v_lshlrev_b32 v71, 4, v{vL}")
    a.e("s_waitcnt vmcnt(0)")
    for j in range(8):
        a.e(f"v_lshlrev_b32 v{72+j}, 16, v{72+j}")
        a.e(f"v_mul_f32 v{72+j}, s{sT}, v{72+j}")
    for j in range(4):
        a.e(f"v_cvt_pk_bf16_f32 v{80+j}, v{72+2*j}, v{73+2*j}")
    a.e(f"buffer_store_dwordx4 v[80:83], v71, s[76:79], s{sT+1} offen {cfg.st_pol}")
    a.e("s_branch K1_B2")

CNT, FLG, LUT, QL, LIST, AGG, SIDE, WU2, STG = 0, 256, 288, 576, 13776, 30800, 56672, 65536, 98304
MAXT = 65
K2_LDS = 163840
vL, vM = 1, 2
vOC, vREM, vROFF, vEB = 3, 4, 5, 6
vAE, vAP, vAQ = 7, 8, 9
vCP, vRP0, vRP1, vCQ, vCL, vCA, vH16, vFA = 10, 11, 12, 13, 14, 15, 16, 17
vPA = 144
vEA, vLA = 20, 21
vQA = 22
vRS = 148
vC4 = 152
ACC = 156
vRN = 28
vRE = 30
vSD = 31
vCUR = 32
vCHK = 34
vWC, vWA = 35, 36
vPF = 38
vT = 40
Z = 64; PX = 128; PY = 128; QX = 160; QY = 168; EE = 176; AQ = 184; AP = 188; IDX = 192; W3 = 196
NN = 212; DD = 220; EX = 228; TT = 232; ACX = 236
sP, sE, sX, sO, sR, sWm, sWu, sOT = 24, 28, 32, 36, 40, 44, 48, 52
sW, sBin, sNT, sCnt, sG0, sG1, sG2, sLim, sDone, sSafe, sW4k, sM0, sMask, sMore, sFirst, sDm = 22, 23, 56, 57, 58, 59, 60, 61, 62, 63, 64, 65, 66, 67, 68, 69
sT = 70
sX0 = 80
sSusp = 88
sF0, sF1 = 32, 34
sMA, sMB, sL, sEX = 58, 59, 60, 52
PSIZE = 12500 * 256 + 3072
s256 = 79
ESIZE = 400000 * 32

def dma_m0(H, dest=None):
    if dest is None: dest = H
    return f"s_add_u32 m0, s{sW4k}, {WU2 - 128*H}" if dest == "alt" else f"s_add_u32 m0, s{sM0}, {dest*4096 - 128*H + 256}"
def dma_ld(H):
    out = []
    for j in range(4):
        imm = 1024 * j + 128 * H
        o = f" offset:{imm}" if imm else ""
        out.append(f"buffer_load_dwordx4 v{vPA+j}, s[{sP}:{sP+3}], 0 offen{o} {cfg.g_pol} lds")
    return out
def dma_ops(H, dest=None):
    l = dma_ld(H)
    return [[dma_m0(H, dest), "s_nop 0", l[0]], [l[1]], [l[2]], [l[3]]]
def dma_half(a, H, dest=None):
    for s in sum(dma_ops(H, dest), []): a.e(s)
def pfrag_reads(dst, H, va=None):
    out = []
    va = vRP0 if va is None else va
    for tq in range(2):
        for q in range(4):
            r = dst + 8 * tq + 2 * q
            out.append(f"ds_read_b64_tr_b16 v[{r}:{r+1}], v{va+tq} offset:{H*4096 + q*512}")
    return out
def qfrag_reads(dst, H, par):
    out = []
    for tq in range(2):
        for u in range(2):
            r = dst + 4 * tq + 2 * u
            out.append(f"ds_read_b64_tr_b16 v[{r}:{r+1}], v{vQA+2*par+u} offset:{(2*H+tq)*64}")
    return out
def list_reads_se(o=0):
    return [f"ds_read_b32 v{vRE}, v{vAE} offset:{128*o}", f"ds_read2_b32 v[{vRS}:{vRS+1}], v{vAP} offset0:{32*o} offset1:{32*o+8}", f"ds_read2_b32 v[{vRS+2}:{vRS+3}], v{vAP} offset0:{32*o+16} offset1:{32*o+24}"]
def list_reads_n(o=0):
    return [f"ds_read_u16 v{vRN}, v{vAQ} offset:{128*o}", f"ds_read_u16 v{vRN+1}, v{vAQ} offset:{128*o+64}"]
def addr_p():
    return [f"v_mad_u32_u16 v{vPA+j}, v{vRS+j}, s{s256}, v{vC4+j}" for j in range(4)]
def addr_e():
    return [f"v_and_or_b32 v{vEA}, v{vRE}, s{sMask}, v{18 if 'ehalf' in cfg.x else vH16}"]
def addr_l():
    return [f"v_and_or_b32 v{vLA}, v{vRE}, 16, v{vCL}", f"v_cmp_gt_i32 vcc, 0, v{vRE}"]
def addr_se():
    return addr_p() + addr_e() + addr_l()
def flags_from_vcc(sF):
    if "nf2" in cfg.x: return [f"s_mov_b32 s{sF}, 0", f"s_mov_b32 s{sF+1}, 0"]
    return [f"s_lshr_b32 s{sF+1}, vcc_lo, 4", f"s_mov_b32 s{sF}, vcc_lo", f"s_or_b32 s{sF+1}, s{sF+1}, vcc_lo", f"s_or_b32 s{sF+1}, s{sF+1}, s{sSafe}"]
def addr_q(par):
    return [f"v_add_u32 v{vQA+2*par}, v{vRN}, v{vCQ}", f"v_add_u32 v{vQA+2*par+1}, v{vRN+1}, v{vCQ}"]
def e_load(par):
    return f"buffer_load_dwordx4 v[{EE+4*par}:{EE+4*par+3}], v{vEA}, s[{sE}:{sE+3}], 0 offen {cfg.e_pol}"
def mfmas(c0, Pset, Qset, epar):
    out = []
    zz = lambda c: f"v[{Z+16*c}:{Z+16*c+15}]"
    f4 = lambda r: f"v[{r}:{r+3}]"
    M = "v_mfma_f32_32x32x16_bf16"
    for i in range(2): out.append(f"{M} {zz(c0+i)}, {f4(EE+4*epar)}, {f4(W3+4*(c0+i))}, 0")
    for i in range(2): out.append(f"{M} {zz(c0+i)}, {f4(AQ)}, {f4(Qset+4*i)}, {zz(c0+i)}")
    for i in range(2): out.append(f"v_smfmac_f32_32x32x32_bf16 {zz(c0+i)}, {f4(AP)}, v[{Pset+8*i}:{Pset+8*i+7}], v{IDX}")
    return out
p2 = lambda r: f"v[{r}:{r+1}]"
def flush_code(a, c0, X, mid=(), wait=True, chk=()):
    t = vT + 8 * X
    for i in range(2):
        c = c0 + i
        a.e(f"v_rcp_f32 v{t+2*i}, v{DD+2*c}")
        a.e(f"v_rcp_f32 v{t+2*i+1}, v{DD+2*c+1}")
    for s in chk: a.e(s)
    for i in range(2):
        c = c0 + i
        a.e(f"v_max3_f32 v{vCHK}, v{DD+2*c}, v{DD+2*c+1}, v{vCHK}")
    for s in mid: a.e(s)
    if wait: a.e("s_waitcnt lgkmcnt(0)")
    for j in range(2):
        for i in range(2):
            c = c0 + i
            a.e(f"v_fmac_f32 v{ACC+c}, v{NN+2*c+j}, v{t+2*i+j}")

def half_step(a, ool, X, par, extras, tag):
    c0 = 2 * X
    sF0 = (32, 34)[par]
    if X == 0: mf = mfmas(2, PX, QX, par)
    else:      mf = mfmas(0, PY, QY, 1 - par)
    def keep(s):
        if "nodma" in cfg.x and (" lds" in s or "m0" in s or s == "s_nop 0"): return False
        if "noe" in cfg.x and s.startswith("buffer_load") and " lds" not in s: return False
        if "nods" in cfg.x and s.startswith("ds_read"): return False
        if "nowait" in cfg.x and s.startswith("s_waitcnt"): return False
        if "novm" in cfg.x and s.startswith("s_waitcnt vmcnt"): return False
        return True
    extras = {k: [s for s in v if keep(s)] for k, v in extras.items()}
    for s in extras.get("pre", []): a.e(s)
    if cfg.prio == 1: a.e(f"s_setprio {1 - X}")
    if cfg.prio == 2 and X == 0: a.e(f"s_setprio {1 - par}")
    for k in range(8):
        if cfg.prio == 3 and k in (0, 4): a.e(f"s_setprio {1 if k == 0 else 0}")
        if cfg.prio == 4: a.e("s_setprio 1")
        if cfg.prio == 5: a.e("s_setprio 0")
        if "nomfma" not in cfg.x and k < len(mf): a.e(mf[k])
        for i in range(2):
            z = Z + 16 * (c0 + i) + 2 * k
            a.e(f"v_exp_f32 v{EX+2*i}, v{z}")
            a.e(f"v_exp_f32 v{EX+2*i+1}, v{z+1}")
        for s in extras.get(k, []): a.e(s)
        if cfg.prio == 4: a.e("s_setprio 0")
        if cfg.prio == 5: a.e("s_setprio 1")
        bit = 8 * (k >> 1) + 2 * (k & 1)
        lf, lb = f"F_{tag}_{k}", f"R_{tag}_{k}"
        if "nobr" not in cfg.x:
            a.e(f"s_bitcmp1_b32 s{sSafe if 'nofl' in cfg.x else sF0+1}, {bit}")
            a.e(f"s_cbranch_scc1 {lf}")
        for i in range(2):
            c = c0 + i; z = Z + 16 * c + 2 * k
            a.e(f"v_pk_fma_f32 {p2(TT+2*i)}, {p2(z)}, {p2(DD+2*c)}, {p2(NN+2*c)}")
        for i in range(2):
            c = c0 + i
            a.e(f"v_pk_fma_f32 {p2(DD+2*c)}, {p2(DD+2*c)}, {p2(EX+2*i)}, {p2(DD+2*c)}")
        for i in range(2):
            c = c0 + i
            a.e(f"v_pk_fma_f32 {p2(NN+2*c)}, {p2(NN+2*c)}, {p2(EX+2*i)}, {p2(TT+2*i)}")
        a.label(lb)
        ool.label(lf)
        t = vT + 8 * X
        ex = "K2_LEND" if X else (f"EXA{par}_{k}" if k < 6 else f"R_{tag}_7")
        sal = ([f"s_bitcmp1_b32 s{sF0}, {bit+1}", f"s_cbranch_scc1 {ex}"] if k else []) + \
              [f"s_bitcmp1_b32 s{sF0}, {bit}", f"s_cselect_b32 s{sT}, -1, 0", f"s_bitcmp1_b32 s{sF0}, {bit+4}", f"s_cselect_b32 s{sT+1}, -1, 0"]
        rc = [f"v_rcp_f32 v{t+j}, v{DD+2*c0+j}" for j in range(4)]
        n = len(sal)
        for j in range(4):
            ool.e(rc[j])
            for x in sal[:(n + 3 - j) // 4 if False else 0]: pass
            cnt = (n // 4) + (1 if j < n % 4 else 0)
            for _ in range(cnt): ool.e(sal.pop(0))
        for i in range(2):
            c = c0 + i
            ool.e(f"v_max3_f32 v{vCHK}, v{DD+2*c}, v{DD+2*c+1}, v{vCHK}")
        ool.e(f"v_mov_b32_dpp v{t+6}, v{vQA+2*par+(k>>2)} row_newbcast:{4*(k&3)} row_mask:0xf bank_mask:0xf")
        nk = sum(1 for x in extras.get(k, []) if x.startswith("ds_")) if cfg.cw else 0
        if k == 0 and cfg.cw: pass
        elif k == 7 and cfg.cw: pass
        else: ool.e(f"s_waitcnt lgkmcnt({nk})")
        for j in range(2):
            for i in range(2):
                c = c0 + i
                ool.e(f"v_fmac_f32 v{ACC+c}, v{NN+2*c+j}, v{t+2*i+j}")
        ool.e(f"s_mov_b64 exec, s[{sT}:{sT+1}]")
        ool.e(f"ds_write2_b32 v{vCUR+X}, v{ACC+c0}, v{ACC+c0+1} offset0:{32*c0} offset1:{32*c0+32}")
        ool.e(f"v_lshl_add_u32 v{vCUR+X}, v{t+6}, 1, v{vCA}")
        ool.e(f"ds_read2_b32 v[{ACC+c0}:{ACC+c0+1}], v{vCUR+X} offset0:{32*c0} offset1:{32*c0+32}")
        ool.e("s_mov_b64 exec, -1")
        for i in range(2):
            c = c0 + i
            ool.e(f"v_pk_add_f32 {p2(DD+2*c)}, {p2(EX+2*i)}, 1.0 op_sel_hi:[1,0]")
        for i in range(2):
            c = c0 + i; z = Z + 16 * c + 2 * k
            ool.e(f"v_pk_mov_b32 {p2(NN+2*c)}, {p2(z)}, {p2(z)} op_sel:[0,1]")
        ool.e(f"s_branch {lb}")

def lds_fill(a, base, nbytes, vdata, vaddr16, ex):
    n = (nbytes + 15) // 16
    r = 0
    while n >= 512:
        a.e(f"ds_write_b128 v{vaddr16}, v[{vdata}:{vdata+3}] offset:{base + r*8192}")
        n -= 512; r += 1
    if n:
        a.e(f"s_movk_i32 s{sT}, {n}")
        a.e(f"v_cmp_gt_u32 vcc, s{sT}, v0")
        a.e(f"s_and_saveexec_b64 s[{ex}:{ex+1}], vcc")
        a.e(f"ds_write_b128 v{vaddr16}, v[{vdata}:{vdata+3}] offset:{base + r*8192}")
        a.e(f"s_mov_b64 exec, s[{ex}:{ex+1}]")

def reset_round(a, zero_agg):
    t = vT
    a.e(f"v_lshlrev_b32 v{t}, 4, v0")
    a.e(f"v_mov_b32 v{t+8}, 0\nv_mov_b32 v{t+9}, 0\nv_mov_b32 v{t+10}, 0\nv_mov_b32 v{t+11}, 0")
    lds_fill(a, CNT, 272, t+8, t, sX0)
    if zero_agg: lds_fill(a, AGG, 49 * 528, t+8, t, sX0)

def onehot4(a, dst, vJ, vcond_sgpr, t):
    a.e(f"v_and_b32 v{t}, 1, v{vJ}")
    a.e(f"v_lshlrev_b32 v{t}, 4, v{t}")
    a.e(f"v_mov_b32 v{t+1}, 0x3f80")
    a.e(f"v_lshlrev_b32 v{t}, v{t}, v{t+1}")
    if vcond_sgpr is not None:
        a.e(f"v_cndmask_b32 v{t}, 0, v{t}, s[{vcond_sgpr}:{vcond_sgpr+1}]")
    a.e(f"v_lshrrev_b32 v{t+1}, 1, v{vJ}")
    for i in range(4):
        a.e(f"v_cmp_eq_u32 vcc, {i}, v{t+1}")
        a.e("s_nop 1")
        a.e(f"v_cndmask_b32 v{dst+i}, 0, v{t}, vcc")

def gen_k2(a):
    ool = Asm()
    rare = Asm()
    RC = 160; RK = 172; NA = 184; EN = 212
    XF, WU1F, W2F, QACC = 64, 96, [128, 132, 136, 140, 160, 164, 168, 172], 212
    vLA0, vXA, vW3A, vW0 = vT + 20, vT + 21, vT + 22, vT + 23
    t = vT + 12
    kernel_head(a, NAME + "_kernel")
    load_args(a)
    a.e(f"v_lshrrev_b32 v{vT+1}, 2, v0")
    a.e(f"v_and_b32 v{vW0}, 3, v0")
    a.e("s_cmp_ge_u32 s2, 256")
    a.e("s_cbranch_scc1 K2_END")
    if cfg.dbg:
        a.e("v_mov_b32 v252, 0")
        a.e("s_memrealtime s[92:93]")
    idmap(a, sBin, 2, sT)
    a.e(f"v_mul_u32_u24 v{vEB}, 3200, v{vT+1}")
    a.e(f"v_lshlrev_b32 v{vT+4}, 4, v{vW0}")
    a.e(f"s_lshl_b32 s{sT+2}, s{sBin}, {6 if cfg.lohi else 7}")
    if cfg.lohi: a.e(f"s_movk_i32 s{sT+5}, 16384")
    a.e(f"s_add_u32 s{sT+2}, s{sT+2}, {cfg.wsoff + WS_S01}")
    a.e(f"v_lshl_add_u32 v{vT+2}, v{vT+1}, 15, v{vT+4}")
    a.e(f"s_mov_b32 s{sOT+2}, {124*32768 + (16384+64 if cfg.lohi else 128)}")
    a.e(f"s_mov_b32 s{sOT+3}, 0x20000")
    a.e(f"v_lshrrev_b32 v{vT}, 6, v0")
    a.e(f"v_and_b32 v{vL}, 63, v0")
    a.e(f"v_readfirstlane_b32 s{sW}, v{vT}")
    a.e(f"s_mul_i32 s{sT+3}, s{sBin}, 12544")
    a.e(f"s_sub_u32 s{sT+4}, 3200000, s{sT+3}")
    a.e(f"s_min_u32 s{sT+4}, s{sT+4}, 12544")
    a.e(f"v_mov_b32 v{vT+8}, 0\nv_mov_b32 v{vT+9}, 0\nv_mov_b32 v{vT+10}, 0\nv_mov_b32 v{vT+11}, 0")
    a.e(f"v_lshlrev_b32 v{vW3A}, 4, v{vL}")
    a.e("s_mov_b64 exec, 0x1ffff")
    a.e(f"ds_write_b128 v{vW3A}, v[{vT+8}:{vT+11}] offset:{CNT}")
    a.e("s_mov_b64 exec, -1")
    WU1L = 32768
    NPF = cfg.prefetchP
    vXD, vW3D = vT + 18, vT + 7
    sM = sX0 + 4
    c = Asm(); x_dma(c, sX, sW, vL, STG, vXD, sM + 2, strided=True)
    for x in c.lines[:-4]: a.e(x)
    a.e(f"s_add_u32 s{sM+3}, s{sM+3}, {STG}")
    xd = c.lines[-2:]
    w_lane_const(a, vWC, vL, t)
    a.e(f"s_lshl_b32 s{sW4k}, s{sW}, 12")
    a.e(f"s_lshl_b32 s{sM0}, s{sW}, 13")
    a.e(f"s_add_u32 s{sM}, s{sM0}, {STG + 4096}")
    a.e(f"s_add_u32 s{sM0}, s{sM0}, {STG - 256}")
    a.e(f"s_add_u32 s{sM+1}, s{sW4k}, {WU1L}")
    a.e(f"v_lshlrev_b32 v{vW3D}, 4, v0")
    a.e(f"s_and_b32 s{sT+1}, s{sW}, 4")
    a.e(f"s_add_u32 s{sT}, s{sW}, s{sT+1}")
    a.e(f"s_lshl_b32 s{sT}, s{sT}, 10")
    a.e(f"s_add_u32 m0, s{sT}, {STG + 32768}")
    a.e(f"s_mov_b32 s{sR+2}, 4096")
    a.e(f"s_mov_b32 s{sR+3}, 0x20000")
    a.e("s_waitcnt lgkmcnt(0)")
    a.e(f"s_add_u32 s{sOT}, s{S_WS}, s{sT+2}")
    a.e(f"s_addc_u32 s{sOT+1}, s{S_WS+1}, 0")
    a.e(f"buffer_load_dwordx4 v[{RC}:{RC+3}], v{vT+2}, s[{sOT}:{sOT+3}], 0 offen {cfg.s_pol}")
    a.e(f"buffer_load_dwordx4 v[{RC+4}:{RC+7}], v{vT+2}, s[{sOT}:{sOT+3}], " + (f"s{sT+5} offen" if cfg.lohi else "0 offen offset:64"))
    a.e(f"s_add_u32 s{sR}, s{S_WS}, {cfg.wsoff + cfg.w3o}")
    a.e(f"s_addc_u32 s{sR+1}, s{S_WS+1}, 0")
    a.e(f"buffer_load_dwordx4 v{vW3D}, s[{sR}:{sR+3}], 0 offen lds")
    if cfg.dbg:
        a.e("v_writelane_b32 v252, s92, 0")
        a.e("s_getreg_b32 s90, hwreg(HW_REG_XCC_ID)")
        a.e("s_add_u32 s90, s90, 1")
        a.e("v_writelane_b32 v252, s90, 39")
    stamp(a, 40, 252)
    srd(a, sX, S_X, off_s=sT+3, size=f"s{sT+4}")
    srd(a, sO, S_OUT, off_s=sT+3, size=f"s{sT+4}")
    srd(a, sWm, S_WM, off_c=32768, size=32768)
    srd(a, sWu, S_WU, size=256*256)
    if cfg.spf:
        a.e(f"s_lshr_b32 s{sT}, s2, 3")
        a.e(f"s_mul_i32 s{sT}, s{sT}, {781*128}")
        a.e(f"s_mul_i32 s{sT+1}, s{sW}, {cfg.spf*128}")
        a.e(f"s_add_u32 s{sT}, s{sT}, s{sT+1}")
        a.e(f"s_add_u32 s{sT}, s{sT}, {cfg.wsoff + WS_P + (781 - 8*cfg.spf)*128}")
        a.e(f"s_add_u32 s{sT}, s{S_WS}, s{sT}")
        a.e(f"s_addc_u32 s{sT+1}, s{S_WS+1}, 0")
    a.e("s_barrier")
    for j in range(cfg.spf):
        a.e(f"s_load_dword s78, s[{sT}:{sT+1}], {hex(128*j)}")
    stamp(a, 41, 252)
    def mix(lines, extra, first=0):
        out = []; n = len(lines); m = len(extra); k = 0; full = True
        for i, x in enumerate(lines):
            while full and k < m and k * n <= i * m: out += extra[k]; k += 1
            out.append(x)
            if "exec" in x.split(",")[0]: full = x.strip() == "s_mov_b64 exec, -1"
        return out + sum(extra[k:], [])
    dm = [[f"s_mov_b32 m0, s{sM+3}", "s_nop 0", xd[0]], [xd[1]]]
    for j, srdw in enumerate((sWm, sWu)):
        for i in range(4):
            o = f" offset:{1024*i}" if i else ""
            dm.append(([f"s_mov_b32 m0, s{sM+j}", "s_nop 0"] if i == 0 else []) + [f"buffer_load_dwordx4 v{vWC}, s[{srdw}:{srdw+3}], s{sW4k} offen{o} lds"])
    c = Asm(); sav = a.lines; a.lines = c.lines
    a.e(f"v_and_b32 v{t+1}, 7, v{vL}")
    onehot4(a, AQ, t+1, None, t+2)
    a.e(f"v_lshlrev_b32 v{t+2}, 5, v{vL}")
    a.e(f"v_and_b32 v{vM}, 31, v0")
    a.e(f"v_lshlrev_b32 v{vW0}, 2, v{vW0}")
    a.e("s_mov_b64 exec, 0x1ff")
    a.e(f"ds_write_b128 v{t+2}, v[{vT+8}:{vT+11}] offset:{LUT+16}")
    a.e("s_mov_b64 exec, 0x100")
    a.e(f"ds_write_b128 v{t+2}, v[{vT+8}:{vT+11}] offset:{LUT}")
    a.e("s_mov_b64 exec, 0xff")
    a.e(f"ds_write_b128 v{t+2}, v[{AQ}:{AQ+3}] offset:{LUT}")
    a.e("s_mov_b64 exec, -1")
    srd(a, sP, S_WS, off_c=cfg.wsoff + WS_P - 3072, size=PSIZE)
    if NPF:
        a.e(f"s_lshr_b32 s{sT}, s2, 3")
        a.e(f"s_mul_i32 s{sT}, s{sT}, {781*128}")
        a.e(f"s_add_u32 s{sT}, s{sT}, 3072")
        a.e(f"v_lshl_add_u32 v{vPF}, v{vL}, 3, s{sW}")
        if cfg.pfn < 512:
            a.e(f"s_movk_i32 s{sT+1}, {cfg.pfn}")
            a.e(f"v_cmp_gt_u32 vcc, s{sT+1}, v{vPF}")
        a.e(f"v_lshl_add_u32 v{vPF}, v{vPF}, 7, s{sT}")
        if NPF > 1:
            a.e(f"v_add_u32 v{vPF+1}, 0x10000, v{vPF}")
        if cfg.pfn < 512:
            a.e(f"v_mov_b32 v{vT+3}, 0x7ffffff0")
            a.e(f"v_cndmask_b32 v{vPF+NPF-1}, v{vT+3}, v{vPF+NPF-1}, vcc")
    if cfg.pfe:
        a.e(f"s_mul_i32 s{sT}, s2, 51200")
        a.e(f"v_lshl_add_u32 v{vPF+1}, v{vL}, 3, s{sW}")
        a.e(f"s_movk_i32 s{sT+1}, {cfg.pfe}")
        a.e(f"v_cmp_gt_u32 vcc, s{sT+1}, v{vPF+1}")
        a.e(f"v_lshl_add_u32 v{vPF+1}, v{vPF+1}, 7, s{sT}")
        a.e(f"v_mov_b32 v{vT+3}, 0x7ffffff0")
        a.e(f"v_cndmask_b32 v{vPF+1}, v{vT+3}, v{vPF+1}, vcc")
    NPP = NPF
    if cfg.pfm:
        a.e(f"v_lshl_add_u32 v{vPF+1}, v{vL}, 3, s{sW}")
        a.e(f"s_movk_i32 s{sT+1}, {cfg.pfm}")
        a.e(f"v_cmp_gt_u32 vcc, s{sT+1}, v{vPF+1}")
        a.e(f"s_add_u32 s{sT}, s{sT}, 0x10000")
        a.e(f"v_lshl_add_u32 v{vPF+1}, v{vPF+1}, 7, s{sT}")
        a.e(f"v_cndmask_b32 v{vPF+1}, v{vT+3}, v{vPF+1}, vcc")
        dm[cfg.pfmpos] = dm[cfg.pfmpos] + [f"buffer_load_dword v37, v{vPF+1}, s[{sP}:{sP+3}], 0 offen"]
    if cfg.tlb:
        a.e(f"v_lshlrev_b32 v{vPF+1}, 20, v{vL}")
    def pf(pos):
        if cfg.pfpos == pos:
            if cfg.tlb & 1: a.e(f"buffer_load_dword v37, v{vPF+1}, s[{sE}:{sE+3}], 0 offen")
            if cfg.tlb & 2: a.e(f"buffer_load_dword v37, v{vPF+1}, s[{sO}:{sO+3}], 0 offen")
            if cfg.pfe: a.e(f"buffer_load_dword v37, v{vPF+1}, s[{sE}:{sE+3}], 0 offen {cfg.et_pol}")
            for i in range(NPP): a.e(f"buffer_load_dword v37, v{vPF+i}, s[{sP}:{sP+3}], 0 offen")
    if cfg.pfe: NPF += 1
    NPF += (cfg.tlb & 1) + (cfg.tlb >> 1 & 1)
    a.e(f"s_mov_b32 s{sLim}, 32")
    a.e(f"s_mov_b32 s{sDone}, 0")
    wfrag_const(a, vWA, vL, sW, t, sT)
    a.e(f"v_add_u32 v{vW3A}, {STG + 32768}, v{vW3A}")
    a.e(f"v_lshrrev_b32 v{t}, 5, v{vL}")
    a.e(f"v_and_b32 v{t+1}, 15, v{vL}")
    a.e(f"v_xor_b32 v{t+2}, v{t}, v{t+1}")
    a.e(f"v_lshlrev_b32 v{t+2}, 4, v{t+2}")
    a.e(f"v_lshl_add_u32 v{vXA}, v{t+1}, 8, v{t+2}")
    a.e(f"v_bfe_u32 v{t+2}, v{vL}, 4, 1")
    a.e(f"v_lshl_add_u32 v{vXA}, v{t+2}, 13, v{vXA}")
    a.e(f"s_lshr_b32 s{sT}, s{sW}, 2")
    a.e(f"s_lshl_b32 s{sT}, s{sT}, 14")
    a.e(f"s_add_u32 s{sT}, s{sT}, {STG}")
    a.e(f"v_add_u32 v{vXA}, s{sT}, v{vXA}")
    srd(a, sE, S_E, size=ESIZE)
    a.e(f"s_mov_b32 s{sSafe}, 0")
    a.e(f"s_mov_b32 s{sFirst}, 1")
    a.e(f"s_mov_b32 s{sMask}, {'0x4003ffe0' if 'esm' in cfg.x else '0x7fffffe0'}")
    a.e(f"v_mov_b32 v{vCL}, {LUT + 256}")
    a.e(f"v_bfe_u32 v{t+1}, v{vL}, 3, 2")
    a.e(f"v_bfe_u32 v{t+3}, v{vL}, 1, 1")
    a.e(f"v_lshl_add_u32 v{t+1}, v{t+1}, 1, v{t+3}")
    a.e(f"v_lshlrev_b32 v{t+1}, 5, v{t+1}")
    a.e("s_mov_b32 exec_lo, 0x0f0f0f0f\ns_mov_b32 exec_hi, 0xf0f0f0f0")
    a.e(f"v_add_u32 v{vCL}, {LUT}, v{t+1}")
    a.e("s_mov_b64 exec, -1")
    a.e(f"v_lshlrev_b32 v{vH16}, 4, v{t}")
    if 'ehalf' in cfg.x: a.e(f"v_lshlrev_b32 v18, 30, v{t}")
    a.e(f"v_and_b32 v{t+1}, 3, v{vL}")
    a.e(f"v_lshlrev_b32 v{vCQ}, 3, v{t+1}")
    a.e(f"v_lshl_add_u32 v{vCQ}, v{t+2}, 5, v{vCQ}")
    a.e(f"v_add_u32 v{vCQ}, {QL}, v{vCQ}")
    a.e(f"v_lshlrev_b32 v{vCA}, 2, v{vM}")
    a.e(f"v_mad_u32_u24 v{vSD}, v{vH16}, 33, v{vCA}")
    a.e(f"s_mul_i32 s{sT}, s{sW}, 1056")
    a.e(f"s_add_u32 s{sT}, s{sT}, {SIDE}")
    a.e(f"v_add_u32 v{vSD}, s{sT}, v{vSD}")
    a.e(f"v_lshlrev_b32 v{t+2}, 6, v{t+2}")
    a.e(f"v_sub_u32 v{vCA}, v{vCA}, v{t+2}")
    a.e(f"v_add_u32 v{vCA}, {AGG - 2*QL}, v{vCA}")
    a.e(f"v_bfe_u32 v{t+1}, v{vL}, 2, 2")
    a.e(f"v_lshl_add_u32 v{vRP0}, v{t+1}, 7, v{vCQ}")
    a.e(f"v_lshl_add_u32 v{vRP0}, v{t}, 11, v{vRP0}")
    a.e(f"v_and_b32 v{t+1}, 8, v{vL}")
    a.e(f"v_lshl_add_u32 v{vRP0}, v{t+1}, 3, v{vRP0}")
    a.e(f"s_add_u32 s{sT}, s{sM0}, {256 - QL}")
    a.e(f"v_add_u32 v{vRP0}, s{sT}, v{vRP0}")
    a.e(f"v_xor_b32 v{vRP1}, 64, v{vRP0}")
    a.e(f"s_movk_i32 s{s256}, 256")
    a.e(f"v_mov_b32 v{vCHK}, 0")
    def round_consts(a):
        a.e(f"v_lshrrev_b32 v{t}, 3, v{vM}")
        a.e(f"v_and_b32 v{t+1}, 3, v{vL}")
        a.e(f"v_lshl_add_u32 v{vAE}, v{t}, 2, v{t+1}")
        a.e(f"v_lshlrev_b32 v{vAE}, 3, v{vAE}")
        a.e(f"v_bfe_u32 v{t+1}, v{vL}, 2, 2")
        a.e(f"v_lshlrev_b32 v{vAQ}, 4, v{t+1}")
        a.e(f"v_and_b32 v{vAP}, 24, v{vL}")
        a.e(f"v_and_b32 v{t}, 7, v{vL}")
        a.e(f"v_bfe_u32 v{t+1}, v{vL}, 4, 1")
        a.e(f"v_lshlrev_b32 v{t}, 4, v{t}")
        a.e(f"v_lshlrev_b32 v{t+1}, 6, v{t+1}")
        a.e(f"v_xor_b32 v{vC4+3}, v{t}, v{t+1}")
        for j in range(3):
            a.e(f"v_add_u32 v{vC4+j}, {1024*(3-j)}, v{vC4+3}")
        a.e(f"v_mov_b32 v{vT}, 1")
        a.e(f"v_mov_b32 v{vT+1}, {FLG}")
        a.e(f"v_lshlrev_b32 v{vT+2}, 2, v{vL}")
        a.e(f"s_mov_b32 s{sT}, 0x420000")
        a.e(f"s_brev_b32 s{sT+6}, 1")
        a.e(f"s_add_u32 s{sT+7}, s{sDone}, s{sLim}")
        a.e(f"v_cmp_ne_u32 s[{sX0+2}:{sX0+3}], 0, v{vW0}")
    round_consts(a)
    a.lines = sav
    for x in mix(c.lines, dm): a.e(x)
    stamp(a, 1, 252)
    pf(1)
    stamp(a, 4, 252)
    NV = 11 + (1 if cfg.pfm else 0) + (NPF if cfg.pfpos <= 1 else 0)
    a.e(f"s_waitcnt vmcnt({NV + 1})")
    stamp(a, 5, 252)
    a.e(f"v_mov_b32_dpp v{vOC}, v{RC} quad_perm:[0,0,0,0] row_mask:0xf bank_mask:0xf")
    a.label("K2_COUNT")
    def groups(fn, lab, order=range(8), extra=(), pre=()):
        c = Asm(); sav = a.lines; a.lines = c.lines
        for i in order: fn(i)
        a.lines = sav
        for x in mix(c.lines, list(extra)): a.e(x)
    KK = lambda i: 16 * (i >> 2) + (i & 3)
    na = lambda i: f"v_lshlrev_b32_sdwa v{NA+i}, 2, v{RC+i} dst_sel:BYTE_0 dst_unused:UNUSED_PAD src0_sel:DWORD src1_sel:BYTE_0"
    a.e(na(1))
    a.e(f"v_min_u32 v{vREM}, s{sT+7}, v{vOC}")
    a.e(f"v_sub_u32 v{vREM}, v{vREM}, v{vW0}")
    a.e(f"v_cmp_lt_u32 s[{sX0+6}:{sX0+7}], s{sT+7}, v{vOC}")
    a.e(f"v_cmp_lt_i32 s[{sX0}:{sX0+1}], 0, v{vREM}")
    a.e(na(0))
    def f_cnt(i):
        a.e(f"v_cmpx_lt_i32 vcc, {KK(i)}, v{vREM}")
        if i == 3: a.e(f"s_waitcnt vmcnt({NV})")
        if i < 7: a.e(na(i + 1))
        a.e(f"ds_add_rtn_u32 v{RK+i}, v{NA+i}, v{vT} offset:{CNT}")
    groups(f_cnt, "K2_G1", order=range(1, 8))
    a.e(f"s_and_b64 s[{sX0}:{sX0+1}], s[{sX0}:{sX0+1}], s[{sX0+2}:{sX0+3}]")
    a.e(f"s_mov_b64 exec, s[{sX0}:{sX0+1}]")
    a.e(f"ds_add_rtn_u32 v{RK}, v{NA}, v{vT} offset:{CNT}")
    a.e(f"s_mov_b64 exec, s[{sX0+6}:{sX0+7}]")
    a.e(f"ds_write_b32 v{vT+1}, v{vT}")
    a.e("s_mov_b64 exec, -1")
    def f_ent(i):
        e0 = EN + 2 * i
        a.e(f"v_lshrrev_b32 v{e0}, 20, v{RC+i}")
        a.e(f"v_add_lshl_u32 v{e0}, v{e0}, v{vEB}, 5")
    groups(f_ent, "K2_G2")
    pf(2)
    a.e("s_waitcnt lgkmcnt(0)")
    a.e("s_barrier")
    stamp(a, 6, 252)
    a.e(f"ds_read_b32 v{vT+6}, v{vT+2} offset:{CNT}")
    a.e(f"ds_read_b32 v{vT+5}, v{vT+1}")
    def f_ent2(i):
        e1 = EN + 1 + 2 * i
        a.e(f"v_bfe_u32 v{e1}, v{RC+i}, 6, 14")
        a.e(f"v_mad_u32_u24 v{e1}, v{NA+i}, s{sT}, v{e1}")
    groups(f_ent2, "K2_G5")
    a.e("s_waitcnt lgkmcnt(0)")
    a.e(f"v_add_u32 v{vT+3}, 1, v{vT+6}")
    a.e(f"v_lshrrev_b32 v{vT+3}, 1, v{vT+3}")
    a.e(f"v_mov_b32 v{vT+4}, v{vT+3}")
    a.e(f"v_readfirstlane_b32 s{sMore}, v{vT+5}")
    fl = []
    for i in range(8):
        fl.append(f"v_add_u32 v{RC+i}, -1, v{RK+i}")
        fl.append(f"v_and_or_b32 v{EN+2*i}, v{RC+i}, s{sT+6}, v{EN+2*i}")
    v = vT + 4
    dpp = [f"v_add_u32_dpp v{v}, v{v}, v{v} row_shr:{sh} row_mask:0xf bank_mask:0xf bound_ctrl:0" for sh in (1, 2, 4, 8)]
    dpp += [f"v_add_u32_dpp v{v}, v{v}, v{v} row_bcast:15 row_mask:0xa bank_mask:0xf", f"v_add_u32_dpp v{v}, v{v}, v{v} row_bcast:31 row_mask:0xc bank_mask:0xf"]
    for j in range(6):
        a.e(fl[2*j]); a.e(fl[2*j+1]); a.e(dpp[j])
    a.e(fl[12])
    a.e(f"v_readlane_b32 s{sT+5}, v{vT+4}, 63")
    a.e(f"v_sub_u32 v{vT+4}, v{vT+4}, v{vT+3}")
    a.e(f"v_lshlrev_b32 v{vT+4}, 4, v{vT+4}")
    def f_perm(i):
        a.e(f"ds_bpermute_b32 v{NA+i}, v{NA+i}, v{vT+4}")
        if i >= 8:
            a.e(f"v_add_u32 v{RC+i}, -1, v{RK+i}")
            a.e(f"v_and_or_b32 v{EN+2*i}, v{RC+i}, s{sT+6}, v{EN+2*i}")
    groups(f_perm, "K2_G3")
    for x in fl[13:]: a.e(x)
    pf(3)
    a.e(f"s_cmp_gt_u32 s{sT+5}, 1025")
    a.e("s_cbranch_scc1 K2_TOOBIG")
    a.e(f"s_add_u32 s{sT}, s{sT+5}, 7")
    a.e(f"s_lshr_b32 s{sT}, s{sT}, 3")
    if cfg.ratio:
        a.e(f"s_mul_i32 s{sT+1}, s{sT}, {cfg.ratio}")
        a.e(f"s_add_u32 s{sT+1}, s{sT+1}, 63")
        a.e(f"s_lshr_b32 s{sT+1}, s{sT+1}, 6")
    else:
        a.e(f"s_add_u32 s{sT+1}, s{sT}, {cfg.bias}")
        a.e(f"s_lshr_b32 s{sT+1}, s{sT+1}, 4")
        a.e(f"s_lshl_b32 s{sT+1}, s{sT+1}, 3")
    a.e(f"s_min_u32 s{sT+1}, s{sT+1}, s{sT}")
    a.e(f"s_sub_u32 s{sT+2}, s{sT}, s{sT+1}")
    a.e(f"s_and_b32 s{sT+3}, s{sW}, 3")
    a.e(f"s_mul_i32 s{sT+3}, s{sT+3}, s{sT}")
    a.e(f"s_cmp_lt_u32 s{sW}, 4")
    a.e(f"s_cselect_b32 s{sL}, s{sT+1}, s{sT+2}")
    a.e(f"s_cselect_b32 s{sT+4}, 0, s{sT+1}")
    a.e(f"s_add_u32 s{sT+3}, s{sT+3}, s{sT+4}")
    a.e(f"s_lshl_b32 s{sT+3}, s{sT+3}, 5")
    a.e(f"s_add_u32 s{sT+3}, s{sT+3}, {LIST}")
    a.e(f"s_lshl_b32 s{sT+4}, s{sL}, 4")
    a.e(f"s_add_u32 s{sNT}, s{sL}, 7")
    a.e(f"s_lshr_b32 s{sNT}, s{sNT}, 3")
    a.e(f"s_cmp_eq_u32 s{sW}, 7")
    a.e("s_cbranch_scc0 K2_NODUM")
    a.e(f"v_mov_b32 v{vT+8}, 0x7ffffff0\nv_mov_b32 v{vT+9}, 0xffff\nv_mov_b32 v{vT+10}, 0x7ffffff0\nv_mov_b32 v{vT+11}, 0xffff")
    a.e(f"v_lshl_add_u32 v{vT+7}, v{vT+6}, 3, v{vT+4}")
    a.e(f"v_and_b32 v{vT+6}, 1, v{vT+6}")
    a.e(f"v_cmp_eq_u32 vcc, 1, v{vT+6}")
    a.e("s_mov_b64 exec, vcc")
    a.e(f"ds_write_b64 v{vT+7}, v[{vT+8}:{vT+9}] offset:{LIST}")
    a.e("s_mov_b32 exec_lo, -1\ns_mov_b32 exec_hi, 0x7f")
    a.e(f"v_add_lshl_u32 v{vT+7}, v{vL}, s{sT+5}, 4")
    a.e(f"ds_write_b128 v{vT+7}, v[{vT+8}:{vT+11}] offset:{LIST}")
    a.e("s_mov_b64 exec, -1")
    a.label("K2_NODUM")
    a.e("s_waitcnt lgkmcnt(0)")
    a.e(f"v_lshl_add_u32 v{NA}, v{RK}, 3, v{NA}")
    def f_place(i):
        a.e(f"v_cmpx_lt_i32 vcc, {KK(i)}, v{vREM}")
        a.e(f"v_lshl_add_u32 v{NA+i}, v{RK+i}, 3, v{NA+i}")
        a.e(f"ds_write_b64 v{NA+i}, v[{EN+2*i}:{EN+1+2*i}] offset:{LIST}")
    groups(f_place, "K2_G4", order=range(1, 8))
    a.e(f"s_mov_b64 exec, s[{sX0}:{sX0+1}]")
    a.e(f"ds_write_b64 v{NA}, v[{EN}:{EN+1}] offset:{LIST}")
    a.e("s_mov_b64 exec, -1")
    a.e(f"v_add_u32 v{vAE}, s{sT+3}, v{vAE}")
    a.e(f"v_add3_u32 v{vAP}, v{vAP}, s{sT+3}, 4")
    a.e(f"v_add3_u32 v{vAQ}, v{vAQ}, s{sT+3}, 6")
    a.e("s_mov_b32 exec_lo, 0xf0f0f0f0\ns_mov_b32 exec_hi, 0xf0f0f0f0")
    a.e(f"v_add_u32 v{vAE}, s{sT+4}, v{vAE}")
    a.e("s_mov_b32 exec_lo, 0\ns_mov_b32 exec_hi, -1")
    a.e(f"v_add_u32 v{vAP}, s{sT+4}, v{vAP}")
    a.e(f"v_add_u32 v{vAQ}, s{sT+4}, v{vAQ}")
    a.e("s_mov_b64 exec, -1")
    a.e(f"s_sub_u32 s{sT+1}, s{sT+1}, 1")
    a.e(f"s_sub_u32 s{sT+2}, s{sT+2}, 1")
    a.e(f"s_min_u32 s{sT+1}, s{sT+1}, s{sT+2}")
    a.e(f"v_cmp_lt_u32 s[{sSusp}:{sSusp+1}], s{sT+1}, v{vT+3}")
    a.e(f"s_cmp_eq_u32 s{sNT}, 0")
    a.e(f"s_cselect_b32 s{sP+2}, 0, {PSIZE}")
    a.e(f"s_cselect_b32 s{sE+2}, 0, {ESIZE}")
    a.e(f"s_cmp_eq_u32 s{sFirst}, 0")
    a.e(f"s_waitcnt vmcnt({NPF}) lgkmcnt(0)")
    a.e("s_barrier")
    a.e("s_cbranch_scc1 K2_PRO2")
    stamp(a, 7, 252)
    adv = [f"v_add_u32 v{r}, s{s256}, v{r}" for r in (vAE, vAP, vAQ)]
    def early_e1():
        return addr_e() + [f"s_cmp_lt_u32 s{sNT}, 2", f"s_cselect_b32 s{sE+2}, 0, s{sE+2}", e_load(1)]
    def prologue(a, first):
        for s in list_reads_se() + list_reads_n(): a.e(s)
        if first:
            for st in range(8):
                if st == 0: a.e(f"ds_read_b128 v[{XF}:{XF+3}], v{vXA}")
                else:
                    r = vT + (st & 1)
                    a.e(f"v_xor_b32 v{r}, {32*st}, v{vXA}")
                    a.e(f"ds_read_b128 v[{XF+4*st}:{XF+4*st+3}], v{r}")
        a.e(f"s_waitcnt lgkmcnt({8 if first else 0})")
        for s in addr_se() + addr_q(0): a.e(s)
        for s in list_reads_se(1): a.e(s)
        for s in flags_from_vcc(sF0): a.e(s)
        d0 = dma_ops(0, "alt"); d1 = dma_ops(1)
        fr = Asm()
        if first:
            a.e(f"v_add_u32 v{vT+3}, {STG + 4096}, v{vWA}")
            wfrag_read(fr, W2F, vT+3, 0, 8192)
            wfrag_read(fr, WU1F, vWA, WU1L)
            for c in range(4):
                fr.e(f"ds_read_b128 v[{W3+4*c}:{W3+4*c+3}], v{vW3A} offset:{1024*c}")
        n4 = len(fr.lines) // 4
        if cfg.e0f: a.e(e_load(0))
        for s in d0[0] + fr.lines[:n4] + d0[1] + fr.lines[n4:2*n4]: a.e(s)
        if not cfg.e0f: a.e(e_load(0))
        for s in fr.lines[2*n4:3*n4]: a.e(s)
        a.e(f"v_cmp_ne_u32 vcc, v{vLA}, v{vCL}")
        a.e(f"v_mov_b32_dpp v{vFA}, v{vQA} row_newbcast:0 row_mask:0xf bank_mask:0xf")
        a.e(f"v_mov_b32 v{vLA0}, v{vLA}")
        for s in d0[2] + fr.lines[3*n4:]: a.e(s)
        a.e(f"s_cmp_eq_u32 s{sNT}, 0")
        a.e(f"s_cselect_b32 s{sDm}, -1, vcc_lo")
        a.e(f"v_lshl_add_u32 v{vFA}, v{vFA}, 1, v{vCA}")
        for s in d0[3]: a.e(s)
        if first:
            a.e(f"s_lshr_b32 s{sT+1}, s{sW}, 2")
            a.e(f"s_lshl_b32 s{sT+1}, s{sT+1}, 5")
            a.e(f"v_add_u32 v{vT+1}, s{sT+1}, v{vM}")
            a.e(f"v_mul_u32_u24 v{vT+2}, 264, v{vT+1}")
            a.e(f"v_lshl_add_u32 v{vT+2}, v{vH16}, 1, v{vT+2}")
            a.e(f"s_and_b32 s{sT+1}, s{sW}, 3")
            a.e(f"s_lshl_b32 s{sT+1}, s{sT+1}, 6")
            a.e(f"v_add_u32 v{vT+2}, s{sT+1}, v{vT+2}")
            a.e(f"v_cmp_gt_u32 s[{sX0}:{sX0+1}], 49, v{vT+1}")
            a.e(f"v_lshlrev_b32 v{vT}, 4, v0")
            a.e(f"v_mov_b32 v{vT+8}, 0\nv_mov_b32 v{vT+9}, 0\nv_mov_b32 v{vT+10}, 0\nv_mov_b32 v{vT+11}, 0")
            a.e(f"s_movk_i32 s{sT+1}, {49*528//16 - 1536}")
            a.e(f"v_cmp_gt_u32 s[{sX0+2}:{sX0+3}], s{sT+1}, v0")
            a.e(f"s_mov_b32 s{sT}, {LOG2E_NEG}")
            a.e(f"s_mov_b32 s{sT+1}, {LOG2E_NEG}")
            stamp(a, 44, 252)
            a.e("s_waitcnt lgkmcnt(0)")
            g = Asm(); gemm8(g, QACC, W2F, XF)
            for x in g.lines: a.e(x)
            g = Asm(); gemm8(g, ACX, WU1F, XF)
            q = [f"v_mul_f32 v{QACC+i}, s{sT}, v{QACC+i}" for i in range(16)] + [f"v_cvt_pk_bf16_f32 v{QACC+i}, v{QACC+2*i}, v{QACC+1+2*i}" for i in range(8)]
            a.e(g.lines[0])
            if cfg.e1e:
                for x in early_e1(): a.e(x)
                a.e("s_nop 5")
            else:
                a.e("s_nop 9")
            for j in range(3):
                a.e(g.lines[1+j])
                for x in q[j*8:j*8+8]: a.e(x)
            a.e(f"s_mov_b64 exec, s[{sX0}:{sX0+1}]")
            for gg in range(4):
                a.e(f"ds_write_b64 v{vT+2}, v[{QACC+2*gg}:{QACC+1+2*gg}] offset:{QL + 8*gg}")
            a.e("s_mov_b64 exec, -1")
            a.e("s_barrier")
            for j in range(3):
                a.e(f"ds_write_b128 v{vT}, v[{vT+8}:{vT+11}] offset:{AGG + j*8192}")
            a.e(g.lines[4])
            a.e(f"s_mov_b64 exec, s[{sX0+2}:{sX0+3}]")
            a.e(f"ds_write_b128 v{vT}, v[{vT+8}:{vT+11}] offset:{AGG + 3*8192}")
            a.e("s_mov_b64 exec, -1")
            for s in d1[0]: a.e(s)
            a.e(g.lines[5])
            a.e("s_waitcnt lgkmcnt(0)")
            a.e("s_barrier")
            stamp(a, 45, 252)
            for j in range(1, 4):
                for s in d1[j]: a.e(s)
                if j < 3: a.e(g.lines[5+j])
        else:
            if cfg.e1e:
                a.e("s_waitcnt lgkmcnt(0)")
                for x in early_e1(): a.e(x)
            for s in sum(d1, []): a.e(s)
        a.e(f"s_cmp_lt_u32 s{sNT}, 2")
        a.e(f"s_cselect_b32 s{sP+2}, 0, s{sP+2}")
        a.e(f"s_cselect_b32 s{sE+2}, 0, s{sE+2}")
        if not first: a.e("s_waitcnt lgkmcnt(0)")
        for s in addr_se(): a.e(s)
        for s in list_reads_se(2) + list_reads_n(1): a.e(s)
        for s in flags_from_vcc(sF1): a.e(s)
    prologue(a, True)
    rare.label("K2_PRO2")
    rare.e("s_waitcnt vmcnt(0)")
    prologue(rare, False)
    rare.e("s_branch K2_NOX")
    stamp(a, 42, 252)
    for i in range(8):
        a.e(f"v_pk_mul_f32 {p2(ACX+2*i)}, {p2(ACX+2*i)}, s[{sT}:{sT+1}]")
    a.label("K2_NOX")
    stamp(a, 43, 252)
    a.e(f"s_cmp_eq_u32 s{sNT}, 0")
    a.e("s_cbranch_scc1 K2_NOTILES")
    a.e(f"ds_read_b128 v[{AQ}:{AQ+3}], v{vLA0}")
    for s in qfrag_reads(QY, 0, 0) + qfrag_reads(QX, 1, 0): a.e(s)
    if cfg.t1pos == 1:
        if not cfg.e1e: a.e(e_load(1))
        dma_half(a, 0)
    for i in range(4): a.e(f"v_mov_b32 v{AP+i}, 0")
    for i in range(4):
        shf = 16 * (i >> 1) + 4 * (i & 1)
        a.e(f"s_mov_b32 exec_lo, {hex(0xf << shf)}\ns_mov_b32 exec_hi, {hex(0xf << (shf + 8))}")
        a.e(f"v_mov_b32 v{AP+i}, 0x3f80")
    a.e("s_mov_b64 exec, -1")
    a.e(f"v_and_b32 v{IDX}, 3, v{vL}")
    a.e(f"v_mul_u32_u24 v{IDX}, 0x5555, v{IDX}")
    a.e(f"s_add_u32 s{sMA}, s{sM0}, {4096 - 128 + 256}")
    a.e(f"s_add_u32 s{sMB}, s{sM0}, 256")
    a.e(f"s_and_b32 s{sT}, s{sL}, 6")
    a.e(f"s_and_b32 s{sT+1}, s{sL}, 1")
    a.e(f"s_lshl1_add_u32 s{sT}, s{sT}, s{sT+1}")
    a.e(f"s_lshl_b32 s{sT}, s{sT}, 1")
    a.e(f"s_cselect_b32 s{sT+1}, 1, 0")
    a.e(f"s_lshl_b32 s{sEX+1}, s{sT+1}, s{sT}")
    a.e(f"s_lshl_b32 s{sEX}, s{sEX+1}, 1")
    a.e(f"s_cmp_eq_u32 s{sNT}, 1")
    a.e(f"s_cselect_b64 s[{sT}:{sT+1}], s[{sEX}:{sEX+1}], 0")
    a.e(f"s_or_b64 s[{sF0}:{sF0+1}], s[{sF0}:{sF0+1}], s[{sT}:{sT+1}]")
    for c in range(4):
        a.e(f"v_mov_b32 v{NN+2*c}, 0\nv_mov_b32 v{NN+2*c+1}, 0\nv_mov_b32 v{DD+2*c}, 1.0\nv_mov_b32 v{DD+2*c+1}, 1.0")
    a.e(f"v_mov_b32 v{vCUR}, v{vSD}\nv_mov_b32 v{vCUR+1}, v{vSD}")
    for c in range(4): a.e(f"v_mov_b32 v{ACC+c}, 0")
    a.e(f"s_sub_u32 s{sT}, s{sW4k}, s{sM0}")
    a.e(f"s_add_u32 s{sT}, s{sT}, {WU2 - 256}")
    a.e(f"v_add_u32 v{vT}, s{sT}, v{vRP0}")
    a.e(f"v_add_u32 v{vT+1}, s{sT}, v{vRP1}")
    stamp(a, 46, 252)
    a.e(f"s_waitcnt vmcnt({4 + cfg.e1e})" if cfg.t1pos == 2 else "s_waitcnt vmcnt(9)")
    stamp(a, 47, 252)
    for s in pfrag_reads(PY, 0, vT): a.e(s)
    mf = mfmas(0, PY, QY, 0)
    a.e("s_waitcnt lgkmcnt(8)")
    for s in mf[:4]: a.e(s)
    a.e("s_waitcnt lgkmcnt(0)")
    for s in mf[4:]: a.e(s)
    if cfg.t1pos == 2:
        if not cfg.e1e: a.e(e_load(1))
        dma_half(a, 0)
    stamp(a, 8, 252)
    if cfg.dbg:
        a.e("s_memtime s[90:91]\ns_waitcnt lgkmcnt(0)\nv_writelane_b32 v252, s90, 14")
    a.e(f"s_sub_u32 s{sCnt}, s{sNT}, 1")
    a.e(f"s_waitcnt vmcnt({5 - cfg.e1e})")
    stamp(a, 48, 252)
    for s in pfrag_reads(PX, 1): a.e(s)
    def lstamp(x):
        if not cfg.lst: return
        a.e("s_memrealtime s[90:91]")
        a.e(f"s_lshl_b32 s92, s{sCnt}, 1")
        a.e(f"s_add_u32 s92, s92, {x+2}")
        a.e("s_mov_b32 m0, s92")
        a.e("s_waitcnt lgkmcnt(0)")
        a.e("v_writelane_b32 v252, s90, m0")
    def iteration(par):
        exA = {
            0: addr_q(1 - par),
            1: qfrag_reads(QY, 0, 1 - par),
            2: [f"s_mov_b32 m0, s{sMA}", "s_waitcnt lgkmcnt(4)"] + dma_ld(1)[:2],
            3: dma_ld(1)[2:],
            4: [f"ds_read_b128 v[{AQ}:{AQ+3}], v{vLA}",
                f"s_cmp_lt_u32 s{sCnt}, 2", f"s_cbranch_scc1 WU2_{par}", f"WU2R_{par}:"],
            7: ["s_waitcnt vmcnt(4) lgkmcnt(0)"] + pfrag_reads(PY, 0),
        }
        half_step(a, ool, 0, par, exA, f"A{par}")
        ool.label(f"WU2_{par}")
        ool.e(f"s_mov_b32 s{sP+2}, 0")
        ool.e(f"s_mov_b32 s{sE+2}, 0")
        sFn = (sF1, sF0)[par]
        ool.e(f"s_or_b64 s[{sFn}:{sFn+1}], s[{sFn}:{sFn+1}], s[{sEX}:{sEX+1}]")
        ool.e(f"s_cmp_lg_u32 s{sCnt}, 0")
        ool.e(f"s_cbranch_scc1 WU2R_{par}")
        w_dma(ool, sWu, vWC, sW4k, 32768, WU2, sT)
        ool.e(f"s_branch WU2R_{par}")
        mf = mfmas(2, PX, QX, par)
        ool.label(f"EXA{par}_1")
        ool.e("s_waitcnt lgkmcnt(0)")
        ool.e(mf[2])
        ool.label(f"EXA{par}_2")
        ool.e(mf[3])
        ool.label(f"EXA{par}_3")
        ool.e(mf[4])
        w_dma(ool, sWu, vWC, sW4k, 32768, WU2, sT)
        ool.label(f"EXA{par}_4")
        ool.e(mf[5])
        ool.e("s_nop 7")
        ool.label(f"EXA{par}_5")
        ool.e(f"s_branch R_A{par}_7")
        exB = {
            0: qfrag_reads(QX, 1, 1 - par),
            1: addr_se(),
            2: [f"s_mov_b32 m0, s{sMB}", "s_waitcnt lgkmcnt(4)"] + dma_ld(0)[:2],
            3: dma_ld(0)[2:] + [e_load(par)],
            4: list_reads_se(3 + par) + list_reads_n(2 + par),
            5: adv if par else [],
            7: ["s_waitcnt vmcnt(5) lgkmcnt(0)"] + pfrag_reads(PX, 1),
        }
        lstamp(17)
        half_step(a, ool, 1, par, exB, f"B{par}")
        lstamp(16)
        for s in flags_from_vcc((sF0, sF1)[par]): a.e(s)
        a.e(f"s_sub_u32 s{sCnt}, s{sCnt}, 1")
    a.label("K2_LOOP")
    iteration(0)
    a.e("s_cbranch_scc1 K2_LEND")
    iteration(1)
    a.e("s_cbranch_scc0 K2_LOOP")
    a.label("K2_LEND")
    stamp(a, 9, 252)
    if cfg.dbg:
        a.e("s_memtime s[90:91]\ns_waitcnt lgkmcnt(0)\nv_writelane_b32 v252, s90, 15")
    flush_code(a, 0, 0)
    a.e(f"ds_write2_b32 v{vCUR}, v{ACC}, v{ACC+1} offset1:32")
    flush_code(a, 2, 1, wait=False)
    a.e(f"ds_write2_b32 v{vCUR+1}, v{ACC+2}, v{ACC+3} offset0:64 offset1:96")
    a.label("K2_AFTER")
    a.e(f"s_mov_b32 s{sFirst}, 0")
    a.e(f"s_bitcmp0_b32 s{sDm}, 0")
    a.e(f"s_cselect_b32 s{sX0+2}, -1, 0")
    a.e(f"s_bitcmp0_b32 s{sDm}, 4")
    a.e(f"s_cselect_b32 s{sX0+3}, -1, 0")
    a.e(f"s_lshr_b32 s{sT+1}, s{sW}, 2")
    a.e(f"s_lshl_b32 s{sT+2}, s{sT+1}, 5")
    a.e(f"v_add_u32 v{vT+8}, s{sT+2}, v{vM}")
    a.e(f"v_mul_u32_u24 v{vT+9}, 528, v{vT+8}")
    a.e(f"v_cmp_gt_u32 s[{sX0}:{sX0+1}], 49, v{vT+8}")
    a.e(f"s_and_b32 s{sT+2}, s{sW}, 3")
    a.e(f"s_lshl_b32 s{sT+2}, s{sT+2}, 7")
    a.e(f"v_lshl_add_u32 v{vT+5}, v{vH16}, 1, s{sT+2}")
    a.e(f"v_add_u32 v{vT+6}, v{vT+9}, v{vT+5}")
    a.e(f"v_add_u32 v{vT+4}, {WU2}, v{vWA}")
    a.e(f"s_add_u32 s{sT+2}, s{sM0}, {256 + 4096}")
    a.e(f"v_lshl_add_u32 v{vT+2}, v{vL}, 4, s{sT+2}")
    a.e(f"s_lshl_b32 s{sT+1}, s{sT+1}, 15")
    a.e(f"s_add_u32 s{sT+1}, s{sT+1}, {STG + 4096}")
    a.e(f"v_lshl_add_u32 v{vT+3}, v{vL}, 4, s{sT+1}")
    a.e(f"s_or_b32 s{sT}, s{sSusp}, s{sSusp+1}")
    a.e(f"s_or_b32 s{sT}, s{sT}, s{sMore}")
    a.e("s_cbranch_scc1 K2_SLOWM")
    a.e(f"s_and_b32 exec_lo, s{sX0+2}, 1")
    a.e(f"s_and_b32 exec_hi, s{sX0+3}, 1")
    a.e(f"ds_write_b32 v{vFA}, v{vSD} offset:512")
    a.label("K2_MERGED")
    a.e(f"s_mov_b64 exec, s[{sX0}:{sX0+1}]")
    a.e("s_waitcnt vmcnt(0) lgkmcnt(0)")
    a.e("s_barrier")
    stamp(a, 49, 252)
    a.e(f"s_cmp_lg_u32 s{sMore}, 0")
    a.e("s_cbranch_scc1 K2_MORE")
    wf = Asm(); wfrag_read(wf, 128, vT+4)
    a.e(f"ds_read_b32 v{vT+7}, v{vT+9} offset:{AGG + 512}")
    for j, o in enumerate((0, 16, 64, 80)):
        a.e(f"ds_read_b128 v[{64+4*j}:{67+4*j}], v{vT+6} offset:{AGG + o}")
    a.e("s_waitcnt lgkmcnt(4)")
    a.e(f"v_cmpx_ne_u32 vcc, 0, v{vT+7}")
    a.e(f"v_add_u32 v{vT+7}, v{vT+7}, v{vT+5}")
    for j, o in enumerate((0, 16, 64, 80)):
        a.e(f"ds_read_b128 v[{80+4*j}:{83+4*j}], v{vT+7} offset:{o}")
    a.e("s_mov_b64 exec, -1")
    for x in wf.lines[:8]: a.e(x)
    a.e("s_mov_b64 exec, vcc")
    for j in range(4):
        a.e(f"s_waitcnt lgkmcnt({11-j})")
        for i in range(2):
            r = 64 + 4*j + 2*i
            a.e(f"v_pk_add_f32 {p2(r)}, {p2(r)}, {p2(r+16)}")
    a.e("s_mov_b64 exec, -1")
    for j in range(2):
        for i in range(4):
            a.e(f"v_cvt_pk_bf16_f32 v{96+4*j+i}, v{64+8*j+2*i}, v{65+8*j+2*i}")
        a.e(f"ds_write_b128 v{vT+2}, v[{96+4*j}:{99+4*j}] offset:{1024*j}")
    for x in wf.lines[8:]: a.e(x)
    a.e("s_waitcnt lgkmcnt(8)")
    a.e("s_barrier")
    stamp(a, 10, 252)
    for st in range(8):
        a.e(f"ds_read_b128 v[{64+4*st}:{67+4*st}], v{vT+3} offset:{(st>>1)*8192 + (st&1)*1024}")
    if cfg.owt:
        a.e(f"v_mul_u32_u24 v{vT+10}, 80, v{vM}")
        a.e(f"v_lshl_add_u32 v{vT+10}, v{vH16}, 1, v{vT+10}")
        a.e(f"s_add_u32 s{sT+1}, s{sM0}, 256")
        a.e(f"v_add_u32 v{vT+10}, s{sT+1}, v{vT+10}")
        a.e(f"v_lshrrev_b32 v{vT+12}, 2, v{vL}")
        a.e(f"v_and_b32 v{vT+14}, 3, v{vL}")
        a.e(f"v_lshlrev_b32 v{vT+14}, 4, v{vT+14}")
        a.e(f"v_lshl_add_u32 v{vT+13}, v{vT+12}, 8, v{vT+14}")
        a.e(f"v_mul_u32_u24 v{vT+12}, 80, v{vT+12}")
        a.e(f"v_add3_u32 v{vT+12}, v{vT+12}, v{vT+14}, s{sT+1}")
        a.e(f"s_lshr_b32 s{sT+3}, s{sW}, 2")
        a.e(f"s_lshl_b32 s{sT+3}, s{sT+3}, 13")
        a.e(f"s_and_b32 s{sT+4}, s{sW}, 3")
        a.e(f"s_lshl_b32 s{sT+4}, s{sT+4}, 6")
        a.e(f"s_add_u32 s{sT+3}, s{sT+3}, s{sT+4}")
        a.e(f"v_add_u32 v{vT+13}, s{sT+3}, v{vT+13}")
    else:
        a.e(f"v_mul_u32_u24 v{vT+10}, 272, v{vT+8}")
        a.e(f"v_lshl_add_u32 v{vT+10}, v{vH16}, 1, v{vT+10}")
        a.e(f"s_and_b32 s{sT+1}, s{sW}, 3")
        a.e(f"s_lshl_b32 s{sT+1}, s{sT+1}, 6")
        a.e(f"s_add_u32 s{sT+1}, s{sT+1}, {STG}")
        a.e(f"v_add_u32 v{vT+10}, s{sT+1}, v{vT+10}")
        a.e(f"v_lshrrev_b32 v{vT+12}, 4, v0")
        a.e(f"v_lshlrev_b32 v{vT+13}, 4, v0")
        a.e(f"v_lshl_add_u32 v{vT+12}, v{vT+12}, 4, v{vT+13}")
        a.e(f"v_add_u32 v{vT+12}, {STG}, v{vT+12}")
    for st in range(8):
        a.e(f"s_waitcnt lgkmcnt({7-st})")
        c = f"v[{ACX}:{ACX+15}]" if st == 0 else "v[160:175]"
        a.e(f"v_mfma_f32_32x32x16_bf16 v[160:175], v[{128+4*st}:{131+4*st}], v[{64+4*st}:{67+4*st}], {c}")
    a.e(f"s_mov_b32 s{sT+1}, {LOG2E_NEG}")
    a.e(f"s_mov_b32 s{sT}, {LOG2E_NEG}")
    stamp(a, 50, 252)
    a.e(f"s_mov_b32 s{sT+2}, 0x7b800000")
    a.e(f"v_cmp_le_f32 s[{sX0+2}:{sX0+3}], s{sT+2}, v{vCHK}")
    a.e(f"v_mov_b32 v{vT+11}, 0x207")
    a.e("s_nop 6")
    a.e(f"v_cmp_class_f32 vcc, v160, v{vT+11}")
    for hf in range(2):
        R = range(8 * hf, 8 * hf + 8)
        for i in R: a.e(f"v_exp_f32 v{64+i}, v{160+i}")
        if hf == 0:
            a.e(f"s_and_b64 vcc, vcc, s[{sX0}:{sX0+1}]")
            a.e(f"s_or_b64 s[{sX0+2}:{sX0+3}], vcc, s[{sX0+2}:{sX0+3}]")
        if hf: a.e("s_nop 0")
        for i in R[::2]: a.e(f"v_pk_fma_f32 {p2(64+i)}, {p2(64+i)}, s[{sT}:{sT+1}], s[{sT}:{sT+1}]")
        for i in R: a.e(f"v_rcp_f32 v{64+i}, v{64+i}")
        for i in R[::2]: a.e(f"v_pk_mul_f32 {p2(64+i)}, {p2(160+i)}, {p2(64+i)}")
        for i in range(4 * hf, 4 * hf + 4): a.e(f"v_cvt_pk_bf16_f32 v{80+i}, v{64+2*i}, v{65+2*i}")
        o = " offset:16" if hf else ""
        a.e(f"ds_write_b128 v{vT+10}, v[{80+4*hf}:{83+4*hf}]{o}")
    if cfg.owt:
        a.e(f"ds_read_b128 v[88:91], v{vT+12}")
        a.e(f"ds_read_b128 v[92:95], v{vT+12} offset:{16*80}")
        a.e(f"v_mov_b32 v{vT}, 1")
        a.e(f"v_mov_b32 v{vT+1}, {FLG+4}")
        a.e(f"s_movk_i32 s{sT+1}, 4096")
        a.e("s_waitcnt lgkmcnt(1)")
        a.e(f"buffer_store_dwordx4 v[88:91], v{vT+13}, s[{sO}:{sO+3}], 0 offen {cfg.o_pol}")
        a.e("s_waitcnt lgkmcnt(0)")
        a.e(f"buffer_store_dwordx4 v[92:95], v{vT+13}, s[{sO}:{sO+3}], s{sT+1} offen {cfg.o_pol}")
        a.e(f"s_mov_b64 exec, s[{sX0+2}:{sX0+3}]")
        a.e(f"ds_write_b32 v{vT+1}, v{vT}")
        a.e("s_mov_b64 exec, -1")
        a.e("s_waitcnt lgkmcnt(0)")
        a.e("s_barrier")
        a.e(f"ds_read_b32 v{vT}, v{vT+1}")
    else:
        a.e(f"v_mov_b32 v{vT}, 1")
        a.e(f"v_mov_b32 v{vT+1}, {FLG+4}")
        a.e(f"s_mov_b64 exec, s[{sX0+2}:{sX0+3}]")
        a.e(f"ds_write_b32 v{vT+1}, v{vT}")
        a.e("s_mov_b64 exec, -1")
        a.e(f"s_movk_i32 s{sT+1}, 8192")
        a.e("s_waitcnt lgkmcnt(0)")
        stamp(a, 51, 252)
        a.e("s_barrier")
        stamp(a, 52, 252)
        a.e(f"ds_read_b128 v[88:91], v{vT+12}")
        a.e(f"ds_read_b128 v[92:95], v{vT+12} offset:{32*272}")
        a.e(f"ds_read_b32 v{vT}, v{vT+1}")
        a.e("s_waitcnt lgkmcnt(2)")
        a.e(f"buffer_store_dwordx4 v[88:91], v{vT+13}, s[{sO}:{sO+3}], 0 offen {cfg.o_pol}")
        a.e("s_waitcnt lgkmcnt(1)")
        a.e(f"buffer_store_dwordx4 v[92:95], v{vT+13}, s[{sO}:{sO+3}], s{sT+1} offen {cfg.o_pol}")
    stamp(a, 11, 252)
    if cfg.dbg:
        a.e("s_waitcnt vmcnt(0)")
        a.e(f"v_writelane_b32 v252, s{sNT}, 13")
    stamp(a, 12, 252)
    stamp_out(a, 252, 253, 1)
    if cfg.x: a.e("s_branch K2_END")
    a.e("s_waitcnt lgkmcnt(0)")
    a.e(f"v_readfirstlane_b32 s{sT}, v{vT}")
    a.e(f"s_cmp_lg_u32 s{sSafe}, 0")
    a.e("s_cbranch_scc1 K2_END")
    a.e(f"s_cmp_lg_u32 s{sT}, 0")
    a.e("s_cbranch_scc1 K2_SAFE")
    a.label("K2_END")
    a.e("s_endpgm")
    a.lines += ool.lines
    a.label("K2_CODE_END")
    a.lines += rare.lines
    a.label("K2_NOTILES")
    a.e("s_waitcnt vmcnt(0)")
    w_dma(a, sWu, vWC, sW4k, 32768, WU2, sT)
    a.e("s_branch K2_AFTER")
    a.label("K2_SLOWM")
    for c in range(4):
        a.e(f"ds_read_b32 v{vT+16+c}, v{vSD} offset:{128*c}")
    a.e("s_waitcnt vmcnt(0) lgkmcnt(0)")
    a.e("s_barrier")
    a.e(f"s_mov_b64 exec, s[{sX0+2}:{sX0+3}]")
    for c in range(4):
        a.e(f"ds_add_f32 v{vFA}, v{vT+16+c} offset:{128*c}")
    a.e("s_branch K2_MERGED")
    a.label("K2_SAFE")
    a.e("s_waitcnt vmcnt(0)")
    a.e("s_barrier")
    a.e(f"s_mov_b32 s{sSafe}, -1")
    a.e(f"s_mov_b32 s{sDone}, 0")
    reset_round(a, True)
    a.e("s_branch K2_ROUND")
    a.label("K2_MORE")
    a.e("s_mov_b64 exec, -1")
    a.e(f"s_add_u32 s{sDone}, s{sDone}, s{sLim}")
    a.e("s_branch K2_RESET")
    a.label("K2_TOOBIG")
    a.e("s_barrier")
    a.e(f"s_mov_b32 s{sLim}, 16")
    a.label("K2_RESET")
    reset_round(a, False)
    a.label("K2_ROUND")
    srd(a, sR, S_WS, off_c=cfg.wsoff + WS_S01, size=WS_OFFT + 262144 - WS_S01)
    a.e(f"v_and_b32 v{t}, 0x1fc, v0")
    a.e(f"s_lshl_b32 s{sT}, s{sBin}, 10")
    a.e(f"s_add_u32 s{sT}, s{sT}, {WS_OFFT - WS_S01}")
    a.e(f"v_mov_b32 v{vROFF}, 0")
    a.e(f"v_cmp_lt_u32 vcc, 32, v{vOC}")
    a.e("s_mov_b64 exec, vcc")
    a.e(f"buffer_load_dword v{vROFF}, v{t}, s[{sR}:{sR+3}], s{sT} offen")
    a.e("s_mov_b64 exec, -1")
    a.e(f"v_and_b32 v{vW0}, 3, v0")
    a.e(f"v_lshlrev_b32 v{vW0}, 2, v{vW0}")
    a.e(f"v_add_u32 v{vW0}, s{sDone}, v{vW0}")
    a.e(f"s_lshl_b32 s{sT}, s{sBin}, {6 if cfg.lohi else 7}")
    a.e(f"v_lshl_add_u32 v{t}, v{t}, 13, s{sT}")
    a.e(f"s_mov_b32 s{sT}, {WS_REC - WS_S01 - 4}")
    a.e("s_waitcnt vmcnt(0)")
    a.e(f"v_add_u32 v{t+2}, v{vEB}, v{vROFF}")
    a.e(f"v_lshl_add_u32 v{t+2}, v{t+2}, 2, s{sT}")
    for g in range(2):
        a.e(f"v_add_u32 v{t+3}, {16*g}, v{vW0}")
        a.e(f"v_cmp_gt_u32 vcc, 32, v{t+3}")
        a.e("s_nop 1")
        if cfg.lohi:
            a.e(f"v_and_b32 v{t+1}, 16, v{t+3}")
            a.e(f"v_mul_u32_u24 v{t+1}, 1020, v{t+1}")
            a.e(f"v_add_u32 v{t+1}, v{t+1}, v{t}")
            a.e(f"v_cndmask_b32 v{t+4+g}, v{t+2}, v{t+1}, vcc")
        else:
            a.e(f"v_cndmask_b32 v{t+4+g}, v{t+2}, v{t}, vcc")
        a.e(f"v_lshl_add_u32 v{t+4+g}, v{t+3}, 2, v{t+4+g}")
        a.e(f"buffer_load_dwordx4 v[{RC+4*g}:{RC+4*g+3}], v{t+4+g}, s[{sR}:{sR+3}], 0 offen")
    round_consts(a)
    a.e("s_waitcnt vmcnt(0) lgkmcnt(0)")
    a.e("s_barrier")
    a.e("s_branch K2_COUNT")

HEADER = open("cdna_kernels/" + NAME + ".s.ref").read().split("; Override launch")[0]
def generate():
    a = Asm()
    gen_k1(a)
    gen_k2(a)
    if cfg.rep:
        rp = [int(v) for v in cfg.rep.split(",")]; k, wg, idx, j0, j1 = (rp + [0, 4])[:5]; xs = rp[5:]
        kernel_head(a, "rep_kernel")
        a.e("s_load_dwordx2 s[20:21], s[0:1], 64")
        a.e("s_cmp_lg_u32 s2, 0")
        a.e("s_cbranch_scc1 REP_END")
        a.e("s_waitcnt lgkmcnt(0)")
        srd(a, 8, S_WS, off_c=WS_DBG, size=0x200000)
        op = "max" if wg == 1 else "min"
        a.e("v_lshlrev_b32 v1, 11, v0")
        a.e(f"v_add_u32 v2, {k*0x100000 + idx*4}, v1")
        for j in range(4):
            a.e(f"s_mov_b32 s12, {j*64*2048}")
            a.e(f"buffer_load_dword v{4+j}, v1, s[8:11], s12 offen")
            a.e(f"buffer_load_dword v{8+j}, v2, s[8:11], s12 offen")
        a.e("s_waitcnt vmcnt(0)")
        for j in range(1, 4):
            a.e(f"v_min_u32 v4, v4, v{4+j}")
            if j0 < j < j1: a.e(f"v_{op}_u32 v{8+j0}, v{8+j0}, v{8+j}")
        a.e(f"v_mov_b32 v8, v{8+j0}")
        a.e("s_nop 1")
        a.e("v_readlane_b32 s12, v4, 0")
        a.e(f"v_readlane_b32 s13, v8, {xs[0] if xs else 0}")
        for l in range(1, 63):
            a.e(f"v_readlane_b32 s14, v4, {l}")
            a.e(f"v_readlane_b32 s15, v8, {l}")
            a.e("s_min_u32 s12, s12, s14")
            if not xs or l % 8 in xs: a.e(f"s_{op}_u32 s13, s13, s15")
        a.e("s_sub_u32 s12, s13, s12")
        a.e("s_min_u32 s12, s12, 8000")
        a.e("s_lshl_b32 s12, s12, 2")
        a.e("s_memrealtime s[14:15]")
        a.e("s_waitcnt lgkmcnt(0)")
        a.label("REP_L")
        a.e("s_memrealtime s[16:17]")
        a.e("s_waitcnt lgkmcnt(0)")
        a.e("s_sub_u32 s13, s16, s14")
        a.e("s_cmp_lt_u32 s13, s12")
        a.e("s_cbranch_scc1 REP_L")
        a.label("REP_END")
        a.e("s_endpgm")
    if cfg.align:
        a.lines, bad = align_pass(a.lines, "K2_LOOP" if cfg.align < 3 else "prep_kernel", "K2_CODE_END", cfg.align == 2)
        print("misaligned left:", bad, file=sys.stderr)
    body = a.text()
    probs = check_text(body)
    for p in probs: print("HAZARD", p, file=sys.stderr)
    k1lds = K1_LDS_B
    out = HEADER
    out += f"; @launch kernel=prep_kernel grid=(256,1,1) block=(512,1,1) lds={k1lds}\n"
    out += f"; @launch kernel={NAME}_kernel grid=(256,1,1) block=(512,1,1) lds={K2_LDS}\n"
    if cfg.rep: out += "; @launch kernel=rep_kernel grid=(1,1,1) block=(64,1,1) lds=0\n"
    out += '.amdgcn_target "amdgcn-amd-amdhsa--gfx950"\n' + body
    out += '.section .rodata,"a"\n.p2align 6\n' + kernel_desc("prep_kernel", 200 if cfg.dbg else 160, 96 if cfg.dbg else 80) + ".p2align 6\n" + kernel_desc(NAME + "_kernel", 256, 96)
    if cfg.rep: out += ".p2align 6\n" + kernel_desc("rep_kernel", 16, 32)
    return out

if __name__ == "__main__":
    outp = sys.argv[1]
    for kv in sys.argv[2:]:
        k, v = kv.split("=", 1)
        cur = getattr(cfg, k)
        setattr(cfg, k, (v not in ("0", "False")) if isinstance(cur, bool) else int(v, 0) if isinstance(cur, int) else v)
    open(outp, "w").write(generate())
```
